```python
import torch

def _softmax(x, axis=-1):
    return torch.softmax(x, dim=axis)

def _gelu(x):
    return torch.nn.functional.gelu(x, approximate='tanh')

def _silu(x):
    return torch.nn.functional.silu(x)

def _sigmoid(x):
    return torch.sigmoid(x)

def _layernorm(x, axis=-1, eps=1e-05):
    m = x.mean(dim=axis, keepdim=True)
    v = x.var(dim=axis, keepdim=True, unbiased=False)
    return (x - m) / torch.sqrt(v + eps)

def _scatter_add(tgt, idx, src, axis=0):
    return tgt.clone().index_add_(axis, idx, src)

def _segment_sum(src, seg, n):
    out = torch.zeros((n,) + src.shape[1:], dtype=src.dtype)
    return out.index_add_(0, seg, src)

def _pad(x, pw):
    flat = tuple((v for pair in reversed(pw) for v in pair))
    return torch.nn.functional.pad(x, flat)
kernel_name = 'adaLN_cond__gqa_block_cached__mixer_channel_mlp__decode'

def setup_inputs():

    _w = lambda a: (lambda t: t.to(torch.bfloat16) if t.is_floating_point() else t)(torch.as_tensor(a))

    def _A_setup():
        B, Sq, D = (2, 1, 1024)
        Hq, Hkv, Sk, Dh = (32, 4, 32768, 128)
        assert Hq % Hkv == 0, (Hq, Hkv)
        return {'x': _w((lambda *s: torch.randn(*s, dtype=torch.bfloat16) * 0.1)(B, Sq, D)), 'k_cache': _w((lambda *s: torch.randn(*s, dtype=torch.bfloat16) * 1.6)(B, Hkv, Sk, Dh)), 'v_cache': _w((lambda *s: torch.randn(*s, dtype=torch.bfloat16) * 0.8)(B, Hkv, Sk, Dh)), 'wq': _w((lambda *s: torch.randn(*s, dtype=torch.bfloat16) * 1.6)(D, Hq * Dh) * D ** (-0.5)), 'wo': _w((lambda *s: torch.randn(*s, dtype=torch.bfloat16) * 0.8)(Hq * Dh, D) * (Hq * Dh) ** (-0.5))}
    _A_in = _A_setup()

    def _B_setup():
        B, S, D, F = (2, 1, 1024, 3584)
        return {'x': _w((lambda *s: torch.randn(*s, dtype=torch.bfloat16) * 0.1)(B, S, D)), 'w1': _w((lambda *s: torch.randn(*s, dtype=torch.bfloat16) * 3.2)(D, F) * D ** (-0.5)), 'b1': _w((lambda *s: torch.randn(*s, dtype=torch.bfloat16) * 3.2)(F)), 'w2': _w((lambda *s: torch.randn(*s, dtype=torch.bfloat16) * 3.2)(F, D) * F ** (-0.5)), 'b2': _w((lambda *s: torch.randn(*s, dtype=torch.bfloat16) * 3.2)(D))}
    _B_in = _B_setup()
    return {'A_x': _A_in['x'], 'A_k_cache': _A_in['k_cache'], 'A_v_cache': _A_in['v_cache'], 'A_wq': _A_in['wq'], 'A_wo': _A_in['wo'], 'B_x': _B_in['x'], 'B_w1': _B_in['w1'], 'B_b1': _B_in['b1'], 'B_w2': _B_in['w2'], 'B_b2': _B_in['b2'], 'c': _w((lambda *s: torch.randn(*s, dtype=torch.bfloat16) * 0.2)(2, 1024) * 8.0), 'w_mod': _w((lambda *s: torch.randn(*s, dtype=torch.bfloat16) * 0.2)(1024, 6 * 1024) * 1024 ** (-0.5) * 8.0)}

def reference(A_x, A_k_cache, A_v_cache, A_wq, A_wo, B_x, B_w1, B_b1, B_w2, B_b2, c, w_mod):

    def _A_ref(x, k_cache, v_cache, wq, wo):
        B, Sq, D = x.shape
        Hq, Dh = (32, 128)
        Hkv = k_cache.shape[1]
        rep = Hq // Hkv
        q = (lambda x, *d: x.permute(*d))((x @ wq).reshape(B, Sq, Hq, Dh), 0, 2, 1, 3)
        k = (lambda x, n, axis: torch.repeat_interleave(x, n, dim=axis))(k_cache, rep, axis=1)
        v = (lambda x, n, axis: torch.repeat_interleave(x, n, dim=axis))(v_cache, rep, axis=1)
        scores = torch.einsum('bhqd,bhkd->bhqk', q, k) * Dh ** (-0.5)
        p = _softmax(scores, axis=-1)
        o = torch.einsum('bhqk,bhkd->bhqd', p, v)
        return (lambda x, *d: x.permute(*d))(o, 0, 2, 1, 3).reshape(B, Sq, Hq * Dh) @ wo

    def _B_ref(x, w1, b1, w2, b2):
        y = _layernorm(x, axis=-1)
        h = _gelu(torch.einsum('bsd,df->bsf', y, w1) + b1)
        return torch.einsum('bsf,fd->bsd', h, w2) + b2
    x = A_x
    mod = (_silu(c) @ w_mod).reshape(c.shape[0], 6, 1, -1)
    sa, ca, ga, sb, cb, gb = (mod[:, 0].clone(), mod[:, 1].clone(), mod[:, 2].clone(), mod[:, 3].clone(), mod[:, 4].clone(), mod[:, 5].clone())
    h = _layernorm(x, axis=-1) * (1 + ca) + sa
    x = x + ga * _A_ref(h, A_k_cache, A_v_cache, A_wq, A_wo)
    h = _layernorm(x, axis=-1) * (1 + cb) + sb
    x = x + gb * _B_ref(h, B_w1, B_b1, B_w2, B_b2)
    return x
```

```python
import sys
NAME = 'adaLN_cond__gqa_block_cached__mixer_channel_mlp__decode'

NG = 64
SPL = 24
NA = 8 * SPL
NWG = NG + NA
WPR = SPL * 8
NU = 6

MOD, QB, STATS, X1 = 0x0, 0x8000, 0x10000, 0x18000
MBA, MBB, MBC = 0x100000, 0x200000, 0x300000
MBA_ST = 2 * SPL * 256
WS_SIZE = 0x400000
SPIN = 1 << 18

REF = 'cdna_kernels/%s.s.ref' % NAME


class G:
    def __init__(self, stamps=False):
        self.L = []
        self.stamps = stamps
        self.nlabel = 0

    def __call__(self, s):
        for line in s.strip('\n').split('\n'):
            line = line.strip()
            if line:
                self.L.append(line if line.endswith(':') else '    ' + line)

    def label(self, p='L'):
        self.nlabel += 1
        return '%s_%d' % (p, self.nlabel)

    def stamp(self, k):
        if self.stamps:
            self('s_memrealtime s[%d:%d]' % (70 + 2 * k, 71 + 2 * k))

    def nop(self, n):
        while n > 0:
            k = min(n, 16)
            self('s_nop %d' % (k - 1))
            n -= k


def vr(a, n):
    return 'v[%d:%d]' % (a, a + n - 1)


S_WS, S_DBG, S_A, S_B = 's[48:51]', 's[52:55]', 's[56:59]', 's[60:63]'
S_LO, S_HI, S_MASK = 's64', 's65', 's66'
S_SPIN = 's67'


def poll(g, loads, regs, tmp, pre=None):
    lp, done = g.label('L_poll'), g.label('L_ok')
    g('s_mov_b32 %s, %d' % (S_SPIN, SPIN))
    g(lp + ':')
    g(loads)
    g('s_waitcnt vmcnt(0)')
    check(g, regs, tmp)
    g('s_cbranch_vccz %s' % done)
    g('s_sub_u32 %s, %s, 1' % (S_SPIN, S_SPIN))
    g('s_cbranch_scc0 %s' % lp)
    g(done + ':')


def check(g, regs, tmp):
    regs = list(regs)
    if len(regs) == 1:
        g('v_cmp_eq_u32 vcc, -1, v%d' % regs[0])
        return
    if len(regs) % 2 == 0:
        g('v_max_u32 v%d, v%d, v%d' % (tmp, regs[0], regs[1]))
        rest = regs[2:]
    else:
        g('v_max3_u32 v%d, v%d, v%d, v%d' % (tmp, regs[0], regs[1], regs[2]))
        rest = regs[3:]
    for i in range(0, len(rest), 2):
        g('v_max3_u32 v%d, v%d, v%d, v%d' % (tmp, tmp, rest[i], rest[i + 1]))
    g('v_cmp_eq_u32 vcc, -1, v%d' % tmp)


def srd(g, s, lo, hi, size):
    base = int(s[2:s.index(':')])
    g('s_mov_b32 s%d, %s\ns_mov_b32 s%d, %s\ns_mov_b32 s%d, 0x%x\ns_mov_b32 s%d, 0x20000' %
      (base, lo, base + 1, hi, base + 2, size, base + 3))


def write_stamps(g, n):
    if not g.stamps:
        return
    skip = g.label('L_nost')
    g('s_waitcnt lgkmcnt(0)')
    g('s_cmp_lg_u32 s3, 0\ns_cbranch_scc1 %s' % skip)
    g('s_mov_b64 exec, 1')
    g('s_lshl_b32 s4, s2, 8\ns_add_u32 s44, s44, s4\ns_addc_u32 s45, s45, 0')
    g('s_add_u32 s44, s44, %d\ns_addc_u32 s45, s45, 0' % (255 << 20))
    g('v_mov_b32 v1, 0')
    for k in range(n):
        g('v_mov_b32 v2, s%d\nv_mov_b32 v3, s%d' % (70 + 2 * k, 71 + 2 * k))
        g('global_store_dwordx2 v1, v[2:3], s[44:45] offset:%d' % (8 * k))
        g('s_nop 1')
    g(skip + ':')


def attention(g):
    KO, VO, QO, KO5, VO5, VSC, VMAX = 1, 2, 3, 4, 5, 6, 7
    Q0, SP, TMP, T2 = 8, 16, 40, 56
    SLOT = lambda s: 64 + 32 * s
    ACC = SLOT(0)
    U = lambda u: 's%d' % (4 + 2 * u)
    U2 = lambda u: 's%d' % (5 + 2 * u)
    S_BIAS, S_R, S_CU = 's46', 's47', 's68'
    OBUF, OST = 128, 4224

    g('L_attn:')
    g('s_sub_u32 s69, s2, %d' % NG)
    g('s_mul_hi_u32 %s, s69, %d' % (S_R, (1 << 32) // SPL + 1))
    g('s_mul_i32 %s, %s, %d\ns_sub_u32 %s, s69, %s' % (S_CU, S_R, SPL, S_CU, S_CU))
    g('s_mul_i32 s69, s3, %d\ns_add_u32 s69, s69, %s' % (SPL, S_CU))
    g('s_lshl_b32 %s, %s, 7\ns_add_u32 %s, %s, s69' % (S_BIAS, S_R, S_BIAS, S_BIAS))
    for u in range(NU):
        g('s_add_u32 %s, %s, %d\ns_and_b32 %s, %s, 1023\ns_lshl_b32 %s, %s, 13\ns_add_u32 %s, %s, 4096' %
          (U(u), S_BIAS, WPR * u, U(u), U(u), U(u), U(u), U2(u), U(u)))
    g('''v_and_b32 v8, 15, v0
         v_lshrrev_b32 v9, 4, v0
         v_bfe_u32 v10, v0, 1, 1
         v_bfe_u32 v11, v0, 2, 2
         v_lshl_add_u32 v10, v10, 2, v11
         v_lshlrev_b32 v%d, 8, v10
         v_and_b32 v10, 1, v0
         v_lshl_add_u32 v%d, v10, 6, v%d
         v_lshl_add_u32 v%d, v9, 4, v%d
         v_lshlrev_b32 v%d, 4, v0''' % (KO, KO, KO, KO, KO, VO))
    g('s_cmp_lt_u32 s69, %d' % (1024 - WPR * (NU - 1)))
    g('s_cselect_b32 s69, 0, 0x1000000\ns_cselect_b32 %s, 0, 0xff800000' % S_BIAS)
    g('v_add_u32 v%d, s69, v%d\nv_add_u32 v%d, s69, v%d' % (KO5, KO, VO5, VO))
    g('s_waitcnt lgkmcnt(0)')
    g('s_lshl_b32 s69, %s, 23' % S_R)
    g('s_add_u32 s56, s18, s69\ns_addc_u32 s57, s19, 0\ns_mov_b32 s58, 0x800000\ns_mov_b32 s59, 0x20000')
    g('s_add_u32 s60, s20, s69\ns_addc_u32 s61, s21, 0\ns_mov_b32 s62, 0x800000\ns_mov_b32 s63, 0x20000')

    def ldK(u):
        vo = KO5 if u == NU - 1 else KO
        for T in range(4):
            for c in range(2):
                g('buffer_load_dwordx4 %s, v%d, %s, %s offen offset:%d nt' %
                  (vr(SLOT(u) + (2 * T + c) * 4, 4), vo, S_A, U(u) if T < 2 else U2(u), (T & 1) * 2048 + c * 128))

    VSLOT = [1, 2, 3, 4, 5, 1]

    def ldV(u):
        vo = VO5 if u == NU - 1 else VO
        for t in range(8):
            g('buffer_load_dwordx4 %s, v%d, %s, %s offen offset:%d nt' %
              (vr(SLOT(VSLOT[u]) + t * 4, 4), vo, S_B, U(u) if t < 4 else U2(u), (t & 3) * 1024))

    ldK(0)
    ldK(1)
    srd(g, S_WS, 's44', 's45', WS_SIZE)
    srd(g, S_DBG, 's42', 's43', 256)
    g('''v_and_b32 v10, 7, v0
         v_lshlrev_b32 v%d, 8, v10
         v_bfe_u32 v10, v0, 3, 1
         v_lshl_add_u32 v%d, v10, 6, v%d
         v_lshl_add_u32 v%d, v9, 4, v%d
         s_lshl_b32 s69, %s, 11
         s_add_u32 s69, s69, %d
         v_add_u32 v%d, s69, v%d''' % (QO, QO, QO, QO, QO, S_R, QB, QO, QO))
    g('v_mov_b32 v%d, 0x3db504f3\nv_mov_b32 v%d, 0xff800000' % (VSC, VMAX))
    g('''v_lshlrev_b32 v%d, 2, v8
         v_mov_b32 v10, 0
         ds_write_b32 v%d, v%d
         ds_write_b32 v%d, v10 offset:64
         s_waitcnt lgkmcnt(0)
         s_barrier''' % (T2 + 7, T2 + 7, VMAX, T2 + 7))
    LA = T2 + 7
    cload = 'buffer_load_dword v%d, off, %s, 0 sc1' % (T2, S_DBG)
    qload = ('buffer_load_dwordx4 %s, v%d, %s, 0 offen sc1\nbuffer_load_dwordx4 %s, v%d, %s, 0 offen offset:128 sc1' %
             (vr(Q0, 4), QO, S_WS, vr(Q0 + 4, 4), QO, S_WS))
    g('s_waitcnt vmcnt(8)')
    ldK(2)
    g(cload)
    g('s_waitcnt vmcnt(9)')
    ldK(3)
    g('s_waitcnt vmcnt(8)')
    ok, lp = g.label('L_cok'), g.label('L_cpoll')
    g('s_mov_b32 %s, %d' % (S_SPIN, SPIN))
    g(lp + ':')
    g('v_cmp_ne_u32 vcc, %d, v%d\ns_cbranch_vccz %s' % (NG, T2, ok))
    g(cload + '\ns_waitcnt vmcnt(0)')
    g('s_sub_u32 %s, %s, 1\ns_cbranch_scc0 %s' % (S_SPIN, S_SPIN, lp))
    g(ok + ':')
    ldK(4)
    g(qload)
    g('s_waitcnt vmcnt(10)')
    ldK(5)
    g('s_waitcnt vmcnt(8)')
    g.stamp(1)
    ok, lp = g.label('L_qok'), g.label('L_qpoll')
    g('s_mov_b32 %s, %d' % (S_SPIN, SPIN))
    g(lp + ':')
    check(g, range(Q0, Q0 + 8), T2)
    g('s_cbranch_vccz %s' % ok)
    g(qload + '\ns_waitcnt vmcnt(0)')
    g('s_sub_u32 %s, %s, 1\ns_cbranch_scc0 %s' % (S_SPIN, S_SPIN, lp))
    g(ok + ':')
    g.stamp(2)

    def qk(u):
        for T in range(4):
            g('v_mfma_f32_16x16x32_bf16 %s, %s, %s, 0' % (vr(TMP + 4 * T, 4), vr(SLOT(u) + 8 * T, 4), vr(Q0, 4)))
        for T in range(4):
            g('v_mfma_f32_16x16x32_bf16 %s, %s, %s, %s' %
              (vr(TMP + 4 * T, 4), vr(SLOT(u) + 8 * T + 4, 4), vr(Q0 + 4, 4), vr(TMP + 4 * T, 4)))
        g.nop(5)
        for T in range(4):
            d = TMP + 4 * T
            a, b = T2 + 2 * (T & 1), T2 + 2 * (T & 1) + 1
            g('v_add_f32_dpp v%d, v%d, v%d row_ror:8 row_mask:0xf bank_mask:0xf' % (a, d + 1, d))
            g('v_add_f32_dpp v%d, v%d, v%d row_ror:8 row_mask:0xf bank_mask:0xf' % (b, d + 3, d + 2))
            g('v_cvt_pk_bf16_f32 v%d, v%d, v%d' % (b, a, b))
            g('v_lshlrev_b32 v%d, 16, v%d\nv_and_b32 v%d, %s, v%d' % (a, b, b, S_MASK, b))
            if u == NU - 1:
                g('v_fma_f32 v%d, v%d, v%d, %s\nv_fma_f32 v%d, v%d, v%d, %s' % (a, a, VSC, S_BIAS, b, b, VSC, S_BIAS))
            else:
                g('v_mul_f32 v%d, v%d, v%d\nv_mul_f32 v%d, v%d, v%d' % (a, a, VSC, b, b, VSC))
            g('v_max3_f32 v%d, v%d, v%d, v%d' % (VMAX, VMAX, a, b))
            g('v_cvt_pk_bf16_f32 v%d, v%d, v%d' % (SP + 4 * u + T, a, b))

    qk(0)
    qk(1)
    ldV(0)
    qk(2)
    qk(3)
    qk(4)
    g('s_waitcnt vmcnt(8)')
    ldV(1)
    qk(5)
    g('ds_max_f32 v%d, v%d' % (LA, VMAX))
    for i in range(32):
        g('v_mov_b32 v%d, 0' % (ACC + i))
    g('s_waitcnt lgkmcnt(0)\ns_barrier')
    g('ds_read_b32 v%d, v%d' % (VMAX, LA))
    g('v_mov_b32 v%d, 0x3fb8aa3b' % VSC)
    g('v_mov_b32 v%d, 0' % (T2 + 4))
    g('s_waitcnt lgkmcnt(0)')
    g('v_cvt_pk_bf16_f32 v%d, v%d, v%d\nv_lshlrev_b32 v%d, 16, v%d' % (VMAX, VMAX, VMAX, VMAX, VMAX))
    g('v_mul_f32 v%d, v%d, v%d' % (T2 + 5, VMAX, VSC))
    for i in range(4 * NU):
        p = SP + i
        a, b = T2 + 2 * (i & 1), T2 + 2 * (i & 1) + 1
        g('v_lshlrev_b32 v%d, 16, v%d\nv_and_b32 v%d, %s, v%d' % (a, p, b, S_MASK, p))
        g('v_fma_f32 v%d, v%d, v%d, -v%d\nv_fma_f32 v%d, v%d, v%d, -v%d' % (a, a, VSC, T2 + 5, b, b, VSC, T2 + 5))
        g('v_exp_f32 v%d, v%d\nv_exp_f32 v%d, v%d' % (a, a, b, b))
        g('v_add_f32 v%d, v%d, v%d' % (T2 + 4, T2 + 4, a))
        g('v_add_f32 v%d, v%d, v%d' % (T2 + 4, T2 + 4, b))
        g('v_cvt_pk_bf16_f32 v%d, v%d, v%d' % (p, a, b))
    g('ds_add_f32 v%d, v%d offset:64' % (LA, T2 + 4))
    g.stamp(3)

    def pv(u):
        s = SLOT(VSLOT[u])
        for w in range(4):
            t = TMP + 8 * (w & 1)
            for p in range(4):
                g('v_perm_b32 v%d, v%d, v%d, %s' % (t + p, s + 8 * p + 4 + w, s + 8 * p + w, S_LO))
            for p in range(4):
                g('v_perm_b32 v%d, v%d, v%d, %s' % (t + 4 + p, s + 8 * p + 4 + w, s + 8 * p + w, S_HI))
            g('v_mfma_f32_16x16x32_bf16 %s, %s, %s, %s' % (vr(ACC + 8 * w, 4), vr(t, 4), vr(SP + 4 * u, 4), vr(ACC + 8 * w, 4)))
            g('s_nop 0')
            g('v_mfma_f32_16x16x32_bf16 %s, %s, %s, %s' %
              (vr(ACC + 8 * w + 4, 4), vr(t + 4, 4), vr(SP + 4 * u, 4), vr(ACC + 8 * w + 4, 4)))

    g('s_waitcnt vmcnt(8)')
    ldV(2)
    pv(0)
    g('s_waitcnt vmcnt(8)')
    ldV(3)
    pv(1)
    g('s_waitcnt lgkmcnt(0)\ns_barrier')
    skip = g.label('L_nostat')
    g('s_cmp_lg_u32 s3, 0\ns_cbranch_scc1 %s' % skip)
    g('ds_read_b32 v%d, v%d offset:64' % (T2 + 1, LA))
    g('v_min_u32 v%d, -2, v%d' % (T2, VMAX))
    g('s_lshl_b32 s69, %s, 11\ns_lshl_b32 s4, %s, 3\ns_add_u32 s69, s69, s4\ns_add_u32 s69, s69, %d' % (S_R, S_CU, STATS))
    g('v_lshlrev_b32 v%d, 8, v0' % (T2 + 2))
    g('s_waitcnt lgkmcnt(0)')
    g('v_min_u32 v%d, -2, v%d' % (T2 + 1, T2 + 1))
    g('s_mov_b64 exec, 0xff')
    g('buffer_store_dwordx2 %s, v%d, %s, s69 offen sc1' % (vr(T2, 2), T2 + 2, S_WS))
    g('s_mov_b64 exec, -1')
    g(skip + ':')
    g('s_waitcnt vmcnt(8)')
    ldV(4)
    pv(2)
    g('s_waitcnt vmcnt(8)')
    ldV(5)
    pv(3)
    WA, RA, GA = KO, VO, QO
    g('''v_lshrrev_b32 v%d, 4, v0
         v_lshlrev_b32 v%d, 7, v%d
         v_and_b32 v%d, 15, v0
         v_lshl_add_u32 v%d, v%d, 4, v%d
         s_mul_i32 s69, s3, %d
         s_add_u32 s69, s69, %d
         v_add_u32 v%d, s69, v%d''' % (T2, T2, T2, T2 + 1, WA, T2 + 1, T2, OST, OBUF, WA, WA))
    g('''v_bfe_u32 v%d, v0, 1, 3
         v_mul_u32_u24 v%d, 528, v%d
         v_add_u32 v%d, v%d, v%d
         v_and_b32 v%d, 1, v0
         v_lshl_add_u32 v%d, v%d, 3, v%d
         s_lshl_b32 s69, s3, 4
         s_add_u32 s69, s69, %d
         v_add_u32 v%d, s69, v%d''' % (T2 + 1, T2 + 1, T2 + 1, RA, T2 + 1, T2, T2 + 1, RA, T2 + 1, RA, OBUF, RA, RA))
    g('''v_lshrrev_b32 v%d, 5, v0
         v_mul_u32_u24 v%d, %d, v%d
         v_and_b32 v%d, 31, v0
         v_lshl_add_u32 v%d, v%d, 3, v%d
         s_and_b32 s69, %s, 3
         s_lshl_b32 s69, s69, 3
         s_add_u32 s69, s69, s3
         s_mul_i32 s69, s69, %d
         s_lshr_b32 s4, %s, 2
         s_mul_i32 s4, s4, %d
         s_add_u32 s4, s4, %s
         s_lshl_b32 s4, s4, 8
         s_add_u32 s69, s69, s4
         s_add_u32 s69, s69, %d''' % (T2, T2, MBA_ST, T2, T2 + 1, GA, T2 + 1, T2, S_R, 2 * MBA_ST, S_R, SPL, S_CU, MBA))
    g('s_waitcnt vmcnt(8)')
    pv(4)
    g('s_waitcnt vmcnt(0)')
    g.stamp(4)
    pv(5)
    g('s_mov_b32 exec_lo, 0x00ff00ff\ns_mov_b32 exec_hi, 0x00ff00ff')
    for j in range(8):
        if j == 6:
            g.nop(3)
        g('ds_write_b128 v%d, %s offset:%d' % (WA, vr(ACC + 4 * j, 4), 528 * j))
    g('s_mov_b64 exec, -1')
    g('s_waitcnt lgkmcnt(0)\ns_barrier')
    for w in range(8):
        g('ds_read_b64 %s, v%d offset:%d' % (vr(TMP + 2 * w, 2), RA, OST * w))
    g('s_waitcnt lgkmcnt(4)')
    g('v_pk_add_f32 %s, %s, %s' % (vr(TMP, 2), vr(TMP, 2), vr(TMP + 2, 2)))
    g('v_pk_add_f32 %s, %s, %s' % (vr(TMP + 4, 2), vr(TMP + 4, 2), vr(TMP + 6, 2)))
    g('s_waitcnt lgkmcnt(0)')
    g('v_pk_add_f32 %s, %s, %s' % (vr(TMP + 8, 2), vr(TMP + 8, 2), vr(TMP + 10, 2)))
    g('v_pk_add_f32 %s, %s, %s' % (vr(TMP + 12, 2), vr(TMP + 12, 2), vr(TMP + 14, 2)))
    g('v_pk_add_f32 %s, %s, %s' % (vr(TMP, 2), vr(TMP, 2), vr(TMP + 4, 2)))
    g('v_pk_add_f32 %s, %s, %s' % (vr(TMP + 8, 2), vr(TMP + 8, 2), vr(TMP + 12, 2)))
    g('v_pk_add_f32 %s, %s, %s' % (vr(TMP, 2), vr(TMP, 2), vr(TMP + 8, 2)))
    g('v_min_u32 v%d, -2, v%d\nv_min_u32 v%d, -2, v%d' % (TMP, TMP, TMP + 1, TMP + 1))
    g('buffer_store_dwordx2 %s, v%d, %s, s69 offen sc1' % (vr(TMP, 2), GA, S_WS))
    g.stamp(5)
    write_stamps(g, 6)
    g('s_endpgm')


def gemv(g):
    ACTS, ACTH, RED, OUTV, OACC, RACC1, RACC2, STAT = 0, 4096, 8192, 16896, 17152, 17664, 17792, 17920
    BLK = lambda i: 64 + 32 * i
    UA, UB, UC = 0, 2, 4
    ACC = 32
    K0B, NB, NW, NR, NO, KB, TID = 1, 2, 3, 4, 5, 6, 7
    PO, RO, RL, XO, OUTO = 7, 8, 9, 10, 11
    Y = 8
    SB = 12
    WG = 16
    B1, RX, RGA, RGB, RB2 = 19, 20, 21, 22, 23
    T = 24
    JC = 's2'

    def nload(unit, ptr_lo, ptr_hi, size, rs, s_col, voff):
        srd(g, S_A, ptr_lo, ptr_hi, size)
        g('s_mov_b32 s4, %s' % s_col)
        for kb in range(2):
            for t in range(8):
                g('buffer_load_dwordx4 %s, v%d, %s, s4 offen nt' % (vr(BLK(unit + kb) + 4 * t, 4), voff, S_A))
                if not (kb == 1 and t == 7):
                    g('s_add_u32 s4, s4, %d' % (rs if t < 7 else rs * 57))

    def nvoff(dst, rs):
        g('''v_lshrrev_b32 v%d, 3, v0
             v_lshlrev_b32 v%d, 3, v%d
             s_lshl_b32 s4, s3, 7
             v_add_u32 v%d, s4, v%d
             v_mul_u32_u24 v%d, %d, v%d
             v_and_b32 v%d, 7, v0
             v_lshl_add_u32 v%d, v%d, 4, v%d''' % (dst, dst, dst, dst, dst, dst, rs, dst, T + 7, dst, T + 7, dst))

    def kload(unit, ptr_lo, ptr_hi, size, voff, rowf):
        srd(g, S_A, ptr_lo, ptr_hi, size)
        g('s_lshl_b32 s5, %s, 17' % JC)
        for kb in range(2):
            for t in range(8):
                off = rowf(kb, t) * 2048
                g('s_add_u32 s4, s5, %d' % off)
                g('buffer_load_dwordx4 %s, v%d, %s, s4 offen nt' % (vr(BLK(unit + kb) + 4 * t, 4), voff, S_A))

    def transpose(blk):
        b = BLK(blk)
        for p in range(4):
            a, c = b + 8 * p + p, b + 8 * p + 4 + p
            g('v_perm_b32 v%d, v%d, v%d, %s' % (T, c, a, S_LO))
            g('v_perm_b32 v%d, v%d, v%d, %s' % (c, c, a, S_HI))
            g('v_mov_b32 v%d, v%d' % (a, T))
        for p in range(4):
            for w in range(p + 1, 4):
                xa, xb = b + 8 * p + w, b + 8 * p + 4 + w
                ya, yb = b + 8 * w + p, b + 8 * w + 4 + p
                g('v_perm_b32 v%d, v%d, v%d, %s' % (T, xb, xa, S_LO))
                g('v_perm_b32 v%d, v%d, v%d, %s' % (T + 1, xb, xa, S_HI))
                g('v_perm_b32 v%d, v%d, v%d, %s' % (xa, yb, ya, S_LO))
                g('v_perm_b32 v%d, v%d, v%d, %s' % (xb, yb, ya, S_HI))
                g('v_mov_b32 v%d, v%d\nv_mov_b32 v%d, v%d' % (ya, T, yb, T + 1))

    def mfmas(unit, b0, b1):
        for kb, bop in ((0, b0), (1, b1)):
            for j in range(8):
                d = vr(ACC + 4 * j, 4)
                g('v_mfma_f32_16x16x32_bf16 %s, %s, %s, %s' % (d, vr(BLK(unit + kb) + 4 * j, 4), vr(bop, 4), d if kb else '0'))

    def nsplit(unit, act):
        g('ds_read_b128 %s, v%d offset:%d' % (vr(T, 4), NB, act))
        g('ds_read_b128 %s, v%d offset:%d' % (vr(T + 4, 4), NB, act + 128))
        g('s_waitcnt lgkmcnt(0)')
        mfmas(unit, T, T + 4)
        for dd in range(1, 4):
            m = 0x000f000f << (4 * dd)
            g('s_mov_b32 exec_lo, 0x%x\ns_mov_b32 exec_hi, 0x%x' % (m, m))
            if dd == 1:
                g.nop(2)
            if dd == 3:
                g.nop(2)
            for i in range(4):
                g('v_mov_b64 %s, %s' % (vr(ACC + 2 * i, 2), vr(ACC + 8 * dd + 2 * i, 2)))
        g('s_mov_b32 exec_lo, 0x33333333\ns_mov_b32 exec_hi, 0xcccccccc')
        g('ds_write_b128 v%d, %s' % (NW, vr(ACC, 4)))
        g('ds_write_b128 v%d, %s offset:128' % (NW, vr(ACC + 4, 4)))
        g('s_mov_b64 exec, -1')
        g('s_waitcnt lgkmcnt(0)\ns_barrier')
        for k in range(4):
            g('ds_read_b32 v%d, v%d offset:%d' % (T + k, NR, k * 4 * 544))
        g('s_waitcnt lgkmcnt(0)')
        g('v_add_f32 v%d, v%d, v%d\nv_add_f32 v%d, v%d, v%d\nv_add_f32 v%d, v%d, v%d' %
          (T, T, T + 1, T + 2, T + 2, T + 3, T, T, T + 2))
        g.nop(2)
        g('v_add_f32_dpp v%d, v%d, v%d quad_perm:[1,0,3,2] row_mask:0xf bank_mask:0xf' % (T, T, T))
        g.nop(2)
        g('v_add_f32_dpp v%d, v%d, v%d quad_perm:[2,3,0,1] row_mask:0xf bank_mask:0xf' % (T, T, T))

    def publish_outv(s_off, bstride):
        g('v_cvt_pk_bf16_f32 v%d, v%d, v%d' % (T, T, T))
        g('ds_write_b16 v%d, v%d' % (NO, T))
        g('s_waitcnt lgkmcnt(0)\ns_barrier')
        skip = g.label('L_nopub')
        g('s_cmp_lg_u32 s3, 0\ns_cbranch_scc1 %s' % skip)
        g('''v_lshlrev_b32 v%d, 4, v0
             ds_read_b128 %s, v%d offset:%d
             v_lshrrev_b32 v%d, 3, v0
             v_mul_u32_u24 v%d, %d, v%d
             v_and_b32 v%d, 7, v0
             v_lshl_add_u32 v%d, v%d, 4, v%d
             s_waitcnt lgkmcnt(0)''' % (T + 4, vr(T, 4), T + 4, OUTV, T + 5, T + 5, bstride, T + 5, T + 6, T + 5, T + 6, T + 5))
        for i in range(4):
            g('v_min_u32 v%d, -2, v%d' % (T + i, T + i))
        g('s_mov_b64 exec, 0xffff')
        g('buffer_store_dwordx4 %s, v%d, %s, %s offen sc1' % (vr(T, 4), T + 5, S_WS, s_off))
        g('s_mov_b64 exec, -1\ns_nop 0')
        g(skip + ':')

    def unpack(d, s):
        g('v_lshlrev_b32 v%d, 16, v%d\nv_and_b32 v%d, %s, v%d' % (d, s, d + 1, S_MASK, s))
        g('v_lshlrev_b32 v%d, 16, v%d\nv_and_b32 v%d, %s, v%d' % (d + 2, s + 1, d + 3, S_MASK, s + 1))

    def round4(d, t):
        g('v_cvt_pk_bf16_f32 v%d, v%d, v%d\nv_cvt_pk_bf16_f32 v%d, v%d, v%d' % (t, d, d + 1, t + 1, d + 2, d + 3))
        unpack(d, t)

    def layernorm(x, inst, last_packed=False):
        a, b = T + 4, T + 5
        g('v_add_f32 v%d, v%d, v%d\nv_mul_f32 v%d, v%d, v%d' % (a, x, x + 1, b, x, x))
        g('v_fmac_f32 v%d, v%d, v%d' % (b, x + 1, x + 1))
        g('v_add_f32 v%d, v%d, v%d\nv_fmac_f32 v%d, v%d, v%d' % (a, a, x + 2, b, x + 2, x + 2))
        g('v_add_f32 v%d, v%d, v%d\nv_fmac_f32 v%d, v%d, v%d' % (a, a, x + 3, b, x + 3, x + 3))
        for sh in (8, 4, 2, 1):
            g('s_nop 0')
            g('v_add_f32_dpp v%d, v%d, v%d row_ror:%d row_mask:0xf bank_mask:0xf' % (a, a, a, sh))
            g('v_add_f32_dpp v%d, v%d, v%d row_ror:%d row_mask:0xf bank_mask:0xf' % (b, b, b, sh))
        g('s_lshr_b32 s4, s3, 2\ns_lshl_b32 s4, s4, 3\ns_add_u32 s4, s4, %d\nv_mov_b32 v%d, s4' % (STAT + 16 * inst, T + 6))
        g('s_mov_b32 exec_lo, 0x00010001\ns_mov_b32 exec_hi, 0x00010001')
        g('ds_add_f32 v%d, v%d\nds_add_f32 v%d, v%d offset:4' % (T + 6, a, T + 6, b))
        g('s_mov_b64 exec, -1')
        g('s_waitcnt lgkmcnt(0)\ns_barrier')
        g('ds_read_b64 %s, v%d' % (vr(a, 2), T + 6))
        g('s_waitcnt lgkmcnt(0)')
        g('v_mul_f32 v%d, 0x3a800000, v%d\nv_mul_f32 v%d, 0x3a800000, v%d' % (a, a, b, b))
        g('v_fma_f32 v%d, -v%d, v%d, v%d' % (b, a, a, b))
        g('v_max_f32 v%d, 0, v%d' % (b, b))
        g('v_cvt_pk_bf16_f32 v%d, v%d, v%d' % (b, a, b))
        g('v_lshlrev_b32 v%d, 16, v%d\nv_and_b32 v%d, %s, v%d' % (a, b, b, S_MASK, b))
        g('v_add_f32 v%d, 0x3727c5ac, v%d' % (b, b))
        g('v_cvt_pk_bf16_f32 v%d, v%d, v%d\nv_lshlrev_b32 v%d, 16, v%d' % (b, b, b, b, b))
        g('v_sqrt_f32 v%d, v%d' % (b, b))
        for i in range(4):
            g('v_sub_f32 v%d, v%d, v%d' % (x + i, x + i, a))
        g('v_cvt_pk_bf16_f32 v%d, v%d, v%d\nv_lshlrev_b32 v%d, 16, v%d' % (b, b, b, b, b))
        g('v_rcp_f32 v%d, v%d' % (b, b))
        round4(x, T + 6)
        for i in range(4):
            g('v_mul_f32 v%d, v%d, v%d' % (x + i, x + i, b))
        if last_packed:
            g('v_cvt_pk_bf16_f32 v%d, v%d, v%d\nv_cvt_pk_bf16_f32 v%d, v%d, v%d' % (T + 6, x, x + 1, T + 7, x + 2, x + 3))
        else:
            round4(x, T + 6)

    def ksplit_out(unit, b0, b1, mb):
        mfmas(unit, b0, b1)
        for j in range(1, 8):
            m = 0x00030003 << (2 * j)
            g('s_mov_b32 exec_lo, 0x%x\ns_mov_b32 exec_hi, 0x%x' % (m, m))
            g('v_mov_b64 %s, %s\nv_mov_b64 %s, %s' % (vr(ACC, 2), vr(ACC + 4 * j, 2), vr(ACC + 2, 2), vr(ACC + 4 * j + 2, 2)))
        g('s_mov_b64 exec, -1')
        for i in range(4):
            g('v_min_u32 v%d, -2, v%d' % (ACC + i, ACC + i))
        g('buffer_store_dwordx4 %s, v%d, %s, %s offen sc1' % (vr(ACC, 4), PO, S_WS, mb))

    def reduce(mb, racc, nprod):
        if nprod < 64:
            skip = g.label('L_nored')
            g('s_cmp_ge_u32 s3, %d\ns_cbranch_scc1 %s' % (nprod // 8, skip))
        poll(g, 'buffer_load_dwordx4 %s, v%d, %s, %s offen sc1' % (vr(T, 4), RO, S_WS, mb), range(T, T + 4), T + 4)
        g('v_permlane32_swap_b32 v%d, v%d\nv_permlane32_swap_b32 v%d, v%d' % (T, T + 2, T + 1, T + 3))
        g('v_add_f32 v%d, v%d, v%d\nv_add_f32 v%d, v%d, v%d' % (T, T, T + 2, T + 1, T + 1, T + 3))
        g.nop(2)
        g('v_permlane16_swap_b32 v%d, v%d' % (T, T + 1))
        g('v_add_f32 v%d, v%d, v%d' % (T, T, T + 1))
        g.nop(2)
        g('v_add_f32_dpp v%d, v%d, v%d row_ror:8 row_mask:0xf bank_mask:0xf' % (T, T, T))
        g('s_mov_b32 exec_lo, 0x00ff00ff\ns_mov_b32 exec_hi, 0x00ff00ff')
        g('ds_add_f32 v%d, v%d offset:%d' % (RL, T, racc))
        g('s_mov_b64 exec, -1')
        if nprod < 64:
            g(skip + ':')
        g('s_waitcnt lgkmcnt(0)\ns_barrier')

    g('L_gemv:')
    g('s_lshl_b32 s4, s3, 6\nv_add_u32 v%d, s4, v0' % TID)
    g('''v_lshrrev_b32 v%d, 3, v%d
         v_lshlrev_b32 v%d, 6, v%d
         v_and_b32 v%d, 3, v%d
         v_lshl_add_u32 v%d, v%d, 4, v%d
         v_bfe_u32 v%d, v%d, 2, 1
         v_lshl_add_u32 v%d, v%d, 3, v%d''' % (K0B, TID, K0B, K0B, T, TID, K0B, T, K0B, T, TID, K0B, T, K0B))
    g('v_lshlrev_b32 v%d, 4, v%d' % (T + 1, TID))
    for i in range(4):
        g('v_mov_b32 v%d, -1' % (ACC + i))
    nvoff(T + 2, 12288)
    nvoff(T + 3, 8192)
    g('s_lshl_b32 s6, %s, 1\ns_sub_u32 s6, s6, 32\ns_cmp_lt_u32 %s, 32\ns_cselect_b32 s6, %s, s6\ns_lshl_b32 s6, s6, 7' % (JC, JC, JC))
    g('s_lshl_b32 s7, %s, 7' % JC)
    g('s_waitcnt lgkmcnt(0)')
    srd(g, S_WS, 's44', 's45', WS_SIZE)
    srd(g, S_DBG, 's42', 's43', 256)
    g('s_mul_i32 s8, %s, %d\ns_add_u32 s8, s8, %d' % (JC, MBA_ST, MBA))
    g('s_lshl_b32 s9, %s, 13\ns_add_u32 s10, s9, %d\ns_add_u32 s9, s9, %d' % (JC, MBC, MBB))
    st4 = 'buffer_store_dwordx4 %s, v%d, %s, %%s offen %%s sc1' % (vr(ACC, 4), T + 1, S_WS)
    g(st4 % ('s8', ''))
    g(st4 % ('s9', ''))
    g(st4 % ('s10', ''))
    lab_a, lab_b = g.label('L_clr'), g.label('L_clr')
    g('s_cmp_ge_u32 s3, 4\ns_cbranch_scc1 %s' % lab_a)
    g('s_add_u32 s4, s8, 8192')
    g(st4 % ('s4', ''))
    g('s_branch %s' % lab_b)
    g(lab_a + ':')
    g('''v_and_b32 v%d, 15, v0
         v_lshlrev_b32 v%d, 4, v%d
         s_lshr_b32 s4, %s, 1
         s_and_b32 s5, %s, 1
         s_lshl_b32 s5, s5, 5
         s_add_u32 s4, s4, s5
         s_lshl_b32 s4, s4, 8
         s_add_u32 s4, s4, %d
         v_add_u32 v%d, s4, v%d''' % (T + 4, T + 4, T + 4, JC, JC, STATS, T + 5, T + 4))
    g('''v_bfe_u32 v%d, v0, 3, 1
         v_and_b32 v%d, 7, v0
         v_lshlrev_b32 v%d, 4, v%d
         v_lshl_add_u32 v%d, v%d, 13, v%d
         s_add_u32 s4, s7, %d
         v_add_u32 v%d, s4, v%d
         s_mov_b32 exec_lo, 0xffff0000
         v_mov_b32 v%d, v%d''' % (T + 6, T + 7, T + 7, T + 7, T + 6, T + 6, T + 7, QB, T + 6, T + 6, T + 5, T + 6))
    g('''s_mov_b64 exec, -1
         v_bfe_u32 v%d, v0, 4, 1
         v_mul_u32_u24 v%d, 12288, v%d
         s_cmp_lt_u32 %s, 32
         s_cselect_b32 s4, 0x70, -1
         v_and_b32 v%d, s4, v%d
         v_add3_u32 v%d, v%d, v%d, s6
         s_mov_b32 exec_lo, 0
         v_mov_b32 v%d, v%d
         s_mov_b64 exec, -1''' % (T + 6, T + 6, T + 6, JC, T + 7, T + 4, T + 6, T + 6, T + 7, T + 5, T + 6))
    g('buffer_store_dwordx4 %s, v%d, %s, 0 offen sc1' % (vr(ACC, 4), T + 5, S_WS))
    g(lab_b + ':')
    g('s_lshl_b32 s11, %s, 6\ns_add_u32 s11, s11, %d' % (JC, X1))
    g('v_and_b32 v%d, 3, v0\nv_lshlrev_b32 v%d, 4, v%d' % (T + 4, T + 4, T + 4))
    g('buffer_store_dwordx4 %s, v%d, %s, s11 offen sc1' % (vr(ACC, 4), T + 4, S_WS))
    srd(g, S_B, 's36', 's37', 4096)
    g('buffer_load_dwordx2 %s, v%d, %s, 0 offen' % (vr(SB, 2), K0B, S_B))
    srd(g, S_B, 's16', 's17', 4096)
    g('buffer_load_dwordx2 %s, v%d, %s, 0 offen' % (vr(SB + 2, 2), K0B, S_B))
    nload(UA, 's38', 's39', 1024 * 12288, 12288, 's6', T + 2)
    nload(UB, 's22', 's23', 1024 * 8192, 8192, 's7', T + 3)
    g('v_lshlrev_b32 v%d, 2, v%d\nv_mov_b32 v%d, 0' % (T, TID, T + 1))
    g('v_cmp_gt_u32 vcc, 256, v%d\ns_and_saveexec_b64 s[4:5], vcc' % TID)
    g('ds_write_b32 v%d, v%d offset:%d' % (T, T + 1, OACC))
    g('s_mov_b64 exec, -1')
    g('''v_and_b32 v%d, 1, v0
         v_lshlrev_b32 v%d, 11, v%d
         v_lshrrev_b32 v%d, 4, v0
         v_lshl_add_u32 v%d, v%d, 5, v%d
         v_bfe_u32 v%d, v0, 1, 1
         v_lshl_add_u32 v%d, v%d, 4, v%d
         s_lshl_b32 s4, s3, 8
         v_add_u32 v%d, s4, v%d''' % (T, NB, T, T + 1, NB, T + 1, NB, T + 2, NB, T + 2, NB, NB, NB))
    g('''v_mul_u32_u24 v%d, 544, v%d
         v_lshl_add_u32 v%d, v%d, 8, v%d
         v_bfe_u32 v%d, v0, 2, 2
         v_lshl_add_u32 v%d, v%d, 5, v%d
         v_bfe_u32 v%d, v0, 4, 1
         v_lshl_add_u32 v%d, v%d, 4, v%d
         s_mul_i32 s4, s3, 1088
         s_add_u32 s4, s4, %d
         v_add_u32 v%d, s4, v%d''' % (NW, T + 2, NW, T, NW, T + 3, NW, T + 3, NW, T + 3, NW, T + 3, NW, RED, NW, NW))
    g('''v_and_b32 v%d, 3, v%d
         v_mul_u32_u24 v%d, 544, v%d
         v_and_b32 v%d, 0x1fc, v%d
         v_add_u32 v%d, v%d, v%d
         v_add_u32 v%d, %d, v%d''' % (T + 3, TID, NR, T + 3, T + 3, TID, NR, NR, T + 3, NR, RED, NR))
    g('''v_lshrrev_b32 v%d, 8, v%d
         v_lshlrev_b32 v%d, 7, v%d
         v_bfe_u32 v%d, v%d, 2, 3
         v_lshl_add_u32 v%d, v%d, 4, v%d
         v_bfe_u32 v%d, v%d, 5, 2
         v_lshl_add_u32 v%d, v%d, 2, v%d
         v_bfe_u32 v%d, v%d, 7, 1
         v_lshl_add_u32 v%d, v%d, 1, v%d
         v_add_u32 v%d, %d, v%d''' % (NO, TID, NO, NO, T + 3, TID, NO, T + 3, NO, T + 3, TID, NO, T + 3, NO, T + 3, TID,
                                      NO, T + 3, NO, NO, OUTV, NO))
    g('v_lshlrev_b32 v%d, 6, v%d\nv_lshl_add_u32 v%d, v%d, 3, v%d' % (KB, T, KB, T + 1, KB))
    g('s_waitcnt vmcnt(32) lgkmcnt(0)')
    g('s_barrier')
    skip = g.label('L_nosig')
    g('s_cmp_lg_u32 s3, 0\ns_cbranch_scc1 %s' % skip)
    g('v_mov_b32 v%d, 1\ns_mov_b64 exec, 1' % T)
    g('buffer_atomic_add v%d, off, %s, 0 sc1' % (T, S_DBG))
    g('s_mov_b64 exec, -1')
    g(skip + ':')
    unpack(ACC, SB)
    for i in range(4):
        g('v_mul_f32 v%d, 0xbfb8aa3b, v%d' % (T + i, ACC + i))
    for i in range(4):
        g('v_exp_f32 v%d, v%d' % (T + i, T + i))
    for i in range(4):
        g('v_add_f32 v%d, 1.0, v%d' % (T + i, T + i))
    for i in range(4):
        g('v_rcp_f32 v%d, v%d' % (T + i, T + i))
    for i in range(4):
        g('v_mul_f32 v%d, v%d, v%d' % (T + i, T + i, ACC + i))
    g('v_cvt_pk_bf16_f32 v%d, v%d, v%d\nv_cvt_pk_bf16_f32 v%d, v%d, v%d' % (T, T, T + 1, T + 1, T + 2, T + 3))
    g('ds_write_b64 v%d, %s offset:%d' % (K0B, vr(T, 2), ACTS))
    unpack(Y, SB + 2)
    layernorm(Y, 0)
    g.stamp(1)
    g('s_waitcnt vmcnt(24)')
    transpose(UA)
    g('s_waitcnt vmcnt(16)')
    transpose(UA + 1)
    nsplit(UA, ACTS)
    g('s_add_u32 s12, s6, %d' % MOD)
    publish_outv('s12', 12288)
    g.stamp(2)
    cload = 'buffer_load_dword v%d, off, %s, 0 sc1' % (B1, S_DBG)
    g(cload)
    g('s_waitcnt vmcnt(9)')
    transpose(UB)
    g('s_waitcnt vmcnt(0)')
    ok, lp = g.label('L_cok'), g.label('L_cpoll')
    g('s_mov_b32 %s, %d' % (S_SPIN, SPIN))
    g(lp + ':')
    g('v_cmp_ne_u32 vcc, %d, v%d\ns_cbranch_vccz %s' % (NG, B1, ok))
    g(cload + '\ns_waitcnt vmcnt(0)')
    g('s_sub_u32 %s, %s, 1\ns_cbranch_scc0 %s' % (S_SPIN, S_SPIN, lp))
    g(ok + ':')
    MO = WG
    g('''v_lshrrev_b32 v%d, 8, v%d
         v_mul_u32_u24 v%d, 10240, v%d
         v_add_u32 v%d, v%d, v%d''' % (MO, TID, MO, MO, MO, MO, K0B))
    ml = lambda part, d: 'buffer_load_dwordx2 %s, v%d, %s, s4 offen offset:%d sc1' % (vr(d, 2), MO, S_WS, part * 2048)
    g('s_mov_b32 s4, %d' % MOD)
    g(ml(0, SB) + '\n' + ml(1, SB + 2))
    transpose(UB + 1)
    g('s_waitcnt vmcnt(0)')
    check(g, range(SB, SB + 4), T)
    okl = g.label('L_mok')
    g('s_cbranch_vccz %s' % okl)
    poll(g, ml(0, SB) + '\n' + ml(1, SB + 2), range(SB, SB + 4), T)
    g(okl + ':')
    g.stamp(3)
    unpack(T, SB + 2)
    for i in range(4):
        g('v_add_f32 v%d, 1.0, v%d' % (T + i, T + i))
    round4(T, T + 4)
    for i in range(4):
        g('v_mul_f32 v%d, v%d, v%d' % (Y + i, Y + i, T + i))
    round4(Y, T + 4)
    unpack(T, SB)
    for i in range(4):
        g('v_add_f32 v%d, v%d, v%d' % (Y + i, Y + i, T + i))
    g('v_cvt_pk_bf16_f32 v%d, v%d, v%d\nv_cvt_pk_bf16_f32 v%d, v%d, v%d' % (T, Y, Y + 1, T + 1, Y + 2, Y + 3))
    g('ds_write_b64 v%d, %s offset:%d' % (K0B, vr(T, 2), ACTH))
    g('s_waitcnt lgkmcnt(0)\ns_barrier')
    nsplit(UB, ACTH)
    g('s_add_u32 s12, s7, %d' % QB)
    publish_outv('s12', 8192)
    g.stamp(4)

    VK = B1
    lab_m2, lab_j = g.label('L_m2'), g.label('L_join')
    g('s_cmp_lt_u32 %s, 32\ns_cbranch_scc1 %s' % (JC, lab_m2))
    nvoff(RX, 12288)
    g('s_add_u32 s6, s6, 128')
    nload(UC, 's38', 's39', 1024 * 12288, 12288, 's6', RX)
    g(lab_m2 + ':')
    g('''v_lshrrev_b32 v%d, 4, v0
         v_and_b32 v%d, 15, v0
         v_lshlrev_b32 v%d, 4, v%d
         s_lshl_b32 s4, s3, 8
         v_add_u32 v%d, s4, v%d
         v_lshl_add_u32 v%d, v%d, 12, v%d
         v_lshl_add_u32 v%d, v%d, 14, v%d''' % (T, T + 1, T + 1, T + 1, T + 1, T + 1, VK, T, T + 1, RGA, T, T + 1))
    kload(UA, 's24', 's25', 4096 * 2048, VK, lambda kb, t: 32 * kb + (t & 3) * 8 + (t >> 2))
    nvoff(RX, 7168)
    g('s_cmp_lt_u32 %s, 56\ns_cselect_b32 s13, 0, 0x1000000' % JC)
    g('v_add_u32 v%d, s13, v%d\nv_add_u32 v%d, s13, v%d' % (RX, RX, RGA, RGA))
    nload(UB, 's28', 's29', 1024 * 7168, 7168, 's7', RX)
    g('s_cmp_lt_u32 %s, 32\ns_cbranch_scc1 %s' % (JC, lab_j))
    g('s_waitcnt vmcnt(40)')
    transpose(UC)
    g('s_waitcnt vmcnt(32)')
    transpose(UC + 1)
    nsplit(UC, ACTS)
    g('s_add_u32 s12, s6, %d' % MOD)
    publish_outv('s12', 12288)
    g(lab_j + ':')
    kload(UC, 's32', 's33', 3584 * 2048, RGA, lambda kb, t: 32 * kb + t)
    for i in range(6):
        g('s_waitcnt vmcnt(%d)' % (40 - 8 * i))
        transpose(i)
    g.stamp(5)
    g('s_mov_b32 s4, %d' % (MOD + 3 * 2048))
    poll(g, ml(0, SB) + '\n' + ml(1, SB + 2), range(SB, SB + 4), T + 4)
    unpack(T, SB + 2)
    for i in range(4):
        g('v_add_f32 v%d, 1.0, v%d' % (T + i, T + i))
    g('v_cvt_pk_bf16_f32 v%d, v%d, v%d\nv_cvt_pk_bf16_f32 v%d, v%d, v%d' % (SB + 2, T, T + 1, SB + 3, T + 2, T + 3))
    srd(g, S_B, 's30', 's31', 3584 * 2)
    g('v_subrev_u32 v%d, %d, v%d\nv_and_b32 v%d, 0x7f, v%d' % (T, OUTV, NO, T, T))
    g('v_add_u32 v%d, s7, v%d' % (T, T))
    g('buffer_load_ushort v%d, v%d, %s, 0 offen' % (B1, T, S_B))
    g('''s_lshr_b32 s4, %s, 1
         s_lshl_b32 s4, s4, 6
         s_and_b32 s5, %s, 1
         s_lshl_b32 s5, s5, 3
         s_add_u32 s4, s4, s5
         v_bfe_u32 v%d, v0, 1, 2
         v_lshlrev_b32 v%d, 4, v%d
         v_and_b32 v%d, 1, v0
         v_lshl_add_u32 v%d, v%d, 2, v%d
         v_add_u32 v%d, s4, v%d
         v_bfe_u32 v%d, v0, 3, 1''' % (JC, JC, T, T, T, T + 1, T, T + 1, T, T, T, T + 1))
    srd(g, S_B, 's34', 's35', 2048)
    g('buffer_load_dword v%d, v%d, %s, 0 offen' % (RB2, T, S_B))
    g('v_mul_u32_u24 v%d, 12288, v%d\nv_add_u32 v%d, v%d, v%d' % (T + 2, T + 1, T + 2, T + 2, T))
    g('v_lshl_add_u32 v%d, v%d, 11, v%d' % (OUTO, T + 1, T))
    srd(g, S_B, 's16', 's17', 4096)
    g('buffer_load_dword v%d, v%d, %s, 0 offen' % (RX, OUTO, S_B))
    g('s_mov_b32 s4, %d\ns_mov_b32 s5, %d' % (MOD + 2 * 2048, MOD + 5 * 2048))
    poll(g, 'buffer_load_dword v%d, v%d, %s, s4 offen sc1\nbuffer_load_dword v%d, v%d, %s, s5 offen sc1' %
         (RGA, T + 2, S_WS, RGB, T + 2, S_WS), [RGA, RGB], T + 4)
    g('v_lshlrev_b32 v%d, 16, v%d' % (B1, B1))
    srd(g, S_B, 's40', 's41', 4096)
    g('''v_bfe_u32 v%d, v%d, 2, 6
         v_lshlrev_b32 v%d, 6, v%d
         v_lshrrev_b32 v%d, 8, v%d
         v_lshl_add_u32 v%d, v%d, 5, v%d
         v_and_b32 v%d, 3, v%d
         v_lshl_add_u32 v%d, v%d, 3, v%d
         v_add_u32 v%d, %d, v%d
         v_lshlrev_b32 v%d, 4, v%d''' % (XO, TID, XO, XO, T, TID, XO, T, XO, T, TID, XO, T, XO, XO, X1, XO, RO, TID))
    g('''v_and_b32 v%d, 1, v0
         v_lshlrev_b32 v%d, 6, v%d
         v_lshrrev_b32 v%d, 4, v0
         v_lshl_add_u32 v%d, v%d, 4, v%d
         v_bfe_u32 v%d, v0, 1, 2
         v_lshl_add_u32 v%d, v%d, 2, v%d''' % (T, RL, T, T, RL, T, RL, T, RL, T, RL))
    g('''v_lshrrev_b32 v%d, 3, v%d
         v_lshlrev_b32 v%d, 13, v%d
         v_and_b32 v%d, 7, v0
         v_lshl_add_u32 v%d, v%d, 4, v%d''' % (PO, TID, PO, PO, T, PO, T, PO))
    g('s_add_u32 s12, s7, %d\ns_add_u32 s13, s7, %d' % (MBB, MBC))
    g('''v_lshrrev_b32 v%d, 5, v0
         v_lshlrev_b32 v%d, 13, v%d
         v_and_b32 v%d, 31, v0
         v_lshl_add_u32 v%d, v%d, 3, v%d
         s_lshr_b32 s4, %s, 1
         s_lshl_b32 s4, s4, 8
         s_add_u32 s4, s4, %d
         v_mov_b32 v%d, 0xff800000
         v_mov_b32 v%d, 0
         s_mov_b32 exec_lo, 0x%x
         s_mov_b32 exec_hi, 0x%x''' % (T + 2, T + 2, T + 2, T + 3, T + 2, T + 3, T + 2, JC, STATS, T, T + 1,
                                       (1 << SPL) - 1, (1 << SPL) - 1))
    poll(g, 'buffer_load_dwordx2 %s, v%d, %s, s4 offen sc1' % (vr(T, 2), T + 2, S_WS), [T, T + 1], T + 4)
    g('s_mov_b64 exec, -1')

    def red32(r, t, op):
        for sh in (8, 4, 2, 1):
            g.nop(2)
            g('%s_dpp v%d, v%d, v%d row_ror:%d row_mask:0xf bank_mask:0xf' % (op, r, r, r, sh))
        g('v_mov_b32 v%d, v%d' % (t, r))
        g.nop(2)
        g('v_permlane16_swap_b32 v%d, v%d' % (r, t))
        g('%s v%d, v%d, v%d' % (op, r, r, t))
    g('v_mov_b32 v%d, v%d' % (T + 2, T))
    red32(T + 2, T + 3, 'v_max_f32')
    g('v_sub_f32 v%d, v%d, v%d\nv_mul_f32 v%d, 0x3fb8aa3b, v%d\nv_exp_f32 v%d, v%d\ns_nop 0' % (T, T, T + 2, T, T, T, T))
    g('v_mul_f32 v%d, v%d, v%d' % (T + 1, T + 1, T))
    red32(T + 1, T + 3, 'v_add_f32')
    g('v_rcp_f32 v%d, v%d\ns_nop 0\nv_mul_f32 v%d, v%d, v%d' % (T + 1, T + 1, T, T, T + 1))
    g('v_and_b32 v%d, 32, v0\ns_mul_i32 s4, s3, 3\nv_add_u32 v%d, s4, v%d\nv_lshlrev_b32 v%d, 2, v%d' %
      (T + 2, T + 2, T + 2, T + 2, T + 2))
    for k in range(3):
        g('ds_bpermute_b32 v%d, v%d, v%d offset:%d' % (WG + k, T + 2, T, 4 * k))
    AO, OA = ACC + 8, ACC + 9
    g('''v_lshrrev_b32 v%d, 5, v0
         v_mul_u32_u24 v%d, %d, v%d
         v_and_b32 v%d, 31, v0
         v_lshl_add_u32 v%d, v%d, 3, v%d
         v_lshlrev_b32 v%d, 3, v0
         s_mul_i32 s4, s3, 768
         s_add_u32 s8, s8, s4
         v_lshlrev_b32 v%d, 2, v%d
         s_waitcnt lgkmcnt(0)''' % (AO, AO, SPL * 256, AO, T, AO, T, AO, OA, ACC + 10, KB))
    g.stamp(6)

    poll(g, '\n'.join('buffer_load_dwordx2 %s, v%d, %s, s8 offen offset:%d sc1' % (vr(ACC + 2 * k, 2), AO, S_WS, 256 * k)
                      for k in range(3)), range(ACC, ACC + 6), T)
    g.stamp(7)
    g('v_mul_f32 v%d, v%d, v%d\nv_mul_f32 v%d, v%d, v%d' % (T, WG, ACC, T + 1, WG, ACC + 1))
    for k in (1, 2):
        g('v_fmac_f32 v%d, v%d, v%d\nv_fmac_f32 v%d, v%d, v%d' % (T, WG + k, ACC + 2 * k, T + 1, WG + k, ACC + 2 * k + 1))
    g('ds_add_f32 v%d, v%d offset:%d\nds_add_f32 v%d, v%d offset:%d' % (OA, T, OACC, OA, T + 1, OACC + 4))
    g('s_waitcnt lgkmcnt(0)\ns_barrier')
    for i in range(4):
        g('ds_read_b128 %s, v%d offset:%d' % (vr(ACC + 16 + 4 * i, 4), ACC + 10, OACC + (i >> 1) * 128 + (i & 1) * 16))
    g('s_waitcnt lgkmcnt(2)')
    for i in range(4):
        g('v_cvt_pk_bf16_f32 v%d, v%d, v%d' % (T + i, ACC + 16 + 2 * i, ACC + 17 + 2 * i))
    g('s_waitcnt lgkmcnt(0)')
    for i in range(4, 8):
        g('v_cvt_pk_bf16_f32 v%d, v%d, v%d' % (T + i, ACC + 16 + 2 * i, ACC + 17 + 2 * i))
    ksplit_out(UA, T, T + 4, 's12')
    g.stamp(8)
    reduce('s9', RACC1, 64)
    skip = g.label('L_nox1')
    g('s_cmp_lg_u32 s3, 0\ns_cbranch_scc1 %s' % skip)
    g('v_lshlrev_b32 v%d, 3, v0\nds_read_b64 %s, v%d offset:%d' % (T + 2, vr(T, 2), T + 2, RACC1))
    g('v_lshlrev_b32 v%d, 16, v%d\nv_and_b32 v%d, %s, v%d' % (T + 4, RGA, T + 5, S_MASK, RGA))
    g('v_lshlrev_b32 v%d, 16, v%d\nv_and_b32 v%d, %s, v%d' % (T + 6, RX, T + 7, S_MASK, RX))
    g('v_lshlrev_b32 v%d, 2, v0' % (T + 3))
    g('s_waitcnt lgkmcnt(0)')

    def round2(a):
        g('v_cvt_pk_bf16_f32 v%d, v%d, v%d' % (a + 1, a, a + 1))
        g('v_lshlrev_b32 v%d, 16, v%d\nv_and_b32 v%d, %s, v%d' % (a, a + 1, a + 1, S_MASK, a + 1))
    round2(T)
    g('v_mul_f32 v%d, v%d, v%d\nv_mul_f32 v%d, v%d, v%d' % (T, T, T + 4, T + 1, T + 1, T + 5))
    round2(T)
    g('v_add_f32 v%d, v%d, v%d\nv_add_f32 v%d, v%d, v%d' % (T, T, T + 6, T + 1, T + 1, T + 7))
    g('v_cvt_pk_bf16_f32 v%d, v%d, v%d' % (RX, T, T + 1))
    g('v_min_u32 v%d, -2, v%d' % (RX, RX))
    g('s_mov_b64 exec, 0xffff')
    g('buffer_store_dword v%d, v%d, %s, s11 offen sc1' % (RX, T + 3, S_WS))
    g('s_mov_b64 exec, -1')
    g(skip + ':')
    g.stamp(9)
    nomlp = g.label('L_nomlp')
    g('s_cmp_ge_u32 %s, 56\ns_cbranch_scc1 %s' % (JC, nomlp))
    XV = ACC
    unpack(ACC + 4, SB + 2)
    unpack(ACC + 8, SB)
    poll(g, 'buffer_load_dwordx2 %s, v%d, %s, 0 offen sc1' % (vr(T, 2), XO, S_WS), [T, T + 1], T + 2)
    g.stamp(10)
    unpack(XV, T)
    layernorm(XV, 1)
    for i in range(4):
        g('v_mul_f32 v%d, v%d, v%d' % (XV + i, XV + i, ACC + 4 + i))
    round4(XV, T + 6)
    for i in range(4):
        g('v_add_f32 v%d, v%d, v%d' % (XV + i, XV + i, ACC + 8 + i))
    round4(XV, T + 6)
    layernorm(XV, 2, last_packed=True)
    g('ds_write_b64 v%d, %s offset:%d' % (K0B, vr(T + 6, 2), ACTH))
    g('s_waitcnt lgkmcnt(0)\ns_barrier')
    nsplit(UB, ACTH)
    g('v_cvt_pk_bf16_f32 v%d, v%d, v%d\nv_lshlrev_b32 v%d, 16, v%d' % (T, T, T, T, T))
    g('v_add_f32 v%d, v%d, v%d' % (T, T, B1))
    g('v_cvt_pk_bf16_f32 v%d, v%d, v%d\nv_lshlrev_b32 v%d, 16, v%d' % (T, T, T, T, T))
    g('v_mul_f32 v%d, v%d, v%d' % (T + 1, T, T))
    g('v_mov_b32 v%d, 0xc0135761' % (T + 2))
    g('v_fmac_f32 v%d, 0xbdd2d3e8, v%d' % (T + 2, T + 1))
    g('v_mul_f32 v%d, v%d, v%d' % (T + 1, T + 2, T))
    g('v_exp_f32 v%d, v%d\ns_nop 0\nv_add_f32 v%d, 1.0, v%d' % (T + 1, T + 1, T + 1, T + 1))
    g('v_rcp_f32 v%d, v%d\nv_lshlrev_b32 v%d, 1, v%d\nv_mul_f32 v%d, v%d, v%d' % (T + 1, T + 1, T + 2, KB, T, T, T + 1))
    g('v_cvt_pk_bf16_f32 v%d, v%d, v%d' % (T, T, T))
    g('ds_write_b16 v%d, v%d' % (NO, T))
    g('v_mov_b32 v%d, v%d' % (ACC, T + 2))
    g('s_waitcnt lgkmcnt(0)\ns_barrier')
    g('ds_read_b128 %s, v%d offset:%d' % (vr(T, 4), ACC, OUTV))
    g('ds_read_b128 %s, v%d offset:%d' % (vr(T + 4, 4), ACC, OUTV + 64))
    g('s_waitcnt lgkmcnt(0)')
    ksplit_out(UC, T, T + 4, 's13')
    g(nomlp + ':')
    g.stamp(11)
    reduce('s10', RACC2, 56)
    skip = g.label('L_noout')
    g('s_cmp_lg_u32 s3, 0\ns_cbranch_scc1 %s' % skip)
    g('v_lshlrev_b32 v%d, 3, v0\nds_read_b64 %s, v%d offset:%d' % (T + 2, vr(T, 2), T + 2, RACC2))
    g('v_lshlrev_b32 v%d, 16, v%d\nv_and_b32 v%d, %s, v%d' % (T + 2, RB2, T + 3, S_MASK, RB2))
    g('v_lshlrev_b32 v%d, 16, v%d\nv_and_b32 v%d, %s, v%d' % (T + 4, RGB, T + 5, S_MASK, RGB))
    g('v_lshlrev_b32 v%d, 16, v%d\nv_and_b32 v%d, %s, v%d' % (T + 6, RX, T + 7, S_MASK, RX))
    g('s_waitcnt lgkmcnt(0)')
    round2(T)
    g('v_add_f32 v%d, v%d, v%d\nv_add_f32 v%d, v%d, v%d' % (T, T, T + 2, T + 1, T + 1, T + 3))
    round2(T)
    g('v_mul_f32 v%d, v%d, v%d\nv_mul_f32 v%d, v%d, v%d' % (T, T, T + 4, T + 1, T + 1, T + 5))
    round2(T)
    g('v_add_f32 v%d, v%d, v%d\nv_add_f32 v%d, v%d, v%d' % (T, T, T + 6, T + 1, T + 1, T + 7))
    g('v_cvt_pk_bf16_f32 v%d, v%d, v%d' % (T, T, T + 1))
    g('s_mov_b64 exec, 0xffff')
    g('buffer_store_dword v%d, v%d, %s, 0 offen' % (T, OUTO, S_B))
    g('s_mov_b64 exec, -1')
    g(skip + ':')
    g.stamp(12)
    write_stamps(g, 13)
    g('s_endpgm')


def build(stamps=False):
    g = G(stamps)
    ref = open(REF).read()
    g.L.append(ref[:ref.index('; Override launch')].rstrip())
    g.L.append('; @launch grid=(%d,1,1) block=(512,1,1) lds=36864' % NWG)
    g.L.append('.amdgcn_target "amdgcn-amd-amdhsa--gfx950"\n.text\n.globl %s_kernel\n.p2align 8\n.type %s_kernel,@function' % (NAME, NAME))
    g.L.append('%s_kernel:' % NAME)
    g.stamp(0)
    g('s_cmp_ge_u32 s2, %d\ns_cbranch_scc1 L_exit' % NWG)
    g('''s_load_dwordx16 s[16:31], s[0:1], 0
         s_load_dwordx8 s[32:39], s[0:1], 64
         s_load_dwordx4 s[40:43], s[0:1], 96
         s_load_dwordx2 s[44:45], s[0:1], 112
         v_lshrrev_b32 v1, 6, v0
         v_and_b32 v0, 63, v0
         v_readfirstlane_b32 s3, v1
         s_mov_b32 %s, 0x05040100
         s_mov_b32 %s, 0x07060302
         s_mov_b32 %s, 0xffff0000''' % (S_LO, S_HI, S_MASK))
    g('s_cmp_ge_u32 s2, %d\ns_cbranch_scc1 L_attn' % NG)
    gemv(g)
    g('L_exit:\ns_endpgm')
    attention(g)
    g.L.append('''.section .rodata,"a"
.p2align 6
.amdhsa_kernel %s_kernel
  .amdhsa_next_free_vgpr 256
  .amdhsa_next_free_sgpr 102
  .amdhsa_accum_offset 256
  .amdhsa_group_segment_fixed_size 0
  .amdhsa_kernarg_size 120
  .amdhsa_user_sgpr_count 2
  .amdhsa_user_sgpr_kernarg_segment_ptr 1
  .amdhsa_system_sgpr_workgroup_id_x 1
.end_amdhsa_kernel''' % NAME)
    return '\n'.join(g.L) + '\n'


if __name__ == '__main__':
    out = sys.argv[1]
    open(out, 'w').write(build(stamps='--stamps' in sys.argv))
```

```python
import sys
NAME = 'adaLN_cond__gqa_block_cached__mixer_channel_mlp__decode'
REF = 'cdna_kernels/%s.s.ref' % NAME

NG = 64
SPL = 24
NMR = 7
NA = 8 * SPL
NWG = NG + NA
WPR = SPL * 8
NU = 6

MOD, QB, STATS, X1, MODP = 0x0, 0x8000, 0x10000, 0x18000, 0x20000
MBA, MBB, MBC = 0x100000, 0x200000, 0x300000
MBA_ST = 2 * SPL * 256
WS_SIZE = 0x400000
SPIN = 1 << 18
C_Q, C_S, C_A, C_MOD, C_LATE = 0, 4, 8, 16, 144

P = dict(MSL=4, LSL=30, QSL=8, ASL=2, GS=1, DK1=2, NK1=32, DK2=4, DV=8, QP0=24, QPS=4, SLEEP=0, A5=56, HINT=1, ST=0)

S_WS, S_DBG, S_A, S_B = 's[48:51]', 's[52:55]', 's[56:59]', 's[60:63]'
S_LO, S_HI, S_MASK, S_SPIN = 's64', 's65', 's66', 's67'
DPP = 'row_mask:0xf bank_mask:0xf'


def vr(a, n):
    return 'v[%d:%d]' % (a, a + n - 1)


class G:
    def __init__(self, stamps=False):
        self.vm = []
        self.L = []
        self.stamps = stamps
        self.nlabel = 0
        self.nst = 0

    def __call__(self, s):
        for line in s.strip('\n').split('\n'):
            line = line.strip()
            if line:
                self.L.append(line if line.endswith(':') else '    ' + line)

    def label(self, p='L'):
        self.nlabel += 1
        return '%s_%d' % (p, self.nlabel)

    def stamp(self, name, sets=(0,)):
        if self.stamps and P['ST'] in sets:
            k = self.nst
            self.nst += 1
            assert k < 13, name
            self('s_memrealtime s[%d:%d] ; stamp %d %s' % (70 + 2 * k, 71 + 2 * k, k, name))

    def vmop(self, text, tag):
        for line in text.strip().split('\n'):
            self(line)
            self.vm.append(tag)

    def vmwait(self, *tags):
        idx = [i for i, t in enumerate(self.vm) if t in tags]
        if not idx:
            return
        n = len(self.vm) - 1 - idx[-1]
        assert n <= 63
        self('s_waitcnt vmcnt(%d)' % n)
        self.vm = self.vm[idx[-1] + 1:]

    def nop(self, n):
        while n > 0:
            k = min(n, 16)
            self('s_nop %d' % (k - 1))
            n -= k

    def bits(self, dst, src, fields, tmp, add=None):
        first = True
        for (lo, n, mul) in fields:
            t = dst if first else tmp
            if lo == 0:
                self(f'v_and_b32 v{t}, {(1 << n) - 1}, v{src}')
            else:
                self(f'v_bfe_u32 v{t}, v{src}, {lo}, {n}')
            pw = mul & (mul - 1) == 0
            sh = mul.bit_length() - 1
            if first:
                if mul != 1:
                    self(f'v_lshlrev_b32 v{dst}, {sh}, v{dst}' if pw else f'v_mul_u32_u24 v{dst}, {mul}, v{dst}')
            elif pw:
                self(f'v_lshl_add_u32 v{dst}, v{tmp}, {sh}, v{dst}')
            else:
                self(f'v_mul_u32_u24 v{tmp}, {mul}, v{tmp}\nv_add_u32 v{dst}, v{dst}, v{tmp}')
            first = False
        if add not in (None, 0):
            self(f'v_add_u32 v{dst}, {add}, v{dst}')

    def setexec(self, m):
        if m == -1:
            self('s_mov_b64 exec, -1')
        elif m < (1 << 31):
            self('s_mov_b64 exec, 0x%x' % m)
        else:
            self('s_mov_b32 exec_lo, 0x%x\ns_mov_b32 exec_hi, 0x%x' % (m & 0xffffffff, m >> 32))


def rep16(m):
    return m * 0x0001000100010001


def check(g, regs, tmp):
    regs = list(regs)
    if len(regs) == 1:
        g(f'v_cmp_eq_u32 vcc, -1, v{regs[0]}')
        return
    if len(regs) % 2 == 0:
        g(f'v_max_u32 v{tmp}, v{regs[0]}, v{regs[1]}')
        rest = regs[2:]
    else:
        g(f'v_max3_u32 v{tmp}, v{regs[0]}, v{regs[1]}, v{regs[2]}')
        rest = regs[3:]
    for i in range(0, len(rest), 2):
        g(f'v_max3_u32 v{tmp}, v{tmp}, v{rest[i]}, v{rest[i + 1]}')
    g(f'v_cmp_eq_u32 vcc, -1, v{tmp}')


def poll(g, loads, regs, tmp, sleep=0, preloaded=False):
    lp, done, chk = g.label('L_poll'), g.label('L_ok'), g.label('L_chk')
    g(f's_mov_b32 {S_SPIN}, {SPIN}')
    if preloaded:
        g(f's_branch {chk}')
    g(lp + ':')
    g(loads)
    g('s_waitcnt vmcnt(0)')
    if preloaded:
        g(chk + ':')
    check(g, regs, tmp)
    g(f's_cbranch_vccz {done}')
    if sleep:
        g(f's_sleep {sleep}')
    g(f's_sub_u32 {S_SPIN}, {S_SPIN}, 1\ns_cbranch_scc0 {lp}')
    g(done + ':')


def cread(reg, soff, off):
    return f'v_mov_b32 v{reg}, 0\ns_mov_b64 exec, 1\nbuffer_atomic_add v{reg}, off, {S_DBG}, {soff} offset:{off} sc0 sc1\ns_mov_b64 exec, -1'


def cpoll(g, reg, soff, off, target, sleep, preloaded=False):
    lp, done, chk = g.label('L_cpoll'), g.label('L_cok'), g.label('L_cchk')
    g(f's_mov_b32 {S_SPIN}, {SPIN}')
    if preloaded:
        g(f's_branch {chk}')
    g(lp + ':')
    g(cread(reg, soff, off) + '\ns_waitcnt vmcnt(0)')
    if preloaded:
        g(chk + ':')
    g(f'v_readfirstlane_b32 s99, v{reg}\ns_cmp_ge_u32 s99, {target}\ns_cbranch_scc1 {done}')
    if sleep:
        g(f's_sleep {sleep}')
    g(f's_sub_u32 {S_SPIN}, {S_SPIN}, 1\ns_cbranch_scc0 {lp}')
    g(done + ':')


def cwait(g, reg, soff, off, target, sleep):
    skip = only_wave(g, 0)
    cpoll(g, reg, soff, off, target, sleep)
    g(skip + ':')
    g('s_barrier')


def signal(g, reg, soff, off):
    g(f'v_mov_b32 v{reg}, 1\ns_mov_b64 exec, 1\nbuffer_atomic_add v{reg}, off, {S_DBG}, {soff} offset:{off} sc1\ns_mov_b64 exec, -1')


def srd(g, s, lo, size):
    base = int(s[2:s.index(':')])
    g(f's_mov_b32 s{base}, s{lo}\ns_mov_b32 s{base + 1}, s{lo + 1}\ns_mov_b32 s{base + 2}, 0x{size:x}\ns_mov_b32 s{base + 3}, 0x20000')


def only_wave(g, w):
    skip = g.label('L_skip')
    g(f's_cmp_lg_u32 s3, {w}\ns_cbranch_scc1 {skip}')
    return skip


def write_stamps(g):
    if not g.stamps:
        return
    g('s_waitcnt lgkmcnt(0)')
    skip = only_wave(g, 0)
    g('s_mov_b64 exec, 1')
    g('s_lshl_b32 s4, s2, 8\ns_add_u32 s4, s44, s4\ns_addc_u32 s5, s45, 0')
    g('s_add_u32 s4, s4, %d\ns_addc_u32 s5, s5, 0' % (255 << 20))
    g('v_mov_b32 v1, 0')
    for k in range(g.nst):
        g(f'v_mov_b32 v2, s{70 + 2 * k}\nv_mov_b32 v3, s{71 + 2 * k}')
        g(f'global_store_dwordx2 v1, v[2:3], s[4:5] offset:{8 * k}')
        g('s_nop 1')
    g(skip + ':')


def prefetch_code(g, label, nkb8, vtmp, vdst, tag=None):
    pc = g.label('L_pc')
    g('s_getpc_b64 s[98:99]')
    if label:
        g(f'{pc}:\ns_add_u32 s98, s98, {label}-{pc}\ns_addc_u32 s99, s99, 0')
    g('s_and_b32 s98, s98, 0xffffff80')
    g(f's_lshl_b32 s97, s3, 10\nv_lshl_add_u32 v{vtmp}, v0, 4, s97')
    for i in range(nkb8):
        if i:
            g(f'v_add_u32 v{vtmp}, 8192, v{vtmp}')
        t = f'global_load_dwordx4 {vr(vdst, 4)}, v{vtmp}, s[98:99]'
        g.vmop(t, tag) if tag else g(t)


BLK = lambda i: 64 + 32 * i
UA, UB, UC = 0, 2, 4
ACC = 32
KW, NB, NW, NR, NO, KB, TID, MO = 1, 2, 3, 4, 5, 6, 7, 16
T = 24


class Lds:
    def __init__(self, base):
        self.ACTS, self.ACTH, self.RED = base, base + 4096, base + 8192
        self.OUTV = base + 16896
        self.PART = base + 17152
        self.STAT = base + 18176
        self.END = base + 18368


def nvoff(g, dst, rs):
    g.bits(dst, TID, [(3, 6, rs), (0, 3, 16)], T + 7)


def nload(g, unit, ptr, size, rs, s_col, voff, kbs=(0, 1), tag=None):
    srd(g, S_A, ptr, size)
    for kb in kbs:
        g(f's_add_u32 s4, {s_col}, {kb * 512 * rs}')
        for t in range(8):
            g.vmop(f'buffer_load_dwordx4 {vr(BLK(unit + kb) + 4 * t, 4)}, v{voff}, {S_A}, s4 offen nt', (tag, kb))
            if t < 7:
                g(f's_add_u32 s4, s4, {64 * rs}')


def kload(g, unit, ptr, size, s_idx, voff, rowf, tag):
    srd(g, S_A, ptr, size)
    g(f's_lshl_b32 s5, {s_idx}, 17')
    for kb in range(2):
        for t in range(8):
            g(f's_add_u32 s4, s5, {rowf(kb, t) * 2048}')
            g.vmop(f'buffer_load_dwordx4 {vr(BLK(unit + kb) + 4 * t, 4)}, v{voff}, {S_A}, s4 offen nt', (tag, kb))


def transpose(g, blk):
    b = BLK(blk)
    for p in range(4):
        a, c = b + 8 * p + p, b + 8 * p + 4 + p
        g(f'v_perm_b32 v{T}, v{c}, v{a}, {S_LO}\nv_perm_b32 v{c}, v{c}, v{a}, {S_HI}\nv_mov_b32 v{a}, v{T}')
    for p in range(4):
        for w in range(p + 1, 4):
            xa, xb = b + 8 * p + w, b + 8 * p + 4 + w
            ya, yb = b + 8 * w + p, b + 8 * w + 4 + p
            g(f'v_perm_b32 v{T}, v{xb}, v{xa}, {S_LO}\nv_perm_b32 v{T + 1}, v{xb}, v{xa}, {S_HI}')
            g(f'v_perm_b32 v{xa}, v{yb}, v{ya}, {S_LO}\nv_perm_b32 v{xb}, v{yb}, v{ya}, {S_HI}')
            g(f'v_mov_b32 v{ya}, v{T}\nv_mov_b32 v{yb}, v{T + 1}')


def mfmas(g, unit, b0, b1):
    for kb, bop in ((0, b0), (1, b1)):
        if kb == 1:
            g('s_waitcnt lgkmcnt(0)')
        for j in range(8):
            d = vr(ACC + 4 * j, 4)
            g(f'v_mfma_f32_16x16x32_bf16 {d}, {vr(BLK(unit + kb) + 4 * j, 4)}, {vr(bop, 4)}, {d if kb else 0}')


def common_addr(g, L, kperm):
    K0B = T + 6
    g(f's_lshl_b32 s4, s3, 6\nv_add_u32 v{TID}, s4, v0')
    g.bits(K0B, TID, [(3, 6, 64), (0, 2, 16), (2, 1, 8)], T)
    g.bits(MO, TID, [(8, 1, 10240)], T)
    g(f'v_add_u32 v{MO}, v{MO}, v{K0B}')
    g.bits(KW, K0B, [(11, 1, 2048), (4, 3, 256), (10, 1, 128), (1, 3, 16), (7, 3, 2)], T)
    g.bits(NB, TID, [(0, 1, 2048), (6, 3, 256), (4, 2, 32), (1, 1, 16)], T)
    g.bits(NW, TID, [(6, 3, 1088), (1, 1, 544), (0, 1, 256), (2, 2, 32), (4, 1, 16)], T, L.RED)
    g.bits(NR, TID, [(0, 2, 544), (2, 7, 4)], T, L.RED)
    if kperm:
        g.bits(NO, TID, [(8, 1, 128), (4, 1, 64), (5, 1, 32), (7, 1, 16), (2, 2, 4), (6, 1, 2)], T, L.OUTV)
    else:
        g.bits(NO, TID, [(8, 1, 128), (2, 3, 16), (5, 2, 4), (7, 1, 2)], T, L.OUTV)
    g.bits(KB, TID, [(0, 1, 128), (4, 2, 16)], T, L.OUTV)


def nsplit(g, unit, act, half=None):
    if half is None:
        g(f'ds_read_b128 {vr(T, 4)}, v{NB} offset:{act}\nds_read_b128 {vr(T + 4, 4)}, v{NB} offset:{act + 128}')
        g('s_waitcnt lgkmcnt(1)')
        mfmas(g, unit, T, T + 4)
    else:
        g(f'ds_read_b128 {vr(T, 4)}, v{half} offset:{act}\ns_waitcnt lgkmcnt(0)')
        for j in range(8):
            g(f'v_mfma_f32_16x16x32_bf16 {vr(ACC + 4 * j, 4)}, {vr(BLK(unit) + 4 * j, 4)}, {vr(T, 4)}, 0')
    for dd in range(1, 4):
        g.setexec(rep16(0xf << (4 * dd)))
        if dd != 2:
            g.nop(2)
        for i in range(4):
            g(f'v_mov_b64 {vr(ACC + 2 * i, 2)}, {vr(ACC + 8 * dd + 2 * i, 2)}')
    g.setexec(0xcccccccc33333333)
    g(f'ds_write_b128 v{NW}, {vr(ACC, 4)}\nds_write_b128 v{NW}, {vr(ACC + 4, 4)} offset:128')
    g.setexec(-1)
    g('s_waitcnt lgkmcnt(0)\ns_barrier')
    for k in range(4):
        g(f'ds_read_b32 v{T + k}, v{NR} offset:{k * 4 * 544}')
    g('s_waitcnt lgkmcnt(2)')
    g(f'v_add_f32 v{T}, v{T}, v{T + 1}')
    g('s_waitcnt lgkmcnt(0)')
    g(f'v_add_f32 v{T + 2}, v{T + 2}, v{T + 3}\nv_add_f32 v{T}, v{T}, v{T + 2}')
    g.nop(2)
    g(f'v_add_f32_dpp v{T}, v{T}, v{T} quad_perm:[1,0,3,2] {DPP}')
    g.nop(2)
    g(f'v_add_f32_dpp v{T}, v{T}, v{T} quad_perm:[2,3,0,1] {DPP}')


def actwrite(g, p, act):
    g(f'ds_write_b16 v{KW}, v{p} offset:{act}\nds_write_b16_d16_hi v{KW}, v{p} offset:{act + 16}')
    g(f'ds_write_b16 v{KW}, v{p + 1} offset:{act + 32}\nds_write_b16_d16_hi v{KW}, v{p + 1} offset:{act + 48}')


def unpack2(g, d, s):
    g(f'v_lshlrev_b32 v{d}, 16, v{s}\nv_and_b32 v{d + 1}, {S_MASK}, v{s}')


def unpack(g, d, s):
    unpack2(g, d, s)
    unpack2(g, d + 2, s + 1)


def pack(g, t, d):
    g(f'v_cvt_pk_bf16_f32 v{t}, v{d}, v{d + 1}\nv_cvt_pk_bf16_f32 v{t + 1}, v{d + 2}, v{d + 3}')


def round4(g, d, t):
    pack(g, t, d)
    unpack(g, d, t)


def round2(g, a):
    g(f'v_cvt_pk_bf16_f32 v{a + 1}, v{a}, v{a + 1}')
    unpack2(g, a, a + 1)


def pk4(g, op, d, a, b):
    g(f'{op} {vr(d, 2)}, {vr(a, 2)}, {vr(b, 2)}\n{op} {vr(d + 2, 2)}, {vr(a + 2, 2)}, {vr(b + 2, 2)}')


def layernorm(g, x, sw, sr, off, last_packed=False):
    a, b = T + 4, T + 5
    g(f'v_add_f32 v{a}, v{x}, v{x + 1}\nv_mul_f32 v{b}, v{x}, v{x}')
    g(f'v_add_f32 v{T}, v{x + 2}, v{x + 3}\nv_fmac_f32 v{b}, v{x + 1}, v{x + 1}')
    g(f'v_add_f32 v{a}, v{a}, v{T}\nv_fmac_f32 v{b}, v{x + 2}, v{x + 2}\nv_fmac_f32 v{b}, v{x + 3}, v{x + 3}')
    for i, ctl in enumerate(['row_ror:8 ' + DPP, 'row_ror:4 ' + DPP, 'row_ror:2 ' + DPP, 'row_ror:1 ' + DPP,
                             'row_bcast:15 row_mask:0xa bank_mask:0xf', 'row_bcast:31 row_mask:0xc bank_mask:0xf']):
        if i:
            g('s_nop 0')
        g(f'v_add_f32_dpp v{a}, v{a}, v{a} {ctl}')
        if i == 0:
            g('s_nop 0')
        g(f'v_add_f32_dpp v{b}, v{b}, v{b} {ctl}')
    g.setexec(1 << 63)
    g(f'ds_write_b64 v{sw}, {vr(a, 2)} offset:{off}')
    g.setexec(-1)
    g('s_waitcnt lgkmcnt(0)\ns_barrier')
    g(f'ds_read_b128 {vr(T, 4)}, v{sr} offset:{off}\nds_read_b128 {vr(T + 4, 4)}, v{sr} offset:{off + 16}')
    g('s_waitcnt lgkmcnt(0)')
    pk4(g, 'v_pk_add_f32', T, T, T + 4)
    g(f'v_pk_add_f32 {vr(a, 2)}, {vr(T, 2)}, {vr(T + 2, 2)}')
    g(f'v_mul_f32 v{a}, 0x3a800000, v{a}\nv_mul_f32 v{b}, 0x3a800000, v{b}')
    g(f'v_fma_f32 v{b}, -v{a}, v{a}, v{b}\nv_max_f32 v{b}, 0, v{b}')
    round2(g, a)
    g(f'v_add_f32 v{b}, 0x3727c5ac, v{b}')
    g(f'v_cvt_pk_bf16_f32 v{b}, v{b}, v{b}\nv_lshlrev_b32 v{b}, 16, v{b}')
    g(f'v_sqrt_f32 v{b}, v{b}')
    for i in range(4):
        g(f'v_sub_f32 v{x + i}, v{x + i}, v{a}')
    g(f'v_cvt_pk_bf16_f32 v{b}, v{b}, v{b}\nv_lshlrev_b32 v{b}, 16, v{b}')
    g(f'v_rcp_f32 v{b}, v{b}')
    round4(g, x, T + 6)
    for i in range(4):
        g(f'v_mul_f32 v{x + i}, v{x + i}, v{b}')
    if last_packed:
        pack(g, T + 6, x)
    else:
        round4(g, x, T + 6)


def ksplit_out(g, unit, po, mb):
    g(f'ds_read_b128 {vr(T, 4)}, v{KB}\nds_read_b128 {vr(T + 4, 4)}, v{KB} offset:64')
    g('s_waitcnt lgkmcnt(1)')
    mfmas(g, unit, T, T + 4)
    for j in range(1, 8):
        g.setexec(rep16(3 << (2 * j)))
        g(f'v_mov_b64 {vr(ACC, 2)}, {vr(ACC + 4 * j, 2)}\nv_mov_b64 {vr(ACC + 2, 2)}, {vr(ACC + 4 * j + 2, 2)}')
    g.setexec(-1)
    for i in range(4):
        g(f'v_min_u32 v{ACC + i}, -2, v{ACC + i}')
    g(f'buffer_store_dwordx4 {vr(ACC, 4)}, v{po}, {S_WS}, {mb} offen sc1')


def ml(part, d, s):
    return f'buffer_load_dwordx2 {vr(d, 2)}, v{MO}, {S_WS}, {s} offen offset:{part * 2048} sc1'


def proj(g):
    L = Lds(0)
    Y, SB = 8, 12
    PO, RO, RL, OUTO = 8, 9, 10, 11
    WG, AO, OW = 12, 15, 16
    WQO, WMO, SW, SR = 17, 18, 19, 23
    RX, RGA, RGB, RB2 = 20, 21, 22, 23
    JC, ODD = 's14', 's15'
    g.vm = []

    def publish(s_off, bstride, cnt=None):
        g(f'v_cvt_pk_bf16_f32 v{T}, v{T}, v{T}\nds_write_b16 v{NO}, v{T}')
        g('s_waitcnt lgkmcnt(0)\ns_barrier')
        skip = only_wave(g, 0)
        g(f'v_lshlrev_b32 v{T + 4}, 4, v0\nds_read_b128 {vr(T, 4)}, v{T + 4} offset:{L.OUTV}')
        g.bits(T + 5, 0, [(3, 1, bstride), (0, 3, 16)], T + 6)
        g('s_waitcnt lgkmcnt(0)')
        g.setexec(0xffff)
        g(f'buffer_store_dwordx4 {vr(T, 4)}, v{T + 5}, {S_WS}, {s_off} offen sc1')
        g.setexec(-1)
        if cnt:
            g('s_waitcnt vmcnt(0)')
            signal(g, T + 4, *cnt)
        else:
            g('s_nop 0')
        g(skip + ':')

    def munit(unit, tag, s_col, cnt=None):
        g.vmwait((tag, 0))
        transpose(g, unit)
        g.vmwait((tag, 1))
        transpose(g, unit + 1)
        nsplit(g, unit, L.ACTS)
        publish(s_col, 12288, cnt)

    def reduce(mb, nprod):
        if nprod < 64:
            g(f'v_mov_b32 v{T}, 0')
            skip = g.label('L_nored')
            g(f's_cmp_ge_u32 s3, {nprod // 8}\ns_cbranch_scc1 {skip}')
        poll(g, f'buffer_load_dwordx4 {vr(T, 4)}, v{RO}, {S_WS}, {mb} offen sc1', range(T, T + 4), T + 4)
        g.stamp('red_polled', (1,))
        g(f'v_permlane32_swap_b32 v{T}, v{T + 2}\nv_permlane32_swap_b32 v{T + 1}, v{T + 3}')
        g(f'v_add_f32 v{T}, v{T}, v{T + 2}\nv_add_f32 v{T + 1}, v{T + 1}, v{T + 3}')
        g.nop(2)
        g(f'v_permlane16_swap_b32 v{T}, v{T + 1}\nv_add_f32 v{T}, v{T}, v{T + 1}')
        g.nop(2)
        g(f'v_add_f32_dpp v{T}, v{T}, v{T} row_ror:8 {DPP}')
        if nprod < 64:
            g(skip + ':')
        g(f'ds_write_b32 v{RL}, v{T}')
        g('s_waitcnt lgkmcnt(0)\ns_barrier')
        skip = only_wave(g, 0)
        g(f'v_and_b32 v{T + 2}, 15, v0\nv_lshlrev_b32 v{T + 2}, 3, v{T + 2}')
        for w in range(8):
            g(f'ds_read_b64 {vr(ACC + 2 * w, 2)}, v{T + 2} offset:{L.PART + 128 * w}')
        return skip

    def reduce_sum():
        g('s_waitcnt lgkmcnt(4)')
        pk4(g, 'v_pk_add_f32', ACC, ACC, ACC + 4)
        g('s_waitcnt lgkmcnt(0)')
        pk4(g, 'v_pk_add_f32', ACC + 8, ACC + 8, ACC + 12)
        pk4(g, 'v_pk_add_f32', ACC, ACC, ACC + 8)
        g(f'v_pk_add_f32 {vr(T, 2)}, {vr(ACC, 2)}, {vr(ACC + 2, 2)}')
        round2(g, T)

    g('L_proj:')
    g(f's_and_b32 {JC}, s2, 7\ns_lshl_b32 {JC}, {JC}, 3\ns_lshr_b32 s4, s2, 3\ns_add_u32 {JC}, {JC}, s4')
    g(f's_lshl_b32 s4, s3, 6\nv_add_u32 v{TID}, s4, v0')
    g.bits(T + 6, TID, [(3, 6, 64), (0, 2, 16), (2, 1, 8)], T)
    nvoff(g, WMO, 12288)
    g(f'''s_and_b32 {ODD}, {JC}, 1
          s_lshr_b32 s6, {JC}, 1
          s_lshl_b32 s6, s6, 7
          s_mul_i32 s13, {ODD}, {512 * 12288}
          s_add_u32 s13, s13, s6
          s_lshl_b32 s7, {JC}, 7
          s_lshr_b32 s46, {JC}, 4
          s_lshl_b32 s46, s46, 6
          s_waitcnt lgkmcnt(0)''')
    srd(g, S_B, 36, 4096)
    g.vmop(f'buffer_load_dwordx2 {vr(SB, 2)}, v{T + 6}, {S_B}, 0 offen', 'in')
    srd(g, S_B, 16, 4096)
    g.vmop(f'buffer_load_dwordx2 {vr(SB + 2, 2)}, v{T + 6}, {S_B}, 0 offen', 'in')
    prefetch_code(g, None, 1, T, ACC + 4, 'in')
    nload(g, UA, 38, 1024 * 12288, 12288, 's13', WMO, (0,), tag='m1')
    srd(g, S_WS, 44, WS_SIZE)
    srd(g, S_DBG, 42, 256)
    common_addr(g, L, False)
    nvoff(g, WQO, 8192)
    g(f's_lshl_b32 s4, s3, 3\nv_mov_b32 v{SW}, s4\ns_and_b32 s4, s4, 32\nv_mov_b32 v{SR}, s4')
    g(f's_mul_i32 s8, {JC}, {MBA_ST}\ns_add_u32 s8, s8, {MBA}')
    g(f's_lshl_b32 s9, {JC}, 13\ns_add_u32 s10, s9, {MBC}\ns_add_u32 s9, s9, {MBB}')
    g(f's_lshl_b32 s11, {JC}, 6\ns_add_u32 s11, s11, {X1}')
    g.vmwait('in')
    unpack(g, ACC, SB)
    for i in range(4):
        g(f'v_mul_f32 v{T + i}, 0xbfb8aa3b, v{ACC + i}')
    for i in range(4):
        g(f'v_exp_f32 v{T + i}, v{T + i}')
    for i in range(4):
        g(f'v_add_f32 v{T + i}, 1.0, v{T + i}')
    for i in range(4):
        g(f'v_rcp_f32 v{T + i}, v{T + i}')
    for i in range(4):
        g(f'v_mul_f32 v{T + i}, v{T + i}, v{ACC + i}')
    pack(g, T + 4, T)
    actwrite(g, T + 4, L.ACTS)
    unpack(g, Y, SB + 2)
    layernorm(g, Y, SW, SR, L.STAT)
    g.stamp('g_ln')
    l_w0 = g.label('L_w0')
    g(f's_cmp_eq_u32 s3, 0\ns_cbranch_scc1 {l_w0}')
    nload(g, UB, 22, 1024 * 8192, 8192, 's7', WQO, (0,), tag='wq')
    g(f's_waitcnt vmcnt(8)\ns_branch {l_w0}_b\n{l_w0}:\ns_waitcnt vmcnt(0)\n{l_w0}_b:')
    transpose(g, UA)
    g(f's_lshl_b32 s4, {ODD}, 7\nv_add_u32 v{T + 7}, s4, v{NB}')
    nsplit(g, UA, L.ACTS, T + 7)
    g(f'v_subrev_u32 v{T + 1}, {L.OUTV}, v{NO}\nv_lshlrev_b32 v{T + 1}, 1, v{T + 1}\nds_write_b32 v{T + 1}, v{T} offset:{L.PART}')
    g('s_waitcnt lgkmcnt(0)\ns_barrier')
    skip = only_wave(g, 0)
    g(f'v_lshlrev_b32 v{T + 4}, 4, v0\nds_read_b128 {vr(T, 4)}, v{T + 4} offset:{L.PART}')
    g.bits(T + 5, 0, [(4, 1, 8192), (0, 4, 16)], T + 6)
    g(f's_lshl_b32 s4, {ODD}, 14\ns_lshl_b32 s5, s6, 1\ns_add_u32 s4, s4, s5\ns_add_u32 s4, s4, {MODP}')
    g('s_waitcnt lgkmcnt(0)\ns_mov_b32 exec_hi, 0')
    g(f'buffer_store_dwordx4 {vr(T, 4)}, v{T + 5}, {S_WS}, s4 offen sc1')
    g('s_waitcnt vmcnt(0)')
    signal(g, T + 4, 0, C_MOD)
    g.stamp('g_mod')
    nload(g, UB, 22, 1024 * 8192, 8192, 's7', WQO, (0,), tag='wq')
    g(cread(RX, 0, C_MOD))
    g(skip + ':')
    nload(g, UB, 22, 1024 * 8192, 8192, 's7', WQO, (1,), tag='wq')
    MP = RGA
    g.bits(MP, TID, [(8, 1, 8192), (3, 5, 128), (0, 2, 32), (2, 1, 16)], T, MODP)
    g('s_waitcnt vmcnt(8)')
    skip = only_wave(g, 0)
    cpoll(g, RX, 0, C_MOD, NG, P['MSL'], preloaded=True)
    g(skip + ':')
    g('s_barrier')
    g(f's_mov_b32 s4, 4096\ns_mov_b32 s5, 16384\ns_mov_b32 s12, {16384 + 4096}')
    for i, so in enumerate(('0', 's5', 's4', 's12')):
        g(f'buffer_load_dwordx4 {vr(ACC + 4 * i, 4)}, v{MP}, {S_WS}, {so} offen sc1')
    transpose(g, UB)
    g('s_waitcnt vmcnt(4)')
    transpose(g, UB + 1)
    g('s_waitcnt vmcnt(0)')
    g.vm = []
    g.stamp('g_modseen')
    pk4(g, 'v_pk_add_f32', ACC, ACC, ACC + 4)
    pk4(g, 'v_pk_add_f32', T, ACC + 8, ACC + 12)
    round4(g, T, T + 4)
    for i in range(4):
        g(f'v_add_f32 v{T + i}, 1.0, v{T + i}')
    round4(g, T, T + 4)
    pk4(g, 'v_pk_mul_f32', Y, Y, T)
    round4(g, Y, T + 4)
    round4(g, ACC, T + 4)
    pk4(g, 'v_pk_add_f32', Y, Y, ACC)
    pack(g, T, Y)
    actwrite(g, T, L.ACTH)
    g('s_waitcnt lgkmcnt(0)\ns_barrier')
    nsplit(g, UB, L.ACTH)
    g(f's_add_u32 s12, s7, {QB}')
    publish('s12', 8192, ('s46', C_Q))
    g.stamp('g_q')

    for i in range(4):
        g(f'v_mov_b32 v{T + i}, -1')
    g(f'v_lshlrev_b32 v{RO}, 4, v{TID}\nv_and_b32 v{T + 5}, 63, v{RO}')
    for s, v in (('s9', RO), ('s10', RO), ('s11', T + 5)):
        g.vmop(f'buffer_store_dwordx4 {vr(T, 4)}, v{v}, {S_WS}, {s} offen sc1', 'clr')
    g(f's_xor_b32 s6, s7, 128\ns_add_u32 s6, s6, 4096')
    nload(g, UA, 38, 1024 * 12288, 12288, 's6', WMO, tag='m2')
    g.bits(PO, TID, [(4, 2, 4096), (6, 3, 256), (0, 4, 16)], T + 7)
    kload(g, UC, 24, 4096 * 2048, JC, PO, lambda kb, t: 32 * kb + (t & 3) * 8 + (t >> 2), 'wo')
    munit(UA, 'm2', 's6')
    g('s_waitcnt vmcnt(0)\ns_barrier')
    g.vm = []
    skip = only_wave(g, 0)
    signal(g, T + 4, 0, C_LATE)
    g(skip + ':')
    transpose(g, UC)
    transpose(g, UC + 1)
    g.stamp('g_loaded')
    cwait(g, T, 0, C_LATE, NG, P['LSL'])
    g(f's_lshr_b32 s4, {JC}, 1\ns_lshl_b32 s4, s4, 6\ns_lshl_b32 s5, {ODD}, 3\ns_add_u32 s4, s4, s5')
    g.bits(T, 0, [(1, 2, 16), (0, 1, 4)], T + 1, 's4')
    srd(g, S_B, 34, 2048)
    g(f'buffer_load_dword v{RB2}, v{T}, {S_B}, 0 offen')
    g(f'v_bfe_u32 v{T + 1}, v0, 3, 1\nv_mul_u32_u24 v{T + 2}, 12288, v{T + 1}\nv_add_u32 v{T + 2}, v{T + 2}, v{T}')
    g(f'v_lshl_add_u32 v{OUTO}, v{T + 1}, 11, v{T}')
    srd(g, S_B, 16, 4096)
    g(f'buffer_load_dword v{RX}, v{OUTO}, {S_B}, 0 offen')
    g(f's_mov_b32 s4, {MOD + 2 * 2048}\ns_mov_b32 s5, {MOD + 5 * 2048}')
    g(f'buffer_load_dword v{RGA}, v{T + 2}, {S_WS}, s4 offen sc1\nbuffer_load_dword v{RGB}, v{T + 2}, {S_WS}, s5 offen sc1')
    srd(g, S_B, 40, 4096)
    g.bits(RL, TID, [(6, 3, 128), (0, 1, 64), (4, 2, 16), (1, 2, 4)], T, L.PART)
    g.bits(PO, TID, [(3, 6, 8192), (0, 3, 16)], T)
    g(f's_add_u32 s12, s7, {MBB}')
    cwait(g, T, 's46', C_S, 2 * SPL, P['LSL'])
    g.bits(T + 2, 0, [(5, 1, 8192), (0, 5, 8)], T + 3)
    g(f's_lshr_b32 s4, {JC}, 1\ns_lshl_b32 s4, s4, 8\ns_add_u32 s4, s4, {STATS}')
    g(f'v_mov_b32 v{T}, 0xff800000\nv_mov_b32 v{T + 1}, 0')
    g.setexec(((1 << SPL) - 1) * 0x100000001)
    g(f'buffer_load_dwordx2 {vr(T, 2)}, v{T + 2}, {S_WS}, s4 offen sc1')
    g.setexec(-1)
    prefetch_code(g, 'L_proj_tail', 1, T + 5, ACC)
    g('s_waitcnt vmcnt(1)')

    def red32(r, t, op):
        for sh in (8, 4, 2, 1):
            g.nop(2)
            g(f'{op}_dpp v{r}, v{r}, v{r} row_ror:{sh} {DPP}')
        g(f'v_mov_b32 v{t}, v{r}')
        g.nop(2)
        g(f'v_permlane16_swap_b32 v{r}, v{t}\n{op} v{r}, v{r}, v{t}')
    g(f'v_mov_b32 v{T + 2}, v{T}')
    red32(T + 2, T + 3, 'v_max_f32')
    g(f'v_sub_f32 v{T}, v{T}, v{T + 2}\nv_mul_f32 v{T}, 0x3fb8aa3b, v{T}\nv_exp_f32 v{T}, v{T}\ns_nop 0')
    g(f'v_mul_f32 v{T + 1}, v{T + 1}, v{T}')
    red32(T + 1, T + 3, 'v_add_f32')
    g(f'v_rcp_f32 v{T + 1}, v{T + 1}\ns_nop 0\nv_mul_f32 v{T}, v{T}, v{T + 1}')
    g.bits(T + 2, TID, [(8, 1, 128), (3, 3, 4)], T + 3)
    for k in range(3):
        g(f'ds_bpermute_b32 v{WG + k}, v{T + 2}, v{T} offset:{32 * k}')
    g.bits(AO, TID, [(8, 1, SPL * 256), (3, 3, 256), (6, 2, 64), (0, 3, 8)], T + 3)
    g.bits(OW, TID, [(6, 3, 32), (0, 3, 4), (5, 1, 2)], T + 3, L.OUTV)
    g(f's_add_u32 s13, s8, 4096\ns_waitcnt lgkmcnt(0)')
    g.stamp('g_ready')

    g('L_proj_tail:')
    cwait(g, T, 's46', C_A, 2 * SPL, P['ASL'])
    g.stamp('g_hint', (0, 1))
    poll(g, f'''buffer_load_dwordx2 {vr(T, 2)}, v{AO}, {S_WS}, s8 offen sc1
                buffer_load_dwordx2 {vr(T + 2, 2)}, v{AO}, {S_WS}, s8 offen offset:2048 sc1
                buffer_load_dwordx2 {vr(T + 4, 2)}, v{AO}, {S_WS}, s13 offen sc1''', range(T, T + 6), T + 6, P['SLEEP'])
    g.stamp('g_apolled', (0, 1))
    g(f'v_mul_f32 v{T}, v{WG}, v{T}\nv_mul_f32 v{T + 1}, v{WG}, v{T + 1}')
    for k in (1, 2):
        g(f'v_fmac_f32 v{T}, v{WG + k}, v{T + 2 * k}\nv_fmac_f32 v{T + 1}, v{WG + k}, v{T + 2 * k + 1}')
    g.nop(2)
    g(f'v_permlane32_swap_b32 v{T}, v{T + 1}\nv_add_f32 v{T}, v{T}, v{T + 1}\nv_mov_b32 v{T + 1}, v{T}')
    g.nop(2)
    g(f'v_permlane16_swap_b32 v{T}, v{T + 1}\nv_add_f32 v{T}, v{T}, v{T + 1}')
    g.nop(2)
    g(f'v_add_f32_dpp v{T}, v{T}, v{T} row_ror:8 {DPP}')
    g(f'v_cvt_pk_bf16_f32 v{T}, v{T}, v{T}\nds_write_b16 v{OW}, v{T}')
    g('s_waitcnt lgkmcnt(0)\ns_barrier')
    g.stamp('g_obar', (1,))
    ksplit_out(g, UC, PO, 's12')
    g.stamp('g_t2', (0, 1))
    skip = reduce('s9', 64)
    unpack2(g, T + 4, RGA)
    unpack2(g, T + 6, RX)
    g(f'v_lshlrev_b32 v{T + 3}, 2, v0')
    reduce_sum()
    g(f'v_pk_mul_f32 {vr(T, 2)}, {vr(T, 2)}, {vr(T + 4, 2)}')
    round2(g, T)
    g(f'v_pk_add_f32 {vr(T, 2)}, {vr(T, 2)}, {vr(T + 6, 2)}')
    g(f'v_cvt_pk_bf16_f32 v{RX}, v{T}, v{T + 1}\nv_min_u32 v{RX}, -2, v{RX}')
    g.setexec(0xffff)
    g(f'buffer_store_dword v{RX}, v{T + 3}, {S_WS}, s11 offen sc1')
    g.setexec(-1)
    g(skip + ':')
    g.stamp('g_x1', (0, 1))
    g('s_barrier')
    skip = reduce('s10', 56)
    unpack2(g, T + 2, RB2)
    unpack2(g, T + 4, RGB)
    unpack2(g, T + 6, RX)
    reduce_sum()
    g(f'v_pk_add_f32 {vr(T, 2)}, {vr(T, 2)}, {vr(T + 2, 2)}')
    round2(g, T)
    g(f'v_pk_mul_f32 {vr(T, 2)}, {vr(T, 2)}, {vr(T + 4, 2)}')
    round2(g, T)
    g(f'v_pk_add_f32 {vr(T, 2)}, {vr(T, 2)}, {vr(T + 6, 2)}')
    g(f'v_cvt_pk_bf16_f32 v{T}, v{T}, v{T + 1}')
    g.setexec(0xffff)
    g(f'buffer_store_dword v{T}, v{OUTO}, {S_B}, 0 offen')
    g.setexec(-1)
    g(skip + ':')
    g.stamp('g_out', (0, 1))
    write_stamps(g)
    g('s_endpgm')


MLP_LDS = 37120


def mlp(g):
    L = Lds(MLP_LDS)
    PO, XO, SW, SR, B1 = 8, 9, 10, 11, 17
    C1, SH = 12, 18
    JM = 's14'
    g.vm = []
    g('L_mlp:')
    skip = only_wave(g, 0)
    g(cread(ACC + 4, 0, C_LATE))
    g(skip + ':')
    g(f's_lshl_b32 s4, s3, 6\nv_add_u32 v{TID}, s4, v0')
    nvoff(g, T + 5, 7168)
    g(f's_lshl_b32 s7, {JM}, 7')
    nload(g, UA, 28, 1024 * 7168, 7168, 's7', T + 5, tag='w1')
    g.bits(T + 5, TID, [(4, 2, 2048), (6, 3, 256), (0, 4, 16)], T + 7)
    kload(g, UB, 32, 3584 * 2048, JM, T + 5, lambda kb, t: 32 * kb + 4 * t, 'w2')
    common_addr(g, L, True)
    g(f's_mov_b32 s6, {MOD + 3 * 2048}')
    srd(g, S_B, 30, 3584 * 2)
    g.bits(T + 5, TID, [(2, 3, 16), (5, 2, 4), (7, 1, 2)], T, 's7')
    g.vmop(f'buffer_load_ushort v{B1}, v{T + 5}, {S_B}, 0 offen', 'k')
    prefetch_code(g, 'L_mlp_tail', 1, T + 5, ACC + 8, 'k')
    g.bits(XO, TID, [(2, 6, 64), (8, 1, 32), (0, 2, 8)], T, X1)
    g.bits(PO, TID, [(3, 6, 8192), (0, 3, 16)], T)
    g(f's_add_u32 s13, s7, {MBC}')
    g(f's_lshl_b32 s4, s3, 3\nv_mov_b32 v{SW}, s4\ns_and_b32 s4, s4, 32\nv_mov_b32 v{SR}, s4')
    for tag, u in (('w1', UA), ('w2', UB)):
        for kb in range(2):
            g.vmwait((tag, kb))
            if tag == 'w1' and kb == 0:
                skip = only_wave(g, 0)
                cpoll(g, ACC + 4, 0, C_LATE, NG, P['LSL'], preloaded=True)
                g(skip + ':')
                g('s_barrier')
                g.vmop(ml(0, ACC, 's6') + '\n' + ml(1, ACC + 2, 's6'), 'k')
            transpose(g, u + kb)
    g.vmwait('k')
    unpack(g, SH, ACC)
    unpack(g, C1, ACC + 2)
    for i in range(4):
        g(f'v_add_f32 v{C1 + i}, 1.0, v{C1 + i}')
    round4(g, C1, T)
    g(f'v_lshlrev_b32 v{B1}, 16, v{B1}')
    g.stamp('m_ready', (0, 2))
    g('L_mlp_tail:')
    XV = ACC
    poll(g, f'buffer_load_dwordx2 {vr(T, 2)}, v{XO}, {S_WS}, 0 offen sc1', [T, T + 1], T + 2)
    g.stamp('m_x1seen', (0, 2))
    unpack(g, XV, T)
    layernorm(g, XV, SW, SR, L.STAT)
    g.stamp('m_ln1', (2,))
    pk4(g, 'v_pk_mul_f32', XV, XV, C1)
    round4(g, XV, T + 6)
    pk4(g, 'v_pk_add_f32', XV, XV, SH)
    round4(g, XV, T + 6)
    layernorm(g, XV, SW, SR, L.STAT + 64, last_packed=True)
    actwrite(g, T + 6, L.ACTH)
    g('s_waitcnt lgkmcnt(0)\ns_barrier')
    g.stamp('m_ln2', (2,))
    nsplit(g, UA, L.ACTH)
    g.stamp('m_t3', (2,))
    g(f'''v_cvt_pk_bf16_f32 v{T}, v{T}, v{T}
          v_lshlrev_b32 v{T}, 16, v{T}
          v_add_f32 v{T}, v{T}, v{B1}
          v_cvt_pk_bf16_f32 v{T}, v{T}, v{T}
          v_lshlrev_b32 v{T}, 16, v{T}
          v_mov_b32 v{T + 2}, 0xc0135761
          v_mul_f32 v{T + 1}, v{T}, v{T}
          v_fmac_f32 v{T + 2}, 0xbdd2d3e8, v{T + 1}
          v_mul_f32 v{T + 1}, v{T + 2}, v{T}
          v_exp_f32 v{T + 1}, v{T + 1}
          s_nop 0
          v_add_f32 v{T + 1}, 1.0, v{T + 1}
          v_rcp_f32 v{T + 1}, v{T + 1}
          s_nop 0
          v_mul_f32 v{T}, v{T}, v{T + 1}
          v_cvt_pk_bf16_f32 v{T}, v{T}, v{T}
          ds_write_b16 v{NO}, v{T}
          s_waitcnt lgkmcnt(0)
          s_barrier''')
    g.stamp('m_gelu', (2,))
    ksplit_out(g, UB, PO, 's13')
    g.stamp('m_t4', (0, 2))
    write_stamps(g)
    g('s_endpgm')


def attention(g):
    KO, VO, QO, VSC, VMAX, OO = 1, 2, 3, 4, 5, 6
    Q0, SP, TMP, T2 = 8, 16, 40, 56
    LA, GA = T2 + 7, T2 + 6
    SLOT = lambda s: 64 + 32 * s
    AC = SLOT(0)
    U = lambda u: 's%d' % (4 + 2 * u)
    U2 = lambda u: 's%d' % (5 + 2 * u)
    S_R, S_CU, S_GA, S_T = 's47', 's68', 's96', 's69'
    S_B4, S_B5, S_O4, S_KV = 's46', 's100', 's101', 's101'
    MX, SM, OBUF, OST = 0, 512, 1024, 4224
    QL, QF = 1024 + 8 * 4224, 1024 + 8 * 4224 + 2048
    S_ST = 's97'
    NN = (SPL - NMR) * 8
    n4 = NN + P['A5']
    n5 = 1024 - 4 * WPR - n4
    assert 0 <= n5 <= NN
    base = [0, WPR, 2 * WPR, 3 * WPR, 4 * WPR, 4 * WPR + n4]
    g.vm = []

    g('L_attn:')
    g(f'''s_sub_u32 {S_T}, s2, {NG}
          s_mul_hi_u32 {S_R}, {S_T}, {(1 << 32) // SPL + 1}
          s_mul_i32 {S_CU}, {S_R}, {SPL}
          s_sub_u32 {S_CU}, {S_T}, {S_CU}
          s_mul_i32 {S_T}, s3, {SPL - NMR}
          s_mul_i32 {S_GA}, s3, {NMR}
          s_add_u32 {S_GA}, {S_GA}, {NN - (SPL - NMR)}
          s_cmp_lt_u32 {S_CU}, {SPL - NMR}
          s_cselect_b32 {S_T}, {S_T}, {S_GA}
          s_add_u32 {S_T}, {S_T}, {S_CU}
          s_lshl_b32 {S_GA}, {S_R}, 7
          s_add_u32 {S_GA}, {S_GA}, {S_T}''')
    for u in range(NU):
        g(f's_add_u32 {U(u)}, {S_GA}, {base[u]}\ns_and_b32 {U(u)}, {U(u)}, 1023\ns_lshl_b32 {U(u)}, {U(u)}, 13\ns_add_u32 {U2(u)}, {U(u)}, 4096')
    g.bits(KO, 0, [(1, 1, 1024), (2, 2, 256), (0, 1, 64), (4, 2, 16)], 8)
    g(f'v_lshlrev_b32 v{VO}, 4, v0')
    g(f's_cmp_lt_u32 {S_T}, {n4}\ns_cselect_b32 {S_O4}, 0, 0x1000000\ns_cselect_b32 {S_B4}, 0, 0xff800000')
    g(f's_cmp_lt_u32 {S_T}, {n5}\ns_cselect_b32 s98, 0, 0x1000000\ns_cselect_b32 {S_B5}, 0, 0xff800000')
    g(f'v_add_u32 v{OO}, {S_O4}, v{KO}\nv_add_u32 v{OO + 1}, s98, v{KO}')
    g('s_waitcnt lgkmcnt(0)')
    g(f's_lshl_b32 {S_T}, {S_R}, 23')
    g(f's_add_u32 s56, s18, {S_T}\ns_addc_u32 s57, s19, 0\ns_mov_b32 s58, 0x800000\ns_mov_b32 s59, 0x20000')
    g(f's_add_u32 s60, s20, {S_T}\ns_addc_u32 s61, s21, 0\ns_mov_b32 s62, 0x800000\ns_mov_b32 s63, 0x20000')

    VSLOT = [1, 2, 3, 4, 5, 1]

    def load(n):
        u, i = (n % 48) >> 3, n & 7
        so = U2(u) if i >= 4 else U(u)
        if n == 48:
            g(f'v_sub_u32 v{T2}, v{VO}, v{KO}\nv_add_u32 v{OO}, v{OO}, v{T2}\nv_add_u32 v{OO + 1}, v{OO + 1}, v{T2}')
        if n < 48:
            vo = KO if u < 4 else OO + u - 4
            g.vmop(f'buffer_load_dwordx4 {vr(SLOT(u) + 4 * i, 4)}, v{vo}, {S_A}, {so} offen offset:{((i >> 1) & 1) * 2048 + (i & 1) * 128} nt', n)
        else:
            vo = VO if u < 4 else OO + u - 4
            g.vmop(f'buffer_load_dwordx4 {vr(SLOT(VSLOT[u]) + 4 * i, 4)}, v{vo}, {S_B}, {so} offen offset:{(i & 3) * 1024} nt', n)

    def setup():
        srd(g, S_WS, 44, WS_SIZE)
        srd(g, S_DBG, 42, 256)
        g.bits(GA, 0, [(5, 1, MBA_ST), (0, 5, 8)], 8)
        g(f'''s_and_b32 {S_T}, {S_R}, 3
              s_lshl_b32 {S_T}, {S_T}, 3
              s_add_u32 {S_T}, {S_T}, s3
              s_mul_i32 {S_T}, {S_T}, {2 * MBA_ST}
              s_lshr_b32 {S_GA}, {S_R}, 2
              s_mul_i32 {S_GA}, {S_GA}, {SPL}
              s_add_u32 {S_GA}, {S_GA}, {S_CU}
              s_lshl_b32 {S_GA}, {S_GA}, 8
              s_add_u32 {S_GA}, {S_GA}, {S_T}
              s_add_u32 {S_GA}, {S_GA}, {MBA}
              v_mov_b32 v{T2 + 2}, -1
              v_mov_b32 v{T2 + 3}, -1''')
        g.vmop(f'buffer_store_dwordx2 {vr(T2 + 2, 2)}, v{GA}, {S_WS}, {S_GA} offen sc1', 'clr')
        prefetch_code(g, 'L_attn_body', 1, 8, TMP, 'pf')
        g(f's_and_b32 {S_KV}, {S_R}, 3\ns_lshl_b32 {S_KV}, {S_KV}, 6')
        g.bits(QO, 0, [(0, 3, 256), (3, 1, 64), (4, 2, 16)], 8)
        g(f'v_mov_b32 v{T2}, 0\nds_write_b32 v{T2}, v{T2} offset:{QF}\ns_mov_b32 {S_ST}, 0\ns_waitcnt lgkmcnt(0)\ns_barrier')
        g(f'v_mov_b32 v{VSC}, 0x3db504f3\nv_mov_b32 v{VMAX}, 0xff800000')
        g.bits(LA, 0, [(0, 4, 32)], 8)
        g('L_attn_body:')

    def qstep(final=False):
        skip = only_wave(g, 0)
        l1, l2, top = g.label('L_q1'), g.label('L_q2'), g.label('L_qtop')
        if final:
            g(f's_mov_b32 {S_SPIN}, {SPIN}\n{top}:')
        g(f's_cmp_eq_u32 {S_ST}, 2\ns_cbranch_scc1 {skip}')
        if final:
            g(f's_waitcnt vmcnt(0)\ns_sub_u32 {S_SPIN}, {S_SPIN}, 1\ns_cselect_b32 {S_ST}, 1, {S_ST}')
        g(f's_cmp_eq_u32 {S_ST}, 1\ns_cbranch_scc1 {l2}')
        g(f'v_readfirstlane_b32 s99, v{T2}\ns_cmp_ge_u32 s99, 16\ns_cbranch_scc1 {l1}')
        if final:
            g(f's_sleep {P["QSL"]}')
        g(cread(T2, S_KV, C_Q))
        g(f's_branch {top if final else skip}')
        g(l1 + ':')
        g(f's_lshl_b32 {S_T}, {S_R}, 11\ns_add_u32 {S_T}, {S_T}, {QB}\ns_mov_b32 {S_ST}, 1')
        g(f'buffer_load_dwordx4 {vr(Q0, 4)}, v{VO}, {S_WS}, {S_T} offen sc1')
        g(f'buffer_load_dwordx4 {vr(Q0 + 4, 4)}, v{VO}, {S_WS}, {S_T} offen offset:1024 sc1')
        g(f's_branch {top if final else skip}')
        g(l2 + ':')
        g(f'ds_write_b128 v{VO}, {vr(Q0, 4)} offset:{QL}\nds_write_b128 v{VO}, {vr(Q0 + 4, 4)} offset:{QL + 1024}')
        g(f'v_mov_b32 v{T2}, 0\nv_mov_b32 v{T2 + 1}, 1\ns_mov_b32 {S_ST}, 2\ns_waitcnt lgkmcnt(0)')
        g(f'ds_write_b32 v{T2}, v{T2 + 1} offset:{QF}')
        g(skip + ':')

    def qget():
        g.stamp('a_qwait')
        qstep(final=True)
        lp, ok = g.label('L_qf'), g.label('L_qfok')
        g(f'v_mov_b32 v{T2}, 0\ns_mov_b32 {S_SPIN}, {SPIN * 16}\n{lp}:')
        g(f'ds_read_b32 v{T2 + 1}, v{T2} offset:{QF}\ns_waitcnt lgkmcnt(0)')
        g(f'v_cmp_eq_u32 vcc, 0, v{T2 + 1}\ns_cbranch_vccz {ok}')
        g(f's_sleep 2\ns_sub_u32 {S_SPIN}, {S_SPIN}, 1\ns_cbranch_scc0 {lp}\n{ok}:')
        g(f'ds_read_b128 {vr(Q0, 4)}, v{QO} offset:{QL}\nds_read_b128 {vr(Q0 + 4, 4)}, v{QO} offset:{QL + 128}')
        g('s_waitcnt lgkmcnt(0)')
        g.stamp('a_qseen')

    def qk(u):
        for t in range(4):
            g(f'v_mfma_f32_16x16x32_bf16 {vr(TMP + 4 * t, 4)}, {vr(SLOT(u) + 8 * t, 4)}, {vr(Q0, 4)}, 0')
        for t in range(4):
            g(f'v_mfma_f32_16x16x32_bf16 {vr(TMP + 4 * t, 4)}, {vr(SLOT(u) + 8 * t + 4, 4)}, {vr(Q0 + 4, 4)}, {vr(TMP + 4 * t, 4)}')
        g.nop(5)
        for t in range(4):
            d = TMP + 4 * t
            a, b = T2 + 2 * (t & 1), T2 + 2 * (t & 1) + 1
            g(f'v_add_f32_dpp v{a}, v{d + 1}, v{d} row_ror:8 {DPP}\nv_add_f32_dpp v{b}, v{d + 3}, v{d + 2} row_ror:8 {DPP}')
            round2(g, a)
            if u >= 4:
                sb = S_B4 if u == 4 else S_B5
                g(f'v_fma_f32 v{a}, v{a}, v{VSC}, {sb}\nv_fma_f32 v{b}, v{b}, v{VSC}, {sb}')
            else:
                g(f'v_mul_f32 v{a}, v{a}, v{VSC}\nv_mul_f32 v{b}, v{b}, v{VSC}')
            g(f'v_max3_f32 v{VMAX}, v{VMAX}, v{a}, v{b}\nv_cvt_pk_bf16_f32 v{SP + 4 * u + t}, v{a}, v{b}')

    def red_g(r, t, op):
        for ins in ('v_permlane32_swap_b32', 'v_permlane16_swap_b32'):
            g(f'v_mov_b32 v{t}, v{r}')
            g.nop(2)
            g(f'{ins} v{r}, v{t}\n{op} v{r}, v{r}, v{t}')

    def softmax():
        red_g(VMAX, T2, 'v_max_f32')
        g(f's_lshl_b32 {S_T}, s3, 2\nv_add_u32 v{QO}, {S_T}, v{LA}')
        g(f'ds_write_b32 v{QO}, v{VMAX} offset:{MX}')
        for i in range(0, 32, 2):
            g(f'v_mov_b64 {vr(AC + i, 2)}, 0')
        g('s_waitcnt lgkmcnt(0)\ns_barrier')
        g(f'ds_read_b128 {vr(TMP, 4)}, v{LA} offset:{MX}\nds_read_b128 {vr(TMP + 4, 4)}, v{LA} offset:{MX + 16}')
        g(f'v_mov_b32 v{VSC}, 0x3fb8aa3b\nv_mov_b32 v{T2 + 4}, 0')
        g('s_waitcnt lgkmcnt(0)')
        for i in range(0, 8, 2):
            g(f'v_max3_f32 v{VMAX}, v{VMAX}, v{TMP + i}, v{TMP + i + 1}')
        g(f'v_cvt_pk_bf16_f32 v{VMAX}, v{VMAX}, v{VMAX}\nv_lshlrev_b32 v{VMAX}, 16, v{VMAX}')
        g(f'v_mul_f32 v{T2 + 5}, v{VMAX}, v{VSC}')

    def probs(u):
        for i in range(4 * u, 4 * u + 4):
            p = SP + i
            a, b = T2 + 2 * (i & 1), T2 + 2 * (i & 1) + 1
            unpack2(g, a, p)
            g(f'v_fma_f32 v{a}, v{a}, v{VSC}, -v{T2 + 5}\nv_fma_f32 v{b}, v{b}, v{VSC}, -v{T2 + 5}')
            g(f'v_exp_f32 v{a}, v{a}\nv_exp_f32 v{b}, v{b}')
            g(f'v_add_f32 v{T2 + 4}, v{T2 + 4}, v{a}\nv_add_f32 v{T2 + 4}, v{T2 + 4}, v{b}')
            g(f'v_cvt_pk_bf16_f32 v{p}, v{a}, v{b}')
        if u == NU - 1:
            red_g(T2 + 4, T2, 'v_add_f32')
            g(f'ds_write_b32 v{QO}, v{T2 + 4} offset:{SM}')
            g.stamp('a_probs')

    def pv(u):
        s = SLOT(VSLOT[u])
        for w in range(4):
            t = TMP + 8 * (w & 1)
            for p in range(4):
                g(f'v_perm_b32 v{t + p}, v{s + 8 * p + 4 + w}, v{s + 8 * p + w}, {S_LO}')
            for p in range(4):
                g(f'v_perm_b32 v{t + 4 + p}, v{s + 8 * p + 4 + w}, v{s + 8 * p + w}, {S_HI}')
            g(f'v_mfma_f32_16x16x32_bf16 {vr(AC + 8 * w, 4)}, {vr(t, 4)}, {vr(SP + 4 * u, 4)}, {vr(AC + 8 * w, 4)}')
            g('s_nop 0')
            g(f'v_mfma_f32_16x16x32_bf16 {vr(AC + 8 * w + 4, 4)}, {vr(t + 4, 4)}, {vr(SP + 4 * u, 4)}, {vr(AC + 8 * w + 4, 4)}')

    def stats():
        g('s_waitcnt lgkmcnt(0)\ns_barrier')
        skip = only_wave(g, 0)
        g(f'ds_read_b128 {vr(Q0, 4)}, v{LA} offset:{SM}\nds_read_b128 {vr(Q0 + 4, 4)}, v{LA} offset:{SM + 16}')
        g(f'v_mov_b32 v{T2}, v{VMAX}')
        g(f's_lshl_b32 {S_T}, {S_R}, 11\ns_lshl_b32 s98, {S_CU}, 3\ns_add_u32 {S_T}, {S_T}, s98\ns_add_u32 {S_T}, {S_T}, {STATS}')
        g(f'v_lshlrev_b32 v{T2 + 2}, 8, v0')
        g('s_waitcnt lgkmcnt(0)')
        pk4(g, 'v_pk_add_f32', Q0, Q0, Q0 + 4)
        g(f'v_pk_add_f32 {vr(Q0, 2)}, {vr(Q0, 2)}, {vr(Q0 + 2, 2)}\nv_add_f32 v{T2 + 1}, v{Q0}, v{Q0 + 1}')
        g.setexec(0xff)
        g(f'buffer_store_dwordx2 {vr(T2, 2)}, v{T2 + 2}, {S_WS}, {S_T} offen sc1')
        g.setexec(-1)
        g(skip + ':')

    WA, RA = KO, QO

    def epi_addr():
        g(f's_mul_i32 {S_T}, s3, {OST}\ns_add_u32 {S_T}, {S_T}, {OBUF}')
        g.bits(WA, 0, [(4, 2, 128), (0, 4, 16)], T2, S_T)
        g(f's_lshl_b32 {S_T}, s3, 4\ns_add_u32 {S_T}, {S_T}, {OBUF}')
        g.bits(RA, 0, [(1, 3, 528), (4, 2, 128), (0, 1, 8)], T2, S_T)

    GS = P['GS']
    depth = lambda n: P['DK1'] if n < P['NK1'] else (P['DK2'] if n < 48 else P['DV'])
    qsteps = list(range(P['QP0'] - 1, 47, P['QPS']))
    st = dict(landed=-1, q=False, qk=0, sm=False, pr=0, pv=0)

    def land(n):
        if n > st['landed']:
            g.vmwait(n)
            st['landed'] = n

    def work(budget, need_qk=0, need_pv=0):
        while True:
            forced = st['qk'] < need_qk or st['pv'] < need_pv
            if budget <= 0 and not forced:
                return
            budget -= 1
            if not st['q']:
                if st['issued'] < 47:
                    return
                qget()
                st['q'] = True
            elif st['qk'] < NU:
                if st['landed'] < 8 * st['qk'] + 7 and not forced:
                    return
                land(8 * st['qk'] + 7)
                qk(st['qk'])
                st['qk'] += 1
            elif not st['sm']:
                softmax()
                st['sm'] = True
            elif st['pr'] < NU:
                probs(st['pr'])
                st['pr'] += 1
            elif st['pv'] < NU:
                if st['landed'] < 48 + 8 * st['pv'] + 7 and not forced:
                    return
                land(48 + 8 * st['pv'] + 7)
                if st['pv'] == NU - 1:
                    g.stamp('a_landed')
                if st['pv'] == 4:
                    assert st['stat_at'] < 48 + 8 * 4 + 7
                    skip = only_wave(g, 0)
                    signal(g, T2, S_KV, C_S)
                    g(skip + ':')
                pv(st['pv'])
                st['pv'] += 1
                if st['pv'] == 1:
                    stats()
                    st['stat_at'] = max(t for t in g.vm if isinstance(t, int))
                if st['pv'] == 2:
                    epi_addr()
            else:
                return

    for n in range(0, 96, GS):
        d = depth(n)
        if n + GS - 1 >= d:
            land(n + GS - 1 - d)
        if n >= 48 and n % 8 == 0:
            u = (n - 48) >> 3
            work(0, need_qk=min(VSLOT[u] + 1, NU) if u < 5 else NU, need_pv=1 if u == 5 else 0)
        for i in range(GS):
            load(n + i)
        m = n + GS - 1
        if n == 0:
            setup()
        st['issued'] = m
        if m in qsteps:
            if m != qsteps[0]:
                land(m - P['QPS'] + 1)
            qstep()
        work(max(1, GS // 2 * 2))
    work(0, need_pv=NU)

    g.setexec(rep16(0xff))
    for j in range(8):
        if j == 6:
            g.nop(3)
        g(f'ds_write_b128 v{WA}, {vr(AC + 4 * j, 4)} offset:{528 * j}')
    g.setexec(-1)
    g('s_waitcnt lgkmcnt(0)\ns_barrier')
    for w in range(8):
        g(f'ds_read_b64 {vr(TMP + 2 * w, 2)}, v{RA} offset:{OST * w}')
    skip = only_wave(g, 0)
    signal(g, T2, S_KV, C_A)
    g(skip + ':')
    g('s_waitcnt lgkmcnt(4)')
    pk4(g, 'v_pk_add_f32', TMP, TMP, TMP + 4)
    g('s_waitcnt lgkmcnt(0)')
    pk4(g, 'v_pk_add_f32', TMP + 8, TMP + 8, TMP + 12)
    pk4(g, 'v_pk_add_f32', TMP, TMP, TMP + 8)
    g(f'v_pk_add_f32 {vr(TMP, 2)}, {vr(TMP, 2)}, {vr(TMP + 2, 2)}')
    g(f'v_min_u32 v{TMP}, -2, v{TMP}\nv_min_u32 v{TMP + 1}, -2, v{TMP + 1}')
    g(f'buffer_store_dwordx2 {vr(TMP, 2)}, v{GA}, {S_WS}, {S_GA} offen sc1')
    g.stamp('a_pub', (0, 1, 2))
    g(f's_mul_i32 s14, {S_R}, {NMR}\ns_add_u32 s14, s14, {S_CU}\ns_sub_u32 s14, s14, {SPL - NMR}')
    g(f's_cmp_ge_u32 {S_CU}, {SPL - NMR}\ns_cbranch_scc1 L_mlp')
    write_stamps(g)
    g('s_endpgm')


def build(stamps=False):
    g = G(stamps)
    ref = open(REF).read()
    g.L.append(ref[:ref.index('; Override launch')].rstrip())
    g.L.append('; @launch grid=(%d,1,1) block=(512,1,1) lds=%d' % (NWG, Lds(MLP_LDS).END))
    g.L.append('.amdgcn_target "amdgcn-amd-amdhsa--gfx950"\n.text\n.globl %s_kernel\n.p2align 8\n.type %s_kernel,@function' % (NAME, NAME))
    g.L.append('%s_kernel:' % NAME)
    g.stamp('start', (0, 1, 2))
    g(f's_cmp_ge_u32 s2, {NWG}\ns_cbranch_scc1 L_exit')
    g(f'''s_load_dwordx16 s[16:31], s[0:1], 0
          s_load_dwordx8 s[32:39], s[0:1], 64
          s_load_dwordx4 s[40:43], s[0:1], 96
          s_load_dwordx2 s[44:45], s[0:1], 112
          v_lshrrev_b32 v1, 6, v0
          v_and_b32 v0, 63, v0
          v_readfirstlane_b32 s3, v1
          s_mov_b32 {S_LO}, 0x05040100
          s_mov_b32 {S_HI}, 0x07060302
          s_mov_b32 {S_MASK}, 0xffff0000''')
    g(f's_cmp_lt_u32 s2, {NG}\ns_cbranch_scc1 L_proj')
    n0 = g.nst
    attention(g)
    mlp(g)
    g.nst = n0
    proj(g)
    g('L_exit:\ns_endpgm')
    g('.fill 2048, 4, 0xbf800000')
    g.L.append('''.section .rodata,"a"
.p2align 6
.amdhsa_kernel %s_kernel
  .amdhsa_next_free_vgpr 256
  .amdhsa_next_free_sgpr 102
  .amdhsa_accum_offset 256
  .amdhsa_group_segment_fixed_size 0
  .amdhsa_kernarg_size 120
  .amdhsa_user_sgpr_count 2
  .amdhsa_user_sgpr_kernarg_segment_ptr 1
  .amdhsa_system_sgpr_workgroup_id_x 1
.end_amdhsa_kernel''' % NAME)
    return '\n'.join(g.L) + '\n'


if __name__ == '__main__':
    out = sys.argv[1]
    for a in sys.argv[2:]:
        if '=' in a:
            k, v = a.split('=')
            assert k in P, k
            P[k] = int(v)
    open(out, 'w').write(build(stamps='--stamps' in sys.argv))
```

```python
import sys
NAME = 'adaLN_cond__gqa_block_cached__mixer_channel_mlp__decode'
REF = 'cdna_kernels/%s.s.ref' % NAME

NG = 64
SPL = 24
NMR = 7
NA = 8 * SPL
NWG = NG + NA
WPR = SPL * 8
NU = 6

MOD, QB, STATS, X1, MODP = 0x0, 0x8000, 0x10000, 0x18000, 0x20000
MBA, MBB, MBC = 0x100000, 0x200000, 0x300000
MBA_ST = 2 * SPL * 256
WS_SIZE = 0x400000
SPIN = 1 << 18
C_Q, C_S, C_A, C_MOD, C_LATE = 0, 4, 8, 16, 144

P = dict(MSL=4, LSL=30, QSL=8, ASL=2, GS=1, DK1=2, NK1=32, DK2=4, DV=8, QP0=24, QPS=4, SLEEP=0, A5=56, HINT=1, ST=0, DBGST=-1, PADTO=0)

S_WS, S_DBG, S_A, S_B = 's[48:51]', 's[52:55]', 's[56:59]', 's[60:63]'
S_LO, S_HI, S_MASK, S_SPIN = 's64', 's65', 's66', 's67'
DPP = 'row_mask:0xf bank_mask:0xf'


def vr(a, n):
    return 'v[%d:%d]' % (a, a + n - 1)


class G:
    def __init__(self, stamps=False):
        self.vm = []
        self.L = []
        self.stamps = stamps
        self.nlabel = 0
        self.nst = 0

    def __call__(self, s):
        for line in s.strip('\n').split('\n'):
            line = line.strip()
            if line:
                self.L.append(line if line.endswith(':') else '    ' + line)

    def label(self, p='L'):
        self.nlabel += 1
        return '%s_%d' % (p, self.nlabel)

    def stamp(self, name, sets=(0,)):
        if self.stamps and P['ST'] in sets:
            k = self.nst
            self.nst += 1
            assert k < 13, name
            self('s_memrealtime s[%d:%d] ; stamp %d %s' % (70 + 2 * k, 71 + 2 * k, k, name))

    def vmop(self, text, tag):
        for line in text.strip().split('\n'):
            self(line)
            self.vm.append(tag)

    def vmwait(self, *tags):
        idx = [i for i, t in enumerate(self.vm) if t in tags]
        if not idx:
            return
        n = len(self.vm) - 1 - idx[-1]
        assert n <= 63
        self('s_waitcnt vmcnt(%d)' % n)
        self.vm = self.vm[idx[-1] + 1:]

    def nop(self, n):
        while n > 0:
            k = min(n, 16)
            self('s_nop %d' % (k - 1))
            n -= k

    def bits(self, dst, src, fields, tmp, add=None):
        first = True
        for (lo, n, mul) in fields:
            t = dst if first else tmp
            if lo == 0:
                self(f'v_and_b32 v{t}, {(1 << n) - 1}, v{src}')
            else:
                self(f'v_bfe_u32 v{t}, v{src}, {lo}, {n}')
            pw = mul & (mul - 1) == 0
            sh = mul.bit_length() - 1
            if first:
                if mul != 1:
                    self(f'v_lshlrev_b32 v{dst}, {sh}, v{dst}' if pw else f'v_mul_u32_u24 v{dst}, {mul}, v{dst}')
            elif pw:
                self(f'v_lshl_add_u32 v{dst}, v{tmp}, {sh}, v{dst}')
            else:
                self(f'v_mul_u32_u24 v{tmp}, {mul}, v{tmp}\nv_add_u32 v{dst}, v{dst}, v{tmp}')
            first = False
        if add not in (None, 0):
            self(f'v_add_u32 v{dst}, {add}, v{dst}')

    def setexec(self, m):
        if m == -1:
            self('s_mov_b64 exec, -1')
        elif m < (1 << 31):
            self('s_mov_b64 exec, 0x%x' % m)
        else:
            self('s_mov_b32 exec_lo, 0x%x\ns_mov_b32 exec_hi, 0x%x' % (m & 0xffffffff, m >> 32))


def rep16(m):
    return m * 0x0001000100010001


def check(g, regs, tmp):
    regs = list(regs)
    if len(regs) == 1:
        g(f'v_cmp_eq_u32 vcc, -1, v{regs[0]}')
        return
    if len(regs) % 2 == 0:
        g(f'v_max_u32 v{tmp}, v{regs[0]}, v{regs[1]}')
        rest = regs[2:]
    else:
        g(f'v_max3_u32 v{tmp}, v{regs[0]}, v{regs[1]}, v{regs[2]}')
        rest = regs[3:]
    for i in range(0, len(rest), 2):
        g(f'v_max3_u32 v{tmp}, v{tmp}, v{rest[i]}, v{rest[i + 1]}')
    g(f'v_cmp_eq_u32 vcc, -1, v{tmp}')


def poll(g, loads, regs, tmp, sleep=0, preloaded=False):
    lp, done, chk = g.label('L_poll'), g.label('L_ok'), g.label('L_chk')
    g(f's_mov_b32 {S_SPIN}, {SPIN}')
    if preloaded:
        g(f's_branch {chk}')
    g(lp + ':')
    g(loads)
    g('s_waitcnt vmcnt(0)')
    if preloaded:
        g(chk + ':')
    check(g, regs, tmp)
    g(f's_cbranch_vccz {done}')
    if sleep:
        g(f's_sleep {sleep}')
    g(f's_sub_u32 {S_SPIN}, {S_SPIN}, 1\ns_cbranch_scc0 {lp}')
    g(done + ':')


def cread(reg, soff, off):
    return f'v_mov_b32 v{reg}, 0\ns_mov_b64 exec, 1\nbuffer_atomic_add v{reg}, off, {S_DBG}, {soff} offset:{off} sc0 sc1\ns_mov_b64 exec, -1'


def cpoll(g, reg, soff, off, target, sleep, preloaded=False):
    lp, done, chk = g.label('L_cpoll'), g.label('L_cok'), g.label('L_cchk')
    g(f's_mov_b32 {S_SPIN}, {SPIN}')
    if preloaded:
        g(f's_branch {chk}')
    g(lp + ':')
    g(cread(reg, soff, off) + '\ns_waitcnt vmcnt(0)')
    if preloaded:
        g(chk + ':')
    g(f'v_readfirstlane_b32 s99, v{reg}\ns_cmp_ge_u32 s99, {target}\ns_cbranch_scc1 {done}')
    if sleep:
        g(f's_sleep {sleep}')
    g(f's_sub_u32 {S_SPIN}, {S_SPIN}, 1\ns_cbranch_scc0 {lp}')
    g(done + ':')


def cwait(g, reg, soff, off, target, sleep):
    skip = only_wave(g, 0)
    cpoll(g, reg, soff, off, target, sleep)
    g(skip + ':')
    g('s_barrier')


def signal(g, reg, soff, off):
    g(f'v_mov_b32 v{reg}, 1\ns_mov_b64 exec, 1\nbuffer_atomic_add v{reg}, off, {S_DBG}, {soff} offset:{off} sc1\ns_mov_b64 exec, -1')


def srd(g, s, lo, size):
    base = int(s[2:s.index(':')])
    g(f's_mov_b32 s{base}, s{lo}\ns_mov_b32 s{base + 1}, s{lo + 1}\ns_mov_b32 s{base + 2}, 0x{size:x}\ns_mov_b32 s{base + 3}, 0x20000')


def only_wave(g, w):
    skip = g.label('L_skip')
    g(f's_cmp_lg_u32 s3, {w}\ns_cbranch_scc1 {skip}')
    return skip


def write_stamps(g):
    if not g.stamps:
        return
    g('s_waitcnt lgkmcnt(0)')
    skip = only_wave(g, 0)
    g('s_mov_b64 exec, 1')
    if P['DBGST'] >= 0:
        g(f's_cmp_lg_u32 s2, {P["DBGST"]}\ns_cbranch_scc1 {skip}')
        for k in range(1, min(g.nst, 12)):
            g(f's_sub_u32 s4, s{70 + 2 * k}, s70\nv_mov_b32 v2, s4')
            g(f'buffer_store_dword v2, off, {S_DBG}, 0 offset:{16 + 4 * k}')
        g(skip + ':')
        return
    g('s_lshl_b32 s4, s2, 8\ns_add_u32 s4, s44, s4\ns_addc_u32 s5, s45, 0')
    g('s_add_u32 s4, s4, %d\ns_addc_u32 s5, s5, 0' % (255 << 20))
    g('v_mov_b32 v1, 0')
    for k in range(g.nst):
        g(f'v_mov_b32 v2, s{70 + 2 * k}\nv_mov_b32 v3, s{71 + 2 * k}')
        g(f'global_store_dwordx2 v1, v[2:3], s[4:5] offset:{8 * k}')
        g('s_nop 1')
    g(skip + ':')


def prefetch_code(g, label, nkb8, vtmp, vdst, tag=None):
    pc = g.label('L_pc')
    g('s_getpc_b64 s[98:99]')
    if label:
        g(f'{pc}:\ns_add_u32 s98, s98, {label}-{pc}\ns_addc_u32 s99, s99, 0')
    g('s_and_b32 s98, s98, 0xffffff80')
    g(f's_lshl_b32 s97, s3, 10\nv_lshl_add_u32 v{vtmp}, v0, 4, s97')
    for i in range(nkb8):
        if i:
            g(f'v_add_u32 v{vtmp}, 8192, v{vtmp}')
        t = f'global_load_dwordx4 {vr(vdst, 4)}, v{vtmp}, s[98:99]'
        g.vmop(t, tag) if tag else g(t)


BLK = lambda i: 64 + 32 * i
UA, UB, UC = 0, 2, 4
ACC = 32
KW, NB, NW, NR, NO, KB, TID, MO = 1, 2, 3, 4, 5, 6, 7, 16
T = 24


class Lds:
    def __init__(self, base):
        self.ACTS, self.ACTH, self.RED = base, base + 4096, base + 8192
        self.OUTV = base + 16896
        self.PART = base + 17152
        self.STAT = base + 18176
        self.END = base + 18368


def nvoff(g, dst, rs):
    g.bits(dst, TID, [(3, 6, rs), (0, 3, 16)], T + 7)


def nload(g, unit, ptr, size, rs, s_col, voff, kbs=(0, 1), tag=None):
    srd(g, S_A, ptr, size)
    for kb in kbs:
        g(f's_add_u32 s4, {s_col}, {kb * 512 * rs}')
        for t in range(8):
            g.vmop(f'buffer_load_dwordx4 {vr(BLK(unit + kb) + 4 * t, 4)}, v{voff}, {S_A}, s4 offen nt', (tag, kb))
            if t < 7:
                g(f's_add_u32 s4, s4, {64 * rs}')


def kload(g, unit, ptr, size, s_idx, voff, rowf, tag):
    srd(g, S_A, ptr, size)
    g(f's_lshl_b32 s5, {s_idx}, 17')
    for kb in range(2):
        for t in range(8):
            g(f's_add_u32 s4, s5, {rowf(kb, t) * 2048}')
            g.vmop(f'buffer_load_dwordx4 {vr(BLK(unit + kb) + 4 * t, 4)}, v{voff}, {S_A}, s4 offen nt', (tag, kb))


def transpose(g, blk):
    b = BLK(blk)
    for p in range(4):
        a, c = b + 8 * p + p, b + 8 * p + 4 + p
        g(f'v_perm_b32 v{T}, v{c}, v{a}, {S_LO}\nv_perm_b32 v{c}, v{c}, v{a}, {S_HI}\nv_mov_b32 v{a}, v{T}')
    for p in range(4):
        for w in range(p + 1, 4):
            xa, xb = b + 8 * p + w, b + 8 * p + 4 + w
            ya, yb = b + 8 * w + p, b + 8 * w + 4 + p
            g(f'v_perm_b32 v{T}, v{xb}, v{xa}, {S_LO}\nv_perm_b32 v{T + 1}, v{xb}, v{xa}, {S_HI}')
            g(f'v_perm_b32 v{xa}, v{yb}, v{ya}, {S_LO}\nv_perm_b32 v{xb}, v{yb}, v{ya}, {S_HI}')
            g(f'v_mov_b32 v{ya}, v{T}\nv_mov_b32 v{yb}, v{T + 1}')


def mfmas(g, unit, b0, b1):
    for kb, bop in ((0, b0), (1, b1)):
        if kb == 1:
            g('s_waitcnt lgkmcnt(0)')
        for j in range(8):
            d = vr(ACC + 4 * j, 4)
            g(f'v_mfma_f32_16x16x32_bf16 {d}, {vr(BLK(unit + kb) + 4 * j, 4)}, {vr(bop, 4)}, {d if kb else 0}')


def common_addr(g, L, kperm):
    K0B = T + 6
    g(f's_lshl_b32 s4, s3, 6\nv_add_u32 v{TID}, s4, v0')
    g.bits(K0B, TID, [(3, 6, 64), (0, 2, 16), (2, 1, 8)], T)
    g.bits(MO, TID, [(8, 1, 10240)], T)
    g(f'v_add_u32 v{MO}, v{MO}, v{K0B}')
    g.bits(KW, K0B, [(11, 1, 2048), (4, 3, 256), (10, 1, 128), (1, 3, 16), (7, 3, 2)], T)
    g.bits(NB, TID, [(0, 1, 2048), (6, 3, 256), (4, 2, 32), (1, 1, 16)], T)
    g.bits(NW, TID, [(6, 3, 1088), (1, 1, 544), (0, 1, 256), (2, 2, 32), (4, 1, 16)], T, L.RED)
    g.bits(NR, TID, [(0, 2, 544), (2, 7, 4)], T, L.RED)
    if kperm:
        g.bits(NO, TID, [(8, 1, 128), (4, 1, 64), (5, 1, 32), (7, 1, 16), (2, 2, 4), (6, 1, 2)], T, L.OUTV)
    else:
        g.bits(NO, TID, [(8, 1, 128), (2, 3, 16), (5, 2, 4), (7, 1, 2)], T, L.OUTV)
    g.bits(KB, TID, [(0, 1, 128), (4, 2, 16)], T, L.OUTV)


def nsplit(g, unit, act, half=None):
    if half is None:
        g(f'ds_read_b128 {vr(T, 4)}, v{NB} offset:{act}\nds_read_b128 {vr(T + 4, 4)}, v{NB} offset:{act + 128}')
        g('s_waitcnt lgkmcnt(1)')
        mfmas(g, unit, T, T + 4)
    else:
        g(f'ds_read_b128 {vr(T, 4)}, v{half} offset:{act}\ns_waitcnt lgkmcnt(0)')
        for j in range(8):
            g(f'v_mfma_f32_16x16x32_bf16 {vr(ACC + 4 * j, 4)}, {vr(BLK(unit) + 4 * j, 4)}, {vr(T, 4)}, 0')
    for dd in range(1, 4):
        g.setexec(rep16(0xf << (4 * dd)))
        if dd != 2:
            g.nop(2)
        for i in range(4):
            g(f'v_mov_b64 {vr(ACC + 2 * i, 2)}, {vr(ACC + 8 * dd + 2 * i, 2)}')
    g.setexec(0xcccccccc33333333)
    g(f'ds_write_b128 v{NW}, {vr(ACC, 4)}\nds_write_b128 v{NW}, {vr(ACC + 4, 4)} offset:128')
    g.setexec(-1)
    g('s_waitcnt lgkmcnt(0)\ns_barrier')
    for k in range(4):
        g(f'ds_read_b32 v{T + k}, v{NR} offset:{k * 4 * 544}')
    g('s_waitcnt lgkmcnt(2)')
    g(f'v_add_f32 v{T}, v{T}, v{T + 1}')
    g('s_waitcnt lgkmcnt(0)')
    g(f'v_add_f32 v{T + 2}, v{T + 2}, v{T + 3}\nv_add_f32 v{T}, v{T}, v{T + 2}')
    g.nop(2)
    g(f'v_add_f32_dpp v{T}, v{T}, v{T} quad_perm:[1,0,3,2] {DPP}')
    g.nop(2)
    g(f'v_add_f32_dpp v{T}, v{T}, v{T} quad_perm:[2,3,0,1] {DPP}')


def actwrite(g, p, act):
    g(f'ds_write_b16 v{KW}, v{p} offset:{act}\nds_write_b16_d16_hi v{KW}, v{p} offset:{act + 16}')
    g(f'ds_write_b16 v{KW}, v{p + 1} offset:{act + 32}\nds_write_b16_d16_hi v{KW}, v{p + 1} offset:{act + 48}')


def unpack2(g, d, s):
    g(f'v_lshlrev_b32 v{d}, 16, v{s}\nv_and_b32 v{d + 1}, {S_MASK}, v{s}')


def unpack(g, d, s):
    unpack2(g, d, s)
    unpack2(g, d + 2, s + 1)


def pack(g, t, d):
    g(f'v_cvt_pk_bf16_f32 v{t}, v{d}, v{d + 1}\nv_cvt_pk_bf16_f32 v{t + 1}, v{d + 2}, v{d + 3}')


def round4(g, d, t):
    pack(g, t, d)
    unpack(g, d, t)


def round2(g, a):
    g(f'v_cvt_pk_bf16_f32 v{a + 1}, v{a}, v{a + 1}')
    unpack2(g, a, a + 1)


def pk4(g, op, d, a, b):
    g(f'{op} {vr(d, 2)}, {vr(a, 2)}, {vr(b, 2)}\n{op} {vr(d + 2, 2)}, {vr(a + 2, 2)}, {vr(b + 2, 2)}')


def layernorm(g, x, sw, sr, off, last_packed=False):
    a, b = T + 4, T + 5
    g(f'v_add_f32 v{a}, v{x}, v{x + 1}\nv_mul_f32 v{b}, v{x}, v{x}')
    g(f'v_add_f32 v{T}, v{x + 2}, v{x + 3}\nv_fmac_f32 v{b}, v{x + 1}, v{x + 1}')
    g(f'v_add_f32 v{a}, v{a}, v{T}\nv_fmac_f32 v{b}, v{x + 2}, v{x + 2}\nv_fmac_f32 v{b}, v{x + 3}, v{x + 3}')
    for i, ctl in enumerate(['row_ror:8 ' + DPP, 'row_ror:4 ' + DPP, 'row_ror:2 ' + DPP, 'row_ror:1 ' + DPP,
                             'row_bcast:15 row_mask:0xa bank_mask:0xf', 'row_bcast:31 row_mask:0xc bank_mask:0xf']):
        if i:
            g('s_nop 0')
        g(f'v_add_f32_dpp v{a}, v{a}, v{a} {ctl}')
        if i == 0:
            g('s_nop 0')
        g(f'v_add_f32_dpp v{b}, v{b}, v{b} {ctl}')
    g.setexec(1 << 63)
    g(f'ds_write_b64 v{sw}, {vr(a, 2)} offset:{off}')
    g.setexec(-1)
    g('s_waitcnt lgkmcnt(0)\ns_barrier')
    g(f'ds_read_b128 {vr(T, 4)}, v{sr} offset:{off}\nds_read_b128 {vr(T + 4, 4)}, v{sr} offset:{off + 16}')
    g('s_waitcnt lgkmcnt(0)')
    pk4(g, 'v_pk_add_f32', T, T, T + 4)
    g(f'v_pk_add_f32 {vr(a, 2)}, {vr(T, 2)}, {vr(T + 2, 2)}')
    g(f'v_mul_f32 v{a}, 0x3a800000, v{a}\nv_mul_f32 v{b}, 0x3a800000, v{b}')
    g(f'v_fma_f32 v{b}, -v{a}, v{a}, v{b}\nv_max_f32 v{b}, 0, v{b}')
    round2(g, a)
    g(f'v_add_f32 v{b}, 0x3727c5ac, v{b}')
    g(f'v_cvt_pk_bf16_f32 v{b}, v{b}, v{b}\nv_lshlrev_b32 v{b}, 16, v{b}')
    g(f'v_sqrt_f32 v{b}, v{b}')
    for i in range(4):
        g(f'v_sub_f32 v{x + i}, v{x + i}, v{a}')
    g(f'v_cvt_pk_bf16_f32 v{b}, v{b}, v{b}\nv_lshlrev_b32 v{b}, 16, v{b}')
    g(f'v_rcp_f32 v{b}, v{b}')
    round4(g, x, T + 6)
    for i in range(4):
        g(f'v_mul_f32 v{x + i}, v{x + i}, v{b}')
    if last_packed:
        pack(g, T + 6, x)
    else:
        round4(g, x, T + 6)


def ksplit_out(g, unit, po, mb):
    g(f'ds_read_b128 {vr(T, 4)}, v{KB}\nds_read_b128 {vr(T + 4, 4)}, v{KB} offset:64')
    g('s_waitcnt lgkmcnt(1)')
    mfmas(g, unit, T, T + 4)
    for j in range(1, 8):
        g.setexec(rep16(3 << (2 * j)))
        g(f'v_mov_b64 {vr(ACC, 2)}, {vr(ACC + 4 * j, 2)}\nv_mov_b64 {vr(ACC + 2, 2)}, {vr(ACC + 4 * j + 2, 2)}')
    g.setexec(-1)
    for i in range(4):
        g(f'v_min_u32 v{ACC + i}, -2, v{ACC + i}')
    g(f'buffer_store_dwordx4 {vr(ACC, 4)}, v{po}, {S_WS}, {mb} offen sc1')


def ml(part, d, s):
    return f'buffer_load_dwordx2 {vr(d, 2)}, v{MO}, {S_WS}, {s} offen offset:{part * 2048} sc1'


def proj(g):
    L = Lds(0)
    Y, SB = 8, 12
    PO, RO, RL, OUTO = 8, 9, 10, 11
    WG, AO, OW = 12, 15, 16
    WQO, WMO, SW, SR = 17, 18, 19, 23
    RX, RGA, RGB, RB2 = 20, 21, 22, 23
    JC, ODD = 's14', 's15'
    g.vm = []

    def publish(s_off, bstride, cnt=None):
        g(f'v_cvt_pk_bf16_f32 v{T}, v{T}, v{T}\nds_write_b16 v{NO}, v{T}')
        g('s_waitcnt lgkmcnt(0)\ns_barrier')
        skip = only_wave(g, 0)
        g(f'v_lshlrev_b32 v{T + 4}, 4, v0\nds_read_b128 {vr(T, 4)}, v{T + 4} offset:{L.OUTV}')
        g.bits(T + 5, 0, [(3, 1, bstride), (0, 3, 16)], T + 6)
        g('s_waitcnt lgkmcnt(0)')
        g.setexec(0xffff)
        g(f'buffer_store_dwordx4 {vr(T, 4)}, v{T + 5}, {S_WS}, {s_off} offen sc1')
        g.setexec(-1)
        if cnt:
            g('s_waitcnt vmcnt(0)')
            signal(g, T + 4, *cnt)
        else:
            g('s_nop 0')
        g(skip + ':')

    def munit(unit, tag, s_col, cnt=None):
        g.vmwait((tag, 0))
        transpose(g, unit)
        g.vmwait((tag, 1))
        transpose(g, unit + 1)
        nsplit(g, unit, L.ACTS)
        publish(s_col, 12288, cnt)

    def reduce(mb, nprod):
        if nprod < 64:
            g(f'v_mov_b32 v{T}, 0')
            skip = g.label('L_nored')
            g(f's_cmp_ge_u32 s3, {nprod // 8}\ns_cbranch_scc1 {skip}')
        poll(g, f'buffer_load_dwordx4 {vr(T, 4)}, v{RO}, {S_WS}, {mb} offen sc1', range(T, T + 4), T + 4)
        g.stamp('red_polled', (1,))
        g(f'v_permlane32_swap_b32 v{T}, v{T + 2}\nv_permlane32_swap_b32 v{T + 1}, v{T + 3}')
        g(f'v_add_f32 v{T}, v{T}, v{T + 2}\nv_add_f32 v{T + 1}, v{T + 1}, v{T + 3}')
        g.nop(2)
        g(f'v_permlane16_swap_b32 v{T}, v{T + 1}\nv_add_f32 v{T}, v{T}, v{T + 1}')
        g.nop(2)
        g(f'v_add_f32_dpp v{T}, v{T}, v{T} row_ror:8 {DPP}')
        if nprod < 64:
            g(skip + ':')
        g(f'ds_write_b32 v{RL}, v{T}')
        g('s_waitcnt lgkmcnt(0)\ns_barrier')
        skip = only_wave(g, 0)
        g(f'v_and_b32 v{T + 2}, 15, v0\nv_lshlrev_b32 v{T + 2}, 3, v{T + 2}')
        for w in range(8):
            g(f'ds_read_b64 {vr(ACC + 2 * w, 2)}, v{T + 2} offset:{L.PART + 128 * w}')
        return skip

    def reduce_sum():
        g('s_waitcnt lgkmcnt(4)')
        pk4(g, 'v_pk_add_f32', ACC, ACC, ACC + 4)
        g('s_waitcnt lgkmcnt(0)')
        pk4(g, 'v_pk_add_f32', ACC + 8, ACC + 8, ACC + 12)
        pk4(g, 'v_pk_add_f32', ACC, ACC, ACC + 8)
        g(f'v_pk_add_f32 {vr(T, 2)}, {vr(ACC, 2)}, {vr(ACC + 2, 2)}')
        round2(g, T)

    g('L_proj:')
    g(f's_and_b32 {JC}, s2, 7\ns_lshl_b32 {JC}, {JC}, 3\ns_lshr_b32 s4, s2, 3\ns_add_u32 {JC}, {JC}, s4')
    g(f's_lshl_b32 s4, s3, 6\nv_add_u32 v{TID}, s4, v0')
    g.bits(T + 6, TID, [(3, 6, 64), (0, 2, 16), (2, 1, 8)], T)
    nvoff(g, WMO, 12288)
    g(f'''s_and_b32 {ODD}, {JC}, 1
          s_lshr_b32 s6, {JC}, 1
          s_lshl_b32 s6, s6, 7
          s_mul_i32 s13, {ODD}, {512 * 12288}
          s_add_u32 s13, s13, s6
          s_lshl_b32 s7, {JC}, 7
          s_lshr_b32 s46, {JC}, 4
          s_lshl_b32 s46, s46, 6
          s_waitcnt lgkmcnt(0)''')
    srd(g, S_B, 36, 4096)
    g.vmop(f'buffer_load_dwordx2 {vr(SB, 2)}, v{T + 6}, {S_B}, 0 offen', 'in')
    srd(g, S_B, 16, 4096)
    g.vmop(f'buffer_load_dwordx2 {vr(SB + 2, 2)}, v{T + 6}, {S_B}, 0 offen', 'in')
    prefetch_code(g, None, 1, T, ACC + 4, 'in')
    nload(g, UA, 38, 1024 * 12288, 12288, 's13', WMO, (0,), tag='m1')
    srd(g, S_WS, 44, WS_SIZE)
    srd(g, S_DBG, 42, 256)
    common_addr(g, L, False)
    nvoff(g, WQO, 8192)
    g(f's_lshl_b32 s4, s3, 3\nv_mov_b32 v{SW}, s4\ns_and_b32 s4, s4, 32\nv_mov_b32 v{SR}, s4')
    g(f's_mul_i32 s8, {JC}, {MBA_ST}\ns_add_u32 s8, s8, {MBA}')
    g(f's_lshl_b32 s9, {JC}, 13\ns_add_u32 s10, s9, {MBC}\ns_add_u32 s9, s9, {MBB}')
    g(f's_lshl_b32 s11, {JC}, 6\ns_add_u32 s11, s11, {X1}')
    g.vmwait('in')
    unpack(g, ACC, SB)
    for i in range(4):
        g(f'v_mul_f32 v{T + i}, 0xbfb8aa3b, v{ACC + i}')
    for i in range(4):
        g(f'v_exp_f32 v{T + i}, v{T + i}')
    for i in range(4):
        g(f'v_add_f32 v{T + i}, 1.0, v{T + i}')
    for i in range(4):
        g(f'v_rcp_f32 v{T + i}, v{T + i}')
    for i in range(4):
        g(f'v_mul_f32 v{T + i}, v{T + i}, v{ACC + i}')
    pack(g, T + 4, T)
    actwrite(g, T + 4, L.ACTS)
    unpack(g, Y, SB + 2)
    layernorm(g, Y, SW, SR, L.STAT)
    g.stamp('g_ln')
    l_w0 = g.label('L_w0')
    g(f's_cmp_eq_u32 s3, 0\ns_cbranch_scc1 {l_w0}')
    nload(g, UB, 22, 1024 * 8192, 8192, 's7', WQO, (0,), tag='wq')
    g(f's_waitcnt vmcnt(8)\ns_branch {l_w0}_b\n{l_w0}:\ns_waitcnt vmcnt(0)\n{l_w0}_b:')
    transpose(g, UA)
    g(f's_lshl_b32 s4, {ODD}, 7\nv_add_u32 v{T + 7}, s4, v{NB}')
    nsplit(g, UA, L.ACTS, T + 7)
    g(f'v_subrev_u32 v{T + 1}, {L.OUTV}, v{NO}\nv_lshlrev_b32 v{T + 1}, 1, v{T + 1}\nds_write_b32 v{T + 1}, v{T} offset:{L.PART}')
    g('s_waitcnt lgkmcnt(0)\ns_barrier')
    skip = only_wave(g, 0)
    g(f'v_lshlrev_b32 v{T + 4}, 4, v0\nds_read_b128 {vr(T, 4)}, v{T + 4} offset:{L.PART}')
    g.bits(T + 5, 0, [(4, 1, 8192), (0, 4, 16)], T + 6)
    g(f's_lshl_b32 s4, {ODD}, 14\ns_lshl_b32 s5, s6, 1\ns_add_u32 s4, s4, s5\ns_add_u32 s4, s4, {MODP}')
    g('s_waitcnt lgkmcnt(0)\ns_mov_b32 exec_hi, 0')
    g(f'buffer_store_dwordx4 {vr(T, 4)}, v{T + 5}, {S_WS}, s4 offen sc1')
    g('s_waitcnt vmcnt(0)')
    signal(g, T + 4, 0, C_MOD)
    g.stamp('g_mod')
    nload(g, UB, 22, 1024 * 8192, 8192, 's7', WQO, (0,), tag='wq')
    g(cread(RX, 0, C_MOD))
    g(skip + ':')
    nload(g, UB, 22, 1024 * 8192, 8192, 's7', WQO, (1,), tag='wq')
    MP = RGA
    g.bits(MP, TID, [(8, 1, 8192), (3, 5, 128), (0, 2, 32), (2, 1, 16)], T, MODP)
    g('s_waitcnt vmcnt(8)')
    skip = only_wave(g, 0)
    cpoll(g, RX, 0, C_MOD, NG, P['MSL'], preloaded=True)
    g(skip + ':')
    g('s_barrier')
    g(f's_mov_b32 s4, 4096\ns_mov_b32 s5, 16384\ns_mov_b32 s12, {16384 + 4096}')
    for i, so in enumerate(('0', 's5', 's4', 's12')):
        g(f'buffer_load_dwordx4 {vr(ACC + 4 * i, 4)}, v{MP}, {S_WS}, {so} offen sc1')
    transpose(g, UB)
    g('s_waitcnt vmcnt(4)')
    transpose(g, UB + 1)
    g('s_waitcnt vmcnt(0)')
    g.vm = []
    g.stamp('g_modseen')
    pk4(g, 'v_pk_add_f32', ACC, ACC, ACC + 4)
    pk4(g, 'v_pk_add_f32', T, ACC + 8, ACC + 12)
    round4(g, T, T + 4)
    for i in range(4):
        g(f'v_add_f32 v{T + i}, 1.0, v{T + i}')
    round4(g, T, T + 4)
    pk4(g, 'v_pk_mul_f32', Y, Y, T)
    round4(g, Y, T + 4)
    round4(g, ACC, T + 4)
    pk4(g, 'v_pk_add_f32', Y, Y, ACC)
    pack(g, T, Y)
    actwrite(g, T, L.ACTH)
    g('s_waitcnt lgkmcnt(0)\ns_barrier')
    nsplit(g, UB, L.ACTH)
    g(f's_add_u32 s12, s7, {QB}')
    publish('s12', 8192, ('s46', C_Q))
    g.stamp('g_q')

    for i in range(4):
        g(f'v_mov_b32 v{T + i}, -1')
    g(f'v_lshlrev_b32 v{RO}, 4, v{TID}\nv_and_b32 v{T + 5}, 63, v{RO}')
    for s, v in (('s9', RO), ('s10', RO), ('s11', T + 5)):
        g.vmop(f'buffer_store_dwordx4 {vr(T, 4)}, v{v}, {S_WS}, {s} offen sc1', 'clr')
    g(f's_xor_b32 s6, s7, 128\ns_add_u32 s6, s6, 4096')
    nload(g, UA, 38, 1024 * 12288, 12288, 's6', WMO, tag='m2')
    g.bits(PO, TID, [(4, 2, 4096), (6, 3, 256), (0, 4, 16)], T + 7)
    kload(g, UC, 24, 4096 * 2048, JC, PO, lambda kb, t: 32 * kb + (t & 3) * 8 + (t >> 2), 'wo')
    munit(UA, 'm2', 's6')
    g('s_waitcnt vmcnt(0)\ns_barrier')
    g.vm = []
    skip = only_wave(g, 0)
    signal(g, T + 4, 0, C_LATE)
    g(skip + ':')
    transpose(g, UC)
    transpose(g, UC + 1)
    g.stamp('g_loaded')
    cwait(g, T, 0, C_LATE, NG, P['LSL'])
    g(f's_lshr_b32 s4, {JC}, 1\ns_lshl_b32 s4, s4, 6\ns_lshl_b32 s5, {ODD}, 3\ns_add_u32 s4, s4, s5')
    g.bits(T, 0, [(1, 2, 16), (0, 1, 4)], T + 1, 's4')
    srd(g, S_B, 34, 2048)
    g(f'buffer_load_dword v{RB2}, v{T}, {S_B}, 0 offen')
    g(f'v_bfe_u32 v{T + 1}, v0, 3, 1\nv_mul_u32_u24 v{T + 2}, 12288, v{T + 1}\nv_add_u32 v{T + 2}, v{T + 2}, v{T}')
    g(f'v_lshl_add_u32 v{OUTO}, v{T + 1}, 11, v{T}')
    srd(g, S_B, 16, 4096)
    g(f'buffer_load_dword v{RX}, v{OUTO}, {S_B}, 0 offen')
    g(f's_mov_b32 s4, {MOD + 2 * 2048}\ns_mov_b32 s5, {MOD + 5 * 2048}')
    g(f'buffer_load_dword v{RGA}, v{T + 2}, {S_WS}, s4 offen sc1\nbuffer_load_dword v{RGB}, v{T + 2}, {S_WS}, s5 offen sc1')
    srd(g, S_B, 40, 4096)
    g.bits(RL, TID, [(6, 3, 128), (0, 1, 64), (4, 2, 16), (1, 2, 4)], T, L.PART)
    g.bits(PO, TID, [(3, 6, 8192), (0, 3, 16)], T)
    g(f's_add_u32 s12, s7, {MBB}')
    cwait(g, T, 's46', C_S, 2 * SPL, P['LSL'])
    g.bits(T + 2, 0, [(5, 1, 8192), (0, 5, 8)], T + 3)
    g(f's_lshr_b32 s4, {JC}, 1\ns_lshl_b32 s4, s4, 8\ns_add_u32 s4, s4, {STATS}')
    g(f'v_mov_b32 v{T}, 0xff800000\nv_mov_b32 v{T + 1}, 0')
    g.setexec(((1 << SPL) - 1) * 0x100000001)
    g(f'buffer_load_dwordx2 {vr(T, 2)}, v{T + 2}, {S_WS}, s4 offen sc1')
    g.setexec(-1)
    prefetch_code(g, 'L_proj_tail', 1, T + 5, ACC)
    g('s_waitcnt vmcnt(1)')

    def red32(r, t, op):
        for sh in (8, 4, 2, 1):
            g.nop(2)
            g(f'{op}_dpp v{r}, v{r}, v{r} row_ror:{sh} {DPP}')
        g(f'v_mov_b32 v{t}, v{r}')
        g.nop(2)
        g(f'v_permlane16_swap_b32 v{r}, v{t}\n{op} v{r}, v{r}, v{t}')
    g(f'v_mov_b32 v{T + 2}, v{T}')
    red32(T + 2, T + 3, 'v_max_f32')
    g(f'v_sub_f32 v{T}, v{T}, v{T + 2}\nv_mul_f32 v{T}, 0x3fb8aa3b, v{T}\nv_exp_f32 v{T}, v{T}\ns_nop 0')
    g(f'v_mul_f32 v{T + 1}, v{T + 1}, v{T}')
    red32(T + 1, T + 3, 'v_add_f32')
    g(f'v_rcp_f32 v{T + 1}, v{T + 1}\ns_nop 0\nv_mul_f32 v{T}, v{T}, v{T + 1}')
    g.bits(T + 2, TID, [(8, 1, 128), (3, 3, 4)], T + 3)
    for k in range(3):
        g(f'ds_bpermute_b32 v{WG + k}, v{T + 2}, v{T} offset:{32 * k}')
    g.bits(AO, TID, [(8, 1, SPL * 256), (3, 3, 256), (6, 2, 64), (0, 3, 8)], T + 3)
    g.bits(OW, TID, [(6, 3, 32), (0, 3, 4), (5, 1, 2)], T + 3, L.OUTV)
    g(f's_add_u32 s13, s8, 4096\ns_waitcnt lgkmcnt(0)')
    g.stamp('g_ready')

    g('L_proj_tail:')
    cwait(g, T, 's46', C_A, 2 * SPL, P['ASL'])
    g.stamp('g_hint', (0, 1))
    poll(g, f'''buffer_load_dwordx2 {vr(T, 2)}, v{AO}, {S_WS}, s8 offen sc1
                buffer_load_dwordx2 {vr(T + 2, 2)}, v{AO}, {S_WS}, s8 offen offset:2048 sc1
                buffer_load_dwordx2 {vr(T + 4, 2)}, v{AO}, {S_WS}, s13 offen sc1''', range(T, T + 6), T + 6, P['SLEEP'])
    g.stamp('g_apolled', (0, 1))
    g(f'v_mul_f32 v{T}, v{WG}, v{T}\nv_mul_f32 v{T + 1}, v{WG}, v{T + 1}')
    for k in (1, 2):
        g(f'v_fmac_f32 v{T}, v{WG + k}, v{T + 2 * k}\nv_fmac_f32 v{T + 1}, v{WG + k}, v{T + 2 * k + 1}')
    g.nop(2)
    g(f'v_permlane32_swap_b32 v{T}, v{T + 1}\nv_add_f32 v{T}, v{T}, v{T + 1}\nv_mov_b32 v{T + 1}, v{T}')
    g.nop(2)
    g(f'v_permlane16_swap_b32 v{T}, v{T + 1}\nv_add_f32 v{T}, v{T}, v{T + 1}')
    g.nop(2)
    g(f'v_add_f32_dpp v{T}, v{T}, v{T} row_ror:8 {DPP}')
    g(f'v_cvt_pk_bf16_f32 v{T}, v{T}, v{T}\nds_write_b16 v{OW}, v{T}')
    g('s_waitcnt lgkmcnt(0)\ns_barrier')
    g.stamp('g_obar', (1,))
    ksplit_out(g, UC, PO, 's12')
    g.stamp('g_t2', (0, 1))
    skip = reduce('s9', 64)
    unpack2(g, T + 4, RGA)
    unpack2(g, T + 6, RX)
    g(f'v_lshlrev_b32 v{T + 3}, 2, v0')
    reduce_sum()
    g(f'v_pk_mul_f32 {vr(T, 2)}, {vr(T, 2)}, {vr(T + 4, 2)}')
    round2(g, T)
    g(f'v_pk_add_f32 {vr(T, 2)}, {vr(T, 2)}, {vr(T + 6, 2)}')
    g(f'v_cvt_pk_bf16_f32 v{RX}, v{T}, v{T + 1}\nv_min_u32 v{RX}, -2, v{RX}')
    g.setexec(0xffff)
    g(f'buffer_store_dword v{RX}, v{T + 3}, {S_WS}, s11 offen sc1')
    g.setexec(-1)
    g(skip + ':')
    g.stamp('g_x1', (0, 1))
    g('s_barrier')
    skip = reduce('s10', 56)
    unpack2(g, T + 2, RB2)
    unpack2(g, T + 4, RGB)
    unpack2(g, T + 6, RX)
    reduce_sum()
    g(f'v_pk_add_f32 {vr(T, 2)}, {vr(T, 2)}, {vr(T + 2, 2)}')
    round2(g, T)
    g(f'v_pk_mul_f32 {vr(T, 2)}, {vr(T, 2)}, {vr(T + 4, 2)}')
    round2(g, T)
    g(f'v_pk_add_f32 {vr(T, 2)}, {vr(T, 2)}, {vr(T + 6, 2)}')
    g(f'v_cvt_pk_bf16_f32 v{T}, v{T}, v{T + 1}')
    g.setexec(0xffff)
    g(f'buffer_store_dword v{T}, v{OUTO}, {S_B}, 0 offen')
    g.setexec(-1)
    g(skip + ':')
    g.stamp('g_out', (0, 1))
    if P['PADTO']:
        g(f'L_pad:\ns_memrealtime s[4:5]\ns_waitcnt lgkmcnt(0)\ns_sub_u32 s4, s4, s70\ns_cmp_lt_u32 s4, {P["PADTO"]}\ns_cbranch_scc1 L_pad')
    write_stamps(g)
    g('s_endpgm')


MLP_LDS = 37120


def mlp(g):
    L = Lds(MLP_LDS)
    PO, XO, SW, SR, B1 = 8, 9, 10, 11, 17
    C1, SH = 12, 18
    JM = 's14'
    g.vm = []
    g('L_mlp:')
    skip = only_wave(g, 0)
    g(cread(ACC + 4, 0, C_LATE))
    g(skip + ':')
    g(f's_lshl_b32 s4, s3, 6\nv_add_u32 v{TID}, s4, v0')
    nvoff(g, T + 5, 7168)
    g(f's_lshl_b32 s7, {JM}, 7')
    nload(g, UA, 28, 1024 * 7168, 7168, 's7', T + 5, tag='w1')
    g.bits(T + 5, TID, [(4, 2, 2048), (6, 3, 256), (0, 4, 16)], T + 7)
    kload(g, UB, 32, 3584 * 2048, JM, T + 5, lambda kb, t: 32 * kb + 4 * t, 'w2')
    common_addr(g, L, True)
    g(f's_mov_b32 s6, {MOD + 3 * 2048}')
    srd(g, S_B, 30, 3584 * 2)
    g.bits(T + 5, TID, [(2, 3, 16), (5, 2, 4), (7, 1, 2)], T, 's7')
    g.vmop(f'buffer_load_ushort v{B1}, v{T + 5}, {S_B}, 0 offen', 'k')
    prefetch_code(g, 'L_mlp_tail', 1, T + 5, ACC + 8, 'k')
    g.bits(XO, TID, [(2, 6, 64), (8, 1, 32), (0, 2, 8)], T, X1)
    g.bits(PO, TID, [(3, 6, 8192), (0, 3, 16)], T)
    g(f's_add_u32 s13, s7, {MBC}')
    g(f's_lshl_b32 s4, s3, 3\nv_mov_b32 v{SW}, s4\ns_and_b32 s4, s4, 32\nv_mov_b32 v{SR}, s4')
    for tag, u in (('w1', UA), ('w2', UB)):
        for kb in range(2):
            g.vmwait((tag, kb))
            if tag == 'w1' and kb == 0:
                skip = only_wave(g, 0)
                cpoll(g, ACC + 4, 0, C_LATE, NG, P['LSL'], preloaded=True)
                g(skip + ':')
                g('s_barrier')
                g.vmop(ml(0, ACC, 's6') + '\n' + ml(1, ACC + 2, 's6'), 'k')
            transpose(g, u + kb)
    g.vmwait('k')
    unpack(g, SH, ACC)
    unpack(g, C1, ACC + 2)
    for i in range(4):
        g(f'v_add_f32 v{C1 + i}, 1.0, v{C1 + i}')
    round4(g, C1, T)
    g(f'v_lshlrev_b32 v{B1}, 16, v{B1}')
    g.stamp('m_ready', (0, 2))
    g('L_mlp_tail:')
    XV = ACC
    poll(g, f'buffer_load_dwordx2 {vr(T, 2)}, v{XO}, {S_WS}, 0 offen sc1', [T, T + 1], T + 2)
    g.stamp('m_x1seen', (0, 2))
    unpack(g, XV, T)
    layernorm(g, XV, SW, SR, L.STAT)
    g.stamp('m_ln1', (2,))
    pk4(g, 'v_pk_mul_f32', XV, XV, C1)
    round4(g, XV, T + 6)
    pk4(g, 'v_pk_add_f32', XV, XV, SH)
    round4(g, XV, T + 6)
    layernorm(g, XV, SW, SR, L.STAT + 64, last_packed=True)
    actwrite(g, T + 6, L.ACTH)
    g('s_waitcnt lgkmcnt(0)\ns_barrier')
    g.stamp('m_ln2', (2,))
    nsplit(g, UA, L.ACTH)
    g.stamp('m_t3', (2,))
    g(f'''v_cvt_pk_bf16_f32 v{T}, v{T}, v{T}
          v_lshlrev_b32 v{T}, 16, v{T}
          v_add_f32 v{T}, v{T}, v{B1}
          v_cvt_pk_bf16_f32 v{T}, v{T}, v{T}
          v_lshlrev_b32 v{T}, 16, v{T}
          v_mov_b32 v{T + 2}, 0xc0135761
          v_mul_f32 v{T + 1}, v{T}, v{T}
          v_fmac_f32 v{T + 2}, 0xbdd2d3e8, v{T + 1}
          v_mul_f32 v{T + 1}, v{T + 2}, v{T}
          v_exp_f32 v{T + 1}, v{T + 1}
          s_nop 0
          v_add_f32 v{T + 1}, 1.0, v{T + 1}
          v_rcp_f32 v{T + 1}, v{T + 1}
          s_nop 0
          v_mul_f32 v{T}, v{T}, v{T + 1}
          v_cvt_pk_bf16_f32 v{T}, v{T}, v{T}
          ds_write_b16 v{NO}, v{T}
          s_waitcnt lgkmcnt(0)
          s_barrier''')
    g.stamp('m_gelu', (2,))
    ksplit_out(g, UB, PO, 's13')
    g.stamp('m_t4', (0, 2))
    write_stamps(g)
    g('s_endpgm')


def attention(g):
    KO, VO, QO, VSC, VMAX, OO = 1, 2, 3, 4, 5, 6
    Q0, SP, TMP, T2 = 8, 16, 40, 56
    LA, GA = T2 + 7, T2 + 6
    SLOT = lambda s: 64 + 32 * s
    AC = SLOT(0)
    U = lambda u: 's%d' % (4 + 2 * u)
    U2 = lambda u: 's%d' % (5 + 2 * u)
    S_R, S_CU, S_GA, S_T = 's47', 's68', 's96', 's69'
    S_B4, S_B5, S_O4, S_KV = 's46', 's100', 's101', 's101'
    MX, SM, OBUF, OST = 0, 512, 1024, 4224
    QL, QF = 1024 + 8 * 4224, 1024 + 8 * 4224 + 2048
    S_ST = 's97'
    NN = (SPL - NMR) * 8
    n4 = NN + P['A5']
    n5 = 1024 - 4 * WPR - n4
    assert 0 <= n5 <= NN
    base = [0, WPR, 2 * WPR, 3 * WPR, 4 * WPR, 4 * WPR + n4]
    g.vm = []

    g('L_attn:')
    g(f'''s_sub_u32 {S_T}, s2, {NG}
          s_mul_hi_u32 {S_R}, {S_T}, {(1 << 32) // SPL + 1}
          s_mul_i32 {S_CU}, {S_R}, {SPL}
          s_sub_u32 {S_CU}, {S_T}, {S_CU}
          s_mul_i32 {S_T}, s3, {SPL - NMR}
          s_mul_i32 {S_GA}, s3, {NMR}
          s_add_u32 {S_GA}, {S_GA}, {NN - (SPL - NMR)}
          s_cmp_lt_u32 {S_CU}, {SPL - NMR}
          s_cselect_b32 {S_T}, {S_T}, {S_GA}
          s_add_u32 {S_T}, {S_T}, {S_CU}
          s_lshl_b32 {S_GA}, {S_R}, 7
          s_add_u32 {S_GA}, {S_GA}, {S_T}''')
    for u in range(NU):
        g(f's_add_u32 {U(u)}, {S_GA}, {base[u]}\ns_and_b32 {U(u)}, {U(u)}, 1023\ns_lshl_b32 {U(u)}, {U(u)}, 13\ns_add_u32 {U2(u)}, {U(u)}, 4096')
    g.bits(KO, 0, [(1, 1, 1024), (2, 2, 256), (0, 1, 64), (4, 2, 16)], 8)
    g(f'v_lshlrev_b32 v{VO}, 4, v0')
    g(f's_cmp_lt_u32 {S_T}, {n4}\ns_cselect_b32 {S_O4}, 0, 0x1000000\ns_cselect_b32 {S_B4}, 0, 0xff800000')
    g(f's_cmp_lt_u32 {S_T}, {n5}\ns_cselect_b32 s98, 0, 0x1000000\ns_cselect_b32 {S_B5}, 0, 0xff800000')
    g(f'v_add_u32 v{OO}, {S_O4}, v{KO}\nv_add_u32 v{OO + 1}, s98, v{KO}')
    g('s_waitcnt lgkmcnt(0)')
    g(f's_lshl_b32 {S_T}, {S_R}, 23')
    g(f's_add_u32 s56, s18, {S_T}\ns_addc_u32 s57, s19, 0\ns_mov_b32 s58, 0x800000\ns_mov_b32 s59, 0x20000')
    g(f's_add_u32 s60, s20, {S_T}\ns_addc_u32 s61, s21, 0\ns_mov_b32 s62, 0x800000\ns_mov_b32 s63, 0x20000')

    VSLOT = [1, 2, 3, 4, 5, 1]

    def load(n):
        u, i = (n % 48) >> 3, n & 7
        so = U2(u) if i >= 4 else U(u)
        if n == 48:
            g(f'v_sub_u32 v{T2}, v{VO}, v{KO}\nv_add_u32 v{OO}, v{OO}, v{T2}\nv_add_u32 v{OO + 1}, v{OO + 1}, v{T2}')
        if n < 48:
            vo = KO if u < 4 else OO + u - 4
            g.vmop(f'buffer_load_dwordx4 {vr(SLOT(u) + 4 * i, 4)}, v{vo}, {S_A}, {so} offen offset:{((i >> 1) & 1) * 2048 + (i & 1) * 128} nt', n)
        else:
            vo = VO if u < 4 else OO + u - 4
            g.vmop(f'buffer_load_dwordx4 {vr(SLOT(VSLOT[u]) + 4 * i, 4)}, v{vo}, {S_B}, {so} offen offset:{(i & 3) * 1024} nt', n)

    def setup():
        srd(g, S_WS, 44, WS_SIZE)
        srd(g, S_DBG, 42, 256)
        g.bits(GA, 0, [(5, 1, MBA_ST), (0, 5, 8)], 8)
        g(f'''s_and_b32 {S_T}, {S_R}, 3
              s_lshl_b32 {S_T}, {S_T}, 3
              s_add_u32 {S_T}, {S_T}, s3
              s_mul_i32 {S_T}, {S_T}, {2 * MBA_ST}
              s_lshr_b32 {S_GA}, {S_R}, 2
              s_mul_i32 {S_GA}, {S_GA}, {SPL}
              s_add_u32 {S_GA}, {S_GA}, {S_CU}
              s_lshl_b32 {S_GA}, {S_GA}, 8
              s_add_u32 {S_GA}, {S_GA}, {S_T}
              s_add_u32 {S_GA}, {S_GA}, {MBA}
              v_mov_b32 v{T2 + 2}, -1
              v_mov_b32 v{T2 + 3}, -1''')
        g.vmop(f'buffer_store_dwordx2 {vr(T2 + 2, 2)}, v{GA}, {S_WS}, {S_GA} offen sc1', 'clr')
        prefetch_code(g, 'L_attn_body', 1, 8, TMP, 'pf')
        g(f's_and_b32 {S_KV}, {S_R}, 3\ns_lshl_b32 {S_KV}, {S_KV}, 6')
        g.bits(QO, 0, [(0, 3, 256), (3, 1, 64), (4, 2, 16)], 8)
        g(f'v_mov_b32 v{T2}, 0\nds_write_b32 v{T2}, v{T2} offset:{QF}\ns_mov_b32 {S_ST}, 0\ns_waitcnt lgkmcnt(0)\ns_barrier')
        g(f'v_mov_b32 v{VSC}, 0x3db504f3\nv_mov_b32 v{VMAX}, 0xff800000')
        g.bits(LA, 0, [(0, 4, 32)], 8)
        g('L_attn_body:')

    def qstep(final=False):
        skip = only_wave(g, 0)
        l1, l2, top = g.label('L_q1'), g.label('L_q2'), g.label('L_qtop')
        if final:
            g(f's_mov_b32 {S_SPIN}, {SPIN}\n{top}:')
        g(f's_cmp_eq_u32 {S_ST}, 2\ns_cbranch_scc1 {skip}')
        if final:
            g(f's_waitcnt vmcnt(0)\ns_sub_u32 {S_SPIN}, {S_SPIN}, 1\ns_cselect_b32 {S_ST}, 1, {S_ST}')
        g(f's_cmp_eq_u32 {S_ST}, 1\ns_cbranch_scc1 {l2}')
        g(f'v_readfirstlane_b32 s99, v{T2}\ns_cmp_ge_u32 s99, 16\ns_cbranch_scc1 {l1}')
        if final:
            g(f's_sleep {P["QSL"]}')
        g(cread(T2, S_KV, C_Q))
        g(f's_branch {top if final else skip}')
        g(l1 + ':')
        g(f's_lshl_b32 {S_T}, {S_R}, 11\ns_add_u32 {S_T}, {S_T}, {QB}\ns_mov_b32 {S_ST}, 1')
        g(f'buffer_load_dwordx4 {vr(Q0, 4)}, v{VO}, {S_WS}, {S_T} offen sc1')
        g(f'buffer_load_dwordx4 {vr(Q0 + 4, 4)}, v{VO}, {S_WS}, {S_T} offen offset:1024 sc1')
        g(f's_branch {top if final else skip}')
        g(l2 + ':')
        g(f'ds_write_b128 v{VO}, {vr(Q0, 4)} offset:{QL}\nds_write_b128 v{VO}, {vr(Q0 + 4, 4)} offset:{QL + 1024}')
        g(f'v_mov_b32 v{T2}, 0\nv_mov_b32 v{T2 + 1}, 1\ns_mov_b32 {S_ST}, 2\ns_waitcnt lgkmcnt(0)')
        g(f'ds_write_b32 v{T2}, v{T2 + 1} offset:{QF}')
        g(skip + ':')

    def qget():
        g.stamp('a_qwait')
        qstep(final=True)
        lp, ok = g.label('L_qf'), g.label('L_qfok')
        g(f'v_mov_b32 v{T2}, 0\ns_mov_b32 {S_SPIN}, {SPIN * 16}\n{lp}:')
        g(f'ds_read_b32 v{T2 + 1}, v{T2} offset:{QF}\ns_waitcnt lgkmcnt(0)')
        g(f'v_cmp_eq_u32 vcc, 0, v{T2 + 1}\ns_cbranch_vccz {ok}')
        g(f's_sleep 2\ns_sub_u32 {S_SPIN}, {S_SPIN}, 1\ns_cbranch_scc0 {lp}\n{ok}:')
        g(f'ds_read_b128 {vr(Q0, 4)}, v{QO} offset:{QL}\nds_read_b128 {vr(Q0 + 4, 4)}, v{QO} offset:{QL + 128}')
        g('s_waitcnt lgkmcnt(0)')
        g.stamp('a_qseen')

    def qk(u):
        for t in range(4):
            g(f'v_mfma_f32_16x16x32_bf16 {vr(TMP + 4 * t, 4)}, {vr(SLOT(u) + 8 * t, 4)}, {vr(Q0, 4)}, 0')
        for t in range(4):
            g(f'v_mfma_f32_16x16x32_bf16 {vr(TMP + 4 * t, 4)}, {vr(SLOT(u) + 8 * t + 4, 4)}, {vr(Q0 + 4, 4)}, {vr(TMP + 4 * t, 4)}')
        g.nop(5)
        for t in range(4):
            d = TMP + 4 * t
            a, b = T2 + 2 * (t & 1), T2 + 2 * (t & 1) + 1
            g(f'v_add_f32_dpp v{a}, v{d + 1}, v{d} row_ror:8 {DPP}\nv_add_f32_dpp v{b}, v{d + 3}, v{d + 2} row_ror:8 {DPP}')
            round2(g, a)
            if u >= 4:
                sb = S_B4 if u == 4 else S_B5
                g(f'v_fma_f32 v{a}, v{a}, v{VSC}, {sb}\nv_fma_f32 v{b}, v{b}, v{VSC}, {sb}')
            else:
                g(f'v_mul_f32 v{a}, v{a}, v{VSC}\nv_mul_f32 v{b}, v{b}, v{VSC}')
            g(f'v_max3_f32 v{VMAX}, v{VMAX}, v{a}, v{b}\nv_cvt_pk_bf16_f32 v{SP + 4 * u + t}, v{a}, v{b}')

    def red_g(r, t, op):
        for ins in ('v_permlane32_swap_b32', 'v_permlane16_swap_b32'):
            g(f'v_mov_b32 v{t}, v{r}')
            g.nop(2)
            g(f'{ins} v{r}, v{t}\n{op} v{r}, v{r}, v{t}')

    def softmax():
        red_g(VMAX, T2, 'v_max_f32')
        g(f's_lshl_b32 {S_T}, s3, 2\nv_add_u32 v{QO}, {S_T}, v{LA}')
        g(f'ds_write_b32 v{QO}, v{VMAX} offset:{MX}')
        for i in range(0, 32, 2):
            g(f'v_mov_b64 {vr(AC + i, 2)}, 0')
        g('s_waitcnt lgkmcnt(0)\ns_barrier')
        g(f'ds_read_b128 {vr(TMP, 4)}, v{LA} offset:{MX}\nds_read_b128 {vr(TMP + 4, 4)}, v{LA} offset:{MX + 16}')
        g(f'v_mov_b32 v{VSC}, 0x3fb8aa3b\nv_mov_b32 v{T2 + 4}, 0')
        g('s_waitcnt lgkmcnt(0)')
        for i in range(0, 8, 2):
            g(f'v_max3_f32 v{VMAX}, v{VMAX}, v{TMP + i}, v{TMP + i + 1}')
        g(f'v_cvt_pk_bf16_f32 v{VMAX}, v{VMAX}, v{VMAX}\nv_lshlrev_b32 v{VMAX}, 16, v{VMAX}')
        g(f'v_mul_f32 v{T2 + 5}, v{VMAX}, v{VSC}')

    def probs(u):
        for i in range(4 * u, 4 * u + 4):
            p = SP + i
            a, b = T2 + 2 * (i & 1), T2 + 2 * (i & 1) + 1
            unpack2(g, a, p)
            g(f'v_fma_f32 v{a}, v{a}, v{VSC}, -v{T2 + 5}\nv_fma_f32 v{b}, v{b}, v{VSC}, -v{T2 + 5}')
            g(f'v_exp_f32 v{a}, v{a}\nv_exp_f32 v{b}, v{b}')
            g(f'v_add_f32 v{T2 + 4}, v{T2 + 4}, v{a}\nv_add_f32 v{T2 + 4}, v{T2 + 4}, v{b}')
            g(f'v_cvt_pk_bf16_f32 v{p}, v{a}, v{b}')
        if u == NU - 1:
            red_g(T2 + 4, T2, 'v_add_f32')
            g(f'ds_write_b32 v{QO}, v{T2 + 4} offset:{SM}')
            g.stamp('a_probs')

    def pv(u):
        s = SLOT(VSLOT[u])
        for w in range(4):
            t = TMP + 8 * (w & 1)
            for p in range(4):
                g(f'v_perm_b32 v{t + p}, v{s + 8 * p + 4 + w}, v{s + 8 * p + w}, {S_LO}')
            for p in range(4):
                g(f'v_perm_b32 v{t + 4 + p}, v{s + 8 * p + 4 + w}, v{s + 8 * p + w}, {S_HI}')
            g(f'v_mfma_f32_16x16x32_bf16 {vr(AC + 8 * w, 4)}, {vr(t, 4)}, {vr(SP + 4 * u, 4)}, {vr(AC + 8 * w, 4)}')
            g('s_nop 0')
            g(f'v_mfma_f32_16x16x32_bf16 {vr(AC + 8 * w + 4, 4)}, {vr(t + 4, 4)}, {vr(SP + 4 * u, 4)}, {vr(AC + 8 * w + 4, 4)}')

    def stats():
        g('s_waitcnt lgkmcnt(0)\ns_barrier')
        skip = only_wave(g, 0)
        g(f'ds_read_b128 {vr(Q0, 4)}, v{LA} offset:{SM}\nds_read_b128 {vr(Q0 + 4, 4)}, v{LA} offset:{SM + 16}')
        g(f'v_mov_b32 v{T2}, v{VMAX}')
        g(f's_lshl_b32 {S_T}, {S_R}, 11\ns_lshl_b32 s98, {S_CU}, 3\ns_add_u32 {S_T}, {S_T}, s98\ns_add_u32 {S_T}, {S_T}, {STATS}')
        g(f'v_lshlrev_b32 v{T2 + 2}, 8, v0')
        g('s_waitcnt lgkmcnt(0)')
        pk4(g, 'v_pk_add_f32', Q0, Q0, Q0 + 4)
        g(f'v_pk_add_f32 {vr(Q0, 2)}, {vr(Q0, 2)}, {vr(Q0 + 2, 2)}\nv_add_f32 v{T2 + 1}, v{Q0}, v{Q0 + 1}')
        g.setexec(0xff)
        g(f'buffer_store_dwordx2 {vr(T2, 2)}, v{T2 + 2}, {S_WS}, {S_T} offen sc1')
        g.setexec(-1)
        g(skip + ':')

    WA, RA = KO, QO

    def epi_addr():
        g(f's_mul_i32 {S_T}, s3, {OST}\ns_add_u32 {S_T}, {S_T}, {OBUF}')
        g.bits(WA, 0, [(4, 2, 128), (0, 4, 16)], T2, S_T)
        g(f's_lshl_b32 {S_T}, s3, 4\ns_add_u32 {S_T}, {S_T}, {OBUF}')
        g.bits(RA, 0, [(1, 3, 528), (4, 2, 128), (0, 1, 8)], T2, S_T)

    GS = P['GS']
    depth = lambda n: P['DK1'] if n < P['NK1'] else (P['DK2'] if n < 48 else P['DV'])
    qsteps = list(range(P['QP0'] - 1, 47, P['QPS']))
    st = dict(landed=-1, q=False, qk=0, sm=False, pr=0, pv=0)

    def land(n):
        if n > st['landed']:
            g.vmwait(n)
            st['landed'] = n

    def work(budget, need_qk=0, need_pv=0):
        while True:
            forced = st['qk'] < need_qk or st['pv'] < need_pv
            if budget <= 0 and not forced:
                return
            budget -= 1
            if not st['q']:
                if st['issued'] < 47:
                    return
                qget()
                st['q'] = True
            elif st['qk'] < NU:
                if st['landed'] < 8 * st['qk'] + 7 and not forced:
                    return
                land(8 * st['qk'] + 7)
                qk(st['qk'])
                st['qk'] += 1
            elif not st['sm']:
                softmax()
                st['sm'] = True
            elif st['pr'] < NU:
                probs(st['pr'])
                st['pr'] += 1
            elif st['pv'] < NU:
                if st['landed'] < 48 + 8 * st['pv'] + 7 and not forced:
                    return
                land(48 + 8 * st['pv'] + 7)
                if st['pv'] == NU - 1:
                    g.stamp('a_landed')
                if st['pv'] == 4:
                    assert st['stat_at'] < 48 + 8 * 4 + 7
                    skip = only_wave(g, 0)
                    signal(g, T2, S_KV, C_S)
                    g(skip + ':')
                pv(st['pv'])
                st['pv'] += 1
                if st['pv'] == 1:
                    stats()
                    st['stat_at'] = max(t for t in g.vm if isinstance(t, int))
                if st['pv'] == 2:
                    epi_addr()
            else:
                return

    for n in range(0, 96, GS):
        d = depth(n)
        if n + GS - 1 >= d:
            land(n + GS - 1 - d)
        if n >= 48 and n % 8 == 0:
            u = (n - 48) >> 3
            work(0, need_qk=min(VSLOT[u] + 1, NU) if u < 5 else NU, need_pv=1 if u == 5 else 0)
        for i in range(GS):
            load(n + i)
        m = n + GS - 1
        if n == 0:
            setup()
        st['issued'] = m
        if m in qsteps:
            if m != qsteps[0]:
                land(m - P['QPS'] + 1)
            qstep()
        work(max(1, GS // 2 * 2))
    work(0, need_pv=NU)

    g.setexec(rep16(0xff))
    for j in range(8):
        if j == 6:
            g.nop(3)
        g(f'ds_write_b128 v{WA}, {vr(AC + 4 * j, 4)} offset:{528 * j}')
    g.setexec(-1)
    g('s_waitcnt lgkmcnt(0)\ns_barrier')
    for w in range(8):
        g(f'ds_read_b64 {vr(TMP + 2 * w, 2)}, v{RA} offset:{OST * w}')
    skip = only_wave(g, 0)
    signal(g, T2, S_KV, C_A)
    g(skip + ':')
    g('s_waitcnt lgkmcnt(4)')
    pk4(g, 'v_pk_add_f32', TMP, TMP, TMP + 4)
    g('s_waitcnt lgkmcnt(0)')
    pk4(g, 'v_pk_add_f32', TMP + 8, TMP + 8, TMP + 12)
    pk4(g, 'v_pk_add_f32', TMP, TMP, TMP + 8)
    g(f'v_pk_add_f32 {vr(TMP, 2)}, {vr(TMP, 2)}, {vr(TMP + 2, 2)}')
    g(f'v_min_u32 v{TMP}, -2, v{TMP}\nv_min_u32 v{TMP + 1}, -2, v{TMP + 1}')
    g(f'buffer_store_dwordx2 {vr(TMP, 2)}, v{GA}, {S_WS}, {S_GA} offen sc1')
    g.stamp('a_pub', (0, 1, 2))
    g(f's_mul_i32 s14, {S_R}, {NMR}\ns_add_u32 s14, s14, {S_CU}\ns_sub_u32 s14, s14, {SPL - NMR}')
    g(f's_cmp_ge_u32 {S_CU}, {SPL - NMR}\ns_cbranch_scc1 L_mlp')
    write_stamps(g)
    g('s_endpgm')


def build(stamps=False):
    g = G(stamps)
    ref = open(REF).read()
    g.L.append(ref[:ref.index('; Override launch')].rstrip())
    g.L.append('; @launch grid=(%d,1,1) block=(512,1,1) lds=%d' % (NWG, Lds(MLP_LDS).END))
    g.L.append('.amdgcn_target "amdgcn-amd-amdhsa--gfx950"\n.text\n.globl %s_kernel\n.p2align 8\n.type %s_kernel,@function' % (NAME, NAME))
    g.L.append('%s_kernel:' % NAME)
    g.stamp('start', (0, 1, 2))
    g(f's_cmp_ge_u32 s2, {NWG}\ns_cbranch_scc1 L_exit')
    g(f'''s_load_dwordx16 s[16:31], s[0:1], 0
          s_load_dwordx8 s[32:39], s[0:1], 64
          s_load_dwordx4 s[40:43], s[0:1], 96
          s_load_dwordx2 s[44:45], s[0:1], 112
          v_lshrrev_b32 v1, 6, v0
          v_and_b32 v0, 63, v0
          v_readfirstlane_b32 s3, v1
          s_mov_b32 {S_LO}, 0x05040100
          s_mov_b32 {S_HI}, 0x07060302
          s_mov_b32 {S_MASK}, 0xffff0000''')
    g(f's_cmp_lt_u32 s2, {NG}\ns_cbranch_scc1 L_proj')
    n0 = g.nst
    attention(g)
    mlp(g)
    g.nst = n0
    proj(g)
    g('L_exit:\ns_endpgm')
    g('.fill 2048, 4, 0xbf800000')
    g.L.append('''.section .rodata,"a"
.p2align 6
.amdhsa_kernel %s_kernel
  .amdhsa_next_free_vgpr 256
  .amdhsa_next_free_sgpr 102
  .amdhsa_accum_offset 256
  .amdhsa_group_segment_fixed_size 0
  .amdhsa_kernarg_size 120
  .amdhsa_user_sgpr_count 2
  .amdhsa_user_sgpr_kernarg_segment_ptr 1
  .amdhsa_system_sgpr_workgroup_id_x 1
.end_amdhsa_kernel''' % NAME)
    return '\n'.join(g.L) + '\n'


if __name__ == '__main__':
    out = sys.argv[1]
    for a in sys.argv[2:]:
        if '=' in a:
            k, v = a.split('=')
            assert k in P, k
            P[k] = int(v)
    open(out, 'w').write(build(stamps='--stamps' in sys.argv))
```

```python
import sys
NAME = 'adaLN_cond__gqa_block_cached__mixer_channel_mlp__decode'
REF = 'cdna_kernels/%s.s.ref' % NAME

NG = 64
SPL = 24
NMR = 7
NA = 8 * SPL
NWG = NG + NA
WPR = SPL * 8
NU = 6

MOD, QB, STATS, X1, MODP = 0x0, 0x8000, 0x10000, 0x18000, 0x20000
MBA, MBB, MBC = 0x100000, 0x200000, 0x300000
MBA_ST = 2 * SPL * 256
WS_SIZE = 0x400000
SPIN = 1 << 18
C_A, C_LATE = 0, 36
TMASK = 0xff

P = dict(MSL=4, LSL=8, QSL=8, ASL=2, GS=1, DK1=4, NK1=32, DK2=4, DV=8, QP0=44, QPS=4, SLEEP=0, PH=64, QG=60, DX=4, W2TH=1, NAT=1, NOQ=0, QW=0, MW=4, HPOS=74, ST=0, DBGST=-1, PADTO=0)

S_WS, S_DBG, S_A, S_B = 's[48:51]', 's[52:55]', 's[56:59]', 's[60:63]'
S_LO, S_HI, S_MASK, S_SPIN = 's64', 's65', 's66', 's67'
S_TAG, S_EPO, S_T16 = 's26', 's27', 's1'
DPP = 'row_mask:0xf bank_mask:0xf'


def vr(a, n):
    return 'v[%d:%d]' % (a, a + n - 1)


class G:
    def __init__(self, stamps=False):
        self.vm = []
        self.L = []
        self.stamps = stamps
        self.nlabel = 0
        self.nst = 0

    def __call__(self, s):
        for line in s.strip('\n').split('\n'):
            line = line.strip()
            if line:
                self.L.append(line if line.endswith(':') else '    ' + line)

    def label(self, p='L'):
        self.nlabel += 1
        return '%s_%d' % (p, self.nlabel)

    def stamp(self, name, sets=(0,)):
        if self.stamps and P['ST'] in sets:
            k = self.nst
            self.nst += 1
            assert k < 13 and (k < 11 or name[0] in 'gr'), name
            self('s_memrealtime s[%d:%d] ; stamp %d %s' % (70 + 2 * k, 71 + 2 * k, k, name))

    def vmop(self, text, tag):
        for line in text.strip().split('\n'):
            self(line)
            self.vm.append(tag)

    def vmwait(self, *tags):
        idx = [i for i, t in enumerate(self.vm) if t in tags]
        if not idx:
            return
        n = len(self.vm) - 1 - idx[-1]
        assert n <= 63
        self('s_waitcnt vmcnt(%d)' % n)
        self.vm = self.vm[idx[-1] + 1:]

    def nop(self, n):
        while n > 0:
            k = min(n, 16)
            self('s_nop %d' % (k - 1))
            n -= k

    def bits(self, dst, src, fields, tmp, add=None):
        first = True
        for (lo, n, mul) in fields:
            t = dst if first else tmp
            if lo == 0:
                self(f'v_and_b32 v{t}, {(1 << n) - 1}, v{src}')
            else:
                self(f'v_bfe_u32 v{t}, v{src}, {lo}, {n}')
            pw = mul & (mul - 1) == 0
            sh = mul.bit_length() - 1
            if first:
                if mul != 1:
                    self(f'v_lshlrev_b32 v{dst}, {sh}, v{dst}' if pw else f'v_mul_u32_u24 v{dst}, {mul}, v{dst}')
            elif mul == 1:
                self(f'v_add_u32 v{dst}, v{dst}, v{tmp}')
            elif pw:
                self(f'v_lshl_add_u32 v{dst}, v{tmp}, {sh}, v{dst}')
            else:
                self(f'v_mul_u32_u24 v{tmp}, {mul}, v{tmp}\nv_add_u32 v{dst}, v{dst}, v{tmp}')
            first = False
        if add not in (None, 0):
            self(f'v_add_u32 v{dst}, {add}, v{dst}')

    def setexec(self, m):
        if m == -1:
            self('s_mov_b64 exec, -1')
        elif m < (1 << 31):
            self('s_mov_b64 exec, 0x%x' % m)
        else:
            self('s_mov_b32 exec_lo, 0x%x\ns_mov_b32 exec_hi, 0x%x' % (m & 0xffffffff, m >> 32))


def rep16(m):
    return m * 0x0001000100010001


def check(g, regs, tmp, mask=TMASK):
    regs = list(regs)
    g(f'v_bitop3_b32 v{tmp}, v{regs[0]}, v{regs[1]}, {S_EPO} bitop3:0x7e')
    for r in regs[2:]:
        g(f'v_bitop3_b32 v{tmp}, v{tmp}, v{r}, {S_EPO} bitop3:0xf6')
    if mask == 0xffff:
        g(f'v_cmp_ne_u16 vcc, 0, v{tmp}')
        return
    if mask != -1:
        g(f'v_and_b32 v{tmp}, {mask}, v{tmp}')
    g(f'v_cmp_ne_u32 vcc, 0, v{tmp}')


def tagmask(g, vm):
    g(f'v_mov_b32 v{vm}, 0x{0xffffffff ^ TMASK:x}')


def tag(g, regs, vm):
    for r in regs:
        g(f'v_and_or_b32 v{r}, v{r}, v{vm}, {S_TAG}')


def epoch_load(reg):
    return f'buffer_load_dword v{reg}, off, {S_WS}, 0 sc1'


def epoch_tag(g, reg):
    g(f'''v_readfirstlane_b32 {S_EPO}, v{reg}
          s_mul_i32 {S_TAG}, {S_EPO}, 0x9e3779b1
          s_lshr_b32 {S_TAG}, {S_TAG}, 12
          s_or_b32 {S_TAG}, {S_TAG}, 1
          s_add_u32 {S_EPO}, {S_EPO}, {S_TAG}
          s_and_b32 {S_TAG}, {S_EPO}, {TMASK}
          s_and_b32 {S_T16}, {S_EPO}, 0xffff''')


def poll(g, loads, regs, tmp, sleep=0, preloaded=False, mask=TMASK):
    lp, done, chk = g.label('L_poll'), g.label('L_ok'), g.label('L_chk')
    g(f's_mov_b32 {S_SPIN}, {SPIN}')
    if preloaded:
        g(f's_branch {chk}')
    g(lp + ':')
    g(loads)
    g('s_waitcnt vmcnt(0)')
    if preloaded:
        g(chk + ':')
    check(g, regs, tmp, mask)
    g(f's_cbranch_vccz {done}')
    if sleep:
        g(f's_sleep {sleep}')
    g(f's_sub_u32 {S_SPIN}, {S_SPIN}, 1\ns_cbranch_scc0 {lp}')
    g(done + ':')


def fread(reg, soff, off):
    return f'buffer_load_dword v{reg}, off, {S_DBG}, {soff} offset:{off + 128} sc1'


def fpoll(g, reg, soff, off, sleep, preloaded=False):
    lp, done, chk = g.label('L_fpoll'), g.label('L_fok'), g.label('L_fchk')
    g(f's_mov_b32 {S_SPIN}, {SPIN}')
    if preloaded:
        g(f's_branch {chk}')
    g(lp + ':')
    g(fread(reg, soff, off) + '\ns_waitcnt vmcnt(0)')
    if preloaded:
        g(chk + ':')
    g(f'v_cmp_eq_u32 vcc, 0, v{reg}\ns_cbranch_vccz {done}')
    if sleep:
        g(f's_sleep {sleep}')
    g(f's_sub_u32 {S_SPIN}, {S_SPIN}, 1\ns_cbranch_scc0 {lp}')
    g(done + ':')


def fwait(g, reg, soff, off, sleep):
    skip = only_wave(g, 0)
    fpoll(g, reg, soff, off, sleep)
    g(skip + ':')
    g('s_barrier')


def arrive(g, reg, soff, off):
    g(f'v_mov_b32 v{reg}, 1\ns_mov_b64 exec, 1\nbuffer_atomic_add v{reg}, off, {S_DBG}, {soff} offset:{off} sc0 sc1\ns_mov_b64 exec, -1')


def arrived(g, reg, soff, off, n):
    skip = g.label('L_notlast')
    g(f'v_readfirstlane_b32 s99, v{reg}\ns_cmp_lg_u32 s99, {n - 1}\ns_cbranch_scc1 {skip}')
    g(f's_mov_b64 exec, 1\nbuffer_store_dword v{reg}, off, {S_DBG}, {soff} offset:{off + 128} sc1\ns_mov_b64 exec, -1')
    g(skip + ':')


def srd(g, s, lo, size):
    base = int(s[2:s.index(':')])
    g(f's_mov_b32 s{base}, s{lo}\ns_mov_b32 s{base + 1}, s{lo + 1}\ns_mov_b32 s{base + 2}, 0x{size:x}\ns_mov_b32 s{base + 3}, 0x20000')


def only_wave(g, w):
    skip = g.label('L_skip')
    g(f's_cmp_lg_u32 s3, {w}\ns_cbranch_scc1 {skip}')
    return skip


def write_stamps(g):
    if not g.stamps:
        return
    g('s_waitcnt lgkmcnt(0)')
    skip = only_wave(g, 0)
    g('s_mov_b64 exec, 1')
    if P['DBGST'] >= 0:
        g(f's_cmp_lg_u32 s2, {P["DBGST"]}\ns_cbranch_scc1 {skip}')
        for k in range(1, min(g.nst, 12)):
            g(f's_sub_u32 s4, s{70 + 2 * k}, s70\nv_mov_b32 v2, s4')
            g(f'buffer_store_dword v2, off, {S_DBG}, 0 offset:{16 + 4 * k}')
        g(skip + ':')
        return
    g('s_lshl_b32 s4, s2, 8\ns_add_u32 s4, s44, s4\ns_addc_u32 s5, s45, 0')
    g('s_add_u32 s4, s4, %d\ns_addc_u32 s5, s5, 0' % (255 << 20))
    g('v_mov_b32 v1, 0')
    for k in range(g.nst):
        g(f'v_mov_b32 v2, s{70 + 2 * k}\nv_mov_b32 v3, s{71 + 2 * k}')
        g(f'global_store_dwordx2 v1, v[2:3], s[4:5] offset:{8 * k}')
        g('s_nop 1')
    g(skip + ':')


def prefetch_code(g, label, nkb8, vtmp, vdst, tag=None):
    pc = g.label('L_pc')
    g('s_getpc_b64 s[98:99]')
    if label:
        g(f'{pc}:\ns_add_u32 s98, s98, {label}-{pc}\ns_addc_u32 s99, s99, 0')
    g('s_and_b32 s98, s98, 0xffffff80')
    g(f's_lshl_b32 s97, s3, 10\nv_lshl_add_u32 v{vtmp}, v0, 4, s97')
    for i in range(nkb8):
        if i:
            g(f'v_add_u32 v{vtmp}, 8192, v{vtmp}')
        t = f'global_load_dwordx4 {vr(vdst, 4)}, v{vtmp}, s[98:99]'
        g.vmop(t, tag) if tag else g(t)


BLK = lambda i: 64 + 32 * i
UA, UB, UC = 0, 2, 4
ACC = 32
KW, NB, NW, NR, NO, KB, TID, MO = 1, 2, 3, 4, 5, 6, 7, 16
T = 24


class Lds:
    def __init__(self, base):
        self.ACTS, self.ACTH, self.RED = base, base + 4352, base + 8704
        self.OUTV = base + 17408
        self.PART = base + 17664
        self.STAT = base + 18688
        self.END = base + 19200


ABS = 2048 + 128


def nstep():
    return 1 if P['NAT'] else 64


def nvoff(g, dst, rs, tid=TID, tmp=T + 7):
    g.bits(dst, tid, [(3, 6, rs * 8 if P['NAT'] else rs), (0, 3, 16)], tmp)


def nload(g, unit, ptr, size, rs, s_col, voff, kbs=(0, 1), tag=None):
    srd(g, S_A, ptr, size)
    for kb in kbs:
        g(f's_add_u32 s4, {s_col}, {kb * 512 * rs}')
        for t in range(8):
            g.vmop(f'buffer_load_dwordx4 {vr(BLK(unit + kb) + 4 * t, 4)}, v{voff}, {S_A}, s4 offen nt', (tag, kb))
            if t < 7:
                g(f's_add_u32 s4, s4, {nstep() * rs}')


def kload(g, unit, ptr, size, s_idx, voff, rowf, tag):
    srd(g, S_A, ptr, size)
    g(f's_lshl_b32 s5, {s_idx}, 17')
    for kb in range(2):
        for t in range(8):
            g(f's_add_u32 s4, s5, {rowf(kb, t) * 2048}')
            g.vmop(f'buffer_load_dwordx4 {vr(BLK(unit + kb) + 4 * t, 4)}, v{voff}, {S_A}, s4 offen nt', (tag, kb))


def transpose(g, blk, T=T):
    b = BLK(blk)
    for p in range(4):
        a, c = b + 8 * p + p, b + 8 * p + 4 + p
        g(f'v_perm_b32 v{T}, v{c}, v{a}, {S_LO}\nv_perm_b32 v{c}, v{c}, v{a}, {S_HI}\nv_mov_b32 v{a}, v{T}')
    for p in range(4):
        for w in range(p + 1, 4):
            xa, xb = b + 8 * p + w, b + 8 * p + 4 + w
            ya, yb = b + 8 * w + p, b + 8 * w + 4 + p
            g(f'v_perm_b32 v{T}, v{xb}, v{xa}, {S_LO}\nv_perm_b32 v{T + 1}, v{xb}, v{xa}, {S_HI}')
            g(f'v_perm_b32 v{xa}, v{yb}, v{ya}, {S_LO}\nv_perm_b32 v{xb}, v{yb}, v{ya}, {S_HI}')
            g(f'v_mov_b32 v{ya}, v{T}\nv_mov_b32 v{yb}, v{T + 1}')


def mfmas(g, unit, b0, b1):
    for kb, bop in ((0, b0), (1, b1)):
        if kb == 1:
            g('s_waitcnt lgkmcnt(0)')
        for j in range(8):
            d = vr(ACC + 4 * j, 4)
            g(f'v_mfma_f32_16x16x32_bf16 {d}, {vr(BLK(unit + kb) + 4 * j, 4)}, {vr(bop, 4)}, {d if kb else 0}')


def common_addr(g, L, kperm):
    K0B = T + 6
    g(f's_lshl_b32 s4, s3, 6\nv_add_u32 v{TID}, s4, v0')
    g.bits(K0B, TID, [(3, 6, 64), (0, 2, 16), (2, 1, 8)], T)
    g.bits(MO, TID, [(8, 1, 10240)], T)
    g(f'v_add_u32 v{MO}, v{MO}, v{K0B}')
    if P['NAT']:
        g.bits(KW, K0B, [(11, 1, ABS), (0, 11, 1)], T)
        g.bits(NB, TID, [(0, 1, ABS), (6, 3, 128), (4, 2, 32), (1, 1, 16)], T)
    else:
        g.bits(KW, K0B, [(11, 1, ABS), (4, 3, 256), (10, 1, 128), (1, 3, 16), (7, 3, 2)], T)
        g.bits(NB, TID, [(0, 1, ABS), (6, 3, 256), (4, 2, 32), (1, 1, 16)], T)
    g.bits(NW, TID, [(6, 3, 1088), (1, 1, 544), (0, 1, 256), (2, 2, 32), (4, 1, 16)], T, L.RED)
    g.bits(NR, TID, [(0, 2, 544), (2, 7, 4)], T, L.RED)
    if kperm:
        g.bits(NO, TID, [(8, 1, 128), (4, 1, 64), (5, 1, 32), (7, 1, 16), (2, 2, 4), (6, 1, 2)], T, L.OUTV)
    else:
        g.bits(NO, TID, [(8, 1, 128), (2, 3, 16), (5, 2, 4), (7, 1, 2)], T, L.OUTV)
    g.bits(KB, TID, [(0, 1, 128), (4, 2, 16)], T, L.OUTV)


def nsplit(g, unit, act, half=None):
    if half is None:
        g(f'ds_read_b128 {vr(T, 4)}, v{NB} offset:{act}\nds_read_b128 {vr(T + 4, 4)}, v{NB} offset:{act + (1024 if P["NAT"] else 128)}')
        g('s_waitcnt lgkmcnt(1)')
        mfmas(g, unit, T, T + 4)
    else:
        g(f'ds_read_b128 {vr(T, 4)}, v{half} offset:{act}\ns_waitcnt lgkmcnt(0)')
        for j in range(8):
            g(f'v_mfma_f32_16x16x32_bf16 {vr(ACC + 4 * j, 4)}, {vr(BLK(unit) + 4 * j, 4)}, {vr(T, 4)}, 0')
    for dd in range(1, 4):
        g.setexec(rep16(0xf << (4 * dd)))
        if dd != 2:
            g.nop(2)
        for i in range(4):
            g(f'v_mov_b64 {vr(ACC + 2 * i, 2)}, {vr(ACC + 8 * dd + 2 * i, 2)}')
    g.setexec(0xcccccccc33333333)
    g(f'ds_write_b128 v{NW}, {vr(ACC, 4)}\nds_write_b128 v{NW}, {vr(ACC + 4, 4)} offset:128')
    g.setexec(-1)
    g('s_waitcnt lgkmcnt(0)\ns_barrier')
    for k in range(4):
        g(f'ds_read_b32 v{T + k}, v{NR} offset:{k * 4 * 544}')
    g('s_waitcnt lgkmcnt(2)')
    g(f'v_add_f32 v{T}, v{T}, v{T + 1}')
    g('s_waitcnt lgkmcnt(0)')
    g(f'v_add_f32 v{T + 2}, v{T + 2}, v{T + 3}\nv_add_f32 v{T}, v{T}, v{T + 2}')
    g.nop(2)
    g(f'v_add_f32_dpp v{T}, v{T}, v{T} quad_perm:[1,0,3,2] {DPP}')
    g.nop(2)
    g(f'v_add_f32_dpp v{T}, v{T}, v{T} quad_perm:[2,3,0,1] {DPP}')


def actwrite(g, p, act):
    if P['NAT']:
        g(f'ds_write_b64 v{KW}, {vr(p, 2)} offset:{act}')
        return
    g(f'ds_write_b16 v{KW}, v{p} offset:{act}\nds_write_b16_d16_hi v{KW}, v{p} offset:{act + 16}')
    g(f'ds_write_b16 v{KW}, v{p + 1} offset:{act + 32}\nds_write_b16_d16_hi v{KW}, v{p + 1} offset:{act + 48}')


def unpack2(g, d, s):
    g(f'v_lshlrev_b32 v{d}, 16, v{s}\nv_and_b32 v{d + 1}, {S_MASK}, v{s}')


def unpack(g, d, s):
    unpack2(g, d, s)
    unpack2(g, d + 2, s + 1)


def pack(g, t, d):
    g(f'v_cvt_pk_bf16_f32 v{t}, v{d}, v{d + 1}\nv_cvt_pk_bf16_f32 v{t + 1}, v{d + 2}, v{d + 3}')


def round4(g, d, t):
    pack(g, t, d)
    unpack(g, d, t)


def round2(g, a):
    g(f'v_cvt_pk_bf16_f32 v{a + 1}, v{a}, v{a + 1}')
    unpack2(g, a, a + 1)


def pk4(g, op, d, a, b):
    g(f'{op} {vr(d, 2)}, {vr(a, 2)}, {vr(b, 2)}\n{op} {vr(d + 2, 2)}, {vr(a + 2, 2)}, {vr(b + 2, 2)}')


def layernorm(g, x, sw, sr, off, last_packed=False):
    a, b = T + 4, T + 5
    g(f'v_add_f32 v{a}, v{x}, v{x + 1}\nv_mul_f32 v{b}, v{x}, v{x}')
    g(f'v_add_f32 v{T}, v{x + 2}, v{x + 3}\nv_fmac_f32 v{b}, v{x + 1}, v{x + 1}')
    g(f'v_add_f32 v{a}, v{a}, v{T}\nv_fmac_f32 v{b}, v{x + 2}, v{x + 2}\nv_fmac_f32 v{b}, v{x + 3}, v{x + 3}')
    for i, ctl in enumerate(['row_ror:8 ' + DPP, 'row_ror:4 ' + DPP, 'row_ror:2 ' + DPP, 'row_ror:1 ' + DPP,
                             'row_bcast:15 row_mask:0xa bank_mask:0xf', 'row_bcast:31 row_mask:0xc bank_mask:0xf']):
        if i:
            g('s_nop 0')
        g(f'v_add_f32_dpp v{a}, v{a}, v{a} {ctl}')
        if i == 0:
            g('s_nop 0')
        g(f'v_add_f32_dpp v{b}, v{b}, v{b} {ctl}')
    g.setexec(1 << 63)
    g(f'ds_write_b64 v{sw}, {vr(a, 2)} offset:{off}')
    g.setexec(-1)
    g('s_waitcnt lgkmcnt(0)\ns_barrier')
    g(f'ds_read_b128 {vr(T, 4)}, v{sr} offset:{off}\nds_read_b128 {vr(T + 4, 4)}, v{sr} offset:{off + 16}')
    g('s_waitcnt lgkmcnt(0)')
    pk4(g, 'v_pk_add_f32', T, T, T + 4)
    g(f'v_pk_add_f32 {vr(a, 2)}, {vr(T, 2)}, {vr(T + 2, 2)}')
    g(f'v_mul_f32 v{a}, 0x3a800000, v{a}\nv_mul_f32 v{b}, 0x3a800000, v{b}')
    g(f'v_fma_f32 v{b}, -v{a}, v{a}, v{b}\nv_max_f32 v{b}, 0, v{b}')
    round2(g, a)
    g(f'v_add_f32 v{b}, 0x3727c5ac, v{b}')
    g(f'v_cvt_pk_bf16_f32 v{b}, v{b}, v{b}\nv_lshlrev_b32 v{b}, 16, v{b}')
    g(f'v_sqrt_f32 v{b}, v{b}')
    for i in range(4):
        g(f'v_sub_f32 v{x + i}, v{x + i}, v{a}')
    g(f'v_cvt_pk_bf16_f32 v{b}, v{b}, v{b}\nv_lshlrev_b32 v{b}, 16, v{b}')
    g(f'v_rcp_f32 v{b}, v{b}')
    round4(g, x, T + 6)
    for i in range(4):
        g(f'v_mul_f32 v{x + i}, v{x + i}, v{b}')
    if last_packed:
        pack(g, T + 6, x)
    else:
        round4(g, x, T + 6)


def ksplit_out(g, unit, po, mb):
    g(f'ds_read_b128 {vr(T, 4)}, v{KB}\nds_read_b128 {vr(T + 4, 4)}, v{KB} offset:64')
    g('s_waitcnt lgkmcnt(1)')
    mfmas(g, unit, T, T + 4)
    tagmask(g, T)
    for j in range(1, 8):
        g.setexec(rep16(3 << (2 * j)))
        g(f'v_mov_b64 {vr(ACC, 2)}, {vr(ACC + 4 * j, 2)}\nv_mov_b64 {vr(ACC + 2, 2)}, {vr(ACC + 4 * j + 2, 2)}')
    g.setexec(-1)
    tag(g, range(ACC, ACC + 4), T)
    g(f'buffer_store_dwordx4 {vr(ACC, 4)}, v{po}, {S_WS}, {mb} offen sc1')


def ml(part, d, s):
    return f'buffer_load_dwordx2 {vr(d, 2)}, v{MO}, {S_WS}, {s} offen offset:{part * 2048} sc1'


def proj(g):
    L = Lds(0)
    Y, SB = 8, 12
    PO, RO, RL, OUTO = 8, 9, 10, 11
    WG, AO, OW = 12, 15, 16
    WQO, WMO, SW, SR = 17, 18, 19, 23
    RX, RGA, RGB, RB2 = 20, 21, 22, 23
    JC, ODD = 's14', 's15'
    g.vm = []

    def publish(s_off, bstride):
        g(f'v_cvt_pk_bf16_f32 v{T}, v{T}, v{T}\nds_write_b16 v{NO}, v{T}')
        g('s_waitcnt lgkmcnt(0)\ns_barrier')
        skip = only_wave(g, 0)
        g(f'v_lshlrev_b32 v{T + 4}, 4, v0\nds_read_b128 {vr(T, 4)}, v{T + 4} offset:{L.OUTV}')
        g.bits(T + 5, 0, [(3, 1, bstride), (0, 3, 16)], T + 6)
        g('s_waitcnt lgkmcnt(0)')
        g.setexec(0xffff)
        g(f'buffer_store_dwordx4 {vr(T, 4)}, v{T + 5}, {S_WS}, {s_off} offen sc1')
        g.setexec(-1)
        g('s_nop 0')
        g(skip + ':')

    def publish32(s_off, bstride, exact):
        g(f'v_subrev_u32 v{T + 1}, {L.OUTV}, v{NO}\nv_lshlrev_b32 v{T + 1}, 1, v{T + 1}\nds_write_b32 v{T + 1}, v{T} offset:{L.PART}')
        g('s_waitcnt lgkmcnt(0)\ns_barrier')
        skip = only_wave(g, 0)
        if exact:
            g(f'v_lshlrev_b32 v{T + 4}, 3, v0\nds_read_b64 {vr(T + 6, 2)}, v{T + 4} offset:{L.PART}')
            g.bits(T + 5, 0, [(5, 1, bstride), (0, 5, 16)], T + 4)
            g(f'v_mov_b32 v{T + 1}, {S_EPO}\nv_mov_b32 v{T + 3}, {S_EPO}\ns_waitcnt lgkmcnt(0)')
            g(f'v_mov_b32 v{T}, v{T + 6}\nv_mov_b32 v{T + 2}, v{T + 7}')
        else:
            g(f'v_lshlrev_b32 v{T + 4}, 4, v0\nds_read_b128 {vr(T, 4)}, v{T + 4} offset:{L.PART}')
            g.bits(T + 5, 0, [(4, 1, bstride), (0, 4, 16)], T + 6)
            g('s_waitcnt lgkmcnt(0)\ns_mov_b32 exec_hi, 0')
        g(f'buffer_store_dwordx4 {vr(T, 4)}, v{T + 5}, {S_WS}, {s_off} offen sc1')
        g.setexec(-1)
        g('s_nop 0')
        g(skip + ':')

    def munit(unit, tag, s_col):
        g.vmwait((tag, 0))
        transpose(g, unit)
        g.vmwait((tag, 1))
        transpose(g, unit + 1)
        nsplit(g, unit, L.ACTS)
        publish(s_col, 12288)

    def reduce(mb, nprod):
        if nprod < 64:
            g(f'v_mov_b32 v{T}, 0')
            skip = g.label('L_nored')
            g(f's_cmp_ge_u32 s3, {nprod // 8}\ns_cbranch_scc1 {skip}')
        poll(g, f'buffer_load_dwordx4 {vr(T, 4)}, v{RO}, {S_WS}, {mb} offen sc1', range(T, T + 4), T + 4)
        g.stamp('red_polled', (1,))
        g(f'v_permlane32_swap_b32 v{T}, v{T + 2}\nv_permlane32_swap_b32 v{T + 1}, v{T + 3}')
        g(f'v_add_f32 v{T}, v{T}, v{T + 2}\nv_add_f32 v{T + 1}, v{T + 1}, v{T + 3}')
        g.nop(2)
        g(f'v_permlane16_swap_b32 v{T}, v{T + 1}\nv_add_f32 v{T}, v{T}, v{T + 1}')
        g.nop(2)
        g(f'v_add_f32_dpp v{T}, v{T}, v{T} row_ror:8 {DPP}')
        if nprod < 64:
            g(skip + ':')
        g(f'ds_write_b32 v{RL}, v{T}')
        g('s_waitcnt lgkmcnt(0)\ns_barrier')
        skip = only_wave(g, 0)
        g(f'v_and_b32 v{T + 2}, 15, v0\nv_lshlrev_b32 v{T + 2}, 3, v{T + 2}')
        for w in range(8):
            g(f'ds_read_b64 {vr(ACC + 2 * w, 2)}, v{T + 2} offset:{L.PART + 128 * w}')
        return skip

    def reduce_sum():
        g('s_waitcnt lgkmcnt(4)')
        pk4(g, 'v_pk_add_f32', ACC, ACC, ACC + 4)
        g('s_waitcnt lgkmcnt(0)')
        pk4(g, 'v_pk_add_f32', ACC + 8, ACC + 8, ACC + 12)
        pk4(g, 'v_pk_add_f32', ACC, ACC, ACC + 8)
        g(f'v_pk_add_f32 {vr(T, 2)}, {vr(ACC, 2)}, {vr(ACC + 2, 2)}')
        round2(g, T)

    g('L_proj:')
    g(f's_and_b32 {JC}, s2, 7\ns_lshl_b32 {JC}, {JC}, 3\ns_lshr_b32 s4, s2, 3\ns_add_u32 {JC}, {JC}, s4')
    g(f's_lshl_b32 s4, s3, 6\nv_add_u32 v{TID}, s4, v0')
    g.bits(T + 6, TID, [(3, 6, 64), (0, 2, 16), (2, 1, 8)], T)
    nvoff(g, WMO, 12288)
    g(f'''s_and_b32 {ODD}, {JC}, 1
          s_lshr_b32 s6, {JC}, 1
          s_lshl_b32 s6, s6, 7
          s_mul_i32 s13, {ODD}, {512 * 12288}
          s_add_u32 s13, s13, s6
          s_lshl_b32 s7, {JC}, 7
          s_lshr_b32 s46, {JC}, 4
          s_lshl_b32 s46, s46, 2
          s_waitcnt lgkmcnt(0)''')
    srd(g, S_WS, 44, WS_SIZE)
    srd(g, S_DBG, 42, 256)
    g(f's_lshl_b32 s47, {ODD}, 15\ns_lshl_b32 s5, s6, 2\ns_add_u32 s47, s47, s5\ns_add_u32 s47, s47, {MODP}')
    g.vmop(epoch_load(RGB), 'in')
    srd(g, S_B, 36, 4096)
    g.vmop(f'buffer_load_dwordx2 {vr(SB, 2)}, v{T + 6}, {S_B}, 0 offen', 'in')
    srd(g, S_B, 16, 4096)
    g.vmop(f'buffer_load_dwordx2 {vr(SB + 2, 2)}, v{T + 6}, {S_B}, 0 offen', 'in')
    prefetch_code(g, None, 1, T, ACC + 4, 'in')
    nload(g, UA, 38, 1024 * 12288, 12288, 's13', WMO, (0,), tag='m1')
    common_addr(g, L, False)
    nvoff(g, WQO, 8192)
    g(f's_lshl_b32 s4, s3, 3\nv_mov_b32 v{SW}, s4\ns_and_b32 s4, s4, 32\nv_mov_b32 v{SR}, s4')
    g(f's_mul_i32 s8, {JC}, {MBA_ST}\ns_add_u32 s8, s8, {MBA}')
    g(f's_lshl_b32 s9, {JC}, 13\ns_add_u32 s10, s9, {MBC}\ns_add_u32 s9, s9, {MBB}')
    g(f's_lshl_b32 s11, {JC}, 7\ns_add_u32 s11, s11, {X1}')
    g.vmwait('in')
    epoch_tag(g, RGB)
    unpack(g, ACC, SB)
    for i in range(4):
        g(f'v_mul_f32 v{T + i}, 0xbfb8aa3b, v{ACC + i}')
    for i in range(4):
        g(f'v_exp_f32 v{T + i}, v{T + i}')
    for i in range(4):
        g(f'v_add_f32 v{T + i}, 1.0, v{T + i}')
    for i in range(4):
        g(f'v_rcp_f32 v{T + i}, v{T + i}')
    for i in range(4):
        g(f'v_mul_f32 v{T + i}, v{T + i}, v{ACC + i}')
    pack(g, T + 4, T)
    actwrite(g, T + 4, L.ACTS)
    unpack(g, Y, SB + 2)
    layernorm(g, Y, SW, SR, L.STAT)
    g.stamp('g_ln')
    nload(g, UB, 22, 1024 * 8192, 8192, 's7', WQO, (0,), tag='wq')
    g('s_waitcnt vmcnt(8)')
    transpose(g, UA)
    g(f's_lshl_b32 s4, {ODD}, {10 if P["NAT"] else 7}\nv_add_u32 v{T + 7}, s4, v{NB}')
    nsplit(g, UA, L.ACTS, T + 7)
    publish32('s47', 16384, True)
    g.stamp('g_mod')
    nload(g, UB, 22, 1024 * 8192, 8192, 's7', WQO, (1,), tag='wq')
    MP = RGA
    g.bits(MP, TID, [(8, 1, 16384), (3, 5, 256), (0, 2, 64), (2, 1, 32)], T + 7, MODP)
    g('s_waitcnt vmcnt(8)')
    transpose(g, UB)
    g(f's_mov_b32 s4, 8192\ns_mov_b32 s5, 32768\ns_mov_b32 s12, {32768 + 8192}')
    mloads = '\n'.join(f'buffer_load_dwordx4 {vr(ACC + 4 * i, 4)}, v{MP}, {S_WS}, {("0", "s5", "s4", "s12")[i >> 1]} offen offset:{16 * (i & 1)} sc1'
                       for i in range(8))
    g(f's_waitcnt vmcnt({P["MW"]})')
    g(mloads)
    g('s_waitcnt vmcnt(8)')
    transpose(g, UB + 1)
    g('s_waitcnt vmcnt(0)')
    poll(g, mloads, range(ACC + 1, ACC + 32, 2), T, P['MSL'], preloaded=True, mask=-1)
    g.vm = []
    g.stamp('g_modseen')
    for i in range(4):
        g(f'v_add_f32 v{T + i}, v{ACC + 16 + 2 * i}, v{ACC + 24 + 2 * i}')
    for i in range(4):
        g(f'v_add_f32 v{ACC + i}, v{ACC + 2 * i}, v{ACC + 8 + 2 * i}')
    round4(g, T, T + 4)
    for i in range(4):
        g(f'v_add_f32 v{T + i}, 1.0, v{T + i}')
    round4(g, T, T + 4)
    pk4(g, 'v_pk_mul_f32', Y, Y, T)
    round4(g, Y, T + 4)
    round4(g, ACC, T + 4)
    pk4(g, 'v_pk_add_f32', Y, Y, ACC)
    pack(g, T, Y)
    actwrite(g, T, L.ACTH)
    g('s_waitcnt lgkmcnt(0)\ns_barrier')
    nsplit(g, UB, L.ACTH)
    g(f's_lshl_b32 s12, s7, 1\ns_add_u32 s12, s12, {QB}')
    g(f'v_cvt_pk_bf16_f32 v{T}, v{T}, v{T}\nv_lshl_or_b32 v{T}, v{T}, 16, {S_T16}')
    publish32('s12', 16384, False)
    g.stamp('g_q')

    g(f'v_lshlrev_b32 v{RO}, 4, v{TID}')
    g(f's_xor_b32 s6, s7, 128\ns_add_u32 s6, s6, 4096')
    nload(g, UA, 38, 1024 * 12288, 12288, 's6', WMO, tag='m2')
    g.bits(PO, TID, [(4, 2, 4096), (6, 3, 256), (0, 4, 16)], T + 7)
    kload(g, UC, 24, 4096 * 2048, JC, PO, lambda kb, t: 32 * kb + (t & 3) * 8 + (t >> 2), 'wo')
    munit(UA, 'm2', 's6')
    g('s_waitcnt vmcnt(0)')
    g.vm = []
    skip = only_wave(g, 0)
    arrive(g, T + 4, 0, C_LATE)
    g('s_waitcnt vmcnt(0)')
    arrived(g, T + 4, 0, C_LATE, NG)
    g(skip + ':')
    transpose(g, UC)
    transpose(g, UC + 1)
    g.stamp('g_loaded')
    fwait(g, T, 0, C_LATE, P['LSL'])
    g(f's_lshr_b32 s4, {JC}, 1\ns_lshl_b32 s4, s4, 6\ns_lshl_b32 s5, {ODD}, 3\ns_add_u32 s4, s4, s5')
    g.bits(T, 0, [(1, 2, 16), (0, 1, 4)], T + 1, 's4')
    srd(g, S_B, 34, 2048)
    g(f'buffer_load_dword v{RB2}, v{T}, {S_B}, 0 offen')
    g(f'v_bfe_u32 v{T + 1}, v0, 3, 1\nv_mul_u32_u24 v{T + 2}, 12288, v{T + 1}\nv_add_u32 v{T + 2}, v{T + 2}, v{T}')
    g(f'v_lshl_add_u32 v{OUTO}, v{T + 1}, 11, v{T}')
    srd(g, S_B, 16, 4096)
    g(f'buffer_load_dword v{RX}, v{OUTO}, {S_B}, 0 offen')
    g(f's_mov_b32 s4, {MOD + 2 * 2048}\ns_mov_b32 s5, {MOD + 5 * 2048}')
    g(f'buffer_load_dword v{RGA}, v{T + 2}, {S_WS}, s4 offen sc1\nbuffer_load_dword v{RGB}, v{T + 2}, {S_WS}, s5 offen sc1')
    srd(g, S_B, 40, 4096)
    g.bits(RL, TID, [(6, 3, 128), (0, 1, 64), (4, 2, 16), (1, 2, 4)], T, L.PART)
    g.bits(PO, TID, [(3, 6, 8192), (0, 3, 16)], T)
    g(f's_add_u32 s12, s7, {MBB}')
    g.bits(AO, TID, [(8, 1, SPL * 256), (3, 3, 256), (6, 2, 64), (0, 3, 8)], T + 3)
    g.bits(OW, TID, [(6, 3, 32), (0, 3, 4), (5, 1, 2)], T + 3, L.OUTV)
    g.bits(T + 5, TID, [(8, 1, 128), (3, 3, 4)], T + 3)
    g('s_add_u32 s13, s8, 4096')
    g.bits(T + 2, 0, [(5, 1, 8192), (0, 5, 8)], T + 3)
    g(f's_lshr_b32 s4, {JC}, 1\ns_lshl_b32 s4, s4, 8\ns_add_u32 s4, s4, {STATS}')
    prefetch_code(g, 'L_proj_tail', 1, T + 6, ACC)
    g.stamp('g_ready')
    g('L_proj_tail:')
    fwait(g, T, 's46', C_A, P['ASL'])
    g.stamp('g_hint', (0, 1))
    g(f'v_mov_b32 v{T}, 0xff800000\nv_mov_b32 v{T + 1}, 0')
    g.setexec(((1 << SPL) - 1) * 0x100000001)
    poll(g, f'buffer_load_dwordx2 {vr(T, 2)}, v{T + 2}, {S_WS}, s4 offen sc1', [T, T + 1], T + 4, 2)
    g.setexec(-1)

    def red32(r, t, op):
        for sh in (8, 4, 2, 1):
            g.nop(2)
            g(f'{op}_dpp v{r}, v{r}, v{r} row_ror:{sh} {DPP}')
        g(f'v_mov_b32 v{t}, v{r}')
        g.nop(2)
        g(f'v_permlane16_swap_b32 v{r}, v{t}\n{op} v{r}, v{r}, v{t}')
    g(f'v_and_b32 v{T}, {S_MASK}, v{T}\nv_mov_b32 v{T + 2}, v{T}')
    red32(T + 2, T + 3, 'v_max_f32')
    g(f'v_sub_f32 v{T}, v{T}, v{T + 2}\nv_mul_f32 v{T}, 0x3fb8aa3b, v{T}\nv_exp_f32 v{T}, v{T}\ns_nop 0')
    g(f'v_mul_f32 v{T + 1}, v{T + 1}, v{T}')
    red32(T + 1, T + 3, 'v_add_f32')
    g(f'v_rcp_f32 v{T + 1}, v{T + 1}\ns_nop 0\nv_mul_f32 v{T}, v{T}, v{T + 1}')
    for k in range(3):
        g(f'ds_bpermute_b32 v{WG + k}, v{T + 5}, v{T} offset:{32 * k}')
    g('s_waitcnt lgkmcnt(0)')
    g.stamp('g_wgt', (0, 1))
    poll(g, f'''buffer_load_dwordx2 {vr(T, 2)}, v{AO}, {S_WS}, s8 offen sc1
                buffer_load_dwordx2 {vr(T + 2, 2)}, v{AO}, {S_WS}, s8 offen offset:2048 sc1
                buffer_load_dwordx2 {vr(T + 4, 2)}, v{AO}, {S_WS}, s13 offen sc1''', range(T, T + 6), T + 6, P['SLEEP'])
    g.stamp('g_apolled', (0, 1))
    g(f'v_mul_f32 v{T}, v{WG}, v{T}\nv_mul_f32 v{T + 1}, v{WG}, v{T + 1}')
    for k in (1, 2):
        g(f'v_fmac_f32 v{T}, v{WG + k}, v{T + 2 * k}\nv_fmac_f32 v{T + 1}, v{WG + k}, v{T + 2 * k + 1}')
    g.nop(2)
    g(f'v_permlane32_swap_b32 v{T}, v{T + 1}\nv_add_f32 v{T}, v{T}, v{T + 1}\nv_mov_b32 v{T + 1}, v{T}')
    g.nop(2)
    g(f'v_permlane16_swap_b32 v{T}, v{T + 1}\nv_add_f32 v{T}, v{T}, v{T + 1}')
    g.nop(2)
    g(f'v_add_f32_dpp v{T}, v{T}, v{T} row_ror:8 {DPP}')
    g(f'v_cvt_pk_bf16_f32 v{T}, v{T}, v{T}\nds_write_b16 v{OW}, v{T}')
    g('s_waitcnt lgkmcnt(0)\ns_barrier')
    g.stamp('g_obar', (1,))
    ksplit_out(g, UC, PO, 's12')
    g.stamp('g_t2', (0, 1))
    skip = reduce('s9', 64)
    unpack2(g, T + 4, RGA)
    unpack2(g, T + 6, RX)
    g(f'v_lshlrev_b32 v{T + 3}, 3, v0\nv_mov_b32 v{ACC + 16}, {S_MASK}')
    reduce_sum()
    g(f'v_pk_mul_f32 {vr(T, 2)}, {vr(T, 2)}, {vr(T + 4, 2)}')
    round2(g, T)
    g(f'v_pk_add_f32 {vr(T, 2)}, {vr(T, 2)}, {vr(T + 6, 2)}')
    g(f'v_cvt_pk_bf16_f32 v{RX}, v{T}, v{T + 1}')
    g(f'v_lshl_or_b32 v{T}, v{RX}, 16, {S_T16}\nv_and_or_b32 v{T + 1}, v{RX}, v{ACC + 16}, {S_T16}')
    g.setexec(0xffff)
    g(f'buffer_store_dwordx2 {vr(T, 2)}, v{T + 3}, {S_WS}, s11 offen sc1')
    g.setexec(-1)
    g(skip + ':')
    g.stamp('g_x1', (0, 1))
    g('s_barrier')
    skip = reduce('s10', 56)
    unpack2(g, T + 2, RB2)
    unpack2(g, T + 4, RGB)
    unpack2(g, T + 6, RX)
    reduce_sum()
    g(f'v_pk_add_f32 {vr(T, 2)}, {vr(T, 2)}, {vr(T + 2, 2)}')
    round2(g, T)
    g(f'v_pk_mul_f32 {vr(T, 2)}, {vr(T, 2)}, {vr(T + 4, 2)}')
    round2(g, T)
    g(f'v_pk_add_f32 {vr(T, 2)}, {vr(T, 2)}, {vr(T + 6, 2)}')
    g(f'v_cvt_pk_bf16_f32 v{T}, v{T}, v{T + 1}')
    g.setexec(0xffff)
    g(f'buffer_store_dword v{T}, v{OUTO}, {S_B}, 0 offen')
    g(f's_cmp_lg_u32 s2, 0\ns_cbranch_scc1 {skip}\nv_mov_b32 v{T + 1}, {S_EPO}\ns_mov_b64 exec, 1')
    g(f'buffer_store_dword v{T + 1}, off, {S_WS}, 0 sc1')
    g(skip + ':')
    g.stamp('g_out', (0, 1))
    if P['PADTO']:
        g(f'L_pad:\ns_memrealtime s[4:5]\ns_waitcnt lgkmcnt(0)\ns_sub_u32 s4, s4, s70\ns_cmp_lt_u32 s4, {P["PADTO"]}\ns_cbranch_scc1 L_pad')
    write_stamps(g)
    g('s_endpgm')


MLP_LDS = 4096
W1L = 4096
LDS_TOTAL = W1L + 131072


def mlp(g):
    L = Lds(MLP_LDS)
    PO, XO, SW, SR, B1 = 8, 9, 10, 11, 17
    C1, SH = 12, 18
    JM = 's14'
    g.vm = []
    g('L_mlp:')
    if P['W2TH']:
        fwait(g, ACC + 4, 's101', C_A, P['LSL'])
    skip = only_wave(g, 0)
    g(fread(ACC + 4, 0, C_LATE))
    g(skip + ':')
    g(f's_lshl_b32 s4, s3, 6\nv_add_u32 v{TID}, s4, v0')
    g(f's_lshl_b32 s7, {JM}, 7')
    g.bits(T + 5, TID, [(4, 2, 2048), (6, 3, 256), (0, 4, 16)], T + 7)
    kload(g, UB, 32, 3584 * 2048, JM, T + 5, lambda kb, t: 32 * kb + 4 * t, 'w2')
    common_addr(g, L, True)
    g(f's_mov_b32 s6, {MOD + 3 * 2048}')
    srd(g, S_B, 30, 3584 * 2)
    g.bits(T + 5, TID, [(2, 3, 16), (5, 2, 4), (7, 1, 2)], T, 's7')
    g.vmop(f'buffer_load_ushort v{B1}, v{T + 5}, {S_B}, 0 offen', 'k')
    prefetch_code(g, 'L_mlp_tail', 1, T + 5, ACC + 8, 'k')
    g.bits(XO, TID, [(2, 6, 128), (8, 1, 64), (0, 2, 16)], T, X1)
    g.bits(PO, TID, [(3, 6, 8192), (0, 3, 16)], T)
    g(f's_add_u32 s13, s7, {MBC}')
    g(f's_lshl_b32 s4, s3, 3\nv_mov_b32 v{SW}, s4\ns_and_b32 s4, s4, 32\nv_mov_b32 v{SR}, s4')
    skip = only_wave(g, 0)
    g('s_waitcnt vmcnt(%d)' % len(g.vm))
    fpoll(g, ACC + 4, 0, C_LATE, P['MSL'], preloaded=True)
    g(skip + ':')
    g('s_barrier')
    g.vmop(ml(0, ACC, 's6') + '\n' + ml(1, ACC + 2, 's6'), 'k')
    for kb in range(2):
        g.vmwait(('w2', kb))
        transpose(g, UB + kb)
    g.vmwait('k')
    unpack(g, SH, ACC)
    unpack(g, C1, ACC + 2)
    for i in range(4):
        g(f'v_add_f32 v{C1 + i}, 1.0, v{C1 + i}')
    round4(g, C1, T)
    g(f'v_lshlrev_b32 v{B1}, 16, v{B1}')
    g.stamp('m_ready', (0, 2))
    g('L_mlp_tail:')
    XV = ACC
    poll(g, f'buffer_load_dwordx4 {vr(XV, 4)}, v{XO}, {S_WS}, 0 offen sc1', range(XV, XV + 4), T, mask=0xffff)
    g.stamp('m_x1seen', (0, 2))
    for i in range(4):
        g(f'v_and_b32 v{XV + i}, {S_MASK}, v{XV + i}')
    layernorm(g, XV, SW, SR, L.STAT)
    g.stamp('m_ln1', (2,))
    pk4(g, 'v_pk_mul_f32', XV, XV, C1)
    round4(g, XV, T + 6)
    pk4(g, 'v_pk_add_f32', XV, XV, SH)
    round4(g, XV, T + 6)
    layernorm(g, XV, SW, SR, L.STAT + 64, last_packed=True)
    actwrite(g, T + 6, L.ACTH)
    g('s_waitcnt lgkmcnt(0)\ns_barrier')
    g.stamp('m_ln2', (2,))
    nsplit(g, UC, L.ACTH)
    g.stamp('m_t3', (2,))
    g(f'''v_cvt_pk_bf16_f32 v{T}, v{T}, v{T}
          v_lshlrev_b32 v{T}, 16, v{T}
          v_add_f32 v{T}, v{T}, v{B1}
          v_cvt_pk_bf16_f32 v{T}, v{T}, v{T}
          v_lshlrev_b32 v{T}, 16, v{T}
          v_mov_b32 v{T + 2}, 0xc0135761
          v_mul_f32 v{T + 1}, v{T}, v{T}
          v_fmac_f32 v{T + 2}, 0xbdd2d3e8, v{T + 1}
          v_mul_f32 v{T + 1}, v{T + 2}, v{T}
          v_exp_f32 v{T + 1}, v{T + 1}
          s_nop 0
          v_add_f32 v{T + 1}, 1.0, v{T + 1}
          v_rcp_f32 v{T + 1}, v{T + 1}
          s_nop 0
          v_mul_f32 v{T}, v{T}, v{T + 1}
          v_cvt_pk_bf16_f32 v{T}, v{T}, v{T}
          ds_write_b16 v{NO}, v{T}
          s_waitcnt lgkmcnt(0)
          s_barrier''')
    g.stamp('m_gelu', (2,))
    ksplit_out(g, UB, PO, 's13')
    g.stamp('m_t4', (0, 2))
    write_stamps(g)
    g('s_endpgm')


def attention(g):
    KO, VO, QO, VSC, VMAX, OO = 1, 2, 3, 4, 5, 6
    Q0, SP, TMP, T2 = 8, 16, 40, 56
    LA, GA = T2 + 7, T2 + 6
    SLOT = lambda s: 64 + 32 * s
    AC = SLOT(0)
    U = lambda u: 's%d' % (4 + 2 * u)
    U2 = lambda u: 's%d' % (5 + 2 * u)
    S_R, S_CU, S_GA, S_T = 's47', 's68', 's96', 's69'
    S_B4, S_B5, S_O4, S_KV = 's46', 's100', 's101', 's101'
    MX, OBUF, OST = 0, W1L, 16384
    QL, QF = 1024, 3072
    S_ST = 's97'
    NN = (SPL - NMR) * 8
    n4 = NN
    n5 = 1024 - 4 * WPR - n4
    assert 0 <= n5 <= NN
    base = [0, WPR, 2 * WPR, 3 * WPR, 4 * WPR, 4 * WPR + n4]
    g.vm = []

    g('L_attn:')
    g(f'''s_sub_u32 {S_T}, s2, {NG}
          s_mul_hi_u32 {S_R}, {S_T}, {(1 << 32) // SPL + 1}
          s_mul_i32 {S_CU}, {S_R}, {SPL}
          s_sub_u32 {S_CU}, {S_T}, {S_CU}
          s_mul_i32 {S_T}, s3, {SPL - NMR}
          s_add_u32 {S_T}, {S_T}, {S_CU}
          s_cmp_lt_u32 {S_CU}, {SPL - NMR}
          s_cselect_b32 {S_T}, {S_T}, 1023
          s_lshl_b32 s98, {S_CU}, 3
          s_add_u32 s98, s98, s3
          s_mul_i32 {S_GA}, {S_R}, {P["PH"]}''')
    for u in range(NU):
        g(f's_add_u32 {U(u)}, {S_GA}, {"s98" if u < 5 else S_T}')
        if u:
            g(f's_add_u32 {U(u)}, {U(u)}, {base[u]}')
        g(f's_and_b32 {U(u)}, {U(u)}, 1023\ns_lshl_b32 {U(u)}, {U(u)}, 13\ns_add_u32 {U2(u)}, {U(u)}, 4096')
    g.bits(KO, 0, [(1, 1, 1024), (2, 2, 256), (0, 1, 64), (4, 2, 16)], 8)
    g(f'v_lshlrev_b32 v{VO}, 4, v0')
    g(f's_cmp_lt_u32 {S_T}, {n4}\ns_cselect_b32 {S_O4}, 0, 0x1000000\ns_cselect_b32 {S_B4}, 0, 0xff800000')
    g(f's_cmp_lt_u32 {S_T}, {n5}\ns_cselect_b32 s98, 0, 0x1000000\ns_cselect_b32 {S_B5}, 0, 0xff800000')
    g(f'v_add_u32 v{OO}, {S_O4}, v{KO}\nv_add_u32 v{OO + 1}, s98, v{KO}')
    g('s_waitcnt lgkmcnt(0)')
    g(f's_lshl_b32 {S_T}, {S_R}, 23')
    g(f's_add_u32 s56, s18, {S_T}\ns_addc_u32 s57, s19, 0\ns_mov_b32 s58, 0x800000\ns_mov_b32 s59, 0x20000')
    g(f's_add_u32 s60, s20, {S_T}\ns_addc_u32 s61, s21, 0\ns_mov_b32 s62, 0x800000\ns_mov_b32 s63, 0x20000')

    VSLOT = [1, 2, 3, 1, 4, 5]

    def load(n):
        i = n & 7
        if n < 48:
            u = n >> 3
            vo = KO if u < 4 else OO + u - 4
            g.vmop(f'buffer_load_dwordx4 {vr(SLOT(u) + 4 * i, 4)}, v{vo}, {S_A}, {U2(u) if i >= 4 else U(u)} offen '
                   f'offset:{((i >> 1) & 1) * 2048 + (i & 1) * 128} nt', n)
        elif n < 64:
            if n == 48:
                l1, l2 = g.label('L_xv'), g.label('L_xj')
                g(f's_lshl_b32 s98, s3, 14\ns_add_u32 m0, s98, {W1L}\ns_mov_b32 s95, 0x20000')
                g(f's_cmp_lt_u32 {S_CU}, {SPL - NMR}\ns_cbranch_scc1 {l1}')
                g(f's_lshl_b32 {S_T}, s3, 6\nv_add_u32 v{T2 + 1}, {S_T}, v0')
                nvoff(g, OO, 7168, T2 + 1, T2 + 2)
                g(f'v_mov_b32 v{OO + 1}, v{OO}')
                g(f's_mul_i32 {S_T}, {S_R}, {NMR}\ns_add_u32 {S_T}, {S_T}, {S_CU}\ns_sub_u32 {S_T}, {S_T}, {SPL - NMR}')
                g(f's_lshl_b32 {U(4)}, {S_T}, 7\ns_add_u32 {U(5)}, {U(4)}, {512 * 7168}\ns_mov_b32 {U2(4)}, {nstep() * 7168}')
                g(f's_mov_b32 s92, s28\ns_mov_b32 s93, s29\ns_mov_b32 s94, {1024 * 7168}')
                g(f's_branch {l2}\n{l1}:')
                g(f'v_sub_u32 v{T2 + 1}, v{VO}, v{KO}\nv_mov_b32 v{OO}, v{VO}\nv_add_u32 v{OO + 1}, v{OO + 1}, v{T2 + 1}')
                g(f's_mov_b32 {U2(4)}, 1024\ns_mov_b32 s92, s60\ns_mov_b32 s93, s61\ns_mov_b32 s94, s62')
                g(l2 + ':')
            u = 4 + ((n - 48) >> 3)
            if n > 48:
                g('s_add_u32 m0, m0, 1024')
            g(f's_add_u32 {U(u)}, {U(u)}, {U2(4)}' if i else 's_nop 0')
            g.vmop(f'buffer_load_dwordx4 v{OO + u - 4}, s[92:95], {U(u)} offen nt lds', n)
        else:
            u = (n - 64) >> 3
            g.vmop(f'buffer_load_dwordx4 {vr(SLOT(VSLOT[u]) + 4 * i, 4)}, v{VO}, {S_B}, {U2(u) if i >= 4 else U(u)} offen '
                   f'offset:{(i & 3) * 1024} nt', n)

    def setup():
        srd(g, S_WS, 44, WS_SIZE)
        srd(g, S_DBG, 42, 256)
        g.bits(GA, 0, [(5, 1, MBA_ST), (0, 5, 8)], 8)
        g(f'''s_and_b32 {S_T}, {S_R}, 3
              s_lshl_b32 {S_T}, {S_T}, 3
              s_add_u32 {S_T}, {S_T}, s3
              s_mul_i32 {S_T}, {S_T}, {2 * MBA_ST}
              s_lshr_b32 {S_GA}, {S_R}, 2
              s_mul_i32 {S_GA}, {S_GA}, {SPL}
              s_add_u32 {S_GA}, {S_GA}, {S_CU}
              s_lshl_b32 {S_GA}, {S_GA}, 8
              s_add_u32 {S_GA}, {S_GA}, {S_T}
              s_add_u32 {S_GA}, {S_GA}, {MBA}''')
        g.vmop(epoch_load(T2 + 2), 'ep')
        prefetch_code(g, 'L_attn_body', 2, 8, TMP, 'pf')
        g(f's_and_b32 {S_KV}, {S_R}, 3\ns_lshl_b32 {S_KV}, {S_KV}, 2')
        g.bits(QO, 0, [(0, 3, 256), (3, 1, 64), (4, 2, 16)], 8)
        g.bits(LA, 0, [(0, 4, 64)], 8)
        g(f's_lshl_b32 {S_T}, s3, 3\nv_add_u32 v8, {S_T}, v{LA}\nv_mov_b32 v9, -1\nds_write_b32 v8, v9 offset:{MX + 4}')
        g(f'v_mov_b32 v{T2}, 0\nds_write_b32 v{T2}, v{T2} offset:{QF}\ns_mov_b32 {S_ST}, 0\ns_waitcnt lgkmcnt(0)\ns_barrier')
        g(f'v_mov_b32 v{VSC}, 0x3db504f3\nv_mov_b32 v{VMAX}, 0xff800000')
        g('L_attn_body:')

    def readback():
        g(f's_lshl_b32 {S_T}, s3, 14\ns_add_u32 {S_T}, {S_T}, {W1L}\nv_add_u32 v{T2}, {S_T}, v{VO}')
        for i in range(16):
            g(f'ds_read_b128 {vr(SLOT(4) + 4 * i, 4)}, v{T2} offset:{i * 1024}')

    def lds_units():
        l1, l2 = g.label('L_w1'), g.label('L_w1j')
        g(f's_cmp_ge_u32 {S_CU}, {SPL - NMR}\ns_cbranch_scc1 {l1}')
        g('s_waitcnt lgkmcnt(8)')
        pv(4)
        g('s_waitcnt lgkmcnt(0)')
        pv(5)
        g(f's_branch {l2}\n{l1}:')
        g('s_waitcnt lgkmcnt(8)')
        transpose(g, UC, T2)
        g('s_waitcnt lgkmcnt(0)')
        transpose(g, UC + 1, T2)
        g(l2 + ':')

    def qstep(final=False):
        skip = only_wave(g, P['QW'])
        l1, l3, top = g.label('L_q1'), g.label('L_q3'), g.label('L_qtop')
        if final:
            g(f's_mov_b32 {S_SPIN}, {SPIN}\n{top}:')
        g(f's_cmp_eq_u32 {S_ST}, 2\ns_cbranch_scc1 {skip}')
        if final:
            g(f's_waitcnt vmcnt(0)\ns_sub_u32 {S_SPIN}, {S_SPIN}, 1\ns_cbranch_scc1 {l3}')
        g(f's_cmp_eq_u32 {S_ST}, 0\ns_cbranch_scc1 {l1}')
        check(g, range(TMP, TMP + 16), T2, 0xffff)
        g(f's_cbranch_vccz {l3}')
        if final:
            g(f's_sleep {P["QSL"]}')
        g(l1 + ':')
        g(f's_lshl_b32 {S_T}, {S_R}, 12\ns_add_u32 {S_T}, {S_T}, {QB}\ns_mov_b32 {S_ST}, 1')
        for i in range(4):
            g(f'buffer_load_dwordx4 {vr(TMP + 4 * i, 4)}, v{VO}, {S_WS}, {S_T} offen offset:{1024 * i} sc1')
        g(f's_branch {top if final else skip}')
        g(l3 + ':')
        g(f'v_lshlrev_b32 v{T2}, 3, v0')
        for i in range(8):
            g(f'v_perm_b32 v{Q0 + i}, v{TMP + 2 * i + 1}, v{TMP + 2 * i}, {S_HI}')
        for i in range(4):
            g(f'ds_write_b64 v{T2}, {vr(Q0 + 2 * i, 2)} offset:{QL + 512 * i}')
        g(f'v_mov_b32 v{T2}, 0\nv_mov_b32 v{T2 + 1}, 1\ns_mov_b32 {S_ST}, 2\ns_waitcnt lgkmcnt(0)')
        g(f'ds_write_b32 v{T2}, v{T2 + 1} offset:{QF}')
        g(skip + ':')

    def qget():
        g.stamp('a_qwait')
        if P['NOQ']:
            return
        qstep(final=True)
        lp, ok = g.label('L_qf'), g.label('L_qfok')
        g(f'v_mov_b32 v{T2}, 0\ns_mov_b32 {S_SPIN}, {SPIN * 16}\n{lp}:')
        g(f'ds_read_b32 v{T2 + 1}, v{T2} offset:{QF}\ns_waitcnt lgkmcnt(0)')
        g(f'v_cmp_eq_u32 vcc, 0, v{T2 + 1}\ns_cbranch_vccz {ok}')
        g(f's_sleep 2\ns_sub_u32 {S_SPIN}, {S_SPIN}, 1\ns_cbranch_scc0 {lp}\n{ok}:')
        g(f'ds_read_b128 {vr(Q0, 4)}, v{QO} offset:{QL}\nds_read_b128 {vr(Q0 + 4, 4)}, v{QO} offset:{QL + 128}')
        g('s_waitcnt lgkmcnt(0)')
        g.stamp('a_qseen')

    def qk(u):
        for t in range(4):
            g(f'v_mfma_f32_16x16x32_bf16 {vr(TMP + 4 * t, 4)}, {vr(SLOT(u) + 8 * t, 4)}, {vr(Q0, 4)}, 0')
        for t in range(4):
            g(f'v_mfma_f32_16x16x32_bf16 {vr(TMP + 4 * t, 4)}, {vr(SLOT(u) + 8 * t + 4, 4)}, {vr(Q0 + 4, 4)}, {vr(TMP + 4 * t, 4)}')
        g.nop(5)
        for t in range(4):
            d = TMP + 4 * t
            a, b = T2 + 2 * (t & 1), T2 + 2 * (t & 1) + 1
            g(f'v_add_f32_dpp v{a}, v{d + 1}, v{d} row_ror:8 {DPP}\nv_add_f32_dpp v{b}, v{d + 3}, v{d + 2} row_ror:8 {DPP}')
            round2(g, a)
            if u >= 4:
                sb = S_B4 if u == 4 else S_B5
                g(f'v_fma_f32 v{a}, v{a}, v{VSC}, {sb}\nv_fma_f32 v{b}, v{b}, v{VSC}, {sb}')
            else:
                g(f'v_mul_f32 v{a}, v{a}, v{VSC}\nv_mul_f32 v{b}, v{b}, v{VSC}')
            g(f'v_max3_f32 v{VMAX}, v{VMAX}, v{a}, v{b}\nv_cvt_pk_bf16_f32 v{SP + 4 * u + t}, v{a}, v{b}')

    def red_g(r, t, op):
        for ins in ('v_permlane32_swap_b32', 'v_permlane16_swap_b32'):
            g(f'v_mov_b32 v{t}, v{r}')
            g.nop(2)
            g(f'{ins} v{r}, v{t}\n{op} v{r}, v{r}, v{t}')

    def softmax():
        red_g(VMAX, T2, 'v_max_f32')
        for i in range(0, 32, 2):
            g(f'v_mov_b64 {vr(AC + i, 2)}, 0')
        g(f'v_mov_b32 v{VSC}, 0x3fb8aa3b\nv_mov_b32 v{T2 + 4}, 0')
        g(f'v_cvt_pk_bf16_f32 v{VMAX}, v{VMAX}, v{VMAX}\nv_lshlrev_b32 v{VMAX}, 16, v{VMAX}')
        g(f'v_mul_f32 v{T2 + 5}, v{VMAX}, v{VSC}')

    def probs(u):
        for i in range(4 * u, 4 * u + 4):
            p = SP + i
            a, b = T2 + 2 * (i & 1), T2 + 2 * (i & 1) + 1
            unpack2(g, a, p)
            g(f'v_fma_f32 v{a}, v{a}, v{VSC}, -v{T2 + 5}\nv_fma_f32 v{b}, v{b}, v{VSC}, -v{T2 + 5}')
            g(f'v_exp_f32 v{a}, v{a}\nv_exp_f32 v{b}, v{b}')
            g(f'v_add_f32 v{T2 + 4}, v{T2 + 4}, v{a}\nv_add_f32 v{T2 + 4}, v{T2 + 4}, v{b}')
            g(f'v_cvt_pk_bf16_f32 v{p}, v{a}, v{b}')
        if u == NU - 1:
            red_g(T2 + 4, T2, 'v_add_f32')
            g(f's_lshl_b32 {S_T}, s3, 3\nv_add_u32 v{T2}, {S_T}, v{LA}\nv_mov_b32 v{T2 + 2}, v{VMAX}\nv_min_u32 v{T2 + 3}, -2, v{T2 + 4}')
            g(f'ds_write_b64 v{T2}, {vr(T2 + 2, 2)} offset:{MX}')
            g.stamp('a_probs')

    def pv(u):
        s = SLOT(VSLOT[u])
        for w in range(4):
            t = TMP + 8 * (w & 1)
            for p in range(4):
                g(f'v_perm_b32 v{t + p}, v{s + 8 * p + 4 + w}, v{s + 8 * p + w}, {S_LO}')
            for p in range(4):
                g(f'v_perm_b32 v{t + 4 + p}, v{s + 8 * p + 4 + w}, v{s + 8 * p + w}, {S_HI}')
            g(f'v_mfma_f32_16x16x32_bf16 {vr(AC + 8 * w, 4)}, {vr(t, 4)}, {vr(SP + 4 * u, 4)}, {vr(AC + 8 * w, 4)}')
            g('s_nop 0')
            g(f'v_mfma_f32_16x16x32_bf16 {vr(AC + 8 * w + 4, 4)}, {vr(t + 4, 4)}, {vr(SP + 4 * u, 4)}, {vr(AC + 8 * w + 4, 4)}')

    def gather_ml():
        lp, ok = g.label('L_ml'), g.label('L_mlok')
        g(f's_mov_b32 {S_SPIN}, {SPIN * 16}\n{lp}:')
        for i in range(4):
            g(f'ds_read_b128 {vr(TMP + 4 * i, 4)}, v{LA} offset:{MX + 16 * i}')
        g('s_waitcnt lgkmcnt(0)')
        g(f'v_max_u32 v{T2}, v{TMP + 1}, v{TMP + 3}')
        for i in range(5, 16, 4):
            g(f'v_max3_u32 v{T2}, v{T2}, v{TMP + i}, v{TMP + i + 2}')
        g(f'v_cmp_eq_u32 vcc, -1, v{T2}\ns_cbranch_vccz {ok}')
        g(f's_sleep 2\ns_sub_u32 {S_SPIN}, {S_SPIN}, 1\ns_cbranch_scc0 {lp}\n{ok}:')
        g(f'v_max_f32 v{T2 + 2}, v{TMP}, v{TMP + 2}')
        for i in range(4, 16, 4):
            g(f'v_max3_f32 v{T2 + 2}, v{T2 + 2}, v{TMP + i}, v{TMP + i + 2}')

    def stats():
        skip = only_wave(g, 7)
        gather_ml()
        g(f'v_mov_b32 v{T2 + 3}, 0')
        for i in range(0, 16, 2):
            g(f'v_sub_f32 v{TMP + i}, v{TMP + i}, v{T2 + 2}\nv_mul_f32 v{TMP + i}, 0x3fb8aa3b, v{TMP + i}')
        for i in range(0, 16, 2):
            g(f'v_exp_f32 v{TMP + i}, v{TMP + i}')
        g(f's_lshl_b32 {S_T}, {S_R}, 11\ns_lshl_b32 s98, {S_CU}, 3\ns_add_u32 {S_T}, {S_T}, s98\ns_add_u32 {S_T}, {S_T}, {STATS}')
        for i in range(0, 16, 2):
            g(f'v_fmac_f32 v{T2 + 3}, v{TMP + i}, v{TMP + i + 1}')
        g(f'v_lshlrev_b32 v{T2}, 8, v0')
        tagmask(g, T2 + 1)
        tag(g, [T2 + 2, T2 + 3], T2 + 1)
        g.setexec(0xff)
        g(f'buffer_store_dwordx2 {vr(T2 + 2, 2)}, v{T2}, {S_WS}, {S_T} offen sc1')
        g.setexec(-1)
        g(skip + ':')

    def factor():
        gather_ml()
        g(f'v_sub_f32 v{FS}, v{VMAX}, v{T2 + 2}\nv_mul_f32 v{FS}, 0x3fb8aa3b, v{FS}\nv_exp_f32 v{FS}, v{FS}')
        tagmask(g, FS + 1)

    FS = Q0 + 2
    WA, RA = KO, QO

    def epi_addr():
        g(f's_mul_i32 {S_T}, s3, {OST}\ns_add_u32 {S_T}, {S_T}, {OBUF}')
        g.bits(WA, 0, [(4, 2, 128), (0, 4, 16)], T2, S_T)
        g(f's_lshl_b32 {S_T}, s3, 4\ns_add_u32 {S_T}, {S_T}, {OBUF}')
        g.bits(RA, 0, [(1, 3, 528), (4, 2, 128), (0, 1, 8)], T2, S_T)
        g(f'v_add_u32 v{VSC}, {4 * OST}, v{RA}')

    GS = P['GS']
    depth = lambda n: P['DK1'] if n < P['NK1'] else (P['DK2'] if n < 48 else (P['DX'] if n < 64 else P['DV']))
    qsteps = list(range(P['QP0'] - 1, P['QG'] - 1, P['QPS']))
    st = dict(landed=-1, issued=-1, done=0)

    def land(n):
        if n > st['landed']:
            g.vmwait(n)
            st['landed'] = n

    def hint_flag():
        skip = only_wave(g, 7)
        arrived(g, Q0 + 1, S_KV, C_A, 2 * SPL)
        g(skip + ':')
        st['hint'] = True

    W = [('q', -1, qget)]
    W += [('qk%d' % u, 8 * u + 7, lambda u=u: qk(u)) for u in range(NU)]
    W += [('sm', -1, softmax)]
    W += [('pr%d' % u, -1, lambda u=u: probs(u)) for u in range(NU)]
    W += [('st', -1, stats), ('rb', 63, lambda: (readback(), epi_addr(), lds_units()))]
    for u in range(4):
        if u == 3:
            W += [('fs', -1, factor)]
        W += [('pv%d' % u, 64 + 8 * u + 7, lambda u=u: ((g.stamp('a_landed') if u == 3 else None), pv(u)))]
    names = [w[0] for w in W]

    def work(budget, need=None):
        while st['done'] < len(W):
            forced = need is not None and st['done'] <= names.index(need)
            name, ld, act = W[st['done']]
            if not forced and (budget <= 0 or st['landed'] < ld or st['issued'] < P['QG'] - 1):
                return
            assert ld <= st['issued']
            land(ld)
            act()
            st['done'] += 1
            budget -= 1

    for n in range(0, 96, GS):
        d = depth(n)
        if n + GS - 1 >= d:
            land(n + GS - 1 - d)
        if n >= 64 and n % 8 == 0:
            work(0, ['qk1', 'qk2', 'qk3', 'pv0'][(n - 64) >> 3])
        for i in range(GS):
            load(n + i)
        m = n + GS - 1
        if n == 0:
            setup()
        st['issued'] = m
        if m == 12:
            g.vmwait('ep')
            epoch_tag(g, T2 + 2)
        if m in qsteps:
            if m != qsteps[0]:
                land(m - P['QPS'] + 1)
            qstep()
        if m == P['HPOS']:
            work(0, 'st')
            skip = only_wave(g, 7)
            arrive(g, Q0 + 1, S_KV, C_A)
            g(skip + ':')
        if st['landed'] > P['HPOS'] and not st.get('hint'):
            hint_flag()
        work(GS)
    if not st.get('hint'):
        work(0, 'pv2')
        land(P['HPOS'] + 1)
        hint_flag()
    work(0, 'pv3')

    g.setexec(rep16(0xff))
    for j in range(8):
        for h in (0, 2):
            g(f'v_pk_mul_f32 {vr(AC + 4 * j + h, 2)}, {vr(AC + 4 * j + h, 2)}, {vr(FS, 2)} op_sel_hi:[1,0]')
        g(f'ds_write_b128 v{WA}, {vr(AC + 4 * j, 4)} offset:{528 * j}')
    g.setexec(-1)
    g('s_waitcnt lgkmcnt(0)\ns_barrier')
    for w in range(8):
        g(f'ds_read_b64 {vr(TMP + 2 * w, 2)}, v{RA if w < 4 else VSC} offset:{OST * (w & 3)}')
    g('s_waitcnt lgkmcnt(4)')
    pk4(g, 'v_pk_add_f32', TMP, TMP, TMP + 4)
    g('s_waitcnt lgkmcnt(0)')
    pk4(g, 'v_pk_add_f32', TMP + 8, TMP + 8, TMP + 12)
    pk4(g, 'v_pk_add_f32', TMP, TMP, TMP + 8)
    g(f'v_pk_add_f32 {vr(TMP, 2)}, {vr(TMP, 2)}, {vr(TMP + 2, 2)}')
    tag(g, [TMP, TMP + 1], FS + 1)
    g(f'buffer_store_dwordx2 {vr(TMP, 2)}, v{GA}, {S_WS}, {S_GA} offen sc1')
    g.stamp('a_pub', (0, 1, 2))
    g(f's_mul_i32 s14, {S_R}, {NMR}\ns_add_u32 s14, s14, {S_CU}\ns_sub_u32 s14, s14, {SPL - NMR}')
    g(f's_cmp_ge_u32 {S_CU}, {SPL - NMR}\ns_cbranch_scc1 L_mlp')
    write_stamps(g)
    g('s_endpgm')


def build(stamps=False):
    g = G(stamps)
    ref = open(REF).read()
    g.L.append(ref[:ref.index('; Override launch')].rstrip())
    g.L.append('; @launch grid=(%d,1,1) block=(512,1,1) lds=%d' % (NWG, LDS_TOTAL))
    g.L.append('.amdgcn_target "amdgcn-amd-amdhsa--gfx950"\n.text\n.globl %s_kernel\n.p2align 8\n.type %s_kernel,@function' % (NAME, NAME))
    g.L.append('%s_kernel:' % NAME)
    g.stamp('start', (0, 1, 2))
    g(f's_cmp_ge_u32 s2, {NWG}\ns_cbranch_scc1 L_exit')
    g(f'''s_load_dwordx16 s[16:31], s[0:1], 0
          s_load_dwordx8 s[32:39], s[0:1], 64
          s_load_dwordx4 s[40:43], s[0:1], 96
          s_load_dwordx2 s[44:45], s[0:1], 112
          v_lshrrev_b32 v1, 6, v0
          v_and_b32 v0, 63, v0
          v_readfirstlane_b32 s3, v1
          s_mov_b32 {S_LO}, 0x05040100
          s_mov_b32 {S_HI}, 0x07060302
          s_mov_b32 {S_MASK}, 0xffff0000''')
    g(f's_cmp_lt_u32 s2, {NG}\ns_cbranch_scc1 L_proj')
    n0 = g.nst
    attention(g)
    mlp(g)
    g.nst = n0
    proj(g)
    g('L_exit:\ns_endpgm')
    g('.fill 2048, 4, 0xbf800000')
    g.L.append('''.section .rodata,"a"
.p2align 6
.amdhsa_kernel %s_kernel
  .amdhsa_next_free_vgpr 256
  .amdhsa_next_free_sgpr 102
  .amdhsa_accum_offset 256
  .amdhsa_group_segment_fixed_size 0
  .amdhsa_kernarg_size 120
  .amdhsa_user_sgpr_count 2
  .amdhsa_user_sgpr_kernarg_segment_ptr 1
  .amdhsa_system_sgpr_workgroup_id_x 1
.end_amdhsa_kernel''' % NAME)
    return '\n'.join(g.L) + '\n'


if __name__ == '__main__':
    out = sys.argv[1]
    for a in sys.argv[2:]:
        if '=' in a:
            k, v = a.split('=')
            assert k in P, k
            P[k] = int(v)
    open(out, 'w').write(build(stamps='--stamps' in sys.argv))
```

```python
import sys
NAME = 'adaLN_cond__gqa_block_cached__mixer_channel_mlp__decode'
REF = 'cdna_kernels/%s.s.ref' % NAME

NG = 64
SPL = 24
NMR = 7
NA = 8 * SPL
NWG = NG + NA
WPR = SPL * 8
NU = 6

MOD, QB, STATS, X1, MODP = 0x0, 0x8000, 0x10000, 0x18000, 0x20000
MBA, MBB, MBC = 0x100000, 0x200000, 0x300000
MBA_ST = 2 * SPL * 256
WS_SIZE = 0x400000
SPIN = 1 << 18
C_A, C_LATE = 0, 36
TMASK = 0xff

P = dict(MSL=4, LSL=8, QSL=8, ASL=2, GS=1, DK1=4, NK1=32, DK2=4, DV=8, QP0=44, QPS=4, SLEEP=0, PH=64, QG=60, DX=4, W2TH=1, NAT=1, NOQ=0, QW=0, MW=4, HPOS=74, ST=0, DBGST=-1, PADTO=0, PADWG=-1)

S_WS, S_DBG, S_A, S_B = 's[48:51]', 's[52:55]', 's[56:59]', 's[60:63]'
S_LO, S_HI, S_MASK, S_SPIN = 's64', 's65', 's66', 's67'
S_TAG, S_EPO, S_T16 = 's26', 's27', 's1'
DPP = 'row_mask:0xf bank_mask:0xf'


def vr(a, n):
    return 'v[%d:%d]' % (a, a + n - 1)


class G:
    def __init__(self, stamps=False):
        self.vm = []
        self.L = []
        self.stamps = stamps
        self.nlabel = 0
        self.nst = 0

    def __call__(self, s):
        for line in s.strip('\n').split('\n'):
            line = line.strip()
            if line:
                self.L.append(line if line.endswith(':') else '    ' + line)

    def label(self, p='L'):
        self.nlabel += 1
        return '%s_%d' % (p, self.nlabel)

    def stamp(self, name, sets=(0,)):
        if self.stamps and P['ST'] in sets:
            k = self.nst
            self.nst += 1
            assert k < 13 and (k < 11 or name[0] in 'gr'), name
            self('s_memrealtime s[%d:%d] ; stamp %d %s' % (70 + 2 * k, 71 + 2 * k, k, name))

    def vmop(self, text, tag):
        for line in text.strip().split('\n'):
            self(line)
            self.vm.append(tag)

    def vmwait(self, *tags):
        idx = [i for i, t in enumerate(self.vm) if t in tags]
        if not idx:
            return
        n = len(self.vm) - 1 - idx[-1]
        assert n <= 63
        self('s_waitcnt vmcnt(%d)' % n)
        self.vm = self.vm[idx[-1] + 1:]

    def nop(self, n):
        while n > 0:
            k = min(n, 16)
            self('s_nop %d' % (k - 1))
            n -= k

    def bits(self, dst, src, fields, tmp, add=None):
        first = True
        for (lo, n, mul) in fields:
            t = dst if first else tmp
            if lo == 0:
                self(f'v_and_b32 v{t}, {(1 << n) - 1}, v{src}')
            else:
                self(f'v_bfe_u32 v{t}, v{src}, {lo}, {n}')
            pw = mul & (mul - 1) == 0
            sh = mul.bit_length() - 1
            if first:
                if mul != 1:
                    self(f'v_lshlrev_b32 v{dst}, {sh}, v{dst}' if pw else f'v_mul_u32_u24 v{dst}, {mul}, v{dst}')
            elif mul == 1:
                self(f'v_add_u32 v{dst}, v{dst}, v{tmp}')
            elif pw:
                self(f'v_lshl_add_u32 v{dst}, v{tmp}, {sh}, v{dst}')
            else:
                self(f'v_mul_u32_u24 v{tmp}, {mul}, v{tmp}\nv_add_u32 v{dst}, v{dst}, v{tmp}')
            first = False
        if add not in (None, 0):
            self(f'v_add_u32 v{dst}, {add}, v{dst}')

    def setexec(self, m):
        if m == -1:
            self('s_mov_b64 exec, -1')
        elif m < (1 << 31):
            self('s_mov_b64 exec, 0x%x' % m)
        else:
            self('s_mov_b32 exec_lo, 0x%x\ns_mov_b32 exec_hi, 0x%x' % (m & 0xffffffff, m >> 32))


def rep16(m):
    return m * 0x0001000100010001


def check(g, regs, tmp, mask=TMASK):
    regs = list(regs)
    g(f'v_bitop3_b32 v{tmp}, v{regs[0]}, v{regs[1]}, {S_EPO} bitop3:0x7e')
    for r in regs[2:]:
        g(f'v_bitop3_b32 v{tmp}, v{tmp}, v{r}, {S_EPO} bitop3:0xf6')
    if mask == 0xffff:
        g(f'v_cmp_ne_u16 vcc, 0, v{tmp}')
        return
    if mask != -1:
        g(f'v_and_b32 v{tmp}, {mask}, v{tmp}')
    g(f'v_cmp_ne_u32 vcc, 0, v{tmp}')


def tagmask(g, vm):
    g(f'v_mov_b32 v{vm}, 0x{0xffffffff ^ TMASK:x}')


def tag(g, regs, vm):
    for r in regs:
        g(f'v_and_or_b32 v{r}, v{r}, v{vm}, {S_TAG}')


def epoch_load(reg):
    return f'buffer_load_dword v{reg}, off, {S_WS}, 0 sc1'


def epoch_tag(g, reg):
    g(f'''v_readfirstlane_b32 {S_EPO}, v{reg}
          s_mul_i32 {S_TAG}, {S_EPO}, 0x9e3779b1
          s_lshr_b32 {S_TAG}, {S_TAG}, 12
          s_or_b32 {S_TAG}, {S_TAG}, 1
          s_add_u32 {S_EPO}, {S_EPO}, {S_TAG}
          s_and_b32 {S_TAG}, {S_EPO}, {TMASK}
          s_and_b32 {S_T16}, {S_EPO}, 0xffff''')


def poll(g, loads, regs, tmp, sleep=0, preloaded=False, mask=TMASK):
    lp, done, chk = g.label('L_poll'), g.label('L_ok'), g.label('L_chk')
    g(f's_mov_b32 {S_SPIN}, {SPIN}')
    if preloaded:
        g(f's_branch {chk}')
    g(lp + ':')
    g(loads)
    g('s_waitcnt vmcnt(0)')
    if preloaded:
        g(chk + ':')
    check(g, regs, tmp, mask)
    g(f's_cbranch_vccz {done}')
    if sleep:
        g(f's_sleep {sleep}')
    g(f's_sub_u32 {S_SPIN}, {S_SPIN}, 1\ns_cbranch_scc0 {lp}')
    g(done + ':')


def fread(reg, soff, off):
    return f'buffer_load_dword v{reg}, off, {S_DBG}, {soff} offset:{off + 128} sc1'


def fpoll(g, reg, soff, off, sleep, preloaded=False):
    lp, done, chk = g.label('L_fpoll'), g.label('L_fok'), g.label('L_fchk')
    g(f's_mov_b32 {S_SPIN}, {SPIN}')
    if preloaded:
        g(f's_branch {chk}')
    g(lp + ':')
    g(fread(reg, soff, off) + '\ns_waitcnt vmcnt(0)')
    if preloaded:
        g(chk + ':')
    g(f'v_cmp_eq_u32 vcc, 0, v{reg}\ns_cbranch_vccz {done}')
    if sleep:
        g(f's_sleep {sleep}')
    g(f's_sub_u32 {S_SPIN}, {S_SPIN}, 1\ns_cbranch_scc0 {lp}')
    g(done + ':')


def fwait(g, reg, soff, off, sleep):
    skip = only_wave(g, 0)
    fpoll(g, reg, soff, off, sleep)
    g(skip + ':')
    g('s_barrier')


def arrive(g, reg, soff, off):
    g(f'v_mov_b32 v{reg}, 1\ns_mov_b64 exec, 1\nbuffer_atomic_add v{reg}, off, {S_DBG}, {soff} offset:{off} sc0 sc1\ns_mov_b64 exec, -1')


def arrived(g, reg, soff, off, n):
    skip = g.label('L_notlast')
    g(f'v_readfirstlane_b32 s99, v{reg}\ns_cmp_lg_u32 s99, {n - 1}\ns_cbranch_scc1 {skip}')
    g(f's_mov_b64 exec, 1\nbuffer_store_dword v{reg}, off, {S_DBG}, {soff} offset:{off + 128} sc1\ns_mov_b64 exec, -1')
    g(skip + ':')


def srd(g, s, lo, size):
    base = int(s[2:s.index(':')])
    g(f's_mov_b32 s{base}, s{lo}\ns_mov_b32 s{base + 1}, s{lo + 1}\ns_mov_b32 s{base + 2}, 0x{size:x}\ns_mov_b32 s{base + 3}, 0x20000')


def only_wave(g, w):
    skip = g.label('L_skip')
    g(f's_cmp_lg_u32 s3, {w}\ns_cbranch_scc1 {skip}')
    return skip


def write_stamps(g):
    if not g.stamps:
        return
    g('s_waitcnt lgkmcnt(0)')
    skip = only_wave(g, 0)
    g('s_mov_b64 exec, 1')
    if P['DBGST'] >= 0:
        g(f's_cmp_lg_u32 s2, {P["DBGST"]}\ns_cbranch_scc1 {skip}')
        for k in range(1, min(g.nst, 12)):
            g(f's_sub_u32 s4, s{70 + 2 * k}, s70\nv_mov_b32 v2, s4')
            g(f'buffer_store_dword v2, off, {S_DBG}, 0 offset:{16 + 4 * k}')
        g(skip + ':')
        return
    g('s_lshl_b32 s4, s2, 8\ns_add_u32 s4, s44, s4\ns_addc_u32 s5, s45, 0')
    g('s_add_u32 s4, s4, %d\ns_addc_u32 s5, s5, 0' % (255 << 20))
    g('v_mov_b32 v1, 0')
    for k in range(g.nst):
        g(f'v_mov_b32 v2, s{70 + 2 * k}\nv_mov_b32 v3, s{71 + 2 * k}')
        g(f'global_store_dwordx2 v1, v[2:3], s[4:5] offset:{8 * k}')
        g('s_nop 1')
    g(skip + ':')


def prefetch_code(g, label, nkb8, vtmp, vdst, tag=None):
    pc = g.label('L_pc')
    g('s_getpc_b64 s[98:99]')
    if label:
        g(f'{pc}:\ns_add_u32 s98, s98, {label}-{pc}\ns_addc_u32 s99, s99, 0')
    g('s_and_b32 s98, s98, 0xffffff80')
    g(f's_lshl_b32 s97, s3, 10\nv_lshl_add_u32 v{vtmp}, v0, 4, s97')
    for i in range(nkb8):
        if i:
            g(f'v_add_u32 v{vtmp}, 8192, v{vtmp}')
        t = f'global_load_dwordx4 {vr(vdst, 4)}, v{vtmp}, s[98:99]'
        g.vmop(t, tag) if tag else g(t)


BLK = lambda i: 64 + 32 * i
UA, UB, UC = 0, 2, 4
ACC = 32
KW, NB, NW, NR, NO, KB, TID, MO = 1, 2, 3, 4, 5, 6, 7, 16
T = 24


class Lds:
    def __init__(self, base):
        self.ACTS, self.ACTH, self.RED = base, base + 4352, base + 8704
        self.OUTV = base + 17408
        self.PART = base + 17664
        self.STAT = base + 18688
        self.END = base + 19200


ABS = 2048 + 128


def nstep():
    return 1 if P['NAT'] else 64


def nvoff(g, dst, rs, tid=TID, tmp=T + 7):
    g.bits(dst, tid, [(3, 6, rs * 8 if P['NAT'] else rs), (0, 3, 16)], tmp)


def nload(g, unit, ptr, size, rs, s_col, voff, kbs=(0, 1), tag=None):
    srd(g, S_A, ptr, size)
    for kb in kbs:
        g(f's_add_u32 s4, {s_col}, {kb * 512 * rs}')
        for t in range(8):
            g.vmop(f'buffer_load_dwordx4 {vr(BLK(unit + kb) + 4 * t, 4)}, v{voff}, {S_A}, s4 offen nt', (tag, kb))
            if t < 7:
                g(f's_add_u32 s4, s4, {nstep() * rs}')


def kload(g, unit, ptr, size, s_idx, voff, rowf, tag):
    srd(g, S_A, ptr, size)
    g(f's_lshl_b32 s5, {s_idx}, 17')
    for kb in range(2):
        for t in range(8):
            g(f's_add_u32 s4, s5, {rowf(kb, t) * 2048}')
            g.vmop(f'buffer_load_dwordx4 {vr(BLK(unit + kb) + 4 * t, 4)}, v{voff}, {S_A}, s4 offen nt', (tag, kb))


def transpose(g, blk, T=T):
    b = BLK(blk)
    for p in range(4):
        a, c = b + 8 * p + p, b + 8 * p + 4 + p
        g(f'v_perm_b32 v{T}, v{c}, v{a}, {S_LO}\nv_perm_b32 v{c}, v{c}, v{a}, {S_HI}\nv_mov_b32 v{a}, v{T}')
    for p in range(4):
        for w in range(p + 1, 4):
            xa, xb = b + 8 * p + w, b + 8 * p + 4 + w
            ya, yb = b + 8 * w + p, b + 8 * w + 4 + p
            g(f'v_perm_b32 v{T}, v{xb}, v{xa}, {S_LO}\nv_perm_b32 v{T + 1}, v{xb}, v{xa}, {S_HI}')
            g(f'v_perm_b32 v{xa}, v{yb}, v{ya}, {S_LO}\nv_perm_b32 v{xb}, v{yb}, v{ya}, {S_HI}')
            g(f'v_mov_b32 v{ya}, v{T}\nv_mov_b32 v{yb}, v{T + 1}')


def mfmas(g, unit, b0, b1):
    for kb, bop in ((0, b0), (1, b1)):
        if kb == 1:
            g('s_waitcnt lgkmcnt(0)')
        for j in range(8):
            d = vr(ACC + 4 * j, 4)
            g(f'v_mfma_f32_16x16x32_bf16 {d}, {vr(BLK(unit + kb) + 4 * j, 4)}, {vr(bop, 4)}, {d if kb else 0}')


def common_addr(g, L, kperm):
    K0B = T + 6
    g(f's_lshl_b32 s4, s3, 6\nv_add_u32 v{TID}, s4, v0')
    g.bits(K0B, TID, [(3, 6, 64), (0, 2, 16), (2, 1, 8)], T)
    g.bits(MO, TID, [(8, 1, 10240)], T)
    g(f'v_add_u32 v{MO}, v{MO}, v{K0B}')
    if P['NAT']:
        g.bits(KW, K0B, [(11, 1, ABS), (0, 11, 1)], T)
        g.bits(NB, TID, [(0, 1, ABS), (6, 3, 128), (4, 2, 32), (1, 1, 16)], T)
    else:
        g.bits(KW, K0B, [(11, 1, ABS), (4, 3, 256), (10, 1, 128), (1, 3, 16), (7, 3, 2)], T)
        g.bits(NB, TID, [(0, 1, ABS), (6, 3, 256), (4, 2, 32), (1, 1, 16)], T)
    g.bits(NW, TID, [(6, 3, 1088), (1, 1, 544), (0, 1, 256), (2, 2, 32), (4, 1, 16)], T, L.RED)
    g.bits(NR, TID, [(0, 2, 544), (2, 7, 4)], T, L.RED)
    if kperm:
        g.bits(NO, TID, [(8, 1, 128), (4, 1, 64), (5, 1, 32), (7, 1, 16), (2, 2, 4), (6, 1, 2)], T, L.OUTV)
    else:
        g.bits(NO, TID, [(8, 1, 128), (2, 3, 16), (5, 2, 4), (7, 1, 2)], T, L.OUTV)
    g.bits(KB, TID, [(0, 1, 128), (4, 2, 16)], T, L.OUTV)


def nsplit(g, unit, act, half=None):
    if half is None:
        g(f'ds_read_b128 {vr(T, 4)}, v{NB} offset:{act}\nds_read_b128 {vr(T + 4, 4)}, v{NB} offset:{act + (1024 if P["NAT"] else 128)}')
        g('s_waitcnt lgkmcnt(1)')
        mfmas(g, unit, T, T + 4)
    else:
        g(f'ds_read_b128 {vr(T, 4)}, v{half} offset:{act}\ns_waitcnt lgkmcnt(0)')
        for j in range(8):
            g(f'v_mfma_f32_16x16x32_bf16 {vr(ACC + 4 * j, 4)}, {vr(BLK(unit) + 4 * j, 4)}, {vr(T, 4)}, 0')
    for dd in range(1, 4):
        g.setexec(rep16(0xf << (4 * dd)))
        if dd != 2:
            g.nop(2)
        for i in range(4):
            g(f'v_mov_b64 {vr(ACC + 2 * i, 2)}, {vr(ACC + 8 * dd + 2 * i, 2)}')
    g.setexec(0xcccccccc33333333)
    g(f'ds_write_b128 v{NW}, {vr(ACC, 4)}\nds_write_b128 v{NW}, {vr(ACC + 4, 4)} offset:128')
    g.setexec(-1)
    g('s_waitcnt lgkmcnt(0)\ns_barrier')
    for k in range(4):
        g(f'ds_read_b32 v{T + k}, v{NR} offset:{k * 4 * 544}')
    g('s_waitcnt lgkmcnt(2)')
    g(f'v_add_f32 v{T}, v{T}, v{T + 1}')
    g('s_waitcnt lgkmcnt(0)')
    g(f'v_add_f32 v{T + 2}, v{T + 2}, v{T + 3}\nv_add_f32 v{T}, v{T}, v{T + 2}')
    g.nop(2)
    g(f'v_add_f32_dpp v{T}, v{T}, v{T} quad_perm:[1,0,3,2] {DPP}')
    g.nop(2)
    g(f'v_add_f32_dpp v{T}, v{T}, v{T} quad_perm:[2,3,0,1] {DPP}')


def actwrite(g, p, act):
    if P['NAT']:
        g(f'ds_write_b64 v{KW}, {vr(p, 2)} offset:{act}')
        return
    g(f'ds_write_b16 v{KW}, v{p} offset:{act}\nds_write_b16_d16_hi v{KW}, v{p} offset:{act + 16}')
    g(f'ds_write_b16 v{KW}, v{p + 1} offset:{act + 32}\nds_write_b16_d16_hi v{KW}, v{p + 1} offset:{act + 48}')


def unpack2(g, d, s):
    g(f'v_lshlrev_b32 v{d}, 16, v{s}\nv_and_b32 v{d + 1}, {S_MASK}, v{s}')


def unpack(g, d, s):
    unpack2(g, d, s)
    unpack2(g, d + 2, s + 1)


def pack(g, t, d):
    g(f'v_cvt_pk_bf16_f32 v{t}, v{d}, v{d + 1}\nv_cvt_pk_bf16_f32 v{t + 1}, v{d + 2}, v{d + 3}')


def round4(g, d, t):
    pack(g, t, d)
    unpack(g, d, t)


def round2(g, a):
    g(f'v_cvt_pk_bf16_f32 v{a + 1}, v{a}, v{a + 1}')
    unpack2(g, a, a + 1)


def pk4(g, op, d, a, b):
    g(f'{op} {vr(d, 2)}, {vr(a, 2)}, {vr(b, 2)}\n{op} {vr(d + 2, 2)}, {vr(a + 2, 2)}, {vr(b + 2, 2)}')


def layernorm(g, x, sw, sr, off, last_packed=False):
    a, b = T + 4, T + 5
    g(f'v_add_f32 v{a}, v{x}, v{x + 1}\nv_mul_f32 v{b}, v{x}, v{x}')
    g(f'v_add_f32 v{T}, v{x + 2}, v{x + 3}\nv_fmac_f32 v{b}, v{x + 1}, v{x + 1}')
    g(f'v_add_f32 v{a}, v{a}, v{T}\nv_fmac_f32 v{b}, v{x + 2}, v{x + 2}\nv_fmac_f32 v{b}, v{x + 3}, v{x + 3}')
    for i, ctl in enumerate(['row_ror:8 ' + DPP, 'row_ror:4 ' + DPP, 'row_ror:2 ' + DPP, 'row_ror:1 ' + DPP,
                             'row_bcast:15 row_mask:0xa bank_mask:0xf', 'row_bcast:31 row_mask:0xc bank_mask:0xf']):
        if i:
            g('s_nop 0')
        g(f'v_add_f32_dpp v{a}, v{a}, v{a} {ctl}')
        if i == 0:
            g('s_nop 0')
        g(f'v_add_f32_dpp v{b}, v{b}, v{b} {ctl}')
    g.setexec(1 << 63)
    g(f'ds_write_b64 v{sw}, {vr(a, 2)} offset:{off}')
    g.setexec(-1)
    g('s_waitcnt lgkmcnt(0)\ns_barrier')
    g(f'ds_read_b128 {vr(T, 4)}, v{sr} offset:{off}\nds_read_b128 {vr(T + 4, 4)}, v{sr} offset:{off + 16}')
    g('s_waitcnt lgkmcnt(0)')
    pk4(g, 'v_pk_add_f32', T, T, T + 4)
    g(f'v_pk_add_f32 {vr(a, 2)}, {vr(T, 2)}, {vr(T + 2, 2)}')
    g(f'v_mul_f32 v{a}, 0x3a800000, v{a}\nv_mul_f32 v{b}, 0x3a800000, v{b}')
    g(f'v_fma_f32 v{b}, -v{a}, v{a}, v{b}\nv_max_f32 v{b}, 0, v{b}')
    round2(g, a)
    g(f'v_add_f32 v{b}, 0x3727c5ac, v{b}')
    g(f'v_cvt_pk_bf16_f32 v{b}, v{b}, v{b}\nv_lshlrev_b32 v{b}, 16, v{b}')
    g(f'v_sqrt_f32 v{b}, v{b}')
    for i in range(4):
        g(f'v_sub_f32 v{x + i}, v{x + i}, v{a}')
    g(f'v_cvt_pk_bf16_f32 v{b}, v{b}, v{b}\nv_lshlrev_b32 v{b}, 16, v{b}')
    g(f'v_rcp_f32 v{b}, v{b}')
    round4(g, x, T + 6)
    for i in range(4):
        g(f'v_mul_f32 v{x + i}, v{x + i}, v{b}')
    if last_packed:
        pack(g, T + 6, x)
    else:
        round4(g, x, T + 6)


def ksplit_out(g, unit, po, mb):
    g(f'ds_read_b128 {vr(T, 4)}, v{KB}\nds_read_b128 {vr(T + 4, 4)}, v{KB} offset:64')
    g('s_waitcnt lgkmcnt(1)')
    mfmas(g, unit, T, T + 4)
    tagmask(g, T)
    for j in range(1, 8):
        g.setexec(rep16(3 << (2 * j)))
        g(f'v_mov_b64 {vr(ACC, 2)}, {vr(ACC + 4 * j, 2)}\nv_mov_b64 {vr(ACC + 2, 2)}, {vr(ACC + 4 * j + 2, 2)}')
    g.setexec(-1)
    tag(g, range(ACC, ACC + 4), T)
    g(f'buffer_store_dwordx4 {vr(ACC, 4)}, v{po}, {S_WS}, {mb} offen sc1')


def ml(part, d, s):
    return f'buffer_load_dwordx2 {vr(d, 2)}, v{MO}, {S_WS}, {s} offen offset:{part * 2048} sc1'


def proj(g):
    L = Lds(0)
    Y, SB = 8, 12
    PO, RO, RL, OUTO = 8, 9, 10, 11
    WG, AO, OW = 12, 15, 16
    WQO, WMO, SW, SR = 17, 18, 19, 23
    RX, RGA, RGB, RB2 = 20, 21, 22, 23
    JC, ODD = 's14', 's15'
    g.vm = []

    def publish(s_off, bstride):
        g(f'v_cvt_pk_bf16_f32 v{T}, v{T}, v{T}\nds_write_b16 v{NO}, v{T}')
        g('s_waitcnt lgkmcnt(0)\ns_barrier')
        skip = only_wave(g, 0)
        g(f'v_lshlrev_b32 v{T + 4}, 4, v0\nds_read_b128 {vr(T, 4)}, v{T + 4} offset:{L.OUTV}')
        g.bits(T + 5, 0, [(3, 1, bstride), (0, 3, 16)], T + 6)
        g('s_waitcnt lgkmcnt(0)')
        g.setexec(0xffff)
        g(f'buffer_store_dwordx4 {vr(T, 4)}, v{T + 5}, {S_WS}, {s_off} offen sc1')
        g.setexec(-1)
        g('s_nop 0')
        g(skip + ':')

    def publish32(s_off, bstride, exact):
        g(f'v_subrev_u32 v{T + 1}, {L.OUTV}, v{NO}\nv_lshlrev_b32 v{T + 1}, 1, v{T + 1}\nds_write_b32 v{T + 1}, v{T} offset:{L.PART}')
        g('s_waitcnt lgkmcnt(0)\ns_barrier')
        skip = only_wave(g, 0)
        if exact:
            g(f'v_lshlrev_b32 v{T + 4}, 3, v0\nds_read_b64 {vr(T + 6, 2)}, v{T + 4} offset:{L.PART}')
            g.bits(T + 5, 0, [(5, 1, bstride), (0, 5, 16)], T + 4)
            g(f'v_mov_b32 v{T + 1}, {S_EPO}\nv_mov_b32 v{T + 3}, {S_EPO}\ns_waitcnt lgkmcnt(0)')
            g(f'v_mov_b32 v{T}, v{T + 6}\nv_mov_b32 v{T + 2}, v{T + 7}')
        else:
            g(f'v_lshlrev_b32 v{T + 4}, 4, v0\nds_read_b128 {vr(T, 4)}, v{T + 4} offset:{L.PART}')
            g.bits(T + 5, 0, [(4, 1, bstride), (0, 4, 16)], T + 6)
            g('s_waitcnt lgkmcnt(0)\ns_mov_b32 exec_hi, 0')
        g(f'buffer_store_dwordx4 {vr(T, 4)}, v{T + 5}, {S_WS}, {s_off} offen sc1')
        g.setexec(-1)
        g('s_nop 0')
        g(skip + ':')

    def munit(unit, tag, s_col):
        g.vmwait((tag, 0))
        transpose(g, unit)
        g.vmwait((tag, 1))
        transpose(g, unit + 1)
        nsplit(g, unit, L.ACTS)
        publish(s_col, 12288)

    def reduce(mb, nprod):
        if nprod < 64:
            g(f'v_mov_b32 v{T}, 0')
            skip = g.label('L_nored')
            g(f's_cmp_ge_u32 s3, {nprod // 8}\ns_cbranch_scc1 {skip}')
        poll(g, f'buffer_load_dwordx4 {vr(T, 4)}, v{RO}, {S_WS}, {mb} offen sc1', range(T, T + 4), T + 4)
        g.stamp('red_polled', (1,))
        g(f'v_permlane32_swap_b32 v{T}, v{T + 2}\nv_permlane32_swap_b32 v{T + 1}, v{T + 3}')
        g(f'v_add_f32 v{T}, v{T}, v{T + 2}\nv_add_f32 v{T + 1}, v{T + 1}, v{T + 3}')
        g.nop(2)
        g(f'v_permlane16_swap_b32 v{T}, v{T + 1}\nv_add_f32 v{T}, v{T}, v{T + 1}')
        g.nop(2)
        g(f'v_add_f32_dpp v{T}, v{T}, v{T} row_ror:8 {DPP}')
        if nprod < 64:
            g(skip + ':')
        g(f'ds_write_b32 v{RL}, v{T}')
        g('s_waitcnt lgkmcnt(0)\ns_barrier')
        skip = only_wave(g, 0)
        g(f'v_and_b32 v{T + 2}, 15, v0\nv_lshlrev_b32 v{T + 2}, 3, v{T + 2}')
        for w in range(8):
            g(f'ds_read_b64 {vr(ACC + 2 * w, 2)}, v{T + 2} offset:{L.PART + 128 * w}')
        return skip

    def reduce_sum():
        g('s_waitcnt lgkmcnt(4)')
        pk4(g, 'v_pk_add_f32', ACC, ACC, ACC + 4)
        g('s_waitcnt lgkmcnt(0)')
        pk4(g, 'v_pk_add_f32', ACC + 8, ACC + 8, ACC + 12)
        pk4(g, 'v_pk_add_f32', ACC, ACC, ACC + 8)
        g(f'v_pk_add_f32 {vr(T, 2)}, {vr(ACC, 2)}, {vr(ACC + 2, 2)}')
        round2(g, T)

    g('L_proj:')
    g(f's_and_b32 {JC}, s2, 7\ns_lshl_b32 {JC}, {JC}, 3\ns_lshr_b32 s4, s2, 3\ns_add_u32 {JC}, {JC}, s4')
    g(f's_lshl_b32 s4, s3, 6\nv_add_u32 v{TID}, s4, v0')
    g.bits(T + 6, TID, [(3, 6, 64), (0, 2, 16), (2, 1, 8)], T)
    nvoff(g, WMO, 12288)
    g(f'''s_and_b32 {ODD}, {JC}, 1
          s_lshr_b32 s6, {JC}, 1
          s_lshl_b32 s6, s6, 7
          s_mul_i32 s13, {ODD}, {512 * 12288}
          s_add_u32 s13, s13, s6
          s_lshl_b32 s7, {JC}, 7
          s_lshr_b32 s46, {JC}, 4
          s_lshl_b32 s46, s46, 2
          s_waitcnt lgkmcnt(0)''')
    srd(g, S_WS, 44, WS_SIZE)
    srd(g, S_DBG, 42, 256)
    g(f's_lshl_b32 s47, {ODD}, 15\ns_lshl_b32 s5, s6, 2\ns_add_u32 s47, s47, s5\ns_add_u32 s47, s47, {MODP}')
    g.vmop(epoch_load(RGB), 'in')
    srd(g, S_B, 36, 4096)
    g.vmop(f'buffer_load_dwordx2 {vr(SB, 2)}, v{T + 6}, {S_B}, 0 offen', 'in')
    srd(g, S_B, 16, 4096)
    g.vmop(f'buffer_load_dwordx2 {vr(SB + 2, 2)}, v{T + 6}, {S_B}, 0 offen', 'in')
    prefetch_code(g, None, 1, T, ACC + 4, 'in')
    nload(g, UA, 38, 1024 * 12288, 12288, 's13', WMO, (0,), tag='m1')
    common_addr(g, L, False)
    nvoff(g, WQO, 8192)
    g(f's_lshl_b32 s4, s3, 3\nv_mov_b32 v{SW}, s4\ns_and_b32 s4, s4, 32\nv_mov_b32 v{SR}, s4')
    g(f's_mul_i32 s8, {JC}, {MBA_ST}\ns_add_u32 s8, s8, {MBA}')
    g(f's_lshl_b32 s9, {JC}, 13\ns_add_u32 s10, s9, {MBC}\ns_add_u32 s9, s9, {MBB}')
    g(f's_lshl_b32 s11, {JC}, 7\ns_add_u32 s11, s11, {X1}')
    g.vmwait('in')
    epoch_tag(g, RGB)
    unpack(g, ACC, SB)
    for i in range(4):
        g(f'v_mul_f32 v{T + i}, 0xbfb8aa3b, v{ACC + i}')
    for i in range(4):
        g(f'v_exp_f32 v{T + i}, v{T + i}')
    for i in range(4):
        g(f'v_add_f32 v{T + i}, 1.0, v{T + i}')
    for i in range(4):
        g(f'v_rcp_f32 v{T + i}, v{T + i}')
    for i in range(4):
        g(f'v_mul_f32 v{T + i}, v{T + i}, v{ACC + i}')
    pack(g, T + 4, T)
    actwrite(g, T + 4, L.ACTS)
    unpack(g, Y, SB + 2)
    layernorm(g, Y, SW, SR, L.STAT)
    g.stamp('g_ln')
    nload(g, UB, 22, 1024 * 8192, 8192, 's7', WQO, (0,), tag='wq')
    g('s_waitcnt vmcnt(8)')
    transpose(g, UA)
    g(f's_lshl_b32 s4, {ODD}, {10 if P["NAT"] else 7}\nv_add_u32 v{T + 7}, s4, v{NB}')
    nsplit(g, UA, L.ACTS, T + 7)
    publish32('s47', 16384, True)
    g.stamp('g_mod')
    nload(g, UB, 22, 1024 * 8192, 8192, 's7', WQO, (1,), tag='wq')
    MP = RGA
    g.bits(MP, TID, [(8, 1, 16384), (3, 5, 256), (0, 2, 64), (2, 1, 32)], T + 7, MODP)
    g('s_waitcnt vmcnt(8)')
    transpose(g, UB)
    g(f's_mov_b32 s4, 8192\ns_mov_b32 s5, 32768\ns_mov_b32 s12, {32768 + 8192}')
    mloads = '\n'.join(f'buffer_load_dwordx4 {vr(ACC + 4 * i, 4)}, v{MP}, {S_WS}, {("0", "s5", "s4", "s12")[i >> 1]} offen offset:{16 * (i & 1)} sc1'
                       for i in range(8))
    g(f's_waitcnt vmcnt({P["MW"]})')
    g(mloads)
    g('s_waitcnt vmcnt(8)')
    transpose(g, UB + 1)
    g('s_waitcnt vmcnt(0)')
    poll(g, mloads, range(ACC + 1, ACC + 32, 2), T, P['MSL'], preloaded=True, mask=-1)
    g.vm = []
    g.stamp('g_modseen')
    for i in range(4):
        g(f'v_add_f32 v{T + i}, v{ACC + 16 + 2 * i}, v{ACC + 24 + 2 * i}')
    for i in range(4):
        g(f'v_add_f32 v{ACC + i}, v{ACC + 2 * i}, v{ACC + 8 + 2 * i}')
    round4(g, T, T + 4)
    for i in range(4):
        g(f'v_add_f32 v{T + i}, 1.0, v{T + i}')
    round4(g, T, T + 4)
    pk4(g, 'v_pk_mul_f32', Y, Y, T)
    round4(g, Y, T + 4)
    round4(g, ACC, T + 4)
    pk4(g, 'v_pk_add_f32', Y, Y, ACC)
    pack(g, T, Y)
    actwrite(g, T, L.ACTH)
    g('s_waitcnt lgkmcnt(0)\ns_barrier')
    nsplit(g, UB, L.ACTH)
    g(f's_lshl_b32 s12, s7, 1\ns_add_u32 s12, s12, {QB}')
    g(f'v_cvt_pk_bf16_f32 v{T}, v{T}, v{T}\nv_lshl_or_b32 v{T}, v{T}, 16, {S_T16}')
    publish32('s12', 16384, False)
    g.stamp('g_q')

    g(f'v_lshlrev_b32 v{RO}, 4, v{TID}')
    g(f's_xor_b32 s6, s7, 128\ns_add_u32 s6, s6, 4096')
    nload(g, UA, 38, 1024 * 12288, 12288, 's6', WMO, tag='m2')
    g.bits(PO, TID, [(4, 2, 4096), (6, 3, 256), (0, 4, 16)], T + 7)
    kload(g, UC, 24, 4096 * 2048, JC, PO, lambda kb, t: 32 * kb + (t & 3) * 8 + (t >> 2), 'wo')
    munit(UA, 'm2', 's6')
    g('s_waitcnt vmcnt(0)')
    g.vm = []
    skip = only_wave(g, 0)
    arrive(g, T + 4, 0, C_LATE)
    g('s_waitcnt vmcnt(0)')
    arrived(g, T + 4, 0, C_LATE, NG)
    g(skip + ':')
    transpose(g, UC)
    transpose(g, UC + 1)
    g.stamp('g_loaded')
    fwait(g, T, 0, C_LATE, P['LSL'])
    g(f's_lshr_b32 s4, {JC}, 1\ns_lshl_b32 s4, s4, 6\ns_lshl_b32 s5, {ODD}, 3\ns_add_u32 s4, s4, s5')
    g.bits(T, 0, [(1, 2, 16), (0, 1, 4)], T + 1, 's4')
    srd(g, S_B, 34, 2048)
    g(f'buffer_load_dword v{RB2}, v{T}, {S_B}, 0 offen')
    g(f'v_bfe_u32 v{T + 1}, v0, 3, 1\nv_mul_u32_u24 v{T + 2}, 12288, v{T + 1}\nv_add_u32 v{T + 2}, v{T + 2}, v{T}')
    g(f'v_lshl_add_u32 v{OUTO}, v{T + 1}, 11, v{T}')
    srd(g, S_B, 16, 4096)
    g(f'buffer_load_dword v{RX}, v{OUTO}, {S_B}, 0 offen')
    g(f's_mov_b32 s4, {MOD + 2 * 2048}\ns_mov_b32 s5, {MOD + 5 * 2048}')
    g(f'buffer_load_dword v{RGA}, v{T + 2}, {S_WS}, s4 offen sc1\nbuffer_load_dword v{RGB}, v{T + 2}, {S_WS}, s5 offen sc1')
    srd(g, S_B, 40, 4096)
    g.bits(RL, TID, [(6, 3, 128), (0, 1, 64), (4, 2, 16), (1, 2, 4)], T, L.PART)
    g.bits(PO, TID, [(3, 6, 8192), (0, 3, 16)], T)
    g(f's_add_u32 s12, s7, {MBB}')
    g.bits(AO, TID, [(8, 1, SPL * 256), (3, 3, 256), (6, 2, 64), (0, 3, 8)], T + 3)
    g.bits(OW, TID, [(6, 3, 32), (0, 3, 4), (5, 1, 2)], T + 3, L.OUTV)
    g.bits(T + 5, TID, [(8, 1, 128), (3, 3, 4)], T + 3)
    g('s_add_u32 s13, s8, 4096')
    g.bits(T + 2, 0, [(5, 1, 8192), (0, 5, 8)], T + 3)
    g(f's_lshr_b32 s4, {JC}, 1\ns_lshl_b32 s4, s4, 8\ns_add_u32 s4, s4, {STATS}')
    prefetch_code(g, 'L_proj_tail', 1, T + 6, ACC)
    g.stamp('g_ready')
    g('L_proj_tail:')
    fwait(g, T, 's46', C_A, P['ASL'])
    g.stamp('g_hint', (0, 1))
    g(f'v_mov_b32 v{T}, 0xff800000\nv_mov_b32 v{T + 1}, 0')
    g.setexec(((1 << SPL) - 1) * 0x100000001)
    poll(g, f'buffer_load_dwordx2 {vr(T, 2)}, v{T + 2}, {S_WS}, s4 offen sc1', [T, T + 1], T + 4, 2)
    g.setexec(-1)

    def red32(r, t, op):
        for sh in (8, 4, 2, 1):
            g.nop(2)
            g(f'{op}_dpp v{r}, v{r}, v{r} row_ror:{sh} {DPP}')
        g(f'v_mov_b32 v{t}, v{r}')
        g.nop(2)
        g(f'v_permlane16_swap_b32 v{r}, v{t}\n{op} v{r}, v{r}, v{t}')
    g(f'v_and_b32 v{T}, {S_MASK}, v{T}\nv_mov_b32 v{T + 2}, v{T}')
    red32(T + 2, T + 3, 'v_max_f32')
    g(f'v_sub_f32 v{T}, v{T}, v{T + 2}\nv_mul_f32 v{T}, 0x3fb8aa3b, v{T}\nv_exp_f32 v{T}, v{T}\ns_nop 0')
    g(f'v_mul_f32 v{T + 1}, v{T + 1}, v{T}')
    red32(T + 1, T + 3, 'v_add_f32')
    g(f'v_rcp_f32 v{T + 1}, v{T + 1}\ns_nop 0\nv_mul_f32 v{T}, v{T}, v{T + 1}')
    for k in range(3):
        g(f'ds_bpermute_b32 v{WG + k}, v{T + 5}, v{T} offset:{32 * k}')
    g('s_waitcnt lgkmcnt(0)')
    g.stamp('g_wgt', (0, 1))
    poll(g, f'''buffer_load_dwordx2 {vr(T, 2)}, v{AO}, {S_WS}, s8 offen sc1
                buffer_load_dwordx2 {vr(T + 2, 2)}, v{AO}, {S_WS}, s8 offen offset:2048 sc1
                buffer_load_dwordx2 {vr(T + 4, 2)}, v{AO}, {S_WS}, s13 offen sc1''', range(T, T + 6), T + 6, P['SLEEP'])
    g.stamp('g_apolled', (0, 1))
    g(f'v_mul_f32 v{T}, v{WG}, v{T}\nv_mul_f32 v{T + 1}, v{WG}, v{T + 1}')
    for k in (1, 2):
        g(f'v_fmac_f32 v{T}, v{WG + k}, v{T + 2 * k}\nv_fmac_f32 v{T + 1}, v{WG + k}, v{T + 2 * k + 1}')
    g.nop(2)
    g(f'v_permlane32_swap_b32 v{T}, v{T + 1}\nv_add_f32 v{T}, v{T}, v{T + 1}\nv_mov_b32 v{T + 1}, v{T}')
    g.nop(2)
    g(f'v_permlane16_swap_b32 v{T}, v{T + 1}\nv_add_f32 v{T}, v{T}, v{T + 1}')
    g.nop(2)
    g(f'v_add_f32_dpp v{T}, v{T}, v{T} row_ror:8 {DPP}')
    g(f'v_cvt_pk_bf16_f32 v{T}, v{T}, v{T}\nds_write_b16 v{OW}, v{T}')
    g('s_waitcnt lgkmcnt(0)\ns_barrier')
    g.stamp('g_obar', (1,))
    ksplit_out(g, UC, PO, 's12')
    g.stamp('g_t2', (0, 1))
    skip = reduce('s9', 64)
    unpack2(g, T + 4, RGA)
    unpack2(g, T + 6, RX)
    g(f'v_lshlrev_b32 v{T + 3}, 3, v0\nv_mov_b32 v{ACC + 16}, {S_MASK}')
    reduce_sum()
    g(f'v_pk_mul_f32 {vr(T, 2)}, {vr(T, 2)}, {vr(T + 4, 2)}')
    round2(g, T)
    g(f'v_pk_add_f32 {vr(T, 2)}, {vr(T, 2)}, {vr(T + 6, 2)}')
    g(f'v_cvt_pk_bf16_f32 v{RX}, v{T}, v{T + 1}')
    g(f'v_lshl_or_b32 v{T}, v{RX}, 16, {S_T16}\nv_and_or_b32 v{T + 1}, v{RX}, v{ACC + 16}, {S_T16}')
    g.setexec(0xffff)
    g(f'buffer_store_dwordx2 {vr(T, 2)}, v{T + 3}, {S_WS}, s11 offen sc1')
    g.setexec(-1)
    g(skip + ':')
    g.stamp('g_x1', (0, 1))
    g('s_barrier')
    skip = reduce('s10', 56)
    unpack2(g, T + 2, RB2)
    unpack2(g, T + 4, RGB)
    unpack2(g, T + 6, RX)
    reduce_sum()
    g(f'v_pk_add_f32 {vr(T, 2)}, {vr(T, 2)}, {vr(T + 2, 2)}')
    round2(g, T)
    g(f'v_pk_mul_f32 {vr(T, 2)}, {vr(T, 2)}, {vr(T + 4, 2)}')
    round2(g, T)
    g(f'v_pk_add_f32 {vr(T, 2)}, {vr(T, 2)}, {vr(T + 6, 2)}')
    g(f'v_cvt_pk_bf16_f32 v{T}, v{T}, v{T + 1}')
    g.setexec(0xffff)
    g(f'buffer_store_dword v{T}, v{OUTO}, {S_B}, 0 offen')
    g(f's_cmp_lg_u32 s2, 0\ns_cbranch_scc1 {skip}\nv_mov_b32 v{T + 1}, {S_EPO}\ns_mov_b64 exec, 1')
    g(f'buffer_store_dword v{T + 1}, off, {S_WS}, 0 sc1')
    g(skip + ':')
    g.stamp('g_out', (0, 1))
    if P['PADTO']:
        if P['PADWG'] >= 0:
            g(f's_cmp_lg_u32 s2, {P["PADWG"]}\ns_cbranch_scc1 L_nopad')
        g(f'L_pad:\ns_memrealtime s[4:5]\ns_waitcnt lgkmcnt(0)\ns_sub_u32 s4, s4, s70\ns_cmp_lt_u32 s4, {P["PADTO"]}\ns_cbranch_scc1 L_pad\nL_nopad:')
    write_stamps(g)
    g('s_endpgm')


MLP_LDS = 4096
W1L = 4096
LDS_TOTAL = W1L + 131072


def mlp(g):
    L = Lds(MLP_LDS)
    PO, XO, SW, SR, B1 = 8, 9, 10, 11, 17
    C1, SH = 12, 18
    JM = 's14'
    g.vm = []
    g('L_mlp:')
    if P['W2TH']:
        fwait(g, ACC + 4, 's101', C_A, P['LSL'])
    skip = only_wave(g, 0)
    g(fread(ACC + 4, 0, C_LATE))
    g(skip + ':')
    g(f's_lshl_b32 s4, s3, 6\nv_add_u32 v{TID}, s4, v0')
    g(f's_lshl_b32 s7, {JM}, 7')
    g.bits(T + 5, TID, [(4, 2, 2048), (6, 3, 256), (0, 4, 16)], T + 7)
    kload(g, UB, 32, 3584 * 2048, JM, T + 5, lambda kb, t: 32 * kb + 4 * t, 'w2')
    common_addr(g, L, True)
    g(f's_mov_b32 s6, {MOD + 3 * 2048}')
    srd(g, S_B, 30, 3584 * 2)
    g.bits(T + 5, TID, [(2, 3, 16), (5, 2, 4), (7, 1, 2)], T, 's7')
    g.vmop(f'buffer_load_ushort v{B1}, v{T + 5}, {S_B}, 0 offen', 'k')
    prefetch_code(g, 'L_mlp_tail', 1, T + 5, ACC + 8, 'k')
    g.bits(XO, TID, [(2, 6, 128), (8, 1, 64), (0, 2, 16)], T, X1)
    g.bits(PO, TID, [(3, 6, 8192), (0, 3, 16)], T)
    g(f's_add_u32 s13, s7, {MBC}')
    g(f's_lshl_b32 s4, s3, 3\nv_mov_b32 v{SW}, s4\ns_and_b32 s4, s4, 32\nv_mov_b32 v{SR}, s4')
    skip = only_wave(g, 0)
    g('s_waitcnt vmcnt(%d)' % len(g.vm))
    fpoll(g, ACC + 4, 0, C_LATE, P['MSL'], preloaded=True)
    g(skip + ':')
    g('s_barrier')
    g.vmop(ml(0, ACC, 's6') + '\n' + ml(1, ACC + 2, 's6'), 'k')
    for kb in range(2):
        g.vmwait(('w2', kb))
        transpose(g, UB + kb)
    g.vmwait('k')
    unpack(g, SH, ACC)
    unpack(g, C1, ACC + 2)
    for i in range(4):
        g(f'v_add_f32 v{C1 + i}, 1.0, v{C1 + i}')
    round4(g, C1, T)
    g(f'v_lshlrev_b32 v{B1}, 16, v{B1}')
    g.stamp('m_ready', (0, 2))
    g('L_mlp_tail:')
    XV = ACC
    poll(g, f'buffer_load_dwordx4 {vr(XV, 4)}, v{XO}, {S_WS}, 0 offen sc1', range(XV, XV + 4), T, mask=0xffff)
    g.stamp('m_x1seen', (0, 2))
    for i in range(4):
        g(f'v_and_b32 v{XV + i}, {S_MASK}, v{XV + i}')
    layernorm(g, XV, SW, SR, L.STAT)
    g.stamp('m_ln1', (2,))
    pk4(g, 'v_pk_mul_f32', XV, XV, C1)
    round4(g, XV, T + 6)
    pk4(g, 'v_pk_add_f32', XV, XV, SH)
    round4(g, XV, T + 6)
    layernorm(g, XV, SW, SR, L.STAT + 64, last_packed=True)
    actwrite(g, T + 6, L.ACTH)
    g('s_waitcnt lgkmcnt(0)\ns_barrier')
    g.stamp('m_ln2', (2,))
    nsplit(g, UC, L.ACTH)
    g.stamp('m_t3', (2,))
    g(f'''v_cvt_pk_bf16_f32 v{T}, v{T}, v{T}
          v_lshlrev_b32 v{T}, 16, v{T}
          v_add_f32 v{T}, v{T}, v{B1}
          v_cvt_pk_bf16_f32 v{T}, v{T}, v{T}
          v_lshlrev_b32 v{T}, 16, v{T}
          v_mov_b32 v{T + 2}, 0xc0135761
          v_mul_f32 v{T + 1}, v{T}, v{T}
          v_fmac_f32 v{T + 2}, 0xbdd2d3e8, v{T + 1}
          v_mul_f32 v{T + 1}, v{T + 2}, v{T}
          v_exp_f32 v{T + 1}, v{T + 1}
          s_nop 0
          v_add_f32 v{T + 1}, 1.0, v{T + 1}
          v_rcp_f32 v{T + 1}, v{T + 1}
          s_nop 0
          v_mul_f32 v{T}, v{T}, v{T + 1}
          v_cvt_pk_bf16_f32 v{T}, v{T}, v{T}
          ds_write_b16 v{NO}, v{T}
          s_waitcnt lgkmcnt(0)
          s_barrier''')
    g.stamp('m_gelu', (2,))
    ksplit_out(g, UB, PO, 's13')
    g.stamp('m_t4', (0, 2))
    write_stamps(g)
    g('s_endpgm')


def attention(g):
    KO, VO, QO, VSC, VMAX, OO = 1, 2, 3, 4, 5, 6
    Q0, SP, TMP, T2 = 8, 16, 40, 56
    LA, GA = T2 + 7, T2 + 6
    SLOT = lambda s: 64 + 32 * s
    AC = SLOT(0)
    U = lambda u: 's%d' % (4 + 2 * u)
    U2 = lambda u: 's%d' % (5 + 2 * u)
    S_R, S_CU, S_GA, S_T = 's47', 's68', 's96', 's69'
    S_B4, S_B5, S_O4, S_KV = 's46', 's100', 's101', 's101'
    MX, OBUF, OST = 0, W1L, 16384
    QL, QF = 1024, 3072
    S_ST = 's97'
    NN = (SPL - NMR) * 8
    n4 = NN
    n5 = 1024 - 4 * WPR - n4
    assert 0 <= n5 <= NN
    base = [0, WPR, 2 * WPR, 3 * WPR, 4 * WPR, 4 * WPR + n4]
    g.vm = []

    g('L_attn:')
    g(f'''s_sub_u32 {S_T}, s2, {NG}
          s_mul_hi_u32 {S_R}, {S_T}, {(1 << 32) // SPL + 1}
          s_mul_i32 {S_CU}, {S_R}, {SPL}
          s_sub_u32 {S_CU}, {S_T}, {S_CU}
          s_mul_i32 {S_T}, s3, {SPL - NMR}
          s_add_u32 {S_T}, {S_T}, {S_CU}
          s_cmp_lt_u32 {S_CU}, {SPL - NMR}
          s_cselect_b32 {S_T}, {S_T}, 1023
          s_lshl_b32 s98, {S_CU}, 3
          s_add_u32 s98, s98, s3
          s_mul_i32 {S_GA}, {S_R}, {P["PH"]}''')
    for u in range(NU):
        g(f's_add_u32 {U(u)}, {S_GA}, {"s98" if u < 5 else S_T}')
        if u:
            g(f's_add_u32 {U(u)}, {U(u)}, {base[u]}')
        g(f's_and_b32 {U(u)}, {U(u)}, 1023\ns_lshl_b32 {U(u)}, {U(u)}, 13\ns_add_u32 {U2(u)}, {U(u)}, 4096')
    g.bits(KO, 0, [(1, 1, 1024), (2, 2, 256), (0, 1, 64), (4, 2, 16)], 8)
    g(f'v_lshlrev_b32 v{VO}, 4, v0')
    g(f's_cmp_lt_u32 {S_T}, {n4}\ns_cselect_b32 {S_O4}, 0, 0x1000000\ns_cselect_b32 {S_B4}, 0, 0xff800000')
    g(f's_cmp_lt_u32 {S_T}, {n5}\ns_cselect_b32 s98, 0, 0x1000000\ns_cselect_b32 {S_B5}, 0, 0xff800000')
    g(f'v_add_u32 v{OO}, {S_O4}, v{KO}\nv_add_u32 v{OO + 1}, s98, v{KO}')
    g('s_waitcnt lgkmcnt(0)')
    g(f's_lshl_b32 {S_T}, {S_R}, 23')
    g(f's_add_u32 s56, s18, {S_T}\ns_addc_u32 s57, s19, 0\ns_mov_b32 s58, 0x800000\ns_mov_b32 s59, 0x20000')
    g(f's_add_u32 s60, s20, {S_T}\ns_addc_u32 s61, s21, 0\ns_mov_b32 s62, 0x800000\ns_mov_b32 s63, 0x20000')

    VSLOT = [1, 2, 3, 1, 4, 5]

    def load(n):
        i = n & 7
        if n < 48:
            u = n >> 3
            vo = KO if u < 4 else OO + u - 4
            g.vmop(f'buffer_load_dwordx4 {vr(SLOT(u) + 4 * i, 4)}, v{vo}, {S_A}, {U2(u) if i >= 4 else U(u)} offen '
                   f'offset:{((i >> 1) & 1) * 2048 + (i & 1) * 128} nt', n)
        elif n < 64:
            if n == 48:
                l1, l2 = g.label('L_xv'), g.label('L_xj')
                g(f's_lshl_b32 s98, s3, 14\ns_add_u32 m0, s98, {W1L}\ns_mov_b32 s95, 0x20000')
                g(f's_cmp_lt_u32 {S_CU}, {SPL - NMR}\ns_cbranch_scc1 {l1}')
                g(f's_lshl_b32 {S_T}, s3, 6\nv_add_u32 v{T2 + 1}, {S_T}, v0')
                nvoff(g, OO, 7168, T2 + 1, T2 + 2)
                g(f'v_mov_b32 v{OO + 1}, v{OO}')
                g(f's_mul_i32 {S_T}, {S_R}, {NMR}\ns_add_u32 {S_T}, {S_T}, {S_CU}\ns_sub_u32 {S_T}, {S_T}, {SPL - NMR}')
                g(f's_lshl_b32 {U(4)}, {S_T}, 7\ns_add_u32 {U(5)}, {U(4)}, {512 * 7168}\ns_mov_b32 {U2(4)}, {nstep() * 7168}')
                g(f's_mov_b32 s92, s28\ns_mov_b32 s93, s29\ns_mov_b32 s94, {1024 * 7168}')
                g(f's_branch {l2}\n{l1}:')
                g(f'v_sub_u32 v{T2 + 1}, v{VO}, v{KO}\nv_mov_b32 v{OO}, v{VO}\nv_add_u32 v{OO + 1}, v{OO + 1}, v{T2 + 1}')
                g(f's_mov_b32 {U2(4)}, 1024\ns_mov_b32 s92, s60\ns_mov_b32 s93, s61\ns_mov_b32 s94, s62')
                g(l2 + ':')
            u = 4 + ((n - 48) >> 3)
            if n > 48:
                g('s_add_u32 m0, m0, 1024')
            g(f's_add_u32 {U(u)}, {U(u)}, {U2(4)}' if i else 's_nop 0')
            g.vmop(f'buffer_load_dwordx4 v{OO + u - 4}, s[92:95], {U(u)} offen nt lds', n)
        else:
            u = (n - 64) >> 3
            g.vmop(f'buffer_load_dwordx4 {vr(SLOT(VSLOT[u]) + 4 * i, 4)}, v{VO}, {S_B}, {U2(u) if i >= 4 else U(u)} offen '
                   f'offset:{(i & 3) * 1024} nt', n)

    def setup():
        srd(g, S_WS, 44, WS_SIZE)
        srd(g, S_DBG, 42, 256)
        g.bits(GA, 0, [(5, 1, MBA_ST), (0, 5, 8)], 8)
        g(f'''s_and_b32 {S_T}, {S_R}, 3
              s_lshl_b32 {S_T}, {S_T}, 3
              s_add_u32 {S_T}, {S_T}, s3
              s_mul_i32 {S_T}, {S_T}, {2 * MBA_ST}
              s_lshr_b32 {S_GA}, {S_R}, 2
              s_mul_i32 {S_GA}, {S_GA}, {SPL}
              s_add_u32 {S_GA}, {S_GA}, {S_CU}
              s_lshl_b32 {S_GA}, {S_GA}, 8
              s_add_u32 {S_GA}, {S_GA}, {S_T}
              s_add_u32 {S_GA}, {S_GA}, {MBA}''')
        g.vmop(epoch_load(T2 + 2), 'ep')
        prefetch_code(g, 'L_attn_body', 2, 8, TMP, 'pf')
        g(f's_and_b32 {S_KV}, {S_R}, 3\ns_lshl_b32 {S_KV}, {S_KV}, 2')
        g.bits(QO, 0, [(0, 3, 256), (3, 1, 64), (4, 2, 16)], 8)
        g.bits(LA, 0, [(0, 4, 64)], 8)
        g(f's_lshl_b32 {S_T}, s3, 3\nv_add_u32 v8, {S_T}, v{LA}\nv_mov_b32 v9, -1\nds_write_b32 v8, v9 offset:{MX + 4}')
        g(f'v_mov_b32 v{T2}, 0\nds_write_b32 v{T2}, v{T2} offset:{QF}\ns_mov_b32 {S_ST}, 0\ns_waitcnt lgkmcnt(0)\ns_barrier')
        g(f'v_mov_b32 v{VSC}, 0x3db504f3\nv_mov_b32 v{VMAX}, 0xff800000')
        g('L_attn_body:')

    def readback():
        g(f's_lshl_b32 {S_T}, s3, 14\ns_add_u32 {S_T}, {S_T}, {W1L}\nv_add_u32 v{T2}, {S_T}, v{VO}')
        for i in range(16):
            g(f'ds_read_b128 {vr(SLOT(4) + 4 * i, 4)}, v{T2} offset:{i * 1024}')

    def lds_units():
        l1, l2 = g.label('L_w1'), g.label('L_w1j')
        g(f's_cmp_ge_u32 {S_CU}, {SPL - NMR}\ns_cbranch_scc1 {l1}')
        g('s_waitcnt lgkmcnt(8)')
        pv(4)
        g('s_waitcnt lgkmcnt(0)')
        pv(5)
        g(f's_branch {l2}\n{l1}:')
        g('s_waitcnt lgkmcnt(8)')
        transpose(g, UC, T2)
        g('s_waitcnt lgkmcnt(0)')
        transpose(g, UC + 1, T2)
        g(l2 + ':')

    def qstep(final=False):
        skip = only_wave(g, P['QW'])
        l1, l3, top = g.label('L_q1'), g.label('L_q3'), g.label('L_qtop')
        if final:
            g(f's_mov_b32 {S_SPIN}, {SPIN}\n{top}:')
        g(f's_cmp_eq_u32 {S_ST}, 2\ns_cbranch_scc1 {skip}')
        if final:
            g(f's_waitcnt vmcnt(0)\ns_sub_u32 {S_SPIN}, {S_SPIN}, 1\ns_cbranch_scc1 {l3}')
        g(f's_cmp_eq_u32 {S_ST}, 0\ns_cbranch_scc1 {l1}')
        check(g, range(TMP, TMP + 16), T2, 0xffff)
        g(f's_cbranch_vccz {l3}')
        if final:
            g(f's_sleep {P["QSL"]}')
        g(l1 + ':')
        g(f's_lshl_b32 {S_T}, {S_R}, 12\ns_add_u32 {S_T}, {S_T}, {QB}\ns_mov_b32 {S_ST}, 1')
        for i in range(4):
            g(f'buffer_load_dwordx4 {vr(TMP + 4 * i, 4)}, v{VO}, {S_WS}, {S_T} offen offset:{1024 * i} sc1')
        g(f's_branch {top if final else skip}')
        g(l3 + ':')
        g(f'v_lshlrev_b32 v{T2}, 3, v0')
        for i in range(8):
            g(f'v_perm_b32 v{Q0 + i}, v{TMP + 2 * i + 1}, v{TMP + 2 * i}, {S_HI}')
        for i in range(4):
            g(f'ds_write_b64 v{T2}, {vr(Q0 + 2 * i, 2)} offset:{QL + 512 * i}')
        g(f'v_mov_b32 v{T2}, 0\nv_mov_b32 v{T2 + 1}, 1\ns_mov_b32 {S_ST}, 2\ns_waitcnt lgkmcnt(0)')
        g(f'ds_write_b32 v{T2}, v{T2 + 1} offset:{QF}')
        g(skip + ':')

    def qget():
        g.stamp('a_qwait')
        if P['NOQ']:
            return
        qstep(final=True)
        lp, ok = g.label('L_qf'), g.label('L_qfok')
        g(f'v_mov_b32 v{T2}, 0\ns_mov_b32 {S_SPIN}, {SPIN * 16}\n{lp}:')
        g(f'ds_read_b32 v{T2 + 1}, v{T2} offset:{QF}\ns_waitcnt lgkmcnt(0)')
        g(f'v_cmp_eq_u32 vcc, 0, v{T2 + 1}\ns_cbranch_vccz {ok}')
        g(f's_sleep 2\ns_sub_u32 {S_SPIN}, {S_SPIN}, 1\ns_cbranch_scc0 {lp}\n{ok}:')
        g(f'ds_read_b128 {vr(Q0, 4)}, v{QO} offset:{QL}\nds_read_b128 {vr(Q0 + 4, 4)}, v{QO} offset:{QL + 128}')
        g('s_waitcnt lgkmcnt(0)')
        g.stamp('a_qseen')

    def qk(u):
        for t in range(4):
            g(f'v_mfma_f32_16x16x32_bf16 {vr(TMP + 4 * t, 4)}, {vr(SLOT(u) + 8 * t, 4)}, {vr(Q0, 4)}, 0')
        for t in range(4):
            g(f'v_mfma_f32_16x16x32_bf16 {vr(TMP + 4 * t, 4)}, {vr(SLOT(u) + 8 * t + 4, 4)}, {vr(Q0 + 4, 4)}, {vr(TMP + 4 * t, 4)}')
        g.nop(5)
        for t in range(4):
            d = TMP + 4 * t
            a, b = T2 + 2 * (t & 1), T2 + 2 * (t & 1) + 1
            g(f'v_add_f32_dpp v{a}, v{d + 1}, v{d} row_ror:8 {DPP}\nv_add_f32_dpp v{b}, v{d + 3}, v{d + 2} row_ror:8 {DPP}')
            round2(g, a)
            if u >= 4:
                sb = S_B4 if u == 4 else S_B5
                g(f'v_fma_f32 v{a}, v{a}, v{VSC}, {sb}\nv_fma_f32 v{b}, v{b}, v{VSC}, {sb}')
            else:
                g(f'v_mul_f32 v{a}, v{a}, v{VSC}\nv_mul_f32 v{b}, v{b}, v{VSC}')
            g(f'v_max3_f32 v{VMAX}, v{VMAX}, v{a}, v{b}\nv_cvt_pk_bf16_f32 v{SP + 4 * u + t}, v{a}, v{b}')

    def red_g(r, t, op):
        for ins in ('v_permlane32_swap_b32', 'v_permlane16_swap_b32'):
            g(f'v_mov_b32 v{t}, v{r}')
            g.nop(2)
            g(f'{ins} v{r}, v{t}\n{op} v{r}, v{r}, v{t}')

    def softmax():
        red_g(VMAX, T2, 'v_max_f32')
        for i in range(0, 32, 2):
            g(f'v_mov_b64 {vr(AC + i, 2)}, 0')
        g(f'v_mov_b32 v{VSC}, 0x3fb8aa3b\nv_mov_b32 v{T2 + 4}, 0')
        g(f'v_cvt_pk_bf16_f32 v{VMAX}, v{VMAX}, v{VMAX}\nv_lshlrev_b32 v{VMAX}, 16, v{VMAX}')
        g(f'v_mul_f32 v{T2 + 5}, v{VMAX}, v{VSC}')

    def probs(u):
        for i in range(4 * u, 4 * u + 4):
            p = SP + i
            a, b = T2 + 2 * (i & 1), T2 + 2 * (i & 1) + 1
            unpack2(g, a, p)
            g(f'v_fma_f32 v{a}, v{a}, v{VSC}, -v{T2 + 5}\nv_fma_f32 v{b}, v{b}, v{VSC}, -v{T2 + 5}')
            g(f'v_exp_f32 v{a}, v{a}\nv_exp_f32 v{b}, v{b}')
            g(f'v_add_f32 v{T2 + 4}, v{T2 + 4}, v{a}\nv_add_f32 v{T2 + 4}, v{T2 + 4}, v{b}')
            g(f'v_cvt_pk_bf16_f32 v{p}, v{a}, v{b}')
        if u == NU - 1:
            red_g(T2 + 4, T2, 'v_add_f32')
            g(f's_lshl_b32 {S_T}, s3, 3\nv_add_u32 v{T2}, {S_T}, v{LA}\nv_mov_b32 v{T2 + 2}, v{VMAX}\nv_min_u32 v{T2 + 3}, -2, v{T2 + 4}')
            g(f'ds_write_b64 v{T2}, {vr(T2 + 2, 2)} offset:{MX}')
            g.stamp('a_probs')

    def pv(u):
        s = SLOT(VSLOT[u])
        for w in range(4):
            t = TMP + 8 * (w & 1)
            for p in range(4):
                g(f'v_perm_b32 v{t + p}, v{s + 8 * p + 4 + w}, v{s + 8 * p + w}, {S_LO}')
            for p in range(4):
                g(f'v_perm_b32 v{t + 4 + p}, v{s + 8 * p + 4 + w}, v{s + 8 * p + w}, {S_HI}')
            g(f'v_mfma_f32_16x16x32_bf16 {vr(AC + 8 * w, 4)}, {vr(t, 4)}, {vr(SP + 4 * u, 4)}, {vr(AC + 8 * w, 4)}')
            g('s_nop 0')
            g(f'v_mfma_f32_16x16x32_bf16 {vr(AC + 8 * w + 4, 4)}, {vr(t + 4, 4)}, {vr(SP + 4 * u, 4)}, {vr(AC + 8 * w + 4, 4)}')

    def gather_ml():
        lp, ok = g.label('L_ml'), g.label('L_mlok')
        g(f's_mov_b32 {S_SPIN}, {SPIN * 16}\n{lp}:')
        for i in range(4):
            g(f'ds_read_b128 {vr(TMP + 4 * i, 4)}, v{LA} offset:{MX + 16 * i}')
        g('s_waitcnt lgkmcnt(0)')
        g(f'v_max_u32 v{T2}, v{TMP + 1}, v{TMP + 3}')
        for i in range(5, 16, 4):
            g(f'v_max3_u32 v{T2}, v{T2}, v{TMP + i}, v{TMP + i + 2}')
        g(f'v_cmp_eq_u32 vcc, -1, v{T2}\ns_cbranch_vccz {ok}')
        g(f's_sleep 2\ns_sub_u32 {S_SPIN}, {S_SPIN}, 1\ns_cbranch_scc0 {lp}\n{ok}:')
        g(f'v_max_f32 v{T2 + 2}, v{TMP}, v{TMP + 2}')
        for i in range(4, 16, 4):
            g(f'v_max3_f32 v{T2 + 2}, v{T2 + 2}, v{TMP + i}, v{TMP + i + 2}')

    def stats():
        skip = only_wave(g, 7)
        gather_ml()
        g(f'v_mov_b32 v{T2 + 3}, 0')
        for i in range(0, 16, 2):
            g(f'v_sub_f32 v{TMP + i}, v{TMP + i}, v{T2 + 2}\nv_mul_f32 v{TMP + i}, 0x3fb8aa3b, v{TMP + i}')
        for i in range(0, 16, 2):
            g(f'v_exp_f32 v{TMP + i}, v{TMP + i}')
        g(f's_lshl_b32 {S_T}, {S_R}, 11\ns_lshl_b32 s98, {S_CU}, 3\ns_add_u32 {S_T}, {S_T}, s98\ns_add_u32 {S_T}, {S_T}, {STATS}')
        for i in range(0, 16, 2):
            g(f'v_fmac_f32 v{T2 + 3}, v{TMP + i}, v{TMP + i + 1}')
        g(f'v_lshlrev_b32 v{T2}, 8, v0')
        tagmask(g, T2 + 1)
        tag(g, [T2 + 2, T2 + 3], T2 + 1)
        g.setexec(0xff)
        g(f'buffer_store_dwordx2 {vr(T2 + 2, 2)}, v{T2}, {S_WS}, {S_T} offen sc1')
        g.setexec(-1)
        g(skip + ':')

    def factor():
        gather_ml()
        g(f'v_sub_f32 v{FS}, v{VMAX}, v{T2 + 2}\nv_mul_f32 v{FS}, 0x3fb8aa3b, v{FS}\nv_exp_f32 v{FS}, v{FS}')
        tagmask(g, FS + 1)

    FS = Q0 + 2
    WA, RA = KO, QO

    def epi_addr():
        g(f's_mul_i32 {S_T}, s3, {OST}\ns_add_u32 {S_T}, {S_T}, {OBUF}')
        g.bits(WA, 0, [(4, 2, 128), (0, 4, 16)], T2, S_T)
        g(f's_lshl_b32 {S_T}, s3, 4\ns_add_u32 {S_T}, {S_T}, {OBUF}')
        g.bits(RA, 0, [(1, 3, 528), (4, 2, 128), (0, 1, 8)], T2, S_T)
        g(f'v_add_u32 v{VSC}, {4 * OST}, v{RA}')

    GS = P['GS']
    depth = lambda n: P['DK1'] if n < P['NK1'] else (P['DK2'] if n < 48 else (P['DX'] if n < 64 else P['DV']))
    qsteps = list(range(P['QP0'] - 1, P['QG'] - 1, P['QPS']))
    st = dict(landed=-1, issued=-1, done=0)

    def land(n):
        if n > st['landed']:
            g.vmwait(n)
            st['landed'] = n

    def hint_flag():
        skip = only_wave(g, 7)
        arrived(g, Q0 + 1, S_KV, C_A, 2 * SPL)
        g(skip + ':')
        st['hint'] = True

    W = [('q', -1, qget)]
    W += [('qk%d' % u, 8 * u + 7, lambda u=u: qk(u)) for u in range(NU)]
    W += [('sm', -1, softmax)]
    W += [('pr%d' % u, -1, lambda u=u: probs(u)) for u in range(NU)]
    W += [('st', -1, stats), ('rb', 63, lambda: (readback(), epi_addr(), lds_units()))]
    for u in range(4):
        if u == 3:
            W += [('fs', -1, factor)]
        W += [('pv%d' % u, 64 + 8 * u + 7, lambda u=u: ((g.stamp('a_landed') if u == 3 else None), pv(u)))]
    names = [w[0] for w in W]

    def work(budget, need=None):
        while st['done'] < len(W):
            forced = need is not None and st['done'] <= names.index(need)
            name, ld, act = W[st['done']]
            if not forced and (budget <= 0 or st['landed'] < ld or st['issued'] < P['QG'] - 1):
                return
            assert ld <= st['issued']
            land(ld)
            act()
            st['done'] += 1
            budget -= 1

    for n in range(0, 96, GS):
        d = depth(n)
        if n + GS - 1 >= d:
            land(n + GS - 1 - d)
        if n >= 64 and n % 8 == 0:
            work(0, ['qk1', 'qk2', 'qk3', 'pv0'][(n - 64) >> 3])
        for i in range(GS):
            load(n + i)
        m = n + GS - 1
        if n == 0:
            setup()
        st['issued'] = m
        if m == 12:
            g.vmwait('ep')
            epoch_tag(g, T2 + 2)
        if m in qsteps:
            if m != qsteps[0]:
                land(m - P['QPS'] + 1)
            qstep()
        if m == P['HPOS']:
            work(0, 'st')
            skip = only_wave(g, 7)
            arrive(g, Q0 + 1, S_KV, C_A)
            g(skip + ':')
        if st['landed'] > P['HPOS'] and not st.get('hint'):
            hint_flag()
        work(GS)
    if not st.get('hint'):
        work(0, 'pv2')
        land(P['HPOS'] + 1)
        hint_flag()
    work(0, 'pv3')

    g.setexec(rep16(0xff))
    for j in range(8):
        for h in (0, 2):
            g(f'v_pk_mul_f32 {vr(AC + 4 * j + h, 2)}, {vr(AC + 4 * j + h, 2)}, {vr(FS, 2)} op_sel_hi:[1,0]')
        g(f'ds_write_b128 v{WA}, {vr(AC + 4 * j, 4)} offset:{528 * j}')
    g.setexec(-1)
    g('s_waitcnt lgkmcnt(0)\ns_barrier')
    for w in range(8):
        g(f'ds_read_b64 {vr(TMP + 2 * w, 2)}, v{RA if w < 4 else VSC} offset:{OST * (w & 3)}')
    g('s_waitcnt lgkmcnt(4)')
    pk4(g, 'v_pk_add_f32', TMP, TMP, TMP + 4)
    g('s_waitcnt lgkmcnt(0)')
    pk4(g, 'v_pk_add_f32', TMP + 8, TMP + 8, TMP + 12)
    pk4(g, 'v_pk_add_f32', TMP, TMP, TMP + 8)
    g(f'v_pk_add_f32 {vr(TMP, 2)}, {vr(TMP, 2)}, {vr(TMP + 2, 2)}')
    tag(g, [TMP, TMP + 1], FS + 1)
    g(f'buffer_store_dwordx2 {vr(TMP, 2)}, v{GA}, {S_WS}, {S_GA} offen sc1')
    g.stamp('a_pub', (0, 1, 2))
    g(f's_mul_i32 s14, {S_R}, {NMR}\ns_add_u32 s14, s14, {S_CU}\ns_sub_u32 s14, s14, {SPL - NMR}')
    g(f's_cmp_ge_u32 {S_CU}, {SPL - NMR}\ns_cbranch_scc1 L_mlp')
    write_stamps(g)
    g('s_endpgm')


def build(stamps=False):
    g = G(stamps)
    ref = open(REF).read()
    g.L.append(ref[:ref.index('; Override launch')].rstrip())
    g.L.append('; @launch grid=(%d,1,1) block=(512,1,1) lds=%d' % (NWG, LDS_TOTAL))
    g.L.append('.amdgcn_target "amdgcn-amd-amdhsa--gfx950"\n.text\n.globl %s_kernel\n.p2align 8\n.type %s_kernel,@function' % (NAME, NAME))
    g.L.append('%s_kernel:' % NAME)
    g.stamp('start', (0, 1, 2))
    g(f's_cmp_ge_u32 s2, {NWG}\ns_cbranch_scc1 L_exit')
    g(f'''s_load_dwordx16 s[16:31], s[0:1], 0
          s_load_dwordx8 s[32:39], s[0:1], 64
          s_load_dwordx4 s[40:43], s[0:1], 96
          s_load_dwordx2 s[44:45], s[0:1], 112
          v_lshrrev_b32 v1, 6, v0
          v_and_b32 v0, 63, v0
          v_readfirstlane_b32 s3, v1
          s_mov_b32 {S_LO}, 0x05040100
          s_mov_b32 {S_HI}, 0x07060302
          s_mov_b32 {S_MASK}, 0xffff0000''')
    g(f's_cmp_lt_u32 s2, {NG}\ns_cbranch_scc1 L_proj')
    n0 = g.nst
    attention(g)
    mlp(g)
    g.nst = n0
    proj(g)
    g('L_exit:\ns_endpgm')
    g('.fill 2048, 4, 0xbf800000')
    g.L.append('''.section .rodata,"a"
.p2align 6
.amdhsa_kernel %s_kernel
  .amdhsa_next_free_vgpr 256
  .amdhsa_next_free_sgpr 102
  .amdhsa_accum_offset 256
  .amdhsa_group_segment_fixed_size 0
  .amdhsa_kernarg_size 120
  .amdhsa_user_sgpr_count 2
  .amdhsa_user_sgpr_kernarg_segment_ptr 1
  .amdhsa_system_sgpr_workgroup_id_x 1
.end_amdhsa_kernel''' % NAME)
    return '\n'.join(g.L) + '\n'


if __name__ == '__main__':
    out = sys.argv[1]
    for a in sys.argv[2:]:
        if '=' in a:
            k, v = a.split('=')
            assert k in P, k
            P[k] = int(v)
    open(out, 'w').write(build(stamps='--stamps' in sys.argv))
```

```python
import sys
NAME = 'adaLN_cond__gqa_block_cached__mixer_channel_mlp__decode'
REF = 'cdna_kernels/%s.s.ref' % NAME

NG = 64
SPL = 24
NMR = 7
NA = 8 * SPL
NWG = NG + NA
WPR = SPL * 8
NU = 6

QB, STATS, X1, MODP, MODL = 0x8000, 0x10000, 0x18000, 0x20000, 0x30000
MBA, MBB, MBC = 0x100000, 0x200000, 0x300000
SLOTS = 32
MBA_ST = 2 * SLOTS * 256
WS_SIZE = 0x400000
SPIN = 1 << 18
C_A, C_R = 0, 64
TMASK = 0xff

P = dict(MSL=4, LSL=8, QSL=8, ASL=2, GS=1, DK1=3, NK1=28, DK2=4, DV=8, QP0=36, QPS=4, SLEEP=0, PH=64, QG=58, DX=4, W2TH=1, NAT=1, NOQ=0, QW=7, SW=6, GE=0, NUG=0, RPOS=94, ILV=0, ROT=1, MW=4, HPOS=76, ST=0, DBGST=-1, PADTO=0, PADWG=-1, STPOS=-1)

S_WS, S_DBG, S_A, S_B = 's[48:51]', 's[52:55]', 's[56:59]', 's[60:63]'
S_LO, S_HI, S_MASK, S_SPIN = 's64', 's65', 's66', 's67'
S_TAG, S_EPO, S_T16 = 's26', 's27', 's1'
DPP = 'row_mask:0xf bank_mask:0xf'


def vr(a, n):
    return 'v[%d:%d]' % (a, a + n - 1)


class G:
    def __init__(self, stamps=False):
        self.vm = []
        self.L = []
        self.stamps = stamps
        self.nlabel = 0
        self.nst = 0

    def __call__(self, s):
        for line in s.strip('\n').split('\n'):
            line = line.strip()
            if line:
                self.L.append(line if line.endswith(':') else '    ' + line)

    def label(self, p='L'):
        self.nlabel += 1
        return '%s_%d' % (p, self.nlabel)

    def stamp(self, name, sets=(0,)):
        if self.stamps and P['ST'] in sets:
            k = self.nst
            self.nst += 1
            assert k < 13 and (k < 11 or name[0] in 'gr'), name
            self('s_memrealtime s[%d:%d] ; stamp %d %s' % (70 + 2 * k, 71 + 2 * k, k, name))

    def vmop(self, text, tag):
        for line in text.strip().split('\n'):
            self(line)
            self.vm.append(tag)

    def vmwait(self, *tags):
        idx = [i for i, t in enumerate(self.vm) if t in tags]
        if not idx:
            return
        n = len(self.vm) - 1 - idx[-1]
        assert n <= 63
        self('s_waitcnt vmcnt(%d)' % n)
        self.vm = self.vm[idx[-1] + 1:]

    def nop(self, n):
        while n > 0:
            k = min(n, 16)
            self('s_nop %d' % (k - 1))
            n -= k

    def bits(self, dst, src, fields, tmp, add=None):
        first = True
        for (lo, n, mul) in fields:
            t = dst if first else tmp
            if lo == 0:
                self(f'v_and_b32 v{t}, {(1 << n) - 1}, v{src}')
            else:
                self(f'v_bfe_u32 v{t}, v{src}, {lo}, {n}')
            pw = mul & (mul - 1) == 0
            sh = mul.bit_length() - 1
            if first:
                if mul != 1:
                    self(f'v_lshlrev_b32 v{dst}, {sh}, v{dst}' if pw else f'v_mul_u32_u24 v{dst}, {mul}, v{dst}')
            elif mul == 1:
                self(f'v_add_u32 v{dst}, v{dst}, v{tmp}')
            elif pw:
                self(f'v_lshl_add_u32 v{dst}, v{tmp}, {sh}, v{dst}')
            else:
                self(f'v_mul_u32_u24 v{tmp}, {mul}, v{tmp}\nv_add_u32 v{dst}, v{dst}, v{tmp}')
            first = False
        if add not in (None, 0):
            self(f'v_add_u32 v{dst}, {add}, v{dst}')

    def setexec(self, m):
        if m == -1:
            self('s_mov_b64 exec, -1')
        elif m < (1 << 31):
            self('s_mov_b64 exec, 0x%x' % m)
        else:
            self('s_mov_b32 exec_lo, 0x%x\ns_mov_b32 exec_hi, 0x%x' % (m & 0xffffffff, m >> 32))


def rep16(m):
    return m * 0x0001000100010001


def check(g, regs, tmp, mask=TMASK):
    regs = list(regs)
    g(f'v_bitop3_b32 v{tmp}, v{regs[0]}, v{regs[1]}, {S_EPO} bitop3:0x7e')
    for r in regs[2:]:
        g(f'v_bitop3_b32 v{tmp}, v{tmp}, v{r}, {S_EPO} bitop3:0xf6')
    if mask == 0xffff:
        g(f'v_cmp_ne_u16 vcc, 0, v{tmp}')
        return
    if mask != -1:
        g(f'v_and_b32 v{tmp}, {mask}, v{tmp}')
    g(f'v_cmp_ne_u32 vcc, 0, v{tmp}')


def tagmask(g, vm):
    g(f'v_mov_b32 v{vm}, 0x{0xffffffff ^ TMASK:x}')


def tag(g, regs, vm):
    for r in regs:
        g(f'v_and_or_b32 v{r}, v{r}, v{vm}, {S_TAG}')


def epoch_load(reg):
    return f'buffer_load_dword v{reg}, off, {S_WS}, 0 sc1'


def epoch_tag(g, reg):
    g(f'''v_readfirstlane_b32 {S_EPO}, v{reg}
          s_mul_i32 {S_TAG}, {S_EPO}, 0x9e3779b1
          s_lshr_b32 {S_TAG}, {S_TAG}, 12
          s_or_b32 {S_TAG}, {S_TAG}, 1
          s_add_u32 {S_EPO}, {S_EPO}, {S_TAG}
          s_and_b32 {S_TAG}, {S_EPO}, {TMASK}
          s_and_b32 {S_T16}, {S_EPO}, 0xffff''')


def poll(g, loads, regs, tmp, sleep=0, preloaded=False, mask=TMASK):
    lp, done, chk = g.label('L_poll'), g.label('L_ok'), g.label('L_chk')
    g(f's_mov_b32 {S_SPIN}, {SPIN}')
    if preloaded:
        g(f's_branch {chk}')
    g(lp + ':')
    g(loads)
    g('s_waitcnt vmcnt(0)')
    if preloaded:
        g(chk + ':')
    check(g, regs, tmp, mask)
    g(f's_cbranch_vccz {done}')
    if sleep:
        g(f's_sleep {sleep}')
    g(f's_sub_u32 {S_SPIN}, {S_SPIN}, 1\ns_cbranch_scc0 {lp}')
    g(done + ':')


def fread(reg, soff, off):
    return f'buffer_load_dword v{reg}, off, {S_DBG}, {soff} offset:{off + 128} sc1'


def fpoll(g, reg, soff, off, sleep, preloaded=False):
    lp, done, chk = g.label('L_fpoll'), g.label('L_fok'), g.label('L_fchk')
    g(f's_mov_b32 {S_SPIN}, {SPIN}')
    if preloaded:
        g(f's_branch {chk}')
    g(lp + ':')
    g(fread(reg, soff, off) + '\ns_waitcnt vmcnt(0)')
    if preloaded:
        g(chk + ':')
    g(f'v_cmp_eq_u32 vcc, 0, v{reg}\ns_cbranch_vccz {done}')
    if sleep:
        g(f's_sleep {sleep}')
    g(f's_sub_u32 {S_SPIN}, {S_SPIN}, 1\ns_cbranch_scc0 {lp}')
    g(done + ':')


def fwait(g, reg, soff, off, sleep):
    skip = only_wave(g, 0)
    fpoll(g, reg, soff, off, sleep)
    g(skip + ':')
    g('s_barrier')


def arrive(g, reg, soff, off):
    g(f'v_mov_b32 v{reg}, 1\ns_mov_b64 exec, 1\nbuffer_atomic_add v{reg}, off, {S_DBG}, {soff} offset:{off} sc0 sc1\ns_mov_b64 exec, -1')


def arrived(g, reg, soff, off, n):
    skip = g.label('L_notlast')
    g(f'v_readfirstlane_b32 s99, v{reg}\ns_cmp_lg_u32 s99, {n - 1}\ns_cbranch_scc1 {skip}')
    g(f's_mov_b64 exec, 1\nbuffer_store_dword v{reg}, off, {S_DBG}, {soff} offset:{off + 128} sc1\ns_mov_b64 exec, -1')
    g(skip + ':')


def srd(g, s, lo, size):
    base = int(s[2:s.index(':')])
    g(f's_mov_b32 s{base}, s{lo}\ns_mov_b32 s{base + 1}, s{lo + 1}\ns_mov_b32 s{base + 2}, 0x{size:x}\ns_mov_b32 s{base + 3}, 0x20000')


def only_wave(g, w):
    skip = g.label('L_skip')
    g(f's_cmp_lg_u32 s3, {w}\ns_cbranch_scc1 {skip}')
    return skip


def write_stamps(g):
    if not g.stamps:
        return
    g('s_waitcnt lgkmcnt(0)')
    skip = only_wave(g, 0)
    g('s_mov_b64 exec, 1')
    if P['DBGST'] >= 0:
        g(f's_cmp_lg_u32 s2, {P["DBGST"]}\ns_cbranch_scc1 {skip}')
        for k in range(1, min(g.nst, 12)):
            g(f's_sub_u32 s4, s{70 + 2 * k}, s70\nv_mov_b32 v2, s4')
            g(f'buffer_store_dword v2, off, {S_DBG}, 0 offset:{16 + 4 * k}')
        g(skip + ':')
        return
    g('s_lshl_b32 s4, s2, 8\ns_add_u32 s4, s44, s4\ns_addc_u32 s5, s45, 0')
    g('s_add_u32 s4, s4, %d\ns_addc_u32 s5, s5, 0' % (255 << 20))
    g('v_mov_b32 v1, 0')
    for k in range(g.nst):
        g(f'v_mov_b32 v2, s{70 + 2 * k}\nv_mov_b32 v3, s{71 + 2 * k}')
        g(f'global_store_dwordx2 v1, v[2:3], s[4:5] offset:{8 * k}')
        g('s_nop 1')
    g(skip + ':')


def prefetch_code(g, label, nkb8, vtmp, vdst, tag=None):
    pc = g.label('L_pc')
    g('s_getpc_b64 s[98:99]')
    if label:
        g(f'{pc}:\ns_add_u32 s98, s98, {label}-{pc}\ns_addc_u32 s99, s99, 0')
    g('s_and_b32 s98, s98, 0xffffff80')
    g(f's_lshl_b32 s97, s3, 10\nv_lshl_add_u32 v{vtmp}, v0, 4, s97')
    for i in range(nkb8):
        if i:
            g(f'v_add_u32 v{vtmp}, 8192, v{vtmp}')
        t = f'global_load_dwordx4 {vr(vdst, 4)}, v{vtmp}, s[98:99]'
        g.vmop(t, tag) if tag else g(t)


BLK = lambda i: 64 + 32 * i
UA, UB, UC = 0, 2, 4
ACC = 32
KW, NB, NW, NR, NO, KB, TID = 1, 2, 3, 4, 5, 6, 7
T = 24


class Lds:
    def __init__(self, base):
        self.ACTS, self.ACTH, self.RED = base, base + 4352, base + 8704
        self.OUTV = base + 17408
        self.PART = base + 17664
        self.STAT = base + 18688
        self.END = base + 19200


ABS = 2048 + 128


def nstep():
    return 1 if P['NAT'] else 64


def nvoff(g, dst, rs, tid=TID, tmp=T + 7):
    g.bits(dst, tid, [(3, 6, rs * 8 if P['NAT'] else rs), (0, 3, 16)], tmp)


def nload(g, unit, ptr, size, rs, s_col, voff, kbs=(0, 1), tag=None):
    srd(g, S_A, ptr, size)
    for kb in kbs:
        g(f's_add_u32 s4, {s_col}, {kb * 512 * rs}')
        for t in range(8):
            g.vmop(f'buffer_load_dwordx4 {vr(BLK(unit + kb) + 4 * t, 4)}, v{voff}, {S_A}, s4 offen nt', (tag, kb))
            if t < 7:
                g(f's_add_u32 s4, s4, {nstep() * rs}')


def kload(g, unit, ptr, size, s_idx, voff, rowf, tag):
    srd(g, S_A, ptr, size)
    g(f's_lshl_b32 s5, {s_idx}, 17')
    for kb in range(2):
        for t in range(8):
            g(f's_add_u32 s4, s5, {rowf(kb, t) * 2048}')
            g.vmop(f'buffer_load_dwordx4 {vr(BLK(unit + kb) + 4 * t, 4)}, v{voff}, {S_A}, s4 offen nt', (tag, kb))


def transpose(g, blk, T=T):
    b = BLK(blk)
    for p in range(4):
        a, c = b + 8 * p + p, b + 8 * p + 4 + p
        g(f'v_perm_b32 v{T}, v{c}, v{a}, {S_LO}\nv_perm_b32 v{c}, v{c}, v{a}, {S_HI}\nv_mov_b32 v{a}, v{T}')
    for p in range(4):
        for w in range(p + 1, 4):
            xa, xb = b + 8 * p + w, b + 8 * p + 4 + w
            ya, yb = b + 8 * w + p, b + 8 * w + 4 + p
            g(f'v_perm_b32 v{T}, v{xb}, v{xa}, {S_LO}\nv_perm_b32 v{T + 1}, v{xb}, v{xa}, {S_HI}')
            g(f'v_perm_b32 v{xa}, v{yb}, v{ya}, {S_LO}\nv_perm_b32 v{xb}, v{yb}, v{ya}, {S_HI}')
            g(f'v_mov_b32 v{ya}, v{T}\nv_mov_b32 v{yb}, v{T + 1}')


def mfmas(g, unit, b0, b1):
    for kb, bop in ((0, b0), (1, b1)):
        if kb == 1:
            g('s_waitcnt lgkmcnt(0)')
        for j in range(8):
            d = vr(ACC + 4 * j, 4)
            g(f'v_mfma_f32_16x16x32_bf16 {d}, {vr(BLK(unit + kb) + 4 * j, 4)}, {vr(bop, 4)}, {d if kb else 0}')


def common_addr(g, L, kperm):
    K0B = T + 6
    g(f's_lshl_b32 s4, s3, 6\nv_add_u32 v{TID}, s4, v0')
    g.bits(K0B, TID, [(3, 6, 64), (0, 2, 16), (2, 1, 8)], T)
    if P['NAT']:
        g.bits(KW, K0B, [(11, 1, ABS), (0, 11, 1)], T)
        g.bits(NB, TID, [(0, 1, ABS), (6, 3, 128), (4, 2, 32), (1, 1, 16)], T)
    else:
        g.bits(KW, K0B, [(11, 1, ABS), (4, 3, 256), (10, 1, 128), (1, 3, 16), (7, 3, 2)], T)
        g.bits(NB, TID, [(0, 1, ABS), (6, 3, 256), (4, 2, 32), (1, 1, 16)], T)
    g.bits(NW, TID, [(6, 3, 1088), (1, 1, 544), (0, 1, 256), (2, 2, 32), (4, 1, 16)], T, L.RED)
    g.bits(NR, TID, [(0, 2, 544), (2, 7, 4)], T, L.RED)
    if kperm:
        g.bits(NO, TID, [(8, 1, 128), (4, 1, 64), (5, 1, 32), (7, 1, 16), (2, 2, 4), (6, 1, 2)], T, L.OUTV)
    else:
        g.bits(NO, TID, [(8, 1, 128), (2, 3, 16), (5, 2, 4), (7, 1, 2)], T, L.OUTV)
    g.bits(KB, TID, [(0, 1, 128), (4, 2, 16)], T, L.OUTV)


def nsplit(g, unit, act, half=None):
    if half is None:
        g(f'ds_read_b128 {vr(T, 4)}, v{NB} offset:{act}\nds_read_b128 {vr(T + 4, 4)}, v{NB} offset:{act + (1024 if P["NAT"] else 128)}')
        g('s_waitcnt lgkmcnt(1)')
        mfmas(g, unit, T, T + 4)
    else:
        g(f'ds_read_b128 {vr(T, 4)}, v{half} offset:{act}\ns_waitcnt lgkmcnt(0)')
        for j in range(8):
            g(f'v_mfma_f32_16x16x32_bf16 {vr(ACC + 4 * j, 4)}, {vr(BLK(unit) + 4 * j, 4)}, {vr(T, 4)}, 0')
    for dd in range(1, 4):
        g.setexec(rep16(0xf << (4 * dd)))
        if dd != 2:
            g.nop(2)
        for i in range(4):
            g(f'v_mov_b64 {vr(ACC + 2 * i, 2)}, {vr(ACC + 8 * dd + 2 * i, 2)}')
    g.setexec(0xcccccccc33333333)
    g(f'ds_write_b128 v{NW}, {vr(ACC, 4)}\nds_write_b128 v{NW}, {vr(ACC + 4, 4)} offset:128')
    g.setexec(-1)
    g('s_waitcnt lgkmcnt(0)\ns_barrier')
    for k in range(4):
        g(f'ds_read_b32 v{T + k}, v{NR} offset:{k * 4 * 544}')
    g('s_waitcnt lgkmcnt(2)')
    g(f'v_add_f32 v{T}, v{T}, v{T + 1}')
    g('s_waitcnt lgkmcnt(0)')
    g(f'v_add_f32 v{T + 2}, v{T + 2}, v{T + 3}\nv_add_f32 v{T}, v{T}, v{T + 2}')
    g.nop(2)
    g(f'v_add_f32_dpp v{T}, v{T}, v{T} quad_perm:[1,0,3,2] {DPP}')
    g.nop(2)
    g(f'v_add_f32_dpp v{T}, v{T}, v{T} quad_perm:[2,3,0,1] {DPP}')


def actwrite(g, p, act):
    if P['NAT']:
        g(f'ds_write_b64 v{KW}, {vr(p, 2)} offset:{act}')
        return
    g(f'ds_write_b16 v{KW}, v{p} offset:{act}\nds_write_b16_d16_hi v{KW}, v{p} offset:{act + 16}')
    g(f'ds_write_b16 v{KW}, v{p + 1} offset:{act + 32}\nds_write_b16_d16_hi v{KW}, v{p + 1} offset:{act + 48}')


def unpack2(g, d, s):
    g(f'v_lshlrev_b32 v{d}, 16, v{s}\nv_and_b32 v{d + 1}, {S_MASK}, v{s}')


def unpack(g, d, s):
    unpack2(g, d, s)
    unpack2(g, d + 2, s + 1)


def pack(g, t, d):
    g(f'v_cvt_pk_bf16_f32 v{t}, v{d}, v{d + 1}\nv_cvt_pk_bf16_f32 v{t + 1}, v{d + 2}, v{d + 3}')


def round4(g, d, t):
    pack(g, t, d)
    unpack(g, d, t)


def round2(g, a):
    g(f'v_cvt_pk_bf16_f32 v{a + 1}, v{a}, v{a + 1}')
    unpack2(g, a, a + 1)


def pk4(g, op, d, a, b):
    g(f'{op} {vr(d, 2)}, {vr(a, 2)}, {vr(b, 2)}\n{op} {vr(d + 2, 2)}, {vr(a + 2, 2)}, {vr(b + 2, 2)}')


def layernorm(g, x, sw, sr, off, last_packed=False):
    a, b = T + 4, T + 5
    g(f'v_add_f32 v{a}, v{x}, v{x + 1}\nv_mul_f32 v{b}, v{x}, v{x}')
    g(f'v_add_f32 v{T}, v{x + 2}, v{x + 3}\nv_fmac_f32 v{b}, v{x + 1}, v{x + 1}')
    g(f'v_add_f32 v{a}, v{a}, v{T}\nv_fmac_f32 v{b}, v{x + 2}, v{x + 2}\nv_fmac_f32 v{b}, v{x + 3}, v{x + 3}')
    for i, ctl in enumerate(['row_ror:8 ' + DPP, 'row_ror:4 ' + DPP, 'row_ror:2 ' + DPP, 'row_ror:1 ' + DPP,
                             'row_bcast:15 row_mask:0xa bank_mask:0xf', 'row_bcast:31 row_mask:0xc bank_mask:0xf']):
        if i:
            g('s_nop 0')
        g(f'v_add_f32_dpp v{a}, v{a}, v{a} {ctl}')
        if i == 0:
            g('s_nop 0')
        g(f'v_add_f32_dpp v{b}, v{b}, v{b} {ctl}')
    g.setexec(1 << 63)
    g(f'ds_write_b64 v{sw}, {vr(a, 2)} offset:{off}')
    g.setexec(-1)
    g('s_waitcnt lgkmcnt(0)\ns_barrier')
    g(f'ds_read_b128 {vr(T, 4)}, v{sr} offset:{off}\nds_read_b128 {vr(T + 4, 4)}, v{sr} offset:{off + 16}')
    g('s_waitcnt lgkmcnt(0)')
    pk4(g, 'v_pk_add_f32', T, T, T + 4)
    g(f'v_pk_add_f32 {vr(a, 2)}, {vr(T, 2)}, {vr(T + 2, 2)}')
    g(f'v_mul_f32 v{a}, 0x3a800000, v{a}\nv_mul_f32 v{b}, 0x3a800000, v{b}')
    g(f'v_fma_f32 v{b}, -v{a}, v{a}, v{b}\nv_max_f32 v{b}, 0, v{b}')
    round2(g, a)
    g(f'v_add_f32 v{b}, 0x3727c5ac, v{b}')
    g(f'v_cvt_pk_bf16_f32 v{b}, v{b}, v{b}\nv_lshlrev_b32 v{b}, 16, v{b}')
    g(f'v_sqrt_f32 v{b}, v{b}')
    for i in range(4):
        g(f'v_sub_f32 v{x + i}, v{x + i}, v{a}')
    g(f'v_cvt_pk_bf16_f32 v{b}, v{b}, v{b}\nv_lshlrev_b32 v{b}, 16, v{b}')
    g(f'v_rcp_f32 v{b}, v{b}')
    round4(g, x, T + 6)
    for i in range(4):
        g(f'v_mul_f32 v{x + i}, v{x + i}, v{b}')
    if last_packed:
        pack(g, T + 6, x)
    else:
        round4(g, x, T + 6)


def ksplit_out(g, unit, po, mb):
    g(f'ds_read_b128 {vr(T, 4)}, v{KB}\nds_read_b128 {vr(T + 4, 4)}, v{KB} offset:64')
    g('s_waitcnt lgkmcnt(1)')
    mfmas(g, unit, T, T + 4)
    tagmask(g, T)
    for j in range(1, 8):
        g.setexec(rep16(3 << (2 * j)))
        g(f'v_mov_b64 {vr(ACC, 2)}, {vr(ACC + 4 * j, 2)}\nv_mov_b64 {vr(ACC + 2, 2)}, {vr(ACC + 4 * j + 2, 2)}')
    g.setexec(-1)
    tag(g, range(ACC, ACC + 4), T)
    g(f'buffer_store_dwordx4 {vr(ACC, 4)}, v{po}, {S_WS}, {mb} offen sc1')


def publish32(g, L, s_off, bstride, exact):
    g(f'v_subrev_u32 v{T + 1}, {L.OUTV}, v{NO}\nv_lshlrev_b32 v{T + 1}, 1, v{T + 1}\nds_write_b32 v{T + 1}, v{T} offset:{L.PART}')
    g('s_waitcnt lgkmcnt(0)\ns_barrier')
    skip = only_wave(g, 0)
    if exact:
        g(f'v_lshlrev_b32 v{T + 4}, 3, v0\nds_read_b64 {vr(T + 6, 2)}, v{T + 4} offset:{L.PART}')
        g.bits(T + 5, 0, [(5, 1, bstride), (0, 5, 16)], T + 4)
        g(f'v_mov_b32 v{T + 1}, {S_EPO}\nv_mov_b32 v{T + 3}, {S_EPO}\ns_waitcnt lgkmcnt(0)')
        g(f'v_mov_b32 v{T}, v{T + 6}\nv_mov_b32 v{T + 2}, v{T + 7}')
    else:
        g(f'v_lshlrev_b32 v{T + 4}, 4, v0\nds_read_b128 {vr(T, 4)}, v{T + 4} offset:{L.PART}')
        g.bits(T + 5, 0, [(4, 1, bstride), (0, 4, 16)], T + 6)
        g('s_waitcnt lgkmcnt(0)\ns_mov_b32 exec_hi, 0')
    g(f'buffer_store_dwordx4 {vr(T, 4)}, v{T + 5}, {S_WS}, {s_off} offen sc1')
    g.setexec(-1)
    g('s_nop 0')
    g(skip + ':')


def silu_image(g, L, src):
    unpack(g, ACC, src)
    for i in range(4):
        g(f'v_mul_f32 v{T + i}, 0xbfb8aa3b, v{ACC + i}')
    for i in range(4):
        g(f'v_exp_f32 v{T + i}, v{T + i}')
    for i in range(4):
        g(f'v_add_f32 v{T + i}, 1.0, v{T + i}')
    for i in range(4):
        g(f'v_rcp_f32 v{T + i}, v{T + i}')
    for i in range(4):
        g(f'v_mul_f32 v{T + i}, v{T + i}, v{ACC + i}')
    pack(g, T + 4, T)
    actwrite(g, T + 4, L.ACTS)


def proj(g):
    L = Lds(8448)
    Y, SB = 8, 12
    PO, RO, RL, OUTO = 8, 9, 10, 11
    WG, AO, AO3, OW = 12, 17, 18, 16
    WQO, WMO, SW, SR = 17, 18, 19, 23
    RX, RGA, RGB, RB2 = 20, 21, 22, 23
    JC, ODD = 's14', 's15'
    g.vm = []

    def gate(part):
        skip = only_wave(g, 0)
        g(f's_mov_b32 s4, {MODL + part * 4096}\ns_mov_b32 s5, {MODL + part * 4096 + 32768}')
        poll(g, f'buffer_load_dwordx2 {vr(ACC + 18, 2)}, v{RGA}, {S_WS}, s4 offen sc1\n'
                f'buffer_load_dwordx2 {vr(ACC + 20, 2)}, v{RGA}, {S_WS}, s5 offen sc1', range(ACC + 18, ACC + 22), T)
        g(f'v_pk_add_f32 {vr(ACC + 18, 2)}, {vr(ACC + 18, 2)}, {vr(ACC + 20, 2)}')
        round2(g, ACC + 18)
        g(skip + ':')

    def reduce(mb, nprod):
        if nprod < 64:
            g(f'v_mov_b32 v{T}, 0')
            skip = g.label('L_nored')
            g(f's_cmp_ge_u32 s3, {nprod // 8}\ns_cbranch_scc1 {skip}')
        poll(g, f'buffer_load_dwordx4 {vr(T, 4)}, v{RO}, {S_WS}, {mb} offen sc1', range(T, T + 4), T + 4)
        g.stamp('red_polled', (1,))
        g(f'v_permlane32_swap_b32 v{T}, v{T + 2}\nv_permlane32_swap_b32 v{T + 1}, v{T + 3}')
        g(f'v_add_f32 v{T}, v{T}, v{T + 2}\nv_add_f32 v{T + 1}, v{T + 1}, v{T + 3}')
        g.nop(2)
        g(f'v_permlane16_swap_b32 v{T}, v{T + 1}\nv_add_f32 v{T}, v{T}, v{T + 1}')
        g.nop(2)
        g(f'v_add_f32_dpp v{T}, v{T}, v{T} row_ror:8 {DPP}')
        if nprod < 64:
            g(skip + ':')
        g(f'ds_write_b32 v{RL}, v{T}')
        g('s_waitcnt lgkmcnt(0)\ns_barrier')
        skip = only_wave(g, 0)
        g(f'v_and_b32 v{T + 2}, 15, v0\nv_lshlrev_b32 v{T + 2}, 3, v{T + 2}')
        for w in range(8):
            g(f'ds_read_b64 {vr(ACC + 2 * w, 2)}, v{T + 2} offset:{L.PART + 128 * w}')
        return skip

    def reduce_sum():
        g('s_waitcnt lgkmcnt(4)')
        pk4(g, 'v_pk_add_f32', ACC, ACC, ACC + 4)
        g('s_waitcnt lgkmcnt(0)')
        pk4(g, 'v_pk_add_f32', ACC + 8, ACC + 8, ACC + 12)
        pk4(g, 'v_pk_add_f32', ACC, ACC, ACC + 8)
        g(f'v_pk_add_f32 {vr(T, 2)}, {vr(ACC, 2)}, {vr(ACC + 2, 2)}')
        round2(g, T)

    g('L_proj:')
    g(f's_and_b32 {JC}, s2, 7\ns_lshl_b32 {JC}, {JC}, 3\ns_lshr_b32 s4, s2, 3\ns_add_u32 {JC}, {JC}, s4')
    g(f's_lshl_b32 s4, s3, 6\nv_add_u32 v{TID}, s4, v0')
    g.bits(T + 6, TID, [(3, 6, 64), (0, 2, 16), (2, 1, 8)], T)
    nvoff(g, WMO, 12288)
    g(f'''s_and_b32 {ODD}, {JC}, 1
          s_lshr_b32 s6, {JC}, 1
          s_lshl_b32 s6, s6, 7
          s_mul_i32 s13, {ODD}, {512 * 12288}
          s_add_u32 s13, s13, s6
          s_lshl_b32 s7, {JC}, 7
          s_lshr_b32 s46, {JC}, 4
          s_lshl_b32 s46, s46, 2
          s_waitcnt lgkmcnt(0)''')
    srd(g, S_WS, 44, WS_SIZE)
    srd(g, S_DBG, 42, 256)
    g(f's_lshl_b32 s47, {ODD}, 15\ns_lshl_b32 s5, s6, 2\ns_add_u32 s47, s47, s5\ns_add_u32 s47, s47, {MODP}')
    g.vmop(epoch_load(RGB), 'in')
    srd(g, S_B, 36, 4096)
    g.vmop(f'buffer_load_dwordx2 {vr(SB, 2)}, v{T + 6}, {S_B}, 0 offen', 'in')
    srd(g, S_B, 16, 4096)
    g.vmop(f'buffer_load_dwordx2 {vr(SB + 2, 2)}, v{T + 6}, {S_B}, 0 offen', 'in')
    prefetch_code(g, None, 2, T, ACC + 4, 'in')
    nload(g, UA, 38, 1024 * 12288, 12288, 's13', WMO, (0,), tag='m1')
    common_addr(g, L, False)
    nvoff(g, WQO, 8192)
    g(f's_lshl_b32 s4, s3, 3\nv_mov_b32 v{SW}, s4\ns_and_b32 s4, s4, 32\nv_mov_b32 v{SR}, s4')
    g(f's_mul_i32 s8, {JC}, {MBA_ST}\ns_add_u32 s8, s8, {MBA}')
    g(f's_lshl_b32 s9, {JC}, 13\ns_add_u32 s10, s9, {MBC}\ns_add_u32 s9, s9, {MBB}')
    g(f's_lshl_b32 s11, {JC}, 7\ns_add_u32 s11, s11, {X1}')
    g.vmwait('in')
    epoch_tag(g, RGB)
    silu_image(g, L, SB)
    unpack(g, Y, SB + 2)
    layernorm(g, Y, SW, SR, L.STAT)
    nload(g, UB, 22, 1024 * 8192, 8192, 's7', WQO, (0,), tag='wq')
    g('s_waitcnt vmcnt(8)')
    transpose(g, UA)
    g(f's_lshl_b32 s4, {ODD}, {10 if P["NAT"] else 7}\nv_add_u32 v{T + 7}, s4, v{NB}')
    nsplit(g, UA, L.ACTS, T + 7)
    publish32(g, L, 's47', 16384, True)
    g.stamp('g_mod')
    nload(g, UB, 22, 1024 * 8192, 8192, 's7', WQO, (1,), tag='wq')
    MP = RGA
    g.bits(MP, TID, [(8, 1, 16384), (3, 5, 256), (0, 2, 64), (2, 1, 32)], T + 7, MODP)
    g('s_waitcnt vmcnt(8)')
    transpose(g, UB)
    g(f's_mov_b32 s4, 8192\ns_mov_b32 s5, 32768\ns_mov_b32 s12, {32768 + 8192}')
    mloads = '\n'.join(f'buffer_load_dwordx4 {vr(ACC + 4 * i, 4)}, v{MP}, {S_WS}, {("0", "s5", "s4", "s12")[i >> 1]} offen offset:{16 * (i & 1)} sc1'
                       for i in range(8))
    g(f's_waitcnt vmcnt({P["MW"]})')
    g(mloads)
    attention(g, 'g_addr')
    attention(g, 'g_issue', range(P['GE']))
    g(f's_waitcnt vmcnt({8 + P["GE"]})')
    transpose(g, UB + 1)
    g(f's_waitcnt vmcnt({P["GE"]})')
    poll(g, mloads, range(ACC + 1, ACC + 32, 2), T, P['MSL'], preloaded=True, mask=-1)
    g.vm = []
    g.stamp('g_modseen')
    for i in range(4):
        g(f'v_add_f32 v{T + i}, v{ACC + 16 + 2 * i}, v{ACC + 24 + 2 * i}')
    for i in range(4):
        g(f'v_add_f32 v{ACC + i}, v{ACC + 2 * i}, v{ACC + 8 + 2 * i}')
    round4(g, T, T + 4)
    for i in range(4):
        g(f'v_add_f32 v{T + i}, 1.0, v{T + i}')
    round4(g, T, T + 4)
    pk4(g, 'v_pk_mul_f32', Y, Y, T)
    round4(g, Y, T + 4)
    round4(g, ACC, T + 4)
    pk4(g, 'v_pk_add_f32', Y, Y, ACC)
    pack(g, T, Y)
    actwrite(g, T, L.ACTH)
    g('s_waitcnt lgkmcnt(0)\ns_barrier')
    nsplit(g, UB, L.ACTH)
    g(f's_lshl_b32 s12, s7, 1\ns_add_u32 s12, s12, {QB}')
    g(f'v_cvt_pk_bf16_f32 v{T}, v{T}, v{T}\nv_lshl_or_b32 v{T}, v{T}, 16, {S_T16}')
    publish32(g, L, 's12', 16384, False)
    g.stamp('g_q')

    attention(g, 'g_issue', range(P['GE'], 16 * P['NUG']))
    if P['NUG']:
        attention(g, 'g_q')
    g.bits(T + 5, TID, [(4, 2, 4096), (6, 3, 256), (0, 4, 16)], T + 7)
    kload(g, UC, 24, 4096 * 2048, JC, T + 5, lambda kb, t: 32 * kb + (t & 3) * 8 + (t >> 2), 'wo')
    if P['NUG']:
        attention(g, 'g_compute')
        g.stamp('g_att')
        common_addr(g, L, False)
    g(f'v_lshlrev_b32 v{RO}, 4, v{TID}')
    g('s_waitcnt vmcnt(0)')
    g.vm = []
    transpose(g, UC)
    transpose(g, UC + 1)
    g.stamp('g_loaded')
    g(f's_lshr_b32 s4, {JC}, 1\ns_lshl_b32 s4, s4, 6\ns_lshl_b32 s5, {ODD}, 3\ns_add_u32 s4, s4, s5')
    g.bits(T, 0, [(1, 2, 16), (0, 1, 4)], T + 1, 's4')
    srd(g, S_B, 34, 2048)
    g(f'buffer_load_dword v{RB2}, v{T}, {S_B}, 0 offen')
    g(f'v_bfe_u32 v{T + 1}, v0, 3, 1\nv_lshlrev_b32 v{RGA}, 1, v{T}\nv_lshl_add_u32 v{RGA}, v{T + 1}, 14, v{RGA}')
    g(f'v_lshl_add_u32 v{OUTO}, v{T + 1}, 11, v{T}')
    srd(g, S_B, 16, 4096)
    g(f'buffer_load_dword v{RX}, v{OUTO}, {S_B}, 0 offen')
    srd(g, S_B, 40, 4096)
    g.bits(RL, TID, [(6, 3, 128), (0, 1, 64), (4, 2, 16), (1, 2, 4)], T, L.PART)
    g.bits(PO, TID, [(3, 6, 8192), (0, 3, 16)], T)
    g(f's_add_u32 s12, s7, {MBB}')
    g.bits(AO, TID, [(8, 1, SLOTS * 256), (3, 3, 256), (6, 2, 64), (0, 3, 8)], T + 3)
    g.bits(OW, TID, [(6, 3, 32), (0, 3, 4), (5, 1, 2)], T + 3, L.OUTV)
    g.bits(T + 5, TID, [(8, 1, 128), (3, 3, 4)], T + 3)
    g('s_add_u32 s13, s8, 4096')
    g.bits(T + 2, 0, [(5, 1, 8192), (0, 5, 8)], T + 3)
    g(f's_lshr_b32 s4, {JC}, 1\ns_lshl_b32 s4, s4, 8\ns_add_u32 s4, s4, {STATS}')
    prefetch_code(g, 'L_proj_tail', 1, T + 6, ACC)
    g.stamp('g_ready')
    g('L_proj_tail:')
    fwait(g, T, 's46', C_A, P['ASL'])
    g.stamp('g_hint', (0, 1))
    g(f'v_mov_b32 v{T}, 0xff800000\nv_mov_b32 v{T + 1}, 0')
    g.setexec(-1 if P['NUG'] else ((1 << SPL) - 1) * 0x100000001)
    poll(g, f'buffer_load_dwordx2 {vr(T, 2)}, v{T + 2}, {S_WS}, s4 offen sc1', [T, T + 1], T + 4, 2)
    g.setexec(-1)

    def red32(r, t, op):
        for sh in (8, 4, 2, 1):
            g.nop(2)
            g(f'{op}_dpp v{r}, v{r}, v{r} row_ror:{sh} {DPP}')
        g(f'v_mov_b32 v{t}, v{r}')
        g.nop(2)
        g(f'v_permlane16_swap_b32 v{r}, v{t}\n{op} v{r}, v{r}, v{t}')
    g(f'v_and_b32 v{T}, {S_MASK}, v{T}\nv_mov_b32 v{T + 2}, v{T}')
    red32(T + 2, T + 3, 'v_max_f32')
    g(f'v_sub_f32 v{T}, v{T}, v{T + 2}\nv_mul_f32 v{T}, 0x3fb8aa3b, v{T}\nv_exp_f32 v{T}, v{T}\ns_nop 0')
    g(f'v_mul_f32 v{T + 1}, v{T + 1}, v{T}')
    red32(T + 1, T + 3, 'v_add_f32')
    g(f'v_rcp_f32 v{T + 1}, v{T + 1}\ns_nop 0\nv_mul_f32 v{T}, v{T}, v{T + 1}')
    for k in range(4):
        g(f'ds_bpermute_b32 v{WG + k}, v{T + 5}, v{T} offset:{32 * k}')
    g('s_waitcnt lgkmcnt(0)')
    g.stamp('g_wgt', (0, 1))
    NT = 4 if P['NUG'] else 3
    poll(g, '\n'.join(f'buffer_load_dwordx2 {vr(T + 2 * k, 2)}, v{AO}, {S_WS}, {"s8" if k < 2 else "s13"} offen offset:{2048 * (k & 1)} sc1'
                      for k in range(NT)), range(T, T + 2 * NT), ACC, P['SLEEP'])
    g.stamp('g_apolled', (0, 1))
    g(f'v_mul_f32 v{T}, v{WG}, v{T}\nv_mul_f32 v{T + 1}, v{WG}, v{T + 1}')
    for k in range(1, NT):
        g(f'v_fmac_f32 v{T}, v{WG + k}, v{T + 2 * k}\nv_fmac_f32 v{T + 1}, v{WG + k}, v{T + 2 * k + 1}')
    g.nop(2)
    g(f'v_permlane32_swap_b32 v{T}, v{T + 1}\nv_add_f32 v{T}, v{T}, v{T + 1}\nv_mov_b32 v{T + 1}, v{T}')
    g.nop(2)
    g(f'v_permlane16_swap_b32 v{T}, v{T + 1}\nv_add_f32 v{T}, v{T}, v{T + 1}')
    g.nop(2)
    g(f'v_add_f32_dpp v{T}, v{T}, v{T} row_ror:8 {DPP}')
    g(f'v_cvt_pk_bf16_f32 v{T}, v{T}, v{T}\nds_write_b16 v{OW}, v{T}')
    g('s_waitcnt lgkmcnt(0)\ns_barrier')
    g.stamp('g_obar', (1,))
    ksplit_out(g, UC, PO, 's12')
    g.stamp('g_t2', (0, 1))
    gate(0)
    skip = reduce('s9', 64)
    unpack2(g, T + 6, RX)
    g(f'v_lshlrev_b32 v{T + 3}, 3, v0\nv_mov_b32 v{ACC + 16}, {S_MASK}')
    reduce_sum()
    g(f'v_pk_mul_f32 {vr(T, 2)}, {vr(T, 2)}, {vr(ACC + 18, 2)}')
    round2(g, T)
    g(f'v_pk_add_f32 {vr(T, 2)}, {vr(T, 2)}, {vr(T + 6, 2)}')
    g(f'v_cvt_pk_bf16_f32 v{RX}, v{T}, v{T + 1}')
    g(f'v_lshl_or_b32 v{T}, v{RX}, 16, {S_T16}\nv_and_or_b32 v{T + 1}, v{RX}, v{ACC + 16}, {S_T16}')
    g.setexec(0xffff)
    g(f'buffer_store_dwordx2 {vr(T, 2)}, v{T + 3}, {S_WS}, s11 offen sc1')
    g.setexec(-1)
    g(skip + ':')
    g.stamp('g_x1', (0, 1))
    g('s_barrier')
    gate(3)
    g.stamp('g_gb', (1,))
    skip = reduce('s10', 56)
    unpack2(g, T + 2, RB2)
    unpack2(g, T + 6, RX)
    reduce_sum()
    g(f'v_pk_add_f32 {vr(T, 2)}, {vr(T, 2)}, {vr(T + 2, 2)}')
    round2(g, T)
    g(f'v_pk_mul_f32 {vr(T, 2)}, {vr(T, 2)}, {vr(ACC + 18, 2)}')
    round2(g, T)
    g(f'v_pk_add_f32 {vr(T, 2)}, {vr(T, 2)}, {vr(T + 6, 2)}')
    g(f'v_cvt_pk_bf16_f32 v{T}, v{T}, v{T + 1}')
    g.setexec(0xffff)
    g(f'buffer_store_dword v{T}, v{OUTO}, {S_B}, 0 offen')
    g(f's_cmp_lg_u32 s2, 0\ns_cbranch_scc1 {skip}\nv_mov_b32 v{T + 1}, {S_EPO}\ns_mov_b64 exec, 1')
    g(f'buffer_store_dword v{T + 1}, off, {S_WS}, 0 sc1')
    g(skip + ':')
    g.stamp('g_out', (0, 1))
    if P['PADTO']:
        if P['PADWG'] >= 0:
            g(f's_cmp_lg_u32 s2, {P["PADWG"]}\ns_cbranch_scc1 L_nopad')
        g(f'L_pad:\ns_memrealtime s[4:5]\ns_waitcnt lgkmcnt(0)\ns_sub_u32 s4, s4, s70\ns_cmp_lt_u32 s4, {P["PADTO"]}\ns_cbranch_scc1 L_pad\nL_nopad:')
    write_stamps(g)
    g('s_endpgm')


MLP_LDS = 4096
W1L = 4096
LDS_TOTAL = W1L + 131072


def mlp(g):
    L = Lds(MLP_LDS)
    PO, XO, SW, SR, B1 = 8, 9, 10, 11, 17
    C1, SH = 12, 18
    JM = 's14'
    g.vm = []
    g('L_mlp:')
    if P['W2TH']:
        fwait(g, ACC + 4, 's101', C_A, P['LSL'])
    else:
        g('s_barrier')
    g(f's_lshl_b32 s4, s3, 6\nv_add_u32 v{TID}, s4, v0')
    g(f's_lshl_b32 s7, {JM}, 7')
    g.bits(T + 5, TID, [(4, 2, 2048), (6, 3, 256), (0, 4, 16)], T + 7)
    kload(g, UB, 32, 3584 * 2048, JM, T + 5, lambda kb, t: 32 * kb + 4 * t, 'w2')
    common_addr(g, L, True)
    srd(g, S_B, 30, 3584 * 2)
    g.bits(T + 5, TID, [(2, 3, 16), (5, 2, 4), (7, 1, 2)], T, 's7')
    g.vmop(f'buffer_load_ushort v{B1}, v{T + 5}, {S_B}, 0 offen', 'k')
    prefetch_code(g, 'L_mlp_tail', 1, T + 5, ACC + 8, 'k')
    g.bits(XO, TID, [(2, 6, 128), (8, 1, 64), (0, 2, 16)], T, X1)
    g.bits(PO, TID, [(3, 6, 8192), (0, 3, 16)], T)
    g(f's_add_u32 s13, s7, {MBC}')
    g(f's_lshl_b32 s4, s3, 3\nv_mov_b32 v{SW}, s4\ns_and_b32 s4, s4, 32\nv_mov_b32 v{SR}, s4')
    MP = 16
    g.bits(MP, TID, [(8, 1, 16384), (3, 5, 128), (0, 2, 32), (2, 1, 16)], T, MODL + 4096)
    g(f's_mov_b32 s4, 4096\ns_mov_b32 s5, 32768\ns_mov_b32 s6, {32768 + 4096}')
    mloads = '\n'.join(f'buffer_load_dwordx4 {vr(ACC + 12 + 4 * i, 4)}, v{MP}, {S_WS}, {so} offen sc1' for i, so in enumerate(('0', 's5', 's4', 's6')))
    g.vmwait(('w2', 0))
    transpose(g, UB)
    g.vmop(mloads, 'k')
    g.vmwait(('w2', 1))
    transpose(g, UB + 1)
    g.vmwait('k')
    g.stamp('m_w2', (2,))
    poll(g, mloads, range(ACC + 12, ACC + 28), T, 2, preloaded=True)
    pk4(g, 'v_pk_add_f32', SH, ACC + 12, ACC + 16)
    pk4(g, 'v_pk_add_f32', C1, ACC + 20, ACC + 24)
    round4(g, SH, T)
    round4(g, C1, T)
    for i in range(4):
        g(f'v_add_f32 v{C1 + i}, 1.0, v{C1 + i}')
    round4(g, C1, T)
    g(f'v_lshlrev_b32 v{B1}, 16, v{B1}')
    g.stamp('m_ready', (0, 2))
    g('L_mlp_tail:')
    XV = ACC
    poll(g, f'buffer_load_dwordx4 {vr(XV, 4)}, v{XO}, {S_WS}, 0 offen sc1', range(XV, XV + 4), T, mask=0xffff)
    g.stamp('m_x1seen', (0, 2))
    for i in range(4):
        g(f'v_and_b32 v{XV + i}, {S_MASK}, v{XV + i}')
    layernorm(g, XV, SW, SR, L.STAT)
    g.stamp('m_ln1', (2,))
    pk4(g, 'v_pk_mul_f32', XV, XV, C1)
    round4(g, XV, T + 6)
    pk4(g, 'v_pk_add_f32', XV, XV, SH)
    round4(g, XV, T + 6)
    layernorm(g, XV, SW, SR, L.STAT + 64, last_packed=True)
    actwrite(g, T + 6, L.ACTH)
    g('s_waitcnt lgkmcnt(0)\ns_barrier')
    g.stamp('m_ln2', (2,))
    nsplit(g, UC, L.ACTH)
    g.stamp('m_t3', (2,))
    g(f'''v_cvt_pk_bf16_f32 v{T}, v{T}, v{T}
          v_lshlrev_b32 v{T}, 16, v{T}
          v_add_f32 v{T}, v{T}, v{B1}
          v_cvt_pk_bf16_f32 v{T}, v{T}, v{T}
          v_lshlrev_b32 v{T}, 16, v{T}
          v_mov_b32 v{T + 2}, 0xc0135761
          v_mul_f32 v{T + 1}, v{T}, v{T}
          v_fmac_f32 v{T + 2}, 0xbdd2d3e8, v{T + 1}
          v_mul_f32 v{T + 1}, v{T + 2}, v{T}
          v_exp_f32 v{T + 1}, v{T + 1}
          s_nop 0
          v_add_f32 v{T + 1}, 1.0, v{T + 1}
          v_rcp_f32 v{T + 1}, v{T + 1}
          s_nop 0
          v_mul_f32 v{T}, v{T}, v{T + 1}
          v_cvt_pk_bf16_f32 v{T}, v{T}, v{T}
          ds_write_b16 v{NO}, v{T}
          s_waitcnt lgkmcnt(0)
          s_barrier''')
    g.stamp('m_gelu', (2,))
    ksplit_out(g, UB, PO, 's13')
    g.stamp('m_t4', (0, 2))
    write_stamps(g)
    g('s_endpgm')


def latem(g):
    L = Lds(MLP_LDS)
    g.vm = []
    g('L_late:')
    g(f's_lshl_b32 s4, s3, 6\nv_add_u32 v{TID}, s4, v0')
    nvoff(g, 8, 12288)
    g(f'''s_and_b32 s15, s14, 1
          s_lshr_b32 s6, s14, 1
          s_lshl_b32 s6, s6, 7
          s_mul_i32 s13, s15, {512 * 12288}
          s_add_u32 s13, s13, s6
          s_add_u32 s13, s13, 4096''')
    g.bits(T + 6, TID, [(3, 6, 64), (0, 2, 16), (2, 1, 8)], T)
    srd(g, S_B, 36, 4096)
    g('s_barrier')
    g.vmop(f'buffer_load_dwordx2 {vr(12, 2)}, v{T + 6}, {S_B}, 0 offen', 'in')
    nload(g, UA, 38, 1024 * 12288, 12288, 's13', 8, (0,), tag='m')
    common_addr(g, L, False)
    g(f's_lshl_b32 s12, s15, 15\ns_lshl_b32 s5, s6, 1\ns_add_u32 s12, s12, s5\ns_add_u32 s12, s12, {MODL}')
    g.vmwait('in')
    silu_image(g, L, 12)
    g(f's_lshl_b32 s4, s15, {10 if P["NAT"] else 7}\nv_add_u32 v9, s4, v{NB}')
    tagmask(g, 10)
    g('s_waitcnt lgkmcnt(0)\ns_barrier')
    g.vmwait(('m', 0))
    transpose(g, UA)
    nsplit(g, UA, L.ACTS, 9)
    tag(g, [T], 10)
    publish32(g, L, 's12', 16384, False)
    g.stamp('l_pub', (0, 1, 2))
    write_stamps(g)
    g('s_endpgm')


def attention(g, mode='main', arg=None):
    KO, VO, QO, VSC, VMAX, OO = 1, 2, 3, 4, 5, 6
    Q0, SP, TMP, T2 = 8, 16, 40, 56
    LA, GA = T2 + 7, T2 + 6
    SLOT = lambda s: 64 + 32 * s
    AC = SLOT(0)
    U = lambda u: 's%d' % (4 + 2 * u)
    U2 = lambda u: 's%d' % (5 + 2 * u)
    S_R, S_CU, S_GA, S_T = 's47', 's68', 's96', 's69'
    S_B4, S_B5, S_O4, S_KV = 's46', 's100', 's101', 's101'
    MX, OBUF, OST = 0, W1L, 16384
    QL, QF = 1024, 3072
    S_ST = 's97'
    NN = (SPL - NMR) * 8
    NUG = P['NUG']
    n4 = min(NN, 1024 - 4 * WPR - 64 * NUG)
    n5 = 1024 - 4 * WPR - n4 - 64 * NUG
    RK = QF + 4
    assert 0 <= n5 <= NN
    base = [0, WPR, 2 * WPR, 3 * WPR, 4 * WPR, 4 * WPR + n4]
    VSLOT = [1, 2, 3, 1, 4, 5] if mode == 'main' else [NUG + u for u in range(NUG)]

    def entry():
        g.vm = []

        g('L_attn:')
        g(f'''s_sub_u32 {S_T}, s2, {NG}
              s_mul_hi_u32 {S_R}, {S_T}, {(1 << 32) // SPL + 1}
              s_mul_i32 {S_CU}, {S_R}, {SPL}
              s_sub_u32 {S_CU}, {S_T}, {S_CU}
              s_add_u32 {S_CU}, {S_CU}, {S_R if P["ROT"] else 0}
              s_sub_u32 {S_T}, {S_CU}, {SPL}
              s_cselect_b32 {S_CU}, {S_CU}, {S_T}
              s_mul_i32 {S_T}, s3, {SPL - NMR}
              s_add_u32 {S_T}, {S_T}, {S_CU}
              s_cmp_lt_u32 {S_CU}, {SPL - NMR}
              s_cselect_b32 {S_T}, {S_T}, 1023
              s_lshl_b32 s98, {S_CU}, 3
              s_add_u32 s98, s98, s3
              s_mul_i32 {S_GA}, {S_R}, {P["PH"]}''')
        for u in range(NU):
            g(f's_add_u32 {U(u)}, {S_GA}, {"s98" if u < (5 if n4 == NN else 4) else S_T}')
            if u:
                g(f's_add_u32 {U(u)}, {U(u)}, {base[u]}')
            g(f's_and_b32 {U(u)}, {U(u)}, 1023\ns_lshl_b32 {U(u)}, {U(u)}, 13\ns_add_u32 {U2(u)}, {U(u)}, 4096')
        g.bits(KO, 0, [(1, 1, 1024), (2, 2, 256), (0, 1, 64), (4, 2, 16)], 8)
        g(f'v_lshlrev_b32 v{VO}, 4, v0')
        g(f's_cmp_lt_u32 {S_T}, {n4}\ns_cselect_b32 {S_O4}, 0, 0x1000000\ns_cselect_b32 {S_B4}, 0, 0xff800000')
        g(f's_cmp_lt_u32 {S_T}, {n5}\ns_cselect_b32 s98, 0, 0x1000000\ns_cselect_b32 {S_B5}, 0, 0xff800000')
        g(f'v_add_u32 v{OO}, {S_O4}, v{KO}\nv_add_u32 v{OO + 1}, s98, v{KO}')
        g('s_waitcnt lgkmcnt(0)')
        g(f's_lshl_b32 {S_T}, {S_R}, 23')
        g(f's_add_u32 s56, s18, {S_T}\ns_addc_u32 s57, s19, 0\ns_mov_b32 s58, 0x800000\ns_mov_b32 s59, 0x20000')
        g(f's_add_u32 s60, s20, {S_T}\ns_addc_u32 s61, s21, 0\ns_mov_b32 s62, 0x800000\ns_mov_b32 s63, 0x20000')

    def load(n, pos):
        i = n & 7
        if n < 48:
            u = n >> 3
            vo = KO if u < 4 else OO + u - 4
            g.vmop(f'buffer_load_dwordx4 {vr(SLOT(u) + 4 * i, 4)}, v{vo}, {S_A}, {U2(u) if i >= 4 else U(u)} offen '
                   f'offset:{((i >> 1) & 1) * 2048 + (i & 1) * 128} nt', pos)
        elif n < 64:
            if n == 48:
                l1, l2 = g.label('L_xv'), g.label('L_xj')
                g(f's_lshl_b32 s98, s3, 14\ns_add_u32 m0, s98, {W1L}\ns_mov_b32 s95, 0x20000')
                g(f's_cmp_lt_u32 {S_CU}, {SPL - NMR}\ns_cbranch_scc1 {l1}')
                g(f's_lshl_b32 {S_T}, s3, 6\nv_add_u32 v{T2 + 1}, {S_T}, v0')
                nvoff(g, OO, 7168, T2 + 1, T2 + 2)
                g(f'v_mov_b32 v{OO + 1}, v{OO}')
                g(f's_mul_i32 {S_T}, {S_R}, {NMR}\ns_add_u32 {S_T}, {S_T}, {S_CU}\ns_sub_u32 {S_T}, {S_T}, {SPL - NMR}')
                g(f's_lshl_b32 {U(4)}, {S_T}, 7\ns_add_u32 {U(5)}, {U(4)}, {512 * 7168}\ns_mov_b32 {U2(4)}, {nstep() * 7168}')
                g(f's_mov_b32 s92, s28\ns_mov_b32 s93, s29\ns_mov_b32 s94, {1024 * 7168}')
                g(f's_branch {l2}\n{l1}:')
                g(f'v_sub_u32 v{T2 + 1}, v{VO}, v{KO}\nv_add_u32 v{OO}, v{OO}, v{T2 + 1}\nv_add_u32 v{OO + 1}, v{OO + 1}, v{T2 + 1}')
                g(f's_mov_b32 {U2(4)}, 1024\ns_mov_b32 s92, s60\ns_mov_b32 s93, s61\ns_mov_b32 s94, s62')
                g(l2 + ':')
            u = 4 + ((n - 48) >> 3)
            if n > 48:
                g('s_add_u32 m0, m0, 1024')
            g(f's_add_u32 {U(u)}, {U(u)}, {U2(4)}' if i else 's_nop 0')
            g.vmop(f'buffer_load_dwordx4 v{OO + u - 4}, s[92:95], {U(u)} offen nt lds', pos)
        else:
            u = (n - 64) >> 3
            g.vmop(f'buffer_load_dwordx4 {vr(SLOT(VSLOT[u]) + 4 * i, 4)}, v{VO}, {S_B}, {U2(u) if i >= 4 else U(u)} offen '
                   f'offset:{(i & 3) * 1024} nt', pos)

    def mailbox():
        g.bits(GA, 0, [(5, 1, MBA_ST), (0, 5, 8)], T2)
        g(f'''s_and_b32 {S_T}, {S_R}, 3
              s_lshl_b32 {S_T}, {S_T}, 3
              s_add_u32 {S_T}, {S_T}, s3
              s_mul_i32 {S_T}, {S_T}, {2 * MBA_ST}
              s_lshr_b32 {S_GA}, {S_R}, 2
              s_mul_i32 {S_GA}, {S_GA}, {SLOTS}
              s_add_u32 {S_GA}, {S_GA}, {S_CU}
              s_lshl_b32 {S_GA}, {S_GA}, 8
              s_add_u32 {S_GA}, {S_GA}, {S_T}
              s_add_u32 {S_GA}, {S_GA}, {MBA}''')

    def setup():
        srd(g, S_WS, 44, WS_SIZE)
        srd(g, S_DBG, 42, 256)
        mailbox()
        g.vmop(epoch_load(T2 + 2), 'ep')
        prefetch_code(g, 'L_attn_body', 2, 8, TMP, 'pf')
        g(f's_and_b32 {S_KV}, {S_R}, 3\ns_lshl_b32 {S_KV}, {S_KV}, 2')
        g.bits(QO, 0, [(0, 3, 256), (3, 1, 64), (4, 2, 16)], 8)
        g.bits(LA, 0, [(0, 4, 64)], 8)
        g(f's_lshl_b32 {S_T}, s3, 3\nv_add_u32 v8, {S_T}, v{LA}\nv_mov_b32 v9, -1\nds_write_b32 v8, v9 offset:{MX + 4}')
        g(f'v_mov_b32 v{T2}, 0\nds_write_b32 v{T2}, v{T2} offset:{QF}\ns_mov_b32 {S_ST}, 0\ns_waitcnt lgkmcnt(0)\ns_barrier')
        g(f'v_mov_b32 v{VSC}, 0x3db504f3\nv_mov_b32 v{VMAX}, 0xff800000')
        g('L_attn_body:')

    def readback():
        g(f's_lshl_b32 {S_T}, s3, 14\ns_add_u32 {S_T}, {S_T}, {W1L}\nv_add_u32 v{T2}, {S_T}, v{VO}')
        for i in range(16):
            g(f'ds_read_b128 {vr(SLOT(4) + 4 * i, 4)}, v{T2} offset:{i * 1024}')

    def lds_units():
        l1, l2 = g.label('L_w1'), g.label('L_w1j')
        g(f's_cmp_ge_u32 {S_CU}, {SPL - NMR}\ns_cbranch_scc1 {l1}')
        g('s_waitcnt lgkmcnt(8)')
        pv(4)
        g('s_waitcnt lgkmcnt(0)')
        pv(5)
        g(f's_branch {l2}\n{l1}:')
        g('s_waitcnt lgkmcnt(8)')
        transpose(g, UC, T2)
        g('s_waitcnt lgkmcnt(0)')
        transpose(g, UC + 1, T2)
        g(l2 + ':')

    def qstep(final=False):
        skip = only_wave(g, P['QW'])
        l1, l3, top = g.label('L_q1'), g.label('L_q3'), g.label('L_qtop')
        if final:
            g(f's_mov_b32 {S_SPIN}, {SPIN}\n{top}:')
        g(f's_cmp_eq_u32 {S_ST}, 2\ns_cbranch_scc1 {skip}')
        if final:
            g(f's_waitcnt vmcnt(0)\ns_sub_u32 {S_SPIN}, {S_SPIN}, 1\ns_cbranch_scc1 {l3}')
        g(f's_cmp_eq_u32 {S_ST}, 0\ns_cbranch_scc1 {l1}')
        check(g, range(TMP, TMP + 16), T2, 0xffff)
        g(f's_cbranch_vccz {l3}')
        if final:
            g(f's_sleep {P["QSL"]}')
        g(l1 + ':')
        g(f's_lshl_b32 {S_T}, {S_R}, 12\ns_add_u32 {S_T}, {S_T}, {QB}\ns_mov_b32 {S_ST}, 1')
        for i in range(4):
            g(f'buffer_load_dwordx4 {vr(TMP + 4 * i, 4)}, v{VO}, {S_WS}, {S_T} offen offset:{1024 * i} sc1')
        g(f's_branch {top if final else skip}')
        g(l3 + ':')
        g(f'v_lshlrev_b32 v{T2}, 3, v0')
        for i in range(8):
            g(f'v_perm_b32 v{Q0 + i}, v{TMP + 2 * i + 1}, v{TMP + 2 * i}, {S_HI}')
        for i in range(4):
            g(f'ds_write_b64 v{T2}, {vr(Q0 + 2 * i, 2)} offset:{QL + 512 * i}')
        g(f'v_mov_b32 v{T2}, 0\nv_mov_b32 v{T2 + 1}, 1\ns_mov_b32 {S_ST}, 2\ns_waitcnt lgkmcnt(0)')
        g(f'ds_write_b32 v{T2}, v{T2 + 1} offset:{QF}')
        g(skip + ':')

    def qget():
        g.stamp('a_qwait')
        if P['NOQ']:
            return
        qstep(final=True)
        lp, ok = g.label('L_qf'), g.label('L_qfok')
        g(f'v_mov_b32 v{T2}, 0\ns_mov_b32 {S_SPIN}, {SPIN * 16}\n{lp}:')
        g(f'ds_read_b32 v{T2 + 1}, v{T2} offset:{QF}\ns_waitcnt lgkmcnt(0)')
        g(f'v_cmp_eq_u32 vcc, 0, v{T2 + 1}\ns_cbranch_vccz {ok}')
        g(f's_sleep 2\ns_sub_u32 {S_SPIN}, {S_SPIN}, 1\ns_cbranch_scc0 {lp}\n{ok}:')
        g(f'ds_read_b128 {vr(Q0, 4)}, v{QO} offset:{QL}\nds_read_b128 {vr(Q0 + 4, 4)}, v{QO} offset:{QL + 128}')
        g('s_waitcnt lgkmcnt(0)')
        g.stamp('a_qseen')

    def qk(u):
        for t in range(4):
            g(f'v_mfma_f32_16x16x32_bf16 {vr(TMP + 4 * t, 4)}, {vr(SLOT(u) + 8 * t, 4)}, {vr(Q0, 4)}, 0')
        for t in range(4):
            g(f'v_mfma_f32_16x16x32_bf16 {vr(TMP + 4 * t, 4)}, {vr(SLOT(u) + 8 * t + 4, 4)}, {vr(Q0 + 4, 4)}, {vr(TMP + 4 * t, 4)}')
        g.nop(5)
        for t in range(4):
            d = TMP + 4 * t
            a, b = T2 + 2 * (t & 1), T2 + 2 * (t & 1) + 1
            g(f'v_add_f32_dpp v{a}, v{d + 1}, v{d} row_ror:8 {DPP}\nv_add_f32_dpp v{b}, v{d + 3}, v{d + 2} row_ror:8 {DPP}')
            round2(g, a)
            if u >= 4:
                sb = S_B4 if u == 4 else S_B5
                g(f'v_fma_f32 v{a}, v{a}, v{VSC}, {sb}\nv_fma_f32 v{b}, v{b}, v{VSC}, {sb}')
            else:
                g(f'v_mul_f32 v{a}, v{a}, v{VSC}\nv_mul_f32 v{b}, v{b}, v{VSC}')
            g(f'v_max3_f32 v{VMAX}, v{VMAX}, v{a}, v{b}\nv_cvt_pk_bf16_f32 v{SP + 4 * u + t}, v{a}, v{b}')

    def red_g(r, t, op):
        for ins in ('v_permlane32_swap_b32', 'v_permlane16_swap_b32'):
            g(f'v_mov_b32 v{t}, v{r}')
            g.nop(2)
            g(f'{ins} v{r}, v{t}\n{op} v{r}, v{r}, v{t}')

    def softmax():
        red_g(VMAX, T2, 'v_max_f32')
        for i in range(0, 32, 2):
            g(f'v_mov_b64 {vr(AC + i, 2)}, 0')
        g(f'v_mov_b32 v{VSC}, 0x3fb8aa3b\nv_mov_b32 v{T2 + 4}, 0')
        g(f'v_cvt_pk_bf16_f32 v{VMAX}, v{VMAX}, v{VMAX}\nv_lshlrev_b32 v{VMAX}, 16, v{VMAX}')
        g(f'v_mul_f32 v{T2 + 5}, v{VMAX}, v{VSC}')

    def probs(u, last=NU - 1):
        for i in range(4 * u, 4 * u + 4):
            p = SP + i
            a, b = T2 + 2 * (i & 1), T2 + 2 * (i & 1) + 1
            unpack2(g, a, p)
            g(f'v_fma_f32 v{a}, v{a}, v{VSC}, -v{T2 + 5}\nv_fma_f32 v{b}, v{b}, v{VSC}, -v{T2 + 5}')
            g(f'v_exp_f32 v{a}, v{a}\nv_exp_f32 v{b}, v{b}')
            g(f'v_add_f32 v{T2 + 4}, v{T2 + 4}, v{a}\nv_add_f32 v{T2 + 4}, v{T2 + 4}, v{b}')
            g(f'v_cvt_pk_bf16_f32 v{p}, v{a}, v{b}')
        if u == last:
            red_g(T2 + 4, T2, 'v_add_f32')
            g(f's_lshl_b32 {S_T}, s3, 3\nv_add_u32 v{T2}, {S_T}, v{LA}\nv_mov_b32 v{T2 + 2}, v{VMAX}\nv_min_u32 v{T2 + 3}, -2, v{T2 + 4}')
            g(f'ds_write_b64 v{T2}, {vr(T2 + 2, 2)} offset:{MX}')
            if mode == 'main':
                g.stamp('a_probs')

    def pv(u):
        s = SLOT(VSLOT[u])
        for w in range(4):
            t = TMP + 8 * (w & 1)
            for p in range(4):
                g(f'v_perm_b32 v{t + p}, v{s + 8 * p + 4 + w}, v{s + 8 * p + w}, {S_LO}')
            for p in range(4):
                g(f'v_perm_b32 v{t + 4 + p}, v{s + 8 * p + 4 + w}, v{s + 8 * p + w}, {S_HI}')
            g(f'v_mfma_f32_16x16x32_bf16 {vr(AC + 8 * w, 4)}, {vr(t, 4)}, {vr(SP + 4 * u, 4)}, {vr(AC + 8 * w, 4)}')
            g('s_nop 0')
            g(f'v_mfma_f32_16x16x32_bf16 {vr(AC + 8 * w + 4, 4)}, {vr(t + 4, 4)}, {vr(SP + 4 * u, 4)}, {vr(AC + 8 * w + 4, 4)}')

    def gather_ml():
        lp, ok = g.label('L_ml'), g.label('L_mlok')
        g(f's_mov_b32 {S_SPIN}, {SPIN * 16}\n{lp}:')
        for i in range(4):
            g(f'ds_read_b128 {vr(TMP + 4 * i, 4)}, v{LA} offset:{MX + 16 * i}')
        g('s_waitcnt lgkmcnt(0)')
        g(f'v_max_u32 v{T2}, v{TMP + 1}, v{TMP + 3}')
        for i in range(5, 16, 4):
            g(f'v_max3_u32 v{T2}, v{T2}, v{TMP + i}, v{TMP + i + 2}')
        g(f'v_cmp_eq_u32 vcc, -1, v{T2}\ns_cbranch_vccz {ok}')
        g(f's_sleep 2\ns_sub_u32 {S_SPIN}, {S_SPIN}, 1\ns_cbranch_scc0 {lp}\n{ok}:')
        g(f'v_max_f32 v{T2 + 2}, v{TMP}, v{TMP + 2}')
        for i in range(4, 16, 4):
            g(f'v_max3_f32 v{T2 + 2}, v{T2 + 2}, v{TMP + i}, v{TMP + i + 2}')

    def stats():
        skip = only_wave(g, P['SW'])
        gather_ml()
        g(f'v_mov_b32 v{T2 + 3}, 0')
        for i in range(0, 16, 2):
            g(f'v_sub_f32 v{TMP + i}, v{TMP + i}, v{T2 + 2}\nv_mul_f32 v{TMP + i}, 0x3fb8aa3b, v{TMP + i}')
        for i in range(0, 16, 2):
            g(f'v_exp_f32 v{TMP + i}, v{TMP + i}')
        g(f's_lshl_b32 {S_T}, {S_R}, 11\ns_lshl_b32 s98, {S_CU}, 3\ns_add_u32 {S_T}, {S_T}, s98\ns_add_u32 {S_T}, {S_T}, {STATS}')
        for i in range(0, 16, 2):
            g(f'v_fmac_f32 v{T2 + 3}, v{TMP + i}, v{TMP + i + 1}')
        g(f'v_lshlrev_b32 v{T2}, 8, v0')
        tagmask(g, T2 + 1)
        tag(g, [T2 + 2, T2 + 3], T2 + 1)
        g.setexec(0xff)
        g(f'buffer_store_dwordx2 {vr(T2 + 2, 2)}, v{T2}, {S_WS}, {S_T} offen sc1')
        g.setexec(-1)
        g(skip + ':')

    def factor():
        gather_ml()
        g(f'v_sub_f32 v{FS}, v{VMAX}, v{T2 + 2}\nv_mul_f32 v{FS}, 0x3fb8aa3b, v{FS}\nv_exp_f32 v{FS}, v{FS}')
        tagmask(g, FS + 1)

    FS = Q0 + 2
    WA, RA = KO, QO

    def epi_addr():
        g(f's_mul_i32 {S_T}, s3, {OST}\ns_add_u32 {S_T}, {S_T}, {OBUF}')
        g.bits(WA, 0, [(4, 2, 128), (0, 4, 16)], T2, S_T)
        g(f's_lshl_b32 {S_T}, s3, 4\ns_add_u32 {S_T}, {S_T}, {OBUF}')
        g.bits(RA, 0, [(1, 3, 528), (4, 2, 128), (0, 1, 8)], T2, S_T)
        g(f'v_add_u32 v{VSC}, {4 * OST}, v{RA}')

    def epilogue():
        g.setexec(rep16(0xff))
        for j in range(8):
            for h in (0, 2):
                g(f'v_pk_mul_f32 {vr(AC + 4 * j + h, 2)}, {vr(AC + 4 * j + h, 2)}, {vr(FS, 2)} op_sel_hi:[1,0]')
            g(f'ds_write_b128 v{WA}, {vr(AC + 4 * j, 4)} offset:{528 * j}')
        g.setexec(-1)
        g('s_waitcnt lgkmcnt(0)\ns_barrier')
        for w in range(8):
            g(f'ds_read_b64 {vr(TMP + 2 * w, 2)}, v{RA if w < 4 else VSC} offset:{OST * (w & 3)}')
        g('s_waitcnt lgkmcnt(4)')
        pk4(g, 'v_pk_add_f32', TMP, TMP, TMP + 4)
        g('s_waitcnt lgkmcnt(0)')
        pk4(g, 'v_pk_add_f32', TMP + 8, TMP + 8, TMP + 12)
        pk4(g, 'v_pk_add_f32', TMP, TMP, TMP + 8)
        g(f'v_pk_add_f32 {vr(TMP, 2)}, {vr(TMP, 2)}, {vr(TMP + 2, 2)}')
        tag(g, [TMP, TMP + 1], FS + 1)
        g(f'buffer_store_dwordx2 {vr(TMP, 2)}, v{GA}, {S_WS}, {S_GA} offen sc1')

    GK, GV, S_GU = 12, 13, 's100'
    if mode == 'g_addr':
        g(f'''s_lshr_b32 {S_R}, s14, 3
              s_and_b32 {S_CU}, s14, 7
              s_lshl_b32 {S_GU}, {S_CU}, 3
              s_add_u32 {S_GU}, {S_GU}, s3
              s_mul_i32 {S_T}, {S_R}, {P["PH"]}
              s_add_u32 {S_GU}, {S_GU}, {S_T}
              s_add_u32 {S_CU}, {S_CU}, {SPL}''')
        g.bits(GK, 0, [(1, 1, 1024), (2, 2, 256), (0, 1, 64), (4, 2, 16)], GV)
        g(f'v_lshlrev_b32 v{GV}, 4, v0')
        return
    if mode == 'g_issue':
        for n in arg:
            i, isk, u = n & 7, n < 8 * NUG, (n >> 3) % NUG
            if i == 0:
                p = 18 if isk else 20
                g(f's_lshl_b32 {S_T}, {S_R}, 23\ns_add_u32 s56, s{p}, {S_T}\ns_addc_u32 s57, s{p + 1}, 0\ns_mov_b32 s58, 0x800000')
                g(f's_add_u32 s101, {S_GU}, {1024 - 64 * (NUG - u)}\ns_and_b32 s101, s101, 1023\ns_lshl_b32 s101, s101, 13\ns_add_u32 {S_T}, s101, 4096')
            off = ((i >> 1) & 1) * 2048 + (i & 1) * 128 if isk else (i & 3) * 1024
            g(f'buffer_load_dwordx4 {vr(SLOT(0) + 4 * n, 4)}, v{GK if isk else GV}, {S_A}, {S_T if i >= 4 else "s101"} offen offset:{off} nt')
        return
    gq = '\n'.join(f'buffer_load_dwordx4 {vr(Q0 + 4 * i, 4)}, v{LA}, {S_WS}, 0 offen offset:{(i >> 1) * 256 + (i & 1) * 16} sc1' for i in range(4))

    def gq_addr():
        g(f's_lshl_b32 {S_T}, {S_R}, 12\ns_add_u32 {S_T}, {S_T}, {QB}')
        g.bits(LA, 0, [(0, 3, 512), (3, 1, 128), (4, 2, 32)], GA, S_T)
    if mode == 'g_q':
        gq_addr()
        g.vmop(gq, 'gq')
        return
    if mode == 'g_compute':
        g.vmwait('gq')
        poll(g, gq, range(Q0, Q0 + 16), T2, 8, preloaded=True, mask=0xffff)
        for i in range(8):
            g(f'v_perm_b32 v{Q0 + i}, v{Q0 + 2 * i + 1}, v{Q0 + 2 * i}, {S_HI}')
        mailbox()
        g.bits(LA, 0, [(0, 4, 64)], T2)
        g(f'v_mov_b32 v{VSC}, 0x3db504f3\nv_mov_b32 v{VMAX}, 0xff800000')
        for u in range(NUG):
            qk(u)
        softmax()
        for u in range(NUG):
            probs(u, NUG - 1)
        epi_addr()
        for u in range(NUG):
            pv(u)
        g('s_waitcnt lgkmcnt(0)\ns_barrier')
        stats()
        factor()
        g('s_nop 0')
        epilogue()
        g('s_barrier')
        return

    entry()
    GS = P['GS']
    order = list(range(96))
    if P['ILV']:
        order = list(range(32, 48))
        for i in range(16):
            order += [2 * i, 2 * i + 1, 48 + i]
        order += list(range(64, 96))
    last = lambda ids: max(order.index(i) for i in ids)
    depth = lambda n: P['DK1'] if n < P['NK1'] else (P['DK2'] if n < 48 else (P['DX'] if n < 64 else P['DV']))
    qsteps = list(range(P['QP0'] - 1, P['QG'] - 1, P['QPS']))
    st = dict(landed=-1, issued=-1, done=0)

    def land(n):
        if n > st['landed']:
            g.vmwait(n)
            st['landed'] = n

    def hint_flag():
        skip = only_wave(g, P['SW'])
        arrived(g, Q0 + 1, S_KV, C_A, 2 * SPL)
        g(skip + ':')
        st['hint'] = True

    W = [('q', -1, qget)]
    W += [('qk%d' % u, last(range(8 * u, 8 * u + 8)), lambda u=u: qk(u)) for u in ([0, 1, 4, 5, 2, 3] if P['ILV'] else range(NU))]
    W += [('sm', -1, softmax)]
    W += [('pr%d' % u, -1, lambda u=u: probs(u)) for u in range(NU)]
    W += [('st', -1, stats), ('rb', 63, lambda: (readback(), epi_addr(), lds_units()))]
    for u in range(4):
        if u == 3:
            W += [('fs', -1, factor)]
        W += [('pv%d' % u, 64 + 8 * u + 7, lambda u=u: ((g.stamp('a_landed') if u == 3 else None), pv(u)))]
    names = [w[0] for w in W]

    def work(budget, need=None):
        while st['done'] < len(W):
            forced = need is not None and st['done'] <= names.index(need)
            name, ld, act = W[st['done']]
            if not forced and (budget <= 0 or st['landed'] < ld or st['issued'] < P['QG'] - 1):
                return
            assert ld <= st['issued']
            land(ld)
            act()
            st['done'] += 1
            budget -= 1

    for n in range(0, 96, GS):
        d = depth(n)
        if n + GS - 1 >= d:
            land(n + GS - 1 - d)
        if n >= 64 and n % 8 == 0:
            work(0, ['qk1', 'qk2', 'qk3', 'pv0'][(n - 64) >> 3])
        for i in range(GS):
            load(order[n + i], n + i)
        m = n + GS - 1
        if n == 0:
            setup()
        st['issued'] = m
        if m == P['STPOS']:
            g.stamp('a_pos')
        if m == 12:
            g.vmwait('ep')
            epoch_tag(g, T2 + 2)
        if m in qsteps:
            if m != qsteps[0]:
                land(m - P['QPS'] + 1)
            qstep()
        if m == P['HPOS']:
            work(0, 'st')
            skip = only_wave(g, P['SW'])
            arrive(g, Q0 + 1, S_KV, C_A)
            g(skip + ':')
        if m == P['RPOS']:
            skip = only_wave(g, P['SW'])
            g(f's_cmp_ge_u32 {S_CU}, {SPL - NMR}\ns_cbranch_scc1 {skip}')
            arrive(g, Q0 + 4, 0, C_R)
            g(skip + ':')
        if st['landed'] > P['HPOS'] and not st.get('hint'):
            hint_flag()
        work(GS)
    if not st.get('hint'):
        work(0, 'pv2')
        land(P['HPOS'] + 1)
        hint_flag()
    work(0, 'fs')
    land(95)
    skip = only_wave(g, P['SW'])
    g(f'v_mov_b32 v{Q0 + 5}, 0\ns_mov_b64 exec, 1\nds_write_b32 v{Q0 + 5}, v{Q0 + 4} offset:{RK}\ns_mov_b64 exec, -1')
    g(skip + ':')
    work(0, 'pv3')

    epilogue()
    g.stamp('a_pub', (0, 1, 2))
    g(f's_mul_i32 s14, {S_R}, {NMR}\ns_add_u32 s14, s14, {S_CU}\ns_sub_u32 s14, s14, {SPL - NMR}')
    g(f's_cmp_ge_u32 {S_CU}, {SPL - NMR}\ns_cbranch_scc1 L_mlp')
    g(f'v_mov_b32 v8, 0\nds_read_b32 v8, v8 offset:{RK}\ns_waitcnt lgkmcnt(0)\nv_readfirstlane_b32 s14, v8')
    g('s_cmp_lt_u32 s14, 128\ns_cbranch_scc1 L_late')
    write_stamps(g)
    g('s_endpgm')


def build(stamps=False):
    g = G(stamps)
    ref = open(REF).read()
    g.L.append(ref[:ref.index('; Override launch')].rstrip())
    g.L.append('; @launch grid=(%d,1,1) block=(512,1,1) lds=%d' % (NWG, LDS_TOTAL))
    g.L.append('.amdgcn_target "amdgcn-amd-amdhsa--gfx950"\n.text\n.globl %s_kernel\n.p2align 8\n.type %s_kernel,@function' % (NAME, NAME))
    g.L.append('%s_kernel:' % NAME)
    g.stamp('start', (0, 1, 2))
    g(f's_cmp_ge_u32 s2, {NWG}\ns_cbranch_scc1 L_exit')
    g(f'''s_load_dwordx16 s[16:31], s[0:1], 0
          s_load_dwordx8 s[32:39], s[0:1], 64
          s_load_dwordx4 s[40:43], s[0:1], 96
          s_load_dwordx2 s[44:45], s[0:1], 112
          v_lshrrev_b32 v1, 6, v0
          v_and_b32 v0, 63, v0
          v_readfirstlane_b32 s3, v1
          s_mov_b32 {S_LO}, 0x05040100
          s_mov_b32 {S_HI}, 0x07060302
          s_mov_b32 {S_MASK}, 0xffff0000''')
    g(f's_cmp_lt_u32 s2, {NG}\ns_cbranch_scc1 L_proj')
    n0 = g.nst
    attention(g)
    n1 = g.nst
    latem(g)
    g.nst = n1 + (1 if g.stamps else 0)
    mlp(g)
    g.nst = n0
    proj(g)
    g('L_exit:\ns_endpgm')
    g('.fill 2048, 4, 0xbf800000')
    g.L.append('''.section .rodata,"a"
.p2align 6
.amdhsa_kernel %s_kernel
  .amdhsa_next_free_vgpr 256
  .amdhsa_next_free_sgpr 102
  .amdhsa_accum_offset 256
  .amdhsa_group_segment_fixed_size 0
  .amdhsa_kernarg_size 120
  .amdhsa_user_sgpr_count 2
  .amdhsa_user_sgpr_kernarg_segment_ptr 1
  .amdhsa_system_sgpr_workgroup_id_x 1
.end_amdhsa_kernel''' % NAME)
    return '\n'.join(g.L) + '\n'


if __name__ == '__main__':
    out = sys.argv[1]
    for a in sys.argv[2:]:
        if '=' in a:
            k, v = a.split('=')
            assert k in P, k
            P[k] = int(v)
    open(out, 'w').write(build(stamps='--stamps' in sys.argv))
```

```python
import sys
NAME = 'adaLN_cond__gqa_block_cached__mixer_channel_mlp__decode'
REF = 'cdna_kernels/%s.s.ref' % NAME

NG = 64
SPL = 24
NMR = 7
NA = 8 * SPL
NWG = NG + NA
WPR = SPL * 8
NU = 6

QB, STATS, X1, MODP, MODL = 0x8000, 0x10000, 0x18000, 0x20000, 0x30000
MBA, MBB, MBC = 0x100000, 0x200000, 0x300000
SLOTS = 32
MBA_ST = 2 * SLOTS * 256
WS_SIZE = 0x400000
SPIN = 1 << 18
C_A, C_R = 0, 64
TMASK = 0xff

P = dict(MSL=4, LSL=8, QSL=8, ASL=2, GS=1, DK1=8, NK1=28, DK2=8, DV=12, QP0=40, QPS=8, SLEEP=0, PH=64, QG=62, DX=8, TLB=0, W2TH=1, NAT=1, NOQ=0, QW=7, SW=6, GE=0, NUG=0, RPOS=94, ILV=0, ROT=1, MW=4, HPOS=76, ST=0, DBGST=-1, PADTO=0, PADWG=-1, STPOS=-1)

S_WS, S_DBG, S_A, S_B = 's[48:51]', 's[52:55]', 's[56:59]', 's[60:63]'
S_LO, S_HI, S_MASK, S_SPIN = 's64', 's65', 's66', 's67'
S_TAG, S_EPO, S_T16 = 's26', 's27', 's1'
DPP = 'row_mask:0xf bank_mask:0xf'


def vr(a, n):
    return 'v[%d:%d]' % (a, a + n - 1)


class G:
    def __init__(self, stamps=False):
        self.vm = []
        self.L = []
        self.stamps = stamps
        self.nlabel = 0
        self.nst = 0

    def __call__(self, s):
        for line in s.strip('\n').split('\n'):
            line = line.strip()
            if line:
                self.L.append(line if line.endswith(':') else '    ' + line)

    def label(self, p='L'):
        self.nlabel += 1
        return '%s_%d' % (p, self.nlabel)

    def stamp(self, name, sets=(0,)):
        if self.stamps and P['ST'] in sets:
            k = self.nst
            self.nst += 1
            assert k < 13 and (k < 11 or name[0] in 'gr'), name
            self('s_memrealtime s[%d:%d] ; stamp %d %s' % (70 + 2 * k, 71 + 2 * k, k, name))

    def vmop(self, text, tag):
        for line in text.strip().split('\n'):
            self(line)
            self.vm.append(tag)

    def vmwait(self, *tags):
        idx = [i for i, t in enumerate(self.vm) if t in tags]
        if not idx:
            return
        n = len(self.vm) - 1 - idx[-1]
        assert n <= 63
        self('s_waitcnt vmcnt(%d)' % n)
        self.vm = self.vm[idx[-1] + 1:]

    def nop(self, n):
        while n > 0:
            k = min(n, 16)
            self('s_nop %d' % (k - 1))
            n -= k

    def bits(self, dst, src, fields, tmp, add=None):
        first = True
        for (lo, n, mul) in fields:
            t = dst if first else tmp
            if lo == 0:
                self(f'v_and_b32 v{t}, {(1 << n) - 1}, v{src}')
            else:
                self(f'v_bfe_u32 v{t}, v{src}, {lo}, {n}')
            pw = mul & (mul - 1) == 0
            sh = mul.bit_length() - 1
            if first:
                if mul != 1:
                    self(f'v_lshlrev_b32 v{dst}, {sh}, v{dst}' if pw else f'v_mul_u32_u24 v{dst}, {mul}, v{dst}')
            elif mul == 1:
                self(f'v_add_u32 v{dst}, v{dst}, v{tmp}')
            elif pw:
                self(f'v_lshl_add_u32 v{dst}, v{tmp}, {sh}, v{dst}')
            else:
                self(f'v_mul_u32_u24 v{tmp}, {mul}, v{tmp}\nv_add_u32 v{dst}, v{dst}, v{tmp}')
            first = False
        if add not in (None, 0):
            self(f'v_add_u32 v{dst}, {add}, v{dst}')

    def setexec(self, m):
        if m == -1:
            self('s_mov_b64 exec, -1')
        elif m < (1 << 31):
            self('s_mov_b64 exec, 0x%x' % m)
        else:
            self('s_mov_b32 exec_lo, 0x%x\ns_mov_b32 exec_hi, 0x%x' % (m & 0xffffffff, m >> 32))


def rep16(m):
    return m * 0x0001000100010001


def check(g, regs, tmp, mask=TMASK):
    regs = list(regs)
    g(f'v_bitop3_b32 v{tmp}, v{regs[0]}, v{regs[1]}, {S_EPO} bitop3:0x7e')
    for r in regs[2:]:
        g(f'v_bitop3_b32 v{tmp}, v{tmp}, v{r}, {S_EPO} bitop3:0xf6')
    if mask == 0xffff:
        g(f'v_cmp_ne_u16 vcc, 0, v{tmp}')
        return
    if mask != -1:
        g(f'v_and_b32 v{tmp}, {mask}, v{tmp}')
    g(f'v_cmp_ne_u32 vcc, 0, v{tmp}')


def tagmask(g, vm):
    g(f'v_mov_b32 v{vm}, 0x{0xffffffff ^ TMASK:x}')


def tag(g, regs, vm):
    for r in regs:
        g(f'v_and_or_b32 v{r}, v{r}, v{vm}, {S_TAG}')


def epoch_load(reg):
    return f'buffer_load_dword v{reg}, off, {S_WS}, 0 sc1'


def epoch_tag(g, reg):
    g(f'''v_readfirstlane_b32 {S_EPO}, v{reg}
          s_mul_i32 {S_TAG}, {S_EPO}, 0x9e3779b1
          s_lshr_b32 {S_TAG}, {S_TAG}, 12
          s_or_b32 {S_TAG}, {S_TAG}, 1
          s_add_u32 {S_EPO}, {S_EPO}, {S_TAG}
          s_and_b32 {S_TAG}, {S_EPO}, {TMASK}
          s_and_b32 {S_T16}, {S_EPO}, 0xffff''')


def poll(g, loads, regs, tmp, sleep=0, preloaded=False, mask=TMASK):
    lp, done, chk = g.label('L_poll'), g.label('L_ok'), g.label('L_chk')
    g(f's_mov_b32 {S_SPIN}, {SPIN}')
    if preloaded:
        g(f's_branch {chk}')
    g(lp + ':')
    g(loads)
    g('s_waitcnt vmcnt(0)')
    if preloaded:
        g(chk + ':')
    check(g, regs, tmp, mask)
    g(f's_cbranch_vccz {done}')
    if sleep:
        g(f's_sleep {sleep}')
    g(f's_sub_u32 {S_SPIN}, {S_SPIN}, 1\ns_cbranch_scc0 {lp}')
    g(done + ':')


def fread(reg, soff, off):
    return f'buffer_load_dword v{reg}, off, {S_DBG}, {soff} offset:{off + 128} sc1'


def fpoll(g, reg, soff, off, sleep, preloaded=False):
    lp, done, chk = g.label('L_fpoll'), g.label('L_fok'), g.label('L_fchk')
    g(f's_mov_b32 {S_SPIN}, {SPIN}')
    if preloaded:
        g(f's_branch {chk}')
    g(lp + ':')
    g(fread(reg, soff, off) + '\ns_waitcnt vmcnt(0)')
    if preloaded:
        g(chk + ':')
    g(f'v_cmp_eq_u32 vcc, 0, v{reg}\ns_cbranch_vccz {done}')
    if sleep:
        g(f's_sleep {sleep}')
    g(f's_sub_u32 {S_SPIN}, {S_SPIN}, 1\ns_cbranch_scc0 {lp}')
    g(done + ':')


def fwait(g, reg, soff, off, sleep):
    skip = only_wave(g, 0)
    fpoll(g, reg, soff, off, sleep)
    g(skip + ':')
    g('s_barrier')


def arrive(g, reg, soff, off):
    g(f'v_mov_b32 v{reg}, 1\ns_mov_b64 exec, 1\nbuffer_atomic_add v{reg}, off, {S_DBG}, {soff} offset:{off} sc0 sc1\ns_mov_b64 exec, -1')


def arrived(g, reg, soff, off, n):
    skip = g.label('L_notlast')
    g(f'v_readfirstlane_b32 s99, v{reg}\ns_cmp_lg_u32 s99, {n - 1}\ns_cbranch_scc1 {skip}')
    g(f's_mov_b64 exec, 1\nbuffer_store_dword v{reg}, off, {S_DBG}, {soff} offset:{off + 128} sc1\ns_mov_b64 exec, -1')
    g(skip + ':')


def srd(g, s, lo, size):
    base = int(s[2:s.index(':')])
    g(f's_mov_b32 s{base}, s{lo}\ns_mov_b32 s{base + 1}, s{lo + 1}\ns_mov_b32 s{base + 2}, 0x{size:x}\ns_mov_b32 s{base + 3}, 0x20000')


def only_wave(g, w):
    skip = g.label('L_skip')
    g(f's_cmp_lg_u32 s3, {w}\ns_cbranch_scc1 {skip}')
    return skip


def write_stamps(g):
    if not g.stamps:
        return
    g('s_waitcnt lgkmcnt(0)')
    skip = only_wave(g, 0)
    g('s_mov_b64 exec, 1')
    if P['DBGST'] >= 0:
        g(f's_cmp_lg_u32 s2, {P["DBGST"]}\ns_cbranch_scc1 {skip}')
        for k in range(1, min(g.nst, 12)):
            g(f's_sub_u32 s4, s{70 + 2 * k}, s70\nv_mov_b32 v2, s4')
            g(f'buffer_store_dword v2, off, {S_DBG}, 0 offset:{16 + 4 * k}')
        g(skip + ':')
        return
    g('s_lshl_b32 s4, s2, 8\ns_add_u32 s4, s44, s4\ns_addc_u32 s5, s45, 0')
    g('s_add_u32 s4, s4, %d\ns_addc_u32 s5, s5, 0' % (255 << 20))
    g('v_mov_b32 v1, 0')
    for k in range(g.nst):
        g(f'v_mov_b32 v2, s{70 + 2 * k}\nv_mov_b32 v3, s{71 + 2 * k}')
        g(f'global_store_dwordx2 v1, v[2:3], s[4:5] offset:{8 * k}')
        g('s_nop 1')
    g(skip + ':')


def prefetch_code(g, label, nkb8, vtmp, vdst, tag=None):
    pc = g.label('L_pc')
    g('s_getpc_b64 s[98:99]')
    if label:
        g(f'{pc}:\ns_add_u32 s98, s98, {label}-{pc}\ns_addc_u32 s99, s99, 0')
    g('s_and_b32 s98, s98, 0xffffff80')
    g(f's_lshl_b32 s97, s3, 10\nv_lshl_add_u32 v{vtmp}, v0, 4, s97')
    for i in range(nkb8):
        if i:
            g(f'v_add_u32 v{vtmp}, 8192, v{vtmp}')
        t = f'global_load_dwordx4 {vr(vdst, 4)}, v{vtmp}, s[98:99]'
        g.vmop(t, tag) if tag else g(t)


BLK = lambda i: 64 + 32 * i
UA, UB, UC = 0, 2, 4
ACC = 32
KW, NB, NW, NR, NO, KB, TID = 1, 2, 3, 4, 5, 6, 7
T = 24


class Lds:
    def __init__(self, base):
        self.ACTS, self.ACTH, self.RED = base, base + 4352, base + 8704
        self.OUTV = base + 17408
        self.PART = base + 17664
        self.STAT = base + 18688
        self.END = base + 19200


ABS = 2048 + 128


def nstep():
    return 1 if P['NAT'] else 64


def nvoff(g, dst, rs, tid=TID, tmp=T + 7):
    g.bits(dst, tid, [(3, 6, rs * 8 if P['NAT'] else rs), (0, 3, 16)], tmp)


def nload(g, unit, ptr, size, rs, s_col, voff, kbs=(0, 1), tag=None):
    srd(g, S_A, ptr, size)
    for kb in kbs:
        g(f's_add_u32 s4, {s_col}, {kb * 512 * rs}')
        for t in range(8):
            g.vmop(f'buffer_load_dwordx4 {vr(BLK(unit + kb) + 4 * t, 4)}, v{voff}, {S_A}, s4 offen nt', (tag, kb))
            if t < 7:
                g(f's_add_u32 s4, s4, {nstep() * rs}')


def kload(g, unit, ptr, size, s_idx, voff, rowf, tag):
    srd(g, S_A, ptr, size)
    g(f's_lshl_b32 s5, {s_idx}, 17')
    for kb in range(2):
        for t in range(8):
            g(f's_add_u32 s4, s5, {rowf(kb, t) * 2048}')
            g.vmop(f'buffer_load_dwordx4 {vr(BLK(unit + kb) + 4 * t, 4)}, v{voff}, {S_A}, s4 offen nt', (tag, kb))


def transpose(g, blk, T=T):
    b = BLK(blk)
    for p in range(4):
        a, c = b + 8 * p + p, b + 8 * p + 4 + p
        g(f'v_perm_b32 v{T}, v{c}, v{a}, {S_LO}\nv_perm_b32 v{c}, v{c}, v{a}, {S_HI}\nv_mov_b32 v{a}, v{T}')
    for p in range(4):
        for w in range(p + 1, 4):
            xa, xb = b + 8 * p + w, b + 8 * p + 4 + w
            ya, yb = b + 8 * w + p, b + 8 * w + 4 + p
            g(f'v_perm_b32 v{T}, v{xb}, v{xa}, {S_LO}\nv_perm_b32 v{T + 1}, v{xb}, v{xa}, {S_HI}')
            g(f'v_perm_b32 v{xa}, v{yb}, v{ya}, {S_LO}\nv_perm_b32 v{xb}, v{yb}, v{ya}, {S_HI}')
            g(f'v_mov_b32 v{ya}, v{T}\nv_mov_b32 v{yb}, v{T + 1}')


def mfmas(g, unit, b0, b1):
    for kb, bop in ((0, b0), (1, b1)):
        if kb == 1:
            g('s_waitcnt lgkmcnt(0)')
        for j in range(8):
            d = vr(ACC + 4 * j, 4)
            g(f'v_mfma_f32_16x16x32_bf16 {d}, {vr(BLK(unit + kb) + 4 * j, 4)}, {vr(bop, 4)}, {d if kb else 0}')


def common_addr(g, L, kperm):
    K0B = T + 6
    g(f's_lshl_b32 s4, s3, 6\nv_add_u32 v{TID}, s4, v0')
    g.bits(K0B, TID, [(3, 6, 64), (0, 2, 16), (2, 1, 8)], T)
    if P['NAT']:
        g.bits(KW, K0B, [(11, 1, ABS), (0, 11, 1)], T)
        g.bits(NB, TID, [(0, 1, ABS), (6, 3, 128), (4, 2, 32), (1, 1, 16)], T)
    else:
        g.bits(KW, K0B, [(11, 1, ABS), (4, 3, 256), (10, 1, 128), (1, 3, 16), (7, 3, 2)], T)
        g.bits(NB, TID, [(0, 1, ABS), (6, 3, 256), (4, 2, 32), (1, 1, 16)], T)
    g.bits(NW, TID, [(6, 3, 1088), (1, 1, 544), (0, 1, 256), (2, 2, 32), (4, 1, 16)], T, L.RED)
    g.bits(NR, TID, [(0, 2, 544), (2, 7, 4)], T, L.RED)
    if kperm:
        g.bits(NO, TID, [(8, 1, 128), (4, 1, 64), (5, 1, 32), (7, 1, 16), (2, 2, 4), (6, 1, 2)], T, L.OUTV)
    else:
        g.bits(NO, TID, [(8, 1, 128), (2, 3, 16), (5, 2, 4), (7, 1, 2)], T, L.OUTV)
    g.bits(KB, TID, [(0, 1, 128), (4, 2, 16)], T, L.OUTV)


def nsplit(g, unit, act, half=None):
    if half is None:
        g(f'ds_read_b128 {vr(T, 4)}, v{NB} offset:{act}\nds_read_b128 {vr(T + 4, 4)}, v{NB} offset:{act + (1024 if P["NAT"] else 128)}')
        g('s_waitcnt lgkmcnt(1)')
        mfmas(g, unit, T, T + 4)
    else:
        g(f'ds_read_b128 {vr(T, 4)}, v{half} offset:{act}\ns_waitcnt lgkmcnt(0)')
        for j in range(8):
            g(f'v_mfma_f32_16x16x32_bf16 {vr(ACC + 4 * j, 4)}, {vr(BLK(unit) + 4 * j, 4)}, {vr(T, 4)}, 0')
    for dd in range(1, 4):
        g.setexec(rep16(0xf << (4 * dd)))
        if dd != 2:
            g.nop(2)
        for i in range(4):
            g(f'v_mov_b64 {vr(ACC + 2 * i, 2)}, {vr(ACC + 8 * dd + 2 * i, 2)}')
    g.setexec(0xcccccccc33333333)
    g(f'ds_write_b128 v{NW}, {vr(ACC, 4)}\nds_write_b128 v{NW}, {vr(ACC + 4, 4)} offset:128')
    g.setexec(-1)
    g('s_waitcnt lgkmcnt(0)\ns_barrier')
    for k in range(4):
        g(f'ds_read_b32 v{T + k}, v{NR} offset:{k * 4 * 544}')
    g('s_waitcnt lgkmcnt(2)')
    g(f'v_add_f32 v{T}, v{T}, v{T + 1}')
    g('s_waitcnt lgkmcnt(0)')
    g(f'v_add_f32 v{T + 2}, v{T + 2}, v{T + 3}\nv_add_f32 v{T}, v{T}, v{T + 2}')
    g.nop(2)
    g(f'v_add_f32_dpp v{T}, v{T}, v{T} quad_perm:[1,0,3,2] {DPP}')
    g.nop(2)
    g(f'v_add_f32_dpp v{T}, v{T}, v{T} quad_perm:[2,3,0,1] {DPP}')


def actwrite(g, p, act):
    if P['NAT']:
        g(f'ds_write_b64 v{KW}, {vr(p, 2)} offset:{act}')
        return
    g(f'ds_write_b16 v{KW}, v{p} offset:{act}\nds_write_b16_d16_hi v{KW}, v{p} offset:{act + 16}')
    g(f'ds_write_b16 v{KW}, v{p + 1} offset:{act + 32}\nds_write_b16_d16_hi v{KW}, v{p + 1} offset:{act + 48}')


def unpack2(g, d, s):
    g(f'v_lshlrev_b32 v{d}, 16, v{s}\nv_and_b32 v{d + 1}, {S_MASK}, v{s}')


def unpack(g, d, s):
    unpack2(g, d, s)
    unpack2(g, d + 2, s + 1)


def pack(g, t, d):
    g(f'v_cvt_pk_bf16_f32 v{t}, v{d}, v{d + 1}\nv_cvt_pk_bf16_f32 v{t + 1}, v{d + 2}, v{d + 3}')


def round4(g, d, t):
    pack(g, t, d)
    unpack(g, d, t)


def round2(g, a):
    g(f'v_cvt_pk_bf16_f32 v{a + 1}, v{a}, v{a + 1}')
    unpack2(g, a, a + 1)


def pk4(g, op, d, a, b):
    g(f'{op} {vr(d, 2)}, {vr(a, 2)}, {vr(b, 2)}\n{op} {vr(d + 2, 2)}, {vr(a + 2, 2)}, {vr(b + 2, 2)}')


def layernorm(g, x, sw, sr, off, last_packed=False):
    a, b = T + 4, T + 5
    g(f'v_add_f32 v{a}, v{x}, v{x + 1}\nv_mul_f32 v{b}, v{x}, v{x}')
    g(f'v_add_f32 v{T}, v{x + 2}, v{x + 3}\nv_fmac_f32 v{b}, v{x + 1}, v{x + 1}')
    g(f'v_add_f32 v{a}, v{a}, v{T}\nv_fmac_f32 v{b}, v{x + 2}, v{x + 2}\nv_fmac_f32 v{b}, v{x + 3}, v{x + 3}')
    for i, ctl in enumerate(['row_ror:8 ' + DPP, 'row_ror:4 ' + DPP, 'row_ror:2 ' + DPP, 'row_ror:1 ' + DPP,
                             'row_bcast:15 row_mask:0xa bank_mask:0xf', 'row_bcast:31 row_mask:0xc bank_mask:0xf']):
        if i:
            g('s_nop 0')
        g(f'v_add_f32_dpp v{a}, v{a}, v{a} {ctl}')
        if i == 0:
            g('s_nop 0')
        g(f'v_add_f32_dpp v{b}, v{b}, v{b} {ctl}')
    g.setexec(1 << 63)
    g(f'ds_write_b64 v{sw}, {vr(a, 2)} offset:{off}')
    g.setexec(-1)
    g('s_waitcnt lgkmcnt(0)\ns_barrier')
    g(f'ds_read_b128 {vr(T, 4)}, v{sr} offset:{off}\nds_read_b128 {vr(T + 4, 4)}, v{sr} offset:{off + 16}')
    g('s_waitcnt lgkmcnt(0)')
    pk4(g, 'v_pk_add_f32', T, T, T + 4)
    g(f'v_pk_add_f32 {vr(a, 2)}, {vr(T, 2)}, {vr(T + 2, 2)}')
    g(f'v_mul_f32 v{a}, 0x3a800000, v{a}\nv_mul_f32 v{b}, 0x3a800000, v{b}')
    g(f'v_fma_f32 v{b}, -v{a}, v{a}, v{b}\nv_max_f32 v{b}, 0, v{b}')
    round2(g, a)
    g(f'v_add_f32 v{b}, 0x3727c5ac, v{b}')
    g(f'v_cvt_pk_bf16_f32 v{b}, v{b}, v{b}\nv_lshlrev_b32 v{b}, 16, v{b}')
    g(f'v_sqrt_f32 v{b}, v{b}')
    for i in range(4):
        g(f'v_sub_f32 v{x + i}, v{x + i}, v{a}')
    g(f'v_cvt_pk_bf16_f32 v{b}, v{b}, v{b}\nv_lshlrev_b32 v{b}, 16, v{b}')
    g(f'v_rcp_f32 v{b}, v{b}')
    round4(g, x, T + 6)
    for i in range(4):
        g(f'v_mul_f32 v{x + i}, v{x + i}, v{b}')
    if last_packed:
        pack(g, T + 6, x)
    else:
        round4(g, x, T + 6)


def ksplit_out(g, unit, po, mb):
    g(f'ds_read_b128 {vr(T, 4)}, v{KB}\nds_read_b128 {vr(T + 4, 4)}, v{KB} offset:64')
    g('s_waitcnt lgkmcnt(1)')
    mfmas(g, unit, T, T + 4)
    tagmask(g, T)
    for j in range(1, 8):
        g.setexec(rep16(3 << (2 * j)))
        g(f'v_mov_b64 {vr(ACC, 2)}, {vr(ACC + 4 * j, 2)}\nv_mov_b64 {vr(ACC + 2, 2)}, {vr(ACC + 4 * j + 2, 2)}')
    g.setexec(-1)
    tag(g, range(ACC, ACC + 4), T)
    g(f'buffer_store_dwordx4 {vr(ACC, 4)}, v{po}, {S_WS}, {mb} offen sc1')


def publish32(g, L, s_off, bstride, exact):
    g(f'v_subrev_u32 v{T + 1}, {L.OUTV}, v{NO}\nv_lshlrev_b32 v{T + 1}, 1, v{T + 1}\nds_write_b32 v{T + 1}, v{T} offset:{L.PART}')
    g('s_waitcnt lgkmcnt(0)\ns_barrier')
    skip = only_wave(g, 0)
    if exact:
        g(f'v_lshlrev_b32 v{T + 4}, 3, v0\nds_read_b64 {vr(T + 6, 2)}, v{T + 4} offset:{L.PART}')
        g.bits(T + 5, 0, [(5, 1, bstride), (0, 5, 16)], T + 4)
        g(f'v_mov_b32 v{T + 1}, {S_EPO}\nv_mov_b32 v{T + 3}, {S_EPO}\ns_waitcnt lgkmcnt(0)')
        g(f'v_mov_b32 v{T}, v{T + 6}\nv_mov_b32 v{T + 2}, v{T + 7}')
    else:
        g(f'v_lshlrev_b32 v{T + 4}, 4, v0\nds_read_b128 {vr(T, 4)}, v{T + 4} offset:{L.PART}')
        g.bits(T + 5, 0, [(4, 1, bstride), (0, 4, 16)], T + 6)
        g('s_waitcnt lgkmcnt(0)\ns_mov_b32 exec_hi, 0')
    g(f'buffer_store_dwordx4 {vr(T, 4)}, v{T + 5}, {S_WS}, {s_off} offen sc1')
    g.setexec(-1)
    g('s_nop 0')
    g(skip + ':')


def silu_image(g, L, src):
    unpack(g, ACC, src)
    for i in range(4):
        g(f'v_mul_f32 v{T + i}, 0xbfb8aa3b, v{ACC + i}')
    for i in range(4):
        g(f'v_exp_f32 v{T + i}, v{T + i}')
    for i in range(4):
        g(f'v_add_f32 v{T + i}, 1.0, v{T + i}')
    for i in range(4):
        g(f'v_rcp_f32 v{T + i}, v{T + i}')
    for i in range(4):
        g(f'v_mul_f32 v{T + i}, v{T + i}, v{ACC + i}')
    pack(g, T + 4, T)
    actwrite(g, T + 4, L.ACTS)


def proj(g):
    L = Lds(8448)
    Y, SB = 8, 12
    PO, RO, RL, OUTO = 8, 9, 10, 11
    WG, AO, AO3, OW = 12, 17, 18, 16
    WQO, WMO, SW, SR = 17, 18, 19, 23
    RX, RGA, RGB, RB2 = 20, 21, 22, 23
    JC, ODD = 's14', 's15'
    g.vm = []

    def gate(part):
        skip = only_wave(g, 0)
        g(f's_mov_b32 s4, {MODL + part * 4096}\ns_mov_b32 s5, {MODL + part * 4096 + 32768}')
        poll(g, f'buffer_load_dwordx2 {vr(ACC + 18, 2)}, v{RGA}, {S_WS}, s4 offen sc1\n'
                f'buffer_load_dwordx2 {vr(ACC + 20, 2)}, v{RGA}, {S_WS}, s5 offen sc1', range(ACC + 18, ACC + 22), T)
        g(f'v_pk_add_f32 {vr(ACC + 18, 2)}, {vr(ACC + 18, 2)}, {vr(ACC + 20, 2)}')
        round2(g, ACC + 18)
        g(skip + ':')

    def reduce(mb, nprod):
        if nprod < 64:
            g(f'v_mov_b32 v{T}, 0')
            skip = g.label('L_nored')
            g(f's_cmp_ge_u32 s3, {nprod // 8}\ns_cbranch_scc1 {skip}')
        poll(g, f'buffer_load_dwordx4 {vr(T, 4)}, v{RO}, {S_WS}, {mb} offen sc1', range(T, T + 4), T + 4)
        g.stamp('red_polled', (1,))
        g(f'v_permlane32_swap_b32 v{T}, v{T + 2}\nv_permlane32_swap_b32 v{T + 1}, v{T + 3}')
        g(f'v_add_f32 v{T}, v{T}, v{T + 2}\nv_add_f32 v{T + 1}, v{T + 1}, v{T + 3}')
        g.nop(2)
        g(f'v_permlane16_swap_b32 v{T}, v{T + 1}\nv_add_f32 v{T}, v{T}, v{T + 1}')
        g.nop(2)
        g(f'v_add_f32_dpp v{T}, v{T}, v{T} row_ror:8 {DPP}')
        if nprod < 64:
            g(skip + ':')
        g(f'ds_write_b32 v{RL}, v{T}')
        g('s_waitcnt lgkmcnt(0)\ns_barrier')
        skip = only_wave(g, 0)
        g(f'v_and_b32 v{T + 2}, 15, v0\nv_lshlrev_b32 v{T + 2}, 3, v{T + 2}')
        for w in range(8):
            g(f'ds_read_b64 {vr(ACC + 2 * w, 2)}, v{T + 2} offset:{L.PART + 128 * w}')
        return skip

    def reduce_sum():
        g('s_waitcnt lgkmcnt(4)')
        pk4(g, 'v_pk_add_f32', ACC, ACC, ACC + 4)
        g('s_waitcnt lgkmcnt(0)')
        pk4(g, 'v_pk_add_f32', ACC + 8, ACC + 8, ACC + 12)
        pk4(g, 'v_pk_add_f32', ACC, ACC, ACC + 8)
        g(f'v_pk_add_f32 {vr(T, 2)}, {vr(ACC, 2)}, {vr(ACC + 2, 2)}')
        round2(g, T)

    g('L_proj:')
    g(f's_and_b32 {JC}, s2, 7\ns_lshl_b32 {JC}, {JC}, 3\ns_lshr_b32 s4, s2, 3\ns_add_u32 {JC}, {JC}, s4')
    g(f's_lshl_b32 s4, s3, 6\nv_add_u32 v{TID}, s4, v0')
    g.bits(T + 6, TID, [(3, 6, 64), (0, 2, 16), (2, 1, 8)], T)
    nvoff(g, WMO, 12288)
    g(f'''s_and_b32 {ODD}, {JC}, 1
          s_lshr_b32 s6, {JC}, 1
          s_lshl_b32 s6, s6, 7
          s_mul_i32 s13, {ODD}, {512 * 12288}
          s_add_u32 s13, s13, s6
          s_lshl_b32 s7, {JC}, 7
          s_lshr_b32 s46, {JC}, 4
          s_lshl_b32 s46, s46, 2
          s_waitcnt lgkmcnt(0)''')
    srd(g, S_WS, 44, WS_SIZE)
    srd(g, S_DBG, 42, 256)
    g(f's_lshl_b32 s47, {ODD}, 15\ns_lshl_b32 s5, s6, 2\ns_add_u32 s47, s47, s5\ns_add_u32 s47, s47, {MODP}')
    g.vmop(epoch_load(RGB), 'in')
    srd(g, S_B, 36, 4096)
    g.vmop(f'buffer_load_dwordx2 {vr(SB, 2)}, v{T + 6}, {S_B}, 0 offen', 'in')
    srd(g, S_B, 16, 4096)
    g.vmop(f'buffer_load_dwordx2 {vr(SB + 2, 2)}, v{T + 6}, {S_B}, 0 offen', 'in')
    prefetch_code(g, None, 2, T, ACC + 4, 'in')
    nload(g, UA, 38, 1024 * 12288, 12288, 's13', WMO, (0,), tag='m1')
    common_addr(g, L, False)
    nvoff(g, WQO, 8192)
    g(f's_lshl_b32 s4, s3, 3\nv_mov_b32 v{SW}, s4\ns_and_b32 s4, s4, 32\nv_mov_b32 v{SR}, s4')
    g(f's_mul_i32 s8, {JC}, {MBA_ST}\ns_add_u32 s8, s8, {MBA}')
    g(f's_lshl_b32 s9, {JC}, 13\ns_add_u32 s10, s9, {MBC}\ns_add_u32 s9, s9, {MBB}')
    g(f's_lshl_b32 s11, {JC}, 7\ns_add_u32 s11, s11, {X1}')
    g.vmwait('in')
    epoch_tag(g, RGB)
    silu_image(g, L, SB)
    unpack(g, Y, SB + 2)
    layernorm(g, Y, SW, SR, L.STAT)
    nload(g, UB, 22, 1024 * 8192, 8192, 's7', WQO, (0,), tag='wq')
    g('s_waitcnt vmcnt(8)')
    transpose(g, UA)
    g(f's_lshl_b32 s4, {ODD}, {10 if P["NAT"] else 7}\nv_add_u32 v{T + 7}, s4, v{NB}')
    nsplit(g, UA, L.ACTS, T + 7)
    publish32(g, L, 's47', 16384, True)
    g.stamp('g_mod')
    nload(g, UB, 22, 1024 * 8192, 8192, 's7', WQO, (1,), tag='wq')
    MP = RGA
    g.bits(MP, TID, [(8, 1, 16384), (3, 5, 256), (0, 2, 64), (2, 1, 32)], T + 7, MODP)
    g('s_waitcnt vmcnt(8)')
    transpose(g, UB)
    g(f's_mov_b32 s4, 8192\ns_mov_b32 s5, 32768\ns_mov_b32 s12, {32768 + 8192}')
    mloads = '\n'.join(f'buffer_load_dwordx4 {vr(ACC + 4 * i, 4)}, v{MP}, {S_WS}, {("0", "s5", "s4", "s12")[i >> 1]} offen offset:{16 * (i & 1)} sc1'
                       for i in range(8))
    g(f's_waitcnt vmcnt({P["MW"]})')
    g(mloads)
    attention(g, 'g_addr')
    attention(g, 'g_issue', range(P['GE']))
    g(f's_waitcnt vmcnt({8 + P["GE"]})')
    transpose(g, UB + 1)
    g(f's_waitcnt vmcnt({P["GE"]})')
    poll(g, mloads, range(ACC + 1, ACC + 32, 2), T, P['MSL'], preloaded=True, mask=-1)
    g.vm = []
    g.stamp('g_modseen')
    for i in range(4):
        g(f'v_add_f32 v{T + i}, v{ACC + 16 + 2 * i}, v{ACC + 24 + 2 * i}')
    for i in range(4):
        g(f'v_add_f32 v{ACC + i}, v{ACC + 2 * i}, v{ACC + 8 + 2 * i}')
    round4(g, T, T + 4)
    for i in range(4):
        g(f'v_add_f32 v{T + i}, 1.0, v{T + i}')
    round4(g, T, T + 4)
    pk4(g, 'v_pk_mul_f32', Y, Y, T)
    round4(g, Y, T + 4)
    round4(g, ACC, T + 4)
    pk4(g, 'v_pk_add_f32', Y, Y, ACC)
    pack(g, T, Y)
    actwrite(g, T, L.ACTH)
    g('s_waitcnt lgkmcnt(0)\ns_barrier')
    nsplit(g, UB, L.ACTH)
    g(f's_lshl_b32 s12, s7, 1\ns_add_u32 s12, s12, {QB}')
    g(f'v_cvt_pk_bf16_f32 v{T}, v{T}, v{T}\nv_lshl_or_b32 v{T}, v{T}, 16, {S_T16}')
    publish32(g, L, 's12', 16384, False)
    g.stamp('g_q')

    attention(g, 'g_issue', range(P['GE'], 16 * P['NUG']))
    if P['NUG']:
        attention(g, 'g_q')
    g.bits(T + 5, TID, [(4, 2, 4096), (6, 3, 256), (0, 4, 16)], T + 7)
    kload(g, UC, 24, 4096 * 2048, JC, T + 5, lambda kb, t: 32 * kb + (t & 3) * 8 + (t >> 2), 'wo')
    if P['NUG']:
        attention(g, 'g_compute')
        g.stamp('g_att')
        common_addr(g, L, False)
    g(f'v_lshlrev_b32 v{RO}, 4, v{TID}')
    g('s_waitcnt vmcnt(0)')
    g.vm = []
    transpose(g, UC)
    transpose(g, UC + 1)
    g.stamp('g_loaded')
    g(f's_lshr_b32 s4, {JC}, 1\ns_lshl_b32 s4, s4, 6\ns_lshl_b32 s5, {ODD}, 3\ns_add_u32 s4, s4, s5')
    g.bits(T, 0, [(1, 2, 16), (0, 1, 4)], T + 1, 's4')
    srd(g, S_B, 34, 2048)
    g(f'buffer_load_dword v{RB2}, v{T}, {S_B}, 0 offen')
    g(f'v_bfe_u32 v{T + 1}, v0, 3, 1\nv_lshlrev_b32 v{RGA}, 1, v{T}\nv_lshl_add_u32 v{RGA}, v{T + 1}, 14, v{RGA}')
    g(f'v_lshl_add_u32 v{OUTO}, v{T + 1}, 11, v{T}')
    srd(g, S_B, 16, 4096)
    g(f'buffer_load_dword v{RX}, v{OUTO}, {S_B}, 0 offen')
    srd(g, S_B, 40, 4096)
    g.bits(RL, TID, [(6, 3, 128), (0, 1, 64), (4, 2, 16), (1, 2, 4)], T, L.PART)
    g.bits(PO, TID, [(3, 6, 8192), (0, 3, 16)], T)
    g(f's_add_u32 s12, s7, {MBB}')
    g.bits(AO, TID, [(8, 1, SLOTS * 256), (3, 3, 256), (6, 2, 64), (0, 3, 8)], T + 3)
    g.bits(OW, TID, [(6, 3, 32), (0, 3, 4), (5, 1, 2)], T + 3, L.OUTV)
    g.bits(T + 5, TID, [(8, 1, 128), (3, 3, 4)], T + 3)
    g('s_add_u32 s13, s8, 4096')
    g.bits(T + 2, 0, [(5, 1, 8192), (0, 5, 8)], T + 3)
    g(f's_lshr_b32 s4, {JC}, 1\ns_lshl_b32 s4, s4, 8\ns_add_u32 s4, s4, {STATS}')
    prefetch_code(g, 'L_proj_tail', 1, T + 6, ACC)
    g.stamp('g_ready')
    g('L_proj_tail:')
    fwait(g, T, 's46', C_A, P['ASL'])
    g.stamp('g_hint', (0, 1))
    g(f'v_mov_b32 v{T}, 0xff800000\nv_mov_b32 v{T + 1}, 0')
    g.setexec(-1 if P['NUG'] else ((1 << SPL) - 1) * 0x100000001)
    poll(g, f'buffer_load_dwordx2 {vr(T, 2)}, v{T + 2}, {S_WS}, s4 offen sc1', [T, T + 1], T + 4, 2)
    g.setexec(-1)

    def red32(r, t, op):
        for sh in (8, 4, 2, 1):
            g.nop(2)
            g(f'{op}_dpp v{r}, v{r}, v{r} row_ror:{sh} {DPP}')
        g(f'v_mov_b32 v{t}, v{r}')
        g.nop(2)
        g(f'v_permlane16_swap_b32 v{r}, v{t}\n{op} v{r}, v{r}, v{t}')
    g(f'v_and_b32 v{T}, {S_MASK}, v{T}\nv_mov_b32 v{T + 2}, v{T}')
    red32(T + 2, T + 3, 'v_max_f32')
    g(f'v_sub_f32 v{T}, v{T}, v{T + 2}\nv_mul_f32 v{T}, 0x3fb8aa3b, v{T}\nv_exp_f32 v{T}, v{T}\ns_nop 0')
    g(f'v_mul_f32 v{T + 1}, v{T + 1}, v{T}')
    red32(T + 1, T + 3, 'v_add_f32')
    g(f'v_rcp_f32 v{T + 1}, v{T + 1}\ns_nop 0\nv_mul_f32 v{T}, v{T}, v{T + 1}')
    for k in range(4):
        g(f'ds_bpermute_b32 v{WG + k}, v{T + 5}, v{T} offset:{32 * k}')
    g('s_waitcnt lgkmcnt(0)')
    g.stamp('g_wgt', (0, 1))
    NT = 4 if P['NUG'] else 3
    poll(g, '\n'.join(f'buffer_load_dwordx2 {vr(T + 2 * k, 2)}, v{AO}, {S_WS}, {"s8" if k < 2 else "s13"} offen offset:{2048 * (k & 1)} sc1'
                      for k in range(NT)), range(T, T + 2 * NT), ACC, P['SLEEP'])
    g.stamp('g_apolled', (0, 1))
    g(f'v_mul_f32 v{T}, v{WG}, v{T}\nv_mul_f32 v{T + 1}, v{WG}, v{T + 1}')
    for k in range(1, NT):
        g(f'v_fmac_f32 v{T}, v{WG + k}, v{T + 2 * k}\nv_fmac_f32 v{T + 1}, v{WG + k}, v{T + 2 * k + 1}')
    g.nop(2)
    g(f'v_permlane32_swap_b32 v{T}, v{T + 1}\nv_add_f32 v{T}, v{T}, v{T + 1}\nv_mov_b32 v{T + 1}, v{T}')
    g.nop(2)
    g(f'v_permlane16_swap_b32 v{T}, v{T + 1}\nv_add_f32 v{T}, v{T}, v{T + 1}')
    g.nop(2)
    g(f'v_add_f32_dpp v{T}, v{T}, v{T} row_ror:8 {DPP}')
    g(f'v_cvt_pk_bf16_f32 v{T}, v{T}, v{T}\nds_write_b16 v{OW}, v{T}')
    g('s_waitcnt lgkmcnt(0)\ns_barrier')
    g.stamp('g_obar', (1,))
    ksplit_out(g, UC, PO, 's12')
    g.stamp('g_t2', (0, 1))
    gate(0)
    skip = reduce('s9', 64)
    unpack2(g, T + 6, RX)
    g(f'v_lshlrev_b32 v{T + 3}, 3, v0\nv_mov_b32 v{ACC + 16}, {S_MASK}')
    reduce_sum()
    g(f'v_pk_mul_f32 {vr(T, 2)}, {vr(T, 2)}, {vr(ACC + 18, 2)}')
    round2(g, T)
    g(f'v_pk_add_f32 {vr(T, 2)}, {vr(T, 2)}, {vr(T + 6, 2)}')
    g(f'v_cvt_pk_bf16_f32 v{RX}, v{T}, v{T + 1}')
    g(f'v_lshl_or_b32 v{T}, v{RX}, 16, {S_T16}\nv_and_or_b32 v{T + 1}, v{RX}, v{ACC + 16}, {S_T16}')
    g.setexec(0xffff)
    g(f'buffer_store_dwordx2 {vr(T, 2)}, v{T + 3}, {S_WS}, s11 offen sc1')
    g.setexec(-1)
    g(skip + ':')
    g.stamp('g_x1', (0, 1))
    g('s_barrier')
    gate(3)
    g.stamp('g_gb', (1,))
    skip = reduce('s10', 56)
    unpack2(g, T + 2, RB2)
    unpack2(g, T + 6, RX)
    reduce_sum()
    g(f'v_pk_add_f32 {vr(T, 2)}, {vr(T, 2)}, {vr(T + 2, 2)}')
    round2(g, T)
    g(f'v_pk_mul_f32 {vr(T, 2)}, {vr(T, 2)}, {vr(ACC + 18, 2)}')
    round2(g, T)
    g(f'v_pk_add_f32 {vr(T, 2)}, {vr(T, 2)}, {vr(T + 6, 2)}')
    g(f'v_cvt_pk_bf16_f32 v{T}, v{T}, v{T + 1}')
    g.setexec(0xffff)
    g(f'buffer_store_dword v{T}, v{OUTO}, {S_B}, 0 offen')
    g(f's_cmp_lg_u32 s2, 0\ns_cbranch_scc1 {skip}\nv_mov_b32 v{T + 1}, {S_EPO}\ns_mov_b64 exec, 1')
    g(f'buffer_store_dword v{T + 1}, off, {S_WS}, 0 sc1')
    g(skip + ':')
    g.stamp('g_out', (0, 1))
    if P['PADTO']:
        if P['PADWG'] >= 0:
            g(f's_cmp_lg_u32 s2, {P["PADWG"]}\ns_cbranch_scc1 L_nopad')
        g(f'L_pad:\ns_memrealtime s[4:5]\ns_waitcnt lgkmcnt(0)\ns_sub_u32 s4, s4, s70\ns_cmp_lt_u32 s4, {P["PADTO"]}\ns_cbranch_scc1 L_pad\nL_nopad:')
    write_stamps(g)
    g('s_endpgm')


MLP_LDS = 4096
W1L = 4096
LDS_TOTAL = W1L + 131072


def mlp(g):
    L = Lds(MLP_LDS)
    PO, XO, SW, SR, B1 = 8, 9, 10, 11, 17
    C1, SH = 12, 18
    JM = 's14'
    g.vm = []
    g('L_mlp:')
    if P['W2TH']:
        fwait(g, ACC + 4, 's101', C_A, P['LSL'])
    else:
        g('s_barrier')
    g(f's_lshl_b32 s4, s3, 6\nv_add_u32 v{TID}, s4, v0')
    g(f's_lshl_b32 s7, {JM}, 7')
    g.bits(T + 5, TID, [(4, 2, 2048), (6, 3, 256), (0, 4, 16)], T + 7)
    kload(g, UB, 32, 3584 * 2048, JM, T + 5, lambda kb, t: 32 * kb + 4 * t, 'w2')
    common_addr(g, L, True)
    srd(g, S_B, 30, 3584 * 2)
    g.bits(T + 5, TID, [(2, 3, 16), (5, 2, 4), (7, 1, 2)], T, 's7')
    g.vmop(f'buffer_load_ushort v{B1}, v{T + 5}, {S_B}, 0 offen', 'k')
    prefetch_code(g, 'L_mlp_tail', 1, T + 5, ACC + 8, 'k')
    g.bits(XO, TID, [(2, 6, 128), (8, 1, 64), (0, 2, 16)], T, X1)
    g.bits(PO, TID, [(3, 6, 8192), (0, 3, 16)], T)
    g(f's_add_u32 s13, s7, {MBC}')
    g(f's_lshl_b32 s4, s3, 3\nv_mov_b32 v{SW}, s4\ns_and_b32 s4, s4, 32\nv_mov_b32 v{SR}, s4')
    MP = 16
    g.bits(MP, TID, [(8, 1, 16384), (3, 5, 128), (0, 2, 32), (2, 1, 16)], T, MODL + 4096)
    g(f's_mov_b32 s4, 4096\ns_mov_b32 s5, 32768\ns_mov_b32 s6, {32768 + 4096}')
    mloads = '\n'.join(f'buffer_load_dwordx4 {vr(ACC + 12 + 4 * i, 4)}, v{MP}, {S_WS}, {so} offen sc1' for i, so in enumerate(('0', 's5', 's4', 's6')))
    g.vmwait(('w2', 0))
    transpose(g, UB)
    g.vmop(mloads, 'k')
    g.vmwait(('w2', 1))
    transpose(g, UB + 1)
    g.vmwait('k')
    g.stamp('m_w2', (2,))
    poll(g, mloads, range(ACC + 12, ACC + 28), T, 2, preloaded=True)
    pk4(g, 'v_pk_add_f32', SH, ACC + 12, ACC + 16)
    pk4(g, 'v_pk_add_f32', C1, ACC + 20, ACC + 24)
    round4(g, SH, T)
    round4(g, C1, T)
    for i in range(4):
        g(f'v_add_f32 v{C1 + i}, 1.0, v{C1 + i}')
    round4(g, C1, T)
    g(f'v_lshlrev_b32 v{B1}, 16, v{B1}')
    g.stamp('m_ready', (0, 2))
    g('L_mlp_tail:')
    XV = ACC
    poll(g, f'buffer_load_dwordx4 {vr(XV, 4)}, v{XO}, {S_WS}, 0 offen sc1', range(XV, XV + 4), T, mask=0xffff)
    g.stamp('m_x1seen', (0, 2))
    for i in range(4):
        g(f'v_and_b32 v{XV + i}, {S_MASK}, v{XV + i}')
    layernorm(g, XV, SW, SR, L.STAT)
    g.stamp('m_ln1', (2,))
    pk4(g, 'v_pk_mul_f32', XV, XV, C1)
    round4(g, XV, T + 6)
    pk4(g, 'v_pk_add_f32', XV, XV, SH)
    round4(g, XV, T + 6)
    layernorm(g, XV, SW, SR, L.STAT + 64, last_packed=True)
    actwrite(g, T + 6, L.ACTH)
    g('s_waitcnt lgkmcnt(0)\ns_barrier')
    g.stamp('m_ln2', (2,))
    nsplit(g, UC, L.ACTH)
    g.stamp('m_t3', (2,))
    g(f'''v_cvt_pk_bf16_f32 v{T}, v{T}, v{T}
          v_lshlrev_b32 v{T}, 16, v{T}
          v_add_f32 v{T}, v{T}, v{B1}
          v_cvt_pk_bf16_f32 v{T}, v{T}, v{T}
          v_lshlrev_b32 v{T}, 16, v{T}
          v_mov_b32 v{T + 2}, 0xc0135761
          v_mul_f32 v{T + 1}, v{T}, v{T}
          v_fmac_f32 v{T + 2}, 0xbdd2d3e8, v{T + 1}
          v_mul_f32 v{T + 1}, v{T + 2}, v{T}
          v_exp_f32 v{T + 1}, v{T + 1}
          s_nop 0
          v_add_f32 v{T + 1}, 1.0, v{T + 1}
          v_rcp_f32 v{T + 1}, v{T + 1}
          s_nop 0
          v_mul_f32 v{T}, v{T}, v{T + 1}
          v_cvt_pk_bf16_f32 v{T}, v{T}, v{T}
          ds_write_b16 v{NO}, v{T}
          s_waitcnt lgkmcnt(0)
          s_barrier''')
    g.stamp('m_gelu', (2,))
    ksplit_out(g, UB, PO, 's13')
    g.stamp('m_t4', (0, 2))
    write_stamps(g)
    g('s_endpgm')


def latem(g):
    L = Lds(MLP_LDS)
    g.vm = []
    g('L_late:')
    g(f's_lshl_b32 s4, s3, 6\nv_add_u32 v{TID}, s4, v0')
    nvoff(g, 8, 12288)
    g(f'''s_and_b32 s15, s14, 1
          s_lshr_b32 s6, s14, 1
          s_lshl_b32 s6, s6, 7
          s_mul_i32 s13, s15, {512 * 12288}
          s_add_u32 s13, s13, s6
          s_add_u32 s13, s13, 4096''')
    g.bits(T + 6, TID, [(3, 6, 64), (0, 2, 16), (2, 1, 8)], T)
    srd(g, S_B, 36, 4096)
    g('s_barrier')
    g.vmop(f'buffer_load_dwordx2 {vr(12, 2)}, v{T + 6}, {S_B}, 0 offen', 'in')
    nload(g, UA, 38, 1024 * 12288, 12288, 's13', 8, (0,), tag='m')
    common_addr(g, L, False)
    g(f's_lshl_b32 s12, s15, 15\ns_lshl_b32 s5, s6, 1\ns_add_u32 s12, s12, s5\ns_add_u32 s12, s12, {MODL}')
    g.vmwait('in')
    silu_image(g, L, 12)
    g(f's_lshl_b32 s4, s15, {10 if P["NAT"] else 7}\nv_add_u32 v9, s4, v{NB}')
    tagmask(g, 10)
    g('s_waitcnt lgkmcnt(0)\ns_barrier')
    g.vmwait(('m', 0))
    transpose(g, UA)
    nsplit(g, UA, L.ACTS, 9)
    tag(g, [T], 10)
    publish32(g, L, 's12', 16384, False)
    g.stamp('l_pub', (0, 1, 2))
    write_stamps(g)
    g('s_endpgm')


def attention(g, mode='main', arg=None):
    KO, VO, QO, VSC, VMAX, OO = 1, 2, 3, 4, 5, 6
    Q0, SP, TMP, T2 = 8, 16, 40, 56
    LA, GA = T2 + 7, T2 + 6
    SLOT = lambda s: 64 + 32 * s
    AC = SLOT(0)
    U = lambda u: 's%d' % (4 + 2 * u)
    U2 = lambda u: 's%d' % (5 + 2 * u)
    S_R, S_CU, S_GA, S_T = 's47', 's68', 's96', 's69'
    S_B4, S_B5, S_O4, S_KV = 's46', 's100', 's101', 's101'
    MX, OBUF, OST = 0, W1L, 16384
    QL, QF = 1024, 3072
    S_ST = 's97'
    NN = (SPL - NMR) * 8
    NUG = P['NUG']
    n4 = min(NN, 1024 - 4 * WPR - 64 * NUG)
    n5 = 1024 - 4 * WPR - n4 - 64 * NUG
    RK = QF + 4
    assert 0 <= n5 <= NN
    base = [0, WPR, 2 * WPR, 3 * WPR, 4 * WPR, 4 * WPR + n4]
    VSLOT = [1, 2, 3, 1, 4, 5] if mode == 'main' else [NUG + u for u in range(NUG)]

    def entry():
        g.vm = []

        g('L_attn:')
        g(f'''s_sub_u32 {S_T}, s2, {NG}
              s_mul_hi_u32 {S_R}, {S_T}, {(1 << 32) // SPL + 1}
              s_mul_i32 {S_CU}, {S_R}, {SPL}
              s_sub_u32 {S_CU}, {S_T}, {S_CU}
              s_add_u32 {S_CU}, {S_CU}, {S_R if P["ROT"] else 0}
              s_sub_u32 {S_T}, {S_CU}, {SPL}
              s_cselect_b32 {S_CU}, {S_CU}, {S_T}
              s_mul_i32 {S_T}, s3, {SPL - NMR}
              s_add_u32 {S_T}, {S_T}, {S_CU}
              s_cmp_lt_u32 {S_CU}, {SPL - NMR}
              s_cselect_b32 {S_T}, {S_T}, 1023
              s_lshl_b32 s98, {S_CU}, 3
              s_add_u32 s98, s98, s3
              s_mul_i32 {S_GA}, {S_R}, {P["PH"]}''')
        for u in range(NU):
            g(f's_add_u32 {U(u)}, {S_GA}, {"s98" if u < (5 if n4 == NN else 4) else S_T}')
            if u:
                g(f's_add_u32 {U(u)}, {U(u)}, {base[u]}')
            g(f's_and_b32 {U(u)}, {U(u)}, 1023\ns_lshl_b32 {U(u)}, {U(u)}, 13\ns_add_u32 {U2(u)}, {U(u)}, 4096')
        g.bits(KO, 0, [(1, 1, 1024), (2, 2, 256), (0, 1, 64), (4, 2, 16)], 8)
        g(f'v_lshlrev_b32 v{VO}, 4, v0')
        g(f's_cmp_lt_u32 {S_T}, {n4}\ns_cselect_b32 {S_O4}, 0, 0x1000000\ns_cselect_b32 {S_B4}, 0, 0xff800000')
        g(f's_cmp_lt_u32 {S_T}, {n5}\ns_cselect_b32 s98, 0, 0x1000000\ns_cselect_b32 {S_B5}, 0, 0xff800000')
        g(f'v_add_u32 v{OO}, {S_O4}, v{KO}\nv_add_u32 v{OO + 1}, s98, v{KO}')
        g('s_waitcnt lgkmcnt(0)')
        g(f's_lshl_b32 {S_T}, {S_R}, 23')
        g(f's_add_u32 s56, s18, {S_T}\ns_addc_u32 s57, s19, 0\ns_mov_b32 s58, 0x800000\ns_mov_b32 s59, 0x20000')
        g(f's_add_u32 s60, s20, {S_T}\ns_addc_u32 s61, s21, 0\ns_mov_b32 s62, 0x800000\ns_mov_b32 s63, 0x20000')

    def load(n, pos):
        i = n & 7
        if n < 48:
            u = n >> 3
            vo = KO if u < 4 else OO + u - 4
            g.vmop(f'buffer_load_dwordx4 {vr(SLOT(u) + 4 * i, 4)}, v{vo}, {S_A}, {U2(u) if i >= 4 else U(u)} offen '
                   f'offset:{((i >> 1) & 1) * 2048 + (i & 1) * 128} nt', pos)
        elif n < 64:
            if n == 48:
                l1, l2 = g.label('L_xv'), g.label('L_xj')
                g(f's_lshl_b32 s98, s3, 14\ns_add_u32 m0, s98, {W1L}\ns_mov_b32 s95, 0x20000')
                g(f's_cmp_lt_u32 {S_CU}, {SPL - NMR}\ns_cbranch_scc1 {l1}')
                g(f's_lshl_b32 {S_T}, s3, 6\nv_add_u32 v{T2 + 1}, {S_T}, v0')
                nvoff(g, OO, 7168, T2 + 1, T2 + 2)
                g(f'v_mov_b32 v{OO + 1}, v{OO}')
                g(f's_mul_i32 {S_T}, {S_R}, {NMR}\ns_add_u32 {S_T}, {S_T}, {S_CU}\ns_sub_u32 {S_T}, {S_T}, {SPL - NMR}')
                g(f's_lshl_b32 {U(4)}, {S_T}, 7\ns_add_u32 {U(5)}, {U(4)}, {512 * 7168}\ns_mov_b32 {U2(4)}, {nstep() * 7168}')
                g(f's_mov_b32 s92, s28\ns_mov_b32 s93, s29\ns_mov_b32 s94, {1024 * 7168}')
                g(f's_branch {l2}\n{l1}:')
                g(f'v_sub_u32 v{T2 + 1}, v{VO}, v{KO}\nv_add_u32 v{OO}, v{OO}, v{T2 + 1}\nv_add_u32 v{OO + 1}, v{OO + 1}, v{T2 + 1}')
                g(f's_mov_b32 {U2(4)}, 1024\ns_mov_b32 s92, s60\ns_mov_b32 s93, s61\ns_mov_b32 s94, s62')
                g(l2 + ':')
            u = 4 + ((n - 48) >> 3)
            if n > 48:
                g('s_add_u32 m0, m0, 1024')
            g(f's_add_u32 {U(u)}, {U(u)}, {U2(4)}' if i else 's_nop 0')
            g.vmop(f'buffer_load_dwordx4 v{OO + u - 4}, s[92:95], {U(u)} offen nt lds', pos)
        else:
            u = (n - 64) >> 3
            g.vmop(f'buffer_load_dwordx4 {vr(SLOT(VSLOT[u]) + 4 * i, 4)}, v{VO}, {S_B}, {U2(u) if i >= 4 else U(u)} offen '
                   f'offset:{(i & 3) * 1024} nt', pos)

    def mailbox():
        g.bits(GA, 0, [(5, 1, MBA_ST), (0, 5, 8)], T2)
        g(f'''s_and_b32 {S_T}, {S_R}, 3
              s_lshl_b32 {S_T}, {S_T}, 3
              s_add_u32 {S_T}, {S_T}, s3
              s_mul_i32 {S_T}, {S_T}, {2 * MBA_ST}
              s_lshr_b32 {S_GA}, {S_R}, 2
              s_mul_i32 {S_GA}, {S_GA}, {SLOTS}
              s_add_u32 {S_GA}, {S_GA}, {S_CU}
              s_lshl_b32 {S_GA}, {S_GA}, 8
              s_add_u32 {S_GA}, {S_GA}, {S_T}
              s_add_u32 {S_GA}, {S_GA}, {MBA}''')

    def setup():
        srd(g, S_WS, 44, WS_SIZE)
        srd(g, S_DBG, 42, 256)
        mailbox()
        g.vmop(epoch_load(T2 + 2), 'ep')
        prefetch_code(g, 'L_attn_body', 2, 8, TMP, 'pf')
        if P['TLB']:
            skip = g.label('L_notlb')
            sh = P['TLB']
            g(f'v_lshlrev_b32 v8, {sh}, v0')
            g.setexec((1 << min(64, 1 << (23 - sh))) - 1 if sh > 17 else -1)
            g(f's_cmp_eq_u32 s3, 1\ns_cbranch_scc0 {skip}_a\nbuffer_load_dword v{TMP + 4}, v8, {S_A}, 0 offen nt\n{skip}_a:')
            g(f's_cmp_eq_u32 s3, 2\ns_cbranch_scc0 {skip}_b\nbuffer_load_dword v{TMP + 4}, v8, {S_B}, 0 offen nt\n{skip}_b:')
            for w, (ptr, size) in enumerate(((28, 7 << 20), (32, 7 << 20), (38, 12 << 20), (44, WS_SIZE))):
                l = f'{skip}_{w}'
                g(f's_cmp_eq_u32 s3, {3 + w}\ns_cbranch_scc0 {l}')
                g(f's_mov_b32 s92, s{ptr}\ns_mov_b32 s93, s{ptr + 1}\ns_mov_b32 s94, {size}\ns_mov_b32 s95, 0x20000')
                g(f'buffer_load_dword v{TMP + 4}, v8, s[92:95], 0 offen offset:2048 nt')
                if size > (8 << 20):
                    g(f's_mov_b32 {S_T}, {8 << 20}\nv_add_u32 v9, {S_T}, v8\nbuffer_load_dword v{TMP + 4}, v9, s[92:95], 0 offen nt')
                g(l + ':')
            g.setexec(-1)
        g(f's_and_b32 {S_KV}, {S_R}, 3\ns_lshl_b32 {S_KV}, {S_KV}, 2')
        g.bits(QO, 0, [(0, 3, 256), (3, 1, 64), (4, 2, 16)], 8)
        g.bits(LA, 0, [(0, 4, 64)], 8)
        g(f's_lshl_b32 {S_T}, s3, 3\nv_add_u32 v8, {S_T}, v{LA}\nv_mov_b32 v9, -1\nds_write_b32 v8, v9 offset:{MX + 4}')
        g(f'v_mov_b32 v{T2}, 0\nds_write_b32 v{T2}, v{T2} offset:{QF}\ns_mov_b32 {S_ST}, 0\ns_waitcnt lgkmcnt(0)\ns_barrier')
        g(f'v_mov_b32 v{VSC}, 0x3db504f3\nv_mov_b32 v{VMAX}, 0xff800000')
        g('L_attn_body:')

    def readback():
        g(f's_lshl_b32 {S_T}, s3, 14\ns_add_u32 {S_T}, {S_T}, {W1L}\nv_add_u32 v{T2}, {S_T}, v{VO}')
        for i in range(16):
            g(f'ds_read_b128 {vr(SLOT(4) + 4 * i, 4)}, v{T2} offset:{i * 1024}')

    def lds_units():
        l1, l2 = g.label('L_w1'), g.label('L_w1j')
        g(f's_cmp_ge_u32 {S_CU}, {SPL - NMR}\ns_cbranch_scc1 {l1}')
        g('s_waitcnt lgkmcnt(8)')
        pv(4)
        g('s_waitcnt lgkmcnt(0)')
        pv(5)
        g(f's_branch {l2}\n{l1}:')
        g('s_waitcnt lgkmcnt(8)')
        transpose(g, UC, T2)
        g('s_waitcnt lgkmcnt(0)')
        transpose(g, UC + 1, T2)
        g(l2 + ':')

    def qstep(final=False):
        skip = only_wave(g, P['QW'])
        l1, l3, top = g.label('L_q1'), g.label('L_q3'), g.label('L_qtop')
        if final:
            g(f's_mov_b32 {S_SPIN}, {SPIN}\n{top}:')
        g(f's_cmp_eq_u32 {S_ST}, 2\ns_cbranch_scc1 {skip}')
        if final:
            g(f's_waitcnt vmcnt(0)\ns_sub_u32 {S_SPIN}, {S_SPIN}, 1\ns_cbranch_scc1 {l3}')
        g(f's_cmp_eq_u32 {S_ST}, 0\ns_cbranch_scc1 {l1}')
        check(g, range(TMP, TMP + 16), T2, 0xffff)
        g(f's_cbranch_vccz {l3}')
        if final:
            g(f's_sleep {P["QSL"]}')
        g(l1 + ':')
        g(f's_lshl_b32 {S_T}, {S_R}, 12\ns_add_u32 {S_T}, {S_T}, {QB}\ns_mov_b32 {S_ST}, 1')
        for i in range(4):
            g(f'buffer_load_dwordx4 {vr(TMP + 4 * i, 4)}, v{VO}, {S_WS}, {S_T} offen offset:{1024 * i} sc1')
        g(f's_branch {top if final else skip}')
        g(l3 + ':')
        g(f'v_lshlrev_b32 v{T2}, 3, v0')
        for i in range(8):
            g(f'v_perm_b32 v{Q0 + i}, v{TMP + 2 * i + 1}, v{TMP + 2 * i}, {S_HI}')
        for i in range(4):
            g(f'ds_write_b64 v{T2}, {vr(Q0 + 2 * i, 2)} offset:{QL + 512 * i}')
        g(f'v_mov_b32 v{T2}, 0\nv_mov_b32 v{T2 + 1}, 1\ns_mov_b32 {S_ST}, 2\ns_waitcnt lgkmcnt(0)')
        g(f'ds_write_b32 v{T2}, v{T2 + 1} offset:{QF}')
        g(skip + ':')

    def qget():
        g.stamp('a_qwait')
        if P['NOQ']:
            return
        qstep(final=True)
        lp, ok = g.label('L_qf'), g.label('L_qfok')
        g(f'v_mov_b32 v{T2}, 0\ns_mov_b32 {S_SPIN}, {SPIN * 16}\n{lp}:')
        g(f'ds_read_b32 v{T2 + 1}, v{T2} offset:{QF}\ns_waitcnt lgkmcnt(0)')
        g(f'v_cmp_eq_u32 vcc, 0, v{T2 + 1}\ns_cbranch_vccz {ok}')
        g(f's_sleep 2\ns_sub_u32 {S_SPIN}, {S_SPIN}, 1\ns_cbranch_scc0 {lp}\n{ok}:')
        g(f'ds_read_b128 {vr(Q0, 4)}, v{QO} offset:{QL}\nds_read_b128 {vr(Q0 + 4, 4)}, v{QO} offset:{QL + 128}')
        g('s_waitcnt lgkmcnt(0)')
        g.stamp('a_qseen')

    def qk(u):
        for t in range(4):
            g(f'v_mfma_f32_16x16x32_bf16 {vr(TMP + 4 * t, 4)}, {vr(SLOT(u) + 8 * t, 4)}, {vr(Q0, 4)}, 0')
        for t in range(4):
            g(f'v_mfma_f32_16x16x32_bf16 {vr(TMP + 4 * t, 4)}, {vr(SLOT(u) + 8 * t + 4, 4)}, {vr(Q0 + 4, 4)}, {vr(TMP + 4 * t, 4)}')
        g.nop(5)
        for t in range(4):
            d = TMP + 4 * t
            a, b = T2 + 2 * (t & 1), T2 + 2 * (t & 1) + 1
            g(f'v_add_f32_dpp v{a}, v{d + 1}, v{d} row_ror:8 {DPP}\nv_add_f32_dpp v{b}, v{d + 3}, v{d + 2} row_ror:8 {DPP}')
            round2(g, a)
            if u >= 4:
                sb = S_B4 if u == 4 else S_B5
                g(f'v_fma_f32 v{a}, v{a}, v{VSC}, {sb}\nv_fma_f32 v{b}, v{b}, v{VSC}, {sb}')
            else:
                g(f'v_mul_f32 v{a}, v{a}, v{VSC}\nv_mul_f32 v{b}, v{b}, v{VSC}')
            g(f'v_max3_f32 v{VMAX}, v{VMAX}, v{a}, v{b}\nv_cvt_pk_bf16_f32 v{SP + 4 * u + t}, v{a}, v{b}')

    def red_g(r, t, op):
        for ins in ('v_permlane32_swap_b32', 'v_permlane16_swap_b32'):
            g(f'v_mov_b32 v{t}, v{r}')
            g.nop(2)
            g(f'{ins} v{r}, v{t}\n{op} v{r}, v{r}, v{t}')

    def softmax():
        red_g(VMAX, T2, 'v_max_f32')
        for i in range(0, 32, 2):
            g(f'v_mov_b64 {vr(AC + i, 2)}, 0')
        g(f'v_mov_b32 v{VSC}, 0x3fb8aa3b\nv_mov_b32 v{T2 + 4}, 0')
        g(f'v_cvt_pk_bf16_f32 v{VMAX}, v{VMAX}, v{VMAX}\nv_lshlrev_b32 v{VMAX}, 16, v{VMAX}')
        g(f'v_mul_f32 v{T2 + 5}, v{VMAX}, v{VSC}')

    def probs(u, last=NU - 1):
        for i in range(4 * u, 4 * u + 4):
            p = SP + i
            a, b = T2 + 2 * (i & 1), T2 + 2 * (i & 1) + 1
            unpack2(g, a, p)
            g(f'v_fma_f32 v{a}, v{a}, v{VSC}, -v{T2 + 5}\nv_fma_f32 v{b}, v{b}, v{VSC}, -v{T2 + 5}')
            g(f'v_exp_f32 v{a}, v{a}\nv_exp_f32 v{b}, v{b}')
            g(f'v_add_f32 v{T2 + 4}, v{T2 + 4}, v{a}\nv_add_f32 v{T2 + 4}, v{T2 + 4}, v{b}')
            g(f'v_cvt_pk_bf16_f32 v{p}, v{a}, v{b}')
        if u == last:
            red_g(T2 + 4, T2, 'v_add_f32')
            g(f's_lshl_b32 {S_T}, s3, 3\nv_add_u32 v{T2}, {S_T}, v{LA}\nv_mov_b32 v{T2 + 2}, v{VMAX}\nv_min_u32 v{T2 + 3}, -2, v{T2 + 4}')
            g(f'ds_write_b64 v{T2}, {vr(T2 + 2, 2)} offset:{MX}')
            if mode == 'main':
                g.stamp('a_probs')

    def pv(u):
        s = SLOT(VSLOT[u])
        for w in range(4):
            t = TMP + 8 * (w & 1)
            for p in range(4):
                g(f'v_perm_b32 v{t + p}, v{s + 8 * p + 4 + w}, v{s + 8 * p + w}, {S_LO}')
            for p in range(4):
                g(f'v_perm_b32 v{t + 4 + p}, v{s + 8 * p + 4 + w}, v{s + 8 * p + w}, {S_HI}')
            g(f'v_mfma_f32_16x16x32_bf16 {vr(AC + 8 * w, 4)}, {vr(t, 4)}, {vr(SP + 4 * u, 4)}, {vr(AC + 8 * w, 4)}')
            g('s_nop 0')
            g(f'v_mfma_f32_16x16x32_bf16 {vr(AC + 8 * w + 4, 4)}, {vr(t + 4, 4)}, {vr(SP + 4 * u, 4)}, {vr(AC + 8 * w + 4, 4)}')

    def gather_ml():
        lp, ok = g.label('L_ml'), g.label('L_mlok')
        g(f's_mov_b32 {S_SPIN}, {SPIN * 16}\n{lp}:')
        for i in range(4):
            g(f'ds_read_b128 {vr(TMP + 4 * i, 4)}, v{LA} offset:{MX + 16 * i}')
        g('s_waitcnt lgkmcnt(0)')
        g(f'v_max_u32 v{T2}, v{TMP + 1}, v{TMP + 3}')
        for i in range(5, 16, 4):
            g(f'v_max3_u32 v{T2}, v{T2}, v{TMP + i}, v{TMP + i + 2}')
        g(f'v_cmp_eq_u32 vcc, -1, v{T2}\ns_cbranch_vccz {ok}')
        g(f's_sleep 2\ns_sub_u32 {S_SPIN}, {S_SPIN}, 1\ns_cbranch_scc0 {lp}\n{ok}:')
        g(f'v_max_f32 v{T2 + 2}, v{TMP}, v{TMP + 2}')
        for i in range(4, 16, 4):
            g(f'v_max3_f32 v{T2 + 2}, v{T2 + 2}, v{TMP + i}, v{TMP + i + 2}')

    def stats():
        skip = only_wave(g, P['SW'])
        gather_ml()
        g(f'v_mov_b32 v{T2 + 3}, 0')
        for i in range(0, 16, 2):
            g(f'v_sub_f32 v{TMP + i}, v{TMP + i}, v{T2 + 2}\nv_mul_f32 v{TMP + i}, 0x3fb8aa3b, v{TMP + i}')
        for i in range(0, 16, 2):
            g(f'v_exp_f32 v{TMP + i}, v{TMP + i}')
        g(f's_lshl_b32 {S_T}, {S_R}, 11\ns_lshl_b32 s98, {S_CU}, 3\ns_add_u32 {S_T}, {S_T}, s98\ns_add_u32 {S_T}, {S_T}, {STATS}')
        for i in range(0, 16, 2):
            g(f'v_fmac_f32 v{T2 + 3}, v{TMP + i}, v{TMP + i + 1}')
        g(f'v_lshlrev_b32 v{T2}, 8, v0')
        tagmask(g, T2 + 1)
        tag(g, [T2 + 2, T2 + 3], T2 + 1)
        g.setexec(0xff)
        g(f'buffer_store_dwordx2 {vr(T2 + 2, 2)}, v{T2}, {S_WS}, {S_T} offen sc1')
        g.setexec(-1)
        g(skip + ':')

    def factor():
        gather_ml()
        g(f'v_sub_f32 v{FS}, v{VMAX}, v{T2 + 2}\nv_mul_f32 v{FS}, 0x3fb8aa3b, v{FS}\nv_exp_f32 v{FS}, v{FS}')
        tagmask(g, FS + 1)

    FS = Q0 + 2
    WA, RA = KO, QO

    def epi_addr():
        g(f's_mul_i32 {S_T}, s3, {OST}\ns_add_u32 {S_T}, {S_T}, {OBUF}')
        g.bits(WA, 0, [(4, 2, 128), (0, 4, 16)], T2, S_T)
        g(f's_lshl_b32 {S_T}, s3, 4\ns_add_u32 {S_T}, {S_T}, {OBUF}')
        g.bits(RA, 0, [(1, 3, 528), (4, 2, 128), (0, 1, 8)], T2, S_T)
        g(f'v_add_u32 v{VSC}, {4 * OST}, v{RA}')

    def epilogue():
        g.setexec(rep16(0xff))
        for j in range(8):
            for h in (0, 2):
                g(f'v_pk_mul_f32 {vr(AC + 4 * j + h, 2)}, {vr(AC + 4 * j + h, 2)}, {vr(FS, 2)} op_sel_hi:[1,0]')
            g(f'ds_write_b128 v{WA}, {vr(AC + 4 * j, 4)} offset:{528 * j}')
        g.setexec(-1)
        g('s_waitcnt lgkmcnt(0)\ns_barrier')
        for w in range(8):
            g(f'ds_read_b64 {vr(TMP + 2 * w, 2)}, v{RA if w < 4 else VSC} offset:{OST * (w & 3)}')
        g('s_waitcnt lgkmcnt(4)')
        pk4(g, 'v_pk_add_f32', TMP, TMP, TMP + 4)
        g('s_waitcnt lgkmcnt(0)')
        pk4(g, 'v_pk_add_f32', TMP + 8, TMP + 8, TMP + 12)
        pk4(g, 'v_pk_add_f32', TMP, TMP, TMP + 8)
        g(f'v_pk_add_f32 {vr(TMP, 2)}, {vr(TMP, 2)}, {vr(TMP + 2, 2)}')
        tag(g, [TMP, TMP + 1], FS + 1)
        g(f'buffer_store_dwordx2 {vr(TMP, 2)}, v{GA}, {S_WS}, {S_GA} offen sc1')

    GK, GV, S_GU = 12, 13, 's100'
    if mode == 'g_addr':
        g(f'''s_lshr_b32 {S_R}, s14, 3
              s_and_b32 {S_CU}, s14, 7
              s_lshl_b32 {S_GU}, {S_CU}, 3
              s_add_u32 {S_GU}, {S_GU}, s3
              s_mul_i32 {S_T}, {S_R}, {P["PH"]}
              s_add_u32 {S_GU}, {S_GU}, {S_T}
              s_add_u32 {S_CU}, {S_CU}, {SPL}''')
        g.bits(GK, 0, [(1, 1, 1024), (2, 2, 256), (0, 1, 64), (4, 2, 16)], GV)
        g(f'v_lshlrev_b32 v{GV}, 4, v0')
        return
    if mode == 'g_issue':
        for n in arg:
            i, isk, u = n & 7, n < 8 * NUG, (n >> 3) % NUG
            if i == 0:
                p = 18 if isk else 20
                g(f's_lshl_b32 {S_T}, {S_R}, 23\ns_add_u32 s56, s{p}, {S_T}\ns_addc_u32 s57, s{p + 1}, 0\ns_mov_b32 s58, 0x800000')
                g(f's_add_u32 s101, {S_GU}, {1024 - 64 * (NUG - u)}\ns_and_b32 s101, s101, 1023\ns_lshl_b32 s101, s101, 13\ns_add_u32 {S_T}, s101, 4096')
            off = ((i >> 1) & 1) * 2048 + (i & 1) * 128 if isk else (i & 3) * 1024
            g(f'buffer_load_dwordx4 {vr(SLOT(0) + 4 * n, 4)}, v{GK if isk else GV}, {S_A}, {S_T if i >= 4 else "s101"} offen offset:{off} nt')
        return
    gq = '\n'.join(f'buffer_load_dwordx4 {vr(Q0 + 4 * i, 4)}, v{LA}, {S_WS}, 0 offen offset:{(i >> 1) * 256 + (i & 1) * 16} sc1' for i in range(4))

    def gq_addr():
        g(f's_lshl_b32 {S_T}, {S_R}, 12\ns_add_u32 {S_T}, {S_T}, {QB}')
        g.bits(LA, 0, [(0, 3, 512), (3, 1, 128), (4, 2, 32)], GA, S_T)
    if mode == 'g_q':
        gq_addr()
        g.vmop(gq, 'gq')
        return
    if mode == 'g_compute':
        g.vmwait('gq')
        poll(g, gq, range(Q0, Q0 + 16), T2, 8, preloaded=True, mask=0xffff)
        for i in range(8):
            g(f'v_perm_b32 v{Q0 + i}, v{Q0 + 2 * i + 1}, v{Q0 + 2 * i}, {S_HI}')
        mailbox()
        g.bits(LA, 0, [(0, 4, 64)], T2)
        g(f'v_mov_b32 v{VSC}, 0x3db504f3\nv_mov_b32 v{VMAX}, 0xff800000')
        for u in range(NUG):
            qk(u)
        softmax()
        for u in range(NUG):
            probs(u, NUG - 1)
        epi_addr()
        for u in range(NUG):
            pv(u)
        g('s_waitcnt lgkmcnt(0)\ns_barrier')
        stats()
        factor()
        g('s_nop 0')
        epilogue()
        g('s_barrier')
        return

    entry()
    GS = P['GS']
    order = list(range(96))
    if P['ILV']:
        order = list(range(32, 48))
        for i in range(16):
            order += [2 * i, 2 * i + 1, 48 + i]
        order += list(range(64, 96))
    last = lambda ids: max(order.index(i) for i in ids)
    depth = lambda n: P['DK1'] if n < P['NK1'] else (P['DK2'] if n < 48 else (P['DX'] if n < 64 else P['DV']))
    qsteps = list(range(P['QP0'] - 1, P['QG'] - 1, P['QPS']))
    st = dict(landed=-1, issued=-1, done=0)

    def land(n):
        if n > st['landed']:
            g.vmwait(n)
            st['landed'] = n

    def hint_flag():
        skip = only_wave(g, P['SW'])
        arrived(g, Q0 + 1, S_KV, C_A, 2 * SPL)
        g(skip + ':')
        st['hint'] = True

    W = [('q', -1, qget)]
    W += [('qk%d' % u, last(range(8 * u, 8 * u + 8)), lambda u=u: qk(u)) for u in ([0, 1, 4, 5, 2, 3] if P['ILV'] else range(NU))]
    W += [('sm', -1, softmax)]
    W += [('pr%d' % u, -1, lambda u=u: probs(u)) for u in range(NU)]
    W += [('st', -1, stats), ('rb', 63, lambda: (readback(), epi_addr(), lds_units()))]
    for u in range(4):
        if u == 3:
            W += [('fs', -1, factor)]
        W += [('pv%d' % u, 64 + 8 * u + 7, lambda u=u: ((g.stamp('a_landed') if u == 3 else None), pv(u)))]
    names = [w[0] for w in W]

    def work(budget, need=None):
        while st['done'] < len(W):
            forced = need is not None and st['done'] <= names.index(need)
            name, ld, act = W[st['done']]
            if not forced and (budget <= 0 or st['landed'] < ld or st['issued'] < P['QG'] - 1):
                return
            assert ld <= st['issued']
            land(ld)
            act()
            st['done'] += 1
            budget -= 1

    for n in range(0, 96, GS):
        d = depth(n)
        if n + GS - 1 >= d:
            land(n + GS - 1 - d)
        if n >= 64 and n % 8 == 0:
            work(0, ['qk1', 'qk2', 'qk3', 'pv0'][(n - 64) >> 3])
        for i in range(GS):
            load(order[n + i], n + i)
        m = n + GS - 1
        if n == 0:
            setup()
        st['issued'] = m
        if m == P['STPOS']:
            g.stamp('a_pos')
        if m >= 12 and not st.get('ep'):
            st['ep'] = True
            g.vmwait('ep')
            epoch_tag(g, T2 + 2)
        if m in qsteps:
            if m != qsteps[0]:
                land(m - P['QPS'] + 1)
            qstep()
        if m == P['HPOS']:
            work(0, 'st')
            skip = only_wave(g, P['SW'])
            arrive(g, Q0 + 1, S_KV, C_A)
            g(skip + ':')
        if m == P['RPOS']:
            skip = only_wave(g, P['SW'])
            g(f's_cmp_ge_u32 {S_CU}, {SPL - NMR}\ns_cbranch_scc1 {skip}')
            arrive(g, Q0 + 4, 0, C_R)
            g(skip + ':')
        if st['landed'] > P['HPOS'] and not st.get('hint'):
            hint_flag()
        work(GS)
    assert (P['HPOS'] + 1) % GS == 0 and (P['RPOS'] + 1) % GS == 0 and P['QP0'] % GS == 0 and P['QPS'] % GS == 0
    if not st.get('hint'):
        work(0, 'pv2')
        land(P['HPOS'] + 1)
        hint_flag()
    work(0, 'fs')
    land(95)
    skip = only_wave(g, P['SW'])
    g(f'v_mov_b32 v{Q0 + 5}, 0\ns_mov_b64 exec, 1\nds_write_b32 v{Q0 + 5}, v{Q0 + 4} offset:{RK}\ns_mov_b64 exec, -1')
    g(skip + ':')
    work(0, 'pv3')

    epilogue()
    g.stamp('a_pub', (0, 1, 2))
    g(f's_mul_i32 s14, {S_R}, {NMR}\ns_add_u32 s14, s14, {S_CU}\ns_sub_u32 s14, s14, {SPL - NMR}')
    g(f's_cmp_ge_u32 {S_CU}, {SPL - NMR}\ns_cbranch_scc1 L_mlp')
    g(f'v_mov_b32 v8, 0\nds_read_b32 v8, v8 offset:{RK}\ns_waitcnt lgkmcnt(0)\nv_readfirstlane_b32 s14, v8')
    g('s_cmp_lt_u32 s14, 128\ns_cbranch_scc1 L_late')
    write_stamps(g)
    g('s_endpgm')


def build(stamps=False):
    g = G(stamps)
    ref = open(REF).read()
    g.L.append(ref[:ref.index('; Override launch')].rstrip())
    g.L.append('; @launch grid=(%d,1,1) block=(512,1,1) lds=%d' % (NWG, LDS_TOTAL))
    g.L.append('.amdgcn_target "amdgcn-amd-amdhsa--gfx950"\n.text\n.globl %s_kernel\n.p2align 8\n.type %s_kernel,@function' % (NAME, NAME))
    g.L.append('%s_kernel:' % NAME)
    g.stamp('start', (0, 1, 2))
    g(f's_cmp_ge_u32 s2, {NWG}\ns_cbranch_scc1 L_exit')
    g(f'''s_load_dwordx16 s[16:31], s[0:1], 0
          s_load_dwordx8 s[32:39], s[0:1], 64
          s_load_dwordx4 s[40:43], s[0:1], 96
          s_load_dwordx2 s[44:45], s[0:1], 112
          v_lshrrev_b32 v1, 6, v0
          v_and_b32 v0, 63, v0
          v_readfirstlane_b32 s3, v1
          s_mov_b32 {S_LO}, 0x05040100
          s_mov_b32 {S_HI}, 0x07060302
          s_mov_b32 {S_MASK}, 0xffff0000''')
    g(f's_cmp_lt_u32 s2, {NG}\ns_cbranch_scc1 L_proj')
    n0 = g.nst
    attention(g)
    n1 = g.nst
    latem(g)
    g.nst = n1 + (1 if g.stamps else 0)
    mlp(g)
    g.nst = n0
    proj(g)
    g('L_exit:\ns_endpgm')
    g('.fill 2048, 4, 0xbf800000')
    g.L.append('''.section .rodata,"a"
.p2align 6
.amdhsa_kernel %s_kernel
  .amdhsa_next_free_vgpr 256
  .amdhsa_next_free_sgpr 102
  .amdhsa_accum_offset 256
  .amdhsa_group_segment_fixed_size 0
  .amdhsa_kernarg_size 120
  .amdhsa_user_sgpr_count 2
  .amdhsa_user_sgpr_kernarg_segment_ptr 1
  .amdhsa_system_sgpr_workgroup_id_x 1
.end_amdhsa_kernel''' % NAME)
    return '\n'.join(g.L) + '\n'


if __name__ == '__main__':
    out = sys.argv[1]
    for a in sys.argv[2:]:
        if '=' in a:
            k, v = a.split('=')
            assert k in P, k
            P[k] = int(v)
    open(out, 'w').write(build(stamps='--stamps' in sys.argv))
```

```python
import sys
NAME = 'adaLN_cond__gqa_block_cached__mixer_channel_mlp__decode'
REF = 'cdna_kernels/%s.s.ref' % NAME

NG = 64
SPL = 24
NMR = 7
NA = 8 * SPL
NWG = NG + NA
WPR = SPL * 8
NU = 6

QB, STATS, X1, MODP, MODL = 0x8000, 0x10000, 0x18000, 0x20000, 0x30000
MBA, MBB, MBC = 0x100000, 0x200000, 0x300000
SLOTS = 32
MBA_ST = 2 * SLOTS * 256
WS_SIZE = 0x400000
SPIN = 1 << 18
C_A, C_R = 0, 64
TMASK = 0xff

P = dict(MSL=4, LSL=8, QSL=8, ASL=2, GS=1, DK1=8, NK1=28, DK2=8, DV=12, QP0=40, QPS=8, SLEEP=0, PH=64, QG=62, DX=8, TLB=0, W2TH=1, NAT=1, NOQ=0, QW=7, SW=6, GE=0, NUG=0, RPOS=94, ILV=0, ROT=1, MW=4, HPOS=76, ST=0, DBGST=-1, PADTO=0, PADWG=-1, STPOS=-1)

S_WS, S_DBG, S_A, S_B = 's[48:51]', 's[52:55]', 's[56:59]', 's[60:63]'
S_LO, S_HI, S_MASK, S_SPIN = 's64', 's65', 's66', 's67'
S_TAG, S_EPO, S_T16 = 's26', 's27', 's1'
DPP = 'row_mask:0xf bank_mask:0xf'


def vr(a, n):
    return 'v[%d:%d]' % (a, a + n - 1)


PADAT = []


class G:
    def __init__(self, stamps=False):
        self.vm = []
        self.L = []
        self.stamps = stamps
        self.nlabel = 0
        self.nst = 0

    def __call__(self, s):
        for line in s.strip('\n').split('\n'):
            line = line.strip()
            if line:
                self.L.append(line if line.endswith(':') else '    ' + line)

    def label(self, p='L'):
        self.nlabel += 1
        return '%s_%d' % (p, self.nlabel)

    def stamp(self, name, sets=(0,)):
        if PADAT and name == PADAT[0]:
            self('s_memrealtime s[90:91]')
            self.padarmed = True
        if self.stamps and P['ST'] in sets:
            k = self.nst
            self.nst += 1
            assert k < 13 and (k < 11 or name[0] in 'gr'), name
            self('s_memrealtime s[%d:%d] ; stamp %d %s' % (70 + 2 * k, 71 + 2 * k, k, name))

    def vmop(self, text, tag):
        for line in text.strip().split('\n'):
            self(line)
            self.vm.append(tag)

    def vmwait(self, *tags):
        idx = [i for i, t in enumerate(self.vm) if t in tags]
        if not idx:
            return
        n = len(self.vm) - 1 - idx[-1]
        assert n <= 63
        self('s_waitcnt vmcnt(%d)' % n)
        self.vm = self.vm[idx[-1] + 1:]

    def nop(self, n):
        while n > 0:
            k = min(n, 16)
            self('s_nop %d' % (k - 1))
            n -= k

    def bits(self, dst, src, fields, tmp, add=None):
        first = True
        for (lo, n, mul) in fields:
            t = dst if first else tmp
            if lo == 0:
                self(f'v_and_b32 v{t}, {(1 << n) - 1}, v{src}')
            else:
                self(f'v_bfe_u32 v{t}, v{src}, {lo}, {n}')
            pw = mul & (mul - 1) == 0
            sh = mul.bit_length() - 1
            if first:
                if mul != 1:
                    self(f'v_lshlrev_b32 v{dst}, {sh}, v{dst}' if pw else f'v_mul_u32_u24 v{dst}, {mul}, v{dst}')
            elif mul == 1:
                self(f'v_add_u32 v{dst}, v{dst}, v{tmp}')
            elif pw:
                self(f'v_lshl_add_u32 v{dst}, v{tmp}, {sh}, v{dst}')
            else:
                self(f'v_mul_u32_u24 v{tmp}, {mul}, v{tmp}\nv_add_u32 v{dst}, v{dst}, v{tmp}')
            first = False
        if add not in (None, 0):
            self(f'v_add_u32 v{dst}, {add}, v{dst}')

    def setexec(self, m):
        if m == -1:
            self('s_mov_b64 exec, -1')
        elif m < (1 << 31):
            self('s_mov_b64 exec, 0x%x' % m)
        else:
            self('s_mov_b32 exec_lo, 0x%x\ns_mov_b32 exec_hi, 0x%x' % (m & 0xffffffff, m >> 32))


def rep16(m):
    return m * 0x0001000100010001


def check(g, regs, tmp, mask=TMASK):
    regs = list(regs)
    g(f'v_bitop3_b32 v{tmp}, v{regs[0]}, v{regs[1]}, {S_EPO} bitop3:0x7e')
    for r in regs[2:]:
        g(f'v_bitop3_b32 v{tmp}, v{tmp}, v{r}, {S_EPO} bitop3:0xf6')
    if mask == 0xffff:
        g(f'v_cmp_ne_u16 vcc, 0, v{tmp}')
        return
    if mask != -1:
        g(f'v_and_b32 v{tmp}, {mask}, v{tmp}')
    g(f'v_cmp_ne_u32 vcc, 0, v{tmp}')


def tagmask(g, vm):
    g(f'v_mov_b32 v{vm}, 0x{0xffffffff ^ TMASK:x}')


def tag(g, regs, vm):
    for r in regs:
        g(f'v_and_or_b32 v{r}, v{r}, v{vm}, {S_TAG}')


def epoch_load(reg):
    return f'buffer_load_dword v{reg}, off, {S_WS}, 0 sc1'


def epoch_tag(g, reg):
    g(f'''v_readfirstlane_b32 {S_EPO}, v{reg}
          s_mul_i32 {S_TAG}, {S_EPO}, 0x9e3779b1
          s_lshr_b32 {S_TAG}, {S_TAG}, 12
          s_or_b32 {S_TAG}, {S_TAG}, 1
          s_add_u32 {S_EPO}, {S_EPO}, {S_TAG}
          s_and_b32 {S_TAG}, {S_EPO}, {TMASK}
          s_and_b32 {S_T16}, {S_EPO}, 0xffff''')


def poll(g, loads, regs, tmp, sleep=0, preloaded=False, mask=TMASK):
    lp, done, chk = g.label('L_poll'), g.label('L_ok'), g.label('L_chk')
    g(f's_mov_b32 {S_SPIN}, {SPIN}')
    if preloaded:
        g(f's_branch {chk}')
    g(lp + ':')
    g(loads)
    g('s_waitcnt vmcnt(0)')
    if preloaded:
        g(chk + ':')
    check(g, regs, tmp, mask)
    g(f's_cbranch_vccz {done}')
    if sleep:
        g(f's_sleep {sleep}')
    g(f's_sub_u32 {S_SPIN}, {S_SPIN}, 1\ns_cbranch_scc0 {lp}')
    g(done + ':')


def fread(reg, soff, off):
    return f'buffer_load_dword v{reg}, off, {S_DBG}, {soff} offset:{off + 128} sc1'


def fpoll(g, reg, soff, off, sleep, preloaded=False):
    lp, done, chk = g.label('L_fpoll'), g.label('L_fok'), g.label('L_fchk')
    g(f's_mov_b32 {S_SPIN}, {SPIN}')
    if preloaded:
        g(f's_branch {chk}')
    g(lp + ':')
    g(fread(reg, soff, off) + '\ns_waitcnt vmcnt(0)')
    if preloaded:
        g(chk + ':')
    g(f'v_cmp_eq_u32 vcc, 0, v{reg}\ns_cbranch_vccz {done}')
    if sleep:
        g(f's_sleep {sleep}')
    g(f's_sub_u32 {S_SPIN}, {S_SPIN}, 1\ns_cbranch_scc0 {lp}')
    g(done + ':')


def fwait(g, reg, soff, off, sleep):
    skip = only_wave(g, 0)
    fpoll(g, reg, soff, off, sleep)
    g(skip + ':')
    g('s_barrier')


def arrive(g, reg, soff, off):
    g(f'v_mov_b32 v{reg}, 1\ns_mov_b64 exec, 1\nbuffer_atomic_add v{reg}, off, {S_DBG}, {soff} offset:{off} sc0 sc1\ns_mov_b64 exec, -1')


def arrived(g, reg, soff, off, n):
    skip = g.label('L_notlast')
    g(f'v_readfirstlane_b32 s99, v{reg}\ns_cmp_lg_u32 s99, {n - 1}\ns_cbranch_scc1 {skip}')
    g(f's_mov_b64 exec, 1\nbuffer_store_dword v{reg}, off, {S_DBG}, {soff} offset:{off + 128} sc1\ns_mov_b64 exec, -1')
    g(skip + ':')


def srd(g, s, lo, size):
    base = int(s[2:s.index(':')])
    g(f's_mov_b32 s{base}, s{lo}\ns_mov_b32 s{base + 1}, s{lo + 1}\ns_mov_b32 s{base + 2}, 0x{size:x}\ns_mov_b32 s{base + 3}, 0x20000')


def only_wave(g, w):
    skip = g.label('L_skip')
    g(f's_cmp_lg_u32 s3, {w}\ns_cbranch_scc1 {skip}')
    return skip


def write_stamps(g):
    if PADAT and getattr(g, 'padarmed', False):
        l = g.label('L_padat')
        g(f'{l}:\ns_memrealtime s[4:5]\ns_waitcnt lgkmcnt(0)\ns_sub_u32 s4, s4, s90\ns_sleep 4\ns_cmp_lt_u32 s4, 6000\ns_cbranch_scc1 {l}')
    if not g.stamps:
        return
    g('s_waitcnt lgkmcnt(0)')
    skip = only_wave(g, 0)
    g('s_mov_b64 exec, 1')
    if P['DBGST'] >= 0:
        g(f's_cmp_lg_u32 s2, {P["DBGST"]}\ns_cbranch_scc1 {skip}')
        for k in range(1, min(g.nst, 12)):
            g(f's_sub_u32 s4, s{70 + 2 * k}, s70\nv_mov_b32 v2, s4')
            g(f'buffer_store_dword v2, off, {S_DBG}, 0 offset:{16 + 4 * k}')
        g(skip + ':')
        return
    g('s_lshl_b32 s4, s2, 8\ns_add_u32 s4, s44, s4\ns_addc_u32 s5, s45, 0')
    g('s_add_u32 s4, s4, %d\ns_addc_u32 s5, s5, 0' % (255 << 20))
    g('v_mov_b32 v1, 0')
    for k in range(g.nst):
        g(f'v_mov_b32 v2, s{70 + 2 * k}\nv_mov_b32 v3, s{71 + 2 * k}')
        g(f'global_store_dwordx2 v1, v[2:3], s[4:5] offset:{8 * k}')
        g('s_nop 1')
    g(skip + ':')


def prefetch_code(g, label, nkb8, vtmp, vdst, tag=None):
    pc = g.label('L_pc')
    g('s_getpc_b64 s[98:99]')
    if label:
        g(f'{pc}:\ns_add_u32 s98, s98, {label}-{pc}\ns_addc_u32 s99, s99, 0')
    g('s_and_b32 s98, s98, 0xffffff80')
    g(f's_lshl_b32 s97, s3, 10\nv_lshl_add_u32 v{vtmp}, v0, 4, s97')
    for i in range(nkb8):
        if i:
            g(f'v_add_u32 v{vtmp}, 8192, v{vtmp}')
        t = f'global_load_dwordx4 {vr(vdst, 4)}, v{vtmp}, s[98:99]'
        g.vmop(t, tag) if tag else g(t)


BLK = lambda i: 64 + 32 * i
UA, UB, UC = 0, 2, 4
ACC = 32
KW, NB, NW, NR, NO, KB, TID = 1, 2, 3, 4, 5, 6, 7
T = 24


class Lds:
    def __init__(self, base):
        self.ACTS, self.ACTH, self.RED = base, base + 4352, base + 8704
        self.OUTV = base + 17408
        self.PART = base + 17664
        self.STAT = base + 18688
        self.END = base + 19200


ABS = 2048 + 128


def nstep():
    return 1 if P['NAT'] else 64


def nvoff(g, dst, rs, tid=TID, tmp=T + 7):
    g.bits(dst, tid, [(3, 6, rs * 8 if P['NAT'] else rs), (0, 3, 16)], tmp)


def nload(g, unit, ptr, size, rs, s_col, voff, kbs=(0, 1), tag=None):
    srd(g, S_A, ptr, size)
    for kb in kbs:
        g(f's_add_u32 s4, {s_col}, {kb * 512 * rs}')
        for t in range(8):
            g.vmop(f'buffer_load_dwordx4 {vr(BLK(unit + kb) + 4 * t, 4)}, v{voff}, {S_A}, s4 offen nt', (tag, kb))
            if t < 7:
                g(f's_add_u32 s4, s4, {nstep() * rs}')


def kload(g, unit, ptr, size, s_idx, voff, rowf, tag):
    srd(g, S_A, ptr, size)
    g(f's_lshl_b32 s5, {s_idx}, 17')
    for kb in range(2):
        for t in range(8):
            g(f's_add_u32 s4, s5, {rowf(kb, t) * 2048}')
            g.vmop(f'buffer_load_dwordx4 {vr(BLK(unit + kb) + 4 * t, 4)}, v{voff}, {S_A}, s4 offen nt', (tag, kb))


def transpose(g, blk, T=T):
    b = BLK(blk)
    for p in range(4):
        a, c = b + 8 * p + p, b + 8 * p + 4 + p
        g(f'v_perm_b32 v{T}, v{c}, v{a}, {S_LO}\nv_perm_b32 v{c}, v{c}, v{a}, {S_HI}\nv_mov_b32 v{a}, v{T}')
    for p in range(4):
        for w in range(p + 1, 4):
            xa, xb = b + 8 * p + w, b + 8 * p + 4 + w
            ya, yb = b + 8 * w + p, b + 8 * w + 4 + p
            g(f'v_perm_b32 v{T}, v{xb}, v{xa}, {S_LO}\nv_perm_b32 v{T + 1}, v{xb}, v{xa}, {S_HI}')
            g(f'v_perm_b32 v{xa}, v{yb}, v{ya}, {S_LO}\nv_perm_b32 v{xb}, v{yb}, v{ya}, {S_HI}')
            g(f'v_mov_b32 v{ya}, v{T}\nv_mov_b32 v{yb}, v{T + 1}')


def mfmas(g, unit, b0, b1):
    for kb, bop in ((0, b0), (1, b1)):
        if kb == 1:
            g('s_waitcnt lgkmcnt(0)')
        for j in range(8):
            d = vr(ACC + 4 * j, 4)
            g(f'v_mfma_f32_16x16x32_bf16 {d}, {vr(BLK(unit + kb) + 4 * j, 4)}, {vr(bop, 4)}, {d if kb else 0}')


def common_addr(g, L, kperm):
    K0B = T + 6
    g(f's_lshl_b32 s4, s3, 6\nv_add_u32 v{TID}, s4, v0')
    g.bits(K0B, TID, [(3, 6, 64), (0, 2, 16), (2, 1, 8)], T)
    if P['NAT']:
        g.bits(KW, K0B, [(11, 1, ABS), (0, 11, 1)], T)
        g.bits(NB, TID, [(0, 1, ABS), (6, 3, 128), (4, 2, 32), (1, 1, 16)], T)
    else:
        g.bits(KW, K0B, [(11, 1, ABS), (4, 3, 256), (10, 1, 128), (1, 3, 16), (7, 3, 2)], T)
        g.bits(NB, TID, [(0, 1, ABS), (6, 3, 256), (4, 2, 32), (1, 1, 16)], T)
    g.bits(NW, TID, [(6, 3, 1088), (1, 1, 544), (0, 1, 256), (2, 2, 32), (4, 1, 16)], T, L.RED)
    g.bits(NR, TID, [(0, 2, 544), (2, 7, 4)], T, L.RED)
    if kperm:
        g.bits(NO, TID, [(8, 1, 128), (4, 1, 64), (5, 1, 32), (7, 1, 16), (2, 2, 4), (6, 1, 2)], T, L.OUTV)
    else:
        g.bits(NO, TID, [(8, 1, 128), (2, 3, 16), (5, 2, 4), (7, 1, 2)], T, L.OUTV)
    g.bits(KB, TID, [(0, 1, 128), (4, 2, 16)], T, L.OUTV)


def nsplit(g, unit, act, half=None):
    if half is None:
        g(f'ds_read_b128 {vr(T, 4)}, v{NB} offset:{act}\nds_read_b128 {vr(T + 4, 4)}, v{NB} offset:{act + (1024 if P["NAT"] else 128)}')
        g('s_waitcnt lgkmcnt(1)')
        mfmas(g, unit, T, T + 4)
    else:
        g(f'ds_read_b128 {vr(T, 4)}, v{half} offset:{act}\ns_waitcnt lgkmcnt(0)')
        for j in range(8):
            g(f'v_mfma_f32_16x16x32_bf16 {vr(ACC + 4 * j, 4)}, {vr(BLK(unit) + 4 * j, 4)}, {vr(T, 4)}, 0')
    for dd in range(1, 4):
        g.setexec(rep16(0xf << (4 * dd)))
        if dd != 2:
            g.nop(2)
        for i in range(4):
            g(f'v_mov_b64 {vr(ACC + 2 * i, 2)}, {vr(ACC + 8 * dd + 2 * i, 2)}')
    g.setexec(0xcccccccc33333333)
    g(f'ds_write_b128 v{NW}, {vr(ACC, 4)}\nds_write_b128 v{NW}, {vr(ACC + 4, 4)} offset:128')
    g.setexec(-1)
    g('s_waitcnt lgkmcnt(0)\ns_barrier')
    for k in range(4):
        g(f'ds_read_b32 v{T + k}, v{NR} offset:{k * 4 * 544}')
    g('s_waitcnt lgkmcnt(2)')
    g(f'v_add_f32 v{T}, v{T}, v{T + 1}')
    g('s_waitcnt lgkmcnt(0)')
    g(f'v_add_f32 v{T + 2}, v{T + 2}, v{T + 3}\nv_add_f32 v{T}, v{T}, v{T + 2}')
    g.nop(2)
    g(f'v_add_f32_dpp v{T}, v{T}, v{T} quad_perm:[1,0,3,2] {DPP}')
    g.nop(2)
    g(f'v_add_f32_dpp v{T}, v{T}, v{T} quad_perm:[2,3,0,1] {DPP}')


def actwrite(g, p, act):
    if P['NAT']:
        g(f'ds_write_b64 v{KW}, {vr(p, 2)} offset:{act}')
        return
    g(f'ds_write_b16 v{KW}, v{p} offset:{act}\nds_write_b16_d16_hi v{KW}, v{p} offset:{act + 16}')
    g(f'ds_write_b16 v{KW}, v{p + 1} offset:{act + 32}\nds_write_b16_d16_hi v{KW}, v{p + 1} offset:{act + 48}')


def unpack2(g, d, s):
    g(f'v_lshlrev_b32 v{d}, 16, v{s}\nv_and_b32 v{d + 1}, {S_MASK}, v{s}')


def unpack(g, d, s):
    unpack2(g, d, s)
    unpack2(g, d + 2, s + 1)


def pack(g, t, d):
    g(f'v_cvt_pk_bf16_f32 v{t}, v{d}, v{d + 1}\nv_cvt_pk_bf16_f32 v{t + 1}, v{d + 2}, v{d + 3}')


def round4(g, d, t):
    pack(g, t, d)
    unpack(g, d, t)


def round2(g, a):
    g(f'v_cvt_pk_bf16_f32 v{a + 1}, v{a}, v{a + 1}')
    unpack2(g, a, a + 1)


def pk4(g, op, d, a, b):
    g(f'{op} {vr(d, 2)}, {vr(a, 2)}, {vr(b, 2)}\n{op} {vr(d + 2, 2)}, {vr(a + 2, 2)}, {vr(b + 2, 2)}')


def layernorm(g, x, sw, sr, off, last_packed=False):
    a, b = T + 4, T + 5
    g(f'v_add_f32 v{a}, v{x}, v{x + 1}\nv_mul_f32 v{b}, v{x}, v{x}')
    g(f'v_add_f32 v{T}, v{x + 2}, v{x + 3}\nv_fmac_f32 v{b}, v{x + 1}, v{x + 1}')
    g(f'v_add_f32 v{a}, v{a}, v{T}\nv_fmac_f32 v{b}, v{x + 2}, v{x + 2}\nv_fmac_f32 v{b}, v{x + 3}, v{x + 3}')
    for i, ctl in enumerate(['row_ror:8 ' + DPP, 'row_ror:4 ' + DPP, 'row_ror:2 ' + DPP, 'row_ror:1 ' + DPP,
                             'row_bcast:15 row_mask:0xa bank_mask:0xf', 'row_bcast:31 row_mask:0xc bank_mask:0xf']):
        if i:
            g('s_nop 0')
        g(f'v_add_f32_dpp v{a}, v{a}, v{a} {ctl}')
        if i == 0:
            g('s_nop 0')
        g(f'v_add_f32_dpp v{b}, v{b}, v{b} {ctl}')
    g.setexec(1 << 63)
    g(f'ds_write_b64 v{sw}, {vr(a, 2)} offset:{off}')
    g.setexec(-1)
    g('s_waitcnt lgkmcnt(0)\ns_barrier')
    g(f'ds_read_b128 {vr(T, 4)}, v{sr} offset:{off}\nds_read_b128 {vr(T + 4, 4)}, v{sr} offset:{off + 16}')
    g('s_waitcnt lgkmcnt(0)')
    pk4(g, 'v_pk_add_f32', T, T, T + 4)
    g(f'v_pk_add_f32 {vr(a, 2)}, {vr(T, 2)}, {vr(T + 2, 2)}')
    g(f'v_mul_f32 v{a}, 0x3a800000, v{a}\nv_mul_f32 v{b}, 0x3a800000, v{b}')
    g(f'v_fma_f32 v{b}, -v{a}, v{a}, v{b}\nv_max_f32 v{b}, 0, v{b}')
    round2(g, a)
    g(f'v_add_f32 v{b}, 0x3727c5ac, v{b}')
    g(f'v_cvt_pk_bf16_f32 v{b}, v{b}, v{b}\nv_lshlrev_b32 v{b}, 16, v{b}')
    g(f'v_sqrt_f32 v{b}, v{b}')
    for i in range(4):
        g(f'v_sub_f32 v{x + i}, v{x + i}, v{a}')
    g(f'v_cvt_pk_bf16_f32 v{b}, v{b}, v{b}\nv_lshlrev_b32 v{b}, 16, v{b}')
    g(f'v_rcp_f32 v{b}, v{b}')
    round4(g, x, T + 6)
    for i in range(4):
        g(f'v_mul_f32 v{x + i}, v{x + i}, v{b}')
    if last_packed:
        pack(g, T + 6, x)
    else:
        round4(g, x, T + 6)


def ksplit_out(g, unit, po, mb):
    g(f'ds_read_b128 {vr(T, 4)}, v{KB}\nds_read_b128 {vr(T + 4, 4)}, v{KB} offset:64')
    g('s_waitcnt lgkmcnt(1)')
    mfmas(g, unit, T, T + 4)
    tagmask(g, T)
    for j in range(1, 8):
        g.setexec(rep16(3 << (2 * j)))
        g(f'v_mov_b64 {vr(ACC, 2)}, {vr(ACC + 4 * j, 2)}\nv_mov_b64 {vr(ACC + 2, 2)}, {vr(ACC + 4 * j + 2, 2)}')
    g.setexec(-1)
    tag(g, range(ACC, ACC + 4), T)
    g(f'buffer_store_dwordx4 {vr(ACC, 4)}, v{po}, {S_WS}, {mb} offen sc1')


def publish32(g, L, s_off, bstride, exact):
    g(f'v_subrev_u32 v{T + 1}, {L.OUTV}, v{NO}\nv_lshlrev_b32 v{T + 1}, 1, v{T + 1}\nds_write_b32 v{T + 1}, v{T} offset:{L.PART}')
    g('s_waitcnt lgkmcnt(0)\ns_barrier')
    skip = only_wave(g, 0)
    if exact:
        g(f'v_lshlrev_b32 v{T + 4}, 3, v0\nds_read_b64 {vr(T + 6, 2)}, v{T + 4} offset:{L.PART}')
        g.bits(T + 5, 0, [(5, 1, bstride), (0, 5, 16)], T + 4)
        g(f'v_mov_b32 v{T + 1}, {S_EPO}\nv_mov_b32 v{T + 3}, {S_EPO}\ns_waitcnt lgkmcnt(0)')
        g(f'v_mov_b32 v{T}, v{T + 6}\nv_mov_b32 v{T + 2}, v{T + 7}')
    else:
        g(f'v_lshlrev_b32 v{T + 4}, 4, v0\nds_read_b128 {vr(T, 4)}, v{T + 4} offset:{L.PART}')
        g.bits(T + 5, 0, [(4, 1, bstride), (0, 4, 16)], T + 6)
        g('s_waitcnt lgkmcnt(0)\ns_mov_b32 exec_hi, 0')
    g(f'buffer_store_dwordx4 {vr(T, 4)}, v{T + 5}, {S_WS}, {s_off} offen sc1')
    g.setexec(-1)
    g('s_nop 0')
    g(skip + ':')


def silu_image(g, L, src):
    unpack(g, ACC, src)
    for i in range(4):
        g(f'v_mul_f32 v{T + i}, 0xbfb8aa3b, v{ACC + i}')
    for i in range(4):
        g(f'v_exp_f32 v{T + i}, v{T + i}')
    for i in range(4):
        g(f'v_add_f32 v{T + i}, 1.0, v{T + i}')
    for i in range(4):
        g(f'v_rcp_f32 v{T + i}, v{T + i}')
    for i in range(4):
        g(f'v_mul_f32 v{T + i}, v{T + i}, v{ACC + i}')
    pack(g, T + 4, T)
    actwrite(g, T + 4, L.ACTS)


def proj(g):
    L = Lds(8448)
    Y, SB = 8, 12
    PO, RO, RL, OUTO = 8, 9, 10, 11
    WG, AO, AO3, OW = 12, 17, 18, 16
    WQO, WMO, SW, SR = 17, 18, 19, 23
    RX, RGA, RGB, RB2 = 20, 21, 22, 23
    JC, ODD = 's14', 's15'
    g.vm = []

    def gate(part):
        skip = only_wave(g, 0)
        g(f's_mov_b32 s4, {MODL + part * 4096}\ns_mov_b32 s5, {MODL + part * 4096 + 32768}')
        poll(g, f'buffer_load_dwordx2 {vr(ACC + 18, 2)}, v{RGA}, {S_WS}, s4 offen sc1\n'
                f'buffer_load_dwordx2 {vr(ACC + 20, 2)}, v{RGA}, {S_WS}, s5 offen sc1', range(ACC + 18, ACC + 22), T)
        g(f'v_pk_add_f32 {vr(ACC + 18, 2)}, {vr(ACC + 18, 2)}, {vr(ACC + 20, 2)}')
        round2(g, ACC + 18)
        g(skip + ':')

    def reduce(mb, nprod):
        if nprod < 64:
            g(f'v_mov_b32 v{T}, 0')
            skip = g.label('L_nored')
            g(f's_cmp_ge_u32 s3, {nprod // 8}\ns_cbranch_scc1 {skip}')
        poll(g, f'buffer_load_dwordx4 {vr(T, 4)}, v{RO}, {S_WS}, {mb} offen sc1', range(T, T + 4), T + 4)
        g.stamp('red_polled%d' % nprod, (1,))
        g(f'v_permlane32_swap_b32 v{T}, v{T + 2}\nv_permlane32_swap_b32 v{T + 1}, v{T + 3}')
        g(f'v_add_f32 v{T}, v{T}, v{T + 2}\nv_add_f32 v{T + 1}, v{T + 1}, v{T + 3}')
        g.nop(2)
        g(f'v_permlane16_swap_b32 v{T}, v{T + 1}\nv_add_f32 v{T}, v{T}, v{T + 1}')
        g.nop(2)
        g(f'v_add_f32_dpp v{T}, v{T}, v{T} row_ror:8 {DPP}')
        if nprod < 64:
            g(skip + ':')
        g(f'ds_write_b32 v{RL}, v{T}')
        g('s_waitcnt lgkmcnt(0)\ns_barrier')
        skip = only_wave(g, 0)
        g(f'v_and_b32 v{T + 2}, 15, v0\nv_lshlrev_b32 v{T + 2}, 3, v{T + 2}')
        for w in range(8):
            g(f'ds_read_b64 {vr(ACC + 2 * w, 2)}, v{T + 2} offset:{L.PART + 128 * w}')
        return skip

    def reduce_sum():
        g('s_waitcnt lgkmcnt(4)')
        pk4(g, 'v_pk_add_f32', ACC, ACC, ACC + 4)
        g('s_waitcnt lgkmcnt(0)')
        pk4(g, 'v_pk_add_f32', ACC + 8, ACC + 8, ACC + 12)
        pk4(g, 'v_pk_add_f32', ACC, ACC, ACC + 8)
        g(f'v_pk_add_f32 {vr(T, 2)}, {vr(ACC, 2)}, {vr(ACC + 2, 2)}')
        round2(g, T)

    g('L_proj:')
    g(f's_and_b32 {JC}, s2, 7\ns_lshl_b32 {JC}, {JC}, 3\ns_lshr_b32 s4, s2, 3\ns_add_u32 {JC}, {JC}, s4')
    g(f's_lshl_b32 s4, s3, 6\nv_add_u32 v{TID}, s4, v0')
    g.bits(T + 6, TID, [(3, 6, 64), (0, 2, 16), (2, 1, 8)], T)
    nvoff(g, WMO, 12288)
    g(f'''s_and_b32 {ODD}, {JC}, 1
          s_lshr_b32 s6, {JC}, 1
          s_lshl_b32 s6, s6, 7
          s_mul_i32 s13, {ODD}, {512 * 12288}
          s_add_u32 s13, s13, s6
          s_lshl_b32 s7, {JC}, 7
          s_lshr_b32 s46, {JC}, 4
          s_lshl_b32 s46, s46, 2
          s_waitcnt lgkmcnt(0)''')
    srd(g, S_WS, 44, WS_SIZE)
    srd(g, S_DBG, 42, 256)
    g(f's_lshl_b32 s47, {ODD}, 15\ns_lshl_b32 s5, s6, 2\ns_add_u32 s47, s47, s5\ns_add_u32 s47, s47, {MODP}')
    g.vmop(epoch_load(RGB), 'in')
    srd(g, S_B, 36, 4096)
    g.vmop(f'buffer_load_dwordx2 {vr(SB, 2)}, v{T + 6}, {S_B}, 0 offen', 'in')
    srd(g, S_B, 16, 4096)
    g.vmop(f'buffer_load_dwordx2 {vr(SB + 2, 2)}, v{T + 6}, {S_B}, 0 offen', 'in')
    prefetch_code(g, None, 2, T, ACC + 4, 'in')
    nload(g, UA, 38, 1024 * 12288, 12288, 's13', WMO, (0,), tag='m1')
    common_addr(g, L, False)
    nvoff(g, WQO, 8192)
    g(f's_lshl_b32 s4, s3, 3\nv_mov_b32 v{SW}, s4\ns_and_b32 s4, s4, 32\nv_mov_b32 v{SR}, s4')
    g(f's_mul_i32 s8, {JC}, {MBA_ST}\ns_add_u32 s8, s8, {MBA}')
    g(f's_lshl_b32 s9, {JC}, 13\ns_add_u32 s10, s9, {MBC}\ns_add_u32 s9, s9, {MBB}')
    g(f's_lshl_b32 s11, {JC}, 7\ns_add_u32 s11, s11, {X1}')
    g.vmwait('in')
    epoch_tag(g, RGB)
    silu_image(g, L, SB)
    unpack(g, Y, SB + 2)
    layernorm(g, Y, SW, SR, L.STAT)
    nload(g, UB, 22, 1024 * 8192, 8192, 's7', WQO, (0,), tag='wq')
    g('s_waitcnt vmcnt(8)')
    transpose(g, UA)
    g(f's_lshl_b32 s4, {ODD}, {10 if P["NAT"] else 7}\nv_add_u32 v{T + 7}, s4, v{NB}')
    nsplit(g, UA, L.ACTS, T + 7)
    publish32(g, L, 's47', 16384, True)
    g.stamp('g_mod')
    nload(g, UB, 22, 1024 * 8192, 8192, 's7', WQO, (1,), tag='wq')
    MP = RGA
    g.bits(MP, TID, [(8, 1, 16384), (3, 5, 256), (0, 2, 64), (2, 1, 32)], T + 7, MODP)
    g('s_waitcnt vmcnt(8)')
    transpose(g, UB)
    g(f's_mov_b32 s4, 8192\ns_mov_b32 s5, 32768\ns_mov_b32 s12, {32768 + 8192}')
    mloads = '\n'.join(f'buffer_load_dwordx4 {vr(ACC + 4 * i, 4)}, v{MP}, {S_WS}, {("0", "s5", "s4", "s12")[i >> 1]} offen offset:{16 * (i & 1)} sc1'
                       for i in range(8))
    g(f's_waitcnt vmcnt({P["MW"]})')
    g(mloads)
    attention(g, 'g_addr')
    attention(g, 'g_issue', range(P['GE']))
    g(f's_waitcnt vmcnt({8 + P["GE"]})')
    transpose(g, UB + 1)
    g(f's_waitcnt vmcnt({P["GE"]})')
    poll(g, mloads, range(ACC + 1, ACC + 32, 2), T, P['MSL'], preloaded=True, mask=-1)
    g.vm = []
    g.stamp('g_modseen')
    for i in range(4):
        g(f'v_add_f32 v{T + i}, v{ACC + 16 + 2 * i}, v{ACC + 24 + 2 * i}')
    for i in range(4):
        g(f'v_add_f32 v{ACC + i}, v{ACC + 2 * i}, v{ACC + 8 + 2 * i}')
    round4(g, T, T + 4)
    for i in range(4):
        g(f'v_add_f32 v{T + i}, 1.0, v{T + i}')
    round4(g, T, T + 4)
    pk4(g, 'v_pk_mul_f32', Y, Y, T)
    round4(g, Y, T + 4)
    round4(g, ACC, T + 4)
    pk4(g, 'v_pk_add_f32', Y, Y, ACC)
    pack(g, T, Y)
    actwrite(g, T, L.ACTH)
    g('s_waitcnt lgkmcnt(0)\ns_barrier')
    nsplit(g, UB, L.ACTH)
    g(f's_lshl_b32 s12, s7, 1\ns_add_u32 s12, s12, {QB}')
    g(f'v_cvt_pk_bf16_f32 v{T}, v{T}, v{T}\nv_lshl_or_b32 v{T}, v{T}, 16, {S_T16}')
    publish32(g, L, 's12', 16384, False)
    g.stamp('g_q')

    attention(g, 'g_issue', range(P['GE'], 16 * P['NUG']))
    if P['NUG']:
        attention(g, 'g_q')
    g.bits(T + 5, TID, [(4, 2, 4096), (6, 3, 256), (0, 4, 16)], T + 7)
    kload(g, UC, 24, 4096 * 2048, JC, T + 5, lambda kb, t: 32 * kb + (t & 3) * 8 + (t >> 2), 'wo')
    if P['NUG']:
        attention(g, 'g_compute')
        g.stamp('g_att')
        common_addr(g, L, False)
    g(f'v_lshlrev_b32 v{RO}, 4, v{TID}')
    g('s_waitcnt vmcnt(0)')
    g.vm = []
    transpose(g, UC)
    transpose(g, UC + 1)
    g.stamp('g_loaded')
    g(f's_lshr_b32 s4, {JC}, 1\ns_lshl_b32 s4, s4, 6\ns_lshl_b32 s5, {ODD}, 3\ns_add_u32 s4, s4, s5')
    g.bits(T, 0, [(1, 2, 16), (0, 1, 4)], T + 1, 's4')
    srd(g, S_B, 34, 2048)
    g(f'buffer_load_dword v{RB2}, v{T}, {S_B}, 0 offen')
    g(f'v_bfe_u32 v{T + 1}, v0, 3, 1\nv_lshlrev_b32 v{RGA}, 1, v{T}\nv_lshl_add_u32 v{RGA}, v{T + 1}, 14, v{RGA}')
    g(f'v_lshl_add_u32 v{OUTO}, v{T + 1}, 11, v{T}')
    srd(g, S_B, 16, 4096)
    g(f'buffer_load_dword v{RX}, v{OUTO}, {S_B}, 0 offen')
    srd(g, S_B, 40, 4096)
    g.bits(RL, TID, [(6, 3, 128), (0, 1, 64), (4, 2, 16), (1, 2, 4)], T, L.PART)
    g.bits(PO, TID, [(3, 6, 8192), (0, 3, 16)], T)
    g(f's_add_u32 s12, s7, {MBB}')
    g.bits(AO, TID, [(8, 1, SLOTS * 256), (3, 3, 256), (6, 2, 64), (0, 3, 8)], T + 3)
    g.bits(OW, TID, [(6, 3, 32), (0, 3, 4), (5, 1, 2)], T + 3, L.OUTV)
    g.bits(T + 5, TID, [(8, 1, 128), (3, 3, 4)], T + 3)
    g('s_add_u32 s13, s8, 4096')
    g.bits(T + 2, 0, [(5, 1, 8192), (0, 5, 8)], T + 3)
    g(f's_lshr_b32 s4, {JC}, 1\ns_lshl_b32 s4, s4, 8\ns_add_u32 s4, s4, {STATS}')
    prefetch_code(g, 'L_proj_tail', 1, T + 6, ACC)
    g.stamp('g_ready')
    g('L_proj_tail:')
    fwait(g, T, 's46', C_A, P['ASL'])
    g.stamp('g_hint', (0, 1))
    g(f'v_mov_b32 v{T}, 0xff800000\nv_mov_b32 v{T + 1}, 0')
    g.setexec(-1 if P['NUG'] else ((1 << SPL) - 1) * 0x100000001)
    poll(g, f'buffer_load_dwordx2 {vr(T, 2)}, v{T + 2}, {S_WS}, s4 offen sc1', [T, T + 1], T + 4, 2)
    g.setexec(-1)

    def red32(r, t, op):
        for sh in (8, 4, 2, 1):
            g.nop(2)
            g(f'{op}_dpp v{r}, v{r}, v{r} row_ror:{sh} {DPP}')
        g(f'v_mov_b32 v{t}, v{r}')
        g.nop(2)
        g(f'v_permlane16_swap_b32 v{r}, v{t}\n{op} v{r}, v{r}, v{t}')
    g(f'v_and_b32 v{T}, {S_MASK}, v{T}\nv_mov_b32 v{T + 2}, v{T}')
    red32(T + 2, T + 3, 'v_max_f32')
    g(f'v_sub_f32 v{T}, v{T}, v{T + 2}\nv_mul_f32 v{T}, 0x3fb8aa3b, v{T}\nv_exp_f32 v{T}, v{T}\ns_nop 0')
    g(f'v_mul_f32 v{T + 1}, v{T + 1}, v{T}')
    red32(T + 1, T + 3, 'v_add_f32')
    g(f'v_rcp_f32 v{T + 1}, v{T + 1}\ns_nop 0\nv_mul_f32 v{T}, v{T}, v{T + 1}')
    for k in range(4):
        g(f'ds_bpermute_b32 v{WG + k}, v{T + 5}, v{T} offset:{32 * k}')
    g('s_waitcnt lgkmcnt(0)')
    g.stamp('g_wgt', (0, 1))
    NT = 4 if P['NUG'] else 3
    poll(g, '\n'.join(f'buffer_load_dwordx2 {vr(T + 2 * k, 2)}, v{AO}, {S_WS}, {"s8" if k < 2 else "s13"} offen offset:{2048 * (k & 1)} sc1'
                      for k in range(NT)), range(T, T + 2 * NT), ACC, P['SLEEP'])
    g.stamp('g_apolled', (0, 1))
    g(f'v_mul_f32 v{T}, v{WG}, v{T}\nv_mul_f32 v{T + 1}, v{WG}, v{T + 1}')
    for k in range(1, NT):
        g(f'v_fmac_f32 v{T}, v{WG + k}, v{T + 2 * k}\nv_fmac_f32 v{T + 1}, v{WG + k}, v{T + 2 * k + 1}')
    g.nop(2)
    g(f'v_permlane32_swap_b32 v{T}, v{T + 1}\nv_add_f32 v{T}, v{T}, v{T + 1}\nv_mov_b32 v{T + 1}, v{T}')
    g.nop(2)
    g(f'v_permlane16_swap_b32 v{T}, v{T + 1}\nv_add_f32 v{T}, v{T}, v{T + 1}')
    g.nop(2)
    g(f'v_add_f32_dpp v{T}, v{T}, v{T} row_ror:8 {DPP}')
    g(f'v_cvt_pk_bf16_f32 v{T}, v{T}, v{T}\nds_write_b16 v{OW}, v{T}')
    g('s_waitcnt lgkmcnt(0)\ns_barrier')
    g.stamp('g_obar', (1,))
    ksplit_out(g, UC, PO, 's12')
    g.stamp('g_t2', (0, 1))
    gate(0)
    g.stamp('g_ga', (1,))
    skip = reduce('s9', 64)
    unpack2(g, T + 6, RX)
    g(f'v_lshlrev_b32 v{T + 3}, 3, v0\nv_mov_b32 v{ACC + 16}, {S_MASK}')
    reduce_sum()
    g(f'v_pk_mul_f32 {vr(T, 2)}, {vr(T, 2)}, {vr(ACC + 18, 2)}')
    round2(g, T)
    g(f'v_pk_add_f32 {vr(T, 2)}, {vr(T, 2)}, {vr(T + 6, 2)}')
    g(f'v_cvt_pk_bf16_f32 v{RX}, v{T}, v{T + 1}')
    g(f'v_lshl_or_b32 v{T}, v{RX}, 16, {S_T16}\nv_and_or_b32 v{T + 1}, v{RX}, v{ACC + 16}, {S_T16}')
    g.setexec(0xffff)
    g(f'buffer_store_dwordx2 {vr(T, 2)}, v{T + 3}, {S_WS}, s11 offen sc1')
    g.setexec(-1)
    g(skip + ':')
    g.stamp('g_x1', (0, 1))
    g('s_barrier')
    gate(3)
    g.stamp('g_gb', (1,))
    skip = reduce('s10', 56)
    unpack2(g, T + 2, RB2)
    unpack2(g, T + 6, RX)
    reduce_sum()
    g(f'v_pk_add_f32 {vr(T, 2)}, {vr(T, 2)}, {vr(T + 2, 2)}')
    round2(g, T)
    g(f'v_pk_mul_f32 {vr(T, 2)}, {vr(T, 2)}, {vr(ACC + 18, 2)}')
    round2(g, T)
    g(f'v_pk_add_f32 {vr(T, 2)}, {vr(T, 2)}, {vr(T + 6, 2)}')
    g(f'v_cvt_pk_bf16_f32 v{T}, v{T}, v{T + 1}')
    g.setexec(0xffff)
    g(f'buffer_store_dword v{T}, v{OUTO}, {S_B}, 0 offen')
    g(f's_cmp_lg_u32 s2, 0\ns_cbranch_scc1 {skip}\nv_mov_b32 v{T + 1}, {S_EPO}\ns_mov_b64 exec, 1')
    g(f'buffer_store_dword v{T + 1}, off, {S_WS}, 0 sc1')
    g(skip + ':')
    g.stamp('g_out', (0, 1))
    if P['PADTO']:
        if P['PADWG'] >= 0:
            g(f's_cmp_lg_u32 s2, {P["PADWG"]}\ns_cbranch_scc1 L_nopad')
        g(f'L_pad:\ns_memrealtime s[4:5]\ns_waitcnt lgkmcnt(0)\ns_sub_u32 s4, s4, s70\ns_cmp_lt_u32 s4, {P["PADTO"]}\ns_cbranch_scc1 L_pad\nL_nopad:')
    write_stamps(g)
    g('s_endpgm')


MLP_LDS = 4096
W1L = 4096
LDS_TOTAL = W1L + 131072


def mlp(g):
    L = Lds(MLP_LDS)
    PO, XO, SW, SR, B1 = 8, 9, 10, 11, 17
    C1, SH = 12, 18
    JM = 's14'
    g.vm = []
    g('L_mlp:')
    if P['W2TH']:
        fwait(g, ACC + 4, 's101', C_A, P['LSL'])
    else:
        g('s_barrier')
    g(f's_lshl_b32 s4, s3, 6\nv_add_u32 v{TID}, s4, v0')
    g(f's_lshl_b32 s7, {JM}, 7')
    g.bits(T + 5, TID, [(4, 2, 2048), (6, 3, 256), (0, 4, 16)], T + 7)
    kload(g, UB, 32, 3584 * 2048, JM, T + 5, lambda kb, t: 32 * kb + 4 * t, 'w2')
    common_addr(g, L, True)
    srd(g, S_B, 30, 3584 * 2)
    g.bits(T + 5, TID, [(2, 3, 16), (5, 2, 4), (7, 1, 2)], T, 's7')
    g.vmop(f'buffer_load_ushort v{B1}, v{T + 5}, {S_B}, 0 offen', 'k')
    prefetch_code(g, 'L_mlp_tail', 1, T + 5, ACC + 8, 'k')
    g.bits(XO, TID, [(2, 6, 128), (8, 1, 64), (0, 2, 16)], T, X1)
    g.bits(PO, TID, [(3, 6, 8192), (0, 3, 16)], T)
    g(f's_add_u32 s13, s7, {MBC}')
    g(f's_lshl_b32 s4, s3, 3\nv_mov_b32 v{SW}, s4\ns_and_b32 s4, s4, 32\nv_mov_b32 v{SR}, s4')
    MP = 16
    g.bits(MP, TID, [(8, 1, 16384), (3, 5, 128), (0, 2, 32), (2, 1, 16)], T, MODL + 4096)
    g(f's_mov_b32 s4, 4096\ns_mov_b32 s5, 32768\ns_mov_b32 s6, {32768 + 4096}')
    mloads = '\n'.join(f'buffer_load_dwordx4 {vr(ACC + 12 + 4 * i, 4)}, v{MP}, {S_WS}, {so} offen sc1' for i, so in enumerate(('0', 's5', 's4', 's6')))
    g.vmwait(('w2', 0))
    transpose(g, UB)
    g.vmop(mloads, 'k')
    g.vmwait(('w2', 1))
    transpose(g, UB + 1)
    g.vmwait('k')
    g.stamp('m_w2', (2,))
    poll(g, mloads, range(ACC + 12, ACC + 28), T, 2, preloaded=True)
    pk4(g, 'v_pk_add_f32', SH, ACC + 12, ACC + 16)
    pk4(g, 'v_pk_add_f32', C1, ACC + 20, ACC + 24)
    round4(g, SH, T)
    round4(g, C1, T)
    for i in range(4):
        g(f'v_add_f32 v{C1 + i}, 1.0, v{C1 + i}')
    round4(g, C1, T)
    g(f'v_lshlrev_b32 v{B1}, 16, v{B1}')
    g.stamp('m_ready', (0, 2))
    g('L_mlp_tail:')
    XV = ACC
    poll(g, f'buffer_load_dwordx4 {vr(XV, 4)}, v{XO}, {S_WS}, 0 offen sc1', range(XV, XV + 4), T, mask=0xffff)
    g.stamp('m_x1seen', (0, 2))
    for i in range(4):
        g(f'v_and_b32 v{XV + i}, {S_MASK}, v{XV + i}')
    layernorm(g, XV, SW, SR, L.STAT)
    g.stamp('m_ln1', (2,))
    pk4(g, 'v_pk_mul_f32', XV, XV, C1)
    round4(g, XV, T + 6)
    pk4(g, 'v_pk_add_f32', XV, XV, SH)
    round4(g, XV, T + 6)
    layernorm(g, XV, SW, SR, L.STAT + 64, last_packed=True)
    actwrite(g, T + 6, L.ACTH)
    g('s_waitcnt lgkmcnt(0)\ns_barrier')
    g.stamp('m_ln2', (2,))
    nsplit(g, UC, L.ACTH)
    g.stamp('m_t3', (2,))
    g(f'''v_cvt_pk_bf16_f32 v{T}, v{T}, v{T}
          v_lshlrev_b32 v{T}, 16, v{T}
          v_add_f32 v{T}, v{T}, v{B1}
          v_cvt_pk_bf16_f32 v{T}, v{T}, v{T}
          v_lshlrev_b32 v{T}, 16, v{T}
          v_mov_b32 v{T + 2}, 0xc0135761
          v_mul_f32 v{T + 1}, v{T}, v{T}
          v_fmac_f32 v{T + 2}, 0xbdd2d3e8, v{T + 1}
          v_mul_f32 v{T + 1}, v{T + 2}, v{T}
          v_exp_f32 v{T + 1}, v{T + 1}
          s_nop 0
          v_add_f32 v{T + 1}, 1.0, v{T + 1}
          v_rcp_f32 v{T + 1}, v{T + 1}
          s_nop 0
          v_mul_f32 v{T}, v{T}, v{T + 1}
          v_cvt_pk_bf16_f32 v{T}, v{T}, v{T}
          ds_write_b16 v{NO}, v{T}
          s_waitcnt lgkmcnt(0)
          s_barrier''')
    g.stamp('m_gelu', (2,))
    ksplit_out(g, UB, PO, 's13')
    g.stamp('m_t4', (0, 2))
    write_stamps(g)
    g('s_endpgm')


def latem(g):
    L = Lds(MLP_LDS)
    g.vm = []
    g('L_late:')
    g(f's_lshl_b32 s4, s3, 6\nv_add_u32 v{TID}, s4, v0')
    nvoff(g, 8, 12288)
    g(f'''s_and_b32 s15, s14, 1
          s_lshr_b32 s6, s14, 1
          s_lshl_b32 s6, s6, 7
          s_mul_i32 s13, s15, {512 * 12288}
          s_add_u32 s13, s13, s6
          s_add_u32 s13, s13, 4096''')
    g.bits(T + 6, TID, [(3, 6, 64), (0, 2, 16), (2, 1, 8)], T)
    srd(g, S_B, 36, 4096)
    g('s_barrier')
    g.vmop(f'buffer_load_dwordx2 {vr(12, 2)}, v{T + 6}, {S_B}, 0 offen', 'in')
    nload(g, UA, 38, 1024 * 12288, 12288, 's13', 8, (0,), tag='m')
    common_addr(g, L, False)
    g(f's_lshl_b32 s12, s15, 15\ns_lshl_b32 s5, s6, 1\ns_add_u32 s12, s12, s5\ns_add_u32 s12, s12, {MODL}')
    g.vmwait('in')
    silu_image(g, L, 12)
    g(f's_lshl_b32 s4, s15, {10 if P["NAT"] else 7}\nv_add_u32 v9, s4, v{NB}')
    tagmask(g, 10)
    g('s_waitcnt lgkmcnt(0)\ns_barrier')
    g.vmwait(('m', 0))
    transpose(g, UA)
    nsplit(g, UA, L.ACTS, 9)
    tag(g, [T], 10)
    publish32(g, L, 's12', 16384, False)
    g.stamp('l_pub', (0, 1, 2))
    write_stamps(g)
    g('s_endpgm')


def attention(g, mode='main', arg=None):
    KO, VO, QO, VSC, VMAX, OO = 1, 2, 3, 4, 5, 6
    Q0, SP, TMP, T2 = 8, 16, 40, 56
    LA, GA = T2 + 7, T2 + 6
    SLOT = lambda s: 64 + 32 * s
    AC = SLOT(0)
    U = lambda u: 's%d' % (4 + 2 * u)
    U2 = lambda u: 's%d' % (5 + 2 * u)
    S_R, S_CU, S_GA, S_T = 's47', 's68', 's96', 's69'
    S_B4, S_B5, S_O4, S_KV = 's46', 's100', 's101', 's101'
    MX, OBUF, OST = 0, W1L, 16384
    QL, QF = 1024, 3072
    S_ST = 's97'
    NN = (SPL - NMR) * 8
    NUG = P['NUG']
    n4 = min(NN, 1024 - 4 * WPR - 64 * NUG)
    n5 = 1024 - 4 * WPR - n4 - 64 * NUG
    RK = QF + 4
    assert 0 <= n5 <= NN
    base = [0, WPR, 2 * WPR, 3 * WPR, 4 * WPR, 4 * WPR + n4]
    VSLOT = [1, 2, 3, 1, 4, 5] if mode == 'main' else [NUG + u for u in range(NUG)]

    def entry():
        g.vm = []

        g('L_attn:')
        g(f'''s_sub_u32 {S_T}, s2, {NG}
              s_mul_hi_u32 {S_R}, {S_T}, {(1 << 32) // SPL + 1}
              s_mul_i32 {S_CU}, {S_R}, {SPL}
              s_sub_u32 {S_CU}, {S_T}, {S_CU}
              s_add_u32 {S_CU}, {S_CU}, {S_R if P["ROT"] else 0}
              s_sub_u32 {S_T}, {S_CU}, {SPL}
              s_cselect_b32 {S_CU}, {S_CU}, {S_T}
              s_mul_i32 {S_T}, s3, {SPL - NMR}
              s_add_u32 {S_T}, {S_T}, {S_CU}
              s_cmp_lt_u32 {S_CU}, {SPL - NMR}
              s_cselect_b32 {S_T}, {S_T}, 1023
              s_lshl_b32 s98, {S_CU}, 3
              s_add_u32 s98, s98, s3
              s_mul_i32 {S_GA}, {S_R}, {P["PH"]}''')
        for u in range(NU):
            g(f's_add_u32 {U(u)}, {S_GA}, {"s98" if u < (5 if n4 == NN else 4) else S_T}')
            if u:
                g(f's_add_u32 {U(u)}, {U(u)}, {base[u]}')
            g(f's_and_b32 {U(u)}, {U(u)}, 1023\ns_lshl_b32 {U(u)}, {U(u)}, 13\ns_add_u32 {U2(u)}, {U(u)}, 4096')
        g.bits(KO, 0, [(1, 1, 1024), (2, 2, 256), (0, 1, 64), (4, 2, 16)], 8)
        g(f'v_lshlrev_b32 v{VO}, 4, v0')
        g(f's_cmp_lt_u32 {S_T}, {n4}\ns_cselect_b32 {S_O4}, 0, 0x1000000\ns_cselect_b32 {S_B4}, 0, 0xff800000')
        g(f's_cmp_lt_u32 {S_T}, {n5}\ns_cselect_b32 s98, 0, 0x1000000\ns_cselect_b32 {S_B5}, 0, 0xff800000')
        g(f'v_add_u32 v{OO}, {S_O4}, v{KO}\nv_add_u32 v{OO + 1}, s98, v{KO}')
        g('s_waitcnt lgkmcnt(0)')
        g(f's_lshl_b32 {S_T}, {S_R}, 23')
        g(f's_add_u32 s56, s18, {S_T}\ns_addc_u32 s57, s19, 0\ns_mov_b32 s58, 0x800000\ns_mov_b32 s59, 0x20000')
        g(f's_add_u32 s60, s20, {S_T}\ns_addc_u32 s61, s21, 0\ns_mov_b32 s62, 0x800000\ns_mov_b32 s63, 0x20000')

    def load(n, pos):
        i = n & 7
        if n < 48:
            u = n >> 3
            vo = KO if u < 4 else OO + u - 4
            g.vmop(f'buffer_load_dwordx4 {vr(SLOT(u) + 4 * i, 4)}, v{vo}, {S_A}, {U2(u) if i >= 4 else U(u)} offen '
                   f'offset:{((i >> 1) & 1) * 2048 + (i & 1) * 128} nt', pos)
        elif n < 64:
            if n == 48:
                l1, l2 = g.label('L_xv'), g.label('L_xj')
                g(f's_lshl_b32 s98, s3, 14\ns_add_u32 m0, s98, {W1L}\ns_mov_b32 s95, 0x20000')
                g(f's_cmp_lt_u32 {S_CU}, {SPL - NMR}\ns_cbranch_scc1 {l1}')
                g(f's_lshl_b32 {S_T}, s3, 6\nv_add_u32 v{T2 + 1}, {S_T}, v0')
                nvoff(g, OO, 7168, T2 + 1, T2 + 2)
                g(f'v_mov_b32 v{OO + 1}, v{OO}')
                g(f's_mul_i32 {S_T}, {S_R}, {NMR}\ns_add_u32 {S_T}, {S_T}, {S_CU}\ns_sub_u32 {S_T}, {S_T}, {SPL - NMR}')
                g(f's_lshl_b32 {U(4)}, {S_T}, 7\ns_add_u32 {U(5)}, {U(4)}, {512 * 7168}\ns_mov_b32 {U2(4)}, {nstep() * 7168}')
                g(f's_mov_b32 s92, s28\ns_mov_b32 s93, s29\ns_mov_b32 s94, {1024 * 7168}')
                g(f's_branch {l2}\n{l1}:')
                g(f'v_sub_u32 v{T2 + 1}, v{VO}, v{KO}\nv_add_u32 v{OO}, v{OO}, v{T2 + 1}\nv_add_u32 v{OO + 1}, v{OO + 1}, v{T2 + 1}')
                g(f's_mov_b32 {U2(4)}, 1024\ns_mov_b32 s92, s60\ns_mov_b32 s93, s61\ns_mov_b32 s94, s62')
                g(l2 + ':')
            u = 4 + ((n - 48) >> 3)
            if n > 48:
                g('s_add_u32 m0, m0, 1024')
            g(f's_add_u32 {U(u)}, {U(u)}, {U2(4)}' if i else 's_nop 0')
            g.vmop(f'buffer_load_dwordx4 v{OO + u - 4}, s[92:95], {U(u)} offen nt lds', pos)
        else:
            u = (n - 64) >> 3
            g.vmop(f'buffer_load_dwordx4 {vr(SLOT(VSLOT[u]) + 4 * i, 4)}, v{VO}, {S_B}, {U2(u) if i >= 4 else U(u)} offen '
                   f'offset:{(i & 3) * 1024} nt', pos)

    def mailbox():
        g.bits(GA, 0, [(5, 1, MBA_ST), (0, 5, 8)], T2)
        g(f'''s_and_b32 {S_T}, {S_R}, 3
              s_lshl_b32 {S_T}, {S_T}, 3
              s_add_u32 {S_T}, {S_T}, s3
              s_mul_i32 {S_T}, {S_T}, {2 * MBA_ST}
              s_lshr_b32 {S_GA}, {S_R}, 2
              s_mul_i32 {S_GA}, {S_GA}, {SLOTS}
              s_add_u32 {S_GA}, {S_GA}, {S_CU}
              s_lshl_b32 {S_GA}, {S_GA}, 8
              s_add_u32 {S_GA}, {S_GA}, {S_T}
              s_add_u32 {S_GA}, {S_GA}, {MBA}''')

    def setup():
        srd(g, S_WS, 44, WS_SIZE)
        srd(g, S_DBG, 42, 256)
        mailbox()
        g.vmop(epoch_load(T2 + 2), 'ep')
        prefetch_code(g, 'L_attn_body', 2, 8, TMP, 'pf')
        if P['TLB']:
            skip = g.label('L_notlb')
            sh = P['TLB']
            g(f'v_lshlrev_b32 v8, {sh}, v0')
            g.setexec((1 << min(64, 1 << (23 - sh))) - 1 if sh > 17 else -1)
            g(f's_cmp_eq_u32 s3, 1\ns_cbranch_scc0 {skip}_a\nbuffer_load_dword v{TMP + 4}, v8, {S_A}, 0 offen nt\n{skip}_a:')
            g(f's_cmp_eq_u32 s3, 2\ns_cbranch_scc0 {skip}_b\nbuffer_load_dword v{TMP + 4}, v8, {S_B}, 0 offen nt\n{skip}_b:')
            for w, (ptr, size) in enumerate(((28, 7 << 20), (32, 7 << 20), (38, 12 << 20), (44, WS_SIZE))):
                l = f'{skip}_{w}'
                g(f's_cmp_eq_u32 s3, {3 + w}\ns_cbranch_scc0 {l}')
                g(f's_mov_b32 s92, s{ptr}\ns_mov_b32 s93, s{ptr + 1}\ns_mov_b32 s94, {size}\ns_mov_b32 s95, 0x20000')
                g(f'buffer_load_dword v{TMP + 4}, v8, s[92:95], 0 offen offset:2048 {"sc1" if ptr == 44 else "nt"}')
                if size > (8 << 20):
                    g(f's_mov_b32 {S_T}, {8 << 20}\nv_add_u32 v9, {S_T}, v8\nbuffer_load_dword v{TMP + 4}, v9, s[92:95], 0 offen nt')
                g(l + ':')
            g.setexec(-1)
        g(f's_and_b32 {S_KV}, {S_R}, 3\ns_lshl_b32 {S_KV}, {S_KV}, 2')
        g.bits(QO, 0, [(0, 3, 256), (3, 1, 64), (4, 2, 16)], 8)
        g.bits(LA, 0, [(0, 4, 64)], 8)
        g(f's_lshl_b32 {S_T}, s3, 3\nv_add_u32 v8, {S_T}, v{LA}\nv_mov_b32 v9, -1\nds_write_b32 v8, v9 offset:{MX + 4}')
        g(f'v_mov_b32 v{T2}, 0\nds_write_b32 v{T2}, v{T2} offset:{QF}\ns_mov_b32 {S_ST}, 0\ns_waitcnt lgkmcnt(0)\ns_barrier')
        g(f'v_mov_b32 v{VSC}, 0x3db504f3\nv_mov_b32 v{VMAX}, 0xff800000')
        g('L_attn_body:')

    def readback():
        g(f's_lshl_b32 {S_T}, s3, 14\ns_add_u32 {S_T}, {S_T}, {W1L}\nv_add_u32 v{T2}, {S_T}, v{VO}')
        for i in range(16):
            g(f'ds_read_b128 {vr(SLOT(4) + 4 * i, 4)}, v{T2} offset:{i * 1024}')

    def lds_units():
        l1, l2 = g.label('L_w1'), g.label('L_w1j')
        g(f's_cmp_ge_u32 {S_CU}, {SPL - NMR}\ns_cbranch_scc1 {l1}')
        g('s_waitcnt lgkmcnt(8)')
        pv(4)
        g('s_waitcnt lgkmcnt(0)')
        pv(5)
        g(f's_branch {l2}\n{l1}:')
        g('s_waitcnt lgkmcnt(8)')
        transpose(g, UC, T2)
        g('s_waitcnt lgkmcnt(0)')
        transpose(g, UC + 1, T2)
        g(l2 + ':')

    def qstep(final=False):
        skip = only_wave(g, P['QW'])
        l1, l3, top = g.label('L_q1'), g.label('L_q3'), g.label('L_qtop')
        if final:
            g(f's_mov_b32 {S_SPIN}, {SPIN}\n{top}:')
        g(f's_cmp_eq_u32 {S_ST}, 2\ns_cbranch_scc1 {skip}')
        if final:
            g(f's_waitcnt vmcnt(0)\ns_sub_u32 {S_SPIN}, {S_SPIN}, 1\ns_cbranch_scc1 {l3}')
        g(f's_cmp_eq_u32 {S_ST}, 0\ns_cbranch_scc1 {l1}')
        check(g, range(TMP, TMP + 16), T2, 0xffff)
        g(f's_cbranch_vccz {l3}')
        if final:
            g(f's_sleep {P["QSL"]}')
        g(l1 + ':')
        g(f's_lshl_b32 {S_T}, {S_R}, 12\ns_add_u32 {S_T}, {S_T}, {QB}\ns_mov_b32 {S_ST}, 1')
        for i in range(4):
            g(f'buffer_load_dwordx4 {vr(TMP + 4 * i, 4)}, v{VO}, {S_WS}, {S_T} offen offset:{1024 * i} sc1')
        g(f's_branch {top if final else skip}')
        g(l3 + ':')
        g(f'v_lshlrev_b32 v{T2}, 3, v0')
        for i in range(8):
            g(f'v_perm_b32 v{Q0 + i}, v{TMP + 2 * i + 1}, v{TMP + 2 * i}, {S_HI}')
        for i in range(4):
            g(f'ds_write_b64 v{T2}, {vr(Q0 + 2 * i, 2)} offset:{QL + 512 * i}')
        g(f'v_mov_b32 v{T2}, 0\nv_mov_b32 v{T2 + 1}, 1\ns_mov_b32 {S_ST}, 2\ns_waitcnt lgkmcnt(0)')
        g(f'ds_write_b32 v{T2}, v{T2 + 1} offset:{QF}')
        g(skip + ':')

    def qget():
        g.stamp('a_qwait')
        if P['NOQ']:
            return
        qstep(final=True)
        lp, ok = g.label('L_qf'), g.label('L_qfok')
        g(f'v_mov_b32 v{T2}, 0\ns_mov_b32 {S_SPIN}, {SPIN * 16}\n{lp}:')
        g(f'ds_read_b32 v{T2 + 1}, v{T2} offset:{QF}\ns_waitcnt lgkmcnt(0)')
        g(f'v_cmp_eq_u32 vcc, 0, v{T2 + 1}\ns_cbranch_vccz {ok}')
        g(f's_sleep 2\ns_sub_u32 {S_SPIN}, {S_SPIN}, 1\ns_cbranch_scc0 {lp}\n{ok}:')
        g(f'ds_read_b128 {vr(Q0, 4)}, v{QO} offset:{QL}\nds_read_b128 {vr(Q0 + 4, 4)}, v{QO} offset:{QL + 128}')
        g('s_waitcnt lgkmcnt(0)')
        g.stamp('a_qseen')

    def qk(u):
        for t in range(4):
            g(f'v_mfma_f32_16x16x32_bf16 {vr(TMP + 4 * t, 4)}, {vr(SLOT(u) + 8 * t, 4)}, {vr(Q0, 4)}, 0')
        for t in range(4):
            g(f'v_mfma_f32_16x16x32_bf16 {vr(TMP + 4 * t, 4)}, {vr(SLOT(u) + 8 * t + 4, 4)}, {vr(Q0 + 4, 4)}, {vr(TMP + 4 * t, 4)}')
        g.nop(5)
        for t in range(4):
            d = TMP + 4 * t
            a, b = T2 + 2 * (t & 1), T2 + 2 * (t & 1) + 1
            g(f'v_add_f32_dpp v{a}, v{d + 1}, v{d} row_ror:8 {DPP}\nv_add_f32_dpp v{b}, v{d + 3}, v{d + 2} row_ror:8 {DPP}')
            round2(g, a)
            if u >= 4:
                sb = S_B4 if u == 4 else S_B5
                g(f'v_fma_f32 v{a}, v{a}, v{VSC}, {sb}\nv_fma_f32 v{b}, v{b}, v{VSC}, {sb}')
            else:
                g(f'v_mul_f32 v{a}, v{a}, v{VSC}\nv_mul_f32 v{b}, v{b}, v{VSC}')
            g(f'v_max3_f32 v{VMAX}, v{VMAX}, v{a}, v{b}\nv_cvt_pk_bf16_f32 v{SP + 4 * u + t}, v{a}, v{b}')

    def red_g(r, t, op):
        for ins in ('v_permlane32_swap_b32', 'v_permlane16_swap_b32'):
            g(f'v_mov_b32 v{t}, v{r}')
            g.nop(2)
            g(f'{ins} v{r}, v{t}\n{op} v{r}, v{r}, v{t}')

    def softmax():
        red_g(VMAX, T2, 'v_max_f32')
        for i in range(0, 32, 2):
            g(f'v_mov_b64 {vr(AC + i, 2)}, 0')
        g(f'v_mov_b32 v{VSC}, 0x3fb8aa3b\nv_mov_b32 v{T2 + 4}, 0')
        g(f'v_cvt_pk_bf16_f32 v{VMAX}, v{VMAX}, v{VMAX}\nv_lshlrev_b32 v{VMAX}, 16, v{VMAX}')
        g(f'v_mul_f32 v{T2 + 5}, v{VMAX}, v{VSC}')

    def probs(u, last=NU - 1):
        for i in range(4 * u, 4 * u + 4):
            p = SP + i
            a, b = T2 + 2 * (i & 1), T2 + 2 * (i & 1) + 1
            unpack2(g, a, p)
            g(f'v_fma_f32 v{a}, v{a}, v{VSC}, -v{T2 + 5}\nv_fma_f32 v{b}, v{b}, v{VSC}, -v{T2 + 5}')
            g(f'v_exp_f32 v{a}, v{a}\nv_exp_f32 v{b}, v{b}')
            g(f'v_add_f32 v{T2 + 4}, v{T2 + 4}, v{a}\nv_add_f32 v{T2 + 4}, v{T2 + 4}, v{b}')
            g(f'v_cvt_pk_bf16_f32 v{p}, v{a}, v{b}')
        if u == last:
            red_g(T2 + 4, T2, 'v_add_f32')
            g(f's_lshl_b32 {S_T}, s3, 3\nv_add_u32 v{T2}, {S_T}, v{LA}\nv_mov_b32 v{T2 + 2}, v{VMAX}\nv_min_u32 v{T2 + 3}, -2, v{T2 + 4}')
            g(f'ds_write_b64 v{T2}, {vr(T2 + 2, 2)} offset:{MX}')
            if mode == 'main':
                g.stamp('a_probs')

    def pv(u):
        s = SLOT(VSLOT[u])
        for w in range(4):
            t = TMP + 8 * (w & 1)
            for p in range(4):
                g(f'v_perm_b32 v{t + p}, v{s + 8 * p + 4 + w}, v{s + 8 * p + w}, {S_LO}')
            for p in range(4):
                g(f'v_perm_b32 v{t + 4 + p}, v{s + 8 * p + 4 + w}, v{s + 8 * p + w}, {S_HI}')
            g(f'v_mfma_f32_16x16x32_bf16 {vr(AC + 8 * w, 4)}, {vr(t, 4)}, {vr(SP + 4 * u, 4)}, {vr(AC + 8 * w, 4)}')
            g('s_nop 0')
            g(f'v_mfma_f32_16x16x32_bf16 {vr(AC + 8 * w + 4, 4)}, {vr(t + 4, 4)}, {vr(SP + 4 * u, 4)}, {vr(AC + 8 * w + 4, 4)}')

    def gather_ml():
        lp, ok = g.label('L_ml'), g.label('L_mlok')
        g(f's_mov_b32 {S_SPIN}, {SPIN * 16}\n{lp}:')
        for i in range(4):
            g(f'ds_read_b128 {vr(TMP + 4 * i, 4)}, v{LA} offset:{MX + 16 * i}')
        g('s_waitcnt lgkmcnt(0)')
        g(f'v_max_u32 v{T2}, v{TMP + 1}, v{TMP + 3}')
        for i in range(5, 16, 4):
            g(f'v_max3_u32 v{T2}, v{T2}, v{TMP + i}, v{TMP + i + 2}')
        g(f'v_cmp_eq_u32 vcc, -1, v{T2}\ns_cbranch_vccz {ok}')
        g(f's_sleep 2\ns_sub_u32 {S_SPIN}, {S_SPIN}, 1\ns_cbranch_scc0 {lp}\n{ok}:')
        g(f'v_max_f32 v{T2 + 2}, v{TMP}, v{TMP + 2}')
        for i in range(4, 16, 4):
            g(f'v_max3_f32 v{T2 + 2}, v{T2 + 2}, v{TMP + i}, v{TMP + i + 2}')

    def stats():
        skip = only_wave(g, P['SW'])
        gather_ml()
        g(f'v_mov_b32 v{T2 + 3}, 0')
        for i in range(0, 16, 2):
            g(f'v_sub_f32 v{TMP + i}, v{TMP + i}, v{T2 + 2}\nv_mul_f32 v{TMP + i}, 0x3fb8aa3b, v{TMP + i}')
        for i in range(0, 16, 2):
            g(f'v_exp_f32 v{TMP + i}, v{TMP + i}')
        g(f's_lshl_b32 {S_T}, {S_R}, 11\ns_lshl_b32 s98, {S_CU}, 3\ns_add_u32 {S_T}, {S_T}, s98\ns_add_u32 {S_T}, {S_T}, {STATS}')
        for i in range(0, 16, 2):
            g(f'v_fmac_f32 v{T2 + 3}, v{TMP + i}, v{TMP + i + 1}')
        g(f'v_lshlrev_b32 v{T2}, 8, v0')
        tagmask(g, T2 + 1)
        tag(g, [T2 + 2, T2 + 3], T2 + 1)
        g.setexec(0xff)
        g(f'buffer_store_dwordx2 {vr(T2 + 2, 2)}, v{T2}, {S_WS}, {S_T} offen sc1')
        g.setexec(-1)
        g(skip + ':')

    def factor():
        gather_ml()
        g(f'v_sub_f32 v{FS}, v{VMAX}, v{T2 + 2}\nv_mul_f32 v{FS}, 0x3fb8aa3b, v{FS}\nv_exp_f32 v{FS}, v{FS}')
        tagmask(g, FS + 1)

    FS = Q0 + 2
    WA, RA = KO, QO

    def epi_addr():
        g(f's_mul_i32 {S_T}, s3, {OST}\ns_add_u32 {S_T}, {S_T}, {OBUF}')
        g.bits(WA, 0, [(4, 2, 128), (0, 4, 16)], T2, S_T)
        g(f's_lshl_b32 {S_T}, s3, 4\ns_add_u32 {S_T}, {S_T}, {OBUF}')
        g.bits(RA, 0, [(1, 3, 528), (4, 2, 128), (0, 1, 8)], T2, S_T)
        g(f'v_add_u32 v{VSC}, {4 * OST}, v{RA}')

    def epilogue():
        g.setexec(rep16(0xff))
        for j in range(8):
            for h in (0, 2):
                g(f'v_pk_mul_f32 {vr(AC + 4 * j + h, 2)}, {vr(AC + 4 * j + h, 2)}, {vr(FS, 2)} op_sel_hi:[1,0]')
            g(f'ds_write_b128 v{WA}, {vr(AC + 4 * j, 4)} offset:{528 * j}')
        g.setexec(-1)
        g('s_waitcnt lgkmcnt(0)\ns_barrier')
        for w in range(8):
            g(f'ds_read_b64 {vr(TMP + 2 * w, 2)}, v{RA if w < 4 else VSC} offset:{OST * (w & 3)}')
        g('s_waitcnt lgkmcnt(4)')
        pk4(g, 'v_pk_add_f32', TMP, TMP, TMP + 4)
        g('s_waitcnt lgkmcnt(0)')
        pk4(g, 'v_pk_add_f32', TMP + 8, TMP + 8, TMP + 12)
        pk4(g, 'v_pk_add_f32', TMP, TMP, TMP + 8)
        g(f'v_pk_add_f32 {vr(TMP, 2)}, {vr(TMP, 2)}, {vr(TMP + 2, 2)}')
        tag(g, [TMP, TMP + 1], FS + 1)
        g(f'buffer_store_dwordx2 {vr(TMP, 2)}, v{GA}, {S_WS}, {S_GA} offen sc1')

    GK, GV, S_GU = 12, 13, 's100'
    if mode == 'g_addr':
        g(f'''s_lshr_b32 {S_R}, s14, 3
              s_and_b32 {S_CU}, s14, 7
              s_lshl_b32 {S_GU}, {S_CU}, 3
              s_add_u32 {S_GU}, {S_GU}, s3
              s_mul_i32 {S_T}, {S_R}, {P["PH"]}
              s_add_u32 {S_GU}, {S_GU}, {S_T}
              s_add_u32 {S_CU}, {S_CU}, {SPL}''')
        g.bits(GK, 0, [(1, 1, 1024), (2, 2, 256), (0, 1, 64), (4, 2, 16)], GV)
        g(f'v_lshlrev_b32 v{GV}, 4, v0')
        return
    if mode == 'g_issue':
        for n in arg:
            i, isk, u = n & 7, n < 8 * NUG, (n >> 3) % NUG
            if i == 0:
                p = 18 if isk else 20
                g(f's_lshl_b32 {S_T}, {S_R}, 23\ns_add_u32 s56, s{p}, {S_T}\ns_addc_u32 s57, s{p + 1}, 0\ns_mov_b32 s58, 0x800000')
                g(f's_add_u32 s101, {S_GU}, {1024 - 64 * (NUG - u)}\ns_and_b32 s101, s101, 1023\ns_lshl_b32 s101, s101, 13\ns_add_u32 {S_T}, s101, 4096')
            off = ((i >> 1) & 1) * 2048 + (i & 1) * 128 if isk else (i & 3) * 1024
            g(f'buffer_load_dwordx4 {vr(SLOT(0) + 4 * n, 4)}, v{GK if isk else GV}, {S_A}, {S_T if i >= 4 else "s101"} offen offset:{off} nt')
        return
    gq = '\n'.join(f'buffer_load_dwordx4 {vr(Q0 + 4 * i, 4)}, v{LA}, {S_WS}, 0 offen offset:{(i >> 1) * 256 + (i & 1) * 16} sc1' for i in range(4))

    def gq_addr():
        g(f's_lshl_b32 {S_T}, {S_R}, 12\ns_add_u32 {S_T}, {S_T}, {QB}')
        g.bits(LA, 0, [(0, 3, 512), (3, 1, 128), (4, 2, 32)], GA, S_T)
    if mode == 'g_q':
        gq_addr()
        g.vmop(gq, 'gq')
        return
    if mode == 'g_compute':
        g.vmwait('gq')
        poll(g, gq, range(Q0, Q0 + 16), T2, 8, preloaded=True, mask=0xffff)
        for i in range(8):
            g(f'v_perm_b32 v{Q0 + i}, v{Q0 + 2 * i + 1}, v{Q0 + 2 * i}, {S_HI}')
        mailbox()
        g.bits(LA, 0, [(0, 4, 64)], T2)
        g(f'v_mov_b32 v{VSC}, 0x3db504f3\nv_mov_b32 v{VMAX}, 0xff800000')
        for u in range(NUG):
            qk(u)
        softmax()
        for u in range(NUG):
            probs(u, NUG - 1)
        epi_addr()
        for u in range(NUG):
            pv(u)
        g('s_waitcnt lgkmcnt(0)\ns_barrier')
        stats()
        factor()
        g('s_nop 0')
        epilogue()
        g('s_barrier')
        return

    entry()
    GS = P['GS']
    order = list(range(96))
    if P['ILV']:
        order = list(range(32, 48))
        for i in range(16):
            order += [2 * i, 2 * i + 1, 48 + i]
        order += list(range(64, 96))
    last = lambda ids: max(order.index(i) for i in ids)
    depth = lambda n: P['DK1'] if n < P['NK1'] else (P['DK2'] if n < 48 else (P['DX'] if n < 64 else P['DV']))
    qsteps = list(range(P['QP0'] - 1, P['QG'] - 1, P['QPS']))
    st = dict(landed=-1, issued=-1, done=0)

    def land(n):
        if n > st['landed']:
            g.vmwait(n)
            st['landed'] = n

    def hint_flag():
        skip = only_wave(g, P['SW'])
        arrived(g, Q0 + 1, S_KV, C_A, 2 * SPL)
        g(skip + ':')
        st['hint'] = True

    W = [('q', -1, qget)]
    W += [('qk%d' % u, last(range(8 * u, 8 * u + 8)), lambda u=u: qk(u)) for u in ([0, 1, 4, 5, 2, 3] if P['ILV'] else range(NU))]
    W += [('sm', -1, softmax)]
    W += [('pr%d' % u, -1, lambda u=u: probs(u)) for u in range(NU)]
    W += [('st', -1, stats), ('rb', 63, lambda: (readback(), epi_addr(), lds_units()))]
    for u in range(4):
        if u == 3:
            W += [('fs', -1, factor)]
        W += [('pv%d' % u, 64 + 8 * u + 7, lambda u=u: ((g.stamp('a_landed') if u == 3 else None), pv(u)))]
    names = [w[0] for w in W]

    def work(budget, need=None):
        while st['done'] < len(W):
            forced = need is not None and st['done'] <= names.index(need)
            name, ld, act = W[st['done']]
            if not forced and (budget <= 0 or st['landed'] < ld or st['issued'] < P['QG'] - 1):
                return
            assert ld <= st['issued']
            land(ld)
            act()
            st['done'] += 1
            budget -= 1

    for n in range(0, 96, GS):
        d = depth(n)
        if n + GS - 1 >= d:
            land(n + GS - 1 - d)
        if n >= 64 and n % 8 == 0:
            work(0, ['qk1', 'qk2', 'qk3', 'pv0'][(n - 64) >> 3])
        for i in range(GS):
            load(order[n + i], n + i)
        m = n + GS - 1
        if n == 0:
            setup()
        st['issued'] = m
        if m == P['STPOS']:
            g.stamp('a_pos')
        if m >= 12 and not st.get('ep'):
            st['ep'] = True
            g.vmwait('ep')
            epoch_tag(g, T2 + 2)
        if m in qsteps:
            if m != qsteps[0]:
                land(m - P['QPS'] + 1)
            qstep()
        if m == P['HPOS']:
            work(0, 'st')
            skip = only_wave(g, P['SW'])
            arrive(g, Q0 + 1, S_KV, C_A)
            g(skip + ':')
        if m == P['RPOS']:
            skip = only_wave(g, P['SW'])
            g(f's_cmp_ge_u32 {S_CU}, {SPL - NMR}\ns_cbranch_scc1 {skip}')
            arrive(g, Q0 + 4, 0, C_R)
            g(skip + ':')
        if st['landed'] > P['HPOS'] and not st.get('hint'):
            hint_flag()
        work(GS)
    assert (P['HPOS'] + 1) % GS == 0 and (P['RPOS'] + 1) % GS == 0 and P['QP0'] % GS == 0 and P['QPS'] % GS == 0
    if not st.get('hint'):
        work(0, 'pv2')
        land(P['HPOS'] + 1)
        hint_flag()
    work(0, 'fs')
    land(95)
    skip = only_wave(g, P['SW'])
    g(f'v_mov_b32 v{Q0 + 5}, 0\ns_mov_b64 exec, 1\nds_write_b32 v{Q0 + 5}, v{Q0 + 4} offset:{RK}\ns_mov_b64 exec, -1')
    g(skip + ':')
    work(0, 'pv3')

    epilogue()
    g.stamp('a_pub', (0, 1, 2))
    g(f's_mul_i32 s14, {S_R}, {NMR}\ns_add_u32 s14, s14, {S_CU}\ns_sub_u32 s14, s14, {SPL - NMR}')
    g(f's_cmp_ge_u32 {S_CU}, {SPL - NMR}\ns_cbranch_scc1 L_mlp')
    g(f'v_mov_b32 v8, 0\nds_read_b32 v8, v8 offset:{RK}\ns_waitcnt lgkmcnt(0)\nv_readfirstlane_b32 s14, v8')
    g('s_cmp_lt_u32 s14, 128\ns_cbranch_scc1 L_late')
    write_stamps(g)
    g('s_endpgm')


def build(stamps=False):
    g = G(stamps)
    ref = open(REF).read()
    g.L.append(ref[:ref.index('; Override launch')].rstrip())
    g.L.append('; @launch grid=(%d,1,1) block=(512,1,1) lds=%d' % (NWG, LDS_TOTAL))
    g.L.append('.amdgcn_target "amdgcn-amd-amdhsa--gfx950"\n.text\n.globl %s_kernel\n.p2align 8\n.type %s_kernel,@function' % (NAME, NAME))
    g.L.append('%s_kernel:' % NAME)
    g.stamp('start', (0, 1, 2))
    g(f's_cmp_ge_u32 s2, {NWG}\ns_cbranch_scc1 L_exit')
    g(f'''s_load_dwordx16 s[16:31], s[0:1], 0
          s_load_dwordx8 s[32:39], s[0:1], 64
          s_load_dwordx4 s[40:43], s[0:1], 96
          s_load_dwordx2 s[44:45], s[0:1], 112
          v_lshrrev_b32 v1, 6, v0
          v_and_b32 v0, 63, v0
          v_readfirstlane_b32 s3, v1
          s_mov_b32 {S_LO}, 0x05040100
          s_mov_b32 {S_HI}, 0x07060302
          s_mov_b32 {S_MASK}, 0xffff0000''')
    g(f's_cmp_lt_u32 s2, {NG}\ns_cbranch_scc1 L_proj')
    n0 = g.nst
    attention(g)
    n1 = g.nst
    armed = getattr(g, 'padarmed', False)
    latem(g)
    g.padarmed = armed
    g.nst = n1 + (1 if g.stamps else 0)
    mlp(g)
    g.nst = n0
    g.padarmed = bool(PADAT) and PADAT[0] == 'start'
    proj(g)
    g('L_exit:\ns_endpgm')
    g('.fill 2048, 4, 0xbf800000')
    g.L.append('''.section .rodata,"a"
.p2align 6
.amdhsa_kernel %s_kernel
  .amdhsa_next_free_vgpr 256
  .amdhsa_next_free_sgpr 102
  .amdhsa_accum_offset 256
  .amdhsa_group_segment_fixed_size 0
  .amdhsa_kernarg_size 120
  .amdhsa_user_sgpr_count 2
  .amdhsa_user_sgpr_kernarg_segment_ptr 1
  .amdhsa_system_sgpr_workgroup_id_x 1
.end_amdhsa_kernel''' % NAME)
    return '\n'.join(g.L) + '\n'


if __name__ == '__main__':
    out = sys.argv[1]
    for a in sys.argv[2:]:
        if a.startswith('PADAT='):
            PADAT.append(a[6:])
        elif '=' in a:
            k, v = a.split('=')
            assert k in P, k
            P[k] = int(v)
    open(out, 'w').write(build(stamps='--stamps' in sys.argv))
```

```python
import sys
NAME = 'adaLN_cond__gqa_block_cached__mixer_channel_mlp__decode'
REF = 'cdna_kernels/%s.s.ref' % NAME

NG = 64
SPL = 24
NMR = 7
NA = 8 * SPL
NWG = NG + NA
WPR = SPL * 8
NU = 6

QB, STATS, X1, MODP, MODL = 0x8000, 0x10000, 0x18000, 0x20000, 0x30000
MBA, MBB, MBC = 0x100000, 0x200000, 0x300000
SLOTS = 32
MBA_ST = 2 * SLOTS * 256
WS_SIZE = 0x400000
SPIN = 1 << 18
C_A, C_R = 0, 64
TMASK = 0xff

P = dict(MSL=4, LSL=8, QSL=8, ASL=2, GS=1, DK1=8, NK1=28, DK2=8, DV=12, QP0=40, QPS=8, SLEEP=0, PH=64, QG=62, DX=8, TLB=0, W2TH=1, NAT=1, NOQ=0, QW=7, SW=6, GE=0, NUG=0, RPOS=94, ILV=0, ROT=1, MW=4, HPOS=76, ST=0, DBGST=-1, PADTO=0, PADWG=-1, STPOS=-1)

S_WS, S_DBG, S_A, S_B = 's[48:51]', 's[52:55]', 's[56:59]', 's[60:63]'
S_LO, S_HI, S_MASK, S_SPIN = 's64', 's65', 's66', 's67'
S_TAG, S_EPO, S_T16 = 's26', 's27', 's1'
DPP = 'row_mask:0xf bank_mask:0xf'


def vr(a, n):
    return 'v[%d:%d]' % (a, a + n - 1)


PADAT = []


class G:
    def __init__(self, stamps=False):
        self.vm = []
        self.L = []
        self.stamps = stamps
        self.nlabel = 0
        self.nst = 0

    def __call__(self, s):
        for line in s.strip('\n').split('\n'):
            line = line.strip()
            if line:
                self.L.append(line if line.endswith(':') else '    ' + line)

    def label(self, p='L'):
        self.nlabel += 1
        return '%s_%d' % (p, self.nlabel)

    def stamp(self, name, sets=(0,)):
        if PADAT and name == PADAT[0]:
            self('s_memrealtime s[90:91]')
            self.padarmed = True
        if self.stamps and P['ST'] in sets:
            k = self.nst
            self.nst += 1
            assert k < 13 and (k < 11 or name[0] in 'gr'), name
            self('s_memrealtime s[%d:%d] ; stamp %d %s' % (70 + 2 * k, 71 + 2 * k, k, name))

    def vmop(self, text, tag):
        for line in text.strip().split('\n'):
            self(line)
            self.vm.append(tag)

    def vmwait(self, *tags):
        idx = [i for i, t in enumerate(self.vm) if t in tags]
        if not idx:
            return
        n = len(self.vm) - 1 - idx[-1]
        assert n <= 63
        self('s_waitcnt vmcnt(%d)' % n)
        self.vm = self.vm[idx[-1] + 1:]

    def nop(self, n):
        while n > 0:
            k = min(n, 16)
            self('s_nop %d' % (k - 1))
            n -= k

    def bits(self, dst, src, fields, tmp, add=None):
        first = True
        for (lo, n, mul) in fields:
            t = dst if first else tmp
            if lo == 0:
                self(f'v_and_b32 v{t}, {(1 << n) - 1}, v{src}')
            else:
                self(f'v_bfe_u32 v{t}, v{src}, {lo}, {n}')
            pw = mul & (mul - 1) == 0
            sh = mul.bit_length() - 1
            if first:
                if mul != 1:
                    self(f'v_lshlrev_b32 v{dst}, {sh}, v{dst}' if pw else f'v_mul_u32_u24 v{dst}, {mul}, v{dst}')
            elif mul == 1:
                self(f'v_add_u32 v{dst}, v{dst}, v{tmp}')
            elif pw:
                self(f'v_lshl_add_u32 v{dst}, v{tmp}, {sh}, v{dst}')
            else:
                self(f'v_mul_u32_u24 v{tmp}, {mul}, v{tmp}\nv_add_u32 v{dst}, v{dst}, v{tmp}')
            first = False
        if add not in (None, 0):
            self(f'v_add_u32 v{dst}, {add}, v{dst}')

    def setexec(self, m):
        if m == -1:
            self('s_mov_b64 exec, -1')
        elif m < (1 << 31):
            self('s_mov_b64 exec, 0x%x' % m)
        else:
            self('s_mov_b32 exec_lo, 0x%x\ns_mov_b32 exec_hi, 0x%x' % (m & 0xffffffff, m >> 32))


def rep16(m):
    return m * 0x0001000100010001


def check(g, regs, tmp, mask=TMASK):
    regs = list(regs)
    g(f'v_bitop3_b32 v{tmp}, v{regs[0]}, v{regs[1]}, {S_EPO} bitop3:0x7e')
    for r in regs[2:]:
        g(f'v_bitop3_b32 v{tmp}, v{tmp}, v{r}, {S_EPO} bitop3:0xf6')
    if mask == 0xffff:
        g(f'v_cmp_ne_u16 vcc, 0, v{tmp}')
        return
    if mask != -1:
        g(f'v_and_b32 v{tmp}, {mask}, v{tmp}')
    g(f'v_cmp_ne_u32 vcc, 0, v{tmp}')


def tagmask(g, vm):
    g(f'v_mov_b32 v{vm}, 0x{0xffffffff ^ TMASK:x}')


def tag(g, regs, vm):
    for r in regs:
        g(f'v_and_or_b32 v{r}, v{r}, v{vm}, {S_TAG}')


def epoch_load(reg):
    return f'buffer_load_dword v{reg}, off, {S_WS}, 0 sc1'


def epoch_tag(g, reg):
    g(f'''v_readfirstlane_b32 {S_EPO}, v{reg}
          s_mul_i32 {S_TAG}, {S_EPO}, 0x9e3779b1
          s_lshr_b32 {S_TAG}, {S_TAG}, 12
          s_or_b32 {S_TAG}, {S_TAG}, 1
          s_add_u32 {S_EPO}, {S_EPO}, {S_TAG}
          s_and_b32 {S_TAG}, {S_EPO}, {TMASK}
          s_and_b32 {S_T16}, {S_EPO}, 0xffff''')


def poll(g, loads, regs, tmp, sleep=0, preloaded=False, mask=TMASK):
    lp, done, chk = g.label('L_poll'), g.label('L_ok'), g.label('L_chk')
    g(f's_mov_b32 {S_SPIN}, {SPIN}')
    if preloaded:
        g(f's_branch {chk}')
    g(lp + ':')
    g(loads)
    g('s_waitcnt vmcnt(0)')
    if preloaded:
        g(chk + ':')
    check(g, regs, tmp, mask)
    g(f's_cbranch_vccz {done}')
    if sleep:
        g(f's_sleep {sleep}')
    g(f's_sub_u32 {S_SPIN}, {S_SPIN}, 1\ns_cbranch_scc0 {lp}')
    g(done + ':')


def fread(reg, soff, off):
    return f'buffer_load_dword v{reg}, off, {S_DBG}, {soff} offset:{off + 128} sc1'


def fpoll(g, reg, soff, off, sleep, preloaded=False):
    lp, done, chk = g.label('L_fpoll'), g.label('L_fok'), g.label('L_fchk')
    g(f's_mov_b32 {S_SPIN}, {SPIN}')
    if preloaded:
        g(f's_branch {chk}')
    g(lp + ':')
    g(fread(reg, soff, off) + '\ns_waitcnt vmcnt(0)')
    if preloaded:
        g(chk + ':')
    g(f'v_cmp_eq_u32 vcc, 0, v{reg}\ns_cbranch_vccz {done}')
    if sleep:
        g(f's_sleep {sleep}')
    g(f's_sub_u32 {S_SPIN}, {S_SPIN}, 1\ns_cbranch_scc0 {lp}')
    g(done + ':')


def fwait(g, reg, soff, off, sleep):
    skip = only_wave(g, 0)
    fpoll(g, reg, soff, off, sleep)
    g(skip + ':')
    g('s_barrier')


def arrive(g, reg, soff, off):
    g(f'v_mov_b32 v{reg}, 1\ns_mov_b64 exec, 1\nbuffer_atomic_add v{reg}, off, {S_DBG}, {soff} offset:{off} sc0 sc1\ns_mov_b64 exec, -1')


def arrived(g, reg, soff, off, n):
    skip = g.label('L_notlast')
    g(f'v_readfirstlane_b32 s99, v{reg}\ns_cmp_lg_u32 s99, {n - 1}\ns_cbranch_scc1 {skip}')
    g(f's_mov_b64 exec, 1\nbuffer_store_dword v{reg}, off, {S_DBG}, {soff} offset:{off + 128} sc1\ns_mov_b64 exec, -1')
    g(skip + ':')


def srd(g, s, lo, size):
    base = int(s[2:s.index(':')])
    g(f's_mov_b32 s{base}, s{lo}\ns_mov_b32 s{base + 1}, s{lo + 1}\ns_mov_b32 s{base + 2}, 0x{size:x}\ns_mov_b32 s{base + 3}, 0x20000')


def only_wave(g, w):
    skip = g.label('L_skip')
    g(f's_cmp_lg_u32 s3, {w}\ns_cbranch_scc1 {skip}')
    return skip


def write_stamps(g):
    if PADAT and getattr(g, 'padarmed', False):
        l = g.label('L_padat')
        g(f'{l}:\ns_memrealtime s[4:5]\ns_waitcnt lgkmcnt(0)\ns_sub_u32 s4, s4, s90\ns_sleep 4\ns_cmp_lt_u32 s4, 6000\ns_cbranch_scc1 {l}')
    if not g.stamps:
        return
    g('s_waitcnt lgkmcnt(0)')
    skip = only_wave(g, 0)
    g('s_mov_b64 exec, 1')
    if P['DBGST'] >= 0:
        g(f's_cmp_lg_u32 s2, {P["DBGST"]}\ns_cbranch_scc1 {skip}')
        for k in range(1, min(g.nst, 12)):
            g(f's_sub_u32 s4, s{70 + 2 * k}, s70\nv_mov_b32 v2, s4')
            g(f'buffer_store_dword v2, off, {S_DBG}, 0 offset:{16 + 4 * k}')
        g(skip + ':')
        return
    g('s_lshl_b32 s4, s2, 8\ns_add_u32 s4, s44, s4\ns_addc_u32 s5, s45, 0')
    g('s_add_u32 s4, s4, %d\ns_addc_u32 s5, s5, 0' % (255 << 20))
    g('v_mov_b32 v1, 0')
    for k in range(g.nst):
        g(f'v_mov_b32 v2, s{70 + 2 * k}\nv_mov_b32 v3, s{71 + 2 * k}')
        g(f'global_store_dwordx2 v1, v[2:3], s[4:5] offset:{8 * k}')
        g('s_nop 1')
    g(skip + ':')


def prefetch_code(g, label, nkb8, vtmp, vdst, tag=None):
    pc = g.label('L_pc')
    g('s_getpc_b64 s[98:99]')
    if label:
        g(f'{pc}:\ns_add_u32 s98, s98, {label}-{pc}\ns_addc_u32 s99, s99, 0')
    g('s_and_b32 s98, s98, 0xffffff80')
    g(f's_lshl_b32 s97, s3, 10\nv_lshl_add_u32 v{vtmp}, v0, 4, s97')
    for i in range(nkb8):
        if i:
            g(f'v_add_u32 v{vtmp}, 8192, v{vtmp}')
        t = f'global_load_dwordx4 {vr(vdst, 4)}, v{vtmp}, s[98:99]'
        g.vmop(t, tag) if tag else g(t)


BLK = lambda i: 64 + 32 * i
UA, UB, UC = 0, 2, 4
ACC = 32
KW, NB, NW, NR, NO, KB, TID = 1, 2, 3, 4, 5, 6, 7
T = 24


class Lds:
    def __init__(self, base):
        self.ACTS, self.ACTH, self.RED = base, base + 4352, base + 8704
        self.OUTV = base + 17408
        self.PART = base + 17664
        self.STAT = base + 18688
        self.END = base + 19200


ABS = 2048 + 128


def nstep():
    return 1 if P['NAT'] else 64


def nvoff(g, dst, rs, tid=TID, tmp=T + 7):
    g.bits(dst, tid, [(3, 6, rs * 8 if P['NAT'] else rs), (0, 3, 16)], tmp)


def nload(g, unit, ptr, size, rs, s_col, voff, kbs=(0, 1), tag=None):
    srd(g, S_A, ptr, size)
    for kb in kbs:
        g(f's_add_u32 s4, {s_col}, {kb * 512 * rs}')
        for t in range(8):
            g.vmop(f'buffer_load_dwordx4 {vr(BLK(unit + kb) + 4 * t, 4)}, v{voff}, {S_A}, s4 offen nt', (tag, kb))
            if t < 7:
                g(f's_add_u32 s4, s4, {nstep() * rs}')


def kload(g, unit, ptr, size, s_idx, voff, rowf, tag):
    srd(g, S_A, ptr, size)
    g(f's_lshl_b32 s5, {s_idx}, 17')
    for kb in range(2):
        for t in range(8):
            g(f's_add_u32 s4, s5, {rowf(kb, t) * 2048}')
            g.vmop(f'buffer_load_dwordx4 {vr(BLK(unit + kb) + 4 * t, 4)}, v{voff}, {S_A}, s4 offen nt', (tag, kb))


def transpose(g, blk, T=T):
    b = BLK(blk)
    for p in range(4):
        a, c = b + 8 * p + p, b + 8 * p + 4 + p
        g(f'v_perm_b32 v{T}, v{c}, v{a}, {S_LO}\nv_perm_b32 v{c}, v{c}, v{a}, {S_HI}\nv_mov_b32 v{a}, v{T}')
    for p in range(4):
        for w in range(p + 1, 4):
            xa, xb = b + 8 * p + w, b + 8 * p + 4 + w
            ya, yb = b + 8 * w + p, b + 8 * w + 4 + p
            g(f'v_perm_b32 v{T}, v{xb}, v{xa}, {S_LO}\nv_perm_b32 v{T + 1}, v{xb}, v{xa}, {S_HI}')
            g(f'v_perm_b32 v{xa}, v{yb}, v{ya}, {S_LO}\nv_perm_b32 v{xb}, v{yb}, v{ya}, {S_HI}')
            g(f'v_mov_b32 v{ya}, v{T}\nv_mov_b32 v{yb}, v{T + 1}')


def mfmas(g, unit, b0, b1):
    for kb, bop in ((0, b0), (1, b1)):
        if kb == 1:
            g('s_waitcnt lgkmcnt(0)')
        for j in range(8):
            d = vr(ACC + 4 * j, 4)
            g(f'v_mfma_f32_16x16x32_bf16 {d}, {vr(BLK(unit + kb) + 4 * j, 4)}, {vr(bop, 4)}, {d if kb else 0}')


def common_addr(g, L, kperm):
    K0B = T + 6
    g(f's_lshl_b32 s4, s3, 6\nv_add_u32 v{TID}, s4, v0')
    g.bits(K0B, TID, [(3, 6, 64), (0, 2, 16), (2, 1, 8)], T)
    if P['NAT']:
        g.bits(KW, K0B, [(11, 1, ABS), (0, 11, 1)], T)
        g.bits(NB, TID, [(0, 1, ABS), (6, 3, 128), (4, 2, 32), (1, 1, 16)], T)
    else:
        g.bits(KW, K0B, [(11, 1, ABS), (4, 3, 256), (10, 1, 128), (1, 3, 16), (7, 3, 2)], T)
        g.bits(NB, TID, [(0, 1, ABS), (6, 3, 256), (4, 2, 32), (1, 1, 16)], T)
    g.bits(NW, TID, [(6, 3, 1088), (1, 1, 544), (0, 1, 256), (2, 2, 32), (4, 1, 16)], T, L.RED)
    g.bits(NR, TID, [(0, 2, 544), (2, 7, 4)], T, L.RED)
    if kperm:
        g.bits(NO, TID, [(8, 1, 128), (4, 1, 64), (5, 1, 32), (7, 1, 16), (2, 2, 4), (6, 1, 2)], T, L.OUTV)
    else:
        g.bits(NO, TID, [(8, 1, 128), (2, 3, 16), (5, 2, 4), (7, 1, 2)], T, L.OUTV)
    g.bits(KB, TID, [(0, 1, 128), (4, 2, 16)], T, L.OUTV)


def nsplit(g, unit, act, half=None):
    if half is None:
        g(f'ds_read_b128 {vr(T, 4)}, v{NB} offset:{act}\nds_read_b128 {vr(T + 4, 4)}, v{NB} offset:{act + (1024 if P["NAT"] else 128)}')
        g('s_waitcnt lgkmcnt(1)')
        mfmas(g, unit, T, T + 4)
    else:
        g(f'ds_read_b128 {vr(T, 4)}, v{half} offset:{act}\ns_waitcnt lgkmcnt(0)')
        for j in range(8):
            g(f'v_mfma_f32_16x16x32_bf16 {vr(ACC + 4 * j, 4)}, {vr(BLK(unit) + 4 * j, 4)}, {vr(T, 4)}, 0')
    for dd in range(1, 4):
        g.setexec(rep16(0xf << (4 * dd)))
        if dd != 2:
            g.nop(2)
        for i in range(4):
            g(f'v_mov_b64 {vr(ACC + 2 * i, 2)}, {vr(ACC + 8 * dd + 2 * i, 2)}')
    g.setexec(0xcccccccc33333333)
    g(f'ds_write_b128 v{NW}, {vr(ACC, 4)}\nds_write_b128 v{NW}, {vr(ACC + 4, 4)} offset:128')
    g.setexec(-1)
    g('s_waitcnt lgkmcnt(0)\ns_barrier')
    for k in range(4):
        g(f'ds_read_b32 v{T + k}, v{NR} offset:{k * 4 * 544}')
    g('s_waitcnt lgkmcnt(2)')
    g(f'v_add_f32 v{T}, v{T}, v{T + 1}')
    g('s_waitcnt lgkmcnt(0)')
    g(f'v_add_f32 v{T + 2}, v{T + 2}, v{T + 3}\nv_add_f32 v{T}, v{T}, v{T + 2}')
    g.nop(2)
    g(f'v_add_f32_dpp v{T}, v{T}, v{T} quad_perm:[1,0,3,2] {DPP}')
    g.nop(2)
    g(f'v_add_f32_dpp v{T}, v{T}, v{T} quad_perm:[2,3,0,1] {DPP}')


def actwrite(g, p, act):
    if P['NAT']:
        g(f'ds_write_b64 v{KW}, {vr(p, 2)} offset:{act}')
        return
    g(f'ds_write_b16 v{KW}, v{p} offset:{act}\nds_write_b16_d16_hi v{KW}, v{p} offset:{act + 16}')
    g(f'ds_write_b16 v{KW}, v{p + 1} offset:{act + 32}\nds_write_b16_d16_hi v{KW}, v{p + 1} offset:{act + 48}')


def unpack2(g, d, s):
    g(f'v_lshlrev_b32 v{d}, 16, v{s}\nv_and_b32 v{d + 1}, {S_MASK}, v{s}')


def unpack(g, d, s):
    unpack2(g, d, s)
    unpack2(g, d + 2, s + 1)


def pack(g, t, d):
    g(f'v_cvt_pk_bf16_f32 v{t}, v{d}, v{d + 1}\nv_cvt_pk_bf16_f32 v{t + 1}, v{d + 2}, v{d + 3}')


def round4(g, d, t):
    pack(g, t, d)
    unpack(g, d, t)


def round2(g, a):
    g(f'v_cvt_pk_bf16_f32 v{a + 1}, v{a}, v{a + 1}')
    unpack2(g, a, a + 1)


def pk4(g, op, d, a, b):
    g(f'{op} {vr(d, 2)}, {vr(a, 2)}, {vr(b, 2)}\n{op} {vr(d + 2, 2)}, {vr(a + 2, 2)}, {vr(b + 2, 2)}')


def layernorm(g, x, sw, sr, off, last_packed=False):
    a, b = T + 4, T + 5
    g(f'v_add_f32 v{a}, v{x}, v{x + 1}\nv_mul_f32 v{b}, v{x}, v{x}')
    g(f'v_add_f32 v{T}, v{x + 2}, v{x + 3}\nv_fmac_f32 v{b}, v{x + 1}, v{x + 1}')
    g(f'v_add_f32 v{a}, v{a}, v{T}\nv_fmac_f32 v{b}, v{x + 2}, v{x + 2}\nv_fmac_f32 v{b}, v{x + 3}, v{x + 3}')
    for i, ctl in enumerate(['row_ror:8 ' + DPP, 'row_ror:4 ' + DPP, 'row_ror:2 ' + DPP, 'row_ror:1 ' + DPP,
                             'row_bcast:15 row_mask:0xa bank_mask:0xf', 'row_bcast:31 row_mask:0xc bank_mask:0xf']):
        if i:
            g('s_nop 0')
        g(f'v_add_f32_dpp v{a}, v{a}, v{a} {ctl}')
        if i == 0:
            g('s_nop 0')
        g(f'v_add_f32_dpp v{b}, v{b}, v{b} {ctl}')
    g.setexec(1 << 63)
    g(f'ds_write_b64 v{sw}, {vr(a, 2)} offset:{off}')
    g.setexec(-1)
    g('s_waitcnt lgkmcnt(0)\ns_barrier')
    g(f'ds_read_b128 {vr(T, 4)}, v{sr} offset:{off}\nds_read_b128 {vr(T + 4, 4)}, v{sr} offset:{off + 16}')
    g('s_waitcnt lgkmcnt(0)')
    pk4(g, 'v_pk_add_f32', T, T, T + 4)
    g(f'v_pk_add_f32 {vr(a, 2)}, {vr(T, 2)}, {vr(T + 2, 2)}')
    g(f'v_mul_f32 v{a}, 0x3a800000, v{a}\nv_mul_f32 v{b}, 0x3a800000, v{b}')
    g(f'v_fma_f32 v{b}, -v{a}, v{a}, v{b}\nv_max_f32 v{b}, 0, v{b}')
    round2(g, a)
    g(f'v_add_f32 v{b}, 0x3727c5ac, v{b}')
    g(f'v_cvt_pk_bf16_f32 v{b}, v{b}, v{b}\nv_lshlrev_b32 v{b}, 16, v{b}')
    g(f'v_sqrt_f32 v{b}, v{b}')
    for i in range(4):
        g(f'v_sub_f32 v{x + i}, v{x + i}, v{a}')
    g(f'v_cvt_pk_bf16_f32 v{b}, v{b}, v{b}\nv_lshlrev_b32 v{b}, 16, v{b}')
    g(f'v_rcp_f32 v{b}, v{b}')
    round4(g, x, T + 6)
    for i in range(4):
        g(f'v_mul_f32 v{x + i}, v{x + i}, v{b}')
    if last_packed:
        pack(g, T + 6, x)
    else:
        round4(g, x, T + 6)


def ksplit_out(g, unit, po, mb):
    g(f'ds_read_b128 {vr(T, 4)}, v{KB}\nds_read_b128 {vr(T + 4, 4)}, v{KB} offset:64')
    g('s_waitcnt lgkmcnt(1)')
    mfmas(g, unit, T, T + 4)
    tagmask(g, T)
    for j in range(1, 8):
        g.setexec(rep16(3 << (2 * j)))
        g(f'v_mov_b64 {vr(ACC, 2)}, {vr(ACC + 4 * j, 2)}\nv_mov_b64 {vr(ACC + 2, 2)}, {vr(ACC + 4 * j + 2, 2)}')
    g.setexec(-1)
    tag(g, range(ACC, ACC + 4), T)
    g(f'buffer_store_dwordx4 {vr(ACC, 4)}, v{po}, {S_WS}, {mb} offen sc1')


def publish32(g, L, s_off, bstride, exact):
    g(f'v_subrev_u32 v{T + 1}, {L.OUTV}, v{NO}\nv_lshlrev_b32 v{T + 1}, 1, v{T + 1}\nds_write_b32 v{T + 1}, v{T} offset:{L.PART}')
    g('s_waitcnt lgkmcnt(0)\ns_barrier')
    skip = only_wave(g, 0)
    if exact:
        g(f'v_lshlrev_b32 v{T + 4}, 3, v0\nds_read_b64 {vr(T + 6, 2)}, v{T + 4} offset:{L.PART}')
        g.bits(T + 5, 0, [(5, 1, bstride), (0, 5, 16)], T + 4)
        g(f'v_mov_b32 v{T + 1}, {S_EPO}\nv_mov_b32 v{T + 3}, {S_EPO}\ns_waitcnt lgkmcnt(0)')
        g(f'v_mov_b32 v{T}, v{T + 6}\nv_mov_b32 v{T + 2}, v{T + 7}')
    else:
        g(f'v_lshlrev_b32 v{T + 4}, 4, v0\nds_read_b128 {vr(T, 4)}, v{T + 4} offset:{L.PART}')
        g.bits(T + 5, 0, [(4, 1, bstride), (0, 4, 16)], T + 6)
        g('s_waitcnt lgkmcnt(0)\ns_mov_b32 exec_hi, 0')
    g(f'buffer_store_dwordx4 {vr(T, 4)}, v{T + 5}, {S_WS}, {s_off} offen sc1')
    g.setexec(-1)
    g('s_nop 0')
    g(skip + ':')


def silu_image(g, L, src):
    unpack(g, ACC, src)
    for i in range(4):
        g(f'v_mul_f32 v{T + i}, 0xbfb8aa3b, v{ACC + i}')
    for i in range(4):
        g(f'v_exp_f32 v{T + i}, v{T + i}')
    for i in range(4):
        g(f'v_add_f32 v{T + i}, 1.0, v{T + i}')
    for i in range(4):
        g(f'v_rcp_f32 v{T + i}, v{T + i}')
    for i in range(4):
        g(f'v_mul_f32 v{T + i}, v{T + i}, v{ACC + i}')
    pack(g, T + 4, T)
    actwrite(g, T + 4, L.ACTS)


def proj(g):
    L = Lds(8448)
    Y, SB = 8, 12
    PO, RO, RL, OUTO = 8, 9, 10, 11
    WG, AO, AO3, OW = 12, 17, 18, 16
    WQO, WMO, SW, SR = 17, 18, 19, 23
    RX, RGA, RGB, RB2 = 20, 21, 22, 23
    JC, ODD = 's14', 's15'
    g.vm = []

    def reduce(mb, nprod, part):
        g(f's_mov_b32 s4, {MODL + part * 4096}\ns_mov_b32 s5, {MODL + part * 4096 + 32768}')
        if nprod < 64:
            g(f'v_mov_b32 v{T}, 0')
            skip = g.label('L_nored')
            g(f's_cmp_ge_u32 s3, {nprod // 8}\ns_cbranch_scc1 {skip}')
        l0, l1 = g.label('L_red0'), g.label('L_red1')
        ld = f'buffer_load_dwordx4 {vr(T, 4)}, v{RO}, {S_WS}, {mb} offen sc1'
        g(f's_cmp_eq_u32 s3, 0\ns_cbranch_scc1 {l0}')
        poll(g, ld, range(T, T + 4), T + 4)
        g(f's_branch {l1}\n{l0}:')
        poll(g, ld + f'\nbuffer_load_dwordx2 {vr(ACC + 18, 2)}, v{RGA}, {S_WS}, s4 offen sc1'
                f'\nbuffer_load_dwordx2 {vr(ACC + 20, 2)}, v{RGA}, {S_WS}, s5 offen sc1',
             list(range(T, T + 4)) + list(range(ACC + 18, ACC + 22)), T + 4)
        g(l1 + ':')
        g.stamp('red_polled%d' % nprod, (1,))
        g(f'v_permlane32_swap_b32 v{T}, v{T + 2}\nv_permlane32_swap_b32 v{T + 1}, v{T + 3}')
        g(f'v_add_f32 v{T}, v{T}, v{T + 2}\nv_add_f32 v{T + 1}, v{T + 1}, v{T + 3}')
        g.nop(2)
        g(f'v_permlane16_swap_b32 v{T}, v{T + 1}\nv_add_f32 v{T}, v{T}, v{T + 1}')
        g.nop(2)
        g(f'v_add_f32_dpp v{T}, v{T}, v{T} row_ror:8 {DPP}')
        if nprod < 64:
            g(skip + ':')
        g(f'ds_write_b32 v{RL}, v{T}')
        g('s_waitcnt lgkmcnt(0)\ns_barrier')
        skip = only_wave(g, 0)
        g(f'v_and_b32 v{T + 2}, 15, v0\nv_lshlrev_b32 v{T + 2}, 3, v{T + 2}')
        for w in range(8):
            g(f'ds_read_b64 {vr(ACC + 2 * w, 2)}, v{T + 2} offset:{L.PART + 128 * w}')
        g(f'v_pk_add_f32 {vr(ACC + 18, 2)}, {vr(ACC + 18, 2)}, {vr(ACC + 20, 2)}')
        round2(g, ACC + 18)
        return skip

    def reduce_sum():
        g('s_waitcnt lgkmcnt(4)')
        pk4(g, 'v_pk_add_f32', ACC, ACC, ACC + 4)
        g('s_waitcnt lgkmcnt(0)')
        pk4(g, 'v_pk_add_f32', ACC + 8, ACC + 8, ACC + 12)
        pk4(g, 'v_pk_add_f32', ACC, ACC, ACC + 8)
        g(f'v_pk_add_f32 {vr(T, 2)}, {vr(ACC, 2)}, {vr(ACC + 2, 2)}')
        round2(g, T)

    g('L_proj:')
    g(f's_and_b32 {JC}, s2, 7\ns_lshl_b32 {JC}, {JC}, 3\ns_lshr_b32 s4, s2, 3\ns_add_u32 {JC}, {JC}, s4')
    g(f's_lshl_b32 s4, s3, 6\nv_add_u32 v{TID}, s4, v0')
    g.bits(T + 6, TID, [(3, 6, 64), (0, 2, 16), (2, 1, 8)], T)
    nvoff(g, WMO, 12288)
    g(f'''s_and_b32 {ODD}, {JC}, 1
          s_lshr_b32 s6, {JC}, 1
          s_lshl_b32 s6, s6, 7
          s_mul_i32 s13, {ODD}, {512 * 12288}
          s_add_u32 s13, s13, s6
          s_lshl_b32 s7, {JC}, 7
          s_lshr_b32 s46, {JC}, 4
          s_lshl_b32 s46, s46, 2
          s_waitcnt lgkmcnt(0)''')
    srd(g, S_WS, 44, WS_SIZE)
    srd(g, S_DBG, 42, 256)
    g(f's_lshl_b32 s47, {ODD}, 15\ns_lshl_b32 s5, s6, 2\ns_add_u32 s47, s47, s5\ns_add_u32 s47, s47, {MODP}')
    g.vmop(epoch_load(RGB), 'in')
    srd(g, S_B, 36, 4096)
    g.vmop(f'buffer_load_dwordx2 {vr(SB, 2)}, v{T + 6}, {S_B}, 0 offen', 'in')
    srd(g, S_B, 16, 4096)
    g.vmop(f'buffer_load_dwordx2 {vr(SB + 2, 2)}, v{T + 6}, {S_B}, 0 offen', 'in')
    prefetch_code(g, None, 2, T, ACC + 4, 'in')
    nload(g, UA, 38, 1024 * 12288, 12288, 's13', WMO, (0,), tag='m1')
    common_addr(g, L, False)
    nvoff(g, WQO, 8192)
    g(f's_lshl_b32 s4, s3, 3\nv_mov_b32 v{SW}, s4\ns_and_b32 s4, s4, 32\nv_mov_b32 v{SR}, s4')
    g(f's_mul_i32 s8, {JC}, {MBA_ST}\ns_add_u32 s8, s8, {MBA}')
    g(f's_lshl_b32 s9, {JC}, 13\ns_add_u32 s10, s9, {MBC}\ns_add_u32 s9, s9, {MBB}')
    g(f's_lshl_b32 s11, {JC}, 7\ns_add_u32 s11, s11, {X1}')
    g.vmwait('in')
    epoch_tag(g, RGB)
    silu_image(g, L, SB)
    unpack(g, Y, SB + 2)
    layernorm(g, Y, SW, SR, L.STAT)
    nload(g, UB, 22, 1024 * 8192, 8192, 's7', WQO, (0,), tag='wq')
    g('s_waitcnt vmcnt(8)')
    transpose(g, UA)
    g(f's_lshl_b32 s4, {ODD}, {10 if P["NAT"] else 7}\nv_add_u32 v{T + 7}, s4, v{NB}')
    nsplit(g, UA, L.ACTS, T + 7)
    publish32(g, L, 's47', 16384, True)
    g.stamp('g_mod')
    nload(g, UB, 22, 1024 * 8192, 8192, 's7', WQO, (1,), tag='wq')
    MP = RGA
    g.bits(MP, TID, [(8, 1, 16384), (3, 5, 256), (0, 2, 64), (2, 1, 32)], T + 7, MODP)
    g('s_waitcnt vmcnt(8)')
    transpose(g, UB)
    g(f's_mov_b32 s4, 8192\ns_mov_b32 s5, 32768\ns_mov_b32 s12, {32768 + 8192}')
    mloads = '\n'.join(f'buffer_load_dwordx4 {vr(ACC + 4 * i, 4)}, v{MP}, {S_WS}, {("0", "s5", "s4", "s12")[i >> 1]} offen offset:{16 * (i & 1)} sc1'
                       for i in range(8))
    g(f's_waitcnt vmcnt({P["MW"]})')
    g(mloads)
    attention(g, 'g_addr')
    attention(g, 'g_issue', range(P['GE']))
    g(f's_waitcnt vmcnt({8 + P["GE"]})')
    transpose(g, UB + 1)
    g(f's_waitcnt vmcnt({P["GE"]})')
    poll(g, mloads, range(ACC + 1, ACC + 32, 2), T, P['MSL'], preloaded=True, mask=-1)
    g.vm = []
    g.stamp('g_modseen')
    for i in range(4):
        g(f'v_add_f32 v{T + i}, v{ACC + 16 + 2 * i}, v{ACC + 24 + 2 * i}')
    for i in range(4):
        g(f'v_add_f32 v{ACC + i}, v{ACC + 2 * i}, v{ACC + 8 + 2 * i}')
    round4(g, T, T + 4)
    for i in range(4):
        g(f'v_add_f32 v{T + i}, 1.0, v{T + i}')
    round4(g, T, T + 4)
    pk4(g, 'v_pk_mul_f32', Y, Y, T)
    round4(g, Y, T + 4)
    round4(g, ACC, T + 4)
    pk4(g, 'v_pk_add_f32', Y, Y, ACC)
    pack(g, T, Y)
    actwrite(g, T, L.ACTH)
    g('s_waitcnt lgkmcnt(0)\ns_barrier')
    nsplit(g, UB, L.ACTH)
    g(f's_lshl_b32 s12, s7, 1\ns_add_u32 s12, s12, {QB}')
    g(f'v_cvt_pk_bf16_f32 v{T}, v{T}, v{T}\nv_lshl_or_b32 v{T}, v{T}, 16, {S_T16}')
    publish32(g, L, 's12', 16384, False)
    g.stamp('g_q')

    attention(g, 'g_issue', range(P['GE'], 16 * P['NUG']))
    if P['NUG']:
        attention(g, 'g_q')
    g.bits(T + 5, TID, [(4, 2, 4096), (6, 3, 256), (0, 4, 16)], T + 7)
    kload(g, UC, 24, 4096 * 2048, JC, T + 5, lambda kb, t: 32 * kb + (t & 3) * 8 + (t >> 2), 'wo')
    if P['NUG']:
        attention(g, 'g_compute')
        g.stamp('g_att')
        common_addr(g, L, False)
    g(f'v_lshlrev_b32 v{RO}, 4, v{TID}')
    g('s_waitcnt vmcnt(0)')
    g.vm = []
    transpose(g, UC)
    transpose(g, UC + 1)
    g.stamp('g_loaded')
    g(f's_lshr_b32 s4, {JC}, 1\ns_lshl_b32 s4, s4, 6\ns_lshl_b32 s5, {ODD}, 3\ns_add_u32 s4, s4, s5')
    g.bits(T, 0, [(1, 2, 16), (0, 1, 4)], T + 1, 's4')
    srd(g, S_B, 34, 2048)
    g(f'buffer_load_dword v{RB2}, v{T}, {S_B}, 0 offen')
    g(f'v_bfe_u32 v{T + 1}, v0, 3, 1\nv_lshlrev_b32 v{RGA}, 1, v{T}\nv_lshl_add_u32 v{RGA}, v{T + 1}, 14, v{RGA}')
    g(f'v_lshl_add_u32 v{OUTO}, v{T + 1}, 11, v{T}')
    srd(g, S_B, 16, 4096)
    g(f'buffer_load_dword v{RX}, v{OUTO}, {S_B}, 0 offen')
    srd(g, S_B, 40, 4096)
    g.bits(RL, TID, [(6, 3, 128), (0, 1, 64), (4, 2, 16), (1, 2, 4)], T, L.PART)
    g.bits(PO, TID, [(3, 6, 8192), (0, 3, 16)], T)
    g(f's_add_u32 s12, s7, {MBB}')
    g.bits(AO, TID, [(8, 1, SLOTS * 256), (3, 3, 256), (6, 2, 64), (0, 3, 8)], T + 3)
    g.bits(OW, TID, [(6, 3, 32), (0, 3, 4), (5, 1, 2)], T + 3, L.OUTV)
    g.bits(T + 5, TID, [(8, 1, 128), (3, 3, 4)], T + 3)
    g('s_add_u32 s13, s8, 4096')
    g.bits(T + 2, 0, [(5, 1, 8192), (0, 5, 8)], T + 3)
    g(f's_lshr_b32 s4, {JC}, 1\ns_lshl_b32 s4, s4, 8\ns_add_u32 s4, s4, {STATS}')
    prefetch_code(g, 'L_proj_tail', 1, T + 6, ACC)
    g.stamp('g_ready')
    g('L_proj_tail:')
    fwait(g, T, 's46', C_A, P['ASL'])
    g.stamp('g_hint', (0, 1))
    g(f'v_mov_b32 v{T}, 0xff800000\nv_mov_b32 v{T + 1}, 0')
    g.setexec(-1 if P['NUG'] else ((1 << SPL) - 1) * 0x100000001)
    poll(g, f'buffer_load_dwordx2 {vr(T, 2)}, v{T + 2}, {S_WS}, s4 offen sc1', [T, T + 1], T + 4, 2)
    g.setexec(-1)

    def red32(r, t, op):
        for sh in (8, 4, 2, 1):
            g.nop(2)
            g(f'{op}_dpp v{r}, v{r}, v{r} row_ror:{sh} {DPP}')
        g(f'v_mov_b32 v{t}, v{r}')
        g.nop(2)
        g(f'v_permlane16_swap_b32 v{r}, v{t}\n{op} v{r}, v{r}, v{t}')
    g(f'v_and_b32 v{T}, {S_MASK}, v{T}\nv_mov_b32 v{T + 2}, v{T}')
    red32(T + 2, T + 3, 'v_max_f32')
    g(f'v_sub_f32 v{T}, v{T}, v{T + 2}\nv_mul_f32 v{T}, 0x3fb8aa3b, v{T}\nv_exp_f32 v{T}, v{T}\ns_nop 0')
    g(f'v_mul_f32 v{T + 1}, v{T + 1}, v{T}')
    red32(T + 1, T + 3, 'v_add_f32')
    g(f'v_rcp_f32 v{T + 1}, v{T + 1}\ns_nop 0\nv_mul_f32 v{T}, v{T}, v{T + 1}')
    for k in range(4):
        g(f'ds_bpermute_b32 v{WG + k}, v{T + 5}, v{T} offset:{32 * k}')
    g('s_waitcnt lgkmcnt(0)')
    g.stamp('g_wgt', (0, 1))
    NT = 4 if P['NUG'] else 3
    poll(g, '\n'.join(f'buffer_load_dwordx2 {vr(T + 2 * k, 2)}, v{AO}, {S_WS}, {"s8" if k < 2 else "s13"} offen offset:{2048 * (k & 1)} sc1'
                      for k in range(NT)), range(T, T + 2 * NT), ACC, P['SLEEP'])
    g.stamp('g_apolled', (0, 1))
    g(f'v_mul_f32 v{T}, v{WG}, v{T}\nv_mul_f32 v{T + 1}, v{WG}, v{T + 1}')
    for k in range(1, NT):
        g(f'v_fmac_f32 v{T}, v{WG + k}, v{T + 2 * k}\nv_fmac_f32 v{T + 1}, v{WG + k}, v{T + 2 * k + 1}')
    g.nop(2)
    g(f'v_permlane32_swap_b32 v{T}, v{T + 1}\nv_add_f32 v{T}, v{T}, v{T + 1}\nv_mov_b32 v{T + 1}, v{T}')
    g.nop(2)
    g(f'v_permlane16_swap_b32 v{T}, v{T + 1}\nv_add_f32 v{T}, v{T}, v{T + 1}')
    g.nop(2)
    g(f'v_add_f32_dpp v{T}, v{T}, v{T} row_ror:8 {DPP}')
    g(f'v_cvt_pk_bf16_f32 v{T}, v{T}, v{T}\nds_write_b16 v{OW}, v{T}')
    g('s_waitcnt lgkmcnt(0)\ns_barrier')
    g.stamp('g_obar', (1,))
    ksplit_out(g, UC, PO, 's12')
    g.stamp('g_t2', (0, 1))
    skip = reduce('s9', 64, 0)
    unpack2(g, T + 6, RX)
    g(f'v_lshlrev_b32 v{T + 3}, 3, v0\nv_mov_b32 v{ACC + 16}, {S_MASK}')
    reduce_sum()
    g(f'v_pk_mul_f32 {vr(T, 2)}, {vr(T, 2)}, {vr(ACC + 18, 2)}')
    round2(g, T)
    g(f'v_pk_add_f32 {vr(T, 2)}, {vr(T, 2)}, {vr(T + 6, 2)}')
    g(f'v_cvt_pk_bf16_f32 v{RX}, v{T}, v{T + 1}')
    g(f'v_lshl_or_b32 v{T}, v{RX}, 16, {S_T16}\nv_and_or_b32 v{T + 1}, v{RX}, v{ACC + 16}, {S_T16}')
    g.setexec(0xffff)
    g(f'buffer_store_dwordx2 {vr(T, 2)}, v{T + 3}, {S_WS}, s11 offen sc1')
    g.setexec(-1)
    g(skip + ':')
    g.stamp('g_x1', (0, 1))
    g('s_barrier')
    skip = reduce('s10', 56, 3)
    unpack2(g, T + 2, RB2)
    unpack2(g, T + 6, RX)
    reduce_sum()
    g(f'v_pk_add_f32 {vr(T, 2)}, {vr(T, 2)}, {vr(T + 2, 2)}')
    round2(g, T)
    g(f'v_pk_mul_f32 {vr(T, 2)}, {vr(T, 2)}, {vr(ACC + 18, 2)}')
    round2(g, T)
    g(f'v_pk_add_f32 {vr(T, 2)}, {vr(T, 2)}, {vr(T + 6, 2)}')
    g(f'v_cvt_pk_bf16_f32 v{T}, v{T}, v{T + 1}')
    g.setexec(0xffff)
    g(f'buffer_store_dword v{T}, v{OUTO}, {S_B}, 0 offen')
    g(f's_cmp_lg_u32 s2, 0\ns_cbranch_scc1 {skip}\nv_mov_b32 v{T + 1}, {S_EPO}\ns_mov_b64 exec, 1')
    g(f'buffer_store_dword v{T + 1}, off, {S_WS}, 0 sc1')
    g(skip + ':')
    g.stamp('g_out', (0, 1))
    if P['PADTO']:
        if P['PADWG'] >= 0:
            g(f's_cmp_lg_u32 s2, {P["PADWG"]}\ns_cbranch_scc1 L_nopad')
        g(f'L_pad:\ns_memrealtime s[4:5]\ns_waitcnt lgkmcnt(0)\ns_sub_u32 s4, s4, s70\ns_cmp_lt_u32 s4, {P["PADTO"]}\ns_cbranch_scc1 L_pad\nL_nopad:')
    write_stamps(g)
    g('s_endpgm')


MLP_LDS = 4096
W1L = 4096
LDS_TOTAL = W1L + 131072


def mlp(g):
    L = Lds(MLP_LDS)
    PO, XO, SW, SR, B1 = 8, 9, 10, 11, 17
    C1, SH = 12, 18
    JM = 's14'
    g.vm = []
    g('L_mlp:')
    if P['W2TH']:
        skip = g.label('L_go')
        g(f's_cmp_lg_u32 s15, 0\ns_cbranch_scc1 {skip}\ns_cmp_lg_u32 s3, 0\ns_cbranch_scc1 {skip}')
        fpoll(g, ACC + 4, 's101', C_A, P['LSL'])
        g(skip + ':')
    g(f's_lshl_b32 s4, s3, 6\nv_add_u32 v{TID}, s4, v0')
    g(f's_lshl_b32 s7, {JM}, 7')
    g.bits(T + 5, TID, [(4, 2, 2048), (6, 3, 256), (0, 4, 16)], T + 7)
    g('s_barrier')
    kload(g, UB, 32, 3584 * 2048, JM, T + 5, lambda kb, t: 32 * kb + 4 * t, 'w2')
    common_addr(g, L, True)
    srd(g, S_B, 30, 3584 * 2)
    g.bits(T + 5, TID, [(2, 3, 16), (5, 2, 4), (7, 1, 2)], T, 's7')
    g.vmop(f'buffer_load_ushort v{B1}, v{T + 5}, {S_B}, 0 offen', 'k')
    prefetch_code(g, 'L_mlp_tail', 1, T + 5, ACC + 8, 'k')
    g.bits(XO, TID, [(2, 6, 128), (8, 1, 64), (0, 2, 16)], T, X1)
    g.bits(PO, TID, [(3, 6, 8192), (0, 3, 16)], T)
    g(f's_add_u32 s13, s7, {MBC}')
    g(f's_lshl_b32 s4, s3, 3\nv_mov_b32 v{SW}, s4\ns_and_b32 s4, s4, 32\nv_mov_b32 v{SR}, s4')
    MP = 16
    g.bits(MP, TID, [(8, 1, 16384), (3, 5, 128), (0, 2, 32), (2, 1, 16)], T, MODL + 4096)
    g(f's_mov_b32 s4, 4096\ns_mov_b32 s5, 32768\ns_mov_b32 s6, {32768 + 4096}')
    mloads = '\n'.join(f'buffer_load_dwordx4 {vr(ACC + 12 + 4 * i, 4)}, v{MP}, {S_WS}, {so} offen sc1' for i, so in enumerate(('0', 's5', 's4', 's6')))
    g.vmwait(('w2', 0))
    transpose(g, UB)
    g.vmop(mloads, 'k')
    g.vmwait(('w2', 1))
    XV = ACC
    xload = f'buffer_load_dwordx4 {vr(XV, 4)}, v{XO}, {S_WS}, 0 offen sc1'
    g.vmop(xload, 'x')
    transpose(g, UB + 1)
    g.vmwait('k')
    g.stamp('m_w2', (2,))
    poll(g, mloads, range(ACC + 12, ACC + 28), T, 2, preloaded=True)
    pk4(g, 'v_pk_add_f32', SH, ACC + 12, ACC + 16)
    pk4(g, 'v_pk_add_f32', C1, ACC + 20, ACC + 24)
    round4(g, SH, T)
    round4(g, C1, T)
    for i in range(4):
        g(f'v_add_f32 v{C1 + i}, 1.0, v{C1 + i}')
    round4(g, C1, T)
    g(f'v_lshlrev_b32 v{B1}, 16, v{B1}')
    g.stamp('m_ready', (0, 2))
    g('L_mlp_tail:')
    g('s_waitcnt vmcnt(0)')
    poll(g, xload, range(XV, XV + 4), T, mask=0xffff, preloaded=True)
    g.stamp('m_x1seen', (0, 2))
    for i in range(4):
        g(f'v_and_b32 v{XV + i}, {S_MASK}, v{XV + i}')
    layernorm(g, XV, SW, SR, L.STAT)
    g.stamp('m_ln1', (2,))
    pk4(g, 'v_pk_mul_f32', XV, XV, C1)
    round4(g, XV, T + 6)
    pk4(g, 'v_pk_add_f32', XV, XV, SH)
    round4(g, XV, T + 6)
    layernorm(g, XV, SW, SR, L.STAT + 64, last_packed=True)
    actwrite(g, T + 6, L.ACTH)
    g('s_waitcnt lgkmcnt(0)\ns_barrier')
    g.stamp('m_ln2', (2,))
    nsplit(g, UC, L.ACTH)
    g.stamp('m_t3', (2,))
    g(f'''v_cvt_pk_bf16_f32 v{T}, v{T}, v{T}
          v_lshlrev_b32 v{T}, 16, v{T}
          v_add_f32 v{T}, v{T}, v{B1}
          v_cvt_pk_bf16_f32 v{T}, v{T}, v{T}
          v_lshlrev_b32 v{T}, 16, v{T}
          v_mov_b32 v{T + 2}, 0xc0135761
          v_mul_f32 v{T + 1}, v{T}, v{T}
          v_fmac_f32 v{T + 2}, 0xbdd2d3e8, v{T + 1}
          v_mul_f32 v{T + 1}, v{T + 2}, v{T}
          v_exp_f32 v{T + 1}, v{T + 1}
          s_nop 0
          v_add_f32 v{T + 1}, 1.0, v{T + 1}
          v_rcp_f32 v{T + 1}, v{T + 1}
          s_nop 0
          v_mul_f32 v{T}, v{T}, v{T + 1}
          v_cvt_pk_bf16_f32 v{T}, v{T}, v{T}
          ds_write_b16 v{NO}, v{T}
          s_waitcnt lgkmcnt(0)
          s_barrier''')
    g.stamp('m_gelu', (2,))
    ksplit_out(g, UB, PO, 's13')
    g.stamp('m_t4', (0, 2))
    write_stamps(g)
    g('s_endpgm')


def latem(g):
    L = Lds(MLP_LDS)
    g.vm = []
    g('L_late:')
    g(f's_lshl_b32 s4, s3, 6\nv_add_u32 v{TID}, s4, v0')
    nvoff(g, 8, 12288)
    g(f'''s_and_b32 s15, s14, 1
          s_lshr_b32 s6, s14, 1
          s_lshl_b32 s6, s6, 7
          s_mul_i32 s13, s15, {512 * 12288}
          s_add_u32 s13, s13, s6
          s_add_u32 s13, s13, 4096''')
    g.bits(T + 6, TID, [(3, 6, 64), (0, 2, 16), (2, 1, 8)], T)
    srd(g, S_B, 36, 4096)
    g('s_barrier')
    g.vmop(f'buffer_load_dwordx2 {vr(12, 2)}, v{T + 6}, {S_B}, 0 offen', 'in')
    nload(g, UA, 38, 1024 * 12288, 12288, 's13', 8, (0,), tag='m')
    common_addr(g, L, False)
    g(f's_lshl_b32 s12, s15, 15\ns_lshl_b32 s5, s6, 1\ns_add_u32 s12, s12, s5\ns_add_u32 s12, s12, {MODL}')
    g.vmwait('in')
    silu_image(g, L, 12)
    g(f's_lshl_b32 s4, s15, {10 if P["NAT"] else 7}\nv_add_u32 v9, s4, v{NB}')
    tagmask(g, 10)
    g('s_waitcnt lgkmcnt(0)\ns_barrier')
    g.vmwait(('m', 0))
    transpose(g, UA)
    nsplit(g, UA, L.ACTS, 9)
    tag(g, [T], 10)
    publish32(g, L, 's12', 16384, False)
    g.stamp('l_pub', (0, 1, 2))
    write_stamps(g)
    g('s_endpgm')


def attention(g, mode='main', arg=None):
    KO, VO, QO, VSC, VMAX, OO = 1, 2, 3, 4, 5, 6
    Q0, SP, TMP, T2 = 8, 16, 40, 56
    LA, GA = T2 + 7, T2 + 6
    SLOT = lambda s: 64 + 32 * s
    AC = SLOT(0)
    U = lambda u: 's%d' % (4 + 2 * u)
    U2 = lambda u: 's%d' % (5 + 2 * u)
    S_R, S_CU, S_GA, S_T = 's47', 's68', 's96', 's69'
    S_B4, S_B5, S_O4, S_KV = 's46', 's100', 's101', 's101'
    MX, OBUF, OST = 0, W1L, 16384
    QL, QF = 1024, 3072
    S_ST = 's97'
    NN = (SPL - NMR) * 8
    NUG = P['NUG']
    n4 = min(NN, 1024 - 4 * WPR - 64 * NUG)
    n5 = 1024 - 4 * WPR - n4 - 64 * NUG
    RK = QF + 4
    assert 0 <= n5 <= NN
    base = [0, WPR, 2 * WPR, 3 * WPR, 4 * WPR, 4 * WPR + n4]
    VSLOT = [1, 2, 3, 1, 4, 5] if mode == 'main' else [NUG + u for u in range(NUG)]

    def entry():
        g.vm = []

        g('L_attn:')
        g(f'''s_sub_u32 {S_T}, s2, {NG}
              s_mul_hi_u32 {S_R}, {S_T}, {(1 << 32) // SPL + 1}
              s_mul_i32 {S_CU}, {S_R}, {SPL}
              s_sub_u32 {S_CU}, {S_T}, {S_CU}
              s_add_u32 {S_CU}, {S_CU}, {S_R if P["ROT"] else 0}
              s_sub_u32 {S_T}, {S_CU}, {SPL}
              s_cselect_b32 {S_CU}, {S_CU}, {S_T}
              s_mul_i32 {S_T}, s3, {SPL - NMR}
              s_add_u32 {S_T}, {S_T}, {S_CU}
              s_cmp_lt_u32 {S_CU}, {SPL - NMR}
              s_cselect_b32 {S_T}, {S_T}, 1023
              s_lshl_b32 s98, {S_CU}, 3
              s_add_u32 s98, s98, s3
              s_mul_i32 {S_GA}, {S_R}, {P["PH"]}''')
        for u in range(NU):
            g(f's_add_u32 {U(u)}, {S_GA}, {"s98" if u < (5 if n4 == NN else 4) else S_T}')
            if u:
                g(f's_add_u32 {U(u)}, {U(u)}, {base[u]}')
            g(f's_and_b32 {U(u)}, {U(u)}, 1023\ns_lshl_b32 {U(u)}, {U(u)}, 13\ns_add_u32 {U2(u)}, {U(u)}, 4096')
        g.bits(KO, 0, [(1, 1, 1024), (2, 2, 256), (0, 1, 64), (4, 2, 16)], 8)
        g(f'v_lshlrev_b32 v{VO}, 4, v0')
        g(f's_cmp_lt_u32 {S_T}, {n4}\ns_cselect_b32 {S_O4}, 0, 0x1000000\ns_cselect_b32 {S_B4}, 0, 0xff800000')
        g(f's_cmp_lt_u32 {S_T}, {n5}\ns_cselect_b32 s98, 0, 0x1000000\ns_cselect_b32 {S_B5}, 0, 0xff800000')
        g(f'v_add_u32 v{OO}, {S_O4}, v{KO}\nv_add_u32 v{OO + 1}, s98, v{KO}')
        g('s_waitcnt lgkmcnt(0)')
        g(f's_lshl_b32 {S_T}, {S_R}, 23')
        g(f's_add_u32 s56, s18, {S_T}\ns_addc_u32 s57, s19, 0\ns_mov_b32 s58, 0x800000\ns_mov_b32 s59, 0x20000')
        g(f's_add_u32 s60, s20, {S_T}\ns_addc_u32 s61, s21, 0\ns_mov_b32 s62, 0x800000\ns_mov_b32 s63, 0x20000')

    def load(n, pos):
        i = n & 7
        if n < 48:
            u = n >> 3
            vo = KO if u < 4 else OO + u - 4
            g.vmop(f'buffer_load_dwordx4 {vr(SLOT(u) + 4 * i, 4)}, v{vo}, {S_A}, {U2(u) if i >= 4 else U(u)} offen '
                   f'offset:{((i >> 1) & 1) * 2048 + (i & 1) * 128} nt', pos)
        elif n < 64:
            if n == 48:
                l1, l2 = g.label('L_xv'), g.label('L_xj')
                g(f's_lshl_b32 s98, s3, 14\ns_add_u32 m0, s98, {W1L}\ns_mov_b32 s95, 0x20000')
                g(f's_cmp_lt_u32 {S_CU}, {SPL - NMR}\ns_cbranch_scc1 {l1}')
                g(f's_lshl_b32 {S_T}, s3, 6\nv_add_u32 v{T2 + 1}, {S_T}, v0')
                nvoff(g, OO, 7168, T2 + 1, T2 + 2)
                g(f'v_mov_b32 v{OO + 1}, v{OO}')
                g(f's_mul_i32 {S_T}, {S_R}, {NMR}\ns_add_u32 {S_T}, {S_T}, {S_CU}\ns_sub_u32 {S_T}, {S_T}, {SPL - NMR}')
                g(f's_lshl_b32 {U(4)}, {S_T}, 7\ns_add_u32 {U(5)}, {U(4)}, {512 * 7168}\ns_mov_b32 {U2(4)}, {nstep() * 7168}')
                g(f's_mov_b32 s92, s28\ns_mov_b32 s93, s29\ns_mov_b32 s94, {1024 * 7168}')
                g(f's_branch {l2}\n{l1}:')
                g(f'v_sub_u32 v{T2 + 1}, v{VO}, v{KO}\nv_add_u32 v{OO}, v{OO}, v{T2 + 1}\nv_add_u32 v{OO + 1}, v{OO + 1}, v{T2 + 1}')
                g(f's_mov_b32 {U2(4)}, 1024\ns_mov_b32 s92, s60\ns_mov_b32 s93, s61\ns_mov_b32 s94, s62')
                g(l2 + ':')
            u = 4 + ((n - 48) >> 3)
            if n > 48:
                g('s_add_u32 m0, m0, 1024')
            g(f's_add_u32 {U(u)}, {U(u)}, {U2(4)}' if i else 's_nop 0')
            g.vmop(f'buffer_load_dwordx4 v{OO + u - 4}, s[92:95], {U(u)} offen nt lds', pos)
        else:
            u = (n - 64) >> 3
            g.vmop(f'buffer_load_dwordx4 {vr(SLOT(VSLOT[u]) + 4 * i, 4)}, v{VO}, {S_B}, {U2(u) if i >= 4 else U(u)} offen '
                   f'offset:{(i & 3) * 1024} nt', pos)

    def mailbox():
        g.bits(GA, 0, [(5, 1, MBA_ST), (0, 5, 8)], T2)
        g(f'''s_and_b32 {S_T}, {S_R}, 3
              s_lshl_b32 {S_T}, {S_T}, 3
              s_add_u32 {S_T}, {S_T}, s3
              s_mul_i32 {S_T}, {S_T}, {2 * MBA_ST}
              s_lshr_b32 {S_GA}, {S_R}, 2
              s_mul_i32 {S_GA}, {S_GA}, {SLOTS}
              s_add_u32 {S_GA}, {S_GA}, {S_CU}
              s_lshl_b32 {S_GA}, {S_GA}, 8
              s_add_u32 {S_GA}, {S_GA}, {S_T}
              s_add_u32 {S_GA}, {S_GA}, {MBA}''')

    def setup():
        srd(g, S_WS, 44, WS_SIZE)
        srd(g, S_DBG, 42, 256)
        mailbox()
        g.vmop(epoch_load(T2 + 2), 'ep')
        prefetch_code(g, 'L_attn_body', 2, 8, TMP, 'pf')
        if P['TLB']:
            skip = g.label('L_notlb')
            sh = P['TLB']
            g(f'v_lshlrev_b32 v8, {sh}, v0')
            g.setexec((1 << min(64, 1 << (23 - sh))) - 1 if sh > 17 else -1)
            g(f's_cmp_eq_u32 s3, 1\ns_cbranch_scc0 {skip}_a\nbuffer_load_dword v{TMP + 4}, v8, {S_A}, 0 offen nt\n{skip}_a:')
            g(f's_cmp_eq_u32 s3, 2\ns_cbranch_scc0 {skip}_b\nbuffer_load_dword v{TMP + 4}, v8, {S_B}, 0 offen nt\n{skip}_b:')
            for w, (ptr, size) in enumerate(((28, 7 << 20), (32, 7 << 20), (38, 12 << 20), (44, WS_SIZE))):
                l = f'{skip}_{w}'
                g(f's_cmp_eq_u32 s3, {3 + w}\ns_cbranch_scc0 {l}')
                g(f's_mov_b32 s92, s{ptr}\ns_mov_b32 s93, s{ptr + 1}\ns_mov_b32 s94, {size}\ns_mov_b32 s95, 0x20000')
                g(f'buffer_load_dword v{TMP + 4}, v8, s[92:95], 0 offen offset:2048 {"sc1" if ptr == 44 else "nt"}')
                if size > (8 << 20):
                    g(f's_mov_b32 {S_T}, {8 << 20}\nv_add_u32 v9, {S_T}, v8\nbuffer_load_dword v{TMP + 4}, v9, s[92:95], 0 offen nt')
                g(l + ':')
            g.setexec(-1)
        g(f's_and_b32 {S_KV}, {S_R}, 3\ns_lshl_b32 {S_KV}, {S_KV}, 2')
        g.bits(QO, 0, [(0, 3, 256), (3, 1, 64), (4, 2, 16)], 8)
        g.bits(LA, 0, [(0, 4, 64)], 8)
        g(f's_lshl_b32 {S_T}, s3, 3\nv_add_u32 v8, {S_T}, v{LA}\nv_mov_b32 v9, -1\nds_write_b32 v8, v9 offset:{MX + 4}')
        g(f'v_mov_b32 v{T2}, 0\nds_write_b32 v{T2}, v{T2} offset:{QF}\ns_mov_b32 {S_ST}, 0\ns_waitcnt lgkmcnt(0)\ns_barrier')
        g(f'v_mov_b32 v{VSC}, 0x3db504f3\nv_mov_b32 v{VMAX}, 0xff800000')
        g('L_attn_body:')

    def readback():
        g(f's_lshl_b32 {S_T}, s3, 14\ns_add_u32 {S_T}, {S_T}, {W1L}\nv_add_u32 v{T2}, {S_T}, v{VO}')
        for i in range(16):
            g(f'ds_read_b128 {vr(SLOT(4) + 4 * i, 4)}, v{T2} offset:{i * 1024}')

    def lds_units():
        l1, l2 = g.label('L_w1'), g.label('L_w1j')
        g(f's_cmp_ge_u32 {S_CU}, {SPL - NMR}\ns_cbranch_scc1 {l1}')
        g('s_waitcnt lgkmcnt(8)')
        pv(4)
        g('s_waitcnt lgkmcnt(0)')
        pv(5)
        g(f's_branch {l2}\n{l1}:')
        g('s_waitcnt lgkmcnt(8)')
        transpose(g, UC, T2)
        g('s_waitcnt lgkmcnt(0)')
        transpose(g, UC + 1, T2)
        g(l2 + ':')

    def qstep(final=False):
        skip = only_wave(g, P['QW'])
        l1, l3, top = g.label('L_q1'), g.label('L_q3'), g.label('L_qtop')
        if final:
            g(f's_mov_b32 {S_SPIN}, {SPIN}\n{top}:')
        g(f's_cmp_eq_u32 {S_ST}, 2\ns_cbranch_scc1 {skip}')
        if final:
            g(f's_waitcnt vmcnt(0)\ns_sub_u32 {S_SPIN}, {S_SPIN}, 1\ns_cbranch_scc1 {l3}')
        g(f's_cmp_eq_u32 {S_ST}, 0\ns_cbranch_scc1 {l1}')
        check(g, range(TMP, TMP + 16), T2, 0xffff)
        g(f's_cbranch_vccz {l3}')
        if final:
            g(f's_sleep {P["QSL"]}')
        g(l1 + ':')
        g(f's_lshl_b32 {S_T}, {S_R}, 12\ns_add_u32 {S_T}, {S_T}, {QB}\ns_mov_b32 {S_ST}, 1')
        for i in range(4):
            g(f'buffer_load_dwordx4 {vr(TMP + 4 * i, 4)}, v{VO}, {S_WS}, {S_T} offen offset:{1024 * i} sc1')
        g(f's_branch {top if final else skip}')
        g(l3 + ':')
        g(f'v_lshlrev_b32 v{T2}, 3, v0')
        for i in range(8):
            g(f'v_perm_b32 v{Q0 + i}, v{TMP + 2 * i + 1}, v{TMP + 2 * i}, {S_HI}')
        for i in range(4):
            g(f'ds_write_b64 v{T2}, {vr(Q0 + 2 * i, 2)} offset:{QL + 512 * i}')
        g(f'v_mov_b32 v{T2}, 0\nv_mov_b32 v{T2 + 1}, 1\ns_mov_b32 {S_ST}, 2\ns_waitcnt lgkmcnt(0)')
        g(f'ds_write_b32 v{T2}, v{T2 + 1} offset:{QF}')
        g(skip + ':')

    def qget():
        g.stamp('a_qwait')
        if P['NOQ']:
            return
        qstep(final=True)
        lp, ok = g.label('L_qf'), g.label('L_qfok')
        g(f'v_mov_b32 v{T2}, 0\ns_mov_b32 {S_SPIN}, {SPIN * 16}\n{lp}:')
        g(f'ds_read_b32 v{T2 + 1}, v{T2} offset:{QF}\ns_waitcnt lgkmcnt(0)')
        g(f'v_cmp_eq_u32 vcc, 0, v{T2 + 1}\ns_cbranch_vccz {ok}')
        g(f's_sleep 2\ns_sub_u32 {S_SPIN}, {S_SPIN}, 1\ns_cbranch_scc0 {lp}\n{ok}:')
        g(f'ds_read_b128 {vr(Q0, 4)}, v{QO} offset:{QL}\nds_read_b128 {vr(Q0 + 4, 4)}, v{QO} offset:{QL + 128}')
        g('s_waitcnt lgkmcnt(0)')
        g.stamp('a_qseen')

    def qk(u):
        for t in range(4):
            g(f'v_mfma_f32_16x16x32_bf16 {vr(TMP + 4 * t, 4)}, {vr(SLOT(u) + 8 * t, 4)}, {vr(Q0, 4)}, 0')
        for t in range(4):
            g(f'v_mfma_f32_16x16x32_bf16 {vr(TMP + 4 * t, 4)}, {vr(SLOT(u) + 8 * t + 4, 4)}, {vr(Q0 + 4, 4)}, {vr(TMP + 4 * t, 4)}')
        g.nop(5)
        for t in range(4):
            d = TMP + 4 * t
            a, b = T2 + 2 * (t & 1), T2 + 2 * (t & 1) + 1
            g(f'v_add_f32_dpp v{a}, v{d + 1}, v{d} row_ror:8 {DPP}\nv_add_f32_dpp v{b}, v{d + 3}, v{d + 2} row_ror:8 {DPP}')
            round2(g, a)
            if u >= 4:
                sb = S_B4 if u == 4 else S_B5
                g(f'v_fma_f32 v{a}, v{a}, v{VSC}, {sb}\nv_fma_f32 v{b}, v{b}, v{VSC}, {sb}')
            else:
                g(f'v_mul_f32 v{a}, v{a}, v{VSC}\nv_mul_f32 v{b}, v{b}, v{VSC}')
            g(f'v_max3_f32 v{VMAX}, v{VMAX}, v{a}, v{b}\nv_cvt_pk_bf16_f32 v{SP + 4 * u + t}, v{a}, v{b}')

    def red_g(r, t, op):
        for ins in ('v_permlane32_swap_b32', 'v_permlane16_swap_b32'):
            g(f'v_mov_b32 v{t}, v{r}')
            g.nop(2)
            g(f'{ins} v{r}, v{t}\n{op} v{r}, v{r}, v{t}')

    def softmax():
        red_g(VMAX, T2, 'v_max_f32')
        for i in range(0, 32, 2):
            g(f'v_mov_b64 {vr(AC + i, 2)}, 0')
        g(f'v_mov_b32 v{VSC}, 0x3fb8aa3b\nv_mov_b32 v{T2 + 4}, 0')
        g(f'v_cvt_pk_bf16_f32 v{VMAX}, v{VMAX}, v{VMAX}\nv_lshlrev_b32 v{VMAX}, 16, v{VMAX}')
        g(f'v_mul_f32 v{T2 + 5}, v{VMAX}, v{VSC}')

    def probs(u, last=NU - 1):
        for i in range(4 * u, 4 * u + 4):
            p = SP + i
            a, b = T2 + 2 * (i & 1), T2 + 2 * (i & 1) + 1
            unpack2(g, a, p)
            g(f'v_fma_f32 v{a}, v{a}, v{VSC}, -v{T2 + 5}\nv_fma_f32 v{b}, v{b}, v{VSC}, -v{T2 + 5}')
            g(f'v_exp_f32 v{a}, v{a}\nv_exp_f32 v{b}, v{b}')
            g(f'v_add_f32 v{T2 + 4}, v{T2 + 4}, v{a}\nv_add_f32 v{T2 + 4}, v{T2 + 4}, v{b}')
            g(f'v_cvt_pk_bf16_f32 v{p}, v{a}, v{b}')
        if u == last:
            red_g(T2 + 4, T2, 'v_add_f32')
            g(f's_lshl_b32 {S_T}, s3, 3\nv_add_u32 v{T2}, {S_T}, v{LA}\nv_mov_b32 v{T2 + 2}, v{VMAX}\nv_min_u32 v{T2 + 3}, -2, v{T2 + 4}')
            g(f'ds_write_b64 v{T2}, {vr(T2 + 2, 2)} offset:{MX}')
            if mode == 'main':
                g.stamp('a_probs')

    def pv(u):
        s = SLOT(VSLOT[u])
        for w in range(4):
            t = TMP + 8 * (w & 1)
            for p in range(4):
                g(f'v_perm_b32 v{t + p}, v{s + 8 * p + 4 + w}, v{s + 8 * p + w}, {S_LO}')
            for p in range(4):
                g(f'v_perm_b32 v{t + 4 + p}, v{s + 8 * p + 4 + w}, v{s + 8 * p + w}, {S_HI}')
            g(f'v_mfma_f32_16x16x32_bf16 {vr(AC + 8 * w, 4)}, {vr(t, 4)}, {vr(SP + 4 * u, 4)}, {vr(AC + 8 * w, 4)}')
            g('s_nop 0')
            g(f'v_mfma_f32_16x16x32_bf16 {vr(AC + 8 * w + 4, 4)}, {vr(t + 4, 4)}, {vr(SP + 4 * u, 4)}, {vr(AC + 8 * w + 4, 4)}')

    def gather_ml():
        lp, ok = g.label('L_ml'), g.label('L_mlok')
        g(f's_mov_b32 {S_SPIN}, {SPIN * 16}\n{lp}:')
        for i in range(4):
            g(f'ds_read_b128 {vr(TMP + 4 * i, 4)}, v{LA} offset:{MX + 16 * i}')
        g('s_waitcnt lgkmcnt(0)')
        g(f'v_max_u32 v{T2}, v{TMP + 1}, v{TMP + 3}')
        for i in range(5, 16, 4):
            g(f'v_max3_u32 v{T2}, v{T2}, v{TMP + i}, v{TMP + i + 2}')
        g(f'v_cmp_eq_u32 vcc, -1, v{T2}\ns_cbranch_vccz {ok}')
        g(f's_sleep 2\ns_sub_u32 {S_SPIN}, {S_SPIN}, 1\ns_cbranch_scc0 {lp}\n{ok}:')
        g(f'v_max_f32 v{T2 + 2}, v{TMP}, v{TMP + 2}')
        for i in range(4, 16, 4):
            g(f'v_max3_f32 v{T2 + 2}, v{T2 + 2}, v{TMP + i}, v{TMP + i + 2}')

    def stats():
        skip = only_wave(g, P['SW'])
        gather_ml()
        g(f'v_mov_b32 v{T2 + 3}, 0')
        for i in range(0, 16, 2):
            g(f'v_sub_f32 v{TMP + i}, v{TMP + i}, v{T2 + 2}\nv_mul_f32 v{TMP + i}, 0x3fb8aa3b, v{TMP + i}')
        for i in range(0, 16, 2):
            g(f'v_exp_f32 v{TMP + i}, v{TMP + i}')
        g(f's_lshl_b32 {S_T}, {S_R}, 11\ns_lshl_b32 s98, {S_CU}, 3\ns_add_u32 {S_T}, {S_T}, s98\ns_add_u32 {S_T}, {S_T}, {STATS}')
        for i in range(0, 16, 2):
            g(f'v_fmac_f32 v{T2 + 3}, v{TMP + i}, v{TMP + i + 1}')
        g(f'v_lshlrev_b32 v{T2}, 8, v0')
        tagmask(g, T2 + 1)
        tag(g, [T2 + 2, T2 + 3], T2 + 1)
        g.setexec(0xff)
        g(f'buffer_store_dwordx2 {vr(T2 + 2, 2)}, v{T2}, {S_WS}, {S_T} offen sc1')
        g.setexec(-1)
        g(skip + ':')

    def factor():
        gather_ml()
        g(f'v_sub_f32 v{FS}, v{VMAX}, v{T2 + 2}\nv_mul_f32 v{FS}, 0x3fb8aa3b, v{FS}\nv_exp_f32 v{FS}, v{FS}')
        tagmask(g, FS + 1)

    FS = Q0 + 2
    WA, RA = KO, QO

    def epi_addr():
        g(f's_mul_i32 {S_T}, s3, {OST}\ns_add_u32 {S_T}, {S_T}, {OBUF}')
        g.bits(WA, 0, [(4, 2, 128), (0, 4, 16)], T2, S_T)
        g(f's_lshl_b32 {S_T}, s3, 4\ns_add_u32 {S_T}, {S_T}, {OBUF}')
        g.bits(RA, 0, [(1, 3, 528), (4, 2, 128), (0, 1, 8)], T2, S_T)
        g(f'v_add_u32 v{VSC}, {4 * OST}, v{RA}')

    def epilogue():
        g.setexec(rep16(0xff))
        for j in range(8):
            for h in (0, 2):
                g(f'v_pk_mul_f32 {vr(AC + 4 * j + h, 2)}, {vr(AC + 4 * j + h, 2)}, {vr(FS, 2)} op_sel_hi:[1,0]')
            g(f'ds_write_b128 v{WA}, {vr(AC + 4 * j, 4)} offset:{528 * j}')
        g.setexec(-1)
        g('s_waitcnt lgkmcnt(0)\ns_barrier')
        for w in range(8):
            g(f'ds_read_b64 {vr(TMP + 2 * w, 2)}, v{RA if w < 4 else VSC} offset:{OST * (w & 3)}')
        g('s_waitcnt lgkmcnt(4)')
        pk4(g, 'v_pk_add_f32', TMP, TMP, TMP + 4)
        g('s_waitcnt lgkmcnt(0)')
        pk4(g, 'v_pk_add_f32', TMP + 8, TMP + 8, TMP + 12)
        pk4(g, 'v_pk_add_f32', TMP, TMP, TMP + 8)
        g(f'v_pk_add_f32 {vr(TMP, 2)}, {vr(TMP, 2)}, {vr(TMP + 2, 2)}')
        tag(g, [TMP, TMP + 1], FS + 1)
        g(f'buffer_store_dwordx2 {vr(TMP, 2)}, v{GA}, {S_WS}, {S_GA} offen sc1')

    GK, GV, S_GU = 12, 13, 's100'
    if mode == 'g_addr':
        g(f'''s_lshr_b32 {S_R}, s14, 3
              s_and_b32 {S_CU}, s14, 7
              s_lshl_b32 {S_GU}, {S_CU}, 3
              s_add_u32 {S_GU}, {S_GU}, s3
              s_mul_i32 {S_T}, {S_R}, {P["PH"]}
              s_add_u32 {S_GU}, {S_GU}, {S_T}
              s_add_u32 {S_CU}, {S_CU}, {SPL}''')
        g.bits(GK, 0, [(1, 1, 1024), (2, 2, 256), (0, 1, 64), (4, 2, 16)], GV)
        g(f'v_lshlrev_b32 v{GV}, 4, v0')
        return
    if mode == 'g_issue':
        for n in arg:
            i, isk, u = n & 7, n < 8 * NUG, (n >> 3) % NUG
            if i == 0:
                p = 18 if isk else 20
                g(f's_lshl_b32 {S_T}, {S_R}, 23\ns_add_u32 s56, s{p}, {S_T}\ns_addc_u32 s57, s{p + 1}, 0\ns_mov_b32 s58, 0x800000')
                g(f's_add_u32 s101, {S_GU}, {1024 - 64 * (NUG - u)}\ns_and_b32 s101, s101, 1023\ns_lshl_b32 s101, s101, 13\ns_add_u32 {S_T}, s101, 4096')
            off = ((i >> 1) & 1) * 2048 + (i & 1) * 128 if isk else (i & 3) * 1024
            g(f'buffer_load_dwordx4 {vr(SLOT(0) + 4 * n, 4)}, v{GK if isk else GV}, {S_A}, {S_T if i >= 4 else "s101"} offen offset:{off} nt')
        return
    gq = '\n'.join(f'buffer_load_dwordx4 {vr(Q0 + 4 * i, 4)}, v{LA}, {S_WS}, 0 offen offset:{(i >> 1) * 256 + (i & 1) * 16} sc1' for i in range(4))

    def gq_addr():
        g(f's_lshl_b32 {S_T}, {S_R}, 12\ns_add_u32 {S_T}, {S_T}, {QB}')
        g.bits(LA, 0, [(0, 3, 512), (3, 1, 128), (4, 2, 32)], GA, S_T)
    if mode == 'g_q':
        gq_addr()
        g.vmop(gq, 'gq')
        return
    if mode == 'g_compute':
        g.vmwait('gq')
        poll(g, gq, range(Q0, Q0 + 16), T2, 8, preloaded=True, mask=0xffff)
        for i in range(8):
            g(f'v_perm_b32 v{Q0 + i}, v{Q0 + 2 * i + 1}, v{Q0 + 2 * i}, {S_HI}')
        mailbox()
        g.bits(LA, 0, [(0, 4, 64)], T2)
        g(f'v_mov_b32 v{VSC}, 0x3db504f3\nv_mov_b32 v{VMAX}, 0xff800000')
        for u in range(NUG):
            qk(u)
        softmax()
        for u in range(NUG):
            probs(u, NUG - 1)
        epi_addr()
        for u in range(NUG):
            pv(u)
        g('s_waitcnt lgkmcnt(0)\ns_barrier')
        stats()
        factor()
        g('s_nop 0')
        epilogue()
        g('s_barrier')
        return

    entry()
    GS = P['GS']
    order = list(range(96))
    if P['ILV']:
        order = list(range(32, 48))
        for i in range(16):
            order += [2 * i, 2 * i + 1, 48 + i]
        order += list(range(64, 96))
    last = lambda ids: max(order.index(i) for i in ids)
    depth = lambda n: P['DK1'] if n < P['NK1'] else (P['DK2'] if n < 48 else (P['DX'] if n < 64 else P['DV']))
    qsteps = list(range(P['QP0'] - 1, P['QG'] - 1, P['QPS']))
    st = dict(landed=-1, issued=-1, done=0)

    def land(n):
        if n > st['landed']:
            g.vmwait(n)
            st['landed'] = n

    def hint_flag():
        skip = only_wave(g, P['SW'])
        arrived(g, Q0 + 1, S_KV, C_A, 2 * SPL)
        g(skip + ':')
        st['hint'] = True

    W = [('q', -1, qget)]
    W += [('qk%d' % u, last(range(8 * u, 8 * u + 8)), lambda u=u: qk(u)) for u in ([0, 1, 4, 5, 2, 3] if P['ILV'] else range(NU))]
    W += [('sm', -1, softmax)]
    W += [('pr%d' % u, -1, lambda u=u: probs(u)) for u in range(NU)]
    W += [('st', -1, stats), ('rb', 63, lambda: (readback(), epi_addr(), lds_units()))]
    for u in range(4):
        if u == 3:
            W += [('fs', -1, factor)]
        W += [('pv%d' % u, 64 + 8 * u + 7, lambda u=u: ((g.stamp('a_landed') if u == 3 else None), pv(u)))]
    names = [w[0] for w in W]

    def work(budget, need=None):
        while st['done'] < len(W):
            forced = need is not None and st['done'] <= names.index(need)
            name, ld, act = W[st['done']]
            if not forced and (budget <= 0 or st['landed'] < ld or st['issued'] < P['QG'] - 1):
                return
            assert ld <= st['issued']
            land(ld)
            act()
            st['done'] += 1
            budget -= 1

    for n in range(0, 96, GS):
        d = depth(n)
        if n + GS - 1 >= d:
            land(n + GS - 1 - d)
        if n >= 64 and n % 8 == 0:
            work(0, ['qk1', 'qk2', 'qk3', 'pv0'][(n - 64) >> 3])
        for i in range(GS):
            load(order[n + i], n + i)
        m = n + GS - 1
        if n == 0:
            setup()
        st['issued'] = m
        if m == P['STPOS']:
            g.stamp('a_pos')
        if m >= 12 and not st.get('ep'):
            st['ep'] = True
            g.vmwait('ep')
            epoch_tag(g, T2 + 2)
        if m in qsteps:
            if m != qsteps[0]:
                land(m - P['QPS'] + 1)
            qstep()
        if m == P['HPOS']:
            work(0, 'st')
            skip = only_wave(g, P['SW'])
            arrive(g, Q0 + 1, S_KV, C_A)
            g(skip + ':')
        if m == P['RPOS']:
            skip = only_wave(g, P['SW'])
            g(f's_cmp_ge_u32 {S_CU}, {SPL - NMR}\ns_cbranch_scc1 {skip}_m')
            arrive(g, Q0 + 4, 0, C_R)
            g(f's_branch {skip}\n{skip}_m:')
            g(fread(Q0 + 4, S_KV, C_A))
            g(skip + ':')
        if st['landed'] > P['HPOS'] and not st.get('hint'):
            hint_flag()
        work(GS)
    assert (P['HPOS'] + 1) % GS == 0 and (P['RPOS'] + 1) % GS == 0 and P['QP0'] % GS == 0 and P['QPS'] % GS == 0
    if not st.get('hint'):
        work(0, 'pv2')
        land(P['HPOS'] + 1)
        hint_flag()
    work(0, 'fs')
    land(95)
    skip = only_wave(g, P['SW'])
    g(f'v_mov_b32 v{Q0 + 5}, 0\ns_mov_b64 exec, 1\nds_write_b32 v{Q0 + 5}, v{Q0 + 4} offset:{RK}\ns_mov_b64 exec, -1')
    g(skip + ':')
    work(0, 'pv3')

    epilogue()
    g.stamp('a_pub', (0, 1, 2))
    g(f's_mul_i32 s14, {S_R}, {NMR}\ns_add_u32 s14, s14, {S_CU}\ns_sub_u32 s14, s14, {SPL - NMR}')
    g(f'v_mov_b32 v8, 0\nds_read_b32 v8, v8 offset:{RK}\ns_waitcnt lgkmcnt(0)\nv_readfirstlane_b32 s15, v8')
    g(f's_cmp_ge_u32 {S_CU}, {SPL - NMR}\ns_cbranch_scc1 L_mlp')
    g('s_mov_b32 s14, s15\ns_cmp_lt_u32 s14, 128\ns_cbranch_scc1 L_late')
    write_stamps(g)
    g('s_endpgm')


def build(stamps=False):
    g = G(stamps)
    ref = open(REF).read()
    g.L.append(ref[:ref.index('; Override launch')].rstrip())
    g.L.append('; @launch grid=(%d,1,1) block=(512,1,1) lds=%d' % (NWG, LDS_TOTAL))
    g.L.append('.amdgcn_target "amdgcn-amd-amdhsa--gfx950"\n.text\n.globl %s_kernel\n.p2align 8\n.type %s_kernel,@function' % (NAME, NAME))
    g.L.append('%s_kernel:' % NAME)
    g.stamp('start', (0, 1, 2))
    g(f's_cmp_ge_u32 s2, {NWG}\ns_cbranch_scc1 L_exit')
    g(f'''s_load_dwordx16 s[16:31], s[0:1], 0
          s_load_dwordx8 s[32:39], s[0:1], 64
          s_load_dwordx4 s[40:43], s[0:1], 96
          s_load_dwordx2 s[44:45], s[0:1], 112
          v_lshrrev_b32 v1, 6, v0
          v_and_b32 v0, 63, v0
          v_readfirstlane_b32 s3, v1
          s_mov_b32 {S_LO}, 0x05040100
          s_mov_b32 {S_HI}, 0x07060302
          s_mov_b32 {S_MASK}, 0xffff0000''')
    g(f's_cmp_lt_u32 s2, {NG}\ns_cbranch_scc1 L_proj')
    n0 = g.nst
    attention(g)
    n1 = g.nst
    armed = getattr(g, 'padarmed', False)
    latem(g)
    g.padarmed = armed
    g.nst = n1 + (1 if g.stamps else 0)
    mlp(g)
    g.nst = n0
    g.padarmed = bool(PADAT) and PADAT[0] == 'start'
    proj(g)
    g('L_exit:\ns_endpgm')
    g('.fill 2048, 4, 0xbf800000')
    g.L.append('''.section .rodata,"a"
.p2align 6
.amdhsa_kernel %s_kernel
  .amdhsa_next_free_vgpr 256
  .amdhsa_next_free_sgpr 102
  .amdhsa_accum_offset 256
  .amdhsa_group_segment_fixed_size 0
  .amdhsa_kernarg_size 120
  .amdhsa_user_sgpr_count 2
  .amdhsa_user_sgpr_kernarg_segment_ptr 1
  .amdhsa_system_sgpr_workgroup_id_x 1
.end_amdhsa_kernel''' % NAME)
    return '\n'.join(g.L) + '\n'


if __name__ == '__main__':
    out = sys.argv[1]
    for a in sys.argv[2:]:
        if a.startswith('PADAT='):
            PADAT.append(a[6:])
        elif '=' in a:
            k, v = a.split('=')
            assert k in P, k
            P[k] = int(v)
    open(out, 'w').write(build(stamps='--stamps' in sys.argv))
```

```python
import sys
NAME = 'adaLN_cond__gqa_block_cached__mixer_channel_mlp__decode'
REF = 'cdna_kernels/%s.s.ref' % NAME

NG = 64
SPL = 24
NMR = 7
NA = 8 * SPL
NWG = NG + NA
WPR = SPL * 8
NU = 6

QB, STATS, X1, MODP, MODL = 0x8000, 0x10000, 0x60000, 0x20000, 0x30000
MBA, MBB, MBC = 0x100000, 0x200000, 0x300000
SLOTS = 32
MBA_ST = 2 * SLOTS * 256
WS_SIZE = 0x400000
SPIN = 1 << 18
C_A, C_R = 0, 64
TMASK = 0xff

P = dict(MSL=4, LSL=8, QSL=8, ASL=2, GS=1, DK1=8, NK1=28, DK2=8, DV=12, QP0=40, QPS=8, SLEEP=0, PH=64, QG=62, DX=8, TLB=0, PRE=0, WSOFF=0, LGATE=-1, W2TH=1, NAT=1, BW=2, REP=1, NOQ=0, QW=7, SW=6, GE=0, NUG=0, RPOS=94, ILV=0, ROT=1, MW=4, HPOS=76, ST=0, DBGST=-1, PADTO=0, PADWG=-1, STPOS=-1)

S_WS, S_DBG, S_A, S_B = 's[48:51]', 's[52:55]', 's[56:59]', 's[60:63]'
S_LO, S_HI, S_MASK, S_SPIN = 's64', 's65', 's66', 's67'
S_TAG, S_EPO, S_T16 = 's26', 's27', 's1'
DPP = 'row_mask:0xf bank_mask:0xf'


def vr(a, n):
    return 'v[%d:%d]' % (a, a + n - 1)


PADAT = []


class G:
    def __init__(self, stamps=False):
        self.vm = []
        self.L = []
        self.stamps = stamps
        self.nlabel = 0
        self.nst = 0

    def __call__(self, s):
        for line in s.strip('\n').split('\n'):
            line = line.strip()
            if line:
                self.L.append(line if line.endswith(':') else '    ' + line)

    def label(self, p='L'):
        self.nlabel += 1
        return '%s_%d' % (p, self.nlabel)

    def stamp(self, name, sets=(0,)):
        if PADAT and name == PADAT[0]:
            self('s_memrealtime s[90:91]')
            self.padarmed = True
        if self.stamps and P['ST'] in sets:
            k = self.nst
            self.nst += 1
            assert k < 13 and (k < 11 or name[0] in 'gr'), name
            self('s_memrealtime s[%d:%d] ; stamp %d %s' % (70 + 2 * k, 71 + 2 * k, k, name))

    def vmop(self, text, tag):
        for line in text.strip().split('\n'):
            self(line)
            self.vm.append(tag)

    def vmwait(self, *tags):
        idx = [i for i, t in enumerate(self.vm) if t in tags]
        if not idx:
            return
        n = len(self.vm) - 1 - idx[-1]
        assert n <= 63
        self('s_waitcnt vmcnt(%d)' % n)
        self.vm = self.vm[idx[-1] + 1:]

    def nop(self, n):
        while n > 0:
            k = min(n, 16)
            self('s_nop %d' % (k - 1))
            n -= k

    def bits(self, dst, src, fields, tmp, add=None):
        first = True
        for (lo, n, mul) in fields:
            t = dst if first else tmp
            if lo == 0:
                self(f'v_and_b32 v{t}, {(1 << n) - 1}, v{src}')
            else:
                self(f'v_bfe_u32 v{t}, v{src}, {lo}, {n}')
            pw = mul & (mul - 1) == 0
            sh = mul.bit_length() - 1
            if first:
                if mul != 1:
                    self(f'v_lshlrev_b32 v{dst}, {sh}, v{dst}' if pw else f'v_mul_u32_u24 v{dst}, {mul}, v{dst}')
            elif mul == 1:
                self(f'v_add_u32 v{dst}, v{dst}, v{tmp}')
            elif pw:
                self(f'v_lshl_add_u32 v{dst}, v{tmp}, {sh}, v{dst}')
            else:
                self(f'v_mul_u32_u24 v{tmp}, {mul}, v{tmp}\nv_add_u32 v{dst}, v{dst}, v{tmp}')
            first = False
        if add not in (None, 0):
            self(f'v_add_u32 v{dst}, {add}, v{dst}')

    def setexec(self, m):
        if m == -1:
            self('s_mov_b64 exec, -1')
        elif m < (1 << 31):
            self('s_mov_b64 exec, 0x%x' % m)
        else:
            self('s_mov_b32 exec_lo, 0x%x\ns_mov_b32 exec_hi, 0x%x' % (m & 0xffffffff, m >> 32))


def rep16(m):
    return m * 0x0001000100010001


def check(g, regs, tmp, mask=TMASK):
    regs = list(regs)
    g(f'v_bitop3_b32 v{tmp}, v{regs[0]}, v{regs[1]}, {S_EPO} bitop3:0x7e')
    for r in regs[2:]:
        g(f'v_bitop3_b32 v{tmp}, v{tmp}, v{r}, {S_EPO} bitop3:0xf6')
    if mask == 0xffff:
        g(f'v_cmp_ne_u16 vcc, 0, v{tmp}')
        return
    if mask != -1:
        g(f'v_and_b32 v{tmp}, {mask}, v{tmp}')
    g(f'v_cmp_ne_u32 vcc, 0, v{tmp}')


def tagmask(g, vm):
    g(f'v_mov_b32 v{vm}, 0x{0xffffffff ^ TMASK:x}')


def tag(g, regs, vm):
    for r in regs:
        g(f'v_and_or_b32 v{r}, v{r}, v{vm}, {S_TAG}')


def epoch_load(reg):
    return f'buffer_load_dword v{reg}, off, {S_WS}, 0 sc1'


def epoch_tag(g, reg):
    g(f'''v_readfirstlane_b32 {S_EPO}, v{reg}
          s_mul_i32 {S_TAG}, {S_EPO}, 0x9e3779b1
          s_lshr_b32 {S_TAG}, {S_TAG}, 12
          s_or_b32 {S_TAG}, {S_TAG}, 1
          s_add_u32 {S_EPO}, {S_EPO}, {S_TAG}
          s_and_b32 {S_TAG}, {S_EPO}, {TMASK}
          s_and_b32 {S_T16}, {S_EPO}, 0xffff''')


def poll(g, loads, regs, tmp, sleep=0, preloaded=False, mask=TMASK):
    lp, done, chk = g.label('L_poll'), g.label('L_ok'), g.label('L_chk')
    g(f's_mov_b32 {S_SPIN}, {SPIN}')
    if preloaded:
        g(f's_branch {chk}')
    g(lp + ':')
    g(loads)
    g('s_waitcnt vmcnt(0)')
    if preloaded:
        g(chk + ':')
    check(g, regs, tmp, mask)
    g(f's_cbranch_vccz {done}')
    if sleep:
        g(f's_sleep {sleep}')
    g(f's_sub_u32 {S_SPIN}, {S_SPIN}, 1\ns_cbranch_scc0 {lp}')
    g(done + ':')


def fread(reg, soff, off):
    return f'buffer_load_dword v{reg}, off, {S_DBG}, {soff} offset:{off + 128} sc1'


def fpoll(g, reg, soff, off, sleep, preloaded=False):
    lp, done, chk = g.label('L_fpoll'), g.label('L_fok'), g.label('L_fchk')
    g(f's_mov_b32 {S_SPIN}, {SPIN}')
    if preloaded:
        g(f's_branch {chk}')
    g(lp + ':')
    g(fread(reg, soff, off) + '\ns_waitcnt vmcnt(0)')
    if preloaded:
        g(chk + ':')
    g(f'v_cmp_eq_u32 vcc, 0, v{reg}\ns_cbranch_vccz {done}')
    if sleep:
        g(f's_sleep {sleep}')
    g(f's_sub_u32 {S_SPIN}, {S_SPIN}, 1\ns_cbranch_scc0 {lp}')
    g(done + ':')


def fwait(g, reg, soff, off, sleep):
    skip = only_wave(g, 0)
    fpoll(g, reg, soff, off, sleep)
    g(skip + ':')
    g('s_barrier')


def arrive(g, reg, soff, off):
    g(f'v_mov_b32 v{reg}, 1\ns_mov_b64 exec, 1\nbuffer_atomic_add v{reg}, off, {S_DBG}, {soff} offset:{off} sc0 sc1\ns_mov_b64 exec, -1')


def arrived(g, reg, soff, off, n):
    skip = g.label('L_notlast')
    g(f'v_readfirstlane_b32 s99, v{reg}\ns_cmp_lg_u32 s99, {n - 1}\ns_cbranch_scc1 {skip}')
    g(f's_mov_b64 exec, 1\nbuffer_store_dword v{reg}, off, {S_DBG}, {soff} offset:{off + 128} sc1\ns_mov_b64 exec, -1')
    g(skip + ':')


def srd(g, s, lo, size):
    base = int(s[2:s.index(':')])
    if lo == 44 and P['WSOFF']:
        g(f's_add_u32 s{base}, s44, {P["WSOFF"] << 20}\ns_addc_u32 s{base + 1}, s45, 0\ns_mov_b32 s{base + 2}, 0x{size:x}\ns_mov_b32 s{base + 3}, 0x20000')
        return
    g(f's_mov_b32 s{base}, s{lo}\ns_mov_b32 s{base + 1}, s{lo + 1}\ns_mov_b32 s{base + 2}, 0x{size:x}\ns_mov_b32 s{base + 3}, 0x20000')


def only_wave(g, w):
    skip = g.label('L_skip')
    g(f's_cmp_lg_u32 s3, {w}\ns_cbranch_scc1 {skip}')
    return skip


def write_stamps(g):
    if PADAT and getattr(g, 'padarmed', False):
        l = g.label('L_padat')
        g(f'{l}:\ns_memrealtime s[4:5]\ns_waitcnt lgkmcnt(0)\ns_sub_u32 s4, s4, s90\ns_sleep 4\ns_cmp_lt_u32 s4, 6000\ns_cbranch_scc1 {l}')
    if not g.stamps:
        return
    g('s_waitcnt lgkmcnt(0)')
    skip = only_wave(g, 0)
    g('s_mov_b64 exec, 1')
    if P['DBGST'] >= 0:
        g(f's_cmp_lg_u32 s2, {P["DBGST"]}\ns_cbranch_scc1 {skip}')
        for k in range(1, min(g.nst, 12)):
            g(f's_sub_u32 s4, s{70 + 2 * k}, s70\nv_mov_b32 v2, s4')
            g(f'buffer_store_dword v2, off, {S_DBG}, 0 offset:{16 + 4 * k}')
        g(skip + ':')
        return
    g('s_lshl_b32 s4, s2, 8\ns_add_u32 s4, s44, s4\ns_addc_u32 s5, s45, 0')
    g('s_add_u32 s4, s4, %d\ns_addc_u32 s5, s5, 0' % (255 << 20))
    g('v_mov_b32 v1, 0')
    for k in range(g.nst):
        g(f'v_mov_b32 v2, s{70 + 2 * k}\nv_mov_b32 v3, s{71 + 2 * k}')
        g(f'global_store_dwordx2 v1, v[2:3], s[4:5] offset:{8 * k}')
        g('s_nop 1')
    g(skip + ':')


def prefetch_code(g, label, nkb8, vtmp, vdst, tag=None):
    pc = g.label('L_pc')
    g('s_getpc_b64 s[98:99]')
    if label:
        g(f'{pc}:\ns_add_u32 s98, s98, {label}-{pc}\ns_addc_u32 s99, s99, 0')
    g('s_and_b32 s98, s98, 0xffffff80')
    g(f's_lshl_b32 s97, s3, 10\nv_lshl_add_u32 v{vtmp}, v0, 4, s97')
    for i in range(nkb8):
        if i:
            g(f'v_add_u32 v{vtmp}, 8192, v{vtmp}')
        t = f'global_load_dwordx4 {vr(vdst, 4)}, v{vtmp}, s[98:99]'
        g.vmop(t, tag) if tag else g(t)


BLK = lambda i: 64 + 32 * i
UA, UB, UC = 0, 2, 4
ACC = 32
KW, NB, NW, NR, NO, KB, TID = 1, 2, 3, 4, 5, 6, 7
T = 24


class Lds:
    def __init__(self, base):
        self.ACTS, self.ACTH, self.RED = base, base + 4352, base + 8704
        self.OUTV = base + 17408
        self.PART = base + 17664
        self.STAT = base + 18688
        self.END = base + 19200


ABS = 2048 + 128


def nstep():
    return 1 if P['NAT'] else 64


def nvoff(g, dst, rs, tid=TID, tmp=T + 7):
    g.bits(dst, tid, [(3, 6, rs * 8 if P['NAT'] else rs), (0, 3, 16)], tmp)


def nload(g, unit, ptr, size, rs, s_col, voff, kbs=(0, 1), tag=None):
    srd(g, S_A, ptr, size)
    for kb in kbs:
        g(f's_add_u32 s4, {s_col}, {kb * 512 * rs}')
        for t in range(8):
            g.vmop(f'buffer_load_dwordx4 {vr(BLK(unit + kb) + 4 * t, 4)}, v{voff}, {S_A}, s4 offen nt', (tag, kb))
            if t < 7:
                g(f's_add_u32 s4, s4, {nstep() * rs}')


def kload(g, unit, ptr, size, s_idx, voff, rowf, tag):
    srd(g, S_A, ptr, size)
    g(f's_lshl_b32 s5, {s_idx}, 17')
    for kb in range(2):
        for t in range(8):
            g(f's_add_u32 s4, s5, {rowf(kb, t) * 2048}')
            g.vmop(f'buffer_load_dwordx4 {vr(BLK(unit + kb) + 4 * t, 4)}, v{voff}, {S_A}, s4 offen nt', (tag, kb))


def transpose(g, blk, T=T):
    b = BLK(blk)
    for p in range(4):
        a, c = b + 8 * p + p, b + 8 * p + 4 + p
        g(f'v_perm_b32 v{T}, v{c}, v{a}, {S_LO}\nv_perm_b32 v{c}, v{c}, v{a}, {S_HI}\nv_mov_b32 v{a}, v{T}')
    for p in range(4):
        for w in range(p + 1, 4):
            xa, xb = b + 8 * p + w, b + 8 * p + 4 + w
            ya, yb = b + 8 * w + p, b + 8 * w + 4 + p
            g(f'v_perm_b32 v{T}, v{xb}, v{xa}, {S_LO}\nv_perm_b32 v{T + 1}, v{xb}, v{xa}, {S_HI}')
            g(f'v_perm_b32 v{xa}, v{yb}, v{ya}, {S_LO}\nv_perm_b32 v{xb}, v{yb}, v{ya}, {S_HI}')
            g(f'v_mov_b32 v{ya}, v{T}\nv_mov_b32 v{yb}, v{T + 1}')


def mfmas(g, unit, b0, b1):
    for kb, bop in ((0, b0), (1, b1)):
        if kb == 1:
            g('s_waitcnt lgkmcnt(0)')
        for j in range(8):
            d = vr(ACC + 4 * j, 4)
            g(f'v_mfma_f32_16x16x32_bf16 {d}, {vr(BLK(unit + kb) + 4 * j, 4)}, {vr(bop, 4)}, {d if kb else 0}')


def common_addr(g, L, kperm):
    K0B = T + 6
    g(f's_lshl_b32 s4, s3, 6\nv_add_u32 v{TID}, s4, v0')
    g.bits(K0B, TID, [(3, 6, 64), (0, 2, 16), (2, 1, 8)], T)
    if P['NAT']:
        g.bits(KW, K0B, [(11, 1, ABS), (0, 11, 1)], T)
        g.bits(NB, TID, [(0, 1, ABS), (6, 3, 128), (4, 2, 32), (1, 1, 16)], T)
    else:
        g.bits(KW, K0B, [(11, 1, ABS), (4, 3, 256), (10, 1, 128), (1, 3, 16), (7, 3, 2)], T)
        g.bits(NB, TID, [(0, 1, ABS), (6, 3, 256), (4, 2, 32), (1, 1, 16)], T)
    g.bits(NW, TID, [(6, 3, 1088), (1, 1, 544), (0, 1, 256), (2, 2, 32), (4, 1, 16)], T, L.RED)
    g.bits(NR, TID, [(0, 2, 544), (2, 7, 4)], T, L.RED)
    if kperm:
        g.bits(NO, TID, [(8, 1, 128), (4, 1, 64), (5, 1, 32), (7, 1, 16), (2, 2, 4), (6, 1, 2)], T, L.OUTV)
    else:
        g.bits(NO, TID, [(8, 1, 128), (2, 3, 16), (5, 2, 4), (7, 1, 2)], T, L.OUTV)
    g.bits(KB, TID, [(0, 1, 128), (4, 2, 16)], T, L.OUTV)


def nsplit(g, unit, act, half=None):
    if half is None:
        g(f'ds_read_b128 {vr(T, 4)}, v{NB} offset:{act}\nds_read_b128 {vr(T + 4, 4)}, v{NB} offset:{act + (1024 if P["NAT"] else 128)}')
        g('s_waitcnt lgkmcnt(1)')
        mfmas(g, unit, T, T + 4)
    else:
        g(f'ds_read_b128 {vr(T, 4)}, v{half} offset:{act}\ns_waitcnt lgkmcnt(0)')
        for j in range(8):
            g(f'v_mfma_f32_16x16x32_bf16 {vr(ACC + 4 * j, 4)}, {vr(BLK(unit) + 4 * j, 4)}, {vr(T, 4)}, 0')
    for dd in range(1, 4):
        g.setexec(rep16(0xf << (4 * dd)))
        if dd != 2:
            g.nop(2)
        for i in range(4):
            g(f'v_mov_b64 {vr(ACC + 2 * i, 2)}, {vr(ACC + 8 * dd + 2 * i, 2)}')
    g.setexec(0xcccccccc33333333)
    g(f'ds_write_b128 v{NW}, {vr(ACC, 4)}\nds_write_b128 v{NW}, {vr(ACC + 4, 4)} offset:128')
    g.setexec(-1)
    g('s_waitcnt lgkmcnt(0)\ns_barrier')
    for k in range(4):
        g(f'ds_read_b32 v{T + k}, v{NR} offset:{k * 4 * 544}')
    g('s_waitcnt lgkmcnt(2)')
    g(f'v_add_f32 v{T}, v{T}, v{T + 1}')
    g('s_waitcnt lgkmcnt(0)')
    g(f'v_add_f32 v{T + 2}, v{T + 2}, v{T + 3}\nv_add_f32 v{T}, v{T}, v{T + 2}')
    g.nop(2)
    g(f'v_add_f32_dpp v{T}, v{T}, v{T} quad_perm:[1,0,3,2] {DPP}')
    g.nop(2)
    g(f'v_add_f32_dpp v{T}, v{T}, v{T} quad_perm:[2,3,0,1] {DPP}')


def actwrite(g, p, act):
    if P['NAT']:
        g(f'ds_write_b64 v{KW}, {vr(p, 2)} offset:{act}')
        return
    g(f'ds_write_b16 v{KW}, v{p} offset:{act}\nds_write_b16_d16_hi v{KW}, v{p} offset:{act + 16}')
    g(f'ds_write_b16 v{KW}, v{p + 1} offset:{act + 32}\nds_write_b16_d16_hi v{KW}, v{p + 1} offset:{act + 48}')


def unpack2(g, d, s):
    g(f'v_lshlrev_b32 v{d}, 16, v{s}\nv_and_b32 v{d + 1}, {S_MASK}, v{s}')


def unpack(g, d, s):
    unpack2(g, d, s)
    unpack2(g, d + 2, s + 1)


def pack(g, t, d):
    g(f'v_cvt_pk_bf16_f32 v{t}, v{d}, v{d + 1}\nv_cvt_pk_bf16_f32 v{t + 1}, v{d + 2}, v{d + 3}')


def round4(g, d, t):
    pack(g, t, d)
    unpack(g, d, t)


def round2(g, a):
    g(f'v_cvt_pk_bf16_f32 v{a + 1}, v{a}, v{a + 1}')
    unpack2(g, a, a + 1)


def pk4(g, op, d, a, b):
    g(f'{op} {vr(d, 2)}, {vr(a, 2)}, {vr(b, 2)}\n{op} {vr(d + 2, 2)}, {vr(a + 2, 2)}, {vr(b + 2, 2)}')


def layernorm(g, x, sw, sr, off, last_packed=False):
    a, b = T + 4, T + 5
    g(f'v_add_f32 v{a}, v{x}, v{x + 1}\nv_mul_f32 v{b}, v{x}, v{x}')
    g(f'v_add_f32 v{T}, v{x + 2}, v{x + 3}\nv_fmac_f32 v{b}, v{x + 1}, v{x + 1}')
    g(f'v_add_f32 v{a}, v{a}, v{T}\nv_fmac_f32 v{b}, v{x + 2}, v{x + 2}\nv_fmac_f32 v{b}, v{x + 3}, v{x + 3}')
    for i, ctl in enumerate(['row_ror:8 ' + DPP, 'row_ror:4 ' + DPP, 'row_ror:2 ' + DPP, 'row_ror:1 ' + DPP,
                             'row_bcast:15 row_mask:0xa bank_mask:0xf', 'row_bcast:31 row_mask:0xc bank_mask:0xf']):
        if i:
            g('s_nop 0')
        g(f'v_add_f32_dpp v{a}, v{a}, v{a} {ctl}')
        if i == 0:
            g('s_nop 0')
        g(f'v_add_f32_dpp v{b}, v{b}, v{b} {ctl}')
    g.setexec(1 << 63)
    g(f'ds_write_b64 v{sw}, {vr(a, 2)} offset:{off}')
    g.setexec(-1)
    g('s_waitcnt lgkmcnt(0)\ns_barrier')
    g(f'ds_read_b128 {vr(T, 4)}, v{sr} offset:{off}\nds_read_b128 {vr(T + 4, 4)}, v{sr} offset:{off + 16}')
    g('s_waitcnt lgkmcnt(0)')
    pk4(g, 'v_pk_add_f32', T, T, T + 4)
    g(f'v_pk_add_f32 {vr(a, 2)}, {vr(T, 2)}, {vr(T + 2, 2)}')
    g(f'v_mul_f32 v{a}, 0x3a800000, v{a}\nv_mul_f32 v{b}, 0x3a800000, v{b}')
    g(f'v_fma_f32 v{b}, -v{a}, v{a}, v{b}\nv_max_f32 v{b}, 0, v{b}')
    round2(g, a)
    g(f'v_add_f32 v{b}, 0x3727c5ac, v{b}')
    g(f'v_cvt_pk_bf16_f32 v{b}, v{b}, v{b}\nv_lshlrev_b32 v{b}, 16, v{b}')
    g(f'v_sqrt_f32 v{b}, v{b}')
    for i in range(4):
        g(f'v_sub_f32 v{x + i}, v{x + i}, v{a}')
    g(f'v_cvt_pk_bf16_f32 v{b}, v{b}, v{b}\nv_lshlrev_b32 v{b}, 16, v{b}')
    g(f'v_rcp_f32 v{b}, v{b}')
    round4(g, x, T + 6)
    for i in range(4):
        g(f'v_mul_f32 v{x + i}, v{x + i}, v{b}')
    if last_packed:
        pack(g, T + 6, x)
    else:
        round4(g, x, T + 6)


def ksplit_out(g, unit, po, mb):
    g(f'ds_read_b128 {vr(T, 4)}, v{KB}\nds_read_b128 {vr(T + 4, 4)}, v{KB} offset:64')
    g('s_waitcnt lgkmcnt(1)')
    mfmas(g, unit, T, T + 4)
    tagmask(g, T)
    for j in range(1, 8):
        g.setexec(rep16(3 << (2 * j)))
        g(f'v_mov_b64 {vr(ACC, 2)}, {vr(ACC + 4 * j, 2)}\nv_mov_b64 {vr(ACC + 2, 2)}, {vr(ACC + 4 * j + 2, 2)}')
    g.setexec(-1)
    tag(g, range(ACC, ACC + 4), T)
    g(f'buffer_store_dwordx4 {vr(ACC, 4)}, v{po}, {S_WS}, {mb} offen sc1')


def publish32(g, L, s_off, bstride, exact):
    g(f'v_subrev_u32 v{T + 1}, {L.OUTV}, v{NO}\nv_lshlrev_b32 v{T + 1}, 1, v{T + 1}\nds_write_b32 v{T + 1}, v{T} offset:{L.PART}')
    g('s_waitcnt lgkmcnt(0)\ns_barrier')
    skip = only_wave(g, 0)
    if exact:
        g(f'v_lshlrev_b32 v{T + 4}, 3, v0\nds_read_b64 {vr(T + 6, 2)}, v{T + 4} offset:{L.PART}')
        g.bits(T + 5, 0, [(5, 1, bstride), (0, 5, 16)], T + 4)
        g(f'v_mov_b32 v{T + 1}, {S_EPO}\nv_mov_b32 v{T + 3}, {S_EPO}\ns_waitcnt lgkmcnt(0)')
        g(f'v_mov_b32 v{T}, v{T + 6}\nv_mov_b32 v{T + 2}, v{T + 7}')
    else:
        g(f'v_lshlrev_b32 v{T + 4}, 4, v0\nds_read_b128 {vr(T, 4)}, v{T + 4} offset:{L.PART}')
        g.bits(T + 5, 0, [(4, 1, bstride), (0, 4, 16)], T + 6)
        g('s_waitcnt lgkmcnt(0)\ns_mov_b32 exec_hi, 0')
    g(f'buffer_store_dwordx4 {vr(T, 4)}, v{T + 5}, {S_WS}, {s_off} offen sc1')
    g.setexec(-1)
    g('s_nop 0')
    g(skip + ':')


def silu_image(g, L, src):
    unpack(g, ACC, src)
    for i in range(4):
        g(f'v_mul_f32 v{T + i}, 0xbfb8aa3b, v{ACC + i}')
    for i in range(4):
        g(f'v_exp_f32 v{T + i}, v{T + i}')
    for i in range(4):
        g(f'v_add_f32 v{T + i}, 1.0, v{T + i}')
    for i in range(4):
        g(f'v_rcp_f32 v{T + i}, v{T + i}')
    for i in range(4):
        g(f'v_mul_f32 v{T + i}, v{T + i}, v{ACC + i}')
    pack(g, T + 4, T)
    actwrite(g, T + 4, L.ACTS)


def proj(g):
    L = Lds(8448)
    Y, SB = 8, 12
    PO, RO, RL, OUTO = 8, 9, 10, 11
    WG, AO, AO3, OW = 12, 17, 18, 16
    WQO, WMO, SW, SR = 17, 18, 19, 23
    RX, RGA, RGB, RB2 = 20, 21, 22, 23
    JC, ODD = 's14', 's15'
    g.vm = []

    def reduce(mb, nprod, part):
        g(f's_mov_b32 s4, {MODL + part * 4096}\ns_mov_b32 s5, {MODL + part * 4096 + 32768}')
        if nprod < 64:
            g(f'v_mov_b32 v{T}, 0')
            skip = g.label('L_nored')
            g(f's_cmp_ge_u32 s3, {nprod // 8}\ns_cbranch_scc1 {skip}')
        l0, l1 = g.label('L_red0'), g.label('L_red1')
        ld = f'buffer_load_dwordx4 {vr(T, 4)}, v{RO}, {S_WS}, {mb} offen sc1'
        g(f's_cmp_eq_u32 s3, 0\ns_cbranch_scc1 {l0}')
        poll(g, ld, range(T, T + 4), T + 4)
        g(f's_branch {l1}\n{l0}:')
        poll(g, ld + f'\nbuffer_load_dwordx2 {vr(ACC + 18, 2)}, v{RGA}, {S_WS}, s4 offen sc1'
                f'\nbuffer_load_dwordx2 {vr(ACC + 20, 2)}, v{RGA}, {S_WS}, s5 offen sc1',
             list(range(T, T + 4)) + list(range(ACC + 18, ACC + 22)), T + 4)
        g(l1 + ':')
        g.stamp('red_polled%d' % nprod, (1,))
        g(f'v_permlane32_swap_b32 v{T}, v{T + 2}\nv_permlane32_swap_b32 v{T + 1}, v{T + 3}')
        g(f'v_add_f32 v{T}, v{T}, v{T + 2}\nv_add_f32 v{T + 1}, v{T + 1}, v{T + 3}')
        g.nop(2)
        g(f'v_permlane16_swap_b32 v{T}, v{T + 1}\nv_add_f32 v{T}, v{T}, v{T + 1}')
        g.nop(2)
        g(f'v_add_f32_dpp v{T}, v{T}, v{T} row_ror:8 {DPP}')
        if nprod < 64:
            g(skip + ':')
        g(f'ds_write_b32 v{RL}, v{T}')
        g('s_waitcnt lgkmcnt(0)\ns_barrier')
        skip = only_wave(g, 0)
        g(f'v_and_b32 v{T + 2}, 15, v0\nv_lshlrev_b32 v{T + 2}, 3, v{T + 2}')
        for w in range(8):
            g(f'ds_read_b64 {vr(ACC + 2 * w, 2)}, v{T + 2} offset:{L.PART + 128 * w}')
        g(f'v_pk_add_f32 {vr(ACC + 18, 2)}, {vr(ACC + 18, 2)}, {vr(ACC + 20, 2)}')
        round2(g, ACC + 18)
        return skip

    def reduce_sum():
        g('s_waitcnt lgkmcnt(4)')
        pk4(g, 'v_pk_add_f32', ACC, ACC, ACC + 4)
        g('s_waitcnt lgkmcnt(0)')
        pk4(g, 'v_pk_add_f32', ACC + 8, ACC + 8, ACC + 12)
        pk4(g, 'v_pk_add_f32', ACC, ACC, ACC + 8)
        g(f'v_pk_add_f32 {vr(T, 2)}, {vr(ACC, 2)}, {vr(ACC + 2, 2)}')
        round2(g, T)

    g('L_proj:')
    g(f's_and_b32 {JC}, s2, 7\ns_lshl_b32 {JC}, {JC}, 3\ns_lshr_b32 s4, s2, 3\ns_add_u32 {JC}, {JC}, s4')
    g(f's_lshl_b32 s4, s3, 6\nv_add_u32 v{TID}, s4, v0')
    g.bits(T + 6, TID, [(3, 6, 64), (0, 2, 16), (2, 1, 8)], T)
    nvoff(g, WMO, 12288)
    g(f'''s_and_b32 {ODD}, {JC}, 1
          s_lshr_b32 s6, {JC}, 1
          s_lshl_b32 s6, s6, 7
          s_mul_i32 s13, {ODD}, {512 * 12288}
          s_add_u32 s13, s13, s6
          s_lshl_b32 s7, {JC}, 7
          s_lshr_b32 s46, {JC}, 4
          s_lshl_b32 s46, s46, 2
          s_waitcnt lgkmcnt(0)''')
    srd(g, S_WS, 44, WS_SIZE)
    srd(g, S_DBG, 42, 256)
    g(f's_lshl_b32 s47, {ODD}, 15\ns_lshl_b32 s5, s6, 2\ns_add_u32 s47, s47, s5\ns_add_u32 s47, s47, {MODP}')
    g.vmop(epoch_load(RGB), 'in')
    srd(g, S_B, 36, 4096)
    g.vmop(f'buffer_load_dwordx2 {vr(SB, 2)}, v{T + 6}, {S_B}, 0 offen', 'in')
    srd(g, S_B, 16, 4096)
    g.vmop(f'buffer_load_dwordx2 {vr(SB + 2, 2)}, v{T + 6}, {S_B}, 0 offen', 'in')
    prefetch_code(g, None, 2, T, ACC + 4, 'in')
    nload(g, UA, 38, 1024 * 12288, 12288, 's13', WMO, (0,), tag='m1')
    common_addr(g, L, False)
    nvoff(g, WQO, 8192)
    g(f's_lshl_b32 s4, s3, 3\nv_mov_b32 v{SW}, s4\ns_and_b32 s4, s4, 32\nv_mov_b32 v{SR}, s4')
    g(f's_mul_i32 s8, {JC}, {MBA_ST}\ns_add_u32 s8, s8, {MBA}')
    g(f's_lshl_b32 s9, {JC}, 13\ns_add_u32 s10, s9, {MBC}\ns_add_u32 s9, s9, {MBB}')
    g(f's_lshl_b32 s11, {JC}, 7\ns_add_u32 s11, s11, {X1}')
    g.vmwait('in')
    epoch_tag(g, RGB)
    silu_image(g, L, SB)
    unpack(g, Y, SB + 2)
    layernorm(g, Y, SW, SR, L.STAT)
    nload(g, UB, 22, 1024 * 8192, 8192, 's7', WQO, (0,), tag='wq')
    g('s_waitcnt vmcnt(8)')
    transpose(g, UA)
    g(f's_lshl_b32 s4, {ODD}, {10 if P["NAT"] else 7}\nv_add_u32 v{T + 7}, s4, v{NB}')
    nsplit(g, UA, L.ACTS, T + 7)
    publish32(g, L, 's47', 16384, True)
    g.stamp('g_mod')
    nload(g, UB, 22, 1024 * 8192, 8192, 's7', WQO, (1,), tag='wq')
    MP = RGA
    g.bits(MP, TID, [(8, 1, 16384), (3, 5, 256), (0, 2, 64), (2, 1, 32)], T + 7, MODP)
    g('s_waitcnt vmcnt(8)')
    transpose(g, UB)
    g(f's_mov_b32 s4, 8192\ns_mov_b32 s5, 32768\ns_mov_b32 s12, {32768 + 8192}')
    mloads = '\n'.join(f'buffer_load_dwordx4 {vr(ACC + 4 * i, 4)}, v{MP}, {S_WS}, {("0", "s5", "s4", "s12")[i >> 1]} offen offset:{16 * (i & 1)} sc1'
                       for i in range(8))
    g(f's_waitcnt vmcnt({P["MW"]})')
    g(mloads)
    attention(g, 'g_addr')
    attention(g, 'g_issue', range(P['GE']))
    g(f's_waitcnt vmcnt({8 + P["GE"]})')
    transpose(g, UB + 1)
    g(f's_waitcnt vmcnt({P["GE"]})')
    poll(g, mloads, range(ACC + 1, ACC + 32, 2), T, P['MSL'], preloaded=True, mask=-1)
    g.vm = []
    g.stamp('g_modseen')
    for i in range(4):
        g(f'v_add_f32 v{T + i}, v{ACC + 16 + 2 * i}, v{ACC + 24 + 2 * i}')
    for i in range(4):
        g(f'v_add_f32 v{ACC + i}, v{ACC + 2 * i}, v{ACC + 8 + 2 * i}')
    round4(g, T, T + 4)
    for i in range(4):
        g(f'v_add_f32 v{T + i}, 1.0, v{T + i}')
    round4(g, T, T + 4)
    pk4(g, 'v_pk_mul_f32', Y, Y, T)
    round4(g, Y, T + 4)
    round4(g, ACC, T + 4)
    pk4(g, 'v_pk_add_f32', Y, Y, ACC)
    pack(g, T, Y)
    actwrite(g, T, L.ACTH)
    g('s_waitcnt lgkmcnt(0)\ns_barrier')
    nsplit(g, UB, L.ACTH)
    g(f's_lshl_b32 s12, s7, 1\ns_add_u32 s12, s12, {QB}')
    g(f'v_cvt_pk_bf16_f32 v{T}, v{T}, v{T}\nv_lshl_or_b32 v{T}, v{T}, 16, {S_T16}')
    publish32(g, L, 's12', 16384, False)
    g.stamp('g_q')

    attention(g, 'g_issue', range(P['GE'], 16 * P['NUG']))
    if P['NUG']:
        attention(g, 'g_q')
    g.bits(T + 5, TID, [(4, 2, 4096), (6, 3, 256), (0, 4, 16)], T + 7)
    kload(g, UC, 24, 4096 * 2048, JC, T + 5, lambda kb, t: 32 * kb + (t & 3) * 8 + (t >> 2), 'wo')
    if P['NUG']:
        attention(g, 'g_compute')
        g.stamp('g_att')
        common_addr(g, L, False)
    g(f'v_lshlrev_b32 v{RO}, 4, v{TID}')
    g('s_waitcnt vmcnt(0)')
    g.vm = []
    transpose(g, UC)
    transpose(g, UC + 1)
    g.stamp('g_loaded')
    g(f's_lshr_b32 s4, {JC}, 1\ns_lshl_b32 s4, s4, 6\ns_lshl_b32 s5, {ODD}, 3\ns_add_u32 s4, s4, s5')
    g.bits(T, 0, [(1, 2, 16), (0, 1, 4)], T + 1, 's4')
    srd(g, S_B, 34, 2048)
    g(f'buffer_load_dword v{RB2}, v{T}, {S_B}, 0 offen')
    g(f'v_bfe_u32 v{T + 1}, v0, 3, 1\nv_lshlrev_b32 v{RGA}, 1, v{T}\nv_lshl_add_u32 v{RGA}, v{T + 1}, 14, v{RGA}')
    g(f'v_lshl_add_u32 v{OUTO}, v{T + 1}, 11, v{T}')
    srd(g, S_B, 16, 4096)
    g(f'buffer_load_dword v{RX}, v{OUTO}, {S_B}, 0 offen')
    srd(g, S_B, 40, 4096)
    g.bits(RL, TID, [(6, 3, 128), (0, 1, 64), (4, 2, 16), (1, 2, 4)], T, L.PART)
    g.bits(PO, TID, [(3, 6, 8192), (0, 3, 16)], T)
    g(f's_add_u32 s12, s7, {MBB}')
    g.bits(AO, TID, [(8, 1, SLOTS * 256), (3, 3, 256), (6, 2, 64), (0, 3, 8)], T + 3)
    g.bits(OW, TID, [(6, 3, 32), (0, 3, 4), (5, 1, 2)], T + 3, L.OUTV)
    g.bits(T + 5, TID, [(8, 1, 128), (3, 3, 4)], T + 3)
    g('s_add_u32 s13, s8, 4096')
    g.bits(T + 2, 0, [(5, 1, 8192), (0, 5, 8)], T + 3)
    g(f's_lshr_b32 s4, {JC}, 1\ns_lshl_b32 s4, s4, 8\ns_add_u32 s4, s4, {STATS}')
    prefetch_code(g, 'L_proj_tail', 1, T + 6, ACC)
    if P['PRE'] == 1:
        g(f'buffer_load_dwordx4 {vr(ACC + 4, 4)}, v{RO}, {S_WS}, s9 offen sc1')
    g.stamp('g_ready')
    g('L_proj_tail:')
    fwait(g, T, 's46', C_A, P['ASL'])
    g.stamp('g_hint', (0, 1))
    if P['PRE'] == 2:
        g(f'buffer_load_dwordx4 {vr(ACC + 4, 4)}, v{RO}, {S_WS}, s9 offen sc1')
    g(f'v_mov_b32 v{T}, 0xff800000\nv_mov_b32 v{T + 1}, 0')
    g.setexec(-1 if P['NUG'] else ((1 << SPL) - 1) * 0x100000001)
    poll(g, f'buffer_load_dwordx2 {vr(T, 2)}, v{T + 2}, {S_WS}, s4 offen sc1', [T, T + 1], T + 4, 2)
    g.setexec(-1)

    def red32(r, t, op):
        for sh in (8, 4, 2, 1):
            g.nop(2)
            g(f'{op}_dpp v{r}, v{r}, v{r} row_ror:{sh} {DPP}')
        g(f'v_mov_b32 v{t}, v{r}')
        g.nop(2)
        g(f'v_permlane16_swap_b32 v{r}, v{t}\n{op} v{r}, v{r}, v{t}')
    g(f'v_and_b32 v{T}, {S_MASK}, v{T}\nv_mov_b32 v{T + 2}, v{T}')
    red32(T + 2, T + 3, 'v_max_f32')
    g(f'v_sub_f32 v{T}, v{T}, v{T + 2}\nv_mul_f32 v{T}, 0x3fb8aa3b, v{T}\nv_exp_f32 v{T}, v{T}\ns_nop 0')
    g(f'v_mul_f32 v{T + 1}, v{T + 1}, v{T}')
    red32(T + 1, T + 3, 'v_add_f32')
    g(f'v_rcp_f32 v{T + 1}, v{T + 1}\ns_nop 0\nv_mul_f32 v{T}, v{T}, v{T + 1}')
    for k in range(4):
        g(f'ds_bpermute_b32 v{WG + k}, v{T + 5}, v{T} offset:{32 * k}')
    g('s_waitcnt lgkmcnt(0)')
    g.stamp('g_wgt', (0, 1))
    NT = 4 if P['NUG'] else 3
    poll(g, '\n'.join(f'buffer_load_dwordx2 {vr(T + 2 * k, 2)}, v{AO}, {S_WS}, {"s8" if k < 2 else "s13"} offen offset:{2048 * (k & 1)} sc1'
                      for k in range(NT)), range(T, T + 2 * NT), ACC, P['SLEEP'])
    g.stamp('g_apolled', (0, 1))
    g(f'v_mul_f32 v{T}, v{WG}, v{T}\nv_mul_f32 v{T + 1}, v{WG}, v{T + 1}')
    for k in range(1, NT):
        g(f'v_fmac_f32 v{T}, v{WG + k}, v{T + 2 * k}\nv_fmac_f32 v{T + 1}, v{WG + k}, v{T + 2 * k + 1}')
    g.nop(2)
    g(f'v_permlane32_swap_b32 v{T}, v{T + 1}\nv_add_f32 v{T}, v{T}, v{T + 1}\nv_mov_b32 v{T + 1}, v{T}')
    g.nop(2)
    g(f'v_permlane16_swap_b32 v{T}, v{T + 1}\nv_add_f32 v{T}, v{T}, v{T + 1}')
    g.nop(2)
    g(f'v_add_f32_dpp v{T}, v{T}, v{T} row_ror:8 {DPP}')
    g(f'v_cvt_pk_bf16_f32 v{T}, v{T}, v{T}\nds_write_b16 v{OW}, v{T}')
    g('s_waitcnt lgkmcnt(0)\ns_barrier')
    g.stamp('g_obar', (1,))
    ksplit_out(g, UC, PO, 's12')
    g.stamp('g_t2', (0, 1))
    if P['BW']:
        g('s_waitcnt vmcnt(0)')
    if P['BW'] == 2:
        g('s_barrier')
    skip = reduce('s9', 64, 0)
    unpack2(g, T + 6, RX)
    if P['REP']:
        g(f'v_lshrrev_b32 v{T + 3}, 4, v0\nv_lshl_add_u32 v{T + 3}, v{T + 3}, 13, v{T + 2}\ns_add_u32 s4, s11, 32768')
    else:
        g(f'v_lshlrev_b32 v{T + 3}, 3, v0')
    g(f'v_mov_b32 v{ACC + 16}, {S_MASK}')
    reduce_sum()
    g(f'v_pk_mul_f32 {vr(T, 2)}, {vr(T, 2)}, {vr(ACC + 18, 2)}')
    round2(g, T)
    g(f'v_pk_add_f32 {vr(T, 2)}, {vr(T, 2)}, {vr(T + 6, 2)}')
    g(f'v_cvt_pk_bf16_f32 v{RX}, v{T}, v{T + 1}')
    g(f'v_lshl_or_b32 v{T}, v{RX}, 16, {S_T16}\nv_and_or_b32 v{T + 1}, v{RX}, v{ACC + 16}, {S_T16}')
    if P['REP']:
        g(f'buffer_store_dwordx2 {vr(T, 2)}, v{T + 3}, {S_WS}, s11 offen sc1\nbuffer_store_dwordx2 {vr(T, 2)}, v{T + 3}, {S_WS}, s4 offen sc1')
    else:
        g.setexec(0xffff)
        g(f'buffer_store_dwordx2 {vr(T, 2)}, v{T + 3}, {S_WS}, s11 offen sc1')
        g.setexec(-1)
    g(skip + ':')
    g.stamp('g_x1', (0, 1))
    g('s_barrier')
    skip = reduce('s10', 56, 3)
    unpack2(g, T + 2, RB2)
    unpack2(g, T + 6, RX)
    reduce_sum()
    g(f'v_pk_add_f32 {vr(T, 2)}, {vr(T, 2)}, {vr(T + 2, 2)}')
    round2(g, T)
    g(f'v_pk_mul_f32 {vr(T, 2)}, {vr(T, 2)}, {vr(ACC + 18, 2)}')
    round2(g, T)
    g(f'v_pk_add_f32 {vr(T, 2)}, {vr(T, 2)}, {vr(T + 6, 2)}')
    g(f'v_cvt_pk_bf16_f32 v{T}, v{T}, v{T + 1}')
    g.setexec(0xffff)
    g(f'buffer_store_dword v{T}, v{OUTO}, {S_B}, 0 offen')
    g(f's_cmp_lg_u32 s2, 0\ns_cbranch_scc1 {skip}\nv_mov_b32 v{T + 1}, {S_EPO}\ns_mov_b64 exec, 1')
    g(f'buffer_store_dword v{T + 1}, off, {S_WS}, 0 sc1')
    g(skip + ':')
    g.stamp('g_out', (0, 1, 3))
    if P['PADTO']:
        if P['PADWG'] >= 0:
            g(f's_cmp_lg_u32 s2, {P["PADWG"]}\ns_cbranch_scc1 L_nopad')
        g(f'L_pad:\ns_memrealtime s[4:5]\ns_waitcnt lgkmcnt(0)\ns_sub_u32 s4, s4, s70\ns_cmp_lt_u32 s4, {P["PADTO"]}\ns_cbranch_scc1 L_pad\nL_nopad:')
    write_stamps(g)
    g('s_endpgm')


MLP_LDS = 4096
W1L = 4096
LDS_TOTAL = W1L + 131072


def mlp(g):
    L = Lds(MLP_LDS)
    PO, XO, SW, SR, B1 = 8, 9, 10, 11, 17
    C1, SH = 12, 18
    JM = 's14'
    g.vm = []
    g('L_mlp:')
    if P['W2TH']:
        skip = g.label('L_go')
        g(f's_cmp_lg_u32 s15, 0\ns_cbranch_scc1 {skip}\ns_cmp_lg_u32 s3, 0\ns_cbranch_scc1 {skip}')
        fpoll(g, ACC + 4, 's101', C_A, P['LSL'])
        g(skip + ':')
    g(f's_lshl_b32 s4, s3, 6\nv_add_u32 v{TID}, s4, v0')
    g(f's_lshl_b32 s7, {JM}, 7')
    g.bits(T + 5, TID, [(4, 2, 2048), (6, 3, 256), (0, 4, 16)], T + 7)
    g('s_barrier')
    kload(g, UB, 32, 3584 * 2048, JM, T + 5, lambda kb, t: 32 * kb + 4 * t, 'w2')
    common_addr(g, L, True)
    srd(g, S_B, 30, 3584 * 2)
    g.bits(T + 5, TID, [(2, 3, 16), (5, 2, 4), (7, 1, 2)], T, 's7')
    g.vmop(f'buffer_load_ushort v{B1}, v{T + 5}, {S_B}, 0 offen', 'k')
    prefetch_code(g, 'L_mlp_tail', 1, T + 5, ACC + 8, 'k')
    g.bits(XO, TID, [(2, 6, 128), (8, 1, 64), (0, 2, 16)], T, X1)
    if P['REP']:
        g(f's_and_b32 s4, s2, 7\ns_lshl_b32 s4, s4, 13\nv_add_u32 v{XO}, s4, v{XO}')
    g.bits(PO, TID, [(3, 6, 8192), (0, 3, 16)], T)
    g(f's_add_u32 s13, s7, {MBC}')
    g(f's_lshl_b32 s4, s3, 3\nv_mov_b32 v{SW}, s4\ns_and_b32 s4, s4, 32\nv_mov_b32 v{SR}, s4')
    MP = 16
    g.bits(MP, TID, [(8, 1, 16384), (3, 5, 128), (0, 2, 32), (2, 1, 16)], T, MODL + 4096)
    g(f's_mov_b32 s4, 4096\ns_mov_b32 s5, 32768\ns_mov_b32 s6, {32768 + 4096}')
    mloads = '\n'.join(f'buffer_load_dwordx4 {vr(ACC + 12 + 4 * i, 4)}, v{MP}, {S_WS}, {so} offen sc1' for i, so in enumerate(('0', 's5', 's4', 's6')))
    g.vmwait(('w2', 0))
    transpose(g, UB)
    g.vmop(mloads, 'k')
    g.vmwait(('w2', 1))
    XV = ACC
    xload = f'buffer_load_dwordx4 {vr(XV, 4)}, v{XO}, {S_WS}, 0 offen sc1'
    g.vmop(xload, 'x')
    transpose(g, UB + 1)
    g.vmwait('k')
    g.stamp('m_w2', (2,))
    poll(g, mloads, range(ACC + 12, ACC + 28), T, 2, preloaded=True)
    pk4(g, 'v_pk_add_f32', SH, ACC + 12, ACC + 16)
    pk4(g, 'v_pk_add_f32', C1, ACC + 20, ACC + 24)
    round4(g, SH, T)
    round4(g, C1, T)
    for i in range(4):
        g(f'v_add_f32 v{C1 + i}, 1.0, v{C1 + i}')
    round4(g, C1, T)
    g(f'v_lshlrev_b32 v{B1}, 16, v{B1}')
    g.stamp('m_ready', (0, 2))
    g('L_mlp_tail:')
    g('s_waitcnt vmcnt(0)')
    poll(g, xload, range(XV, XV + 4), T, mask=0xffff, preloaded=True)
    g.stamp('m_x1seen', (0, 2))
    for i in range(4):
        g(f'v_and_b32 v{XV + i}, {S_MASK}, v{XV + i}')
    layernorm(g, XV, SW, SR, L.STAT)
    g.stamp('m_ln1', (2,))
    pk4(g, 'v_pk_mul_f32', XV, XV, C1)
    round4(g, XV, T + 6)
    pk4(g, 'v_pk_add_f32', XV, XV, SH)
    round4(g, XV, T + 6)
    layernorm(g, XV, SW, SR, L.STAT + 64, last_packed=True)
    actwrite(g, T + 6, L.ACTH)
    g('s_waitcnt lgkmcnt(0)\ns_barrier')
    g.stamp('m_ln2', (2,))
    nsplit(g, UC, L.ACTH)
    g.stamp('m_t3', (2,))
    g(f'''v_cvt_pk_bf16_f32 v{T}, v{T}, v{T}
          v_lshlrev_b32 v{T}, 16, v{T}
          v_add_f32 v{T}, v{T}, v{B1}
          v_cvt_pk_bf16_f32 v{T}, v{T}, v{T}
          v_lshlrev_b32 v{T}, 16, v{T}
          v_mov_b32 v{T + 2}, 0xc0135761
          v_mul_f32 v{T + 1}, v{T}, v{T}
          v_fmac_f32 v{T + 2}, 0xbdd2d3e8, v{T + 1}
          v_mul_f32 v{T + 1}, v{T + 2}, v{T}
          v_exp_f32 v{T + 1}, v{T + 1}
          s_nop 0
          v_add_f32 v{T + 1}, 1.0, v{T + 1}
          v_rcp_f32 v{T + 1}, v{T + 1}
          s_nop 0
          v_mul_f32 v{T}, v{T}, v{T + 1}
          v_cvt_pk_bf16_f32 v{T}, v{T}, v{T}
          ds_write_b16 v{NO}, v{T}
          s_waitcnt lgkmcnt(0)
          s_barrier''')
    g.stamp('m_gelu', (2,))
    ksplit_out(g, UB, PO, 's13')
    g.stamp('m_t4', (0, 2))
    write_stamps(g)
    g('s_endpgm')


def latem(g):
    L = Lds(MLP_LDS)
    g.vm = []
    g('L_late:')
    g(f's_lshl_b32 s4, s3, 6\nv_add_u32 v{TID}, s4, v0')
    nvoff(g, 8, 12288)
    g(f'''s_and_b32 s15, s14, 1
          s_lshr_b32 s6, s14, 1
          s_lshl_b32 s6, s6, 7
          s_mul_i32 s13, s15, {512 * 12288}
          s_add_u32 s13, s13, s6
          s_add_u32 s13, s13, 4096''')
    g.bits(T + 6, TID, [(3, 6, 64), (0, 2, 16), (2, 1, 8)], T)
    srd(g, S_B, 36, 4096)
    if P['LGATE'] >= 0:
        skip = only_wave(g, 0)
        g(f's_cmp_lt_u32 s14, {128 - P["LGATE"]}\ns_cbranch_scc1 {skip}')
        fpoll(g, ACC + 4, 's101', C_A, P['LSL'])
        g(skip + ':')
    g('s_barrier')
    g.vmop(f'buffer_load_dwordx2 {vr(12, 2)}, v{T + 6}, {S_B}, 0 offen', 'in')
    nload(g, UA, 38, 1024 * 12288, 12288, 's13', 8, (0,), tag='m')
    common_addr(g, L, False)
    g(f's_lshl_b32 s12, s15, 15\ns_lshl_b32 s5, s6, 1\ns_add_u32 s12, s12, s5\ns_add_u32 s12, s12, {MODL}')
    g.vmwait('in')
    silu_image(g, L, 12)
    g(f's_lshl_b32 s4, s15, {10 if P["NAT"] else 7}\nv_add_u32 v9, s4, v{NB}')
    tagmask(g, 10)
    g('s_waitcnt lgkmcnt(0)\ns_barrier')
    g.vmwait(('m', 0))
    transpose(g, UA)
    nsplit(g, UA, L.ACTS, 9)
    tag(g, [T], 10)
    publish32(g, L, 's12', 16384, False)
    g.stamp('l_pub', (0, 1, 2))
    write_stamps(g)
    g('s_endpgm')


def attention(g, mode='main', arg=None):
    KO, VO, QO, VSC, VMAX, OO = 1, 2, 3, 4, 5, 6
    Q0, SP, TMP, T2 = 8, 16, 40, 56
    LA, GA = T2 + 7, T2 + 6
    SLOT = lambda s: 64 + 32 * s
    AC = SLOT(0)
    U = lambda u: 's%d' % (4 + 2 * u)
    U2 = lambda u: 's%d' % (5 + 2 * u)
    S_R, S_CU, S_GA, S_T = 's47', 's68', 's96', 's69'
    S_B4, S_B5, S_O4, S_KV = 's46', 's100', 's101', 's101'
    MX, OBUF, OST = 0, W1L, 16384
    QL, QF = 1024, 3072
    S_ST = 's97'
    NN = (SPL - NMR) * 8
    NUG = P['NUG']
    n4 = min(NN, 1024 - 4 * WPR - 64 * NUG)
    n5 = 1024 - 4 * WPR - n4 - 64 * NUG
    RK = QF + 4
    assert 0 <= n5 <= NN
    base = [0, WPR, 2 * WPR, 3 * WPR, 4 * WPR, 4 * WPR + n4]
    VSLOT = [1, 2, 3, 1, 4, 5] if mode == 'main' else [NUG + u for u in range(NUG)]

    def entry():
        g.vm = []

        g('L_attn:')
        g(f'''s_sub_u32 {S_T}, s2, {NG}
              s_mul_hi_u32 {S_R}, {S_T}, {(1 << 32) // SPL + 1}
              s_mul_i32 {S_CU}, {S_R}, {SPL}
              s_sub_u32 {S_CU}, {S_T}, {S_CU}
              s_add_u32 {S_CU}, {S_CU}, {S_R if P["ROT"] else 0}
              s_sub_u32 {S_T}, {S_CU}, {SPL}
              s_cselect_b32 {S_CU}, {S_CU}, {S_T}
              s_mul_i32 {S_T}, s3, {SPL - NMR}
              s_add_u32 {S_T}, {S_T}, {S_CU}
              s_cmp_lt_u32 {S_CU}, {SPL - NMR}
              s_cselect_b32 {S_T}, {S_T}, 1023
              s_lshl_b32 s98, {S_CU}, 3
              s_add_u32 s98, s98, s3
              s_mul_i32 {S_GA}, {S_R}, {P["PH"]}''')
        for u in range(NU):
            g(f's_add_u32 {U(u)}, {S_GA}, {"s98" if u < (5 if n4 == NN else 4) else S_T}')
            if u:
                g(f's_add_u32 {U(u)}, {U(u)}, {base[u]}')
            g(f's_and_b32 {U(u)}, {U(u)}, 1023\ns_lshl_b32 {U(u)}, {U(u)}, 13\ns_add_u32 {U2(u)}, {U(u)}, 4096')
        g.bits(KO, 0, [(1, 1, 1024), (2, 2, 256), (0, 1, 64), (4, 2, 16)], 8)
        g(f'v_lshlrev_b32 v{VO}, 4, v0')
        g(f's_cmp_lt_u32 {S_T}, {n4}\ns_cselect_b32 {S_O4}, 0, 0x1000000\ns_cselect_b32 {S_B4}, 0, 0xff800000')
        g(f's_cmp_lt_u32 {S_T}, {n5}\ns_cselect_b32 s98, 0, 0x1000000\ns_cselect_b32 {S_B5}, 0, 0xff800000')
        g(f'v_add_u32 v{OO}, {S_O4}, v{KO}\nv_add_u32 v{OO + 1}, s98, v{KO}')
        g('s_waitcnt lgkmcnt(0)')
        g(f's_lshl_b32 {S_T}, {S_R}, 23')
        g(f's_add_u32 s56, s18, {S_T}\ns_addc_u32 s57, s19, 0\ns_mov_b32 s58, 0x800000\ns_mov_b32 s59, 0x20000')
        g(f's_add_u32 s60, s20, {S_T}\ns_addc_u32 s61, s21, 0\ns_mov_b32 s62, 0x800000\ns_mov_b32 s63, 0x20000')

    def load(n, pos):
        i = n & 7
        if n < 48:
            u = n >> 3
            vo = KO if u < 4 else OO + u - 4
            g.vmop(f'buffer_load_dwordx4 {vr(SLOT(u) + 4 * i, 4)}, v{vo}, {S_A}, {U2(u) if i >= 4 else U(u)} offen '
                   f'offset:{((i >> 1) & 1) * 2048 + (i & 1) * 128} nt', pos)
        elif n < 64:
            if n == 48:
                l1, l2 = g.label('L_xv'), g.label('L_xj')
                g(f's_lshl_b32 s98, s3, 14\ns_add_u32 m0, s98, {W1L}\ns_mov_b32 s95, 0x20000')
                g(f's_cmp_lt_u32 {S_CU}, {SPL - NMR}\ns_cbranch_scc1 {l1}')
                g(f's_lshl_b32 {S_T}, s3, 6\nv_add_u32 v{T2 + 1}, {S_T}, v0')
                nvoff(g, OO, 7168, T2 + 1, T2 + 2)
                g(f'v_mov_b32 v{OO + 1}, v{OO}')
                g(f's_mul_i32 {S_T}, {S_R}, {NMR}\ns_add_u32 {S_T}, {S_T}, {S_CU}\ns_sub_u32 {S_T}, {S_T}, {SPL - NMR}')
                g(f's_lshl_b32 {U(4)}, {S_T}, 7\ns_add_u32 {U(5)}, {U(4)}, {512 * 7168}\ns_mov_b32 {U2(4)}, {nstep() * 7168}')
                g(f's_mov_b32 s92, s28\ns_mov_b32 s93, s29\ns_mov_b32 s94, {1024 * 7168}')
                g(f's_branch {l2}\n{l1}:')
                g(f'v_sub_u32 v{T2 + 1}, v{VO}, v{KO}\nv_add_u32 v{OO}, v{OO}, v{T2 + 1}\nv_add_u32 v{OO + 1}, v{OO + 1}, v{T2 + 1}')
                g(f's_mov_b32 {U2(4)}, 1024\ns_mov_b32 s92, s60\ns_mov_b32 s93, s61\ns_mov_b32 s94, s62')
                g(l2 + ':')
            u = 4 + ((n - 48) >> 3)
            if n > 48:
                g('s_add_u32 m0, m0, 1024')
            g(f's_add_u32 {U(u)}, {U(u)}, {U2(4)}' if i else 's_nop 0')
            g.vmop(f'buffer_load_dwordx4 v{OO + u - 4}, s[92:95], {U(u)} offen nt lds', pos)
        else:
            u = (n - 64) >> 3
            g.vmop(f'buffer_load_dwordx4 {vr(SLOT(VSLOT[u]) + 4 * i, 4)}, v{VO}, {S_B}, {U2(u) if i >= 4 else U(u)} offen '
                   f'offset:{(i & 3) * 1024} nt', pos)

    def mailbox():
        g.bits(GA, 0, [(5, 1, MBA_ST), (0, 5, 8)], T2)
        g(f'''s_and_b32 {S_T}, {S_R}, 3
              s_lshl_b32 {S_T}, {S_T}, 3
              s_add_u32 {S_T}, {S_T}, s3
              s_mul_i32 {S_T}, {S_T}, {2 * MBA_ST}
              s_lshr_b32 {S_GA}, {S_R}, 2
              s_mul_i32 {S_GA}, {S_GA}, {SLOTS}
              s_add_u32 {S_GA}, {S_GA}, {S_CU}
              s_lshl_b32 {S_GA}, {S_GA}, 8
              s_add_u32 {S_GA}, {S_GA}, {S_T}
              s_add_u32 {S_GA}, {S_GA}, {MBA}''')

    def setup():
        srd(g, S_WS, 44, WS_SIZE)
        srd(g, S_DBG, 42, 256)
        mailbox()
        g.vmop(epoch_load(T2 + 2), 'ep')
        prefetch_code(g, 'L_attn_body', 2, 8, TMP, 'pf')
        if P['TLB']:
            skip = g.label('L_notlb')
            sh = P['TLB']
            g(f'v_lshlrev_b32 v8, {sh}, v0')
            g.setexec((1 << min(64, 1 << (23 - sh))) - 1 if sh > 17 else -1)
            g(f's_cmp_eq_u32 s3, 1\ns_cbranch_scc0 {skip}_a\nbuffer_load_dword v{TMP + 4}, v8, {S_A}, 0 offen nt\n{skip}_a:')
            g(f's_cmp_eq_u32 s3, 2\ns_cbranch_scc0 {skip}_b\nbuffer_load_dword v{TMP + 4}, v8, {S_B}, 0 offen nt\n{skip}_b:')
            for w, (ptr, size) in enumerate(((28, 7 << 20), (32, 7 << 20), (38, 12 << 20), (44, WS_SIZE))):
                l = f'{skip}_{w}'
                g(f's_cmp_eq_u32 s3, {3 + w}\ns_cbranch_scc0 {l}')
                g(f's_mov_b32 s92, s{ptr}\ns_mov_b32 s93, s{ptr + 1}\ns_mov_b32 s94, {size}\ns_mov_b32 s95, 0x20000')
                g(f'buffer_load_dword v{TMP + 4}, v8, s[92:95], 0 offen offset:2048 {"sc1" if ptr == 44 else "nt"}')
                if size > (8 << 20):
                    g(f's_mov_b32 {S_T}, {8 << 20}\nv_add_u32 v9, {S_T}, v8\nbuffer_load_dword v{TMP + 4}, v9, s[92:95], 0 offen nt')
                g(l + ':')
            g.setexec(-1)
        g(f's_and_b32 {S_KV}, {S_R}, 3\ns_lshl_b32 {S_KV}, {S_KV}, 2')
        g.bits(QO, 0, [(0, 3, 256), (3, 1, 64), (4, 2, 16)], 8)
        g.bits(LA, 0, [(0, 4, 64)], 8)
        g(f's_lshl_b32 {S_T}, s3, 3\nv_add_u32 v8, {S_T}, v{LA}\nv_mov_b32 v9, -1\nds_write_b32 v8, v9 offset:{MX + 4}')
        g(f'v_mov_b32 v{T2}, 0\nds_write_b32 v{T2}, v{T2} offset:{QF}\ns_mov_b32 {S_ST}, 0\ns_waitcnt lgkmcnt(0)\ns_barrier')
        g(f'v_mov_b32 v{VSC}, 0x3db504f3\nv_mov_b32 v{VMAX}, 0xff800000')
        g('L_attn_body:')

    def readback():
        g(f's_lshl_b32 {S_T}, s3, 14\ns_add_u32 {S_T}, {S_T}, {W1L}\nv_add_u32 v{T2}, {S_T}, v{VO}')
        for i in range(16):
            g(f'ds_read_b128 {vr(SLOT(4) + 4 * i, 4)}, v{T2} offset:{i * 1024}')

    def lds_units():
        l1, l2 = g.label('L_w1'), g.label('L_w1j')
        g(f's_cmp_ge_u32 {S_CU}, {SPL - NMR}\ns_cbranch_scc1 {l1}')
        g('s_waitcnt lgkmcnt(8)')
        pv(4)
        g('s_waitcnt lgkmcnt(0)')
        pv(5)
        g(f's_branch {l2}\n{l1}:')
        g('s_waitcnt lgkmcnt(8)')
        transpose(g, UC, T2)
        g('s_waitcnt lgkmcnt(0)')
        transpose(g, UC + 1, T2)
        g(l2 + ':')

    def qstep(final=False):
        skip = only_wave(g, P['QW'])
        l1, l3, top = g.label('L_q1'), g.label('L_q3'), g.label('L_qtop')
        if final:
            g(f's_mov_b32 {S_SPIN}, {SPIN}\n{top}:')
        g(f's_cmp_eq_u32 {S_ST}, 2\ns_cbranch_scc1 {skip}')
        if final:
            g(f's_waitcnt vmcnt(0)\ns_sub_u32 {S_SPIN}, {S_SPIN}, 1\ns_cbranch_scc1 {l3}')
        g(f's_cmp_eq_u32 {S_ST}, 0\ns_cbranch_scc1 {l1}')
        check(g, range(TMP, TMP + 16), T2, 0xffff)
        g(f's_cbranch_vccz {l3}')
        if final:
            g(f's_sleep {P["QSL"]}')
        g(l1 + ':')
        g(f's_lshl_b32 {S_T}, {S_R}, 12\ns_add_u32 {S_T}, {S_T}, {QB}\ns_mov_b32 {S_ST}, 1')
        for i in range(4):
            g(f'buffer_load_dwordx4 {vr(TMP + 4 * i, 4)}, v{VO}, {S_WS}, {S_T} offen offset:{1024 * i} sc1')
        g(f's_branch {top if final else skip}')
        g(l3 + ':')
        g(f'v_lshlrev_b32 v{T2}, 3, v0')
        for i in range(8):
            g(f'v_perm_b32 v{Q0 + i}, v{TMP + 2 * i + 1}, v{TMP + 2 * i}, {S_HI}')
        for i in range(4):
            g(f'ds_write_b64 v{T2}, {vr(Q0 + 2 * i, 2)} offset:{QL + 512 * i}')
        g(f'v_mov_b32 v{T2}, 0\nv_mov_b32 v{T2 + 1}, 1\ns_mov_b32 {S_ST}, 2\ns_waitcnt lgkmcnt(0)')
        g(f'ds_write_b32 v{T2}, v{T2 + 1} offset:{QF}')
        g(skip + ':')

    def qget():
        g.stamp('a_qwait')
        if P['NOQ']:
            return
        qstep(final=True)
        lp, ok = g.label('L_qf'), g.label('L_qfok')
        g(f'v_mov_b32 v{T2}, 0\ns_mov_b32 {S_SPIN}, {SPIN * 16}\n{lp}:')
        g(f'ds_read_b32 v{T2 + 1}, v{T2} offset:{QF}\ns_waitcnt lgkmcnt(0)')
        g(f'v_cmp_eq_u32 vcc, 0, v{T2 + 1}\ns_cbranch_vccz {ok}')
        g(f's_sleep 2\ns_sub_u32 {S_SPIN}, {S_SPIN}, 1\ns_cbranch_scc0 {lp}\n{ok}:')
        g(f'ds_read_b128 {vr(Q0, 4)}, v{QO} offset:{QL}\nds_read_b128 {vr(Q0 + 4, 4)}, v{QO} offset:{QL + 128}')
        g('s_waitcnt lgkmcnt(0)')
        g.stamp('a_qseen')

    def qk(u):
        for t in range(4):
            g(f'v_mfma_f32_16x16x32_bf16 {vr(TMP + 4 * t, 4)}, {vr(SLOT(u) + 8 * t, 4)}, {vr(Q0, 4)}, 0')
        for t in range(4):
            g(f'v_mfma_f32_16x16x32_bf16 {vr(TMP + 4 * t, 4)}, {vr(SLOT(u) + 8 * t + 4, 4)}, {vr(Q0 + 4, 4)}, {vr(TMP + 4 * t, 4)}')
        g.nop(5)
        for t in range(4):
            d = TMP + 4 * t
            a, b = T2 + 2 * (t & 1), T2 + 2 * (t & 1) + 1
            g(f'v_add_f32_dpp v{a}, v{d + 1}, v{d} row_ror:8 {DPP}\nv_add_f32_dpp v{b}, v{d + 3}, v{d + 2} row_ror:8 {DPP}')
            round2(g, a)
            if u >= 4:
                sb = S_B4 if u == 4 else S_B5
                g(f'v_fma_f32 v{a}, v{a}, v{VSC}, {sb}\nv_fma_f32 v{b}, v{b}, v{VSC}, {sb}')
            else:
                g(f'v_mul_f32 v{a}, v{a}, v{VSC}\nv_mul_f32 v{b}, v{b}, v{VSC}')
            g(f'v_max3_f32 v{VMAX}, v{VMAX}, v{a}, v{b}\nv_cvt_pk_bf16_f32 v{SP + 4 * u + t}, v{a}, v{b}')

    def red_g(r, t, op):
        for ins in ('v_permlane32_swap_b32', 'v_permlane16_swap_b32'):
            g(f'v_mov_b32 v{t}, v{r}')
            g.nop(2)
            g(f'{ins} v{r}, v{t}\n{op} v{r}, v{r}, v{t}')

    def softmax():
        red_g(VMAX, T2, 'v_max_f32')
        for i in range(0, 32, 2):
            g(f'v_mov_b64 {vr(AC + i, 2)}, 0')
        g(f'v_mov_b32 v{VSC}, 0x3fb8aa3b\nv_mov_b32 v{T2 + 4}, 0')
        g(f'v_cvt_pk_bf16_f32 v{VMAX}, v{VMAX}, v{VMAX}\nv_lshlrev_b32 v{VMAX}, 16, v{VMAX}')
        g(f'v_mul_f32 v{T2 + 5}, v{VMAX}, v{VSC}')

    def probs(u, last=NU - 1):
        for i in range(4 * u, 4 * u + 4):
            p = SP + i
            a, b = T2 + 2 * (i & 1), T2 + 2 * (i & 1) + 1
            unpack2(g, a, p)
            g(f'v_fma_f32 v{a}, v{a}, v{VSC}, -v{T2 + 5}\nv_fma_f32 v{b}, v{b}, v{VSC}, -v{T2 + 5}')
            g(f'v_exp_f32 v{a}, v{a}\nv_exp_f32 v{b}, v{b}')
            g(f'v_add_f32 v{T2 + 4}, v{T2 + 4}, v{a}\nv_add_f32 v{T2 + 4}, v{T2 + 4}, v{b}')
            g(f'v_cvt_pk_bf16_f32 v{p}, v{a}, v{b}')
        if u == last:
            red_g(T2 + 4, T2, 'v_add_f32')
            g(f's_lshl_b32 {S_T}, s3, 3\nv_add_u32 v{T2}, {S_T}, v{LA}\nv_mov_b32 v{T2 + 2}, v{VMAX}\nv_min_u32 v{T2 + 3}, -2, v{T2 + 4}')
            g(f'ds_write_b64 v{T2}, {vr(T2 + 2, 2)} offset:{MX}')
            if mode == 'main':
                g.stamp('a_probs')

    def pv(u):
        s = SLOT(VSLOT[u])
        for w in range(4):
            t = TMP + 8 * (w & 1)
            for p in range(4):
                g(f'v_perm_b32 v{t + p}, v{s + 8 * p + 4 + w}, v{s + 8 * p + w}, {S_LO}')
            for p in range(4):
                g(f'v_perm_b32 v{t + 4 + p}, v{s + 8 * p + 4 + w}, v{s + 8 * p + w}, {S_HI}')
            g(f'v_mfma_f32_16x16x32_bf16 {vr(AC + 8 * w, 4)}, {vr(t, 4)}, {vr(SP + 4 * u, 4)}, {vr(AC + 8 * w, 4)}')
            g('s_nop 0')
            g(f'v_mfma_f32_16x16x32_bf16 {vr(AC + 8 * w + 4, 4)}, {vr(t + 4, 4)}, {vr(SP + 4 * u, 4)}, {vr(AC + 8 * w + 4, 4)}')

    def gather_ml():
        lp, ok = g.label('L_ml'), g.label('L_mlok')
        g(f's_mov_b32 {S_SPIN}, {SPIN * 16}\n{lp}:')
        for i in range(4):
            g(f'ds_read_b128 {vr(TMP + 4 * i, 4)}, v{LA} offset:{MX + 16 * i}')
        g('s_waitcnt lgkmcnt(0)')
        g(f'v_max_u32 v{T2}, v{TMP + 1}, v{TMP + 3}')
        for i in range(5, 16, 4):
            g(f'v_max3_u32 v{T2}, v{T2}, v{TMP + i}, v{TMP + i + 2}')
        g(f'v_cmp_eq_u32 vcc, -1, v{T2}\ns_cbranch_vccz {ok}')
        g(f's_sleep 2\ns_sub_u32 {S_SPIN}, {S_SPIN}, 1\ns_cbranch_scc0 {lp}\n{ok}:')
        g(f'v_max_f32 v{T2 + 2}, v{TMP}, v{TMP + 2}')
        for i in range(4, 16, 4):
            g(f'v_max3_f32 v{T2 + 2}, v{T2 + 2}, v{TMP + i}, v{TMP + i + 2}')

    def stats():
        skip = only_wave(g, P['SW'])
        gather_ml()
        g(f'v_mov_b32 v{T2 + 3}, 0')
        for i in range(0, 16, 2):
            g(f'v_sub_f32 v{TMP + i}, v{TMP + i}, v{T2 + 2}\nv_mul_f32 v{TMP + i}, 0x3fb8aa3b, v{TMP + i}')
        for i in range(0, 16, 2):
            g(f'v_exp_f32 v{TMP + i}, v{TMP + i}')
        g(f's_lshl_b32 {S_T}, {S_R}, 11\ns_lshl_b32 s98, {S_CU}, 3\ns_add_u32 {S_T}, {S_T}, s98\ns_add_u32 {S_T}, {S_T}, {STATS}')
        for i in range(0, 16, 2):
            g(f'v_fmac_f32 v{T2 + 3}, v{TMP + i}, v{TMP + i + 1}')
        g(f'v_lshlrev_b32 v{T2}, 8, v0')
        tagmask(g, T2 + 1)
        tag(g, [T2 + 2, T2 + 3], T2 + 1)
        g.setexec(0xff)
        g(f'buffer_store_dwordx2 {vr(T2 + 2, 2)}, v{T2}, {S_WS}, {S_T} offen sc1')
        g.setexec(-1)
        g(skip + ':')

    def factor():
        gather_ml()
        g(f'v_sub_f32 v{FS}, v{VMAX}, v{T2 + 2}\nv_mul_f32 v{FS}, 0x3fb8aa3b, v{FS}\nv_exp_f32 v{FS}, v{FS}')
        tagmask(g, FS + 1)

    FS = Q0 + 2
    WA, RA = KO, QO

    def epi_addr():
        g(f's_mul_i32 {S_T}, s3, {OST}\ns_add_u32 {S_T}, {S_T}, {OBUF}')
        g.bits(WA, 0, [(4, 2, 128), (0, 4, 16)], T2, S_T)
        g(f's_lshl_b32 {S_T}, s3, 4\ns_add_u32 {S_T}, {S_T}, {OBUF}')
        g.bits(RA, 0, [(1, 3, 528), (4, 2, 128), (0, 1, 8)], T2, S_T)
        g(f'v_add_u32 v{VSC}, {4 * OST}, v{RA}')

    def epilogue():
        g.setexec(rep16(0xff))
        for j in range(8):
            for h in (0, 2):
                g(f'v_pk_mul_f32 {vr(AC + 4 * j + h, 2)}, {vr(AC + 4 * j + h, 2)}, {vr(FS, 2)} op_sel_hi:[1,0]')
            g(f'ds_write_b128 v{WA}, {vr(AC + 4 * j, 4)} offset:{528 * j}')
        g.setexec(-1)
        g('s_waitcnt lgkmcnt(0)\ns_barrier')
        for w in range(8):
            g(f'ds_read_b64 {vr(TMP + 2 * w, 2)}, v{RA if w < 4 else VSC} offset:{OST * (w & 3)}')
        g('s_waitcnt lgkmcnt(4)')
        pk4(g, 'v_pk_add_f32', TMP, TMP, TMP + 4)
        g('s_waitcnt lgkmcnt(0)')
        pk4(g, 'v_pk_add_f32', TMP + 8, TMP + 8, TMP + 12)
        pk4(g, 'v_pk_add_f32', TMP, TMP, TMP + 8)
        g(f'v_pk_add_f32 {vr(TMP, 2)}, {vr(TMP, 2)}, {vr(TMP + 2, 2)}')
        tag(g, [TMP, TMP + 1], FS + 1)
        g(f'buffer_store_dwordx2 {vr(TMP, 2)}, v{GA}, {S_WS}, {S_GA} offen sc1')

    GK, GV, S_GU = 12, 13, 's100'
    if mode == 'g_addr':
        g(f'''s_lshr_b32 {S_R}, s14, 3
              s_and_b32 {S_CU}, s14, 7
              s_lshl_b32 {S_GU}, {S_CU}, 3
              s_add_u32 {S_GU}, {S_GU}, s3
              s_mul_i32 {S_T}, {S_R}, {P["PH"]}
              s_add_u32 {S_GU}, {S_GU}, {S_T}
              s_add_u32 {S_CU}, {S_CU}, {SPL}''')
        g.bits(GK, 0, [(1, 1, 1024), (2, 2, 256), (0, 1, 64), (4, 2, 16)], GV)
        g(f'v_lshlrev_b32 v{GV}, 4, v0')
        return
    if mode == 'g_issue':
        for n in arg:
            i, isk, u = n & 7, n < 8 * NUG, (n >> 3) % NUG
            if i == 0:
                p = 18 if isk else 20
                g(f's_lshl_b32 {S_T}, {S_R}, 23\ns_add_u32 s56, s{p}, {S_T}\ns_addc_u32 s57, s{p + 1}, 0\ns_mov_b32 s58, 0x800000')
                g(f's_add_u32 s101, {S_GU}, {1024 - 64 * (NUG - u)}\ns_and_b32 s101, s101, 1023\ns_lshl_b32 s101, s101, 13\ns_add_u32 {S_T}, s101, 4096')
            off = ((i >> 1) & 1) * 2048 + (i & 1) * 128 if isk else (i & 3) * 1024
            g(f'buffer_load_dwordx4 {vr(SLOT(0) + 4 * n, 4)}, v{GK if isk else GV}, {S_A}, {S_T if i >= 4 else "s101"} offen offset:{off} nt')
        return
    gq = '\n'.join(f'buffer_load_dwordx4 {vr(Q0 + 4 * i, 4)}, v{LA}, {S_WS}, 0 offen offset:{(i >> 1) * 256 + (i & 1) * 16} sc1' for i in range(4))

    def gq_addr():
        g(f's_lshl_b32 {S_T}, {S_R}, 12\ns_add_u32 {S_T}, {S_T}, {QB}')
        g.bits(LA, 0, [(0, 3, 512), (3, 1, 128), (4, 2, 32)], GA, S_T)
    if mode == 'g_q':
        gq_addr()
        g.vmop(gq, 'gq')
        return
    if mode == 'g_compute':
        g.vmwait('gq')
        poll(g, gq, range(Q0, Q0 + 16), T2, 8, preloaded=True, mask=0xffff)
        for i in range(8):
            g(f'v_perm_b32 v{Q0 + i}, v{Q0 + 2 * i + 1}, v{Q0 + 2 * i}, {S_HI}')
        mailbox()
        g.bits(LA, 0, [(0, 4, 64)], T2)
        g(f'v_mov_b32 v{VSC}, 0x3db504f3\nv_mov_b32 v{VMAX}, 0xff800000')
        for u in range(NUG):
            qk(u)
        softmax()
        for u in range(NUG):
            probs(u, NUG - 1)
        epi_addr()
        for u in range(NUG):
            pv(u)
        g('s_waitcnt lgkmcnt(0)\ns_barrier')
        stats()
        factor()
        g('s_nop 0')
        epilogue()
        g('s_barrier')
        return

    entry()
    GS = P['GS']
    order = list(range(96))
    if P['ILV']:
        order = list(range(32, 48))
        for i in range(16):
            order += [2 * i, 2 * i + 1, 48 + i]
        order += list(range(64, 96))
    last = lambda ids: max(order.index(i) for i in ids)
    depth = lambda n: P['DK1'] if n < P['NK1'] else (P['DK2'] if n < 48 else (P['DX'] if n < 64 else P['DV']))
    qsteps = list(range(P['QP0'] - 1, P['QG'] - 1, P['QPS']))
    st = dict(landed=-1, issued=-1, done=0)

    def land(n):
        if n > st['landed']:
            g.vmwait(n)
            st['landed'] = n

    def hint_flag():
        skip = only_wave(g, P['SW'])
        arrived(g, Q0 + 1, S_KV, C_A, 2 * SPL)
        g(skip + ':')
        st['hint'] = True

    W = [('q', -1, qget)]
    W += [('qk%d' % u, last(range(8 * u, 8 * u + 8)), lambda u=u: qk(u)) for u in ([0, 1, 4, 5, 2, 3] if P['ILV'] else range(NU))]
    W += [('sm', -1, softmax)]
    W += [('pr%d' % u, -1, lambda u=u: probs(u)) for u in range(NU)]
    W += [('st', -1, stats), ('rb', 63, lambda: (readback(), epi_addr(), lds_units()))]
    for u in range(4):
        if u == 3:
            W += [('fs', -1, factor)]
        W += [('pv%d' % u, 64 + 8 * u + 7, lambda u=u: ((g.stamp('a_landed') if u == 3 else None), pv(u)))]
    names = [w[0] for w in W]

    def work(budget, need=None):
        while st['done'] < len(W):
            forced = need is not None and st['done'] <= names.index(need)
            name, ld, act = W[st['done']]
            if not forced and (budget <= 0 or st['landed'] < ld or st['issued'] < P['QG'] - 1):
                return
            assert ld <= st['issued']
            land(ld)
            act()
            st['done'] += 1
            budget -= 1

    for n in range(0, 96, GS):
        d = depth(n)
        if n + GS - 1 >= d:
            land(n + GS - 1 - d)
        if n >= 64 and n % 8 == 0:
            work(0, ['qk1', 'qk2', 'qk3', 'pv0'][(n - 64) >> 3])
        for i in range(GS):
            load(order[n + i], n + i)
        m = n + GS - 1
        if n == 0:
            setup()
        st['issued'] = m
        if m == P['STPOS']:
            g.stamp('a_pos')
        if m >= 12 and not st.get('ep'):
            st['ep'] = True
            g.vmwait('ep')
            epoch_tag(g, T2 + 2)
        if m in qsteps:
            if m != qsteps[0]:
                land(m - P['QPS'] + 1)
            qstep()
        if m == P['HPOS']:
            work(0, 'st')
            skip = only_wave(g, P['SW'])
            arrive(g, Q0 + 1, S_KV, C_A)
            g(skip + ':')
        if m == P['RPOS']:
            skip = only_wave(g, P['SW'])
            g(f's_cmp_ge_u32 {S_CU}, {SPL - NMR}\ns_cbranch_scc1 {skip}_m')
            arrive(g, Q0 + 4, 0, C_R)
            g(f's_branch {skip}\n{skip}_m:')
            g(fread(Q0 + 4, S_KV, C_A))
            g(skip + ':')
        if st['landed'] > P['HPOS'] and not st.get('hint'):
            hint_flag()
        work(GS)
    assert (P['HPOS'] + 1) % GS == 0 and (P['RPOS'] + 1) % GS == 0 and P['QP0'] % GS == 0 and P['QPS'] % GS == 0
    if not st.get('hint'):
        work(0, 'pv2')
        land(P['HPOS'] + 1)
        hint_flag()
    work(0, 'fs')
    land(95)
    skip = only_wave(g, P['SW'])
    g(f'v_mov_b32 v{Q0 + 5}, 0\ns_mov_b64 exec, 1\nds_write_b32 v{Q0 + 5}, v{Q0 + 4} offset:{RK}\ns_mov_b64 exec, -1')
    g(skip + ':')
    work(0, 'pv3')

    epilogue()
    g.stamp('a_pub', (0, 1, 2, 3))
    g(f's_mul_i32 s14, {S_R}, {NMR}\ns_add_u32 s14, s14, {S_CU}\ns_sub_u32 s14, s14, {SPL - NMR}')
    g(f'v_mov_b32 v8, 0\nds_read_b32 v8, v8 offset:{RK}\ns_waitcnt lgkmcnt(0)\nv_readfirstlane_b32 s15, v8')
    g(f's_cmp_ge_u32 {S_CU}, {SPL - NMR}\ns_cbranch_scc1 L_mlp')
    g('s_mov_b32 s14, s15\ns_cmp_lt_u32 s14, 128\ns_cbranch_scc1 L_late')
    write_stamps(g)
    g('s_endpgm')


def build(stamps=False):
    g = G(stamps)
    ref = open(REF).read()
    g.L.append(ref[:ref.index('; Override launch')].rstrip())
    g.L.append('; @launch grid=(%d,1,1) block=(512,1,1) lds=%d' % (NWG, LDS_TOTAL))
    g.L.append('.amdgcn_target "amdgcn-amd-amdhsa--gfx950"\n.text\n.globl %s_kernel\n.p2align 8\n.type %s_kernel,@function' % (NAME, NAME))
    g.L.append('%s_kernel:' % NAME)
    g.stamp('start', (0, 1, 2, 3))
    g(f's_cmp_ge_u32 s2, {NWG}\ns_cbranch_scc1 L_exit')
    g(f'''s_load_dwordx16 s[16:31], s[0:1], 0
          s_load_dwordx8 s[32:39], s[0:1], 64
          s_load_dwordx4 s[40:43], s[0:1], 96
          s_load_dwordx2 s[44:45], s[0:1], 112
          v_lshrrev_b32 v1, 6, v0
          v_and_b32 v0, 63, v0
          v_readfirstlane_b32 s3, v1
          s_mov_b32 {S_LO}, 0x05040100
          s_mov_b32 {S_HI}, 0x07060302
          s_mov_b32 {S_MASK}, 0xffff0000''')
    g(f's_cmp_lt_u32 s2, {NG}\ns_cbranch_scc1 L_proj')
    n0 = g.nst
    attention(g)
    n1 = g.nst
    armed = getattr(g, 'padarmed', False)
    latem(g)
    g.padarmed = armed
    g.nst = n1 + (1 if g.stamps else 0)
    mlp(g)
    g.nst = n0
    g.padarmed = bool(PADAT) and PADAT[0] == 'start'
    proj(g)
    g('L_exit:\ns_endpgm')
    g('.fill 2048, 4, 0xbf800000')
    g.L.append('''.section .rodata,"a"
.p2align 6
.amdhsa_kernel %s_kernel
  .amdhsa_next_free_vgpr 256
  .amdhsa_next_free_sgpr 102
  .amdhsa_accum_offset 256
  .amdhsa_group_segment_fixed_size 0
  .amdhsa_kernarg_size 120
  .amdhsa_user_sgpr_count 2
  .amdhsa_user_sgpr_kernarg_segment_ptr 1
  .amdhsa_system_sgpr_workgroup_id_x 1
.end_amdhsa_kernel''' % NAME)
    return '\n'.join(g.L) + '\n'


if __name__ == '__main__':
    out = sys.argv[1]
    for a in sys.argv[2:]:
        if a.startswith('PADAT='):
            PADAT.append(a[6:])
        elif '=' in a:
            k, v = a.split('=')
            assert k in P, k
            P[k] = int(v)
    open(out, 'w').write(build(stamps='--stamps' in sys.argv))
```

```python
import sys
NAME = 'adaLN_cond__gqa_block_cached__mixer_channel_mlp__decode'
REF = 'cdna_kernels/%s.s.ref' % NAME

NG = 64
SPL = 24
NMR = 7
NA = 8 * SPL
NWG = NG + NA
WPR = SPL * 8
NU = 6

FLAGS = 0x2000
QB, STATS, X1, MODP, MODL = 0x8000, 0x10000, 0x60000, 0x20000, 0x40000
MBA, MBB, MBC = 0x100000, 0x200000, 0x300000
SLOTS = 32
MBA_ST = 2 * SLOTS * 256
WS_SIZE = 0x400000
SPIN = 1 << 18
C_A, C_B, C_R = 0, 16, 128
TMASK = 0xff

P = dict(MSL=4, LSL=8, QSL=8, ASL=2, GS=1, DK1=8, NK1=28, DK2=8, DV=12, QP0=40, QPS=8, SLEEP=0, PH=64, QG=64, DX=8, TLB=0, PRE=0, WSOFF=0, LGATE=-1, LIGHT=4, RANK=0, P1SL=8, P1TH=56, GBG=0, LQ=1, MLS=2, GJ=1, GH=1, A5W=4, LSKIP=0, XL=0, XW=0, XG=0, XP=0, XS=0, P1K=0, P2TH=16, P2SL=2, W2MISS=16, W2X=0, W2TH=0, NAT=1, BW=1, REP=1, LNM=1, PFA=2, PFG=2, GAE=1, NOQ=0, QW=7, SW=4, GE=0, NUG=0, RPOS=94, ILV=0, ROT=1, MW=4, HPOS=90, ST=0, DBGST=-1, PADTO=0, PADWG=-1, STPOS=-1)

S_WS, S_DBG, S_A, S_B = 's[48:51]', 's[52:55]', 's[56:59]', 's[60:63]'
S_LO, S_HI, S_MASK, S_SPIN = 's64', 's65', 's66', 's67'
S_TAG, S_EPO, S_T16 = 's26', 's27', 's1'
DPP = 'row_mask:0xf bank_mask:0xf'


def vr(a, n):
    return 'v[%d:%d]' % (a, a + n - 1)


PADAT = []


class G:
    def __init__(self, stamps=False):
        self.vm = []
        self.L = []
        self.stamps = stamps
        self.nlabel = 0
        self.nst = 0

    def __call__(self, s):
        for line in s.strip('\n').split('\n'):
            line = line.strip()
            if line:
                self.L.append(line if line.endswith(':') else '    ' + line)

    def label(self, p='L'):
        self.nlabel += 1
        return '%s_%d' % (p, self.nlabel)

    def stamp(self, name, sets=(0,)):
        if PADAT and name == PADAT[0]:
            self('s_memrealtime s[90:91]')
            self.padarmed = True
        if self.stamps and P['ST'] in sets:
            k = self.nst
            self.nst += 1
            assert k < 13 and (k < 11 or name[0] in 'gr'), name
            self('s_memrealtime s[%d:%d] ; stamp %d %s' % (70 + 2 * k, 71 + 2 * k, k, name))

    def vmop(self, text, tag):
        for line in text.strip().split('\n'):
            self(line)
            self.vm.append(tag)

    def vmwait(self, *tags):
        idx = [i for i, t in enumerate(self.vm) if t in tags]
        if not idx:
            return
        n = len(self.vm) - 1 - idx[-1]
        assert n <= 63
        self('s_waitcnt vmcnt(%d)' % n)
        self.vm = self.vm[idx[-1] + 1:]

    def nop(self, n):
        while n > 0:
            k = min(n, 16)
            self('s_nop %d' % (k - 1))
            n -= k

    def bits(self, dst, src, fields, tmp, add=None):
        first = True
        for (lo, n, mul) in fields:
            t = dst if first else tmp
            if lo == 0:
                self(f'v_and_b32 v{t}, {(1 << n) - 1}, v{src}')
            else:
                self(f'v_bfe_u32 v{t}, v{src}, {lo}, {n}')
            pw = mul & (mul - 1) == 0
            sh = mul.bit_length() - 1
            if first:
                if mul != 1:
                    self(f'v_lshlrev_b32 v{dst}, {sh}, v{dst}' if pw else f'v_mul_u32_u24 v{dst}, {mul}, v{dst}')
            elif mul == 1:
                self(f'v_add_u32 v{dst}, v{dst}, v{tmp}')
            elif pw:
                self(f'v_lshl_add_u32 v{dst}, v{tmp}, {sh}, v{dst}')
            else:
                self(f'v_mul_u32_u24 v{tmp}, {mul}, v{tmp}\nv_add_u32 v{dst}, v{dst}, v{tmp}')
            first = False
        if add not in (None, 0):
            self(f'v_add_u32 v{dst}, {add}, v{dst}')

    def setexec(self, m):
        if m == -1:
            self('s_mov_b64 exec, -1')
        elif m < (1 << 31):
            self('s_mov_b64 exec, 0x%x' % m)
        else:
            self('s_mov_b32 exec_lo, 0x%x\ns_mov_b32 exec_hi, 0x%x' % (m & 0xffffffff, m >> 32))


def rep16(m):
    return m * 0x0001000100010001


def check(g, regs, tmp, mask=TMASK):
    regs = list(regs)
    g(f'v_bitop3_b32 v{tmp}, v{regs[0]}, v{regs[1]}, {S_EPO} bitop3:0x7e')
    for r in regs[2:]:
        g(f'v_bitop3_b32 v{tmp}, v{tmp}, v{r}, {S_EPO} bitop3:0xf6')
    if mask == 0xffff:
        g(f'v_cmp_ne_u16 vcc, 0, v{tmp}')
        return
    if mask != -1:
        g(f'v_and_b32 v{tmp}, {mask}, v{tmp}')
    g(f'v_cmp_ne_u32 vcc, 0, v{tmp}')


def tagmask(g, vm):
    g(f'v_mov_b32 v{vm}, 0x{0xffffffff ^ TMASK:x}')


def tag(g, regs, vm):
    for r in regs:
        g(f'v_and_or_b32 v{r}, v{r}, v{vm}, {S_TAG}')


def epoch_load(reg):
    return f'buffer_load_dword v{reg}, off, {S_WS}, 0 sc1'


def epoch_tag(g, reg):
    g(f'''v_readfirstlane_b32 {S_EPO}, v{reg}
          s_mul_i32 {S_TAG}, {S_EPO}, 0x9e3779b1
          s_lshr_b32 {S_TAG}, {S_TAG}, 12
          s_or_b32 {S_TAG}, {S_TAG}, 1
          s_add_u32 {S_EPO}, {S_EPO}, {S_TAG}
          s_and_b32 {S_TAG}, {S_EPO}, {TMASK}
          s_and_b32 {S_T16}, {S_EPO}, 0xffff''')


def poll(g, loads, regs, tmp, sleep=0, preloaded=False, mask=TMASK):
    lp, done, chk = g.label('L_poll'), g.label('L_ok'), g.label('L_chk')
    g(f's_mov_b32 {S_SPIN}, {SPIN}')
    if preloaded:
        g(f's_branch {chk}')
    g(lp + ':')
    g(loads)
    g('s_waitcnt vmcnt(0)')
    if preloaded:
        g(chk + ':')
    check(g, regs, tmp, mask)
    g(f's_cbranch_vccz {done}')
    if sleep:
        g(f's_sleep {sleep}')
    g(f's_sub_u32 {S_SPIN}, {S_SPIN}, 1\ns_cbranch_scc0 {lp}')
    g(done + ':')


def faddr(soff, off):
    return f's_lshl_b32 s98, {soff}, 8\ns_add_u32 s98, s98, {FLAGS + 256 * off}\n'


def fread(reg, soff, off):
    return faddr(soff, off) + f'buffer_load_dword v{reg}, off, {S_WS}, s98 sc1'


def fpoll(g, reg, soff, off, sleep, preloaded=False):
    lp, done, chk = g.label('L_fpoll'), g.label('L_fok'), g.label('L_fchk')
    g(f's_mov_b32 {S_SPIN}, {SPIN}')
    if preloaded:
        g(f's_branch {chk}')
    g(lp + ':')
    g(fread(reg, soff, off) + '\ns_waitcnt vmcnt(0)')
    if preloaded:
        g(chk + ':')
    g(f'v_cmp_ne_u32 vcc, {S_EPO}, v{reg}\ns_cbranch_vccz {done}')
    if sleep:
        g(f's_sleep {sleep}')
    g(f's_sub_u32 {S_SPIN}, {S_SPIN}, 1\ns_cbranch_scc0 {lp}')
    g(done + ':')


def fwait(g, reg, soff, off, sleep):
    skip = only_wave(g, 0)
    fpoll(g, reg, soff, off, sleep)
    g(skip + ':')
    g('s_barrier')


def arrive(g, reg, soff, off):
    g(f'v_mov_b32 v{reg}, 1\ns_mov_b64 exec, 1\nbuffer_atomic_add v{reg}, off, {S_DBG}, {soff} offset:{off} sc0 sc1\ns_mov_b64 exec, -1')


def arrived(g, reg, soff, off, n):
    skip = g.label('L_notlast')
    g(f'v_readfirstlane_b32 s99, v{reg}\ns_cmp_lg_u32 s99, {n - 1}\ns_cbranch_scc1 {skip}')
    g(faddr(soff, off) + f'v_mov_b32 v{reg}, {S_EPO}\ns_mov_b64 exec, 1\nbuffer_store_dword v{reg}, off, {S_WS}, s98 sc1\ns_mov_b64 exec, -1')
    g(skip + ':')


def srd(g, s, lo, size):
    base = int(s[2:s.index(':')])
    if lo == 44 and P['WSOFF']:
        g(f's_add_u32 s{base}, s44, {P["WSOFF"] << 20}\ns_addc_u32 s{base + 1}, s45, 0\ns_mov_b32 s{base + 2}, 0x{size:x}\ns_mov_b32 s{base + 3}, 0x20000')
        return
    g(f's_mov_b32 s{base}, s{lo}\ns_mov_b32 s{base + 1}, s{lo + 1}\ns_mov_b32 s{base + 2}, 0x{size:x}\ns_mov_b32 s{base + 3}, 0x20000')


def only_wave(g, w):
    skip = g.label('L_skip')
    g(f's_cmp_lg_u32 s3, {w}\ns_cbranch_scc1 {skip}')
    return skip


def write_stamps(g):
    if PADAT and getattr(g, 'padarmed', False):
        l = g.label('L_padat')
        g(f'{l}:\ns_memrealtime s[4:5]\ns_waitcnt lgkmcnt(0)\ns_sub_u32 s4, s4, s90\ns_sleep 4\ns_cmp_lt_u32 s4, 6000\ns_cbranch_scc1 {l}')
    if not g.stamps:
        return
    g('s_waitcnt lgkmcnt(0)')
    skip = only_wave(g, 0)
    g('s_mov_b64 exec, 1')
    if P['DBGST'] >= 0:
        g(f's_cmp_lg_u32 s2, {P["DBGST"]}\ns_cbranch_scc1 {skip}')
        for k in range(1, min(g.nst, 12)):
            g(f's_sub_u32 s4, s{70 + 2 * k}, s70\nv_mov_b32 v2, s4')
            g(f'buffer_store_dword v2, off, {S_DBG}, 0 offset:{16 + 4 * k}')
        g(skip + ':')
        return
    g('s_lshl_b32 s4, s2, 8\ns_add_u32 s4, s44, s4\ns_addc_u32 s5, s45, 0')
    g('s_add_u32 s4, s4, %d\ns_addc_u32 s5, s5, 0' % (255 << 20))
    g('v_mov_b32 v1, 0')
    for k in range(g.nst):
        g(f'v_mov_b32 v2, s{70 + 2 * k}\nv_mov_b32 v3, s{71 + 2 * k}')
        g(f'global_store_dwordx2 v1, v[2:3], s[4:5] offset:{8 * k}')
        g('s_nop 1')
    g(skip + ':')


def prefetch_code(g, label, nkb8, vtmp, vdst, tag=None):
    pc = g.label('L_pc')
    g('s_getpc_b64 s[98:99]')
    if label:
        g(f'{pc}:\ns_add_u32 s98, s98, {label}-{pc}\ns_addc_u32 s99, s99, 0')
    g('s_and_b32 s98, s98, 0xffffff80')
    g(f's_lshl_b32 s97, s3, 10\nv_lshl_add_u32 v{vtmp}, v0, 4, s97')
    for i in range(nkb8):
        if i:
            g(f'v_add_u32 v{vtmp}, 8192, v{vtmp}')
        t = f'global_load_dwordx4 {vr(vdst, 4)}, v{vtmp}, s[98:99]'
        g.vmop(t, tag) if tag else g(t)


BLK = lambda i: 64 + 32 * i
UA, UB, UC = 0, 2, 4
ACC = 32
KW, NB, NW, NR, NO, KB, TID = 1, 2, 3, 4, 5, 6, 7
T = 24


class Lds:
    def __init__(self, base):
        self.ACTS, self.ACTH, self.RED = base, base + 4352, base + 8704
        self.OUTV = base + 17408
        self.PART = base + 17664
        self.STAT = base + 18688
        self.END = base + 19200


ABS = 2048 + 128


def nstep():
    return 1 if P['NAT'] else 64


def nvoff(g, dst, rs, tid=TID, tmp=T + 7):
    g.bits(dst, tid, [(3, 6, rs * 8 if P['NAT'] else rs), (0, 3, 16)], tmp)


def nload(g, unit, ptr, size, rs, s_col, voff, kbs=(0, 1), tag=None):
    srd(g, S_A, ptr, size)
    for kb in kbs:
        g(f's_add_u32 s4, {s_col}, {kb * 512 * rs}')
        for t in range(8):
            g.vmop(f'buffer_load_dwordx4 {vr(BLK(unit + kb) + 4 * t, 4)}, v{voff}, {S_A}, s4 offen nt', (tag, kb))
            if t < 7:
                g(f's_add_u32 s4, s4, {nstep() * rs}')


def kload(g, unit, ptr, size, s_idx, voff, rowf, tag, s_xor=None):
    srd(g, S_A, ptr, size)
    g(f's_lshl_b32 s5, {s_idx}, 17')
    for kb in range(2):
        for t in range(8):
            g(f's_add_u32 s4, s5, {rowf(kb, t) * 2048}')
            if s_xor:
                g(f's_xor_b32 s4, s4, {s_xor}')
            g.vmop(f'buffer_load_dwordx4 {vr(BLK(unit + kb) + 4 * t, 4)}, v{voff}, {S_A}, s4 offen nt', (tag, kb))


def transpose(g, blk, T=T):
    b = BLK(blk)
    for p in range(4):
        a, c = b + 8 * p + p, b + 8 * p + 4 + p
        g(f'v_perm_b32 v{T}, v{c}, v{a}, {S_LO}\nv_perm_b32 v{c}, v{c}, v{a}, {S_HI}\nv_mov_b32 v{a}, v{T}')
    for p in range(4):
        for w in range(p + 1, 4):
            xa, xb = b + 8 * p + w, b + 8 * p + 4 + w
            ya, yb = b + 8 * w + p, b + 8 * w + 4 + p
            g(f'v_perm_b32 v{T}, v{xb}, v{xa}, {S_LO}\nv_perm_b32 v{T + 1}, v{xb}, v{xa}, {S_HI}')
            g(f'v_perm_b32 v{xa}, v{yb}, v{ya}, {S_LO}\nv_perm_b32 v{xb}, v{yb}, v{ya}, {S_HI}')
            g(f'v_mov_b32 v{ya}, v{T}\nv_mov_b32 v{yb}, v{T + 1}')


def mfmas(g, unit, b0, b1):
    for kb, bop in ((0, b0), (1, b1)):
        if kb == 1:
            g('s_waitcnt lgkmcnt(0)')
        for j in range(8):
            d = vr(ACC + 4 * j, 4)
            g(f'v_mfma_f32_16x16x32_bf16 {d}, {vr(BLK(unit + kb) + 4 * j, 4)}, {vr(bop, 4)}, {d if kb else 0}')


def common_addr(g, L, kperm):
    K0B = T + 6
    g(f's_lshl_b32 s4, s3, 6\nv_add_u32 v{TID}, s4, v0')
    g.bits(K0B, TID, [(3, 6, 64), (0, 2, 16), (2, 1, 8)], T)
    if P['NAT']:
        g.bits(KW, K0B, [(11, 1, ABS), (0, 11, 1)], T)
        g.bits(NB, TID, [(0, 1, ABS), (6, 3, 128), (4, 2, 32), (1, 1, 16)], T)
    else:
        g.bits(KW, K0B, [(11, 1, ABS), (4, 3, 256), (10, 1, 128), (1, 3, 16), (7, 3, 2)], T)
        g.bits(NB, TID, [(0, 1, ABS), (6, 3, 256), (4, 2, 32), (1, 1, 16)], T)
    g.bits(NW, TID, [(6, 3, 1088), (1, 1, 544), (0, 1, 256), (2, 2, 32), (4, 1, 16)], T, L.RED)
    g.bits(NR, TID, [(0, 2, 544), (2, 7, 4)], T, L.RED)
    if kperm:
        g.bits(NO, TID, [(8, 1, 128), (4, 1, 64), (5, 1, 32), (7, 1, 16), (2, 2, 4), (6, 1, 2)], T, L.OUTV)
    else:
        g.bits(NO, TID, [(8, 1, 128), (2, 3, 16), (5, 2, 4), (7, 1, 2)], T, L.OUTV)
    g.bits(KB, TID, [(0, 1, 128), (4, 2, 16)], T, L.OUTV)


def nsplit(g, unit, act, half=None):
    if half is None:
        g(f'ds_read_b128 {vr(T, 4)}, v{NB} offset:{act}\nds_read_b128 {vr(T + 4, 4)}, v{NB} offset:{act + (1024 if P["NAT"] else 128)}')
        g('s_waitcnt lgkmcnt(1)')
        mfmas(g, unit, T, T + 4)
    else:
        g(f'ds_read_b128 {vr(T, 4)}, v{half} offset:{act}\ns_waitcnt lgkmcnt(0)')
        for j in range(8):
            g(f'v_mfma_f32_16x16x32_bf16 {vr(ACC + 4 * j, 4)}, {vr(BLK(unit) + 4 * j, 4)}, {vr(T, 4)}, 0')
    for dd in range(1, 4):
        g.setexec(rep16(0xf << (4 * dd)))
        if dd != 2:
            g.nop(2)
        for i in range(4):
            g(f'v_mov_b64 {vr(ACC + 2 * i, 2)}, {vr(ACC + 8 * dd + 2 * i, 2)}')
    g.setexec(0xcccccccc33333333)
    g(f'ds_write_b128 v{NW}, {vr(ACC, 4)}\nds_write_b128 v{NW}, {vr(ACC + 4, 4)} offset:128')
    g.setexec(-1)
    g('s_waitcnt lgkmcnt(0)\ns_barrier')
    for k in range(4):
        g(f'ds_read_b32 v{T + k}, v{NR} offset:{k * 4 * 544}')
    g('s_waitcnt lgkmcnt(2)')
    g(f'v_add_f32 v{T}, v{T}, v{T + 1}')
    g('s_waitcnt lgkmcnt(0)')
    g(f'v_add_f32 v{T + 2}, v{T + 2}, v{T + 3}\nv_add_f32 v{T}, v{T}, v{T + 2}')
    g.nop(2)
    g(f'v_add_f32_dpp v{T}, v{T}, v{T} quad_perm:[1,0,3,2] {DPP}')
    g.nop(2)
    g(f'v_add_f32_dpp v{T}, v{T}, v{T} quad_perm:[2,3,0,1] {DPP}')


def actwrite(g, p, act):
    if P['NAT']:
        g(f'ds_write_b64 v{KW}, {vr(p, 2)} offset:{act}')
        return
    g(f'ds_write_b16 v{KW}, v{p} offset:{act}\nds_write_b16_d16_hi v{KW}, v{p} offset:{act + 16}')
    g(f'ds_write_b16 v{KW}, v{p + 1} offset:{act + 32}\nds_write_b16_d16_hi v{KW}, v{p + 1} offset:{act + 48}')


def unpack2(g, d, s):
    g(f'v_lshlrev_b32 v{d}, 16, v{s}\nv_and_b32 v{d + 1}, {S_MASK}, v{s}')


def unpack(g, d, s):
    unpack2(g, d, s)
    unpack2(g, d + 2, s + 1)


def pack(g, t, d):
    g(f'v_cvt_pk_bf16_f32 v{t}, v{d}, v{d + 1}\nv_cvt_pk_bf16_f32 v{t + 1}, v{d + 2}, v{d + 3}')


def round4(g, d, t):
    pack(g, t, d)
    unpack(g, d, t)


def round2(g, a):
    g(f'v_cvt_pk_bf16_f32 v{a + 1}, v{a}, v{a + 1}')
    unpack2(g, a, a + 1)


def pk4(g, op, d, a, b):
    g(f'{op} {vr(d, 2)}, {vr(a, 2)}, {vr(b, 2)}\n{op} {vr(d + 2, 2)}, {vr(a + 2, 2)}, {vr(b + 2, 2)}')


def layernorm(g, x, sw, sr, off, last_packed=False):
    a, b = T + 4, T + 5
    g(f'v_add_f32 v{a}, v{x}, v{x + 1}\nv_mul_f32 v{b}, v{x}, v{x}')
    g(f'v_add_f32 v{T}, v{x + 2}, v{x + 3}\nv_fmac_f32 v{b}, v{x + 1}, v{x + 1}')
    g(f'v_add_f32 v{a}, v{a}, v{T}\nv_fmac_f32 v{b}, v{x + 2}, v{x + 2}\nv_fmac_f32 v{b}, v{x + 3}, v{x + 3}')
    for i, ctl in enumerate(['row_ror:8 ' + DPP, 'row_ror:4 ' + DPP, 'row_ror:2 ' + DPP, 'row_ror:1 ' + DPP,
                             'row_bcast:15 row_mask:0xa bank_mask:0xf', 'row_bcast:31 row_mask:0xc bank_mask:0xf']):
        if i:
            g('s_nop 0')
        g(f'v_add_f32_dpp v{a}, v{a}, v{a} {ctl}')
        if i == 0:
            g('s_nop 0')
        g(f'v_add_f32_dpp v{b}, v{b}, v{b} {ctl}')
    g.setexec(1 << 63)
    g(f'ds_write_b64 v{sw}, {vr(a, 2)} offset:{off}')
    g.setexec(-1)
    g('s_waitcnt lgkmcnt(0)\ns_barrier')
    g(f'ds_read_b128 {vr(T, 4)}, v{sr} offset:{off}\nds_read_b128 {vr(T + 4, 4)}, v{sr} offset:{off + 16}')
    g('s_waitcnt lgkmcnt(0)')
    pk4(g, 'v_pk_add_f32', T, T, T + 4)
    g(f'v_pk_add_f32 {vr(a, 2)}, {vr(T, 2)}, {vr(T + 2, 2)}')
    g(f'v_mul_f32 v{a}, 0x3a800000, v{a}\nv_mul_f32 v{b}, 0x3a800000, v{b}')
    g(f'v_fma_f32 v{b}, -v{a}, v{a}, v{b}\nv_max_f32 v{b}, 0, v{b}')
    round2(g, a)
    g(f'v_add_f32 v{b}, 0x3727c5ac, v{b}')
    g(f'v_cvt_pk_bf16_f32 v{b}, v{b}, v{b}\nv_lshlrev_b32 v{b}, 16, v{b}')
    g(f'v_sqrt_f32 v{b}, v{b}')
    for i in range(4):
        g(f'v_sub_f32 v{x + i}, v{x + i}, v{a}')
    g(f'v_cvt_pk_bf16_f32 v{b}, v{b}, v{b}\nv_lshlrev_b32 v{b}, 16, v{b}')
    g(f'v_rcp_f32 v{b}, v{b}')
    round4(g, x, T + 6)
    for i in range(4):
        g(f'v_mul_f32 v{x + i}, v{x + i}, v{b}')
    if last_packed:
        pack(g, T + 6, x)
    else:
        round4(g, x, T + 6)


def blocksum6(g, r, sw6, sr6, off, out):
    g.nop(1)
    for i in (0, 2, 4):
        g(f'v_permlane32_swap_b32 v{r + i}, v{r + i + 1}')
    for i in (0, 2, 4):
        g(f'v_add_f32 v{r + i}, v{r + i}, v{r + i + 1}')
    g(f'v_mov_b32 v{r + 5}, v{r + 4}\nv_permlane16_swap_b32 v{r}, v{r + 2}\nv_add_f32 v{r}, v{r}, v{r + 2}')
    g(f'v_permlane16_swap_b32 v{r + 4}, v{r + 5}\nv_add_f32 v{r + 4}, v{r + 4}, v{r + 5}')
    for i, sh in enumerate((8, 4, 2, 1)):
        if i:
            g('s_nop 0')
        g(f'v_add_f32_dpp v{r}, v{r}, v{r} row_ror:{sh} {DPP}')
        if i == 0:
            g('s_nop 0')
        g(f'v_add_f32_dpp v{r + 4}, v{r + 4}, v{r + 4} row_ror:{sh} {DPP}')
    g(f'ds_write_b32 v{sw6}, v{r} offset:{off}\nds_write_b32 v{sw6}, v{r + 4} offset:{off + 64}')
    g('s_waitcnt lgkmcnt(0)\ns_barrier')
    for i, o in enumerate((0, 16, 32, 48, 64, 96)):
        g(f'ds_read_b128 {vr(out + 4 * i, 4)}, v{sr6} offset:{off + o}')
    for i in range(6):
        g(f's_waitcnt lgkmcnt({5 - i})')
        g(f'v_pk_add_f32 {vr(out + 4 * i, 2)}, {vr(out + 4 * i, 2)}, {vr(out + 4 * i + 2, 2)}')
    for i in range(6):
        g(f'v_add_f32 v{out + i}, v{out + 4 * i}, v{out + 4 * i + 1}')


def rstd(g, mean, var):
    g(f'v_max_f32 v{var}, 0, v{var}')
    round2(g, mean)
    g(f'v_add_f32 v{var}, 0x3727c5ac, v{var}')
    g(f'v_cvt_pk_bf16_f32 v{var}, v{var}, v{var}\nv_lshlrev_b32 v{var}, 16, v{var}\nv_sqrt_f32 v{var}, v{var}\ns_nop 0')
    g(f'v_cvt_pk_bf16_f32 v{var}, v{var}, v{var}\nv_lshlrev_b32 v{var}, 16, v{var}\nv_rcp_f32 v{var}, v{var}')


def ksplit_out(g, unit, po, mb):
    g(f'ds_read_b128 {vr(T, 4)}, v{KB}\nds_read_b128 {vr(T + 4, 4)}, v{KB} offset:64')
    g('s_waitcnt lgkmcnt(1)')
    mfmas(g, unit, T, T + 4)
    tagmask(g, T)
    for j in range(1, 8):
        g.setexec(rep16(3 << (2 * j)))
        g(f'v_mov_b64 {vr(ACC, 2)}, {vr(ACC + 4 * j, 2)}\nv_mov_b64 {vr(ACC + 2, 2)}, {vr(ACC + 4 * j + 2, 2)}')
    g.setexec(-1)
    tag(g, range(ACC, ACC + 4), T)
    g(f'buffer_store_dwordx4 {vr(ACC, 4)}, v{po}, {S_WS}, {mb} offen sc1')


def publish32(g, L, s_off, bstride, exact):
    g(f'v_subrev_u32 v{T + 1}, {L.OUTV}, v{NO}\nv_lshlrev_b32 v{T + 1}, 1, v{T + 1}\nds_write_b32 v{T + 1}, v{T} offset:{L.PART}')
    g('s_waitcnt lgkmcnt(0)\ns_barrier')
    skip = only_wave(g, 0)
    if exact:
        g(f'v_lshlrev_b32 v{T + 4}, 3, v0\nds_read_b64 {vr(T + 6, 2)}, v{T + 4} offset:{L.PART}')
        g.bits(T + 5, 0, [(5, 1, bstride), (0, 5, 16)], T + 4)
        g(f'v_mov_b32 v{T + 1}, {S_EPO}\nv_mov_b32 v{T + 3}, {S_EPO}\ns_waitcnt lgkmcnt(0)')
        g(f'v_mov_b32 v{T}, v{T + 6}\nv_mov_b32 v{T + 2}, v{T + 7}')
    else:
        g(f'v_lshlrev_b32 v{T + 4}, 4, v0\nds_read_b128 {vr(T, 4)}, v{T + 4} offset:{L.PART}')
        g.bits(T + 5, 0, [(4, 1, bstride), (0, 4, 16)], T + 6)
        g('s_waitcnt lgkmcnt(0)\ns_mov_b32 exec_hi, 0')
    g(f'buffer_store_dwordx4 {vr(T, 4)}, v{T + 5}, {S_WS}, {s_off} offen sc1')
    g.setexec(-1)
    g('s_nop 0')
    g(skip + ':')


def qjob_issue(g, blk, s_job, voff, lg=2):
    g(f'''s_and_b32 s15, {s_job}, {(1 << lg) - 1}
          s_lshr_b32 s6, {s_job}, {lg}
          s_lshl_b32 s6, s6, 7
          s_mul_i32 s13, s15, {(1024 >> lg) * 12288}
          s_add_u32 s13, s13, s6
          s_add_u32 s13, s13, 4096''')
    nload(g, blk, 38, 1024 * 12288, 12288, 's13', voff, (0,), tag='qj')


def qjob_voff(g, voff, lg=2):
    nvoff(g, voff, 12288)
    if lg == 1:
        return
    g(f's_lshr_b32 s4, s3, 2\ns_lshl_b32 s4, s4, 24\nv_add_u32 v{voff}, s4, v{voff}')


def qjob_finish(g, L, blk, va, vm, lg=2):
    g(f's_lshl_b32 s12, s15, 15\ns_lshl_b32 s5, s6, 1\ns_add_u32 s12, s12, s5\ns_add_u32 s12, s12, {MODL}')
    if lg == 2:
        g(f's_lshr_b32 s4, s3, 2\ns_sub_u32 s4, s15, s4\ns_lshl_b32 s4, s4, 9\nv_add_u32 v{va}, s4, v{NB}')
    else:
        g(f's_lshl_b32 s4, s15, 10\nv_add_u32 v{va}, s4, v{NB}')
    tagmask(g, vm)
    g.vmwait(('qj', 0))
    g.stamp('l_land', (4,) if L.ACTS == MLP_LDS else ())
    transpose(g, blk)
    g.stamp('l_tr', (4,) if L.ACTS == MLP_LDS else ())
    nsplit(g, blk, L.ACTS, va)
    g.stamp('l_ns', (4,) if L.ACTS == MLP_LDS else ())
    tag(g, [T], vm)
    publish32(g, L, 's12', 16384, False)


def silu_image(g, L, src):
    unpack(g, ACC, src)
    for i in range(4):
        g(f'v_mul_f32 v{T + i}, 0xbfb8aa3b, v{ACC + i}')
    for i in range(4):
        g(f'v_exp_f32 v{T + i}, v{T + i}')
    for i in range(4):
        g(f'v_add_f32 v{T + i}, 1.0, v{T + i}')
    for i in range(4):
        g(f'v_rcp_f32 v{T + i}, v{T + i}')
    for i in range(4):
        g(f'v_mul_f32 v{T + i}, v{T + i}, v{ACC + i}')
    pack(g, T + 4, T)
    actwrite(g, T + 4, L.ACTS)


def proj(g):
    L = Lds(8448)
    Y, SB = 8, 12
    PO, RO, RL, OUTO = 8, 9, 10, 11
    WG, AO, AO3, OW = 12, 17, 18, 16
    WQO, WMO, SW, SR = 17, 18, 19, 23
    RX, RGA, RGB, RB2 = 20, 21, 22, 23
    JC, ODD = 's14', 's15'
    g.vm = []

    def reduce(mb, nprod, part):
        GR = ('s4', 's5', 's6', 's47')[:4 if part == 0 or P['GBG'] or P['LQ'] == 2 else 2]
        if part == 0 and P['GAE']:
            GR = ()
        for i, r in enumerate(GR):
            g(f's_mov_b32 {r}, {MODL + part * 4096 + 32768 * i}')
        if nprod < 64:
            g(f'v_mov_b32 v{T}, 0')
            skip = g.label('L_nored')
            g(f's_cmp_ge_u32 s3, {nprod // 8}\ns_cbranch_scc1 {skip}')
        l0, l1 = g.label('L_red0'), g.label('L_red1')
        ld = f'buffer_load_dwordx4 {vr(T, 4)}, v{RO}, {S_WS}, {mb} offen sc1'
        if GR:
            g(f's_cmp_eq_u32 s3, 0\ns_cbranch_scc1 {l0}')
            poll(g, ld, range(T, T + 4), T + 4)
            g(f's_branch {l1}\n{l0}:')
        poll(g, ld + ''.join(f'\nbuffer_load_dwordx2 {vr(ACC + 18 + 2 * i, 2)}, v{RGA}, {S_WS}, {r} offen sc1'
                             for i, r in enumerate(GR)),
             list(range(T, T + 4)) + list(range(ACC + 18, ACC + 18 + 2 * len(GR))), T + 4)
        g(l1 + ':')
        g.stamp('red_polled%d' % nprod, (1,))
        g(f'v_permlane32_swap_b32 v{T}, v{T + 2}\nv_permlane32_swap_b32 v{T + 1}, v{T + 3}')
        g(f'v_add_f32 v{T}, v{T}, v{T + 2}\nv_add_f32 v{T + 1}, v{T + 1}, v{T + 3}')
        g.nop(2)
        g(f'v_permlane16_swap_b32 v{T}, v{T + 1}\nv_add_f32 v{T}, v{T}, v{T + 1}')
        g.nop(2)
        g(f'v_add_f32_dpp v{T}, v{T}, v{T} row_ror:8 {DPP}')
        if nprod < 64:
            g(skip + ':')
        g(f'ds_write_b32 v{RL}, v{T}')
        g('s_waitcnt lgkmcnt(0)\ns_barrier')
        skip = only_wave(g, 0)
        g(f'v_and_b32 v{T + 2}, 15, v0\nv_lshlrev_b32 v{T + 2}, 3, v{T + 2}')
        for w in range(8):
            g(f'ds_read_b64 {vr(ACC + 2 * w, 2)}, v{T + 2} offset:{L.PART + 128 * w}')
        if len(GR) == 4:
            pk4(g, 'v_pk_add_f32', ACC + 18, ACC + 18, ACC + 22)
        if GR:
            g(f'v_pk_add_f32 {vr(ACC + 18, 2)}, {vr(ACC + 18, 2)}, {vr(ACC + 20, 2)}')
            round2(g, ACC + 18)
        else:
            unpack2(g, ACC + 18, RGB)
        return skip

    def reduce_sum():
        g('s_waitcnt lgkmcnt(4)')
        pk4(g, 'v_pk_add_f32', ACC, ACC, ACC + 4)
        g('s_waitcnt lgkmcnt(0)')
        pk4(g, 'v_pk_add_f32', ACC + 8, ACC + 8, ACC + 12)
        pk4(g, 'v_pk_add_f32', ACC, ACC, ACC + 8)
        g(f'v_pk_add_f32 {vr(T, 2)}, {vr(ACC, 2)}, {vr(ACC + 2, 2)}')
        round2(g, T)

    g('L_proj:')
    g(f's_and_b32 {JC}, s2, 7\ns_lshl_b32 {JC}, {JC}, 3\ns_lshr_b32 s4, s2, 3\ns_add_u32 {JC}, {JC}, s4')
    g(f's_lshl_b32 s4, s3, 6\nv_add_u32 v{TID}, s4, v0')
    g.bits(T + 6, TID, [(3, 6, 64), (0, 2, 16), (2, 1, 8)], T)
    nvoff(g, WMO, 12288)
    g(f'''s_and_b32 {ODD}, {JC}, 1
          s_lshr_b32 s6, {JC}, 1
          s_lshl_b32 s6, s6, 7
          s_mul_i32 s13, {ODD}, {512 * 12288}
          s_add_u32 s13, s13, s6
          s_lshl_b32 s7, {JC}, 7
          s_lshr_b32 s46, {JC}, 4
          s_lshl_b32 s46, s46, 2
          s_waitcnt lgkmcnt(0)''')
    srd(g, S_WS, 44, WS_SIZE)
    srd(g, S_DBG, 42, 256)
    g(f's_lshl_b32 s47, {ODD}, 15\ns_lshl_b32 s5, s6, 2\ns_add_u32 s47, s47, s5\ns_add_u32 s47, s47, {MODP}')
    g.vmop(epoch_load(RGB), 'in')
    srd(g, S_B, 36, 4096)
    g.vmop(f'buffer_load_dwordx2 {vr(SB, 2)}, v{T + 6}, {S_B}, 0 offen', 'in')
    srd(g, S_B, 16, 4096)
    g.vmop(f'buffer_load_dwordx2 {vr(SB + 2, 2)}, v{T + 6}, {S_B}, 0 offen', 'in')
    if P['PFG'] == 1:
        prefetch_code(g, None, 2, T, ACC + 4, 'in')
    if P['PFG'] == 2:
        skip = g.label('L_nopf')
        g(f's_cmp_ge_u32 s2, 8\ns_cbranch_scc1 {skip}')
        prefetch_code(g, None, 2, T, ACC + 4)
        g(skip + ':')
    nload(g, UA, 38, 1024 * 12288, 12288, 's13', WMO, (0,), tag='m1')
    common_addr(g, L, False)
    nvoff(g, WQO, 8192)
    g(f's_lshl_b32 s4, s3, 3\nv_mov_b32 v{SW}, s4\ns_and_b32 s4, s4, 32\nv_mov_b32 v{SR}, s4')
    g(f's_mul_i32 s8, {JC}, {MBA_ST}\ns_add_u32 s8, s8, {MBA}')
    g(f's_lshl_b32 s9, {JC}, 13\ns_add_u32 s10, s9, {MBC}\ns_add_u32 s9, s9, {MBB}')
    g(f's_lshl_b32 s11, {JC}, 7\ns_add_u32 s11, s11, {X1}')
    g.vmwait('in')
    epoch_tag(g, RGB)
    silu_image(g, L, SB)
    unpack(g, Y, SB + 2)
    layernorm(g, Y, SW, SR, L.STAT)
    nload(g, UB, 22, 1024 * 8192, 8192, 's7', WQO, (0,), tag='wq')
    g('s_waitcnt vmcnt(8)')
    transpose(g, UA)
    g(f's_lshl_b32 s4, {ODD}, {10 if P["NAT"] else 7}\nv_add_u32 v{T + 7}, s4, v{NB}')
    nsplit(g, UA, L.ACTS, T + 7)
    publish32(g, L, 's47', 16384, True)
    g.stamp('g_mod')
    nload(g, UB, 22, 1024 * 8192, 8192, 's7', WQO, (1,), tag='wq')
    MP = RGA
    g.bits(MP, TID, [(8, 1, 16384), (3, 5, 256), (0, 2, 64), (2, 1, 32)], T + 7, MODP)
    g('s_waitcnt vmcnt(8)')
    transpose(g, UB)
    g(f's_mov_b32 s4, 8192\ns_mov_b32 s5, 32768\ns_mov_b32 s12, {32768 + 8192}')
    mloads = '\n'.join(f'buffer_load_dwordx4 {vr(ACC + 4 * i, 4)}, v{MP}, {S_WS}, {("0", "s5", "s4", "s12")[i >> 1]} offen offset:{16 * (i & 1)} sc1'
                       for i in range(8))
    g(f's_waitcnt vmcnt({P["MW"]})')
    g(mloads)
    attention(g, 'g_addr')
    attention(g, 'g_issue', range(P['GE']))
    g(f's_waitcnt vmcnt({8 + P["GE"]})')
    transpose(g, UB + 1)
    g(f's_waitcnt vmcnt({P["GE"]})')
    poll(g, mloads, range(ACC + 1, ACC + 32, 2), T, P['MSL'], preloaded=True, mask=-1)
    g.vm = []
    g.stamp('g_modseen')
    for i in range(4):
        g(f'v_add_f32 v{T + i}, v{ACC + 16 + 2 * i}, v{ACC + 24 + 2 * i}')
    for i in range(4):
        g(f'v_add_f32 v{ACC + i}, v{ACC + 2 * i}, v{ACC + 8 + 2 * i}')
    round4(g, T, T + 4)
    for i in range(4):
        g(f'v_add_f32 v{T + i}, 1.0, v{T + i}')
    round4(g, T, T + 4)
    pk4(g, 'v_pk_mul_f32', Y, Y, T)
    round4(g, Y, T + 4)
    round4(g, ACC, T + 4)
    pk4(g, 'v_pk_add_f32', Y, Y, ACC)
    pack(g, T, Y)
    actwrite(g, T, L.ACTH)
    g('s_waitcnt lgkmcnt(0)\ns_barrier')
    nsplit(g, UB, L.ACTH)
    g(f's_lshl_b32 s12, s7, 1\ns_add_u32 s12, s12, {QB}')
    g(f'v_cvt_pk_bf16_f32 v{T}, v{T}, v{T}\nv_lshl_or_b32 v{T}, v{T}, 16, {S_T16}')
    publish32(g, L, 's12', 16384, False)
    g.stamp('g_q')

    attention(g, 'g_issue', range(P['GE'], 16 * P['NUG']))
    if P['NUG']:
        attention(g, 'g_q')
    assert not P['NUG'] and P['NAT']
    qjob_voff(g, WMO)
    qjob_issue(g, UA, JC, WMO)
    g.bits(T + 5, TID, [(4, 2, 4096), (6, 3, 256), (0, 4, 16)], T + 7)
    kload(g, UC, 24, 4096 * 2048, JC, T + 5, lambda kb, t: 32 * kb + (t & 3) * 8 + (t >> 2), 'wo')
    qjob_finish(g, L, UA, 8, 9)
    if P['GH']:
        assert P['LQ'] == 1 and P['GJ'] == 1 and not P['GBG']
        qjob_voff(g, WMO, 1)
        g(f's_add_u32 s47, {JC}, 32')
        qjob_issue(g, UA, 's47', WMO, 1)
        qjob_finish(g, L, UA, 8, 9, 1)
    if P['GJ'] > 1:
        assert P['LQ'] == 2 and not P['GBG']
        lp = g.label('L_gj')
        g(f's_add_u32 s47, {JC}, 64\n{lp}:')
        qjob_issue(g, UA, 's47', WMO)
        qjob_finish(g, L, UA, 8, 9)
        g(f's_add_u32 s47, s47, 64\ns_cmp_lt_u32 s47, {64 * P["GJ"]}\ns_cbranch_scc1 {lp}')
    if P['GBG']:
        g(f's_add_u32 s47, {JC}, 192')
        qjob_issue(g, UA, 's47', WMO)
        qjob_finish(g, L, UA, 8, 9)
    g(f's_and_b32 {ODD}, {JC}, 1')
    if P['NUG']:
        attention(g, 'g_compute')
        g.stamp('g_att')
        common_addr(g, L, False)
    g(f'v_lshlrev_b32 v{RO}, 4, v{TID}')
    g('s_waitcnt vmcnt(0)')
    g.vm = []
    transpose(g, UC)
    transpose(g, UC + 1)
    g.stamp('g_loaded')
    g(f's_lshr_b32 s4, {JC}, 1\ns_lshl_b32 s4, s4, 6\ns_lshl_b32 s5, {ODD}, 3\ns_add_u32 s4, s4, s5')
    g.bits(T, 0, [(1, 2, 16), (0, 1, 4)], T + 1, 's4')
    srd(g, S_B, 34, 2048)
    g(f'buffer_load_dword v{RB2}, v{T}, {S_B}, 0 offen')
    g(f'v_bfe_u32 v{T + 1}, v0, 3, 1\nv_lshlrev_b32 v{RGA}, 1, v{T}\nv_lshl_add_u32 v{RGA}, v{T + 1}, 14, v{RGA}')
    g(f'v_lshl_add_u32 v{OUTO}, v{T + 1}, 11, v{T}')
    srd(g, S_B, 16, 4096)
    g(f'buffer_load_dword v{RX}, v{OUTO}, {S_B}, 0 offen')
    if P['GAE']:
        skip = only_wave(g, 0)
        GR = ('s4', 's5', 's6', 's47')
        for i, r in enumerate(GR):
            g(f's_mov_b32 {r}, {MODL + 32768 * i}')
        poll(g, '\n'.join(f'buffer_load_dwordx2 {vr(ACC + 18 + 2 * i, 2)}, v{RGA}, {S_WS}, {r} offen sc1' for i, r in enumerate(GR)),
             range(ACC + 18, ACC + 26), T + 4, 16)
        pk4(g, 'v_pk_add_f32', ACC + 18, ACC + 18, ACC + 22)
        g(f'v_pk_add_f32 {vr(ACC + 18, 2)}, {vr(ACC + 18, 2)}, {vr(ACC + 20, 2)}\nv_cvt_pk_bf16_f32 v{RGB}, v{ACC + 18}, v{ACC + 19}')
        g(skip + ':')
    srd(g, S_B, 40, 4096)
    g.bits(RL, TID, [(6, 3, 128), (0, 1, 64), (4, 2, 16), (1, 2, 4)], T, L.PART)
    g.bits(PO, TID, [(3, 6, 8192), (0, 3, 16)], T)
    g(f's_add_u32 s12, s7, {MBB}')
    g.bits(AO, TID, [(8, 1, SLOTS * 256), (3, 3, 256), (6, 2, 64), (0, 3, 8)], T + 3)
    g.bits(OW, TID, [(6, 3, 32), (0, 3, 4), (5, 1, 2)], T + 3, L.OUTV)
    g.bits(T + 5, TID, [(8, 1, 128), (3, 3, 4)], T + 3)
    g('s_add_u32 s13, s8, 4096')
    g.bits(T + 2, 0, [(5, 1, 8192), (0, 5, 8)], T + 3)
    g(f's_lshr_b32 s4, {JC}, 1\ns_lshl_b32 s4, s4, 8\ns_add_u32 s4, s4, {STATS}')
    prefetch_code(g, 'L_proj_tail', 1, T + 6, ACC)
    if P['PRE'] == 1:
        g(f'buffer_load_dwordx4 {vr(ACC + 4, 4)}, v{RO}, {S_WS}, s9 offen sc1')
    g.stamp('g_ready')
    g('L_proj_tail:')
    if P['XG'] == 1:
        g('s_branch L_gend')
    NT = 4 if P['NUG'] else 3
    aloads = lambda d: '\n'.join(f'buffer_load_dwordx2 {vr(d + 2 * k, 2)}, v{AO}, {S_WS}, {"s8" if k < 2 else "s13"} offen offset:{2048 * (k & 1)} sc1'
                                 for k in range(NT))
    lp, ok = g.label('L_p1'), only_wave(g, 0)
    g(f's_mov_b32 {S_SPIN}, {SPIN}\n{lp}:')
    g(aloads(ACC + 8).split('\n')[P['P1K']] + '\ns_waitcnt vmcnt(0)')
    check(g, range(ACC + 8 + 2 * P['P1K'], ACC + 10 + 2 * P['P1K']), ACC)
    g(f's_bcnt1_i32_b64 s5, vcc\ns_cmp_le_u32 s5, {P["P1TH"]}\ns_cbranch_scc1 {ok}')
    g(f's_sleep {P["P1SL"]}\ns_sub_u32 {S_SPIN}, {S_SPIN}, 1\ns_cbranch_scc0 {lp}\n{ok}:\ns_barrier')
    g.stamp('g_hint', (0, 1))
    if P['PRE'] == 2:
        g(f'buffer_load_dwordx4 {vr(ACC + 4, 4)}, v{RO}, {S_WS}, s9 offen sc1')
    g(f'v_mov_b32 v{T}, 0xff800000\nv_mov_b32 v{T + 1}, 0')
    g.setexec(-1 if P['NUG'] else ((1 << SPL) - 1) * 0x100000001)
    poll(g, f'buffer_load_dwordx2 {vr(T, 2)}, v{T + 2}, {S_WS}, s4 offen sc1', [T, T + 1], T + 4, 2)
    g.setexec(-1)

    def red32(r, t, op):
        for sh in (8, 4, 2, 1):
            g.nop(2)
            g(f'{op}_dpp v{r}, v{r}, v{r} row_ror:{sh} {DPP}')
        g(f'v_mov_b32 v{t}, v{r}')
        g.nop(2)
        g(f'v_permlane16_swap_b32 v{r}, v{t}\n{op} v{r}, v{r}, v{t}')
    g(f'v_and_b32 v{T}, {S_MASK}, v{T}\nv_mov_b32 v{T + 2}, v{T}')
    red32(T + 2, T + 3, 'v_max_f32')
    g(f'v_sub_f32 v{T}, v{T}, v{T + 2}\nv_mul_f32 v{T}, 0x3fb8aa3b, v{T}\nv_exp_f32 v{T}, v{T}\ns_nop 0')
    g(f'v_mul_f32 v{T + 1}, v{T + 1}, v{T}')
    red32(T + 1, T + 3, 'v_add_f32')
    g(f'v_rcp_f32 v{T + 1}, v{T + 1}\ns_nop 0\nv_mul_f32 v{T}, v{T}, v{T + 1}')
    for k in range(4):
        g(f'ds_bpermute_b32 v{WG + k}, v{T + 5}, v{T} offset:{32 * k}')
    g('s_waitcnt lgkmcnt(0)')
    g.stamp('g_wgt', (0, 1))
    if P['P2TH'] < P['P1TH']:
        lp, ok = g.label('L_p1'), only_wave(g, 0)
        g(f's_mov_b32 {S_SPIN}, {SPIN}\n{lp}:')
        g(aloads(ACC + 8).split('\n')[P['P1K']] + '\ns_waitcnt vmcnt(0)')
        check(g, range(ACC + 8 + 2 * P['P1K'], ACC + 10 + 2 * P['P1K']), ACC)
        g(f's_bcnt1_i32_b64 s5, vcc\ns_cmp_le_u32 s5, {P["P2TH"]}\ns_cbranch_scc1 {ok}')
        g(f's_sleep {P["P2SL"]}\ns_sub_u32 {S_SPIN}, {S_SPIN}, 1\ns_cbranch_scc0 {lp}\n{ok}:\ns_barrier')
        g.stamp('g_go', (0, 1))
    if P['W2TH']:
        skip = only_wave(g, 0)
        lp, ok = g.label('L_p2'), g.label('L_p2ok')
        g(f's_and_b32 s5, {JC}, 15\ns_cbranch_scc1 {skip}\ns_mov_b32 {S_SPIN}, {SPIN}\n{lp}:')
        g(aloads(T) + '\ns_waitcnt vmcnt(0)')
        check(g, range(T, T + 2 * NT), ACC)
        g(f's_bcnt1_i32_b64 s5, vcc\ns_cmp_le_u32 s5, {P["W2MISS"]}\ns_cbranch_scc1 {ok}')
        g(f's_sub_u32 {S_SPIN}, {S_SPIN}, 1\ns_cbranch_scc0 {lp}\n{ok}:')
        g(faddr('s46', C_A) + f'v_mov_b32 v{ACC}, {S_EPO}\ns_mov_b64 exec, 1\nbuffer_store_dword v{ACC}, off, {S_WS}, s98 sc1\ns_mov_b64 exec, -1')
        g(skip + ':')
    poll(g, aloads(T), range(T, T + 2 * NT), ACC, P['SLEEP'])
    g.stamp('g_apolled', (0, 1))
    g(f'v_mul_f32 v{T}, v{WG}, v{T}\nv_mul_f32 v{T + 1}, v{WG}, v{T + 1}')
    for k in range(1, NT):
        g(f'v_fmac_f32 v{T}, v{WG + k}, v{T + 2 * k}\nv_fmac_f32 v{T + 1}, v{WG + k}, v{T + 2 * k + 1}')
    g.nop(2)
    g(f'v_permlane32_swap_b32 v{T}, v{T + 1}\nv_add_f32 v{T}, v{T}, v{T + 1}\nv_mov_b32 v{T + 1}, v{T}')
    g.nop(2)
    g(f'v_permlane16_swap_b32 v{T}, v{T + 1}\nv_add_f32 v{T}, v{T}, v{T + 1}')
    g.nop(2)
    g(f'v_add_f32_dpp v{T}, v{T}, v{T} row_ror:8 {DPP}')
    g(f'v_cvt_pk_bf16_f32 v{T}, v{T}, v{T}\nds_write_b16 v{OW}, v{T}')
    g('s_waitcnt lgkmcnt(0)\ns_barrier')
    g.stamp('g_obar', (1,))
    if P['XG'] == 2:
        g('s_branch L_gend')
    ksplit_out(g, UC, PO, 's12')
    g.stamp('g_t2', (0, 1))
    if P['BW']:
        g('s_waitcnt vmcnt(0)')
    if P['BW'] == 2:
        g('s_barrier')
    skip = reduce('s9', 64, 0)
    unpack2(g, T + 6, RX)
    if P['REP']:
        g(f'v_lshrrev_b32 v{T + 3}, 4, v0\nv_lshl_add_u32 v{T + 3}, v{T + 3}, 13, v{T + 2}\ns_add_u32 s4, s11, 32768')
    else:
        g(f'v_lshlrev_b32 v{T + 3}, 3, v0')
    g(f'v_mov_b32 v{ACC + 16}, {S_MASK}')
    reduce_sum()
    g(f'v_pk_mul_f32 {vr(T, 2)}, {vr(T, 2)}, {vr(ACC + 18, 2)}')
    round2(g, T)
    g(f'v_pk_add_f32 {vr(T, 2)}, {vr(T, 2)}, {vr(T + 6, 2)}')
    g(f'v_cvt_pk_bf16_f32 v{RX}, v{T}, v{T + 1}')
    g(f'v_lshl_or_b32 v{T}, v{RX}, 16, {S_T16}\nv_and_or_b32 v{T + 1}, v{RX}, v{ACC + 16}, {S_T16}')
    if P['REP']:
        g(f'buffer_store_dwordx2 {vr(T, 2)}, v{T + 3}, {S_WS}, s11 offen sc1\nbuffer_store_dwordx2 {vr(T, 2)}, v{T + 3}, {S_WS}, s4 offen sc1')
    else:
        g.setexec(0xffff)
        g(f'buffer_store_dwordx2 {vr(T, 2)}, v{T + 3}, {S_WS}, s11 offen sc1')
        g.setexec(-1)
    g(skip + ':')
    g.stamp('g_x1', (0, 1))
    g('s_barrier')
    skip = reduce('s10', 56, 3)
    unpack2(g, T + 2, RB2)
    unpack2(g, T + 6, RX)
    reduce_sum()
    g(f'v_pk_add_f32 {vr(T, 2)}, {vr(T, 2)}, {vr(T + 2, 2)}')
    round2(g, T)
    g(f'v_pk_mul_f32 {vr(T, 2)}, {vr(T, 2)}, {vr(ACC + 18, 2)}')
    round2(g, T)
    g(f'v_pk_add_f32 {vr(T, 2)}, {vr(T, 2)}, {vr(T + 6, 2)}')
    g(f'v_cvt_pk_bf16_f32 v{T}, v{T}, v{T + 1}')
    g.setexec(0xffff)
    g(f'buffer_store_dword v{T}, v{OUTO}, {S_B}, 0 offen')
    g(f's_cmp_lg_u32 s2, 0\ns_cbranch_scc1 {skip}\nv_mov_b32 v{T + 1}, {S_EPO}\ns_mov_b64 exec, 1')
    g(f'buffer_store_dword v{T + 1}, off, {S_WS}, 0 sc1')
    g(skip + ':')
    g('L_gend:')
    g.stamp('g_out', (0, 1, 3))
    if P['PADTO']:
        if P['PADWG'] >= 0:
            g(f's_cmp_lg_u32 s2, {P["PADWG"]}\ns_cbranch_scc1 L_nopad')
        g(f'L_pad:\ns_memrealtime s[4:5]\ns_waitcnt lgkmcnt(0)\ns_sub_u32 s4, s4, s70\ns_cmp_lt_u32 s4, {P["PADTO"]}\ns_cbranch_scc1 L_pad\nL_nopad:')
    write_stamps(g)
    g('s_endpgm')


MLP_LDS = 4096
W1L = 4096
LDS_TOTAL = W1L + 131072


def mlp(g):
    L = Lds(MLP_LDS)
    PO, XO, SW, SR, B1 = 8, 9, 10, 11, 17
    C1, SH = 12, 18
    JM = 's14'
    g.vm = []
    g('L_mlp:')
    if P['XW'] == 1:
        write_stamps(g)
        g('s_endpgm')
    if P['W2TH']:
        skip = only_wave(g, 0)
        fpoll(g, ACC + 4, 's101', C_A, P['LSL'])
        g(skip + ':')
    g(f's_lshl_b32 s4, s3, 6\nv_add_u32 v{TID}, s4, v0')
    g(f's_lshl_b32 s7, {JM}, 7')
    MP, MB, XV = 16, BLK(0), ACC
    g.bits(MP, TID, [(8, 1, 16384), (3, 5, 128), (0, 2, 32), (2, 1, 16)], T, MODL + 4096)
    g(f'v_add_u32 v{MP + 6}, 4096, v{MP}\ns_mov_b32 s8, 32768\ns_mov_b32 s9, 65536\ns_mov_b32 s10, 98304')
    mloads = '\n'.join(f'buffer_load_dwordx4 {vr(MB + 4 * i, 4)}, v{MP + 6 * (i >> 2)}, {S_WS}, {("0", "s8", "s9", "s10")[i & 3]} offen sc1'
                       for i in range(8) if (i & 3) < (1 << P['LQ']))
    early = P['GH'] or P['GJ'] >= 3
    srd(g, S_B, 30, 3584 * 2)
    g.bits(T + 4, TID, [(2, 3, 16), (5, 2, 4), (7, 1, 2)], T, 's7')
    g.bits(T + 5, TID, [(4, 2, 2048), (6, 3, 256), (0, 4, 16)], T + 7)
    g('s_barrier')
    g.vmop(f'buffer_load_ushort v{B1}, v{T + 4}, {S_B}, 0 offen', 'k')
    if early:
        g.vmop(mloads, 'k')
    prefetch_code(g, 'L_mlp_tail', 1, T + 4, ACC + 8, 'k')
    kload(g, UB, 32, 3584 * 2048, JM, T + 5, lambda kb, t: 32 * kb + 4 * t, 'w2')
    common_addr(g, L, True)
    g.bits(XO, TID, [(2, 6, 128), (8, 1, 64), (0, 2, 16)], T, X1)
    if P['REP']:
        g(f's_and_b32 s4, s2, 7\ns_lshl_b32 s4, s4, 13\nv_add_u32 v{XO}, s4, v{XO}')
    g.bits(PO, TID, [(3, 6, 8192), (0, 3, 16)], T)
    g(f's_add_u32 s13, s7, {MBC}')
    g(f's_lshl_b32 s4, s3, 3\nv_mov_b32 v{SW}, s4\ns_and_b32 s4, s4, 32\nv_mov_b32 v{SR}, s4')
    xload = f'buffer_load_dwordx4 {vr(XV, 4)}, v{XO}, {S_WS}, 0 offen sc1'

    def w2_finish():
        g.vmwait(('w2', 0))
        transpose(g, UB)
        if not early:
            g.vmop(mloads, 'k')
        g.vmwait(('w2', 1))
        g.vmop(xload, 'x')
        transpose(g, UB + 1)
        g.stamp('m_w2', (2,))
    if not early:
        w2_finish()
    g.vmwait('k')
    poll(g, mloads, [r for r in range(MB, MB + 32) if ((r - MB) & 15) < (4 << P['LQ'])], T, P['MLS'], preloaded=True)
    for d, b in ((SH, MB), (C1, MB + 16)):
        if P['LQ'] == 2:
            pk4(g, 'v_pk_add_f32', b, b, b + 8)
            pk4(g, 'v_pk_add_f32', b + 4, b + 4, b + 12)
        pk4(g, 'v_pk_add_f32', d, b, b + 4)
    round4(g, SH, T)
    round4(g, C1, T)
    for i in range(4):
        g(f'v_add_f32 v{C1 + i}, 1.0, v{C1 + i}')
    round4(g, C1, T)
    g(f'v_lshlrev_b32 v{B1}, 16, v{B1}')
    KC = BLK(1)
    if P['LNM']:
        g.bits(SW, TID, [(8, 1, 128), (4, 2, 16), (6, 2, 4)], T)
        g.bits(SR, TID, [(8, 1, 128)], T)
        g(f'v_add_f32 v{T}, v{C1}, v{C1 + 1}\nv_mul_f32 v{T + 1}, v{C1}, v{C1}\nv_mul_f32 v{T + 2}, v{C1}, v{SH}')
        g(f'v_add_f32 v{T + 3}, v{SH}, v{SH + 1}\nv_mul_f32 v{T + 4}, v{SH}, v{SH}\nv_mov_b32 v{T + 5}, 0')
        for i in range(1, 4):
            if i > 1:
                g(f'v_add_f32 v{T}, v{T}, v{C1 + i}\nv_add_f32 v{T + 3}, v{T + 3}, v{SH + i}')
            g(f'v_fmac_f32 v{T + 1}, v{C1 + i}, v{C1 + i}\nv_fmac_f32 v{T + 2}, v{C1 + i}, v{SH + i}\nv_fmac_f32 v{T + 4}, v{SH + i}, v{SH + i}')
        g.nop(1)
        blocksum6(g, T, SW, SR, L.STAT + 256, KC)
        for i in range(5):
            g(f'v_mul_f32 v{KC + i}, 0x3a800000, v{KC + i}')
        g(f'v_mov_b32 v{KC + 6}, 0x3a800000\nv_mov_b32 v{KC + 7}, 0x3a800000')
    if early:
        w2_finish()
    g.stamp('m_ready', (0, 2))
    g('L_mlp_tail:')
    g('s_waitcnt vmcnt(0)')
    poll(g, xload, range(XV, XV + 4), T, mask=0xffff, preloaded=True)
    g.stamp('m_x1seen', (0, 2))
    for i in range(4):
        g(f'v_and_b32 v{XV + i}, {S_MASK}, v{XV + i}')
    if P['LNM']:
        UV, R = ACC + 4, ACC + 8
        pk4(g, 'v_pk_mul_f32', UV, XV, C1)
        g(f'v_pk_add_f32 {vr(R, 2)}, {vr(XV, 2)}, {vr(XV + 2, 2)}\nv_pk_mul_f32 {vr(R + 2, 2)}, {vr(XV, 2)}, {vr(XV, 2)}')
        g(f'v_pk_add_f32 {vr(R + 4, 2)}, {vr(UV, 2)}, {vr(UV + 2, 2)}\nv_pk_mul_f32 {vr(R + 6, 2)}, {vr(UV, 2)}, {vr(UV, 2)}')
        g(f'v_pk_mul_f32 {vr(R + 8, 2)}, {vr(UV, 2)}, {vr(C1, 2)}\nv_pk_mul_f32 {vr(R + 10, 2)}, {vr(UV, 2)}, {vr(SH, 2)}')
        g(f'v_pk_fma_f32 {vr(R + 2, 2)}, {vr(XV + 2, 2)}, {vr(XV + 2, 2)}, {vr(R + 2, 2)}')
        g(f'v_pk_fma_f32 {vr(R + 6, 2)}, {vr(UV + 2, 2)}, {vr(UV + 2, 2)}, {vr(R + 6, 2)}')
        g(f'v_pk_fma_f32 {vr(R + 8, 2)}, {vr(UV + 2, 2)}, {vr(C1 + 2, 2)}, {vr(R + 8, 2)}')
        g(f'v_pk_fma_f32 {vr(R + 10, 2)}, {vr(UV + 2, 2)}, {vr(SH + 2, 2)}, {vr(R + 10, 2)}')
        for d, i in enumerate((0, 4, 2, 6, 8, 10)):
            g(f'v_add_f32 v{T + d}, v{R + i}, v{R + i + 1}')
        blocksum6(g, T, SW, SR, L.STAT, R)
        g.stamp('m_ln1', (2,))
        for i in range(0, 6, 2):
            g(f'v_pk_mul_f32 {vr(R + i, 2)}, {vr(R + i, 2)}, {vr(KC + 6, 2)}')
        g(f'v_fma_f32 v{R + 1}, -v{R}, v{R}, v{R + 1}')
        rstd(g, R, R + 1)
        g(f'v_fma_f32 v{R + 2}, -v{R}, v{KC}, v{R + 2}')
        g(f'v_fma_f32 v{R + 5}, -v{R}, v{KC + 1}, v{R + 5}')
        g(f'v_fma_f32 v{R + 6}, v{R}, v{KC + 2}, -v{R + 4}')
        g(f'v_sub_f32 v{R + 6}, v{R + 6}, v{R + 4}')
        g(f'v_fma_f32 v{R + 3}, v{R}, v{R + 6}, v{R + 3}')
        g(f'v_add_f32 v{R + 5}, v{R + 5}, v{R + 5}')
        g(f'v_fma_f32 v{R + 2}, v{R + 2}, v{R + 1}, v{KC + 3}')
        g(f'v_fma_f32 v{R + 3}, v{R + 3}, v{R + 1}, v{R + 5}')
        g(f'v_fma_f32 v{R + 3}, v{R + 3}, v{R + 1}, v{KC + 4}')
        g(f'v_fma_f32 v{R + 3}, -v{R + 2}, v{R + 2}, v{R + 3}')
        for i in range(4):
            g(f'v_fma_f32 v{UV + i}, -v{R}, v{C1 + i}, v{UV + i}')
        rstd(g, R + 2, R + 3)
        for i in range(4):
            g(f'v_fma_f32 v{UV + i}, v{UV + i}, v{R + 1}, v{SH + i}')
        for i in range(4):
            g(f'v_sub_f32 v{UV + i}, v{UV + i}, v{R + 2}')
        for i in range(4):
            g(f'v_mul_f32 v{UV + i}, v{UV + i}, v{R + 3}')
        pack(g, T + 6, UV)
    else:
        layernorm(g, XV, SW, SR, L.STAT)
        g.stamp('m_ln1', (2,))
        pk4(g, 'v_pk_mul_f32', XV, XV, C1)
        round4(g, XV, T + 6)
        pk4(g, 'v_pk_add_f32', XV, XV, SH)
        round4(g, XV, T + 6)
        layernorm(g, XV, SW, SR, L.STAT + 64, last_packed=True)
    actwrite(g, T + 6, L.ACTH)
    g('s_waitcnt lgkmcnt(0)\ns_barrier')
    g.stamp('m_ln2', (2,))
    nsplit(g, UC, L.ACTH)
    g.stamp('m_t3', (2,))
    g(f'''v_cvt_pk_bf16_f32 v{T}, v{T}, v{T}
          v_lshlrev_b32 v{T}, 16, v{T}
          v_add_f32 v{T}, v{T}, v{B1}
          v_cvt_pk_bf16_f32 v{T}, v{T}, v{T}
          v_lshlrev_b32 v{T}, 16, v{T}
          v_mov_b32 v{T + 2}, 0xc0135761
          v_mul_f32 v{T + 1}, v{T}, v{T}
          v_fmac_f32 v{T + 2}, 0xbdd2d3e8, v{T + 1}
          v_mul_f32 v{T + 1}, v{T + 2}, v{T}
          v_exp_f32 v{T + 1}, v{T + 1}
          s_nop 0
          v_add_f32 v{T + 1}, 1.0, v{T + 1}
          v_rcp_f32 v{T + 1}, v{T + 1}
          s_nop 0
          v_mul_f32 v{T}, v{T}, v{T + 1}
          v_cvt_pk_bf16_f32 v{T}, v{T}, v{T}
          ds_write_b16 v{NO}, v{T}
          s_waitcnt lgkmcnt(0)
          s_barrier''')
    g.stamp('m_gelu', (2,))
    ksplit_out(g, UB, PO, 's13')
    g.stamp('m_t4', (0, 2))
    write_stamps(g)
    g('s_endpgm')


def latem(g):
    L = Lds(MLP_LDS)
    g.vm = []
    g('L_late:')
    if P['XL']:
        write_stamps(g)
        g('s_endpgm')
    g(f's_lshl_b32 s4, s3, 6\nv_add_u32 v{TID}, s4, v0')
    LQ = P['LQ']
    qjob_voff(g, 8, LQ)
    g(f's_add_u32 s14, s14, {(16 << LQ) * (3 if P["GH"] else P["GJ"])}')
    g.bits(T + 6, TID, [(3, 6, 64), (0, 2, 16), (2, 1, 8)], T)
    srd(g, S_B, 36, 4096)
    g('s_barrier')
    g.stamp('l_bar', (4,))
    g.vmop(f'buffer_load_dwordx2 {vr(12, 2)}, v{T + 6}, {S_B}, 0 offen', 'in')
    qjob_issue(g, UA, 's14', 8, LQ)
    g.stamp('l_iss', (4,))
    common_addr(g, L, False)
    g.stamp('l_addr', (4,))
    g.vmwait('in')
    g.stamp('l_c', (4,))
    silu_image(g, L, 12)
    g('s_waitcnt lgkmcnt(0)\ns_barrier')
    g.stamp('l_silu', (4,))
    g('L_late2:')
    qjob_finish(g, L, UA, 9, 10, LQ)
    g.stamp('l_pub1', (0, 1, 2, 4))
    if not P['GBG'] and LQ == 2 and P['GJ'] == 1:
        done = g.label('L_latedone')
        g(f's_cmp_ge_u32 s14, 128\ns_cbranch_scc1 {done}\ns_add_u32 s14, s14, 128\ns_barrier')
        qjob_issue(g, UA, 's14', 8)
        g(f's_branch L_late2\n{done}:')
    write_stamps(g)
    g('s_endpgm')


def attention(g, mode='main', arg=None):
    KO, VO, QO, VSC, VMAX, OO = 1, 2, 3, 4, 5, 6
    Q0, SP, TMP, T2 = 8, 16, 40, 56
    LA, GA = T2 + 7, T2 + 6
    SLOT = lambda s: 64 + 32 * s
    AC = SLOT(0)
    U = lambda u: 's%d' % (4 + 2 * u)
    U2 = lambda u: 's%d' % (5 + 2 * u)
    S_R, S_CU, S_GA, S_T = 's47', 's68', 's96', 's69'
    S_B4, S_B5, S_O4, S_KV = 's46', 's100', 's101', 's101'
    MX, OBUF, OST = 0, W1L, 16384
    QL, QF = 1024, 3072
    S_ST = 's97'
    NN = (SPL - NMR) * 8
    NUG = P['NUG']
    n4 = min(NN, 1024 - 4 * WPR - 64 * NUG)
    EX = 6 * P['A5W']
    n5 = 1024 - 4 * WPR - n4 - 64 * NUG - EX
    RK = QF + 4
    LT = P['LIGHT']
    S_B3, S_O3 = 's0', 's45'
    assert 0 <= n5 <= NN
    base = [0, WPR, 2 * WPR, 3 * WPR, 4 * WPR, 4 * WPR + n4]
    VSLOT = [1, 2, 3, 1, 4, 5] if mode == 'main' else [NUG + u for u in range(NUG)]

    def entry():
        g.vm = []

        g('L_attn:')
        g(f'''s_sub_u32 {S_T}, s2, {NG}
              s_mul_hi_u32 {S_R}, {S_T}, {(1 << 32) // SPL + 1}
              s_mul_i32 {S_CU}, {S_R}, {SPL}
              s_sub_u32 {S_CU}, {S_T}, {S_CU}
              s_add_u32 {S_CU}, {S_CU}, {S_R if P["ROT"] else 0}
              s_sub_u32 {S_T}, {S_CU}, {SPL}
              s_cselect_b32 {S_CU}, {S_CU}, {S_T}
              s_mul_i32 {S_T}, s3, {SPL - NMR}
              s_add_u32 {S_T}, {S_T}, {S_CU}
              s_cmp_lt_u32 {S_CU}, {SPL - NMR}
              s_cselect_b32 {S_T}, {S_T}, 1023
              s_lshl_b32 s98, {S_CU}, 3
              s_add_u32 s98, s98, s3
              s_mul_i32 {S_GA}, {S_R}, {P["PH"]}''')
        for u in range(NU):
            g(f's_add_u32 {U(u)}, {S_GA}, {"s98" if u < (5 if n4 == NN else 4) else S_T}')
            if u:
                g(f's_add_u32 {U(u)}, {U(u)}, {base[u]}')
            g(f's_and_b32 {U(u)}, {U(u)}, 1023\ns_lshl_b32 {U(u)}, {U(u)}, 13\ns_add_u32 {U2(u)}, {U(u)}, 4096')
        if LT:
            g(f's_add_u32 s99, {S_GA}, {S_T}\ns_add_u32 s99, s99, {base[3] + NN + 8 - LT - n5}\ns_and_b32 s99, s99, 1023\ns_lshl_b32 s99, s99, 13')
            g(f's_cmp_ge_u32 {S_T}, {n5}\ns_cselect_b32 {U(5)}, s99, {U(5)}\ns_add_u32 {U2(5)}, {U(5)}, 4096')
            g(f's_sub_u32 s99, s98, {NN + 8 - LT}')
        g.bits(KO, 0, [(1, 1, 1024), (2, 2, 256), (0, 1, 64), (4, 2, 16)], 8)
        g(f'v_lshlrev_b32 v{VO}, 4, v0')
        g(f's_cmp_lt_u32 {S_T}, {n5 + LT}\ns_cselect_b32 s98, 0, 0x1000000\ns_cselect_b32 {S_B5}, 0, 0xff800000')
        g(f'v_add_u32 v{OO + 1}, s98, v{KO}')
        if EX:
            skip = g.label('L_noex')
            g(f's_cmp_le_u32 {S_CU}, {SPL - NMR}\ns_cbranch_scc1 {skip}\ns_cmp_ge_u32 s3, {P["A5W"]}\ns_cbranch_scc1 {skip}')
            g(f's_mul_i32 {U(4)}, s3, 6\ns_add_u32 {U(4)}, {U(4)}, {S_CU}\ns_add_u32 {U(4)}, {U(4)}, {S_GA}\ns_add_u32 {U(4)}, {U(4)}, {1024 - EX - 18}')
            g(f's_and_b32 {U(4)}, {U(4)}, 1023\ns_lshl_b32 {U(4)}, {U(4)}, 13\ns_add_u32 {U2(4)}, {U(4)}, 4096\ns_mov_b32 {S_T}, 0')
            g(skip + ':')
        g(f's_cmp_lt_u32 {S_T}, {n4}\ns_cselect_b32 {S_O4}, 0, 0x1000000\ns_cselect_b32 {S_B4}, 0, 0xff800000')
        g(f'v_add_u32 v{OO}, {S_O4}, v{KO}')
        g('s_waitcnt lgkmcnt(0)')
        if LT:
            g(f's_cmp_lt_u32 s99, {LT}\ns_cselect_b32 {S_B3}, 0xff800000, 0')
        g(f's_lshl_b32 {S_T}, {S_R}, 23')
        g(f's_add_u32 s56, s18, {S_T}\ns_addc_u32 s57, s19, 0\ns_mov_b32 s58, 0x800000\ns_mov_b32 s59, 0x20000')
        g(f's_add_u32 s60, s20, {S_T}\ns_addc_u32 s61, s21, 0\ns_mov_b32 s62, 0x800000\ns_mov_b32 s63, 0x20000')

    def slice_index(d, t):
        if not LT:
            g(f's_mul_i32 {d}, {S_R}, {NMR}\ns_add_u32 {d}, {d}, {S_CU}\ns_sub_u32 {d}, {d}, {SPL - NMR}')
            return
        g(f'''s_mul_i32 {d}, {S_R}, 6
              s_add_u32 {d}, {d}, {S_CU}
              s_sub_u32 {d}, {d}, {SPL - NMR + 1 - 4}
              s_mul_hi_u32 {t}, {d}, {(1 << 32) // 7 + 1}
              s_add_u32 {d}, {d}, {t}
              s_sub_u32 {d}, {d}, 4
              s_lshl_b32 {t}, {S_R}, 3
              s_add_u32 {t}, {t}, 3
              s_min_u32 {t}, {t}, 55
              s_cmp_eq_u32 {S_CU}, {SPL - NMR}
              s_cselect_b32 {d}, {t}, {d}''')

    def load(n, pos):
        i = n & 7
        if n < 48:
            u = n >> 3
            vo = KO if u < 4 else OO + u - 4
            if u == 3 and LT:
                vo = T2 + 3
                if i == 0:
                    g(f's_lshr_b32 {S_T}, {S_B3}, 7\nv_add_u32 v{vo}, {S_T}, v{KO}')
            if u == 5 and EX:
                l1, l2 = g.label('L_k5'), g.label('L_k5j')
                g(f's_cmp_lt_u32 {S_CU}, {SPL - NMR}\ns_cbranch_scc1 {l1}')
                if i == 0:
                    g(f's_lshr_b32 {S_T}, {S_B4}, 7\nv_add_u32 v{vo}, {S_T}, v{VO}')
                g(f'buffer_load_dwordx4 {vr(SLOT(u) + 4 * i, 4)}, v{vo}, {S_B}, {U2(4) if i >= 4 else U(4)} offen offset:{(i & 3) * 1024} nt')
                g(f's_branch {l2}\n{l1}:')
            g.vmop(f'buffer_load_dwordx4 {vr(SLOT(u) + 4 * i, 4)}, v{vo}, {S_A}, {U2(u) if i >= 4 else U(u)} offen '
                   f'offset:{((i >> 1) & 1) * 2048 + (i & 1) * 128} nt', pos)
            if u == 5 and EX:
                g(l2 + ':')
        elif n < 64:
            if n == 48:
                l1, l2 = g.label('L_xv'), g.label('L_xj')
                g(f's_lshl_b32 s98, s3, 14\ns_add_u32 m0, s98, {W1L}\ns_mov_b32 s95, 0x20000')
                g(f's_cmp_lt_u32 {S_CU}, {SPL - NMR}\ns_cbranch_scc1 {l1}')
                g(f's_lshl_b32 {S_T}, s3, 6\nv_add_u32 v{T2 + 1}, {S_T}, v0')
                nvoff(g, OO, 7168, T2 + 1, T2 + 2)
                g(f'v_mov_b32 v{OO + 1}, v{OO}')
                slice_index(S_T, 's98')
                g(f's_lshl_b32 {U(4)}, {S_T}, 7\ns_add_u32 {U(5)}, {U(4)}, {512 * 7168}\ns_mov_b32 {U2(4)}, {nstep() * 7168}')
                g(f's_mov_b32 s92, s28\ns_mov_b32 s93, s29\ns_mov_b32 s94, {1024 * 7168}')
                g(f's_branch {l2}\n{l1}:')
                g(f'v_sub_u32 v{T2 + 1}, v{VO}, v{KO}\nv_add_u32 v{OO}, v{OO}, v{T2 + 1}\nv_add_u32 v{OO + 1}, v{OO + 1}, v{T2 + 1}')
                g(f's_mov_b32 {U2(4)}, 1024\ns_mov_b32 s92, s60\ns_mov_b32 s93, s61\ns_mov_b32 s94, s62')
                g(l2 + ':')
            u = 4 + ((n - 48) >> 3)
            if n > 48:
                g('s_add_u32 m0, m0, 1024')
            g(f's_add_u32 {U(u)}, {U(u)}, {U2(4)}' if i else 's_nop 0')
            g.vmop(f'buffer_load_dwordx4 v{OO + u - 4}, s[92:95], {U(u)} offen nt lds', pos)
        else:
            u = (n - 64) >> 3
            vo = VO
            if u == 3 and LT:
                vo = OO
                if i == 0:
                    g(f's_lshr_b32 {S_T}, {S_B3}, 7\nv_add_u32 v{vo}, {S_T}, v{VO}')
            g.vmop(f'buffer_load_dwordx4 {vr(SLOT(VSLOT[u]) + 4 * i, 4)}, v{vo}, {S_B}, {U2(u) if i >= 4 else U(u)} offen '
                   f'offset:{(i & 3) * 1024} nt', pos)

    def mailbox():
        g.bits(GA, 0, [(5, 1, MBA_ST), (0, 5, 8)], T2)
        g(f'''s_and_b32 {S_T}, {S_R}, 3
              s_lshl_b32 {S_T}, {S_T}, 3
              s_add_u32 {S_T}, {S_T}, s3
              s_mul_i32 {S_T}, {S_T}, {2 * MBA_ST}
              s_lshr_b32 {S_GA}, {S_R}, 2
              s_mul_i32 {S_GA}, {S_GA}, {SLOTS}
              s_add_u32 {S_GA}, {S_GA}, {S_CU}
              s_lshl_b32 {S_GA}, {S_GA}, 8
              s_add_u32 {S_GA}, {S_GA}, {S_T}
              s_add_u32 {S_GA}, {S_GA}, {MBA}''')

    def setup():
        srd(g, S_WS, 44, WS_SIZE)
        srd(g, S_DBG, 42, 256)
        mailbox()
        g.vmop(epoch_load(T2 + 2), 'ep')
        if P['PFA'] == 1:
            prefetch_code(g, 'L_attn_body', 2, 8, TMP, 'pf')
        if P['PFA'] == 2:
            skip = g.label('L_nopf')
            g(f's_cmp_ge_u32 s2, {NG + 8}\ns_cbranch_scc1 {skip}')
            prefetch_code(g, 'L_attn_body', 2, 8, TMP)
            g(skip + ':')
        if P['TLB']:
            skip = g.label('L_notlb')
            sh = P['TLB']
            g(f'v_lshlrev_b32 v8, {sh}, v0')
            g.setexec((1 << min(64, 1 << (23 - sh))) - 1 if sh > 17 else -1)
            g(f's_cmp_eq_u32 s3, 1\ns_cbranch_scc0 {skip}_a\nbuffer_load_dword v{TMP + 4}, v8, {S_A}, 0 offen nt\n{skip}_a:')
            g(f's_cmp_eq_u32 s3, 2\ns_cbranch_scc0 {skip}_b\nbuffer_load_dword v{TMP + 4}, v8, {S_B}, 0 offen nt\n{skip}_b:')
            for w, (ptr, size) in enumerate(((28, 7 << 20), (32, 7 << 20), (38, 12 << 20), (44, WS_SIZE))):
                l = f'{skip}_{w}'
                g(f's_cmp_eq_u32 s3, {3 + w}\ns_cbranch_scc0 {l}')
                g(f's_mov_b32 s92, s{ptr}\ns_mov_b32 s93, s{ptr + 1}\ns_mov_b32 s94, {size}\ns_mov_b32 s95, 0x20000')
                g(f'buffer_load_dword v{TMP + 4}, v8, s[92:95], 0 offen offset:2048 {"sc1" if ptr == 44 else "nt"}')
                if size > (8 << 20):
                    g(f's_mov_b32 {S_T}, {8 << 20}\nv_add_u32 v9, {S_T}, v8\nbuffer_load_dword v{TMP + 4}, v9, s[92:95], 0 offen nt')
                g(l + ':')
            g.setexec(-1)
        g(f's_and_b32 {S_KV}, {S_R}, 3\ns_lshl_b32 {S_KV}, {S_KV}, 2')
        g.bits(QO, 0, [(0, 3, 256), (3, 1, 64), (4, 2, 16)], 8)
        g.bits(LA, 0, [(0, 4, 64)], 8)
        g(f's_lshl_b32 {S_T}, s3, 3\nv_add_u32 v8, {S_T}, v{LA}\nv_mov_b32 v9, -1\nds_write_b32 v8, v9 offset:{MX + 4}')
        g(f'v_mov_b32 v{T2}, 0\nds_write_b32 v{T2}, v{T2} offset:{QF}\ns_mov_b32 {S_ST}, 0\ns_waitcnt lgkmcnt(0)\ns_barrier')
        g(f'v_mov_b32 v{VSC}, 0x3db504f3\nv_mov_b32 v{VMAX}, 0xff800000')
        g('L_attn_body:')

    def readback():
        if EX:
            skip = g.label('L_noex')
            g(f's_cmp_lt_u32 {S_CU}, {SPL - NMR}\ns_cbranch_scc1 {skip}')
            pv(4, 5)
            g(skip + ':')
        g(f's_lshl_b32 {S_T}, s3, 14\ns_add_u32 {S_T}, {S_T}, {W1L}\nv_add_u32 v{T2}, {S_T}, v{VO}')
        for i in range(16):
            g(f'ds_read_b128 {vr(SLOT(4) + 4 * i, 4)}, v{T2} offset:{i * 1024}')

    def lds_units():
        l1, l2 = g.label('L_w1'), g.label('L_w1j')
        g(f's_cmp_ge_u32 {S_CU}, {SPL - NMR}\ns_cbranch_scc1 {l1}')
        g('s_waitcnt lgkmcnt(8)')
        pv(4)
        g('s_waitcnt lgkmcnt(0)')
        pv(5)
        g(f's_branch {l2}\n{l1}:')
        g('s_waitcnt lgkmcnt(8)')
        transpose(g, UC, T2)
        g('s_waitcnt lgkmcnt(0)')
        transpose(g, UC + 1, T2)
        g(l2 + ':')

    def qstep(final=False):
        skip = only_wave(g, P['QW'])
        l1, l3, top = g.label('L_q1'), g.label('L_q3'), g.label('L_qtop')
        if final:
            g(f's_mov_b32 {S_SPIN}, {SPIN}\n{top}:')
        g(f's_cmp_eq_u32 {S_ST}, 2\ns_cbranch_scc1 {skip}')
        if final:
            g(f's_waitcnt vmcnt(0)\ns_sub_u32 {S_SPIN}, {S_SPIN}, 1\ns_cbranch_scc1 {l3}')
        g(f's_cmp_eq_u32 {S_ST}, 0\ns_cbranch_scc1 {l1}')
        check(g, range(TMP, TMP + 16), T2, 0xffff)
        g(f's_cbranch_vccz {l3}')
        if final:
            g(f's_sleep {P["QSL"]}')
        g(l1 + ':')
        g(f's_lshl_b32 {S_T}, {S_R}, 12\ns_add_u32 {S_T}, {S_T}, {QB}\ns_mov_b32 {S_ST}, 1')
        for i in range(4):
            g(f'buffer_load_dwordx4 {vr(TMP + 4 * i, 4)}, v{VO}, {S_WS}, {S_T} offen offset:{1024 * i} sc1')
        g(f's_branch {top if final else skip}')
        g(l3 + ':')
        g(f'v_lshlrev_b32 v{T2}, 3, v0')
        for i in range(8):
            g(f'v_perm_b32 v{Q0 + i}, v{TMP + 2 * i + 1}, v{TMP + 2 * i}, {S_HI}')
        for i in range(4):
            g(f'ds_write_b64 v{T2}, {vr(Q0 + 2 * i, 2)} offset:{QL + 512 * i}')
        g(f'v_mov_b32 v{T2}, 0\nv_mov_b32 v{T2 + 1}, 1\ns_mov_b32 {S_ST}, 2\ns_waitcnt lgkmcnt(0)')
        g(f'ds_write_b32 v{T2}, v{T2 + 1} offset:{QF}')
        g(skip + ':')

    def qget():
        g.stamp('a_qwait')
        if P['NOQ']:
            return
        qstep(final=True)
        lp, ok = g.label('L_qf'), g.label('L_qfok')
        g(f'v_mov_b32 v{T2}, 0\ns_mov_b32 {S_SPIN}, {SPIN * 16}\n{lp}:')
        g(f'ds_read_b32 v{T2 + 1}, v{T2} offset:{QF}\ns_waitcnt lgkmcnt(0)')
        g(f'v_cmp_eq_u32 vcc, 0, v{T2 + 1}\ns_cbranch_vccz {ok}')
        g(f's_sleep 2\ns_sub_u32 {S_SPIN}, {S_SPIN}, 1\ns_cbranch_scc0 {lp}\n{ok}:')
        g(f'ds_read_b128 {vr(Q0, 4)}, v{QO} offset:{QL}\nds_read_b128 {vr(Q0 + 4, 4)}, v{QO} offset:{QL + 128}')
        g('s_waitcnt lgkmcnt(0)')
        g.stamp('a_qseen')

    def qk(u):
        for t in range(4):
            g(f'v_mfma_f32_16x16x32_bf16 {vr(TMP + 4 * t, 4)}, {vr(SLOT(u) + 8 * t, 4)}, {vr(Q0, 4)}, 0')
        for t in range(4):
            g(f'v_mfma_f32_16x16x32_bf16 {vr(TMP + 4 * t, 4)}, {vr(SLOT(u) + 8 * t + 4, 4)}, {vr(Q0 + 4, 4)}, {vr(TMP + 4 * t, 4)}')
        g.nop(5)
        for t in range(4):
            d = TMP + 4 * t
            a, b = T2 + 2 * (t & 1), T2 + 2 * (t & 1) + 1
            g(f'v_add_f32_dpp v{a}, v{d + 1}, v{d} row_ror:8 {DPP}\nv_add_f32_dpp v{b}, v{d + 3}, v{d + 2} row_ror:8 {DPP}')
            round2(g, a)
            if u >= 4 or (u == 3 and LT and mode == 'main'):
                sb = (S_B3, S_B4, S_B5)[u - 3]
                g(f'v_fma_f32 v{a}, v{a}, v{VSC}, {sb}\nv_fma_f32 v{b}, v{b}, v{VSC}, {sb}')
            else:
                g(f'v_mul_f32 v{a}, v{a}, v{VSC}\nv_mul_f32 v{b}, v{b}, v{VSC}')
            g(f'v_max3_f32 v{VMAX}, v{VMAX}, v{a}, v{b}\nv_cvt_pk_bf16_f32 v{SP + 4 * u + t}, v{a}, v{b}')

    def red_g(r, t, op):
        for ins in ('v_permlane32_swap_b32', 'v_permlane16_swap_b32'):
            g(f'v_mov_b32 v{t}, v{r}')
            g.nop(2)
            g(f'{ins} v{r}, v{t}\n{op} v{r}, v{r}, v{t}')

    def softmax():
        red_g(VMAX, T2, 'v_max_f32')
        for i in range(0, 32, 2):
            g(f'v_mov_b64 {vr(AC + i, 2)}, 0')
        g(f'v_mov_b32 v{VSC}, 0x3fb8aa3b\nv_mov_b32 v{T2 + 4}, 0')
        g(f'v_cvt_pk_bf16_f32 v{VMAX}, v{VMAX}, v{VMAX}\nv_lshlrev_b32 v{VMAX}, 16, v{VMAX}')
        g(f'v_mul_f32 v{T2 + 5}, v{VMAX}, v{VSC}')

    def probs(u, last=NU - 1):
        for i in range(4 * u, 4 * u + 4):
            p = SP + i
            a, b = T2 + 2 * (i & 1), T2 + 2 * (i & 1) + 1
            unpack2(g, a, p)
            g(f'v_fma_f32 v{a}, v{a}, v{VSC}, -v{T2 + 5}\nv_fma_f32 v{b}, v{b}, v{VSC}, -v{T2 + 5}')
            g(f'v_exp_f32 v{a}, v{a}\nv_exp_f32 v{b}, v{b}')
            g(f'v_add_f32 v{T2 + 4}, v{T2 + 4}, v{a}\nv_add_f32 v{T2 + 4}, v{T2 + 4}, v{b}')
            g(f'v_cvt_pk_bf16_f32 v{p}, v{a}, v{b}')
        if u == last:
            red_g(T2 + 4, T2, 'v_add_f32')
            g(f's_lshl_b32 {S_T}, s3, 3\nv_add_u32 v{T2}, {S_T}, v{LA}\nv_mov_b32 v{T2 + 2}, v{VMAX}\nv_min_u32 v{T2 + 3}, -2, v{T2 + 4}')
            g(f'ds_write_b64 v{T2}, {vr(T2 + 2, 2)} offset:{MX}')
            if mode == 'main':
                g.stamp('a_probs')

    def pv(u, slot=None):
        s = SLOT(VSLOT[u] if slot is None else slot)
        for w in range(4):
            t = TMP + 8 * (w & 1)
            for p in range(4):
                g(f'v_perm_b32 v{t + p}, v{s + 8 * p + 4 + w}, v{s + 8 * p + w}, {S_LO}')
            for p in range(4):
                g(f'v_perm_b32 v{t + 4 + p}, v{s + 8 * p + 4 + w}, v{s + 8 * p + w}, {S_HI}')
            g(f'v_mfma_f32_16x16x32_bf16 {vr(AC + 8 * w, 4)}, {vr(t, 4)}, {vr(SP + 4 * u, 4)}, {vr(AC + 8 * w, 4)}')
            g('s_nop 0')
            g(f'v_mfma_f32_16x16x32_bf16 {vr(AC + 8 * w + 4, 4)}, {vr(t + 4, 4)}, {vr(SP + 4 * u, 4)}, {vr(AC + 8 * w + 4, 4)}')

    def gather_ml():
        lp, ok = g.label('L_ml'), g.label('L_mlok')
        g(f's_mov_b32 {S_SPIN}, {SPIN * 16}\n{lp}:')
        for i in range(4):
            g(f'ds_read_b128 {vr(TMP + 4 * i, 4)}, v{LA} offset:{MX + 16 * i}')
        g('s_waitcnt lgkmcnt(0)')
        g(f'v_max_u32 v{T2}, v{TMP + 1}, v{TMP + 3}')
        for i in range(5, 16, 4):
            g(f'v_max3_u32 v{T2}, v{T2}, v{TMP + i}, v{TMP + i + 2}')
        g(f'v_cmp_eq_u32 vcc, -1, v{T2}\ns_cbranch_vccz {ok}')
        g(f's_sleep 2\ns_sub_u32 {S_SPIN}, {S_SPIN}, 1\ns_cbranch_scc0 {lp}\n{ok}:')
        g(f'v_max_f32 v{T2 + 2}, v{TMP}, v{TMP + 2}')
        for i in range(4, 16, 4):
            g(f'v_max3_f32 v{T2 + 2}, v{T2 + 2}, v{TMP + i}, v{TMP + i + 2}')

    def stats():
        skip = only_wave(g, P['SW'])
        gather_ml()
        g(f'v_mov_b32 v{T2 + 3}, 0')
        for i in range(0, 16, 2):
            g(f'v_sub_f32 v{TMP + i}, v{TMP + i}, v{T2 + 2}\nv_mul_f32 v{TMP + i}, 0x3fb8aa3b, v{TMP + i}')
        for i in range(0, 16, 2):
            g(f'v_exp_f32 v{TMP + i}, v{TMP + i}')
        g(f's_lshl_b32 {S_T}, {S_R}, 11\ns_lshl_b32 s98, {S_CU}, 3\ns_add_u32 {S_T}, {S_T}, s98\ns_add_u32 {S_T}, {S_T}, {STATS}')
        for i in range(0, 16, 2):
            g(f'v_fmac_f32 v{T2 + 3}, v{TMP + i}, v{TMP + i + 1}')
        g(f'v_lshlrev_b32 v{T2}, 8, v0')
        tagmask(g, T2 + 1)
        tag(g, [T2 + 2, T2 + 3], T2 + 1)
        g.setexec(0xff)
        if not P['XS']:
            g(f'buffer_store_dwordx2 {vr(T2 + 2, 2)}, v{T2}, {S_WS}, {S_T} offen sc1')
        g.setexec(-1)
        g(skip + ':')

    def factor():
        gather_ml()
        g(f'v_sub_f32 v{FS}, v{VMAX}, v{T2 + 2}\nv_mul_f32 v{FS}, 0x3fb8aa3b, v{FS}\nv_exp_f32 v{FS}, v{FS}')
        tagmask(g, FS + 1)

    FS = Q0 + 2
    WA, RA = KO, QO

    def epi_addr():
        g(f's_mul_i32 {S_T}, s3, {OST}\ns_add_u32 {S_T}, {S_T}, {OBUF}')
        g.bits(WA, 0, [(4, 2, 128), (0, 4, 16)], T2, S_T)
        g(f's_lshl_b32 {S_T}, s3, 4\ns_add_u32 {S_T}, {S_T}, {OBUF}')
        g.bits(RA, 0, [(1, 3, 528), (4, 2, 128), (0, 1, 8)], T2, S_T)
        g(f'v_add_u32 v{VSC}, {4 * OST}, v{RA}')

    def epilogue():
        g.setexec(rep16(0xff))
        for j in range(8):
            for h in (0, 2):
                g(f'v_pk_mul_f32 {vr(AC + 4 * j + h, 2)}, {vr(AC + 4 * j + h, 2)}, {vr(FS, 2)} op_sel_hi:[1,0]')
            g(f'ds_write_b128 v{WA}, {vr(AC + 4 * j, 4)} offset:{528 * j}')
        g.setexec(-1)
        g('s_waitcnt lgkmcnt(0)\ns_barrier')
        for w in range(8):
            g(f'ds_read_b64 {vr(TMP + 2 * w, 2)}, v{RA if w < 4 else VSC} offset:{OST * (w & 3)}')
        g('s_waitcnt lgkmcnt(4)')
        pk4(g, 'v_pk_add_f32', TMP, TMP, TMP + 4)
        g('s_waitcnt lgkmcnt(0)')
        pk4(g, 'v_pk_add_f32', TMP + 8, TMP + 8, TMP + 12)
        pk4(g, 'v_pk_add_f32', TMP, TMP, TMP + 8)
        g(f'v_pk_add_f32 {vr(TMP, 2)}, {vr(TMP, 2)}, {vr(TMP + 2, 2)}')
        tag(g, [TMP, TMP + 1], FS + 1)
        if not P['XP']:
            g(f'buffer_store_dwordx2 {vr(TMP, 2)}, v{GA}, {S_WS}, {S_GA} offen sc1')

    GK, GV, S_GU = 12, 13, 's100'
    if mode == 'g_addr':
        g(f'''s_lshr_b32 {S_R}, s14, 3
              s_and_b32 {S_CU}, s14, 7
              s_lshl_b32 {S_GU}, {S_CU}, 3
              s_add_u32 {S_GU}, {S_GU}, s3
              s_mul_i32 {S_T}, {S_R}, {P["PH"]}
              s_add_u32 {S_GU}, {S_GU}, {S_T}
              s_add_u32 {S_CU}, {S_CU}, {SPL}''')
        g.bits(GK, 0, [(1, 1, 1024), (2, 2, 256), (0, 1, 64), (4, 2, 16)], GV)
        g(f'v_lshlrev_b32 v{GV}, 4, v0')
        return
    if mode == 'g_issue':
        for n in arg:
            i, isk, u = n & 7, n < 8 * NUG, (n >> 3) % NUG
            if i == 0:
                p = 18 if isk else 20
                g(f's_lshl_b32 {S_T}, {S_R}, 23\ns_add_u32 s56, s{p}, {S_T}\ns_addc_u32 s57, s{p + 1}, 0\ns_mov_b32 s58, 0x800000')
                g(f's_add_u32 s101, {S_GU}, {1024 - 64 * (NUG - u)}\ns_and_b32 s101, s101, 1023\ns_lshl_b32 s101, s101, 13\ns_add_u32 {S_T}, s101, 4096')
            off = ((i >> 1) & 1) * 2048 + (i & 1) * 128 if isk else (i & 3) * 1024
            g(f'buffer_load_dwordx4 {vr(SLOT(0) + 4 * n, 4)}, v{GK if isk else GV}, {S_A}, {S_T if i >= 4 else "s101"} offen offset:{off} nt')
        return
    gq = '\n'.join(f'buffer_load_dwordx4 {vr(Q0 + 4 * i, 4)}, v{LA}, {S_WS}, 0 offen offset:{(i >> 1) * 256 + (i & 1) * 16} sc1' for i in range(4))

    def gq_addr():
        g(f's_lshl_b32 {S_T}, {S_R}, 12\ns_add_u32 {S_T}, {S_T}, {QB}')
        g.bits(LA, 0, [(0, 3, 512), (3, 1, 128), (4, 2, 32)], GA, S_T)
    if mode == 'g_q':
        gq_addr()
        g.vmop(gq, 'gq')
        return
    if mode == 'g_compute':
        g.vmwait('gq')
        poll(g, gq, range(Q0, Q0 + 16), T2, 8, preloaded=True, mask=0xffff)
        for i in range(8):
            g(f'v_perm_b32 v{Q0 + i}, v{Q0 + 2 * i + 1}, v{Q0 + 2 * i}, {S_HI}')
        mailbox()
        g.bits(LA, 0, [(0, 4, 64)], T2)
        g(f'v_mov_b32 v{VSC}, 0x3db504f3\nv_mov_b32 v{VMAX}, 0xff800000')
        for u in range(NUG):
            qk(u)
        softmax()
        for u in range(NUG):
            probs(u, NUG - 1)
        epi_addr()
        for u in range(NUG):
            pv(u)
        g('s_waitcnt lgkmcnt(0)\ns_barrier')
        stats()
        factor()
        g('s_nop 0')
        epilogue()
        g('s_barrier')
        return

    entry()
    GS = P['GS']
    order = list(range(96))
    if P['ILV']:
        order = list(range(32, 48))
        for i in range(16):
            order += [2 * i, 2 * i + 1, 48 + i]
        order += list(range(64, 96))
    last = lambda ids: max(order.index(i) for i in ids)
    depth = lambda n: P['DK1'] if n < P['NK1'] else (P['DK2'] if n < 48 else (P['DX'] if n < 64 else P['DV']))
    qsteps = list(range(P['QP0'] - 1, P['QG'] - 1, P['QPS']))
    st = dict(landed=-1, issued=-1, done=0)

    def land(n):
        if n > st['landed']:
            g.vmwait(n)
            st['landed'] = n

    W = [('q', -1, qget)]
    W += [('qk%d' % u, last(range(8 * u, 8 * u + 8)), lambda u=u: qk(u)) for u in ([0, 1, 4, 5, 2, 3] if P['ILV'] else range(NU))]
    W += [('sm', -1, softmax)]
    W += [('pr%d' % u, -1, lambda u=u: probs(u)) for u in range(NU)]
    W += [('st', -1, stats), ('rb', 63, lambda: (readback(), epi_addr(), lds_units()))]
    for u in range(4):
        if u == 3:
            W += [('fs', -1, factor)]
        W += [('pv%d' % u, 64 + 8 * u + 7, lambda u=u: ((g.stamp('a_landed') if u == 3 else None), pv(u)))]
    names = [w[0] for w in W]

    def work(budget, need=None):
        while st['done'] < len(W):
            forced = need is not None and st['done'] <= names.index(need)
            name, ld, act = W[st['done']]
            if not forced and (budget <= 0 or st['landed'] < ld or st['issued'] < P['QG'] - 1):
                return
            assert ld <= st['issued']
            land(ld)
            act()
            st['done'] += 1
            budget -= 1

    for n in range(0, 96, GS):
        d = depth(n)
        if n + GS - 1 >= d:
            land(n + GS - 1 - d)
        if n >= 64 and n % 8 == 0:
            work(0, ['qk1', 'qk2', 'qk3', 'pv0'][(n - 64) >> 3])
        for i in range(GS):
            load(order[n + i], n + i)
        m = n + GS - 1
        if n == 0:
            setup()
        st['issued'] = m
        if m == P['STPOS']:
            g.stamp('a_pos')
        if m >= 12 and not st.get('ep'):
            st['ep'] = True
            g.vmwait('ep')
            epoch_tag(g, T2 + 2)
        if m in qsteps:
            if m != qsteps[0]:
                land(m - P['QPS'] + 1)
            qstep()
        work(GS)
    work(0, 'pv3')

    epilogue()
    g.stamp('a_pub', (0, 1, 2, 3, 4))
    slice_index('s14', 's15')
    g(f's_cmp_ge_u32 {S_CU}, {SPL - NMR}\ns_cbranch_scc1 L_mlp')
    if P['RANK']:
        skip = only_wave(g, 0)
        arrive(g, 8, 0, C_R)
        g(f'v_mov_b32 v9, 0\ns_waitcnt vmcnt(0)\ns_mov_b64 exec, 1\nds_write_b32 v9, v8 offset:{RK}\ns_mov_b64 exec, -1\ns_waitcnt lgkmcnt(0)')
        g(skip + ':')
        g(f's_barrier\nv_mov_b32 v8, 0\nds_read_b32 v8, v8 offset:{RK}\ns_waitcnt lgkmcnt(0)\nv_readfirstlane_b32 s14, v8')
    else:
        g(f's_sub_u32 s14, {S_CU}, 1\ns_lshl_b32 s14, s14, 3\ns_add_u32 s14, s14, {S_R}')
    if P['LSKIP']:
        g(f's_sub_u32 s14, s14, {P["LSKIP"]}')
    g(f's_cmp_lt_u32 s14, {min(128, 64 * (4 - P["GJ"])) if P["LQ"] == 2 else (32 if P["GH"] else 64 if P["GBG"] else 96)}\ns_cbranch_scc1 L_late')
    write_stamps(g)
    g('s_endpgm')


def build(stamps=False):
    g = G(stamps)
    ref = open(REF).read()
    g.L.append(ref[:ref.index('; Override launch')].rstrip())
    g.L.append('; @launch grid=(%d,1,1) block=(512,1,1) lds=%d' % (NWG, LDS_TOTAL))
    g.L.append('.amdgcn_target "amdgcn-amd-amdhsa--gfx950"\n.text\n.globl %s_kernel\n.p2align 8\n.type %s_kernel,@function' % (NAME, NAME))
    g.L.append('%s_kernel:' % NAME)
    g.stamp('start', (0, 1, 2, 3, 4))
    g(f's_cmp_ge_u32 s2, {NWG}\ns_cbranch_scc1 L_exit')
    g(f'''s_load_dwordx16 s[16:31], s[0:1], 0
          s_load_dwordx8 s[32:39], s[0:1], 64
          s_load_dwordx4 s[40:43], s[0:1], 96
          s_load_dwordx2 s[44:45], s[0:1], 112
          v_lshrrev_b32 v1, 6, v0
          v_and_b32 v0, 63, v0
          v_readfirstlane_b32 s3, v1
          s_mov_b32 {S_LO}, 0x05040100
          s_mov_b32 {S_HI}, 0x07060302
          s_mov_b32 {S_MASK}, 0xffff0000''')
    g(f's_cmp_lt_u32 s2, {NG}\ns_cbranch_scc1 L_proj')
    n0 = g.nst
    attention(g)
    n1 = g.nst
    armed = getattr(g, 'padarmed', False)
    latem(g)
    g.padarmed = armed
    g.nst = n1 + (1 if g.stamps and P['ST'] < 3 else 0)
    mlp(g)
    g.nst = n0
    g.padarmed = bool(PADAT) and PADAT[0] == 'start'
    proj(g)
    g('L_exit:\ns_endpgm')
    g('.fill 2048, 4, 0xbf800000')
    g.L.append('''.section .rodata,"a"
.p2align 6
.amdhsa_kernel %s_kernel
  .amdhsa_next_free_vgpr 256
  .amdhsa_next_free_sgpr 102
  .amdhsa_accum_offset 256
  .amdhsa_group_segment_fixed_size 0
  .amdhsa_kernarg_size 120
  .amdhsa_user_sgpr_count 2
  .amdhsa_user_sgpr_kernarg_segment_ptr 1
  .amdhsa_system_sgpr_workgroup_id_x 1
.end_amdhsa_kernel''' % NAME)
    return '\n'.join(g.L) + '\n'


if __name__ == '__main__':
    out = sys.argv[1]
    for a in sys.argv[2:]:
        if a.startswith('PADAT='):
            PADAT.append(a[6:])
        elif '=' in a:
            k, v = a.split('=')
            assert k in P, k
            P[k] = int(v)
    open(out, 'w').write(build(stamps='--stamps' in sys.argv))
```

```python
import sys
NAME = 'adaLN_cond__gqa_block_cached__mixer_channel_mlp__decode'
REF = 'cdna_kernels/%s.s.ref' % NAME

NG = 64
SPL = 24
NMR = 7
NA = 8 * SPL
NWG = NG + NA
WPR = SPL * 8
NU = 6

FLAGS = 0x2000
QB, STATS, X1, MODP, MODL = 0x8000, 0x10000, 0x60000, 0x20000, 0x40000
MBA, MBB, MBC = 0x100000, 0x200000, 0x300000
SLOTS = 32
MBA_ST = 2 * SLOTS * 256
WS_SIZE = 0x400000
SPIN = 1 << 18
C_A, C_B, C_R = 0, 16, 128
TMASK = 0xff

P = dict(MSL=4, LSL=8, QSL=8, ASL=2, GS=1, DK1=8, NK1=28, DK2=8, DV=12, QP0=40, QPS=8, SLEEP=0, PH=64, QG=64, DX=8, TLB=0, PRE=0, WSOFF=0, LGATE=-1, LIGHT=4, RANK=0, P1SL=8, P1TH=56, GBG=0, LQ=1, MLS=2, GJ=1, GH=1, A5W=4, FAST=8, LSKIP=0, XL=0, XW=0, XG=0, XP=0, XS=0, P1K=0, P2TH=16, P2SL=2, W2MISS=16, W2X=0, W2TH=0, NAT=1, BW=1, REP=1, LNM=1, PFA=2, PFG=2, GAE=1, NOQ=0, QW=7, SW=4, GE=0, NUG=0, RPOS=94, ILV=0, ROT=1, MW=4, HPOS=90, ST=0, DBGST=-1, PADTO=0, PADWG=-1, STPOS=-1)

S_WS, S_DBG, S_A, S_B = 's[48:51]', 's[52:55]', 's[56:59]', 's[60:63]'
S_LO, S_HI, S_MASK, S_SPIN = 's64', 's65', 's66', 's67'
S_TAG, S_EPO, S_T16 = 's26', 's27', 's1'
DPP = 'row_mask:0xf bank_mask:0xf'


def vr(a, n):
    return 'v[%d:%d]' % (a, a + n - 1)


PADAT = []


class G:
    def __init__(self, stamps=False):
        self.vm = []
        self.L = []
        self.stamps = stamps
        self.nlabel = 0
        self.nst = 0

    def __call__(self, s):
        for line in s.strip('\n').split('\n'):
            line = line.strip()
            if line:
                self.L.append(line if line.endswith(':') else '    ' + line)

    def label(self, p='L'):
        self.nlabel += 1
        return '%s_%d' % (p, self.nlabel)

    def stamp(self, name, sets=(0,)):
        if PADAT and name == PADAT[0]:
            self('s_memrealtime s[90:91]')
            self.padarmed = True
        if self.stamps and P['ST'] in sets:
            k = self.nst
            self.nst += 1
            assert k < 13 and (k < 11 or name[0] in 'gr'), name
            self('s_memrealtime s[%d:%d] ; stamp %d %s' % (70 + 2 * k, 71 + 2 * k, k, name))

    def vmop(self, text, tag):
        for line in text.strip().split('\n'):
            self(line)
            self.vm.append(tag)

    def vmwait(self, *tags):
        idx = [i for i, t in enumerate(self.vm) if t in tags]
        if not idx:
            return
        n = len(self.vm) - 1 - idx[-1]
        assert n <= 63
        self('s_waitcnt vmcnt(%d)' % n)
        self.vm = self.vm[idx[-1] + 1:]

    def nop(self, n):
        while n > 0:
            k = min(n, 16)
            self('s_nop %d' % (k - 1))
            n -= k

    def bits(self, dst, src, fields, tmp, add=None):
        first = True
        for (lo, n, mul) in fields:
            t = dst if first else tmp
            if lo == 0:
                self(f'v_and_b32 v{t}, {(1 << n) - 1}, v{src}')
            else:
                self(f'v_bfe_u32 v{t}, v{src}, {lo}, {n}')
            pw = mul & (mul - 1) == 0
            sh = mul.bit_length() - 1
            if first:
                if mul != 1:
                    self(f'v_lshlrev_b32 v{dst}, {sh}, v{dst}' if pw else f'v_mul_u32_u24 v{dst}, {mul}, v{dst}')
            elif mul == 1:
                self(f'v_add_u32 v{dst}, v{dst}, v{tmp}')
            elif pw:
                self(f'v_lshl_add_u32 v{dst}, v{tmp}, {sh}, v{dst}')
            else:
                self(f'v_mul_u32_u24 v{tmp}, {mul}, v{tmp}\nv_add_u32 v{dst}, v{dst}, v{tmp}')
            first = False
        if add not in (None, 0):
            self(f'v_add_u32 v{dst}, {add}, v{dst}')

    def setexec(self, m):
        if m == -1:
            self('s_mov_b64 exec, -1')
        elif m < (1 << 31):
            self('s_mov_b64 exec, 0x%x' % m)
        else:
            self('s_mov_b32 exec_lo, 0x%x\ns_mov_b32 exec_hi, 0x%x' % (m & 0xffffffff, m >> 32))


def rep16(m):
    return m * 0x0001000100010001


def check(g, regs, tmp, mask=TMASK):
    regs = list(regs)
    g(f'v_bitop3_b32 v{tmp}, v{regs[0]}, v{regs[1]}, {S_EPO} bitop3:0x7e')
    for r in regs[2:]:
        g(f'v_bitop3_b32 v{tmp}, v{tmp}, v{r}, {S_EPO} bitop3:0xf6')
    if mask == 0xffff:
        g(f'v_cmp_ne_u16 vcc, 0, v{tmp}')
        return
    if mask != -1:
        g(f'v_and_b32 v{tmp}, {mask}, v{tmp}')
    g(f'v_cmp_ne_u32 vcc, 0, v{tmp}')


def tagmask(g, vm):
    g(f'v_mov_b32 v{vm}, 0x{0xffffffff ^ TMASK:x}')


def tag(g, regs, vm):
    for r in regs:
        g(f'v_and_or_b32 v{r}, v{r}, v{vm}, {S_TAG}')


def epoch_load(reg):
    return f'buffer_load_dword v{reg}, off, {S_WS}, 0 sc1'


def epoch_tag(g, reg):
    g(f'''v_readfirstlane_b32 {S_EPO}, v{reg}
          s_mul_i32 {S_TAG}, {S_EPO}, 0x9e3779b1
          s_lshr_b32 {S_TAG}, {S_TAG}, 12
          s_or_b32 {S_TAG}, {S_TAG}, 1
          s_add_u32 {S_EPO}, {S_EPO}, {S_TAG}
          s_and_b32 {S_TAG}, {S_EPO}, {TMASK}
          s_and_b32 {S_T16}, {S_EPO}, 0xffff''')


def poll(g, loads, regs, tmp, sleep=0, preloaded=False, mask=TMASK):
    lp, done, chk = g.label('L_poll'), g.label('L_ok'), g.label('L_chk')
    g(f's_mov_b32 {S_SPIN}, {SPIN}')
    if preloaded:
        g(f's_branch {chk}')
    g(lp + ':')
    g(loads)
    g('s_waitcnt vmcnt(0)')
    if preloaded:
        g(chk + ':')
    check(g, regs, tmp, mask)
    g(f's_cbranch_vccz {done}')
    if sleep:
        g(f's_sleep {sleep}')
    g(f's_sub_u32 {S_SPIN}, {S_SPIN}, 1\ns_cbranch_scc0 {lp}')
    g(done + ':')


def faddr(soff, off):
    return f's_lshl_b32 s98, {soff}, 8\ns_add_u32 s98, s98, {FLAGS + 256 * off}\n'


def fread(reg, soff, off):
    return faddr(soff, off) + f'buffer_load_dword v{reg}, off, {S_WS}, s98 sc1'


def fpoll(g, reg, soff, off, sleep, preloaded=False):
    lp, done, chk = g.label('L_fpoll'), g.label('L_fok'), g.label('L_fchk')
    g(f's_mov_b32 {S_SPIN}, {SPIN}')
    if preloaded:
        g(f's_branch {chk}')
    g(lp + ':')
    g(fread(reg, soff, off) + '\ns_waitcnt vmcnt(0)')
    if preloaded:
        g(chk + ':')
    g(f'v_cmp_ne_u32 vcc, {S_EPO}, v{reg}\ns_cbranch_vccz {done}')
    if sleep:
        g(f's_sleep {sleep}')
    g(f's_sub_u32 {S_SPIN}, {S_SPIN}, 1\ns_cbranch_scc0 {lp}')
    g(done + ':')


def fwait(g, reg, soff, off, sleep):
    skip = only_wave(g, 0)
    fpoll(g, reg, soff, off, sleep)
    g(skip + ':')
    g('s_barrier')


def arrive(g, reg, soff, off):
    g(f'v_mov_b32 v{reg}, 1\ns_mov_b64 exec, 1\nbuffer_atomic_add v{reg}, off, {S_DBG}, {soff} offset:{off} sc0 sc1\ns_mov_b64 exec, -1')


def arrived(g, reg, soff, off, n):
    skip = g.label('L_notlast')
    g(f'v_readfirstlane_b32 s99, v{reg}\ns_cmp_lg_u32 s99, {n - 1}\ns_cbranch_scc1 {skip}')
    g(faddr(soff, off) + f'v_mov_b32 v{reg}, {S_EPO}\ns_mov_b64 exec, 1\nbuffer_store_dword v{reg}, off, {S_WS}, s98 sc1\ns_mov_b64 exec, -1')
    g(skip + ':')


def srd(g, s, lo, size):
    base = int(s[2:s.index(':')])
    if lo == 44 and P['WSOFF']:
        g(f's_add_u32 s{base}, s44, {P["WSOFF"] << 20}\ns_addc_u32 s{base + 1}, s45, 0\ns_mov_b32 s{base + 2}, 0x{size:x}\ns_mov_b32 s{base + 3}, 0x20000')
        return
    g(f's_mov_b32 s{base}, s{lo}\ns_mov_b32 s{base + 1}, s{lo + 1}\ns_mov_b32 s{base + 2}, 0x{size:x}\ns_mov_b32 s{base + 3}, 0x20000')


def consts(g):
    g(f's_mov_b32 {S_LO}, 0x05040100\ns_mov_b32 {S_HI}, 0x07060302\ns_mov_b32 {S_MASK}, 0xffff0000')


def only_wave(g, w):
    skip = g.label('L_skip')
    g(f's_cmp_lg_u32 s3, {w}\ns_cbranch_scc1 {skip}')
    return skip


def write_stamps(g):
    if PADAT and getattr(g, 'padarmed', False):
        l = g.label('L_padat')
        g(f'{l}:\ns_memrealtime s[4:5]\ns_waitcnt lgkmcnt(0)\ns_sub_u32 s4, s4, s90\ns_sleep 4\ns_cmp_lt_u32 s4, 6000\ns_cbranch_scc1 {l}')
    if not g.stamps:
        return
    g('s_waitcnt lgkmcnt(0)')
    skip = only_wave(g, 0)
    g('s_mov_b64 exec, 1')
    if P['DBGST'] >= 0:
        g(f's_cmp_lg_u32 s2, {P["DBGST"]}\ns_cbranch_scc1 {skip}')
        for k in range(1, min(g.nst, 12)):
            g(f's_sub_u32 s4, s{70 + 2 * k}, s70\nv_mov_b32 v2, s4')
            g(f'buffer_store_dword v2, off, {S_DBG}, 0 offset:{16 + 4 * k}')
        g(skip + ':')
        return
    g('s_lshl_b32 s4, s2, 8\ns_add_u32 s4, s44, s4\ns_addc_u32 s5, s45, 0')
    g('s_add_u32 s4, s4, %d\ns_addc_u32 s5, s5, 0' % (255 << 20))
    g('v_mov_b32 v1, 0')
    for k in range(g.nst):
        g(f'v_mov_b32 v2, s{70 + 2 * k}\nv_mov_b32 v3, s{71 + 2 * k}')
        g(f'global_store_dwordx2 v1, v[2:3], s[4:5] offset:{8 * k}')
        g('s_nop 1')
    g(skip + ':')


def prefetch_code(g, label, nkb8, vtmp, vdst, tag=None):
    pc = g.label('L_pc')
    g('s_getpc_b64 s[98:99]')
    if label:
        g(f'{pc}:\ns_add_u32 s98, s98, {label}-{pc}\ns_addc_u32 s99, s99, 0')
    g('s_and_b32 s98, s98, 0xffffff80')
    g(f's_lshl_b32 s97, s3, 10\nv_lshl_add_u32 v{vtmp}, v0, 4, s97')
    for i in range(nkb8):
        if i:
            g(f'v_add_u32 v{vtmp}, 8192, v{vtmp}')
        t = f'global_load_dwordx4 {vr(vdst, 4)}, v{vtmp}, s[98:99]'
        g.vmop(t, tag) if tag else g(t)


BLK = lambda i: 64 + 32 * i
UA, UB, UC = 0, 2, 4
ACC = 32
KW, NB, NW, NR, NO, KB, TID = 1, 2, 3, 4, 5, 6, 7
T = 24


class Lds:
    def __init__(self, base):
        self.ACTS, self.ACTH, self.RED = base, base + 4352, base + 8704
        self.OUTV = base + 17408
        self.PART = base + 17664
        self.STAT = base + 18688
        self.END = base + 19200


ABS = 2048 + 128


def nstep():
    return 1 if P['NAT'] else 64


def nvoff(g, dst, rs, tid=TID, tmp=T + 7):
    g.bits(dst, tid, [(3, 6, rs * 8 if P['NAT'] else rs), (0, 3, 16)], tmp)


def nload(g, unit, ptr, size, rs, s_col, voff, kbs=(0, 1), tag=None):
    srd(g, S_A, ptr, size)
    for kb in kbs:
        g(f's_add_u32 s4, {s_col}, {kb * 512 * rs}')
        for t in range(8):
            g.vmop(f'buffer_load_dwordx4 {vr(BLK(unit + kb) + 4 * t, 4)}, v{voff}, {S_A}, s4 offen nt', (tag, kb))
            if t < 7:
                g(f's_add_u32 s4, s4, {nstep() * rs}')


def kload(g, unit, ptr, size, s_idx, voff, rowf, tag, s_xor=None):
    srd(g, S_A, ptr, size)
    g(f's_lshl_b32 s5, {s_idx}, 17')
    for kb in range(2):
        for t in range(8):
            g(f's_add_u32 s4, s5, {rowf(kb, t) * 2048}')
            if s_xor:
                g(f's_xor_b32 s4, s4, {s_xor}')
            g.vmop(f'buffer_load_dwordx4 {vr(BLK(unit + kb) + 4 * t, 4)}, v{voff}, {S_A}, s4 offen nt', (tag, kb))


def transpose(g, blk, T=T):
    b = BLK(blk)
    for p in range(4):
        a, c = b + 8 * p + p, b + 8 * p + 4 + p
        g(f'v_perm_b32 v{T}, v{c}, v{a}, {S_LO}\nv_perm_b32 v{c}, v{c}, v{a}, {S_HI}\nv_mov_b32 v{a}, v{T}')
    for p in range(4):
        for w in range(p + 1, 4):
            xa, xb = b + 8 * p + w, b + 8 * p + 4 + w
            ya, yb = b + 8 * w + p, b + 8 * w + 4 + p
            g(f'v_perm_b32 v{T}, v{xb}, v{xa}, {S_LO}\nv_perm_b32 v{T + 1}, v{xb}, v{xa}, {S_HI}')
            g(f'v_perm_b32 v{xa}, v{yb}, v{ya}, {S_LO}\nv_perm_b32 v{xb}, v{yb}, v{ya}, {S_HI}')
            g(f'v_mov_b32 v{ya}, v{T}\nv_mov_b32 v{yb}, v{T + 1}')


def mfmas(g, unit, b0, b1):
    for kb, bop in ((0, b0), (1, b1)):
        if kb == 1:
            g('s_waitcnt lgkmcnt(0)')
        for j in range(8):
            d = vr(ACC + 4 * j, 4)
            g(f'v_mfma_f32_16x16x32_bf16 {d}, {vr(BLK(unit + kb) + 4 * j, 4)}, {vr(bop, 4)}, {d if kb else 0}')


def common_addr(g, L, kperm):
    K0B = T + 6
    g(f's_lshl_b32 s4, s3, 6\nv_add_u32 v{TID}, s4, v0')
    g.bits(K0B, TID, [(3, 6, 64), (0, 2, 16), (2, 1, 8)], T)
    if P['NAT']:
        g.bits(KW, K0B, [(11, 1, ABS), (0, 11, 1)], T)
        g.bits(NB, TID, [(0, 1, ABS), (6, 3, 128), (4, 2, 32), (1, 1, 16)], T)
    else:
        g.bits(KW, K0B, [(11, 1, ABS), (4, 3, 256), (10, 1, 128), (1, 3, 16), (7, 3, 2)], T)
        g.bits(NB, TID, [(0, 1, ABS), (6, 3, 256), (4, 2, 32), (1, 1, 16)], T)
    g.bits(NW, TID, [(6, 3, 1088), (1, 1, 544), (0, 1, 256), (2, 2, 32), (4, 1, 16)], T, L.RED)
    g.bits(NR, TID, [(0, 2, 544), (2, 7, 4)], T, L.RED)
    if kperm:
        g.bits(NO, TID, [(8, 1, 128), (4, 1, 64), (5, 1, 32), (7, 1, 16), (2, 2, 4), (6, 1, 2)], T, L.OUTV)
    else:
        g.bits(NO, TID, [(8, 1, 128), (2, 3, 16), (5, 2, 4), (7, 1, 2)], T, L.OUTV)
    g.bits(KB, TID, [(0, 1, 128), (4, 2, 16)], T, L.OUTV)


def nsplit(g, unit, act, half=None):
    if half is None:
        g(f'ds_read_b128 {vr(T, 4)}, v{NB} offset:{act}\nds_read_b128 {vr(T + 4, 4)}, v{NB} offset:{act + (1024 if P["NAT"] else 128)}')
        g('s_waitcnt lgkmcnt(1)')
        mfmas(g, unit, T, T + 4)
    else:
        g(f'ds_read_b128 {vr(T, 4)}, v{half} offset:{act}\ns_waitcnt lgkmcnt(0)')
        for j in range(8):
            g(f'v_mfma_f32_16x16x32_bf16 {vr(ACC + 4 * j, 4)}, {vr(BLK(unit) + 4 * j, 4)}, {vr(T, 4)}, 0')
    for dd in range(1, 4):
        g.setexec(rep16(0xf << (4 * dd)))
        if dd != 2:
            g.nop(2)
        for i in range(4):
            g(f'v_mov_b64 {vr(ACC + 2 * i, 2)}, {vr(ACC + 8 * dd + 2 * i, 2)}')
    g.setexec(0xcccccccc33333333)
    g(f'ds_write_b128 v{NW}, {vr(ACC, 4)}\nds_write_b128 v{NW}, {vr(ACC + 4, 4)} offset:128')
    g.setexec(-1)
    g('s_waitcnt lgkmcnt(0)\ns_barrier')
    for k in range(4):
        g(f'ds_read_b32 v{T + k}, v{NR} offset:{k * 4 * 544}')
    g('s_waitcnt lgkmcnt(2)')
    g(f'v_add_f32 v{T}, v{T}, v{T + 1}')
    g('s_waitcnt lgkmcnt(0)')
    g(f'v_add_f32 v{T + 2}, v{T + 2}, v{T + 3}\nv_add_f32 v{T}, v{T}, v{T + 2}')
    g.nop(2)
    g(f'v_add_f32_dpp v{T}, v{T}, v{T} quad_perm:[1,0,3,2] {DPP}')
    g.nop(2)
    g(f'v_add_f32_dpp v{T}, v{T}, v{T} quad_perm:[2,3,0,1] {DPP}')


def actwrite(g, p, act):
    if P['NAT']:
        g(f'ds_write_b64 v{KW}, {vr(p, 2)} offset:{act}')
        return
    g(f'ds_write_b16 v{KW}, v{p} offset:{act}\nds_write_b16_d16_hi v{KW}, v{p} offset:{act + 16}')
    g(f'ds_write_b16 v{KW}, v{p + 1} offset:{act + 32}\nds_write_b16_d16_hi v{KW}, v{p + 1} offset:{act + 48}')


def unpack2(g, d, s):
    g(f'v_lshlrev_b32 v{d}, 16, v{s}\nv_and_b32 v{d + 1}, {S_MASK}, v{s}')


def unpack(g, d, s):
    unpack2(g, d, s)
    unpack2(g, d + 2, s + 1)


def pack(g, t, d):
    g(f'v_cvt_pk_bf16_f32 v{t}, v{d}, v{d + 1}\nv_cvt_pk_bf16_f32 v{t + 1}, v{d + 2}, v{d + 3}')


def round4(g, d, t):
    pack(g, t, d)
    unpack(g, d, t)


def round2(g, a):
    g(f'v_cvt_pk_bf16_f32 v{a + 1}, v{a}, v{a + 1}')
    unpack2(g, a, a + 1)


def pk4(g, op, d, a, b):
    g(f'{op} {vr(d, 2)}, {vr(a, 2)}, {vr(b, 2)}\n{op} {vr(d + 2, 2)}, {vr(a + 2, 2)}, {vr(b + 2, 2)}')


def layernorm(g, x, sw, sr, off, last_packed=False):
    a, b = T + 4, T + 5
    g(f'v_add_f32 v{a}, v{x}, v{x + 1}\nv_mul_f32 v{b}, v{x}, v{x}')
    g(f'v_add_f32 v{T}, v{x + 2}, v{x + 3}\nv_fmac_f32 v{b}, v{x + 1}, v{x + 1}')
    g(f'v_add_f32 v{a}, v{a}, v{T}\nv_fmac_f32 v{b}, v{x + 2}, v{x + 2}\nv_fmac_f32 v{b}, v{x + 3}, v{x + 3}')
    for i, ctl in enumerate(['row_ror:8 ' + DPP, 'row_ror:4 ' + DPP, 'row_ror:2 ' + DPP, 'row_ror:1 ' + DPP,
                             'row_bcast:15 row_mask:0xa bank_mask:0xf', 'row_bcast:31 row_mask:0xc bank_mask:0xf']):
        if i:
            g('s_nop 0')
        g(f'v_add_f32_dpp v{a}, v{a}, v{a} {ctl}')
        if i == 0:
            g('s_nop 0')
        g(f'v_add_f32_dpp v{b}, v{b}, v{b} {ctl}')
    g.setexec(1 << 63)
    g(f'ds_write_b64 v{sw}, {vr(a, 2)} offset:{off}')
    g.setexec(-1)
    g('s_waitcnt lgkmcnt(0)\ns_barrier')
    g(f'ds_read_b128 {vr(T, 4)}, v{sr} offset:{off}\nds_read_b128 {vr(T + 4, 4)}, v{sr} offset:{off + 16}')
    g('s_waitcnt lgkmcnt(0)')
    pk4(g, 'v_pk_add_f32', T, T, T + 4)
    g(f'v_pk_add_f32 {vr(a, 2)}, {vr(T, 2)}, {vr(T + 2, 2)}')
    g(f'v_mul_f32 v{a}, 0x3a800000, v{a}\nv_mul_f32 v{b}, 0x3a800000, v{b}')
    g(f'v_fma_f32 v{b}, -v{a}, v{a}, v{b}\nv_max_f32 v{b}, 0, v{b}')
    round2(g, a)
    g(f'v_add_f32 v{b}, 0x3727c5ac, v{b}')
    g(f'v_cvt_pk_bf16_f32 v{b}, v{b}, v{b}\nv_lshlrev_b32 v{b}, 16, v{b}')
    g(f'v_sqrt_f32 v{b}, v{b}')
    for i in range(4):
        g(f'v_sub_f32 v{x + i}, v{x + i}, v{a}')
    g(f'v_cvt_pk_bf16_f32 v{b}, v{b}, v{b}\nv_lshlrev_b32 v{b}, 16, v{b}')
    g(f'v_rcp_f32 v{b}, v{b}')
    round4(g, x, T + 6)
    for i in range(4):
        g(f'v_mul_f32 v{x + i}, v{x + i}, v{b}')
    if last_packed:
        pack(g, T + 6, x)
    else:
        round4(g, x, T + 6)


def blocksum6(g, r, sw6, sr6, off, out):
    g.nop(1)
    for i in (0, 2, 4):
        g(f'v_permlane32_swap_b32 v{r + i}, v{r + i + 1}')
    for i in (0, 2, 4):
        g(f'v_add_f32 v{r + i}, v{r + i}, v{r + i + 1}')
    g(f'v_mov_b32 v{r + 5}, v{r + 4}\nv_permlane16_swap_b32 v{r}, v{r + 2}\nv_add_f32 v{r}, v{r}, v{r + 2}')
    g(f'v_permlane16_swap_b32 v{r + 4}, v{r + 5}\nv_add_f32 v{r + 4}, v{r + 4}, v{r + 5}')
    for i, sh in enumerate((8, 4, 2, 1)):
        if i:
            g('s_nop 0')
        g(f'v_add_f32_dpp v{r}, v{r}, v{r} row_ror:{sh} {DPP}')
        if i == 0:
            g('s_nop 0')
        g(f'v_add_f32_dpp v{r + 4}, v{r + 4}, v{r + 4} row_ror:{sh} {DPP}')
    g(f'ds_write_b32 v{sw6}, v{r} offset:{off}\nds_write_b32 v{sw6}, v{r + 4} offset:{off + 64}')
    g('s_waitcnt lgkmcnt(0)\ns_barrier')
    for i, o in enumerate((0, 16, 32, 48, 64, 96)):
        g(f'ds_read_b128 {vr(out + 4 * i, 4)}, v{sr6} offset:{off + o}')
    for i in range(6):
        g(f's_waitcnt lgkmcnt({5 - i})')
        g(f'v_pk_add_f32 {vr(out + 4 * i, 2)}, {vr(out + 4 * i, 2)}, {vr(out + 4 * i + 2, 2)}')
    for i in range(6):
        g(f'v_add_f32 v{out + i}, v{out + 4 * i}, v{out + 4 * i + 1}')


def rstd(g, mean, var):
    g(f'v_max_f32 v{var}, 0, v{var}')
    round2(g, mean)
    g(f'v_add_f32 v{var}, 0x3727c5ac, v{var}')
    g(f'v_cvt_pk_bf16_f32 v{var}, v{var}, v{var}\nv_lshlrev_b32 v{var}, 16, v{var}\nv_sqrt_f32 v{var}, v{var}\ns_nop 0')
    g(f'v_cvt_pk_bf16_f32 v{var}, v{var}, v{var}\nv_lshlrev_b32 v{var}, 16, v{var}\nv_rcp_f32 v{var}, v{var}')


def ksplit_out(g, unit, po, mb):
    g(f'ds_read_b128 {vr(T, 4)}, v{KB}\nds_read_b128 {vr(T + 4, 4)}, v{KB} offset:64')
    g('s_waitcnt lgkmcnt(1)')
    mfmas(g, unit, T, T + 4)
    tagmask(g, T)
    for j in range(1, 8):
        g.setexec(rep16(3 << (2 * j)))
        g(f'v_mov_b64 {vr(ACC, 2)}, {vr(ACC + 4 * j, 2)}\nv_mov_b64 {vr(ACC + 2, 2)}, {vr(ACC + 4 * j + 2, 2)}')
    g.setexec(-1)
    tag(g, range(ACC, ACC + 4), T)
    g(f'buffer_store_dwordx4 {vr(ACC, 4)}, v{po}, {S_WS}, {mb} offen sc1')


def publish32(g, L, s_off, bstride, exact):
    g(f'v_subrev_u32 v{T + 1}, {L.OUTV}, v{NO}\nv_lshlrev_b32 v{T + 1}, 1, v{T + 1}\nds_write_b32 v{T + 1}, v{T} offset:{L.PART}')
    g('s_waitcnt lgkmcnt(0)\ns_barrier')
    skip = only_wave(g, 0)
    if exact:
        g(f'v_lshlrev_b32 v{T + 4}, 3, v0\nds_read_b64 {vr(T + 6, 2)}, v{T + 4} offset:{L.PART}')
        g.bits(T + 5, 0, [(5, 1, bstride), (0, 5, 16)], T + 4)
        g(f'v_mov_b32 v{T + 1}, {S_EPO}\nv_mov_b32 v{T + 3}, {S_EPO}\ns_waitcnt lgkmcnt(0)')
        g(f'v_mov_b32 v{T}, v{T + 6}\nv_mov_b32 v{T + 2}, v{T + 7}')
    else:
        g(f'v_lshlrev_b32 v{T + 4}, 4, v0\nds_read_b128 {vr(T, 4)}, v{T + 4} offset:{L.PART}')
        g.bits(T + 5, 0, [(4, 1, bstride), (0, 4, 16)], T + 6)
        g('s_waitcnt lgkmcnt(0)\ns_mov_b32 exec_hi, 0')
    g(f'buffer_store_dwordx4 {vr(T, 4)}, v{T + 5}, {S_WS}, {s_off} offen sc1')
    g.setexec(-1)
    g('s_nop 0')
    g(skip + ':')


def qjob_issue(g, blk, s_job, voff, lg=2):
    g(f'''s_and_b32 s15, {s_job}, {(1 << lg) - 1}
          s_lshr_b32 s6, {s_job}, {lg}
          s_lshl_b32 s6, s6, 7
          s_mul_i32 s13, s15, {(1024 >> lg) * 12288}
          s_add_u32 s13, s13, s6
          s_add_u32 s13, s13, 4096''')
    nload(g, blk, 38, 1024 * 12288, 12288, 's13', voff, (0,), tag='qj')


def qjob_voff(g, voff, lg=2):
    nvoff(g, voff, 12288)
    if lg == 1:
        return
    g(f's_lshr_b32 s4, s3, 2\ns_lshl_b32 s4, s4, 24\nv_add_u32 v{voff}, s4, v{voff}')


def qjob_finish(g, L, blk, va, vm, lg=2):
    g(f's_lshl_b32 s12, s15, 15\ns_lshl_b32 s5, s6, 1\ns_add_u32 s12, s12, s5\ns_add_u32 s12, s12, {MODL}')
    if lg == 2:
        g(f's_lshr_b32 s4, s3, 2\ns_sub_u32 s4, s15, s4\ns_lshl_b32 s4, s4, 9\nv_add_u32 v{va}, s4, v{NB}')
    else:
        g(f's_lshl_b32 s4, s15, 10\nv_add_u32 v{va}, s4, v{NB}')
    tagmask(g, vm)
    g.vmwait(('qj', 0))
    g.stamp('l_land', (4,) if L.ACTS == MLP_LDS else ())
    transpose(g, blk)
    g.stamp('l_tr', (4,) if L.ACTS == MLP_LDS else ())
    nsplit(g, blk, L.ACTS, va)
    g.stamp('l_ns', (4,) if L.ACTS == MLP_LDS else ())
    tag(g, [T], vm)
    publish32(g, L, 's12', 16384, False)


def silu_image(g, L, src):
    unpack(g, ACC, src)
    for i in range(4):
        g(f'v_mul_f32 v{T + i}, 0xbfb8aa3b, v{ACC + i}')
    for i in range(4):
        g(f'v_exp_f32 v{T + i}, v{T + i}')
    for i in range(4):
        g(f'v_add_f32 v{T + i}, 1.0, v{T + i}')
    for i in range(4):
        g(f'v_rcp_f32 v{T + i}, v{T + i}')
    for i in range(4):
        g(f'v_mul_f32 v{T + i}, v{T + i}, v{ACC + i}')
    pack(g, T + 4, T)
    actwrite(g, T + 4, L.ACTS)


def proj(g):
    L = Lds(8448)
    Y, SB = 8, 12
    PO, RO, RL, OUTO = 8, 9, 10, 11
    WG, AO, AO3, OW = 12, 17, 18, 16
    WQO, WMO, SW, SR = 17, 18, 19, 23
    RX, RGA, RGB, RB2 = 20, 21, 22, 23
    JC, ODD = 's14', 's15'
    g.vm = []

    def reduce(mb, nprod, part):
        GR = ('s4', 's5', 's6', 's47')[:4 if part == 0 or P['GBG'] or P['LQ'] == 2 else 2]
        if part == 0 and P['GAE']:
            GR = ()
        for i, r in enumerate(GR):
            g(f's_mov_b32 {r}, {MODL + part * 4096 + 32768 * i}')
        if nprod < 64:
            g(f'v_mov_b32 v{T}, 0')
            skip = g.label('L_nored')
            g(f's_cmp_ge_u32 s3, {nprod // 8}\ns_cbranch_scc1 {skip}')
        l0, l1 = g.label('L_red0'), g.label('L_red1')
        ld = f'buffer_load_dwordx4 {vr(T, 4)}, v{RO}, {S_WS}, {mb} offen sc1'
        if GR:
            g(f's_cmp_eq_u32 s3, 0\ns_cbranch_scc1 {l0}')
            poll(g, ld, range(T, T + 4), T + 4)
            g(f's_branch {l1}\n{l0}:')
        poll(g, ld + ''.join(f'\nbuffer_load_dwordx2 {vr(ACC + 18 + 2 * i, 2)}, v{RGA}, {S_WS}, {r} offen sc1'
                             for i, r in enumerate(GR)),
             list(range(T, T + 4)) + list(range(ACC + 18, ACC + 18 + 2 * len(GR))), T + 4)
        g(l1 + ':')
        g.stamp('red_polled%d' % nprod, (1,))
        g(f'v_permlane32_swap_b32 v{T}, v{T + 2}\nv_permlane32_swap_b32 v{T + 1}, v{T + 3}')
        g(f'v_add_f32 v{T}, v{T}, v{T + 2}\nv_add_f32 v{T + 1}, v{T + 1}, v{T + 3}')
        g.nop(2)
        g(f'v_permlane16_swap_b32 v{T}, v{T + 1}\nv_add_f32 v{T}, v{T}, v{T + 1}')
        g.nop(2)
        g(f'v_add_f32_dpp v{T}, v{T}, v{T} row_ror:8 {DPP}')
        if nprod < 64:
            g(skip + ':')
        g(f'ds_write_b32 v{RL}, v{T}')
        g('s_waitcnt lgkmcnt(0)\ns_barrier')
        skip = only_wave(g, 0)
        g(f'v_and_b32 v{T + 2}, 15, v0\nv_lshlrev_b32 v{T + 2}, 3, v{T + 2}')
        for w in range(8):
            g(f'ds_read_b64 {vr(ACC + 2 * w, 2)}, v{T + 2} offset:{L.PART + 128 * w}')
        if len(GR) == 4:
            pk4(g, 'v_pk_add_f32', ACC + 18, ACC + 18, ACC + 22)
        if GR:
            g(f'v_pk_add_f32 {vr(ACC + 18, 2)}, {vr(ACC + 18, 2)}, {vr(ACC + 20, 2)}')
            round2(g, ACC + 18)
        else:
            unpack2(g, ACC + 18, RGB)
        return skip

    def reduce_sum():
        g('s_waitcnt lgkmcnt(4)')
        pk4(g, 'v_pk_add_f32', ACC, ACC, ACC + 4)
        g('s_waitcnt lgkmcnt(0)')
        pk4(g, 'v_pk_add_f32', ACC + 8, ACC + 8, ACC + 12)
        pk4(g, 'v_pk_add_f32', ACC, ACC, ACC + 8)
        g(f'v_pk_add_f32 {vr(T, 2)}, {vr(ACC, 2)}, {vr(ACC + 2, 2)}')
        round2(g, T)

    g('L_proj:')
    if P['PFG'] == 3:
        g(f's_getpc_b64 s[98:99]\nL_pc0:\ns_sub_u32 s98, s98, L_pc0-{NAME}_kernel\ns_subb_u32 s99, s99, 0')
        g(f's_and_b32 s4, s2, 56\ns_add_u32 s4, s4, s3\ns_lshl_b32 s4, s4, 9\nv_lshl_add_u32 v{T}, v0, 3, s4')
        g.vmop(f'global_load_dwordx2 {vr(ACC + 4, 2)}, v{T}, s[98:99]', 'in')
    g(f's_and_b32 {JC}, s2, 7\ns_lshl_b32 {JC}, {JC}, 3\ns_lshr_b32 s4, s2, 3\ns_add_u32 {JC}, {JC}, s4')
    g(f's_lshl_b32 s4, s3, 6\nv_add_u32 v{TID}, s4, v0')
    nvoff(g, WMO, 12288)
    g(f'''s_and_b32 {ODD}, {JC}, 1
          s_lshr_b32 s6, {JC}, 1
          s_lshl_b32 s6, s6, 7
          s_mul_i32 s13, {ODD}, {512 * 12288}
          s_add_u32 s13, s13, s6''')
    g.bits(T + 6, TID, [(3, 6, 64), (0, 2, 16), (2, 1, 8)], T)
    g('s_waitcnt lgkmcnt(0)')
    srd(g, S_B, 36, 4096)
    g.vmop(f'buffer_load_dwordx2 {vr(SB, 2)}, v{T + 6}, {S_B}, 0 offen', 'in')
    g('s_mov_b32 s60, s16\ns_mov_b32 s61, s17')
    g.vmop(f'buffer_load_dwordx2 {vr(SB + 2, 2)}, v{T + 6}, {S_B}, 0 offen', 'in')
    srd(g, S_WS, 44, WS_SIZE)
    g.vmop(epoch_load(RGB), 'in')
    if P['PFG'] == 2:
        skip = g.label('L_nopf')
        g(f's_cmp_ge_u32 s2, 8\ns_cbranch_scc1 {skip}')
        prefetch_code(g, None, 2, T, ACC + 4)
        g(skip + ':')
    nload(g, UA, 38, 1024 * 12288, 12288, 's13', WMO, (0,), tag='m1')
    consts(g)
    g(f's_lshl_b32 s7, {JC}, 7\ns_lshr_b32 s46, {JC}, 4\ns_lshl_b32 s46, s46, 2')
    g(f's_lshl_b32 s47, {ODD}, 15\ns_lshl_b32 s5, s6, 2\ns_add_u32 s47, s47, s5\ns_add_u32 s47, s47, {MODP}')
    common_addr(g, L, False)
    nvoff(g, WQO, 8192)
    g(f's_lshl_b32 s4, s3, 3\nv_mov_b32 v{SW}, s4\ns_and_b32 s4, s4, 32\nv_mov_b32 v{SR}, s4')
    g(f's_mul_i32 s8, {JC}, {MBA_ST}\ns_add_u32 s8, s8, {MBA}')
    g(f's_lshl_b32 s9, {JC}, 13\ns_add_u32 s10, s9, {MBC}\ns_add_u32 s9, s9, {MBB}')
    g(f's_lshl_b32 s11, {JC}, 7\ns_add_u32 s11, s11, {X1}')
    g.vmwait('in')
    epoch_tag(g, RGB)
    silu_image(g, L, SB)
    unpack(g, Y, SB + 2)
    layernorm(g, Y, SW, SR, L.STAT)
    nload(g, UB, 22, 1024 * 8192, 8192, 's7', WQO, (0,), tag='wq')
    g('s_waitcnt vmcnt(8)')
    transpose(g, UA)
    g(f's_lshl_b32 s4, {ODD}, {10 if P["NAT"] else 7}\nv_add_u32 v{T + 7}, s4, v{NB}')
    nsplit(g, UA, L.ACTS, T + 7)
    publish32(g, L, 's47', 16384, True)
    g.stamp('g_mod')
    nload(g, UB, 22, 1024 * 8192, 8192, 's7', WQO, (1,), tag='wq')
    MP = RGA
    g.bits(MP, TID, [(8, 1, 16384), (3, 5, 256), (0, 2, 64), (2, 1, 32)], T + 7, MODP)
    g('s_waitcnt vmcnt(8)')
    transpose(g, UB)
    g(f's_mov_b32 s4, 8192\ns_mov_b32 s5, 32768\ns_mov_b32 s12, {32768 + 8192}')
    mloads = '\n'.join(f'buffer_load_dwordx4 {vr(ACC + 4 * i, 4)}, v{MP}, {S_WS}, {("0", "s5", "s4", "s12")[i >> 1]} offen offset:{16 * (i & 1)} sc1'
                       for i in range(8))
    g(f's_waitcnt vmcnt({P["MW"]})')
    g(mloads)
    attention(g, 'g_addr')
    attention(g, 'g_issue', range(P['GE']))
    g(f's_waitcnt vmcnt({8 + P["GE"]})')
    transpose(g, UB + 1)
    g(f's_waitcnt vmcnt({P["GE"]})')
    poll(g, mloads, range(ACC + 1, ACC + 32, 2), T, P['MSL'], preloaded=True, mask=-1)
    g.vm = []
    g.stamp('g_modseen')
    for i in range(4):
        g(f'v_add_f32 v{T + i}, v{ACC + 16 + 2 * i}, v{ACC + 24 + 2 * i}')
    for i in range(4):
        g(f'v_add_f32 v{ACC + i}, v{ACC + 2 * i}, v{ACC + 8 + 2 * i}')
    round4(g, T, T + 4)
    for i in range(4):
        g(f'v_add_f32 v{T + i}, 1.0, v{T + i}')
    round4(g, T, T + 4)
    pk4(g, 'v_pk_mul_f32', Y, Y, T)
    round4(g, Y, T + 4)
    round4(g, ACC, T + 4)
    pk4(g, 'v_pk_add_f32', Y, Y, ACC)
    pack(g, T, Y)
    actwrite(g, T, L.ACTH)
    g('s_waitcnt lgkmcnt(0)\ns_barrier')
    nsplit(g, UB, L.ACTH)
    g(f's_lshl_b32 s12, s7, 1\ns_add_u32 s12, s12, {QB}')
    g(f'v_cvt_pk_bf16_f32 v{T}, v{T}, v{T}\nv_lshl_or_b32 v{T}, v{T}, 16, {S_T16}')
    publish32(g, L, 's12', 16384, False)
    g.stamp('g_q')

    attention(g, 'g_issue', range(P['GE'], 16 * P['NUG']))
    if P['NUG']:
        attention(g, 'g_q')
    assert not P['NUG'] and P['NAT']
    qjob_voff(g, WMO)
    qjob_issue(g, UA, JC, WMO)
    g.bits(T + 5, TID, [(4, 2, 4096), (6, 3, 256), (0, 4, 16)], T + 7)
    kload(g, UC, 24, 4096 * 2048, JC, T + 5, lambda kb, t: 32 * kb + (t & 3) * 8 + (t >> 2), 'wo')
    qjob_finish(g, L, UA, 8, 9)
    if P['GH']:
        assert P['LQ'] == 1 and P['GJ'] == 1 and not P['GBG']
        qjob_voff(g, WMO, 1)
        g(f's_add_u32 s47, {JC}, 32')
        qjob_issue(g, UA, 's47', WMO, 1)
        qjob_finish(g, L, UA, 8, 9, 1)
    if P['GJ'] > 1:
        assert P['LQ'] == 2 and not P['GBG']
        lp = g.label('L_gj')
        g(f's_add_u32 s47, {JC}, 64\n{lp}:')
        qjob_issue(g, UA, 's47', WMO)
        qjob_finish(g, L, UA, 8, 9)
        g(f's_add_u32 s47, s47, 64\ns_cmp_lt_u32 s47, {64 * P["GJ"]}\ns_cbranch_scc1 {lp}')
    if P['GBG']:
        g(f's_add_u32 s47, {JC}, 192')
        qjob_issue(g, UA, 's47', WMO)
        qjob_finish(g, L, UA, 8, 9)
    g(f's_and_b32 {ODD}, {JC}, 1')
    if P['NUG']:
        attention(g, 'g_compute')
        g.stamp('g_att')
        common_addr(g, L, False)
    g(f'v_lshlrev_b32 v{RO}, 4, v{TID}')
    g('s_waitcnt vmcnt(0)')
    g.vm = []
    transpose(g, UC)
    transpose(g, UC + 1)
    g.stamp('g_loaded')
    g(f's_lshr_b32 s4, {JC}, 1\ns_lshl_b32 s4, s4, 6\ns_lshl_b32 s5, {ODD}, 3\ns_add_u32 s4, s4, s5')
    g.bits(T, 0, [(1, 2, 16), (0, 1, 4)], T + 1, 's4')
    srd(g, S_B, 34, 2048)
    g(f'buffer_load_dword v{RB2}, v{T}, {S_B}, 0 offen')
    g(f'v_bfe_u32 v{T + 1}, v0, 3, 1\nv_lshlrev_b32 v{RGA}, 1, v{T}\nv_lshl_add_u32 v{RGA}, v{T + 1}, 14, v{RGA}')
    g(f'v_lshl_add_u32 v{OUTO}, v{T + 1}, 11, v{T}')
    srd(g, S_B, 16, 4096)
    g(f'buffer_load_dword v{RX}, v{OUTO}, {S_B}, 0 offen')
    if P['GAE']:
        skip = only_wave(g, 0)
        GR = ('s4', 's5', 's6', 's47')
        for i, r in enumerate(GR):
            g(f's_mov_b32 {r}, {MODL + 32768 * i}')
        poll(g, '\n'.join(f'buffer_load_dwordx2 {vr(ACC + 18 + 2 * i, 2)}, v{RGA}, {S_WS}, {r} offen sc1' for i, r in enumerate(GR)),
             range(ACC + 18, ACC + 26), T + 4, 16)
        pk4(g, 'v_pk_add_f32', ACC + 18, ACC + 18, ACC + 22)
        g(f'v_pk_add_f32 {vr(ACC + 18, 2)}, {vr(ACC + 18, 2)}, {vr(ACC + 20, 2)}\nv_cvt_pk_bf16_f32 v{RGB}, v{ACC + 18}, v{ACC + 19}')
        g(skip + ':')
    srd(g, S_B, 40, 4096)
    g.bits(RL, TID, [(6, 3, 128), (0, 1, 64), (4, 2, 16), (1, 2, 4)], T, L.PART)
    g.bits(PO, TID, [(3, 6, 8192), (0, 3, 16)], T)
    g(f's_add_u32 s12, s7, {MBB}')
    g.bits(AO, TID, [(8, 1, SLOTS * 256), (3, 3, 256), (6, 2, 64), (0, 3, 8)], T + 3)
    g.bits(OW, TID, [(6, 3, 32), (0, 3, 4), (5, 1, 2)], T + 3, L.OUTV)
    g.bits(T + 5, TID, [(8, 1, 128), (3, 3, 4)], T + 3)
    g('s_add_u32 s13, s8, 4096')
    g.bits(T + 2, 0, [(5, 1, 8192), (0, 5, 8)], T + 3)
    g(f's_lshr_b32 s4, {JC}, 1\ns_lshl_b32 s4, s4, 8\ns_add_u32 s4, s4, {STATS}')
    prefetch_code(g, 'L_proj_tail', 1, T + 6, ACC)
    if P['PRE'] == 1:
        g(f'buffer_load_dwordx4 {vr(ACC + 4, 4)}, v{RO}, {S_WS}, s9 offen sc1')
    g.stamp('g_ready')
    g('L_proj_tail:')
    if P['XG'] == 1:
        g('s_branch L_gend')
    NT = 4 if P['NUG'] else 3
    aloads = lambda d: '\n'.join(f'buffer_load_dwordx2 {vr(d + 2 * k, 2)}, v{AO}, {S_WS}, {"s8" if k < 2 else "s13"} offen offset:{2048 * (k & 1)} sc1'
                                 for k in range(NT))
    lp, ok = g.label('L_p1'), only_wave(g, 0)
    g(f's_mov_b32 {S_SPIN}, {SPIN}\n{lp}:')
    g(aloads(ACC + 8).split('\n')[P['P1K']] + '\ns_waitcnt vmcnt(0)')
    check(g, range(ACC + 8 + 2 * P['P1K'], ACC + 10 + 2 * P['P1K']), ACC)
    g(f's_bcnt1_i32_b64 s5, vcc\ns_cmp_le_u32 s5, {P["P1TH"]}\ns_cbranch_scc1 {ok}')
    g(f's_sleep {P["P1SL"]}\ns_sub_u32 {S_SPIN}, {S_SPIN}, 1\ns_cbranch_scc0 {lp}\n{ok}:\ns_barrier')
    g.stamp('g_hint', (0, 1))
    if P['PRE'] == 2:
        g(f'buffer_load_dwordx4 {vr(ACC + 4, 4)}, v{RO}, {S_WS}, s9 offen sc1')
    g(f'v_mov_b32 v{T}, 0xff800000\nv_mov_b32 v{T + 1}, 0')
    g.setexec(-1 if P['NUG'] else ((1 << SPL) - 1) * 0x100000001)
    poll(g, f'buffer_load_dwordx2 {vr(T, 2)}, v{T + 2}, {S_WS}, s4 offen sc1', [T, T + 1], T + 4, 2)
    g.setexec(-1)

    def red32(r, t, op):
        for sh in (8, 4, 2, 1):
            g.nop(2)
            g(f'{op}_dpp v{r}, v{r}, v{r} row_ror:{sh} {DPP}')
        g(f'v_mov_b32 v{t}, v{r}')
        g.nop(2)
        g(f'v_permlane16_swap_b32 v{r}, v{t}\n{op} v{r}, v{r}, v{t}')
    g(f'v_and_b32 v{T}, {S_MASK}, v{T}\nv_mov_b32 v{T + 2}, v{T}')
    red32(T + 2, T + 3, 'v_max_f32')
    g(f'v_sub_f32 v{T}, v{T}, v{T + 2}\nv_mul_f32 v{T}, 0x3fb8aa3b, v{T}\nv_exp_f32 v{T}, v{T}\ns_nop 0')
    g(f'v_mul_f32 v{T + 1}, v{T + 1}, v{T}')
    red32(T + 1, T + 3, 'v_add_f32')
    g(f'v_rcp_f32 v{T + 1}, v{T + 1}\ns_nop 0\nv_mul_f32 v{T}, v{T}, v{T + 1}')
    for k in range(4):
        g(f'ds_bpermute_b32 v{WG + k}, v{T + 5}, v{T} offset:{32 * k}')
    g('s_waitcnt lgkmcnt(0)')
    g.stamp('g_wgt', (0, 1))
    if P['P2TH'] < P['P1TH']:
        lp, ok = g.label('L_p1'), only_wave(g, 0)
        g(f's_mov_b32 {S_SPIN}, {SPIN}\n{lp}:')
        g(aloads(ACC + 8).split('\n')[P['P1K']] + '\ns_waitcnt vmcnt(0)')
        check(g, range(ACC + 8 + 2 * P['P1K'], ACC + 10 + 2 * P['P1K']), ACC)
        g(f's_bcnt1_i32_b64 s5, vcc\ns_cmp_le_u32 s5, {P["P2TH"]}\ns_cbranch_scc1 {ok}')
        g(f's_sleep {P["P2SL"]}\ns_sub_u32 {S_SPIN}, {S_SPIN}, 1\ns_cbranch_scc0 {lp}\n{ok}:\ns_barrier')
        g.stamp('g_go', (0, 1))
    if P['W2TH']:
        skip = only_wave(g, 0)
        lp, ok = g.label('L_p2'), g.label('L_p2ok')
        g(f's_and_b32 s5, {JC}, 15\ns_cbranch_scc1 {skip}\ns_mov_b32 {S_SPIN}, {SPIN}\n{lp}:')
        g(aloads(T) + '\ns_waitcnt vmcnt(0)')
        check(g, range(T, T + 2 * NT), ACC)
        g(f's_bcnt1_i32_b64 s5, vcc\ns_cmp_le_u32 s5, {P["W2MISS"]}\ns_cbranch_scc1 {ok}')
        g(f's_sub_u32 {S_SPIN}, {S_SPIN}, 1\ns_cbranch_scc0 {lp}\n{ok}:')
        g(faddr('s46', C_A) + f'v_mov_b32 v{ACC}, {S_EPO}\ns_mov_b64 exec, 1\nbuffer_store_dword v{ACC}, off, {S_WS}, s98 sc1\ns_mov_b64 exec, -1')
        g(skip + ':')
    poll(g, aloads(T), range(T, T + 2 * NT), ACC, P['SLEEP'])
    g.stamp('g_apolled', (0, 1))
    g(f'v_mul_f32 v{T}, v{WG}, v{T}\nv_mul_f32 v{T + 1}, v{WG}, v{T + 1}')
    for k in range(1, NT):
        g(f'v_fmac_f32 v{T}, v{WG + k}, v{T + 2 * k}\nv_fmac_f32 v{T + 1}, v{WG + k}, v{T + 2 * k + 1}')
    g.nop(2)
    g(f'v_permlane32_swap_b32 v{T}, v{T + 1}\nv_add_f32 v{T}, v{T}, v{T + 1}\nv_mov_b32 v{T + 1}, v{T}')
    g.nop(2)
    g(f'v_permlane16_swap_b32 v{T}, v{T + 1}\nv_add_f32 v{T}, v{T}, v{T + 1}')
    g.nop(2)
    g(f'v_add_f32_dpp v{T}, v{T}, v{T} row_ror:8 {DPP}')
    g(f'v_cvt_pk_bf16_f32 v{T}, v{T}, v{T}\nds_write_b16 v{OW}, v{T}')
    g('s_waitcnt lgkmcnt(0)\ns_barrier')
    g.stamp('g_obar', (1,))
    if P['XG'] == 2:
        g('s_branch L_gend')
    ksplit_out(g, UC, PO, 's12')
    g.stamp('g_t2', (0, 1))
    if P['BW']:
        g('s_waitcnt vmcnt(0)')
    if P['BW'] == 2:
        g('s_barrier')
    skip = reduce('s9', 64, 0)
    unpack2(g, T + 6, RX)
    if P['REP']:
        g(f'v_lshrrev_b32 v{T + 3}, 4, v0\nv_lshl_add_u32 v{T + 3}, v{T + 3}, 13, v{T + 2}\ns_add_u32 s4, s11, 32768')
    else:
        g(f'v_lshlrev_b32 v{T + 3}, 3, v0')
    g(f'v_mov_b32 v{ACC + 16}, {S_MASK}')
    reduce_sum()
    g(f'v_pk_mul_f32 {vr(T, 2)}, {vr(T, 2)}, {vr(ACC + 18, 2)}')
    round2(g, T)
    g(f'v_pk_add_f32 {vr(T, 2)}, {vr(T, 2)}, {vr(T + 6, 2)}')
    g(f'v_cvt_pk_bf16_f32 v{RX}, v{T}, v{T + 1}')
    g(f'v_lshl_or_b32 v{T}, v{RX}, 16, {S_T16}\nv_and_or_b32 v{T + 1}, v{RX}, v{ACC + 16}, {S_T16}')
    if P['REP']:
        g(f'buffer_store_dwordx2 {vr(T, 2)}, v{T + 3}, {S_WS}, s11 offen sc1\nbuffer_store_dwordx2 {vr(T, 2)}, v{T + 3}, {S_WS}, s4 offen sc1')
    else:
        g.setexec(0xffff)
        g(f'buffer_store_dwordx2 {vr(T, 2)}, v{T + 3}, {S_WS}, s11 offen sc1')
        g.setexec(-1)
    g(skip + ':')
    g.stamp('g_x1', (0, 1))
    g('s_barrier')
    skip = reduce('s10', 56, 3)
    unpack2(g, T + 2, RB2)
    unpack2(g, T + 6, RX)
    reduce_sum()
    g(f'v_pk_add_f32 {vr(T, 2)}, {vr(T, 2)}, {vr(T + 2, 2)}')
    round2(g, T)
    g(f'v_pk_mul_f32 {vr(T, 2)}, {vr(T, 2)}, {vr(ACC + 18, 2)}')
    round2(g, T)
    g(f'v_pk_add_f32 {vr(T, 2)}, {vr(T, 2)}, {vr(T + 6, 2)}')
    g(f'v_cvt_pk_bf16_f32 v{T}, v{T}, v{T + 1}')
    g.setexec(0xffff)
    g(f'buffer_store_dword v{T}, v{OUTO}, {S_B}, 0 offen')
    g(f's_cmp_lg_u32 s2, 0\ns_cbranch_scc1 {skip}\nv_mov_b32 v{T + 1}, {S_EPO}\ns_mov_b64 exec, 1')
    g(f'buffer_store_dword v{T + 1}, off, {S_WS}, 0 sc1')
    g(skip + ':')
    g('L_gend:')
    g.stamp('g_out', (0, 1, 3))
    if P['PADTO']:
        if P['PADWG'] >= 0:
            g(f's_cmp_lg_u32 s2, {P["PADWG"]}\ns_cbranch_scc1 L_nopad')
        g(f'L_pad:\ns_memrealtime s[4:5]\ns_waitcnt lgkmcnt(0)\ns_sub_u32 s4, s4, s70\ns_cmp_lt_u32 s4, {P["PADTO"]}\ns_cbranch_scc1 L_pad\nL_nopad:')
    write_stamps(g)
    g('s_endpgm')


MLP_LDS = 4096
W1L = 4096
LDS_TOTAL = W1L + 131072


def mlp(g):
    L = Lds(MLP_LDS)
    PO, XO, SW, SR, B1 = 8, 9, 10, 11, 17
    C1, SH = 12, 18
    JM = 's14'
    g.vm = []
    g('L_mlp:')
    if P['XW'] == 1:
        write_stamps(g)
        g('s_endpgm')
    if P['W2TH']:
        skip = only_wave(g, 0)
        fpoll(g, ACC + 4, 's101', C_A, P['LSL'])
        g(skip + ':')
    g(f's_lshl_b32 s4, s3, 6\nv_add_u32 v{TID}, s4, v0')
    g(f's_lshl_b32 s7, {JM}, 7')
    MP, MB, XV = 16, BLK(0), ACC
    g.bits(MP, TID, [(8, 1, 16384), (3, 5, 128), (0, 2, 32), (2, 1, 16)], T, MODL + 4096)
    g(f'v_add_u32 v{MP + 6}, 4096, v{MP}\ns_mov_b32 s8, 32768\ns_mov_b32 s9, 65536\ns_mov_b32 s10, 98304')
    mloads = '\n'.join(f'buffer_load_dwordx4 {vr(MB + 4 * i, 4)}, v{MP + 6 * (i >> 2)}, {S_WS}, {("0", "s8", "s9", "s10")[i & 3]} offen sc1'
                       for i in range(8) if (i & 3) < (1 << P['LQ']))
    early = P['GH'] or P['GJ'] >= 3
    srd(g, S_B, 30, 3584 * 2)
    g.bits(T + 4, TID, [(2, 3, 16), (5, 2, 4), (7, 1, 2)], T, 's7')
    g.bits(T + 5, TID, [(4, 2, 2048), (6, 3, 256), (0, 4, 16)], T + 7)
    g('s_barrier')
    g.vmop(f'buffer_load_ushort v{B1}, v{T + 4}, {S_B}, 0 offen', 'k')
    if early:
        g.vmop(mloads, 'k')
    prefetch_code(g, 'L_mlp_tail', 1, T + 4, ACC + 8, 'k')
    kload(g, UB, 32, 3584 * 2048, JM, T + 5, lambda kb, t: 32 * kb + 4 * t, 'w2')
    common_addr(g, L, True)
    g.bits(XO, TID, [(2, 6, 128), (8, 1, 64), (0, 2, 16)], T, X1)
    if P['REP']:
        g(f's_and_b32 s4, s2, 7\ns_lshl_b32 s4, s4, 13\nv_add_u32 v{XO}, s4, v{XO}')
    g.bits(PO, TID, [(3, 6, 8192), (0, 3, 16)], T)
    g(f's_add_u32 s13, s7, {MBC}')
    g(f's_lshl_b32 s4, s3, 3\nv_mov_b32 v{SW}, s4\ns_and_b32 s4, s4, 32\nv_mov_b32 v{SR}, s4')
    xload = f'buffer_load_dwordx4 {vr(XV, 4)}, v{XO}, {S_WS}, 0 offen sc1'

    def w2_finish():
        g.vmwait(('w2', 0))
        transpose(g, UB)
        if not early:
            g.vmop(mloads, 'k')
        g.vmwait(('w2', 1))
        g.vmop(xload, 'x')
        transpose(g, UB + 1)
        g.stamp('m_w2', (2,))
    if not early:
        w2_finish()
    g.vmwait('k')
    poll(g, mloads, [r for r in range(MB, MB + 32) if ((r - MB) & 15) < (4 << P['LQ'])], T, P['MLS'], preloaded=True)
    for d, b in ((SH, MB), (C1, MB + 16)):
        if P['LQ'] == 2:
            pk4(g, 'v_pk_add_f32', b, b, b + 8)
            pk4(g, 'v_pk_add_f32', b + 4, b + 4, b + 12)
        pk4(g, 'v_pk_add_f32', d, b, b + 4)
    round4(g, SH, T)
    round4(g, C1, T)
    for i in range(4):
        g(f'v_add_f32 v{C1 + i}, 1.0, v{C1 + i}')
    round4(g, C1, T)
    g(f'v_lshlrev_b32 v{B1}, 16, v{B1}')
    KC = BLK(1)
    if P['LNM']:
        g.bits(SW, TID, [(8, 1, 128), (4, 2, 16), (6, 2, 4)], T)
        g.bits(SR, TID, [(8, 1, 128)], T)
        g(f'v_add_f32 v{T}, v{C1}, v{C1 + 1}\nv_mul_f32 v{T + 1}, v{C1}, v{C1}\nv_mul_f32 v{T + 2}, v{C1}, v{SH}')
        g(f'v_add_f32 v{T + 3}, v{SH}, v{SH + 1}\nv_mul_f32 v{T + 4}, v{SH}, v{SH}\nv_mov_b32 v{T + 5}, 0')
        for i in range(1, 4):
            if i > 1:
                g(f'v_add_f32 v{T}, v{T}, v{C1 + i}\nv_add_f32 v{T + 3}, v{T + 3}, v{SH + i}')
            g(f'v_fmac_f32 v{T + 1}, v{C1 + i}, v{C1 + i}\nv_fmac_f32 v{T + 2}, v{C1 + i}, v{SH + i}\nv_fmac_f32 v{T + 4}, v{SH + i}, v{SH + i}')
        g.nop(1)
        blocksum6(g, T, SW, SR, L.STAT + 256, KC)
        for i in range(5):
            g(f'v_mul_f32 v{KC + i}, 0x3a800000, v{KC + i}')
        g(f'v_mov_b32 v{KC + 6}, 0x3a800000\nv_mov_b32 v{KC + 7}, 0x3a800000')
    if early:
        w2_finish()
    g.stamp('m_ready', (0, 2))
    g('L_mlp_tail:')
    g('s_waitcnt vmcnt(0)')
    poll(g, xload, range(XV, XV + 4), T, mask=0xffff, preloaded=True)
    g.stamp('m_x1seen', (0, 2))
    for i in range(4):
        g(f'v_and_b32 v{XV + i}, {S_MASK}, v{XV + i}')
    if P['LNM']:
        UV, R = ACC + 4, ACC + 8
        pk4(g, 'v_pk_mul_f32', UV, XV, C1)
        g(f'v_pk_add_f32 {vr(R, 2)}, {vr(XV, 2)}, {vr(XV + 2, 2)}\nv_pk_mul_f32 {vr(R + 2, 2)}, {vr(XV, 2)}, {vr(XV, 2)}')
        g(f'v_pk_add_f32 {vr(R + 4, 2)}, {vr(UV, 2)}, {vr(UV + 2, 2)}\nv_pk_mul_f32 {vr(R + 6, 2)}, {vr(UV, 2)}, {vr(UV, 2)}')
        g(f'v_pk_mul_f32 {vr(R + 8, 2)}, {vr(UV, 2)}, {vr(C1, 2)}\nv_pk_mul_f32 {vr(R + 10, 2)}, {vr(UV, 2)}, {vr(SH, 2)}')
        g(f'v_pk_fma_f32 {vr(R + 2, 2)}, {vr(XV + 2, 2)}, {vr(XV + 2, 2)}, {vr(R + 2, 2)}')
        g(f'v_pk_fma_f32 {vr(R + 6, 2)}, {vr(UV + 2, 2)}, {vr(UV + 2, 2)}, {vr(R + 6, 2)}')
        g(f'v_pk_fma_f32 {vr(R + 8, 2)}, {vr(UV + 2, 2)}, {vr(C1 + 2, 2)}, {vr(R + 8, 2)}')
        g(f'v_pk_fma_f32 {vr(R + 10, 2)}, {vr(UV + 2, 2)}, {vr(SH + 2, 2)}, {vr(R + 10, 2)}')
        for d, i in enumerate((0, 4, 2, 6, 8, 10)):
            g(f'v_add_f32 v{T + d}, v{R + i}, v{R + i + 1}')
        blocksum6(g, T, SW, SR, L.STAT, R)
        g.stamp('m_ln1', (2,))
        for i in range(0, 6, 2):
            g(f'v_pk_mul_f32 {vr(R + i, 2)}, {vr(R + i, 2)}, {vr(KC + 6, 2)}')
        g(f'v_fma_f32 v{R + 1}, -v{R}, v{R}, v{R + 1}')
        rstd(g, R, R + 1)
        g(f'v_fma_f32 v{R + 2}, -v{R}, v{KC}, v{R + 2}')
        g(f'v_fma_f32 v{R + 5}, -v{R}, v{KC + 1}, v{R + 5}')
        g(f'v_fma_f32 v{R + 6}, v{R}, v{KC + 2}, -v{R + 4}')
        g(f'v_sub_f32 v{R + 6}, v{R + 6}, v{R + 4}')
        g(f'v_fma_f32 v{R + 3}, v{R}, v{R + 6}, v{R + 3}')
        g(f'v_add_f32 v{R + 5}, v{R + 5}, v{R + 5}')
        g(f'v_fma_f32 v{R + 2}, v{R + 2}, v{R + 1}, v{KC + 3}')
        g(f'v_fma_f32 v{R + 3}, v{R + 3}, v{R + 1}, v{R + 5}')
        g(f'v_fma_f32 v{R + 3}, v{R + 3}, v{R + 1}, v{KC + 4}')
        g(f'v_fma_f32 v{R + 3}, -v{R + 2}, v{R + 2}, v{R + 3}')
        for i in range(4):
            g(f'v_fma_f32 v{UV + i}, -v{R}, v{C1 + i}, v{UV + i}')
        rstd(g, R + 2, R + 3)
        for i in range(4):
            g(f'v_fma_f32 v{UV + i}, v{UV + i}, v{R + 1}, v{SH + i}')
        for i in range(4):
            g(f'v_sub_f32 v{UV + i}, v{UV + i}, v{R + 2}')
        for i in range(4):
            g(f'v_mul_f32 v{UV + i}, v{UV + i}, v{R + 3}')
        pack(g, T + 6, UV)
    else:
        layernorm(g, XV, SW, SR, L.STAT)
        g.stamp('m_ln1', (2,))
        pk4(g, 'v_pk_mul_f32', XV, XV, C1)
        round4(g, XV, T + 6)
        pk4(g, 'v_pk_add_f32', XV, XV, SH)
        round4(g, XV, T + 6)
        layernorm(g, XV, SW, SR, L.STAT + 64, last_packed=True)
    actwrite(g, T + 6, L.ACTH)
    g('s_waitcnt lgkmcnt(0)\ns_barrier')
    g.stamp('m_ln2', (2,))
    nsplit(g, UC, L.ACTH)
    g.stamp('m_t3', (2,))
    g(f'''v_cvt_pk_bf16_f32 v{T}, v{T}, v{T}
          v_lshlrev_b32 v{T}, 16, v{T}
          v_add_f32 v{T}, v{T}, v{B1}
          v_cvt_pk_bf16_f32 v{T}, v{T}, v{T}
          v_lshlrev_b32 v{T}, 16, v{T}
          v_mov_b32 v{T + 2}, 0xc0135761
          v_mul_f32 v{T + 1}, v{T}, v{T}
          v_fmac_f32 v{T + 2}, 0xbdd2d3e8, v{T + 1}
          v_mul_f32 v{T + 1}, v{T + 2}, v{T}
          v_exp_f32 v{T + 1}, v{T + 1}
          s_nop 0
          v_add_f32 v{T + 1}, 1.0, v{T + 1}
          v_rcp_f32 v{T + 1}, v{T + 1}
          s_nop 0
          v_mul_f32 v{T}, v{T}, v{T + 1}
          v_cvt_pk_bf16_f32 v{T}, v{T}, v{T}
          ds_write_b16 v{NO}, v{T}
          s_waitcnt lgkmcnt(0)
          s_barrier''')
    g.stamp('m_gelu', (2,))
    ksplit_out(g, UB, PO, 's13')
    g.stamp('m_t4', (0, 2))
    write_stamps(g)
    g('s_endpgm')


def latem(g):
    L = Lds(MLP_LDS)
    g.vm = []
    g('L_late:')
    if P['XL']:
        write_stamps(g)
        g('s_endpgm')
    g(f's_lshl_b32 s4, s3, 6\nv_add_u32 v{TID}, s4, v0')
    LQ = P['LQ']
    qjob_voff(g, 8, LQ)
    g(f's_add_u32 s14, s14, {(16 << LQ) * (3 if P["GH"] else P["GJ"])}')
    g.bits(T + 6, TID, [(3, 6, 64), (0, 2, 16), (2, 1, 8)], T)
    srd(g, S_B, 36, 4096)
    g('s_barrier')
    g.stamp('l_bar', (4,))
    g.vmop(f'buffer_load_dwordx2 {vr(12, 2)}, v{T + 6}, {S_B}, 0 offen', 'in')
    qjob_issue(g, UA, 's14', 8, LQ)
    g.stamp('l_iss', (4,))
    common_addr(g, L, False)
    g.stamp('l_addr', (4,))
    g.vmwait('in')
    g.stamp('l_c', (4,))
    silu_image(g, L, 12)
    g('s_waitcnt lgkmcnt(0)\ns_barrier')
    g.stamp('l_silu', (4,))
    g('L_late2:')
    qjob_finish(g, L, UA, 9, 10, LQ)
    g.stamp('l_pub1', (0, 1, 2, 4))
    if not P['GBG'] and LQ == 2 and P['GJ'] == 1:
        done = g.label('L_latedone')
        g(f's_cmp_ge_u32 s14, 128\ns_cbranch_scc1 {done}\ns_add_u32 s14, s14, 128\ns_barrier')
        qjob_issue(g, UA, 's14', 8)
        g(f's_branch L_late2\n{done}:')
    write_stamps(g)
    g('s_endpgm')


def attention(g, mode='main', arg=None):
    KO, VO, QO, VSC, VMAX, OO = 1, 2, 3, 4, 5, 6
    Q0, SP, TMP, T2 = 8, 16, 40, 56
    LA, GA = T2 + 7, T2 + 6
    SLOT = lambda s: 64 + 32 * s
    AC = SLOT(0)
    U = lambda u: 's%d' % (4 + 2 * u)
    U2 = lambda u: 's%d' % (5 + 2 * u)
    S_R, S_CU, S_GA, S_T = 's47', 's68', 's96', 's69'
    S_B4, S_B5, S_O4, S_KV = 's46', 's100', 's101', 's101'
    MX, OBUF, OST = 0, W1L, 16384
    QL, QF = 1024, 3072
    S_ST = 's97'
    NN = (SPL - NMR) * 8
    NUG = P['NUG']
    n4 = min(NN, 1024 - 4 * WPR - 64 * NUG)
    EX = 6 * P['A5W']
    n5 = 1024 - 4 * WPR - n4 - 64 * NUG - EX
    RK = QF + 4
    LT = P['LIGHT']
    S_B3, S_O3 = 's0', 's45'
    assert 0 <= n5 <= NN
    base = [0, WPR, 2 * WPR, 3 * WPR, 4 * WPR, 4 * WPR + n4]
    VSLOT = [1, 2, 3, 1, 4, 5] if mode == 'main' else [NUG + u for u in range(NUG)]

    def unit_addr(u):
        g(f's_add_u32 {U(u)}, {S_GA}, {"s98" if u < (5 if n4 == NN else 4) else S_T}')
        if u:
            g(f's_add_u32 {U(u)}, {U(u)}, {base[u]}')
        g(f's_and_b32 {U(u)}, {U(u)}, 1023\ns_lshl_b32 {U(u)}, {U(u)}, 13\ns_add_u32 {U2(u)}, {U(u)}, 4096')

    def entry():
        g.vm = []
        g('L_attn:')
        g(f'''s_sub_u32 {S_T}, s2, {NG}
              s_mul_hi_u32 {S_R}, {S_T}, {(1 << 32) // SPL + 1}
              s_mul_i32 {S_CU}, {S_R}, {SPL - (1 if P["ROT"] else 0)}
              s_sub_u32 {S_CU}, {S_T}, {S_CU}
              s_sub_u32 {S_T}, {S_CU}, {SPL}
              s_cselect_b32 {S_CU}, {S_CU}, {S_T}
              s_lshl_b32 s98, {S_CU}, 3
              s_add_u32 s98, s98, s3
              s_mul_i32 {S_GA}, {S_R}, {P["PH"]}''')
        unit_addr(0)
        g.bits(KO, 0, [(1, 1, 1024), (2, 2, 256), (0, 1, 64), (4, 2, 16)], 8)
        g(f's_lshl_b32 s99, {S_R}, 23\ns_mov_b32 s58, 0x800000\ns_mov_b32 s59, 0x20000')
        g('s_waitcnt lgkmcnt(0)')
        g('s_add_u32 s56, s18, s99\ns_addc_u32 s57, s19, 0')

    def entry2():
        consts(g)
        g(f's_add_u32 s60, s20, s99\ns_addc_u32 s61, s21, 0\ns_mov_b32 s62, 0x800000\ns_mov_b32 s63, 0x20000')
        g(f'''s_mul_i32 {S_T}, s3, {SPL - NMR}
              s_add_u32 {S_T}, {S_T}, {S_CU}
              s_cmp_lt_u32 {S_CU}, {SPL - NMR}
              s_cselect_b32 {S_T}, {S_T}, 1023''')
        for u in range(1, NU):
            unit_addr(u)
        if LT:
            g(f's_add_u32 s99, {S_GA}, {S_T}\ns_add_u32 s99, s99, {base[3] + NN + 8 - LT - n5}\ns_and_b32 s99, s99, 1023\ns_lshl_b32 s99, s99, 13')
            g(f's_cmp_ge_u32 {S_T}, {n5}\ns_cselect_b32 {U(5)}, s99, {U(5)}\ns_add_u32 {U2(5)}, {U(5)}, 4096')
            g(f's_sub_u32 s99, s98, {NN + 8 - LT}\ns_cmp_lt_u32 s99, {LT}\ns_cselect_b32 {S_B3}, 0xff800000, 0')
        g(f'v_lshlrev_b32 v{VO}, 4, v0')
        g(f's_cmp_lt_u32 {S_T}, {n5 + LT}\ns_cselect_b32 s98, 0, 0x1000000\ns_cselect_b32 {S_B5}, 0, 0xff800000')
        g(f'v_add_u32 v{OO + 1}, s98, v{KO}')
        if EX:
            skip = g.label('L_noex')
            g(f's_cmp_le_u32 {S_CU}, {SPL - NMR}\ns_cbranch_scc1 {skip}\ns_cmp_ge_u32 s3, {P["A5W"]}\ns_cbranch_scc1 {skip}')
            g(f's_mul_i32 {U(4)}, s3, 6\ns_add_u32 {U(4)}, {U(4)}, {S_CU}\ns_add_u32 {U(4)}, {U(4)}, {S_GA}\ns_add_u32 {U(4)}, {U(4)}, {1024 - EX - 18}')
            g(f's_and_b32 {U(4)}, {U(4)}, 1023\ns_lshl_b32 {U(4)}, {U(4)}, 13\ns_add_u32 {U2(4)}, {U(4)}, 4096\ns_mov_b32 {S_T}, 0')
            g(skip + ':')
        g(f's_cmp_lt_u32 {S_T}, {n4}\ns_cselect_b32 {S_O4}, 0, 0x1000000\ns_cselect_b32 {S_B4}, 0, 0xff800000')
        g(f'v_add_u32 v{OO}, {S_O4}, v{KO}')

    def slice_index(d, t):
        if not LT:
            g(f's_mul_i32 {d}, {S_R}, {NMR}\ns_add_u32 {d}, {d}, {S_CU}\ns_sub_u32 {d}, {d}, {SPL - NMR}')
            return
        g(f'''s_mul_i32 {d}, {S_R}, 6
              s_add_u32 {d}, {d}, {S_CU}
              s_sub_u32 {d}, {d}, {SPL - NMR + 1 - 4}
              s_mul_hi_u32 {t}, {d}, {(1 << 32) // 7 + 1}
              s_add_u32 {d}, {d}, {t}
              s_sub_u32 {d}, {d}, 4
              s_lshl_b32 {t}, {S_R}, 3
              s_add_u32 {t}, {t}, 3
              s_min_u32 {t}, {t}, 55
              s_cmp_eq_u32 {S_CU}, {SPL - NMR}
              s_cselect_b32 {d}, {t}, {d}''')

    def load(n, pos):
        i = n & 7
        if n < 48:
            u = n >> 3
            vo = KO if u < 4 else OO + u - 4
            if u == 3 and LT:
                vo = T2 + 3
                if i == 0:
                    g(f's_lshr_b32 {S_T}, {S_B3}, 7\nv_add_u32 v{vo}, {S_T}, v{KO}')
            if u == 5 and EX:
                l1, l2 = g.label('L_k5'), g.label('L_k5j')
                g(f's_cmp_lt_u32 {S_CU}, {SPL - NMR}\ns_cbranch_scc1 {l1}')
                if i == 0:
                    g(f's_lshr_b32 {S_T}, {S_B4}, 7\nv_add_u32 v{vo}, {S_T}, v{VO}')
                g(f'buffer_load_dwordx4 {vr(SLOT(u) + 4 * i, 4)}, v{vo}, {S_B}, {U2(4) if i >= 4 else U(4)} offen offset:{(i & 3) * 1024} nt')
                g(f's_branch {l2}\n{l1}:')
            g.vmop(f'buffer_load_dwordx4 {vr(SLOT(u) + 4 * i, 4)}, v{vo}, {S_A}, {U2(u) if i >= 4 else U(u)} offen '
                   f'offset:{((i >> 1) & 1) * 2048 + (i & 1) * 128} nt', pos)
            if u == 5 and EX:
                g(l2 + ':')
        elif n < 64:
            if n == 48:
                l1, l2 = g.label('L_xv'), g.label('L_xj')
                g(f's_lshl_b32 s98, s3, 14\ns_add_u32 m0, s98, {W1L}\ns_mov_b32 s95, 0x20000')
                g(f's_cmp_lt_u32 {S_CU}, {SPL - NMR}\ns_cbranch_scc1 {l1}')
                g(f's_lshl_b32 {S_T}, s3, 6\nv_add_u32 v{T2 + 1}, {S_T}, v0')
                nvoff(g, OO, 7168, T2 + 1, T2 + 2)
                g(f'v_mov_b32 v{OO + 1}, v{OO}')
                slice_index(S_T, 's98')
                g(f's_lshl_b32 {U(4)}, {S_T}, 7\ns_add_u32 {U(5)}, {U(4)}, {512 * 7168}\ns_mov_b32 {U2(4)}, {nstep() * 7168}')
                g(f's_mov_b32 s92, s28\ns_mov_b32 s93, s29\ns_mov_b32 s94, {1024 * 7168}')
                g(f's_branch {l2}\n{l1}:')
                g(f'v_sub_u32 v{T2 + 1}, v{VO}, v{KO}\nv_add_u32 v{OO}, v{OO}, v{T2 + 1}\nv_add_u32 v{OO + 1}, v{OO + 1}, v{T2 + 1}')
                g(f's_mov_b32 {U2(4)}, 1024\ns_mov_b32 s92, s60\ns_mov_b32 s93, s61\ns_mov_b32 s94, s62')
                g(l2 + ':')
            u = 4 + ((n - 48) >> 3)
            if n > 48:
                g('s_add_u32 m0, m0, 1024')
            g(f's_add_u32 {U(u)}, {U(u)}, {U2(4)}' if i else 's_nop 0')
            g.vmop(f'buffer_load_dwordx4 v{OO + u - 4}, s[92:95], {U(u)} offen nt lds', pos)
        else:
            u = (n - 64) >> 3
            vo = VO
            if u == 3 and LT:
                vo = OO
                if i == 0:
                    g(f's_lshr_b32 {S_T}, {S_B3}, 7\nv_add_u32 v{vo}, {S_T}, v{VO}')
            g.vmop(f'buffer_load_dwordx4 {vr(SLOT(VSLOT[u]) + 4 * i, 4)}, v{vo}, {S_B}, {U2(u) if i >= 4 else U(u)} offen '
                   f'offset:{(i & 3) * 1024} nt', pos)

    def mailbox():
        g.bits(GA, 0, [(5, 1, MBA_ST), (0, 5, 8)], T2)
        g(f'''s_and_b32 {S_T}, {S_R}, 3
              s_lshl_b32 {S_T}, {S_T}, 3
              s_add_u32 {S_T}, {S_T}, s3
              s_mul_i32 {S_T}, {S_T}, {2 * MBA_ST}
              s_lshr_b32 {S_GA}, {S_R}, 2
              s_mul_i32 {S_GA}, {S_GA}, {SLOTS}
              s_add_u32 {S_GA}, {S_GA}, {S_CU}
              s_lshl_b32 {S_GA}, {S_GA}, 8
              s_add_u32 {S_GA}, {S_GA}, {S_T}
              s_add_u32 {S_GA}, {S_GA}, {MBA}''')

    def setup():
        srd(g, S_WS, 44, WS_SIZE)
        if P['RANK'] or P['DBGST'] >= 0:
            srd(g, S_DBG, 42, 256)
        mailbox()
        g.vmop(epoch_load(T2 + 2), 'ep')
        if P['PFA'] == 1:
            prefetch_code(g, 'L_attn_body', 2, 8, TMP, 'pf')
        if P['PFA'] == 2:
            skip = g.label('L_nopf')
            g(f's_cmp_ge_u32 s2, {NG + 8}\ns_cbranch_scc1 {skip}')
            prefetch_code(g, 'L_attn_body', 2, 8, TMP)
            g(skip + ':')
        if P['TLB']:
            skip = g.label('L_notlb')
            sh = P['TLB']
            g(f'v_lshlrev_b32 v8, {sh}, v0')
            g.setexec((1 << min(64, 1 << (23 - sh))) - 1 if sh > 17 else -1)
            g(f's_cmp_eq_u32 s3, 1\ns_cbranch_scc0 {skip}_a\nbuffer_load_dword v{TMP + 4}, v8, {S_A}, 0 offen nt\n{skip}_a:')
            g(f's_cmp_eq_u32 s3, 2\ns_cbranch_scc0 {skip}_b\nbuffer_load_dword v{TMP + 4}, v8, {S_B}, 0 offen nt\n{skip}_b:')
            for w, (ptr, size) in enumerate(((28, 7 << 20), (32, 7 << 20), (38, 12 << 20), (44, WS_SIZE))):
                l = f'{skip}_{w}'
                g(f's_cmp_eq_u32 s3, {3 + w}\ns_cbranch_scc0 {l}')
                g(f's_mov_b32 s92, s{ptr}\ns_mov_b32 s93, s{ptr + 1}\ns_mov_b32 s94, {size}\ns_mov_b32 s95, 0x20000')
                g(f'buffer_load_dword v{TMP + 4}, v8, s[92:95], 0 offen offset:2048 {"sc1" if ptr == 44 else "nt"}')
                if size > (8 << 20):
                    g(f's_mov_b32 {S_T}, {8 << 20}\nv_add_u32 v9, {S_T}, v8\nbuffer_load_dword v{TMP + 4}, v9, s[92:95], 0 offen nt')
                g(l + ':')
            g.setexec(-1)
        g(f's_and_b32 {S_KV}, {S_R}, 3\ns_lshl_b32 {S_KV}, {S_KV}, 2')
        g.bits(QO, 0, [(0, 3, 256), (3, 1, 64), (4, 2, 16)], 8)
        g.bits(LA, 0, [(0, 4, 64)], 8)
        g(f's_lshl_b32 {S_T}, s3, 3\nv_add_u32 v8, {S_T}, v{LA}\nv_mov_b32 v9, -1\nds_write_b32 v8, v9 offset:{MX + 4}')
        g(f'v_mov_b32 v{T2}, 0\nds_write_b32 v{T2}, v{T2} offset:{QF}\ns_mov_b32 {S_ST}, 0\ns_waitcnt lgkmcnt(0)\ns_barrier')
        g(f'v_mov_b32 v{VSC}, 0x3db504f3\nv_mov_b32 v{VMAX}, 0xff800000')
        g('L_attn_body:')

    def readback():
        if EX:
            skip = g.label('L_noex')
            g(f's_cmp_lt_u32 {S_CU}, {SPL - NMR}\ns_cbranch_scc1 {skip}')
            pv(4, 5)
            g(skip + ':')
        g(f's_lshl_b32 {S_T}, s3, 14\ns_add_u32 {S_T}, {S_T}, {W1L}\nv_add_u32 v{T2}, {S_T}, v{VO}')
        for i in range(16):
            g(f'ds_read_b128 {vr(SLOT(4) + 4 * i, 4)}, v{T2} offset:{i * 1024}')

    def lds_units():
        l1, l2 = g.label('L_w1'), g.label('L_w1j')
        g(f's_cmp_ge_u32 {S_CU}, {SPL - NMR}\ns_cbranch_scc1 {l1}')
        g('s_waitcnt lgkmcnt(8)')
        pv(4)
        g('s_waitcnt lgkmcnt(0)')
        pv(5)
        g(f's_branch {l2}\n{l1}:')
        g('s_waitcnt lgkmcnt(8)')
        transpose(g, UC, T2)
        g('s_waitcnt lgkmcnt(0)')
        transpose(g, UC + 1, T2)
        g(l2 + ':')

    def qstep(final=False):
        skip = only_wave(g, P['QW'])
        l1, l3, top = g.label('L_q1'), g.label('L_q3'), g.label('L_qtop')
        if final:
            g(f's_mov_b32 {S_SPIN}, {SPIN}\n{top}:')
        g(f's_cmp_eq_u32 {S_ST}, 2\ns_cbranch_scc1 {skip}')
        if final:
            g(f's_waitcnt vmcnt(0)\ns_sub_u32 {S_SPIN}, {S_SPIN}, 1\ns_cbranch_scc1 {l3}')
        g(f's_cmp_eq_u32 {S_ST}, 0\ns_cbranch_scc1 {l1}')
        check(g, range(TMP, TMP + 16), T2, 0xffff)
        g(f's_cbranch_vccz {l3}')
        if final:
            g(f's_sleep {P["QSL"]}')
        g(l1 + ':')
        g(f's_lshl_b32 {S_T}, {S_R}, 12\ns_add_u32 {S_T}, {S_T}, {QB}\ns_mov_b32 {S_ST}, 1')
        for i in range(4):
            g(f'buffer_load_dwordx4 {vr(TMP + 4 * i, 4)}, v{VO}, {S_WS}, {S_T} offen offset:{1024 * i} sc1')
        g(f's_branch {top if final else skip}')
        g(l3 + ':')
        g(f'v_lshlrev_b32 v{T2}, 3, v0')
        for i in range(8):
            g(f'v_perm_b32 v{Q0 + i}, v{TMP + 2 * i + 1}, v{TMP + 2 * i}, {S_HI}')
        for i in range(4):
            g(f'ds_write_b64 v{T2}, {vr(Q0 + 2 * i, 2)} offset:{QL + 512 * i}')
        g(f'v_mov_b32 v{T2}, 0\nv_mov_b32 v{T2 + 1}, 1\ns_mov_b32 {S_ST}, 2\ns_waitcnt lgkmcnt(0)')
        g(f'ds_write_b32 v{T2}, v{T2 + 1} offset:{QF}')
        g(skip + ':')

    def qget():
        g.stamp('a_qwait')
        if P['NOQ']:
            return
        qstep(final=True)
        lp, ok = g.label('L_qf'), g.label('L_qfok')
        g(f'v_mov_b32 v{T2}, 0\ns_mov_b32 {S_SPIN}, {SPIN * 16}\n{lp}:')
        g(f'ds_read_b32 v{T2 + 1}, v{T2} offset:{QF}\ns_waitcnt lgkmcnt(0)')
        g(f'v_cmp_eq_u32 vcc, 0, v{T2 + 1}\ns_cbranch_vccz {ok}')
        g(f's_sleep 2\ns_sub_u32 {S_SPIN}, {S_SPIN}, 1\ns_cbranch_scc0 {lp}\n{ok}:')
        g(f'ds_read_b128 {vr(Q0, 4)}, v{QO} offset:{QL}\nds_read_b128 {vr(Q0 + 4, 4)}, v{QO} offset:{QL + 128}')
        g('s_waitcnt lgkmcnt(0)')
        g.stamp('a_qseen')

    def qk(u):
        for t in range(4):
            g(f'v_mfma_f32_16x16x32_bf16 {vr(TMP + 4 * t, 4)}, {vr(SLOT(u) + 8 * t, 4)}, {vr(Q0, 4)}, 0')
        for t in range(4):
            g(f'v_mfma_f32_16x16x32_bf16 {vr(TMP + 4 * t, 4)}, {vr(SLOT(u) + 8 * t + 4, 4)}, {vr(Q0 + 4, 4)}, {vr(TMP + 4 * t, 4)}')
        g.nop(5)
        for t in range(4):
            d = TMP + 4 * t
            a, b = T2 + 2 * (t & 1), T2 + 2 * (t & 1) + 1
            g(f'v_add_f32_dpp v{a}, v{d + 1}, v{d} row_ror:8 {DPP}\nv_add_f32_dpp v{b}, v{d + 3}, v{d + 2} row_ror:8 {DPP}')
            round2(g, a)
            if u >= 4 or (u == 3 and LT and mode == 'main'):
                sb = (S_B3, S_B4, S_B5)[u - 3]
                g(f'v_fma_f32 v{a}, v{a}, v{VSC}, {sb}\nv_fma_f32 v{b}, v{b}, v{VSC}, {sb}')
            else:
                g(f'v_mul_f32 v{a}, v{a}, v{VSC}\nv_mul_f32 v{b}, v{b}, v{VSC}')
            g(f'v_max3_f32 v{VMAX}, v{VMAX}, v{a}, v{b}\nv_cvt_pk_bf16_f32 v{SP + 4 * u + t}, v{a}, v{b}')

    def red_g(r, t, op):
        for ins in ('v_permlane32_swap_b32', 'v_permlane16_swap_b32'):
            g(f'v_mov_b32 v{t}, v{r}')
            g.nop(2)
            g(f'{ins} v{r}, v{t}\n{op} v{r}, v{r}, v{t}')

    def softmax():
        red_g(VMAX, T2, 'v_max_f32')
        for i in range(0, 32, 2):
            g(f'v_mov_b64 {vr(AC + i, 2)}, 0')
        g(f'v_mov_b32 v{VSC}, 0x3fb8aa3b\nv_mov_b32 v{T2 + 4}, 0')
        g(f'v_cvt_pk_bf16_f32 v{VMAX}, v{VMAX}, v{VMAX}\nv_lshlrev_b32 v{VMAX}, 16, v{VMAX}')
        g(f'v_mul_f32 v{T2 + 5}, v{VMAX}, v{VSC}')

    def probs(u, last=NU - 1):
        for i in range(4 * u, 4 * u + 4):
            p = SP + i
            a, b = T2 + 2 * (i & 1), T2 + 2 * (i & 1) + 1
            unpack2(g, a, p)
            g(f'v_fma_f32 v{a}, v{a}, v{VSC}, -v{T2 + 5}\nv_fma_f32 v{b}, v{b}, v{VSC}, -v{T2 + 5}')
            g(f'v_exp_f32 v{a}, v{a}\nv_exp_f32 v{b}, v{b}')
            g(f'v_add_f32 v{T2 + 4}, v{T2 + 4}, v{a}\nv_add_f32 v{T2 + 4}, v{T2 + 4}, v{b}')
            g(f'v_cvt_pk_bf16_f32 v{p}, v{a}, v{b}')
        if u == last:
            red_g(T2 + 4, T2, 'v_add_f32')
            g(f's_lshl_b32 {S_T}, s3, 3\nv_add_u32 v{T2}, {S_T}, v{LA}\nv_mov_b32 v{T2 + 2}, v{VMAX}\nv_min_u32 v{T2 + 3}, -2, v{T2 + 4}')
            g(f'ds_write_b64 v{T2}, {vr(T2 + 2, 2)} offset:{MX}')
            if mode == 'main':
                g.stamp('a_probs')

    def pv(u, slot=None):
        s = SLOT(VSLOT[u] if slot is None else slot)
        for w in range(4):
            t = TMP + 8 * (w & 1)
            for p in range(4):
                g(f'v_perm_b32 v{t + p}, v{s + 8 * p + 4 + w}, v{s + 8 * p + w}, {S_LO}')
            for p in range(4):
                g(f'v_perm_b32 v{t + 4 + p}, v{s + 8 * p + 4 + w}, v{s + 8 * p + w}, {S_HI}')
            g(f'v_mfma_f32_16x16x32_bf16 {vr(AC + 8 * w, 4)}, {vr(t, 4)}, {vr(SP + 4 * u, 4)}, {vr(AC + 8 * w, 4)}')
            g('s_nop 0')
            g(f'v_mfma_f32_16x16x32_bf16 {vr(AC + 8 * w + 4, 4)}, {vr(t + 4, 4)}, {vr(SP + 4 * u, 4)}, {vr(AC + 8 * w + 4, 4)}')

    def gather_ml():
        lp, ok = g.label('L_ml'), g.label('L_mlok')
        g(f's_mov_b32 {S_SPIN}, {SPIN * 16}\n{lp}:')
        for i in range(4):
            g(f'ds_read_b128 {vr(TMP + 4 * i, 4)}, v{LA} offset:{MX + 16 * i}')
        g('s_waitcnt lgkmcnt(0)')
        g(f'v_max_u32 v{T2}, v{TMP + 1}, v{TMP + 3}')
        for i in range(5, 16, 4):
            g(f'v_max3_u32 v{T2}, v{T2}, v{TMP + i}, v{TMP + i + 2}')
        g(f'v_cmp_eq_u32 vcc, -1, v{T2}\ns_cbranch_vccz {ok}')
        g(f's_sleep 2\ns_sub_u32 {S_SPIN}, {S_SPIN}, 1\ns_cbranch_scc0 {lp}\n{ok}:')
        g(f'v_max_f32 v{T2 + 2}, v{TMP}, v{TMP + 2}')
        for i in range(4, 16, 4):
            g(f'v_max3_f32 v{T2 + 2}, v{T2 + 2}, v{TMP + i}, v{TMP + i + 2}')

    def stats():
        skip = only_wave(g, P['SW'])
        gather_ml()
        g(f'v_mov_b32 v{T2 + 3}, 0')
        for i in range(0, 16, 2):
            g(f'v_sub_f32 v{TMP + i}, v{TMP + i}, v{T2 + 2}\nv_mul_f32 v{TMP + i}, 0x3fb8aa3b, v{TMP + i}')
        for i in range(0, 16, 2):
            g(f'v_exp_f32 v{TMP + i}, v{TMP + i}')
        g(f's_lshl_b32 {S_T}, {S_R}, 11\ns_lshl_b32 s98, {S_CU}, 3\ns_add_u32 {S_T}, {S_T}, s98\ns_add_u32 {S_T}, {S_T}, {STATS}')
        for i in range(0, 16, 2):
            g(f'v_fmac_f32 v{T2 + 3}, v{TMP + i}, v{TMP + i + 1}')
        g(f'v_lshlrev_b32 v{T2}, 8, v0')
        tagmask(g, T2 + 1)
        tag(g, [T2 + 2, T2 + 3], T2 + 1)
        g.setexec(0xff)
        if not P['XS']:
            g(f'buffer_store_dwordx2 {vr(T2 + 2, 2)}, v{T2}, {S_WS}, {S_T} offen sc1')
        g.setexec(-1)
        g(skip + ':')

    def factor():
        gather_ml()
        g(f'v_sub_f32 v{FS}, v{VMAX}, v{T2 + 2}\nv_mul_f32 v{FS}, 0x3fb8aa3b, v{FS}\nv_exp_f32 v{FS}, v{FS}')
        tagmask(g, FS + 1)

    FS = Q0 + 2
    WA, RA = KO, QO

    def epi_addr():
        g(f's_mul_i32 {S_T}, s3, {OST}\ns_add_u32 {S_T}, {S_T}, {OBUF}')
        g.bits(WA, 0, [(4, 2, 128), (0, 4, 16)], T2, S_T)
        g(f's_lshl_b32 {S_T}, s3, 4\ns_add_u32 {S_T}, {S_T}, {OBUF}')
        g.bits(RA, 0, [(1, 3, 528), (4, 2, 128), (0, 1, 8)], T2, S_T)
        g(f'v_add_u32 v{VSC}, {4 * OST}, v{RA}')

    def epilogue():
        g.setexec(rep16(0xff))
        for j in range(8):
            for h in (0, 2):
                g(f'v_pk_mul_f32 {vr(AC + 4 * j + h, 2)}, {vr(AC + 4 * j + h, 2)}, {vr(FS, 2)} op_sel_hi:[1,0]')
            g(f'ds_write_b128 v{WA}, {vr(AC + 4 * j, 4)} offset:{528 * j}')
        g.setexec(-1)
        g('s_waitcnt lgkmcnt(0)\ns_barrier')
        for w in range(8):
            g(f'ds_read_b64 {vr(TMP + 2 * w, 2)}, v{RA if w < 4 else VSC} offset:{OST * (w & 3)}')
        g('s_waitcnt lgkmcnt(4)')
        pk4(g, 'v_pk_add_f32', TMP, TMP, TMP + 4)
        g('s_waitcnt lgkmcnt(0)')
        pk4(g, 'v_pk_add_f32', TMP + 8, TMP + 8, TMP + 12)
        pk4(g, 'v_pk_add_f32', TMP, TMP, TMP + 8)
        g(f'v_pk_add_f32 {vr(TMP, 2)}, {vr(TMP, 2)}, {vr(TMP + 2, 2)}')
        tag(g, [TMP, TMP + 1], FS + 1)
        if not P['XP']:
            g(f'buffer_store_dwordx2 {vr(TMP, 2)}, v{GA}, {S_WS}, {S_GA} offen sc1')

    GK, GV, S_GU = 12, 13, 's100'
    if mode == 'g_addr':
        g(f'''s_lshr_b32 {S_R}, s14, 3
              s_and_b32 {S_CU}, s14, 7
              s_lshl_b32 {S_GU}, {S_CU}, 3
              s_add_u32 {S_GU}, {S_GU}, s3
              s_mul_i32 {S_T}, {S_R}, {P["PH"]}
              s_add_u32 {S_GU}, {S_GU}, {S_T}
              s_add_u32 {S_CU}, {S_CU}, {SPL}''')
        g.bits(GK, 0, [(1, 1, 1024), (2, 2, 256), (0, 1, 64), (4, 2, 16)], GV)
        g(f'v_lshlrev_b32 v{GV}, 4, v0')
        return
    if mode == 'g_issue':
        for n in arg:
            i, isk, u = n & 7, n < 8 * NUG, (n >> 3) % NUG
            if i == 0:
                p = 18 if isk else 20
                g(f's_lshl_b32 {S_T}, {S_R}, 23\ns_add_u32 s56, s{p}, {S_T}\ns_addc_u32 s57, s{p + 1}, 0\ns_mov_b32 s58, 0x800000')
                g(f's_add_u32 s101, {S_GU}, {1024 - 64 * (NUG - u)}\ns_and_b32 s101, s101, 1023\ns_lshl_b32 s101, s101, 13\ns_add_u32 {S_T}, s101, 4096')
            off = ((i >> 1) & 1) * 2048 + (i & 1) * 128 if isk else (i & 3) * 1024
            g(f'buffer_load_dwordx4 {vr(SLOT(0) + 4 * n, 4)}, v{GK if isk else GV}, {S_A}, {S_T if i >= 4 else "s101"} offen offset:{off} nt')
        return
    gq = '\n'.join(f'buffer_load_dwordx4 {vr(Q0 + 4 * i, 4)}, v{LA}, {S_WS}, 0 offen offset:{(i >> 1) * 256 + (i & 1) * 16} sc1' for i in range(4))

    def gq_addr():
        g(f's_lshl_b32 {S_T}, {S_R}, 12\ns_add_u32 {S_T}, {S_T}, {QB}')
        g.bits(LA, 0, [(0, 3, 512), (3, 1, 128), (4, 2, 32)], GA, S_T)
    if mode == 'g_q':
        gq_addr()
        g.vmop(gq, 'gq')
        return
    if mode == 'g_compute':
        g.vmwait('gq')
        poll(g, gq, range(Q0, Q0 + 16), T2, 8, preloaded=True, mask=0xffff)
        for i in range(8):
            g(f'v_perm_b32 v{Q0 + i}, v{Q0 + 2 * i + 1}, v{Q0 + 2 * i}, {S_HI}')
        mailbox()
        g.bits(LA, 0, [(0, 4, 64)], T2)
        g(f'v_mov_b32 v{VSC}, 0x3db504f3\nv_mov_b32 v{VMAX}, 0xff800000')
        for u in range(NUG):
            qk(u)
        softmax()
        for u in range(NUG):
            probs(u, NUG - 1)
        epi_addr()
        for u in range(NUG):
            pv(u)
        g('s_waitcnt lgkmcnt(0)\ns_barrier')
        stats()
        factor()
        g('s_nop 0')
        epilogue()
        g('s_barrier')
        return

    entry()
    GS = P['GS']
    order = list(range(96))
    if P['ILV']:
        order = list(range(32, 48))
        for i in range(16):
            order += [2 * i, 2 * i + 1, 48 + i]
        order += list(range(64, 96))
    last = lambda ids: max(order.index(i) for i in ids)
    depth = lambda n: P['DK1'] if n < P['NK1'] else (P['DK2'] if n < 48 else (P['DX'] if n < 64 else P['DV']))
    qsteps = list(range(P['QP0'] - 1, P['QG'] - 1, P['QPS']))
    st = dict(landed=-1, issued=-1, done=0)

    def land(n):
        if n > st['landed']:
            g.vmwait(n)
            st['landed'] = n

    W = [('q', -1, qget)]
    W += [('qk%d' % u, last(range(8 * u, 8 * u + 8)), lambda u=u: qk(u)) for u in ([0, 1, 4, 5, 2, 3] if P['ILV'] else range(NU))]
    W += [('sm', -1, softmax)]
    W += [('pr%d' % u, -1, lambda u=u: probs(u)) for u in range(NU)]
    W += [('st', -1, stats), ('rb', 63, lambda: (readback(), epi_addr(), lds_units()))]
    for u in range(4):
        if u == 3:
            W += [('fs', -1, factor)]
        W += [('pv%d' % u, 64 + 8 * u + 7, lambda u=u: ((g.stamp('a_landed') if u == 3 else None), pv(u)))]
    names = [w[0] for w in W]

    def work(budget, need=None):
        while st['done'] < len(W):
            forced = need is not None and st['done'] <= names.index(need)
            name, ld, act = W[st['done']]
            if not forced and (budget <= 0 or st['landed'] < ld or st['issued'] < P['QG'] - 1):
                return
            assert ld <= st['issued']
            land(ld)
            act()
            st['done'] += 1
            budget -= 1

    for n in range(0, 96, GS):
        d = depth(n)
        if n + GS - 1 >= d:
            land(n + GS - 1 - d)
        if n >= 64 and n % 8 == 0:
            work(0, ['qk1', 'qk2', 'qk3', 'pv0'][(n - 64) >> 3])
        for i in range(GS):
            load(order[n + i], n + i)
        m = n + GS - 1
        if m == P['FAST'] - 1:
            entry2()
            setup()
        st['issued'] = m
        if m == P['STPOS']:
            g.stamp('a_pos')
        if m >= 20 and not st.get('ep'):
            st['ep'] = True
            g.vmwait('ep')
            epoch_tag(g, T2 + 2)
        if m in qsteps:
            if m != qsteps[0]:
                land(m - P['QPS'] + 1)
            qstep()
        work(GS)
    work(0, 'pv3')

    epilogue()
    g.stamp('a_pub', (0, 1, 2, 3, 4))
    slice_index('s14', 's15')
    g(f's_cmp_ge_u32 {S_CU}, {SPL - NMR}\ns_cbranch_scc1 L_mlp')
    if P['RANK']:
        skip = only_wave(g, 0)
        arrive(g, 8, 0, C_R)
        g(f'v_mov_b32 v9, 0\ns_waitcnt vmcnt(0)\ns_mov_b64 exec, 1\nds_write_b32 v9, v8 offset:{RK}\ns_mov_b64 exec, -1\ns_waitcnt lgkmcnt(0)')
        g(skip + ':')
        g(f's_barrier\nv_mov_b32 v8, 0\nds_read_b32 v8, v8 offset:{RK}\ns_waitcnt lgkmcnt(0)\nv_readfirstlane_b32 s14, v8')
    else:
        g(f's_sub_u32 s14, {S_CU}, 1\ns_lshl_b32 s14, s14, 3\ns_add_u32 s14, s14, {S_R}')
    if P['LSKIP']:
        g(f's_sub_u32 s14, s14, {P["LSKIP"]}')
    g(f's_cmp_lt_u32 s14, {min(128, 64 * (4 - P["GJ"])) if P["LQ"] == 2 else (32 if P["GH"] else 64 if P["GBG"] else 96)}\ns_cbranch_scc1 L_late')
    write_stamps(g)
    g('s_endpgm')


def build(stamps=False):
    g = G(stamps)
    ref = open(REF).read()
    g.L.append(ref[:ref.index('; Override launch')].rstrip())
    g.L.append('; @launch grid=(%d,1,1) block=(512,1,1) lds=%d' % (NWG, LDS_TOTAL))
    g.L.append('.amdgcn_target "amdgcn-amd-amdhsa--gfx950"\n.text\n.globl %s_kernel\n.p2align 8\n.type %s_kernel,@function' % (NAME, NAME))
    g.L.append('%s_kernel:' % NAME)
    g.stamp('start', (0, 1, 2, 3, 4))
    g(f'''s_load_dwordx16 s[16:31], s[0:1], 0
          s_load_dwordx8 s[32:39], s[0:1], 64
          s_load_dwordx4 s[40:43], s[0:1], 96
          s_load_dwordx2 s[44:45], s[0:1], 112
          v_lshrrev_b32 v1, 6, v0
          v_and_b32 v0, 63, v0
          v_readfirstlane_b32 s3, v1''')
    g(f's_cmp_lt_u32 s2, {NG}\ns_cbranch_scc1 L_proj')
    g(f's_cmp_ge_u32 s2, {NWG}\ns_cbranch_scc1 L_exit')
    n0 = g.nst
    attention(g)
    n1 = g.nst
    armed = getattr(g, 'padarmed', False)
    latem(g)
    g.padarmed = armed
    g.nst = n1 + (1 if g.stamps and P['ST'] < 3 else 0)
    mlp(g)
    g.nst = n0
    g.padarmed = bool(PADAT) and PADAT[0] == 'start'
    proj(g)
    g('L_exit:\ns_endpgm')
    g('.fill 2048, 4, 0xbf800000')
    g.L.append('''.section .rodata,"a"
.p2align 6
.amdhsa_kernel %s_kernel
  .amdhsa_next_free_vgpr 256
  .amdhsa_next_free_sgpr 102
  .amdhsa_accum_offset 256
  .amdhsa_group_segment_fixed_size 0
  .amdhsa_kernarg_size 120
  .amdhsa_user_sgpr_count 2
  .amdhsa_user_sgpr_kernarg_segment_ptr 1
  .amdhsa_system_sgpr_workgroup_id_x 1
.end_amdhsa_kernel''' % NAME)
    return '\n'.join(g.L) + '\n'


if __name__ == '__main__':
    out = sys.argv[1]
    for a in sys.argv[2:]:
        if a.startswith('PADAT='):
            PADAT.append(a[6:])
        elif '=' in a:
            k, v = a.split('=')
            assert k in P, k
            P[k] = int(v)
    open(out, 'w').write(build(stamps='--stamps' in sys.argv))
```

```python
import sys
NAME = 'adaLN_cond__gqa_block_cached__mixer_channel_mlp__decode'
REF = 'cdna_kernels/%s.s.ref' % NAME

NG = 64
SPL = 24
NMR = 7
NA = 8 * SPL
NWG = NG + NA
WPR = SPL * 8
NU = 6

FLAGS = 0x2000
QB, STATS, X1, MODP, MODL = 0x8000, 0x10000, 0x60000, 0x20000, 0x40000
MBA, MBB, MBC = 0x100000, 0x200000, 0x300000
SLOTS = 32
MBA_ST = 2 * SLOTS * 256
WS_SIZE = 0x400000
SPIN = 1 << 18
C_A, C_B, C_R = 0, 16, 128
TMASK = 0xff

P = dict(MSL=4, LSL=8, QSL=8, ASL=2, GS=1, DK1=8, NK1=28, DK2=8, DV=12, QP0=40, QPS=8, SLEEP=0, PH=64, QG=64, DX=8, TLB=0, PRE=0, WSOFF=0, LGATE=-1, LIGHT=4, RANK=0, P1SL=8, P1TH=56, GBG=0, LQ=1, MLS=2, GJ=1, GH=1, A5W=4, FAST=4, LSKIP=0, XL=0, XW=0, XG=0, XP=0, XS=0, P1K=0, P2TH=16, P2SL=2, W2MISS=16, W2X=0, W2TH=0, NAT=1, BW=1, REP=1, LNM=1, PFA=0, PFG=3, GAE=1, NOQ=0, QW=7, SW=4, GE=0, NUG=0, RPOS=94, ILV=0, ROT=1, MW=4, HPOS=90, ST=0, DBGST=-1, PADTO=0, PADWG=-1, STPOS=-1)

S_WS, S_DBG, S_A, S_B = 's[48:51]', 's[52:55]', 's[56:59]', 's[60:63]'
S_LO, S_HI, S_MASK, S_SPIN = 's64', 's65', 's66', 's67'
S_TAG, S_EPO, S_T16 = 's26', 's27', 's1'
DPP = 'row_mask:0xf bank_mask:0xf'


def vr(a, n):
    return 'v[%d:%d]' % (a, a + n - 1)


PADAT = []


class G:
    def __init__(self, stamps=False):
        self.vm = []
        self.L = []
        self.stamps = stamps
        self.nlabel = 0
        self.nst = 0

    def __call__(self, s):
        for line in s.strip('\n').split('\n'):
            line = line.strip()
            if line:
                self.L.append(line if line.endswith(':') else '    ' + line)

    def label(self, p='L'):
        self.nlabel += 1
        return '%s_%d' % (p, self.nlabel)

    def stamp(self, name, sets=(0,)):
        if PADAT and name == PADAT[0]:
            self('s_memrealtime s[90:91]')
            self.padarmed = True
        if self.stamps and P['ST'] in sets:
            k = self.nst
            self.nst += 1
            assert k < 13 and (k < 11 or name[0] in 'gr'), name
            self('s_memrealtime s[%d:%d] ; stamp %d %s' % (70 + 2 * k, 71 + 2 * k, k, name))

    def vmop(self, text, tag):
        for line in text.strip().split('\n'):
            self(line)
            self.vm.append(tag)

    def vmwait(self, *tags):
        idx = [i for i, t in enumerate(self.vm) if t in tags]
        if not idx:
            return
        n = len(self.vm) - 1 - idx[-1]
        assert n <= 63
        self('s_waitcnt vmcnt(%d)' % n)
        self.vm = self.vm[idx[-1] + 1:]

    def nop(self, n):
        while n > 0:
            k = min(n, 16)
            self('s_nop %d' % (k - 1))
            n -= k

    def bits(self, dst, src, fields, tmp, add=None):
        first = True
        for (lo, n, mul) in fields:
            t = dst if first else tmp
            if lo == 0:
                self(f'v_and_b32 v{t}, {(1 << n) - 1}, v{src}')
            else:
                self(f'v_bfe_u32 v{t}, v{src}, {lo}, {n}')
            pw = mul & (mul - 1) == 0
            sh = mul.bit_length() - 1
            if first:
                if mul != 1:
                    self(f'v_lshlrev_b32 v{dst}, {sh}, v{dst}' if pw else f'v_mul_u32_u24 v{dst}, {mul}, v{dst}')
            elif mul == 1:
                self(f'v_add_u32 v{dst}, v{dst}, v{tmp}')
            elif pw:
                self(f'v_lshl_add_u32 v{dst}, v{tmp}, {sh}, v{dst}')
            else:
                self(f'v_mul_u32_u24 v{tmp}, {mul}, v{tmp}\nv_add_u32 v{dst}, v{dst}, v{tmp}')
            first = False
        if add not in (None, 0):
            self(f'v_add_u32 v{dst}, {add}, v{dst}')

    def setexec(self, m):
        if m == -1:
            self('s_mov_b64 exec, -1')
        elif m < (1 << 31):
            self('s_mov_b64 exec, 0x%x' % m)
        else:
            self('s_mov_b32 exec_lo, 0x%x\ns_mov_b32 exec_hi, 0x%x' % (m & 0xffffffff, m >> 32))


def rep16(m):
    return m * 0x0001000100010001


def check(g, regs, tmp, mask=TMASK):
    regs = list(regs)
    g(f'v_bitop3_b32 v{tmp}, v{regs[0]}, v{regs[1]}, {S_EPO} bitop3:0x7e')
    for r in regs[2:]:
        g(f'v_bitop3_b32 v{tmp}, v{tmp}, v{r}, {S_EPO} bitop3:0xf6')
    if mask == 0xffff:
        g(f'v_cmp_ne_u16 vcc, 0, v{tmp}')
        return
    if mask != -1:
        g(f'v_and_b32 v{tmp}, {mask}, v{tmp}')
    g(f'v_cmp_ne_u32 vcc, 0, v{tmp}')


def tagmask(g, vm):
    g(f'v_mov_b32 v{vm}, 0x{0xffffffff ^ TMASK:x}')


def tag(g, regs, vm):
    for r in regs:
        g(f'v_and_or_b32 v{r}, v{r}, v{vm}, {S_TAG}')


def epoch_load(reg):
    return f'buffer_load_dword v{reg}, off, {S_WS}, 0 sc1'


def epoch_tag(g, reg):
    g(f'''v_readfirstlane_b32 {S_EPO}, v{reg}
          s_mul_i32 {S_TAG}, {S_EPO}, 0x9e3779b1
          s_lshr_b32 {S_TAG}, {S_TAG}, 12
          s_or_b32 {S_TAG}, {S_TAG}, 1
          s_add_u32 {S_EPO}, {S_EPO}, {S_TAG}
          s_and_b32 {S_TAG}, {S_EPO}, {TMASK}
          s_and_b32 {S_T16}, {S_EPO}, 0xffff''')


def poll(g, loads, regs, tmp, sleep=0, preloaded=False, mask=TMASK):
    lp, done, chk = g.label('L_poll'), g.label('L_ok'), g.label('L_chk')
    g(f's_mov_b32 {S_SPIN}, {SPIN}')
    if preloaded:
        g(f's_branch {chk}')
    g(lp + ':')
    g(loads)
    g('s_waitcnt vmcnt(0)')
    if preloaded:
        g(chk + ':')
    check(g, regs, tmp, mask)
    g(f's_cbranch_vccz {done}')
    if sleep:
        g(f's_sleep {sleep}')
    g(f's_sub_u32 {S_SPIN}, {S_SPIN}, 1\ns_cbranch_scc0 {lp}')
    g(done + ':')


def faddr(soff, off):
    return f's_lshl_b32 s98, {soff}, 8\ns_add_u32 s98, s98, {FLAGS + 256 * off}\n'


def fread(reg, soff, off):
    return faddr(soff, off) + f'buffer_load_dword v{reg}, off, {S_WS}, s98 sc1'


def fpoll(g, reg, soff, off, sleep, preloaded=False):
    lp, done, chk = g.label('L_fpoll'), g.label('L_fok'), g.label('L_fchk')
    g(f's_mov_b32 {S_SPIN}, {SPIN}')
    if preloaded:
        g(f's_branch {chk}')
    g(lp + ':')
    g(fread(reg, soff, off) + '\ns_waitcnt vmcnt(0)')
    if preloaded:
        g(chk + ':')
    g(f'v_cmp_ne_u32 vcc, {S_EPO}, v{reg}\ns_cbranch_vccz {done}')
    if sleep:
        g(f's_sleep {sleep}')
    g(f's_sub_u32 {S_SPIN}, {S_SPIN}, 1\ns_cbranch_scc0 {lp}')
    g(done + ':')


def fwait(g, reg, soff, off, sleep):
    skip = only_wave(g, 0)
    fpoll(g, reg, soff, off, sleep)
    g(skip + ':')
    g('s_barrier')


def arrive(g, reg, soff, off):
    g(f'v_mov_b32 v{reg}, 1\ns_mov_b64 exec, 1\nbuffer_atomic_add v{reg}, off, {S_DBG}, {soff} offset:{off} sc0 sc1\ns_mov_b64 exec, -1')


def arrived(g, reg, soff, off, n):
    skip = g.label('L_notlast')
    g(f'v_readfirstlane_b32 s99, v{reg}\ns_cmp_lg_u32 s99, {n - 1}\ns_cbranch_scc1 {skip}')
    g(faddr(soff, off) + f'v_mov_b32 v{reg}, {S_EPO}\ns_mov_b64 exec, 1\nbuffer_store_dword v{reg}, off, {S_WS}, s98 sc1\ns_mov_b64 exec, -1')
    g(skip + ':')


def srd(g, s, lo, size):
    base = int(s[2:s.index(':')])
    if lo == 44 and P['WSOFF']:
        g(f's_add_u32 s{base}, s44, {P["WSOFF"] << 20}\ns_addc_u32 s{base + 1}, s45, 0\ns_mov_b32 s{base + 2}, 0x{size:x}\ns_mov_b32 s{base + 3}, 0x20000')
        return
    g(f's_mov_b32 s{base}, s{lo}\ns_mov_b32 s{base + 1}, s{lo + 1}\ns_mov_b32 s{base + 2}, 0x{size:x}\ns_mov_b32 s{base + 3}, 0x20000')


def consts(g):
    g(f's_mov_b32 {S_LO}, 0x05040100\ns_mov_b32 {S_HI}, 0x07060302\ns_mov_b32 {S_MASK}, 0xffff0000')


def only_wave(g, w):
    skip = g.label('L_skip')
    g(f's_cmp_lg_u32 s3, {w}\ns_cbranch_scc1 {skip}')
    return skip


def write_stamps(g):
    if PADAT and getattr(g, 'padarmed', False):
        l = g.label('L_padat')
        g(f'{l}:\ns_memrealtime s[4:5]\ns_waitcnt lgkmcnt(0)\ns_sub_u32 s4, s4, s90\ns_sleep 4\ns_cmp_lt_u32 s4, 6000\ns_cbranch_scc1 {l}')
    if not g.stamps:
        return
    g('s_waitcnt lgkmcnt(0)')
    skip = only_wave(g, 0)
    g('s_mov_b64 exec, 1')
    if P['DBGST'] >= 0:
        g(f's_cmp_lg_u32 s2, {P["DBGST"]}\ns_cbranch_scc1 {skip}')
        for k in range(1, min(g.nst, 12)):
            g(f's_sub_u32 s4, s{70 + 2 * k}, s70\nv_mov_b32 v2, s4')
            g(f'buffer_store_dword v2, off, {S_DBG}, 0 offset:{16 + 4 * k}')
        g(skip + ':')
        return
    g('s_lshl_b32 s4, s2, 8\ns_add_u32 s4, s44, s4\ns_addc_u32 s5, s45, 0')
    g('s_add_u32 s4, s4, %d\ns_addc_u32 s5, s5, 0' % (255 << 20))
    g('v_mov_b32 v1, 0')
    for k in range(g.nst):
        g(f'v_mov_b32 v2, s{70 + 2 * k}\nv_mov_b32 v3, s{71 + 2 * k}')
        g(f'global_store_dwordx2 v1, v[2:3], s[4:5] offset:{8 * k}')
        g('s_nop 1')
    g(skip + ':')


def prefetch_code(g, label, nkb8, vtmp, vdst, tag=None):
    pc = g.label('L_pc')
    g('s_getpc_b64 s[98:99]')
    if label:
        g(f'{pc}:\ns_add_u32 s98, s98, {label}-{pc}\ns_addc_u32 s99, s99, 0')
    g('s_and_b32 s98, s98, 0xffffff80')
    g(f's_lshl_b32 s97, s3, 10\nv_lshl_add_u32 v{vtmp}, v0, 4, s97')
    for i in range(nkb8):
        if i:
            g(f'v_add_u32 v{vtmp}, 8192, v{vtmp}')
        t = f'global_load_dwordx4 {vr(vdst, 4)}, v{vtmp}, s[98:99]'
        g.vmop(t, tag) if tag else g(t)


BLK = lambda i: 64 + 32 * i
UA, UB, UC = 0, 2, 4
ACC = 32
KW, NB, NW, NR, NO, KB, TID = 1, 2, 3, 4, 5, 6, 7
T = 24


class Lds:
    def __init__(self, base):
        self.ACTS, self.ACTH, self.RED = base, base + 4352, base + 8704
        self.OUTV = base + 17408
        self.PART = base + 17664
        self.STAT = base + 18688
        self.END = base + 19200


ABS = 2048 + 128


def nstep():
    return 1 if P['NAT'] else 64


def nvoff(g, dst, rs, tid=TID, tmp=T + 7):
    g.bits(dst, tid, [(3, 6, rs * 8 if P['NAT'] else rs), (0, 3, 16)], tmp)


def nload(g, unit, ptr, size, rs, s_col, voff, kbs=(0, 1), tag=None):
    srd(g, S_A, ptr, size)
    for kb in kbs:
        g(f's_add_u32 s4, {s_col}, {kb * 512 * rs}')
        for t in range(8):
            g.vmop(f'buffer_load_dwordx4 {vr(BLK(unit + kb) + 4 * t, 4)}, v{voff}, {S_A}, s4 offen nt', (tag, kb))
            if t < 7:
                g(f's_add_u32 s4, s4, {nstep() * rs}')


def kload(g, unit, ptr, size, s_idx, voff, rowf, tag, s_xor=None):
    srd(g, S_A, ptr, size)
    g(f's_lshl_b32 s5, {s_idx}, 17')
    for kb in range(2):
        for t in range(8):
            g(f's_add_u32 s4, s5, {rowf(kb, t) * 2048}')
            if s_xor:
                g(f's_xor_b32 s4, s4, {s_xor}')
            g.vmop(f'buffer_load_dwordx4 {vr(BLK(unit + kb) + 4 * t, 4)}, v{voff}, {S_A}, s4 offen nt', (tag, kb))


def transpose(g, blk, T=T):
    b = BLK(blk)
    for p in range(4):
        a, c = b + 8 * p + p, b + 8 * p + 4 + p
        g(f'v_perm_b32 v{T}, v{c}, v{a}, {S_LO}\nv_perm_b32 v{c}, v{c}, v{a}, {S_HI}\nv_mov_b32 v{a}, v{T}')
    for p in range(4):
        for w in range(p + 1, 4):
            xa, xb = b + 8 * p + w, b + 8 * p + 4 + w
            ya, yb = b + 8 * w + p, b + 8 * w + 4 + p
            g(f'v_perm_b32 v{T}, v{xb}, v{xa}, {S_LO}\nv_perm_b32 v{T + 1}, v{xb}, v{xa}, {S_HI}')
            g(f'v_perm_b32 v{xa}, v{yb}, v{ya}, {S_LO}\nv_perm_b32 v{xb}, v{yb}, v{ya}, {S_HI}')
            g(f'v_mov_b32 v{ya}, v{T}\nv_mov_b32 v{yb}, v{T + 1}')


def mfmas(g, unit, b0, b1):
    for kb, bop in ((0, b0), (1, b1)):
        if kb == 1:
            g('s_waitcnt lgkmcnt(0)')
        for j in range(8):
            d = vr(ACC + 4 * j, 4)
            g(f'v_mfma_f32_16x16x32_bf16 {d}, {vr(BLK(unit + kb) + 4 * j, 4)}, {vr(bop, 4)}, {d if kb else 0}')


def common_addr(g, L, kperm):
    K0B = T + 6
    g(f's_lshl_b32 s4, s3, 6\nv_add_u32 v{TID}, s4, v0')
    g.bits(K0B, TID, [(3, 6, 64), (0, 2, 16), (2, 1, 8)], T)
    if P['NAT']:
        g.bits(KW, K0B, [(11, 1, ABS), (0, 11, 1)], T)
        g.bits(NB, TID, [(0, 1, ABS), (6, 3, 128), (4, 2, 32), (1, 1, 16)], T)
    else:
        g.bits(KW, K0B, [(11, 1, ABS), (4, 3, 256), (10, 1, 128), (1, 3, 16), (7, 3, 2)], T)
        g.bits(NB, TID, [(0, 1, ABS), (6, 3, 256), (4, 2, 32), (1, 1, 16)], T)
    g.bits(NW, TID, [(6, 3, 1088), (1, 1, 544), (0, 1, 256), (2, 2, 32), (4, 1, 16)], T, L.RED)
    g.bits(NR, TID, [(0, 2, 544), (2, 7, 4)], T, L.RED)
    if kperm:
        g.bits(NO, TID, [(8, 1, 128), (4, 1, 64), (5, 1, 32), (7, 1, 16), (2, 2, 4), (6, 1, 2)], T, L.OUTV)
    else:
        g.bits(NO, TID, [(8, 1, 128), (2, 3, 16), (5, 2, 4), (7, 1, 2)], T, L.OUTV)
    g.bits(KB, TID, [(0, 1, 128), (4, 2, 16)], T, L.OUTV)


def nsplit(g, unit, act, half=None):
    if half is None:
        g(f'ds_read_b128 {vr(T, 4)}, v{NB} offset:{act}\nds_read_b128 {vr(T + 4, 4)}, v{NB} offset:{act + (1024 if P["NAT"] else 128)}')
        g('s_waitcnt lgkmcnt(1)')
        mfmas(g, unit, T, T + 4)
    else:
        g(f'ds_read_b128 {vr(T, 4)}, v{half} offset:{act}\ns_waitcnt lgkmcnt(0)')
        for j in range(8):
            g(f'v_mfma_f32_16x16x32_bf16 {vr(ACC + 4 * j, 4)}, {vr(BLK(unit) + 4 * j, 4)}, {vr(T, 4)}, 0')
    for dd in range(1, 4):
        g.setexec(rep16(0xf << (4 * dd)))
        if dd != 2:
            g.nop(2)
        for i in range(4):
            g(f'v_mov_b64 {vr(ACC + 2 * i, 2)}, {vr(ACC + 8 * dd + 2 * i, 2)}')
    g.setexec(0xcccccccc33333333)
    g(f'ds_write_b128 v{NW}, {vr(ACC, 4)}\nds_write_b128 v{NW}, {vr(ACC + 4, 4)} offset:128')
    g.setexec(-1)
    g('s_waitcnt lgkmcnt(0)\ns_barrier')
    for k in range(4):
        g(f'ds_read_b32 v{T + k}, v{NR} offset:{k * 4 * 544}')
    g('s_waitcnt lgkmcnt(2)')
    g(f'v_add_f32 v{T}, v{T}, v{T + 1}')
    g('s_waitcnt lgkmcnt(0)')
    g(f'v_add_f32 v{T + 2}, v{T + 2}, v{T + 3}\nv_add_f32 v{T}, v{T}, v{T + 2}')
    g.nop(2)
    g(f'v_add_f32_dpp v{T}, v{T}, v{T} quad_perm:[1,0,3,2] {DPP}')
    g.nop(2)
    g(f'v_add_f32_dpp v{T}, v{T}, v{T} quad_perm:[2,3,0,1] {DPP}')


def actwrite(g, p, act):
    if P['NAT']:
        g(f'ds_write_b64 v{KW}, {vr(p, 2)} offset:{act}')
        return
    g(f'ds_write_b16 v{KW}, v{p} offset:{act}\nds_write_b16_d16_hi v{KW}, v{p} offset:{act + 16}')
    g(f'ds_write_b16 v{KW}, v{p + 1} offset:{act + 32}\nds_write_b16_d16_hi v{KW}, v{p + 1} offset:{act + 48}')


def unpack2(g, d, s):
    g(f'v_lshlrev_b32 v{d}, 16, v{s}\nv_and_b32 v{d + 1}, {S_MASK}, v{s}')


def unpack(g, d, s):
    unpack2(g, d, s)
    unpack2(g, d + 2, s + 1)


def pack(g, t, d):
    g(f'v_cvt_pk_bf16_f32 v{t}, v{d}, v{d + 1}\nv_cvt_pk_bf16_f32 v{t + 1}, v{d + 2}, v{d + 3}')


def round4(g, d, t):
    pack(g, t, d)
    unpack(g, d, t)


def round2(g, a):
    g(f'v_cvt_pk_bf16_f32 v{a + 1}, v{a}, v{a + 1}')
    unpack2(g, a, a + 1)


def pk4(g, op, d, a, b):
    g(f'{op} {vr(d, 2)}, {vr(a, 2)}, {vr(b, 2)}\n{op} {vr(d + 2, 2)}, {vr(a + 2, 2)}, {vr(b + 2, 2)}')


def layernorm(g, x, sw, sr, off, last_packed=False):
    a, b = T + 4, T + 5
    g(f'v_add_f32 v{a}, v{x}, v{x + 1}\nv_mul_f32 v{b}, v{x}, v{x}')
    g(f'v_add_f32 v{T}, v{x + 2}, v{x + 3}\nv_fmac_f32 v{b}, v{x + 1}, v{x + 1}')
    g(f'v_add_f32 v{a}, v{a}, v{T}\nv_fmac_f32 v{b}, v{x + 2}, v{x + 2}\nv_fmac_f32 v{b}, v{x + 3}, v{x + 3}')
    for i, ctl in enumerate(['row_ror:8 ' + DPP, 'row_ror:4 ' + DPP, 'row_ror:2 ' + DPP, 'row_ror:1 ' + DPP,
                             'row_bcast:15 row_mask:0xa bank_mask:0xf', 'row_bcast:31 row_mask:0xc bank_mask:0xf']):
        if i:
            g('s_nop 0')
        g(f'v_add_f32_dpp v{a}, v{a}, v{a} {ctl}')
        if i == 0:
            g('s_nop 0')
        g(f'v_add_f32_dpp v{b}, v{b}, v{b} {ctl}')
    g.setexec(1 << 63)
    g(f'ds_write_b64 v{sw}, {vr(a, 2)} offset:{off}')
    g.setexec(-1)
    g('s_waitcnt lgkmcnt(0)\ns_barrier')
    g(f'ds_read_b128 {vr(T, 4)}, v{sr} offset:{off}\nds_read_b128 {vr(T + 4, 4)}, v{sr} offset:{off + 16}')
    g('s_waitcnt lgkmcnt(0)')
    pk4(g, 'v_pk_add_f32', T, T, T + 4)
    g(f'v_pk_add_f32 {vr(a, 2)}, {vr(T, 2)}, {vr(T + 2, 2)}')
    g(f'v_mul_f32 v{a}, 0x3a800000, v{a}\nv_mul_f32 v{b}, 0x3a800000, v{b}')
    g(f'v_fma_f32 v{b}, -v{a}, v{a}, v{b}\nv_max_f32 v{b}, 0, v{b}')
    round2(g, a)
    g(f'v_add_f32 v{b}, 0x3727c5ac, v{b}')
    g(f'v_cvt_pk_bf16_f32 v{b}, v{b}, v{b}\nv_lshlrev_b32 v{b}, 16, v{b}')
    g(f'v_sqrt_f32 v{b}, v{b}')
    for i in range(4):
        g(f'v_sub_f32 v{x + i}, v{x + i}, v{a}')
    g(f'v_cvt_pk_bf16_f32 v{b}, v{b}, v{b}\nv_lshlrev_b32 v{b}, 16, v{b}')
    g(f'v_rcp_f32 v{b}, v{b}')
    round4(g, x, T + 6)
    for i in range(4):
        g(f'v_mul_f32 v{x + i}, v{x + i}, v{b}')
    if last_packed:
        pack(g, T + 6, x)
    else:
        round4(g, x, T + 6)


def blocksum6(g, r, sw6, sr6, off, out):
    g.nop(1)
    for i in (0, 2, 4):
        g(f'v_permlane32_swap_b32 v{r + i}, v{r + i + 1}')
    for i in (0, 2, 4):
        g(f'v_add_f32 v{r + i}, v{r + i}, v{r + i + 1}')
    g(f'v_mov_b32 v{r + 5}, v{r + 4}\nv_permlane16_swap_b32 v{r}, v{r + 2}\nv_add_f32 v{r}, v{r}, v{r + 2}')
    g(f'v_permlane16_swap_b32 v{r + 4}, v{r + 5}\nv_add_f32 v{r + 4}, v{r + 4}, v{r + 5}')
    for i, sh in enumerate((8, 4, 2, 1)):
        if i:
            g('s_nop 0')
        g(f'v_add_f32_dpp v{r}, v{r}, v{r} row_ror:{sh} {DPP}')
        if i == 0:
            g('s_nop 0')
        g(f'v_add_f32_dpp v{r + 4}, v{r + 4}, v{r + 4} row_ror:{sh} {DPP}')
    g(f'ds_write_b32 v{sw6}, v{r} offset:{off}\nds_write_b32 v{sw6}, v{r + 4} offset:{off + 64}')
    g('s_waitcnt lgkmcnt(0)\ns_barrier')
    for i, o in enumerate((0, 16, 32, 48, 64, 96)):
        g(f'ds_read_b128 {vr(out + 4 * i, 4)}, v{sr6} offset:{off + o}')
    for i in range(6):
        g(f's_waitcnt lgkmcnt({5 - i})')
        g(f'v_pk_add_f32 {vr(out + 4 * i, 2)}, {vr(out + 4 * i, 2)}, {vr(out + 4 * i + 2, 2)}')
    for i in range(6):
        g(f'v_add_f32 v{out + i}, v{out + 4 * i}, v{out + 4 * i + 1}')


def rstd(g, mean, var):
    g(f'v_max_f32 v{var}, 0, v{var}')
    round2(g, mean)
    g(f'v_add_f32 v{var}, 0x3727c5ac, v{var}')
    g(f'v_cvt_pk_bf16_f32 v{var}, v{var}, v{var}\nv_lshlrev_b32 v{var}, 16, v{var}\nv_sqrt_f32 v{var}, v{var}\ns_nop 0')
    g(f'v_cvt_pk_bf16_f32 v{var}, v{var}, v{var}\nv_lshlrev_b32 v{var}, 16, v{var}\nv_rcp_f32 v{var}, v{var}')


def ksplit_out(g, unit, po, mb):
    g(f'ds_read_b128 {vr(T, 4)}, v{KB}\nds_read_b128 {vr(T + 4, 4)}, v{KB} offset:64')
    g('s_waitcnt lgkmcnt(1)')
    mfmas(g, unit, T, T + 4)
    tagmask(g, T)
    for j in range(1, 8):
        g.setexec(rep16(3 << (2 * j)))
        g(f'v_mov_b64 {vr(ACC, 2)}, {vr(ACC + 4 * j, 2)}\nv_mov_b64 {vr(ACC + 2, 2)}, {vr(ACC + 4 * j + 2, 2)}')
    g.setexec(-1)
    tag(g, range(ACC, ACC + 4), T)
    g(f'buffer_store_dwordx4 {vr(ACC, 4)}, v{po}, {S_WS}, {mb} offen sc1')


def publish32(g, L, s_off, bstride, exact):
    g(f'v_subrev_u32 v{T + 1}, {L.OUTV}, v{NO}\nv_lshlrev_b32 v{T + 1}, 1, v{T + 1}\nds_write_b32 v{T + 1}, v{T} offset:{L.PART}')
    g('s_waitcnt lgkmcnt(0)\ns_barrier')
    skip = only_wave(g, 0)
    if exact:
        g(f'v_lshlrev_b32 v{T + 4}, 3, v0\nds_read_b64 {vr(T + 6, 2)}, v{T + 4} offset:{L.PART}')
        g.bits(T + 5, 0, [(5, 1, bstride), (0, 5, 16)], T + 4)
        g(f'v_mov_b32 v{T + 1}, {S_EPO}\nv_mov_b32 v{T + 3}, {S_EPO}\ns_waitcnt lgkmcnt(0)')
        g(f'v_mov_b32 v{T}, v{T + 6}\nv_mov_b32 v{T + 2}, v{T + 7}')
    else:
        g(f'v_lshlrev_b32 v{T + 4}, 4, v0\nds_read_b128 {vr(T, 4)}, v{T + 4} offset:{L.PART}')
        g.bits(T + 5, 0, [(4, 1, bstride), (0, 4, 16)], T + 6)
        g('s_waitcnt lgkmcnt(0)\ns_mov_b32 exec_hi, 0')
    g(f'buffer_store_dwordx4 {vr(T, 4)}, v{T + 5}, {S_WS}, {s_off} offen sc1')
    g.setexec(-1)
    g('s_nop 0')
    g(skip + ':')


def qjob_issue(g, blk, s_job, voff, lg=2):
    g(f'''s_and_b32 s15, {s_job}, {(1 << lg) - 1}
          s_lshr_b32 s6, {s_job}, {lg}
          s_lshl_b32 s6, s6, 7
          s_mul_i32 s13, s15, {(1024 >> lg) * 12288}
          s_add_u32 s13, s13, s6
          s_add_u32 s13, s13, 4096''')
    nload(g, blk, 38, 1024 * 12288, 12288, 's13', voff, (0,), tag='qj')


def qjob_voff(g, voff, lg=2):
    nvoff(g, voff, 12288)
    if lg == 1:
        return
    g(f's_lshr_b32 s4, s3, 2\ns_lshl_b32 s4, s4, 24\nv_add_u32 v{voff}, s4, v{voff}')


def qjob_finish(g, L, blk, va, vm, lg=2):
    g(f's_lshl_b32 s12, s15, 15\ns_lshl_b32 s5, s6, 1\ns_add_u32 s12, s12, s5\ns_add_u32 s12, s12, {MODL}')
    if lg == 2:
        g(f's_lshr_b32 s4, s3, 2\ns_sub_u32 s4, s15, s4\ns_lshl_b32 s4, s4, 9\nv_add_u32 v{va}, s4, v{NB}')
    else:
        g(f's_lshl_b32 s4, s15, 10\nv_add_u32 v{va}, s4, v{NB}')
    tagmask(g, vm)
    g.vmwait(('qj', 0))
    g.stamp('l_land', (4,) if L.ACTS == MLP_LDS else ())
    transpose(g, blk)
    g.stamp('l_tr', (4,) if L.ACTS == MLP_LDS else ())
    nsplit(g, blk, L.ACTS, va)
    g.stamp('l_ns', (4,) if L.ACTS == MLP_LDS else ())
    tag(g, [T], vm)
    publish32(g, L, 's12', 16384, False)


def silu_image(g, L, src):
    unpack(g, ACC, src)
    for i in range(4):
        g(f'v_mul_f32 v{T + i}, 0xbfb8aa3b, v{ACC + i}')
    for i in range(4):
        g(f'v_exp_f32 v{T + i}, v{T + i}')
    for i in range(4):
        g(f'v_add_f32 v{T + i}, 1.0, v{T + i}')
    for i in range(4):
        g(f'v_rcp_f32 v{T + i}, v{T + i}')
    for i in range(4):
        g(f'v_mul_f32 v{T + i}, v{T + i}, v{ACC + i}')
    pack(g, T + 4, T)
    actwrite(g, T + 4, L.ACTS)


def proj(g):
    L = Lds(8448)
    Y, SB = 8, 12
    PO, RO, RL, OUTO = 8, 9, 10, 11
    WG, AO, AO3, OW = 12, 17, 18, 16
    WQO, WMO, SW, SR = 17, 18, 19, 23
    RX, RGA, RGB, RB2 = 20, 21, 22, 23
    JC, ODD = 's14', 's15'
    g.vm = []

    def reduce(mb, nprod, part):
        GR = ('s4', 's5', 's6', 's47')[:4 if part == 0 or P['GBG'] or P['LQ'] == 2 else 2]
        if part == 0 and P['GAE']:
            GR = ()
        for i, r in enumerate(GR):
            g(f's_mov_b32 {r}, {MODL + part * 4096 + 32768 * i}')
        if nprod < 64:
            g(f'v_mov_b32 v{T}, 0')
            skip = g.label('L_nored')
            g(f's_cmp_ge_u32 s3, {nprod // 8}\ns_cbranch_scc1 {skip}')
        l0, l1 = g.label('L_red0'), g.label('L_red1')
        ld = f'buffer_load_dwordx4 {vr(T, 4)}, v{RO}, {S_WS}, {mb} offen sc1'
        if GR:
            g(f's_cmp_eq_u32 s3, 0\ns_cbranch_scc1 {l0}')
            poll(g, ld, range(T, T + 4), T + 4)
            g(f's_branch {l1}\n{l0}:')
        poll(g, ld + ''.join(f'\nbuffer_load_dwordx2 {vr(ACC + 18 + 2 * i, 2)}, v{RGA}, {S_WS}, {r} offen sc1'
                             for i, r in enumerate(GR)),
             list(range(T, T + 4)) + list(range(ACC + 18, ACC + 18 + 2 * len(GR))), T + 4)
        g(l1 + ':')
        g.stamp('red_polled%d' % nprod, (1,))
        g(f'v_permlane32_swap_b32 v{T}, v{T + 2}\nv_permlane32_swap_b32 v{T + 1}, v{T + 3}')
        g(f'v_add_f32 v{T}, v{T}, v{T + 2}\nv_add_f32 v{T + 1}, v{T + 1}, v{T + 3}')
        g.nop(2)
        g(f'v_permlane16_swap_b32 v{T}, v{T + 1}\nv_add_f32 v{T}, v{T}, v{T + 1}')
        g.nop(2)
        g(f'v_add_f32_dpp v{T}, v{T}, v{T} row_ror:8 {DPP}')
        if nprod < 64:
            g(skip + ':')
        g(f'ds_write_b32 v{RL}, v{T}')
        g('s_waitcnt lgkmcnt(0)\ns_barrier')
        skip = only_wave(g, 0)
        g(f'v_and_b32 v{T + 2}, 15, v0\nv_lshlrev_b32 v{T + 2}, 3, v{T + 2}')
        for w in range(8):
            g(f'ds_read_b64 {vr(ACC + 2 * w, 2)}, v{T + 2} offset:{L.PART + 128 * w}')
        if len(GR) == 4:
            pk4(g, 'v_pk_add_f32', ACC + 18, ACC + 18, ACC + 22)
        if GR:
            g(f'v_pk_add_f32 {vr(ACC + 18, 2)}, {vr(ACC + 18, 2)}, {vr(ACC + 20, 2)}')
            round2(g, ACC + 18)
        else:
            unpack2(g, ACC + 18, RGB)
        return skip

    def reduce_sum():
        g('s_waitcnt lgkmcnt(4)')
        pk4(g, 'v_pk_add_f32', ACC, ACC, ACC + 4)
        g('s_waitcnt lgkmcnt(0)')
        pk4(g, 'v_pk_add_f32', ACC + 8, ACC + 8, ACC + 12)
        pk4(g, 'v_pk_add_f32', ACC, ACC, ACC + 8)
        g(f'v_pk_add_f32 {vr(T, 2)}, {vr(ACC, 2)}, {vr(ACC + 2, 2)}')
        round2(g, T)

    g('L_proj:')
    if P['PFG'] == 3:
        g(f's_getpc_b64 s[98:99]\nL_pc0:\ns_sub_u32 s98, s98, L_pc0-{NAME}_kernel\ns_subb_u32 s99, s99, 0')
        g(f's_and_b32 s4, s2, 56\ns_add_u32 s4, s4, s3\ns_lshl_b32 s4, s4, 9\nv_lshl_add_u32 v{T}, v0, 3, s4')
        g.vmop(f'global_load_dwordx2 {vr(ACC + 4, 2)}, v{T}, s[98:99]', 'in')
    g(f's_and_b32 {JC}, s2, 7\ns_lshl_b32 {JC}, {JC}, 3\ns_lshr_b32 s4, s2, 3\ns_add_u32 {JC}, {JC}, s4')
    g(f's_lshl_b32 s4, s3, 6\nv_add_u32 v{TID}, s4, v0')
    nvoff(g, WMO, 12288)
    g(f'''s_and_b32 {ODD}, {JC}, 1
          s_lshr_b32 s6, {JC}, 1
          s_lshl_b32 s6, s6, 7
          s_mul_i32 s13, {ODD}, {512 * 12288}
          s_add_u32 s13, s13, s6''')
    g.bits(T + 6, TID, [(3, 6, 64), (0, 2, 16), (2, 1, 8)], T)
    g('s_waitcnt lgkmcnt(0)')
    srd(g, S_B, 36, 4096)
    g.vmop(f'buffer_load_dwordx2 {vr(SB, 2)}, v{T + 6}, {S_B}, 0 offen', 'in')
    g('s_mov_b32 s60, s16\ns_mov_b32 s61, s17')
    g.vmop(f'buffer_load_dwordx2 {vr(SB + 2, 2)}, v{T + 6}, {S_B}, 0 offen', 'in')
    srd(g, S_WS, 44, WS_SIZE)
    g.vmop(epoch_load(RGB), 'in')
    if P['PFG'] == 2:
        skip = g.label('L_nopf')
        g(f's_cmp_ge_u32 s2, 8\ns_cbranch_scc1 {skip}')
        prefetch_code(g, None, 2, T, ACC + 4)
        g(skip + ':')
    nload(g, UA, 38, 1024 * 12288, 12288, 's13', WMO, (0,), tag='m1')
    consts(g)
    g(f's_lshl_b32 s7, {JC}, 7\ns_lshr_b32 s46, {JC}, 4\ns_lshl_b32 s46, s46, 2')
    g(f's_lshl_b32 s47, {ODD}, 15\ns_lshl_b32 s5, s6, 2\ns_add_u32 s47, s47, s5\ns_add_u32 s47, s47, {MODP}')
    common_addr(g, L, False)
    nvoff(g, WQO, 8192)
    g(f's_lshl_b32 s4, s3, 3\nv_mov_b32 v{SW}, s4\ns_and_b32 s4, s4, 32\nv_mov_b32 v{SR}, s4')
    g(f's_mul_i32 s8, {JC}, {MBA_ST}\ns_add_u32 s8, s8, {MBA}')
    g(f's_lshl_b32 s9, {JC}, 13\ns_add_u32 s10, s9, {MBC}\ns_add_u32 s9, s9, {MBB}')
    g(f's_lshl_b32 s11, {JC}, 7\ns_add_u32 s11, s11, {X1}')
    g.vmwait('in')
    epoch_tag(g, RGB)
    silu_image(g, L, SB)
    unpack(g, Y, SB + 2)
    layernorm(g, Y, SW, SR, L.STAT)
    nload(g, UB, 22, 1024 * 8192, 8192, 's7', WQO, (0,), tag='wq')
    g('s_waitcnt vmcnt(8)')
    transpose(g, UA)
    g(f's_lshl_b32 s4, {ODD}, {10 if P["NAT"] else 7}\nv_add_u32 v{T + 7}, s4, v{NB}')
    nsplit(g, UA, L.ACTS, T + 7)
    publish32(g, L, 's47', 16384, True)
    g.stamp('g_mod')
    nload(g, UB, 22, 1024 * 8192, 8192, 's7', WQO, (1,), tag='wq')
    MP = RGA
    g.bits(MP, TID, [(8, 1, 16384), (3, 5, 256), (0, 2, 64), (2, 1, 32)], T + 7, MODP)
    g('s_waitcnt vmcnt(8)')
    transpose(g, UB)
    g(f's_mov_b32 s4, 8192\ns_mov_b32 s5, 32768\ns_mov_b32 s12, {32768 + 8192}')
    mloads = '\n'.join(f'buffer_load_dwordx4 {vr(ACC + 4 * i, 4)}, v{MP}, {S_WS}, {("0", "s5", "s4", "s12")[i >> 1]} offen offset:{16 * (i & 1)} sc1'
                       for i in range(8))
    g(f's_waitcnt vmcnt({P["MW"]})')
    g(mloads)
    attention(g, 'g_addr')
    attention(g, 'g_issue', range(P['GE']))
    g(f's_waitcnt vmcnt({8 + P["GE"]})')
    transpose(g, UB + 1)
    g(f's_waitcnt vmcnt({P["GE"]})')
    poll(g, mloads, range(ACC + 1, ACC + 32, 2), T, P['MSL'], preloaded=True, mask=-1)
    g.vm = []
    g.stamp('g_modseen')
    for i in range(4):
        g(f'v_add_f32 v{T + i}, v{ACC + 16 + 2 * i}, v{ACC + 24 + 2 * i}')
    for i in range(4):
        g(f'v_add_f32 v{ACC + i}, v{ACC + 2 * i}, v{ACC + 8 + 2 * i}')
    round4(g, T, T + 4)
    for i in range(4):
        g(f'v_add_f32 v{T + i}, 1.0, v{T + i}')
    round4(g, T, T + 4)
    pk4(g, 'v_pk_mul_f32', Y, Y, T)
    round4(g, Y, T + 4)
    round4(g, ACC, T + 4)
    pk4(g, 'v_pk_add_f32', Y, Y, ACC)
    pack(g, T, Y)
    actwrite(g, T, L.ACTH)
    g('s_waitcnt lgkmcnt(0)\ns_barrier')
    nsplit(g, UB, L.ACTH)
    g(f's_lshl_b32 s12, s7, 1\ns_add_u32 s12, s12, {QB}')
    g(f'v_cvt_pk_bf16_f32 v{T}, v{T}, v{T}\nv_lshl_or_b32 v{T}, v{T}, 16, {S_T16}')
    publish32(g, L, 's12', 16384, False)
    g.stamp('g_q')

    attention(g, 'g_issue', range(P['GE'], 16 * P['NUG']))
    if P['NUG']:
        attention(g, 'g_q')
    assert not P['NUG'] and P['NAT']
    qjob_voff(g, WMO)
    qjob_issue(g, UA, JC, WMO)
    g.bits(T + 5, TID, [(4, 2, 4096), (6, 3, 256), (0, 4, 16)], T + 7)
    kload(g, UC, 24, 4096 * 2048, JC, T + 5, lambda kb, t: 32 * kb + (t & 3) * 8 + (t >> 2), 'wo')
    qjob_finish(g, L, UA, 8, 9)
    if P['GH']:
        assert P['LQ'] == 1 and P['GJ'] == 1 and not P['GBG']
        qjob_voff(g, WMO, 1)
        g(f's_add_u32 s47, {JC}, 32')
        qjob_issue(g, UA, 's47', WMO, 1)
        qjob_finish(g, L, UA, 8, 9, 1)
    if P['GJ'] > 1:
        assert P['LQ'] == 2 and not P['GBG']
        lp = g.label('L_gj')
        g(f's_add_u32 s47, {JC}, 64\n{lp}:')
        qjob_issue(g, UA, 's47', WMO)
        qjob_finish(g, L, UA, 8, 9)
        g(f's_add_u32 s47, s47, 64\ns_cmp_lt_u32 s47, {64 * P["GJ"]}\ns_cbranch_scc1 {lp}')
    if P['GBG']:
        g(f's_add_u32 s47, {JC}, 192')
        qjob_issue(g, UA, 's47', WMO)
        qjob_finish(g, L, UA, 8, 9)
    g(f's_and_b32 {ODD}, {JC}, 1')
    if P['NUG']:
        attention(g, 'g_compute')
        g.stamp('g_att')
        common_addr(g, L, False)
    g(f'v_lshlrev_b32 v{RO}, 4, v{TID}')
    g('s_waitcnt vmcnt(0)')
    g.vm = []
    transpose(g, UC)
    transpose(g, UC + 1)
    g.stamp('g_loaded')
    g(f's_lshr_b32 s4, {JC}, 1\ns_lshl_b32 s4, s4, 6\ns_lshl_b32 s5, {ODD}, 3\ns_add_u32 s4, s4, s5')
    g.bits(T, 0, [(1, 2, 16), (0, 1, 4)], T + 1, 's4')
    srd(g, S_B, 34, 2048)
    g(f'buffer_load_dword v{RB2}, v{T}, {S_B}, 0 offen')
    g(f'v_bfe_u32 v{T + 1}, v0, 3, 1\nv_lshlrev_b32 v{RGA}, 1, v{T}\nv_lshl_add_u32 v{RGA}, v{T + 1}, 14, v{RGA}')
    g(f'v_lshl_add_u32 v{OUTO}, v{T + 1}, 11, v{T}')
    srd(g, S_B, 16, 4096)
    g(f'buffer_load_dword v{RX}, v{OUTO}, {S_B}, 0 offen')
    if P['GAE']:
        skip = only_wave(g, 0)
        GR = ('s4', 's5', 's6', 's47')
        for i, r in enumerate(GR):
            g(f's_mov_b32 {r}, {MODL + 32768 * i}')
        poll(g, '\n'.join(f'buffer_load_dwordx2 {vr(ACC + 18 + 2 * i, 2)}, v{RGA}, {S_WS}, {r} offen sc1' for i, r in enumerate(GR)),
             range(ACC + 18, ACC + 26), T + 4, 16)
        pk4(g, 'v_pk_add_f32', ACC + 18, ACC + 18, ACC + 22)
        g(f'v_pk_add_f32 {vr(ACC + 18, 2)}, {vr(ACC + 18, 2)}, {vr(ACC + 20, 2)}\nv_cvt_pk_bf16_f32 v{RGB}, v{ACC + 18}, v{ACC + 19}')
        g(skip + ':')
    srd(g, S_B, 40, 4096)
    g.bits(RL, TID, [(6, 3, 128), (0, 1, 64), (4, 2, 16), (1, 2, 4)], T, L.PART)
    g.bits(PO, TID, [(3, 6, 8192), (0, 3, 16)], T)
    g(f's_add_u32 s12, s7, {MBB}')
    g.bits(AO, TID, [(8, 1, SLOTS * 256), (3, 3, 256), (6, 2, 64), (0, 3, 8)], T + 3)
    g.bits(OW, TID, [(6, 3, 32), (0, 3, 4), (5, 1, 2)], T + 3, L.OUTV)
    g.bits(T + 5, TID, [(8, 1, 128), (3, 3, 4)], T + 3)
    g('s_add_u32 s13, s8, 4096')
    g.bits(T + 2, 0, [(5, 1, 8192), (0, 5, 8)], T + 3)
    g(f's_lshr_b32 s4, {JC}, 1\ns_lshl_b32 s4, s4, 8\ns_add_u32 s4, s4, {STATS}')
    prefetch_code(g, 'L_proj_tail', 1, T + 6, ACC)
    if P['PRE'] == 1:
        g(f'buffer_load_dwordx4 {vr(ACC + 4, 4)}, v{RO}, {S_WS}, s9 offen sc1')
    g.stamp('g_ready')
    g('L_proj_tail:')
    if P['XG'] == 1:
        g('s_branch L_gend')
    NT = 4 if P['NUG'] else 3
    aloads = lambda d: '\n'.join(f'buffer_load_dwordx2 {vr(d + 2 * k, 2)}, v{AO}, {S_WS}, {"s8" if k < 2 else "s13"} offen offset:{2048 * (k & 1)} sc1'
                                 for k in range(NT))
    lp, ok = g.label('L_p1'), only_wave(g, 0)
    g(f's_mov_b32 {S_SPIN}, {SPIN}\n{lp}:')
    g(aloads(ACC + 8).split('\n')[P['P1K']] + '\ns_waitcnt vmcnt(0)')
    check(g, range(ACC + 8 + 2 * P['P1K'], ACC + 10 + 2 * P['P1K']), ACC)
    g(f's_bcnt1_i32_b64 s5, vcc\ns_cmp_le_u32 s5, {P["P1TH"]}\ns_cbranch_scc1 {ok}')
    g(f's_sleep {P["P1SL"]}\ns_sub_u32 {S_SPIN}, {S_SPIN}, 1\ns_cbranch_scc0 {lp}\n{ok}:\ns_barrier')
    g.stamp('g_hint', (0, 1))
    if P['PRE'] == 2:
        g(f'buffer_load_dwordx4 {vr(ACC + 4, 4)}, v{RO}, {S_WS}, s9 offen sc1')
    g(f'v_mov_b32 v{T}, 0xff800000\nv_mov_b32 v{T + 1}, 0')
    g.setexec(-1 if P['NUG'] else ((1 << SPL) - 1) * 0x100000001)
    poll(g, f'buffer_load_dwordx2 {vr(T, 2)}, v{T + 2}, {S_WS}, s4 offen sc1', [T, T + 1], T + 4, 2)
    g.setexec(-1)

    def red32(r, t, op):
        for sh in (8, 4, 2, 1):
            g.nop(2)
            g(f'{op}_dpp v{r}, v{r}, v{r} row_ror:{sh} {DPP}')
        g(f'v_mov_b32 v{t}, v{r}')
        g.nop(2)
        g(f'v_permlane16_swap_b32 v{r}, v{t}\n{op} v{r}, v{r}, v{t}')
    g(f'v_and_b32 v{T}, {S_MASK}, v{T}\nv_mov_b32 v{T + 2}, v{T}')
    red32(T + 2, T + 3, 'v_max_f32')
    g(f'v_sub_f32 v{T}, v{T}, v{T + 2}\nv_mul_f32 v{T}, 0x3fb8aa3b, v{T}\nv_exp_f32 v{T}, v{T}\ns_nop 0')
    g(f'v_mul_f32 v{T + 1}, v{T + 1}, v{T}')
    red32(T + 1, T + 3, 'v_add_f32')
    g(f'v_rcp_f32 v{T + 1}, v{T + 1}\ns_nop 0\nv_mul_f32 v{T}, v{T}, v{T + 1}')
    for k in range(4):
        g(f'ds_bpermute_b32 v{WG + k}, v{T + 5}, v{T} offset:{32 * k}')
    g('s_waitcnt lgkmcnt(0)')
    g.stamp('g_wgt', (0, 1))
    if P['P2TH'] < P['P1TH']:
        lp, ok = g.label('L_p1'), only_wave(g, 0)
        g(f's_mov_b32 {S_SPIN}, {SPIN}\n{lp}:')
        g(aloads(ACC + 8).split('\n')[P['P1K']] + '\ns_waitcnt vmcnt(0)')
        check(g, range(ACC + 8 + 2 * P['P1K'], ACC + 10 + 2 * P['P1K']), ACC)
        g(f's_bcnt1_i32_b64 s5, vcc\ns_cmp_le_u32 s5, {P["P2TH"]}\ns_cbranch_scc1 {ok}')
        g(f's_sleep {P["P2SL"]}\ns_sub_u32 {S_SPIN}, {S_SPIN}, 1\ns_cbranch_scc0 {lp}\n{ok}:\ns_barrier')
        g.stamp('g_go', (0, 1))
    if P['W2TH']:
        skip = only_wave(g, 0)
        lp, ok = g.label('L_p2'), g.label('L_p2ok')
        g(f's_and_b32 s5, {JC}, 15\ns_cbranch_scc1 {skip}\ns_mov_b32 {S_SPIN}, {SPIN}\n{lp}:')
        g(aloads(T) + '\ns_waitcnt vmcnt(0)')
        check(g, range(T, T + 2 * NT), ACC)
        g(f's_bcnt1_i32_b64 s5, vcc\ns_cmp_le_u32 s5, {P["W2MISS"]}\ns_cbranch_scc1 {ok}')
        g(f's_sub_u32 {S_SPIN}, {S_SPIN}, 1\ns_cbranch_scc0 {lp}\n{ok}:')
        g(faddr('s46', C_A) + f'v_mov_b32 v{ACC}, {S_EPO}\ns_mov_b64 exec, 1\nbuffer_store_dword v{ACC}, off, {S_WS}, s98 sc1\ns_mov_b64 exec, -1')
        g(skip + ':')
    poll(g, aloads(T), range(T, T + 2 * NT), ACC, P['SLEEP'])
    g.stamp('g_apolled', (0, 1))
    g(f'v_mul_f32 v{T}, v{WG}, v{T}\nv_mul_f32 v{T + 1}, v{WG}, v{T + 1}')
    for k in range(1, NT):
        g(f'v_fmac_f32 v{T}, v{WG + k}, v{T + 2 * k}\nv_fmac_f32 v{T + 1}, v{WG + k}, v{T + 2 * k + 1}')
    g.nop(2)
    g(f'v_permlane32_swap_b32 v{T}, v{T + 1}\nv_add_f32 v{T}, v{T}, v{T + 1}\nv_mov_b32 v{T + 1}, v{T}')
    g.nop(2)
    g(f'v_permlane16_swap_b32 v{T}, v{T + 1}\nv_add_f32 v{T}, v{T}, v{T + 1}')
    g.nop(2)
    g(f'v_add_f32_dpp v{T}, v{T}, v{T} row_ror:8 {DPP}')
    g(f'v_cvt_pk_bf16_f32 v{T}, v{T}, v{T}\nds_write_b16 v{OW}, v{T}')
    g('s_waitcnt lgkmcnt(0)\ns_barrier')
    g.stamp('g_obar', (1,))
    if P['XG'] == 2:
        g('s_branch L_gend')
    ksplit_out(g, UC, PO, 's12')
    g.stamp('g_t2', (0, 1))
    if P['BW']:
        g('s_waitcnt vmcnt(0)')
    if P['BW'] == 2:
        g('s_barrier')
    skip = reduce('s9', 64, 0)
    unpack2(g, T + 6, RX)
    if P['REP']:
        g(f'v_lshrrev_b32 v{T + 3}, 4, v0\nv_lshl_add_u32 v{T + 3}, v{T + 3}, 13, v{T + 2}\ns_add_u32 s4, s11, 32768')
    else:
        g(f'v_lshlrev_b32 v{T + 3}, 3, v0')
    g(f'v_mov_b32 v{ACC + 16}, {S_MASK}')
    reduce_sum()
    g(f'v_pk_mul_f32 {vr(T, 2)}, {vr(T, 2)}, {vr(ACC + 18, 2)}')
    round2(g, T)
    g(f'v_pk_add_f32 {vr(T, 2)}, {vr(T, 2)}, {vr(T + 6, 2)}')
    g(f'v_cvt_pk_bf16_f32 v{RX}, v{T}, v{T + 1}')
    g(f'v_lshl_or_b32 v{T}, v{RX}, 16, {S_T16}\nv_and_or_b32 v{T + 1}, v{RX}, v{ACC + 16}, {S_T16}')
    if P['REP']:
        g(f'buffer_store_dwordx2 {vr(T, 2)}, v{T + 3}, {S_WS}, s11 offen sc1\nbuffer_store_dwordx2 {vr(T, 2)}, v{T + 3}, {S_WS}, s4 offen sc1')
    else:
        g.setexec(0xffff)
        g(f'buffer_store_dwordx2 {vr(T, 2)}, v{T + 3}, {S_WS}, s11 offen sc1')
        g.setexec(-1)
    g(skip + ':')
    g.stamp('g_x1', (0, 1))
    g('s_barrier')
    skip = reduce('s10', 56, 3)
    unpack2(g, T + 2, RB2)
    unpack2(g, T + 6, RX)
    reduce_sum()
    g(f'v_pk_add_f32 {vr(T, 2)}, {vr(T, 2)}, {vr(T + 2, 2)}')
    round2(g, T)
    g(f'v_pk_mul_f32 {vr(T, 2)}, {vr(T, 2)}, {vr(ACC + 18, 2)}')
    round2(g, T)
    g(f'v_pk_add_f32 {vr(T, 2)}, {vr(T, 2)}, {vr(T + 6, 2)}')
    g(f'v_cvt_pk_bf16_f32 v{T}, v{T}, v{T + 1}')
    g.setexec(0xffff)
    g(f'buffer_store_dword v{T}, v{OUTO}, {S_B}, 0 offen')
    g(f's_cmp_lg_u32 s2, 0\ns_cbranch_scc1 {skip}\nv_mov_b32 v{T + 1}, {S_EPO}\ns_mov_b64 exec, 1')
    g(f'buffer_store_dword v{T + 1}, off, {S_WS}, 0 sc1')
    g(skip + ':')
    g('L_gend:')
    g.stamp('g_out', (0, 1, 3))
    if P['PADTO']:
        if P['PADWG'] >= 0:
            g(f's_cmp_lg_u32 s2, {P["PADWG"]}\ns_cbranch_scc1 L_nopad')
        g(f'L_pad:\ns_memrealtime s[4:5]\ns_waitcnt lgkmcnt(0)\ns_sub_u32 s4, s4, s70\ns_cmp_lt_u32 s4, {P["PADTO"]}\ns_cbranch_scc1 L_pad\nL_nopad:')
    write_stamps(g)
    g('s_endpgm')


MLP_LDS = 4096
W1L = 4096
LDS_TOTAL = W1L + 131072


def mlp(g):
    L = Lds(MLP_LDS)
    PO, XO, SW, SR, B1 = 8, 9, 10, 11, 17
    C1, SH = 12, 18
    JM = 's14'
    g.vm = []
    g('L_mlp:')
    if P['XW'] == 1:
        write_stamps(g)
        g('s_endpgm')
    if P['W2TH']:
        skip = only_wave(g, 0)
        fpoll(g, ACC + 4, 's101', C_A, P['LSL'])
        g(skip + ':')
    g(f's_lshl_b32 s4, s3, 6\nv_add_u32 v{TID}, s4, v0')
    g(f's_lshl_b32 s7, {JM}, 7')
    MP, MB, XV = 16, BLK(0), ACC
    g.bits(MP, TID, [(8, 1, 16384), (3, 5, 128), (0, 2, 32), (2, 1, 16)], T, MODL + 4096)
    g(f'v_add_u32 v{MP + 6}, 4096, v{MP}\ns_mov_b32 s8, 32768\ns_mov_b32 s9, 65536\ns_mov_b32 s10, 98304')
    mloads = '\n'.join(f'buffer_load_dwordx4 {vr(MB + 4 * i, 4)}, v{MP + 6 * (i >> 2)}, {S_WS}, {("0", "s8", "s9", "s10")[i & 3]} offen sc1'
                       for i in range(8) if (i & 3) < (1 << P['LQ']))
    early = P['GH'] or P['GJ'] >= 3
    srd(g, S_B, 30, 3584 * 2)
    g.bits(T + 4, TID, [(2, 3, 16), (5, 2, 4), (7, 1, 2)], T, 's7')
    g.bits(T + 5, TID, [(4, 2, 2048), (6, 3, 256), (0, 4, 16)], T + 7)
    g('s_barrier')
    g.vmop(f'buffer_load_ushort v{B1}, v{T + 4}, {S_B}, 0 offen', 'k')
    if early:
        g.vmop(mloads, 'k')
    prefetch_code(g, 'L_mlp_tail', 1, T + 4, ACC + 8, 'k')
    kload(g, UB, 32, 3584 * 2048, JM, T + 5, lambda kb, t: 32 * kb + 4 * t, 'w2')
    common_addr(g, L, True)
    g.bits(XO, TID, [(2, 6, 128), (8, 1, 64), (0, 2, 16)], T, X1)
    if P['REP']:
        g(f's_and_b32 s4, s2, 7\ns_lshl_b32 s4, s4, 13\nv_add_u32 v{XO}, s4, v{XO}')
    g.bits(PO, TID, [(3, 6, 8192), (0, 3, 16)], T)
    g(f's_add_u32 s13, s7, {MBC}')
    g(f's_lshl_b32 s4, s3, 3\nv_mov_b32 v{SW}, s4\ns_and_b32 s4, s4, 32\nv_mov_b32 v{SR}, s4')
    xload = f'buffer_load_dwordx4 {vr(XV, 4)}, v{XO}, {S_WS}, 0 offen sc1'

    def w2_finish():
        g.vmwait(('w2', 0))
        transpose(g, UB)
        if not early:
            g.vmop(mloads, 'k')
        g.vmwait(('w2', 1))
        g.vmop(xload, 'x')
        transpose(g, UB + 1)
        g.stamp('m_w2', (2,))
    if not early:
        w2_finish()
    g.vmwait('k')
    poll(g, mloads, [r for r in range(MB, MB + 32) if ((r - MB) & 15) < (4 << P['LQ'])], T, P['MLS'], preloaded=True)
    for d, b in ((SH, MB), (C1, MB + 16)):
        if P['LQ'] == 2:
            pk4(g, 'v_pk_add_f32', b, b, b + 8)
            pk4(g, 'v_pk_add_f32', b + 4, b + 4, b + 12)
        pk4(g, 'v_pk_add_f32', d, b, b + 4)
    round4(g, SH, T)
    round4(g, C1, T)
    for i in range(4):
        g(f'v_add_f32 v{C1 + i}, 1.0, v{C1 + i}')
    round4(g, C1, T)
    g(f'v_lshlrev_b32 v{B1}, 16, v{B1}')
    KC = BLK(1)
    if P['LNM']:
        g.bits(SW, TID, [(8, 1, 128), (4, 2, 16), (6, 2, 4)], T)
        g.bits(SR, TID, [(8, 1, 128)], T)
        g(f'v_add_f32 v{T}, v{C1}, v{C1 + 1}\nv_mul_f32 v{T + 1}, v{C1}, v{C1}\nv_mul_f32 v{T + 2}, v{C1}, v{SH}')
        g(f'v_add_f32 v{T + 3}, v{SH}, v{SH + 1}\nv_mul_f32 v{T + 4}, v{SH}, v{SH}\nv_mov_b32 v{T + 5}, 0')
        for i in range(1, 4):
            if i > 1:
                g(f'v_add_f32 v{T}, v{T}, v{C1 + i}\nv_add_f32 v{T + 3}, v{T + 3}, v{SH + i}')
            g(f'v_fmac_f32 v{T + 1}, v{C1 + i}, v{C1 + i}\nv_fmac_f32 v{T + 2}, v{C1 + i}, v{SH + i}\nv_fmac_f32 v{T + 4}, v{SH + i}, v{SH + i}')
        g.nop(1)
        blocksum6(g, T, SW, SR, L.STAT + 256, KC)
        for i in range(5):
            g(f'v_mul_f32 v{KC + i}, 0x3a800000, v{KC + i}')
        g(f'v_mov_b32 v{KC + 6}, 0x3a800000\nv_mov_b32 v{KC + 7}, 0x3a800000')
    if early:
        w2_finish()
    g.stamp('m_ready', (0, 2))
    g('L_mlp_tail:')
    g('s_waitcnt vmcnt(0)')
    poll(g, xload, range(XV, XV + 4), T, mask=0xffff, preloaded=True)
    g.stamp('m_x1seen', (0, 2))
    for i in range(4):
        g(f'v_and_b32 v{XV + i}, {S_MASK}, v{XV + i}')
    if P['LNM']:
        UV, R = ACC + 4, ACC + 8
        pk4(g, 'v_pk_mul_f32', UV, XV, C1)
        g(f'v_pk_add_f32 {vr(R, 2)}, {vr(XV, 2)}, {vr(XV + 2, 2)}\nv_pk_mul_f32 {vr(R + 2, 2)}, {vr(XV, 2)}, {vr(XV, 2)}')
        g(f'v_pk_add_f32 {vr(R + 4, 2)}, {vr(UV, 2)}, {vr(UV + 2, 2)}\nv_pk_mul_f32 {vr(R + 6, 2)}, {vr(UV, 2)}, {vr(UV, 2)}')
        g(f'v_pk_mul_f32 {vr(R + 8, 2)}, {vr(UV, 2)}, {vr(C1, 2)}\nv_pk_mul_f32 {vr(R + 10, 2)}, {vr(UV, 2)}, {vr(SH, 2)}')
        g(f'v_pk_fma_f32 {vr(R + 2, 2)}, {vr(XV + 2, 2)}, {vr(XV + 2, 2)}, {vr(R + 2, 2)}')
        g(f'v_pk_fma_f32 {vr(R + 6, 2)}, {vr(UV + 2, 2)}, {vr(UV + 2, 2)}, {vr(R + 6, 2)}')
        g(f'v_pk_fma_f32 {vr(R + 8, 2)}, {vr(UV + 2, 2)}, {vr(C1 + 2, 2)}, {vr(R + 8, 2)}')
        g(f'v_pk_fma_f32 {vr(R + 10, 2)}, {vr(UV + 2, 2)}, {vr(SH + 2, 2)}, {vr(R + 10, 2)}')
        for d, i in enumerate((0, 4, 2, 6, 8, 10)):
            g(f'v_add_f32 v{T + d}, v{R + i}, v{R + i + 1}')
        blocksum6(g, T, SW, SR, L.STAT, R)
        g.stamp('m_ln1', (2,))
        for i in range(0, 6, 2):
            g(f'v_pk_mul_f32 {vr(R + i, 2)}, {vr(R + i, 2)}, {vr(KC + 6, 2)}')
        g(f'v_fma_f32 v{R + 1}, -v{R}, v{R}, v{R + 1}')
        rstd(g, R, R + 1)
        g(f'v_fma_f32 v{R + 2}, -v{R}, v{KC}, v{R + 2}')
        g(f'v_fma_f32 v{R + 5}, -v{R}, v{KC + 1}, v{R + 5}')
        g(f'v_fma_f32 v{R + 6}, v{R}, v{KC + 2}, -v{R + 4}')
        g(f'v_sub_f32 v{R + 6}, v{R + 6}, v{R + 4}')
        g(f'v_fma_f32 v{R + 3}, v{R}, v{R + 6}, v{R + 3}')
        g(f'v_add_f32 v{R + 5}, v{R + 5}, v{R + 5}')
        g(f'v_fma_f32 v{R + 2}, v{R + 2}, v{R + 1}, v{KC + 3}')
        g(f'v_fma_f32 v{R + 3}, v{R + 3}, v{R + 1}, v{R + 5}')
        g(f'v_fma_f32 v{R + 3}, v{R + 3}, v{R + 1}, v{KC + 4}')
        g(f'v_fma_f32 v{R + 3}, -v{R + 2}, v{R + 2}, v{R + 3}')
        for i in range(4):
            g(f'v_fma_f32 v{UV + i}, -v{R}, v{C1 + i}, v{UV + i}')
        rstd(g, R + 2, R + 3)
        for i in range(4):
            g(f'v_fma_f32 v{UV + i}, v{UV + i}, v{R + 1}, v{SH + i}')
        for i in range(4):
            g(f'v_sub_f32 v{UV + i}, v{UV + i}, v{R + 2}')
        for i in range(4):
            g(f'v_mul_f32 v{UV + i}, v{UV + i}, v{R + 3}')
        pack(g, T + 6, UV)
    else:
        layernorm(g, XV, SW, SR, L.STAT)
        g.stamp('m_ln1', (2,))
        pk4(g, 'v_pk_mul_f32', XV, XV, C1)
        round4(g, XV, T + 6)
        pk4(g, 'v_pk_add_f32', XV, XV, SH)
        round4(g, XV, T + 6)
        layernorm(g, XV, SW, SR, L.STAT + 64, last_packed=True)
    actwrite(g, T + 6, L.ACTH)
    g('s_waitcnt lgkmcnt(0)\ns_barrier')
    g.stamp('m_ln2', (2,))
    nsplit(g, UC, L.ACTH)
    g.stamp('m_t3', (2,))
    g(f'''v_cvt_pk_bf16_f32 v{T}, v{T}, v{T}
          v_lshlrev_b32 v{T}, 16, v{T}
          v_add_f32 v{T}, v{T}, v{B1}
          v_cvt_pk_bf16_f32 v{T}, v{T}, v{T}
          v_lshlrev_b32 v{T}, 16, v{T}
          v_mov_b32 v{T + 2}, 0xc0135761
          v_mul_f32 v{T + 1}, v{T}, v{T}
          v_fmac_f32 v{T + 2}, 0xbdd2d3e8, v{T + 1}
          v_mul_f32 v{T + 1}, v{T + 2}, v{T}
          v_exp_f32 v{T + 1}, v{T + 1}
          s_nop 0
          v_add_f32 v{T + 1}, 1.0, v{T + 1}
          v_rcp_f32 v{T + 1}, v{T + 1}
          s_nop 0
          v_mul_f32 v{T}, v{T}, v{T + 1}
          v_cvt_pk_bf16_f32 v{T}, v{T}, v{T}
          ds_write_b16 v{NO}, v{T}
          s_waitcnt lgkmcnt(0)
          s_barrier''')
    g.stamp('m_gelu', (2,))
    ksplit_out(g, UB, PO, 's13')
    g.stamp('m_t4', (0, 2))
    write_stamps(g)
    g('s_endpgm')


def latem(g):
    L = Lds(MLP_LDS)
    g.vm = []
    g('L_late:')
    if P['XL']:
        write_stamps(g)
        g('s_endpgm')
    g(f's_lshl_b32 s4, s3, 6\nv_add_u32 v{TID}, s4, v0')
    LQ = P['LQ']
    qjob_voff(g, 8, LQ)
    g(f's_add_u32 s14, s14, {(16 << LQ) * (3 if P["GH"] else P["GJ"])}')
    g.bits(T + 6, TID, [(3, 6, 64), (0, 2, 16), (2, 1, 8)], T)
    srd(g, S_B, 36, 4096)
    g('s_barrier')
    g.stamp('l_bar', (4,))
    g.vmop(f'buffer_load_dwordx2 {vr(12, 2)}, v{T + 6}, {S_B}, 0 offen', 'in')
    qjob_issue(g, UA, 's14', 8, LQ)
    g.stamp('l_iss', (4,))
    common_addr(g, L, False)
    g.stamp('l_addr', (4,))
    g.vmwait('in')
    g.stamp('l_c', (4,))
    silu_image(g, L, 12)
    g('s_waitcnt lgkmcnt(0)\ns_barrier')
    g.stamp('l_silu', (4,))
    g('L_late2:')
    qjob_finish(g, L, UA, 9, 10, LQ)
    g.stamp('l_pub1', (0, 1, 2, 4))
    if not P['GBG'] and LQ == 2 and P['GJ'] == 1:
        done = g.label('L_latedone')
        g(f's_cmp_ge_u32 s14, 128\ns_cbranch_scc1 {done}\ns_add_u32 s14, s14, 128\ns_barrier')
        qjob_issue(g, UA, 's14', 8)
        g(f's_branch L_late2\n{done}:')
    write_stamps(g)
    g('s_endpgm')


def attention(g, mode='main', arg=None):
    KO, VO, QO, VSC, VMAX, OO = 1, 2, 3, 4, 5, 6
    Q0, SP, TMP, T2 = 8, 16, 40, 56
    LA, GA = T2 + 7, T2 + 6
    SLOT = lambda s: 64 + 32 * s
    AC = SLOT(0)
    U = lambda u: 's%d' % (4 + 2 * u)
    U2 = lambda u: 's%d' % (5 + 2 * u)
    S_R, S_CU, S_GA, S_T = 's47', 's68', 's96', 's69'
    S_B4, S_B5, S_O4, S_KV = 's46', 's100', 's101', 's101'
    MX, OBUF, OST = 0, W1L, 16384
    QL, QF = 1024, 3072
    S_ST = 's97'
    NN = (SPL - NMR) * 8
    NUG = P['NUG']
    n4 = min(NN, 1024 - 4 * WPR - 64 * NUG)
    EX = 6 * P['A5W']
    n5 = 1024 - 4 * WPR - n4 - 64 * NUG - EX
    RK = QF + 4
    LT = P['LIGHT']
    S_B3, S_O3 = 's0', 's45'
    assert 0 <= n5 <= NN
    base = [0, WPR, 2 * WPR, 3 * WPR, 4 * WPR, 4 * WPR + n4]
    VSLOT = [1, 2, 3, 1, 4, 5] if mode == 'main' else [NUG + u for u in range(NUG)]

    def unit_addr(u):
        g(f's_add_u32 {U(u)}, {S_GA}, {"s98" if u < (5 if n4 == NN else 4) else S_T}')
        if u:
            g(f's_add_u32 {U(u)}, {U(u)}, {base[u]}')
        g(f's_and_b32 {U(u)}, {U(u)}, 1023\ns_lshl_b32 {U(u)}, {U(u)}, 13\ns_add_u32 {U2(u)}, {U(u)}, 4096')

    def entry():
        g.vm = []
        g('L_attn:')
        g(f'''s_sub_u32 {S_T}, s2, {NG}
              s_mul_hi_u32 {S_R}, {S_T}, {(1 << 32) // SPL + 1}
              s_mul_i32 {S_CU}, {S_R}, {SPL - (1 if P["ROT"] else 0)}
              s_sub_u32 {S_CU}, {S_T}, {S_CU}
              s_sub_u32 {S_T}, {S_CU}, {SPL}
              s_cselect_b32 {S_CU}, {S_CU}, {S_T}
              s_lshl_b32 s98, {S_CU}, 3
              s_add_u32 s98, s98, s3
              s_mul_i32 {S_GA}, {S_R}, {P["PH"]}''')
        unit_addr(0)
        g.bits(KO, 0, [(1, 1, 1024), (2, 2, 256), (0, 1, 64), (4, 2, 16)], 8)
        g(f's_lshl_b32 s99, {S_R}, 23\ns_mov_b32 s58, 0x800000\ns_mov_b32 s59, 0x20000')
        g.stamp('a_prek', (5,))
        g('s_waitcnt lgkmcnt(0)')
        g.stamp('a_karg', (5,))
        g('s_add_u32 s56, s18, s99\ns_addc_u32 s57, s19, 0')

    def entry2():
        consts(g)
        g(f's_add_u32 s60, s20, s99\ns_addc_u32 s61, s21, 0\ns_mov_b32 s62, 0x800000\ns_mov_b32 s63, 0x20000')
        g(f'''s_mul_i32 {S_T}, s3, {SPL - NMR}
              s_add_u32 {S_T}, {S_T}, {S_CU}
              s_cmp_lt_u32 {S_CU}, {SPL - NMR}
              s_cselect_b32 {S_T}, {S_T}, 1023''')
        for u in range(1, NU):
            unit_addr(u)
        if LT:
            g(f's_add_u32 s99, {S_GA}, {S_T}\ns_add_u32 s99, s99, {base[3] + NN + 8 - LT - n5}\ns_and_b32 s99, s99, 1023\ns_lshl_b32 s99, s99, 13')
            g(f's_cmp_ge_u32 {S_T}, {n5}\ns_cselect_b32 {U(5)}, s99, {U(5)}\ns_add_u32 {U2(5)}, {U(5)}, 4096')
            g(f's_sub_u32 s99, s98, {NN + 8 - LT}\ns_cmp_lt_u32 s99, {LT}\ns_cselect_b32 {S_B3}, 0xff800000, 0')
        g(f'v_lshlrev_b32 v{VO}, 4, v0')
        g(f's_cmp_lt_u32 {S_T}, {n5 + LT}\ns_cselect_b32 s98, 0, 0x1000000\ns_cselect_b32 {S_B5}, 0, 0xff800000')
        g(f'v_add_u32 v{OO + 1}, s98, v{KO}')
        if EX:
            skip = g.label('L_noex')
            g(f's_cmp_le_u32 {S_CU}, {SPL - NMR}\ns_cbranch_scc1 {skip}\ns_cmp_ge_u32 s3, {P["A5W"]}\ns_cbranch_scc1 {skip}')
            g(f's_mul_i32 {U(4)}, s3, 6\ns_add_u32 {U(4)}, {U(4)}, {S_CU}\ns_add_u32 {U(4)}, {U(4)}, {S_GA}\ns_add_u32 {U(4)}, {U(4)}, {1024 - EX - 18}')
            g(f's_and_b32 {U(4)}, {U(4)}, 1023\ns_lshl_b32 {U(4)}, {U(4)}, 13\ns_add_u32 {U2(4)}, {U(4)}, 4096\ns_mov_b32 {S_T}, 0')
            g(skip + ':')
        g(f's_cmp_lt_u32 {S_T}, {n4}\ns_cselect_b32 {S_O4}, 0, 0x1000000\ns_cselect_b32 {S_B4}, 0, 0xff800000')
        g(f'v_add_u32 v{OO}, {S_O4}, v{KO}')

    def slice_index(d, t):
        if not LT:
            g(f's_mul_i32 {d}, {S_R}, {NMR}\ns_add_u32 {d}, {d}, {S_CU}\ns_sub_u32 {d}, {d}, {SPL - NMR}')
            return
        g(f'''s_mul_i32 {d}, {S_R}, 6
              s_add_u32 {d}, {d}, {S_CU}
              s_sub_u32 {d}, {d}, {SPL - NMR + 1 - 4}
              s_mul_hi_u32 {t}, {d}, {(1 << 32) // 7 + 1}
              s_add_u32 {d}, {d}, {t}
              s_sub_u32 {d}, {d}, 4
              s_lshl_b32 {t}, {S_R}, 3
              s_add_u32 {t}, {t}, 3
              s_min_u32 {t}, {t}, 55
              s_cmp_eq_u32 {S_CU}, {SPL - NMR}
              s_cselect_b32 {d}, {t}, {d}''')

    def load(n, pos):
        i = n & 7
        if n < 48:
            u = n >> 3
            vo = KO if u < 4 else OO + u - 4
            if u == 3 and LT:
                vo = T2 + 3
                if i == 0:
                    g(f's_lshr_b32 {S_T}, {S_B3}, 7\nv_add_u32 v{vo}, {S_T}, v{KO}')
            if u == 5 and EX:
                l1, l2 = g.label('L_k5'), g.label('L_k5j')
                g(f's_cmp_lt_u32 {S_CU}, {SPL - NMR}\ns_cbranch_scc1 {l1}')
                if i == 0:
                    g(f's_lshr_b32 {S_T}, {S_B4}, 7\nv_add_u32 v{vo}, {S_T}, v{VO}')
                g(f'buffer_load_dwordx4 {vr(SLOT(u) + 4 * i, 4)}, v{vo}, {S_B}, {U2(4) if i >= 4 else U(4)} offen offset:{(i & 3) * 1024} nt')
                g(f's_branch {l2}\n{l1}:')
            g.vmop(f'buffer_load_dwordx4 {vr(SLOT(u) + 4 * i, 4)}, v{vo}, {S_A}, {U2(u) if i >= 4 else U(u)} offen '
                   f'offset:{((i >> 1) & 1) * 2048 + (i & 1) * 128} nt', pos)
            if u == 5 and EX:
                g(l2 + ':')
        elif n < 64:
            if n == 48:
                l1, l2 = g.label('L_xv'), g.label('L_xj')
                g(f's_lshl_b32 s98, s3, 14\ns_add_u32 m0, s98, {W1L}\ns_mov_b32 s95, 0x20000')
                g(f's_cmp_lt_u32 {S_CU}, {SPL - NMR}\ns_cbranch_scc1 {l1}')
                g(f's_lshl_b32 {S_T}, s3, 6\nv_add_u32 v{T2 + 1}, {S_T}, v0')
                nvoff(g, OO, 7168, T2 + 1, T2 + 2)
                g(f'v_mov_b32 v{OO + 1}, v{OO}')
                slice_index(S_T, 's98')
                g(f's_lshl_b32 {U(4)}, {S_T}, 7\ns_add_u32 {U(5)}, {U(4)}, {512 * 7168}\ns_mov_b32 {U2(4)}, {nstep() * 7168}')
                g(f's_mov_b32 s92, s28\ns_mov_b32 s93, s29\ns_mov_b32 s94, {1024 * 7168}')
                g(f's_branch {l2}\n{l1}:')
                g(f'v_sub_u32 v{T2 + 1}, v{VO}, v{KO}\nv_add_u32 v{OO}, v{OO}, v{T2 + 1}\nv_add_u32 v{OO + 1}, v{OO + 1}, v{T2 + 1}')
                g(f's_mov_b32 {U2(4)}, 1024\ns_mov_b32 s92, s60\ns_mov_b32 s93, s61\ns_mov_b32 s94, s62')
                g(l2 + ':')
            u = 4 + ((n - 48) >> 3)
            if n > 48:
                g('s_add_u32 m0, m0, 1024')
            g(f's_add_u32 {U(u)}, {U(u)}, {U2(4)}' if i else 's_nop 0')
            g.vmop(f'buffer_load_dwordx4 v{OO + u - 4}, s[92:95], {U(u)} offen nt lds', pos)
        else:
            u = (n - 64) >> 3
            vo = VO
            if u == 3 and LT:
                vo = OO
                if i == 0:
                    g(f's_lshr_b32 {S_T}, {S_B3}, 7\nv_add_u32 v{vo}, {S_T}, v{VO}')
            g.vmop(f'buffer_load_dwordx4 {vr(SLOT(VSLOT[u]) + 4 * i, 4)}, v{vo}, {S_B}, {U2(u) if i >= 4 else U(u)} offen '
                   f'offset:{(i & 3) * 1024} nt', pos)

    def mailbox():
        g.bits(GA, 0, [(5, 1, MBA_ST), (0, 5, 8)], T2)
        g(f'''s_and_b32 {S_T}, {S_R}, 3
              s_lshl_b32 {S_T}, {S_T}, 3
              s_add_u32 {S_T}, {S_T}, s3
              s_mul_i32 {S_T}, {S_T}, {2 * MBA_ST}
              s_lshr_b32 {S_GA}, {S_R}, 2
              s_mul_i32 {S_GA}, {S_GA}, {SLOTS}
              s_add_u32 {S_GA}, {S_GA}, {S_CU}
              s_lshl_b32 {S_GA}, {S_GA}, 8
              s_add_u32 {S_GA}, {S_GA}, {S_T}
              s_add_u32 {S_GA}, {S_GA}, {MBA}''')

    def setup():
        srd(g, S_WS, 44, WS_SIZE)
        if P['RANK'] or P['DBGST'] >= 0:
            srd(g, S_DBG, 42, 256)
        mailbox()
        g.vmop(epoch_load(T2 + 2), 'ep')
        if P['PFA'] == 1:
            prefetch_code(g, 'L_attn_body', 2, 8, TMP, 'pf')
        if P['PFA'] == 2:
            skip = g.label('L_nopf')
            g(f's_cmp_ge_u32 s2, {NG + 8}\ns_cbranch_scc1 {skip}')
            prefetch_code(g, 'L_attn_body', 2, 8, TMP)
            g(skip + ':')
        if P['TLB']:
            skip = g.label('L_notlb')
            sh = P['TLB']
            g(f'v_lshlrev_b32 v8, {sh}, v0')
            g.setexec((1 << min(64, 1 << (23 - sh))) - 1 if sh > 17 else -1)
            g(f's_cmp_eq_u32 s3, 1\ns_cbranch_scc0 {skip}_a\nbuffer_load_dword v{TMP + 4}, v8, {S_A}, 0 offen nt\n{skip}_a:')
            g(f's_cmp_eq_u32 s3, 2\ns_cbranch_scc0 {skip}_b\nbuffer_load_dword v{TMP + 4}, v8, {S_B}, 0 offen nt\n{skip}_b:')
            for w, (ptr, size) in enumerate(((28, 7 << 20), (32, 7 << 20), (38, 12 << 20), (44, WS_SIZE))):
                l = f'{skip}_{w}'
                g(f's_cmp_eq_u32 s3, {3 + w}\ns_cbranch_scc0 {l}')
                g(f's_mov_b32 s92, s{ptr}\ns_mov_b32 s93, s{ptr + 1}\ns_mov_b32 s94, {size}\ns_mov_b32 s95, 0x20000')
                g(f'buffer_load_dword v{TMP + 4}, v8, s[92:95], 0 offen offset:2048 {"sc1" if ptr == 44 else "nt"}')
                if size > (8 << 20):
                    g(f's_mov_b32 {S_T}, {8 << 20}\nv_add_u32 v9, {S_T}, v8\nbuffer_load_dword v{TMP + 4}, v9, s[92:95], 0 offen nt')
                g(l + ':')
            g.setexec(-1)
        g(f's_and_b32 {S_KV}, {S_R}, 3\ns_lshl_b32 {S_KV}, {S_KV}, 2')
        g.bits(QO, 0, [(0, 3, 256), (3, 1, 64), (4, 2, 16)], 8)
        g.bits(LA, 0, [(0, 4, 64)], 8)
        g(f's_lshl_b32 {S_T}, s3, 3\nv_add_u32 v8, {S_T}, v{LA}\nv_mov_b32 v9, -1\nds_write_b32 v8, v9 offset:{MX + 4}')
        g(f'v_mov_b32 v{T2}, 0\nds_write_b32 v{T2}, v{T2} offset:{QF}\ns_mov_b32 {S_ST}, 0\ns_waitcnt lgkmcnt(0)\ns_barrier')
        g(f'v_mov_b32 v{VSC}, 0x3db504f3\nv_mov_b32 v{VMAX}, 0xff800000')
        g('L_attn_body:')

    def readback():
        if EX:
            skip = g.label('L_noex')
            g(f's_cmp_lt_u32 {S_CU}, {SPL - NMR}\ns_cbranch_scc1 {skip}')
            pv(4, 5)
            g(skip + ':')
        g(f's_lshl_b32 {S_T}, s3, 14\ns_add_u32 {S_T}, {S_T}, {W1L}\nv_add_u32 v{T2}, {S_T}, v{VO}')
        for i in range(16):
            g(f'ds_read_b128 {vr(SLOT(4) + 4 * i, 4)}, v{T2} offset:{i * 1024}')

    def lds_units():
        l1, l2 = g.label('L_w1'), g.label('L_w1j')
        g(f's_cmp_ge_u32 {S_CU}, {SPL - NMR}\ns_cbranch_scc1 {l1}')
        g('s_waitcnt lgkmcnt(8)')
        pv(4)
        g('s_waitcnt lgkmcnt(0)')
        pv(5)
        g(f's_branch {l2}\n{l1}:')
        g('s_waitcnt lgkmcnt(8)')
        transpose(g, UC, T2)
        g('s_waitcnt lgkmcnt(0)')
        transpose(g, UC + 1, T2)
        g(l2 + ':')

    def qstep(final=False):
        skip = only_wave(g, P['QW'])
        l1, l3, top = g.label('L_q1'), g.label('L_q3'), g.label('L_qtop')
        if final:
            g(f's_mov_b32 {S_SPIN}, {SPIN}\n{top}:')
        g(f's_cmp_eq_u32 {S_ST}, 2\ns_cbranch_scc1 {skip}')
        if final:
            g(f's_waitcnt vmcnt(0)\ns_sub_u32 {S_SPIN}, {S_SPIN}, 1\ns_cbranch_scc1 {l3}')
        g(f's_cmp_eq_u32 {S_ST}, 0\ns_cbranch_scc1 {l1}')
        check(g, range(TMP, TMP + 16), T2, 0xffff)
        g(f's_cbranch_vccz {l3}')
        if final:
            g(f's_sleep {P["QSL"]}')
        g(l1 + ':')
        g(f's_lshl_b32 {S_T}, {S_R}, 12\ns_add_u32 {S_T}, {S_T}, {QB}\ns_mov_b32 {S_ST}, 1')
        for i in range(4):
            g(f'buffer_load_dwordx4 {vr(TMP + 4 * i, 4)}, v{VO}, {S_WS}, {S_T} offen offset:{1024 * i} sc1')
        g(f's_branch {top if final else skip}')
        g(l3 + ':')
        g(f'v_lshlrev_b32 v{T2}, 3, v0')
        for i in range(8):
            g(f'v_perm_b32 v{Q0 + i}, v{TMP + 2 * i + 1}, v{TMP + 2 * i}, {S_HI}')
        for i in range(4):
            g(f'ds_write_b64 v{T2}, {vr(Q0 + 2 * i, 2)} offset:{QL + 512 * i}')
        g(f'v_mov_b32 v{T2}, 0\nv_mov_b32 v{T2 + 1}, 1\ns_mov_b32 {S_ST}, 2\ns_waitcnt lgkmcnt(0)')
        g(f'ds_write_b32 v{T2}, v{T2 + 1} offset:{QF}')
        g(skip + ':')

    def qget():
        g.stamp('a_qwait')
        if P['NOQ']:
            return
        qstep(final=True)
        lp, ok = g.label('L_qf'), g.label('L_qfok')
        g(f'v_mov_b32 v{T2}, 0\ns_mov_b32 {S_SPIN}, {SPIN * 16}\n{lp}:')
        g(f'ds_read_b32 v{T2 + 1}, v{T2} offset:{QF}\ns_waitcnt lgkmcnt(0)')
        g(f'v_cmp_eq_u32 vcc, 0, v{T2 + 1}\ns_cbranch_vccz {ok}')
        g(f's_sleep 2\ns_sub_u32 {S_SPIN}, {S_SPIN}, 1\ns_cbranch_scc0 {lp}\n{ok}:')
        g(f'ds_read_b128 {vr(Q0, 4)}, v{QO} offset:{QL}\nds_read_b128 {vr(Q0 + 4, 4)}, v{QO} offset:{QL + 128}')
        g('s_waitcnt lgkmcnt(0)')
        g.stamp('a_qseen')

    def qk(u):
        for t in range(4):
            g(f'v_mfma_f32_16x16x32_bf16 {vr(TMP + 4 * t, 4)}, {vr(SLOT(u) + 8 * t, 4)}, {vr(Q0, 4)}, 0')
        for t in range(4):
            g(f'v_mfma_f32_16x16x32_bf16 {vr(TMP + 4 * t, 4)}, {vr(SLOT(u) + 8 * t + 4, 4)}, {vr(Q0 + 4, 4)}, {vr(TMP + 4 * t, 4)}')
        g.nop(5)
        for t in range(4):
            d = TMP + 4 * t
            a, b = T2 + 2 * (t & 1), T2 + 2 * (t & 1) + 1
            g(f'v_add_f32_dpp v{a}, v{d + 1}, v{d} row_ror:8 {DPP}\nv_add_f32_dpp v{b}, v{d + 3}, v{d + 2} row_ror:8 {DPP}')
            round2(g, a)
            if u >= 4 or (u == 3 and LT and mode == 'main'):
                sb = (S_B3, S_B4, S_B5)[u - 3]
                g(f'v_fma_f32 v{a}, v{a}, v{VSC}, {sb}\nv_fma_f32 v{b}, v{b}, v{VSC}, {sb}')
            else:
                g(f'v_mul_f32 v{a}, v{a}, v{VSC}\nv_mul_f32 v{b}, v{b}, v{VSC}')
            g(f'v_max3_f32 v{VMAX}, v{VMAX}, v{a}, v{b}\nv_cvt_pk_bf16_f32 v{SP + 4 * u + t}, v{a}, v{b}')

    def red_g(r, t, op):
        for ins in ('v_permlane32_swap_b32', 'v_permlane16_swap_b32'):
            g(f'v_mov_b32 v{t}, v{r}')
            g.nop(2)
            g(f'{ins} v{r}, v{t}\n{op} v{r}, v{r}, v{t}')

    def softmax():
        red_g(VMAX, T2, 'v_max_f32')
        for i in range(0, 32, 2):
            g(f'v_mov_b64 {vr(AC + i, 2)}, 0')
        g(f'v_mov_b32 v{VSC}, 0x3fb8aa3b\nv_mov_b32 v{T2 + 4}, 0')
        g(f'v_cvt_pk_bf16_f32 v{VMAX}, v{VMAX}, v{VMAX}\nv_lshlrev_b32 v{VMAX}, 16, v{VMAX}')
        g(f'v_mul_f32 v{T2 + 5}, v{VMAX}, v{VSC}')

    def probs(u, last=NU - 1):
        for i in range(4 * u, 4 * u + 4):
            p = SP + i
            a, b = T2 + 2 * (i & 1), T2 + 2 * (i & 1) + 1
            unpack2(g, a, p)
            g(f'v_fma_f32 v{a}, v{a}, v{VSC}, -v{T2 + 5}\nv_fma_f32 v{b}, v{b}, v{VSC}, -v{T2 + 5}')
            g(f'v_exp_f32 v{a}, v{a}\nv_exp_f32 v{b}, v{b}')
            g(f'v_add_f32 v{T2 + 4}, v{T2 + 4}, v{a}\nv_add_f32 v{T2 + 4}, v{T2 + 4}, v{b}')
            g(f'v_cvt_pk_bf16_f32 v{p}, v{a}, v{b}')
        if u == last:
            red_g(T2 + 4, T2, 'v_add_f32')
            g(f's_lshl_b32 {S_T}, s3, 3\nv_add_u32 v{T2}, {S_T}, v{LA}\nv_mov_b32 v{T2 + 2}, v{VMAX}\nv_min_u32 v{T2 + 3}, -2, v{T2 + 4}')
            g(f'ds_write_b64 v{T2}, {vr(T2 + 2, 2)} offset:{MX}')
            if mode == 'main':
                g.stamp('a_probs')

    def pv(u, slot=None):
        s = SLOT(VSLOT[u] if slot is None else slot)
        for w in range(4):
            t = TMP + 8 * (w & 1)
            for p in range(4):
                g(f'v_perm_b32 v{t + p}, v{s + 8 * p + 4 + w}, v{s + 8 * p + w}, {S_LO}')
            for p in range(4):
                g(f'v_perm_b32 v{t + 4 + p}, v{s + 8 * p + 4 + w}, v{s + 8 * p + w}, {S_HI}')
            g(f'v_mfma_f32_16x16x32_bf16 {vr(AC + 8 * w, 4)}, {vr(t, 4)}, {vr(SP + 4 * u, 4)}, {vr(AC + 8 * w, 4)}')
            g('s_nop 0')
            g(f'v_mfma_f32_16x16x32_bf16 {vr(AC + 8 * w + 4, 4)}, {vr(t + 4, 4)}, {vr(SP + 4 * u, 4)}, {vr(AC + 8 * w + 4, 4)}')

    def gather_ml():
        lp, ok = g.label('L_ml'), g.label('L_mlok')
        g(f's_mov_b32 {S_SPIN}, {SPIN * 16}\n{lp}:')
        for i in range(4):
            g(f'ds_read_b128 {vr(TMP + 4 * i, 4)}, v{LA} offset:{MX + 16 * i}')
        g('s_waitcnt lgkmcnt(0)')
        g(f'v_max_u32 v{T2}, v{TMP + 1}, v{TMP + 3}')
        for i in range(5, 16, 4):
            g(f'v_max3_u32 v{T2}, v{T2}, v{TMP + i}, v{TMP + i + 2}')
        g(f'v_cmp_eq_u32 vcc, -1, v{T2}\ns_cbranch_vccz {ok}')
        g(f's_sleep 2\ns_sub_u32 {S_SPIN}, {S_SPIN}, 1\ns_cbranch_scc0 {lp}\n{ok}:')
        g(f'v_max_f32 v{T2 + 2}, v{TMP}, v{TMP + 2}')
        for i in range(4, 16, 4):
            g(f'v_max3_f32 v{T2 + 2}, v{T2 + 2}, v{TMP + i}, v{TMP + i + 2}')

    def stats():
        skip = only_wave(g, P['SW'])
        gather_ml()
        g(f'v_mov_b32 v{T2 + 3}, 0')
        for i in range(0, 16, 2):
            g(f'v_sub_f32 v{TMP + i}, v{TMP + i}, v{T2 + 2}\nv_mul_f32 v{TMP + i}, 0x3fb8aa3b, v{TMP + i}')
        for i in range(0, 16, 2):
            g(f'v_exp_f32 v{TMP + i}, v{TMP + i}')
        g(f's_lshl_b32 {S_T}, {S_R}, 11\ns_lshl_b32 s98, {S_CU}, 3\ns_add_u32 {S_T}, {S_T}, s98\ns_add_u32 {S_T}, {S_T}, {STATS}')
        for i in range(0, 16, 2):
            g(f'v_fmac_f32 v{T2 + 3}, v{TMP + i}, v{TMP + i + 1}')
        g(f'v_lshlrev_b32 v{T2}, 8, v0')
        tagmask(g, T2 + 1)
        tag(g, [T2 + 2, T2 + 3], T2 + 1)
        g.setexec(0xff)
        if not P['XS']:
            g(f'buffer_store_dwordx2 {vr(T2 + 2, 2)}, v{T2}, {S_WS}, {S_T} offen sc1')
        g.setexec(-1)
        g(skip + ':')

    def factor():
        gather_ml()
        g(f'v_sub_f32 v{FS}, v{VMAX}, v{T2 + 2}\nv_mul_f32 v{FS}, 0x3fb8aa3b, v{FS}\nv_exp_f32 v{FS}, v{FS}')
        tagmask(g, FS + 1)

    FS = Q0 + 2
    WA, RA = KO, QO

    def epi_addr():
        g(f's_mul_i32 {S_T}, s3, {OST}\ns_add_u32 {S_T}, {S_T}, {OBUF}')
        g.bits(WA, 0, [(4, 2, 128), (0, 4, 16)], T2, S_T)
        g(f's_lshl_b32 {S_T}, s3, 4\ns_add_u32 {S_T}, {S_T}, {OBUF}')
        g.bits(RA, 0, [(1, 3, 528), (4, 2, 128), (0, 1, 8)], T2, S_T)
        g(f'v_add_u32 v{VSC}, {4 * OST}, v{RA}')

    def epilogue():
        g.setexec(rep16(0xff))
        for j in range(8):
            for h in (0, 2):
                g(f'v_pk_mul_f32 {vr(AC + 4 * j + h, 2)}, {vr(AC + 4 * j + h, 2)}, {vr(FS, 2)} op_sel_hi:[1,0]')
            g(f'ds_write_b128 v{WA}, {vr(AC + 4 * j, 4)} offset:{528 * j}')
        g.setexec(-1)
        g('s_waitcnt lgkmcnt(0)\ns_barrier')
        for w in range(8):
            g(f'ds_read_b64 {vr(TMP + 2 * w, 2)}, v{RA if w < 4 else VSC} offset:{OST * (w & 3)}')
        g('s_waitcnt lgkmcnt(4)')
        pk4(g, 'v_pk_add_f32', TMP, TMP, TMP + 4)
        g('s_waitcnt lgkmcnt(0)')
        pk4(g, 'v_pk_add_f32', TMP + 8, TMP + 8, TMP + 12)
        pk4(g, 'v_pk_add_f32', TMP, TMP, TMP + 8)
        g(f'v_pk_add_f32 {vr(TMP, 2)}, {vr(TMP, 2)}, {vr(TMP + 2, 2)}')
        tag(g, [TMP, TMP + 1], FS + 1)
        if not P['XP']:
            g(f'buffer_store_dwordx2 {vr(TMP, 2)}, v{GA}, {S_WS}, {S_GA} offen sc1')

    GK, GV, S_GU = 12, 13, 's100'
    if mode == 'g_addr':
        g(f'''s_lshr_b32 {S_R}, s14, 3
              s_and_b32 {S_CU}, s14, 7
              s_lshl_b32 {S_GU}, {S_CU}, 3
              s_add_u32 {S_GU}, {S_GU}, s3
              s_mul_i32 {S_T}, {S_R}, {P["PH"]}
              s_add_u32 {S_GU}, {S_GU}, {S_T}
              s_add_u32 {S_CU}, {S_CU}, {SPL}''')
        g.bits(GK, 0, [(1, 1, 1024), (2, 2, 256), (0, 1, 64), (4, 2, 16)], GV)
        g(f'v_lshlrev_b32 v{GV}, 4, v0')
        return
    if mode == 'g_issue':
        for n in arg:
            i, isk, u = n & 7, n < 8 * NUG, (n >> 3) % NUG
            if i == 0:
                p = 18 if isk else 20
                g(f's_lshl_b32 {S_T}, {S_R}, 23\ns_add_u32 s56, s{p}, {S_T}\ns_addc_u32 s57, s{p + 1}, 0\ns_mov_b32 s58, 0x800000')
                g(f's_add_u32 s101, {S_GU}, {1024 - 64 * (NUG - u)}\ns_and_b32 s101, s101, 1023\ns_lshl_b32 s101, s101, 13\ns_add_u32 {S_T}, s101, 4096')
            off = ((i >> 1) & 1) * 2048 + (i & 1) * 128 if isk else (i & 3) * 1024
            g(f'buffer_load_dwordx4 {vr(SLOT(0) + 4 * n, 4)}, v{GK if isk else GV}, {S_A}, {S_T if i >= 4 else "s101"} offen offset:{off} nt')
        return
    gq = '\n'.join(f'buffer_load_dwordx4 {vr(Q0 + 4 * i, 4)}, v{LA}, {S_WS}, 0 offen offset:{(i >> 1) * 256 + (i & 1) * 16} sc1' for i in range(4))

    def gq_addr():
        g(f's_lshl_b32 {S_T}, {S_R}, 12\ns_add_u32 {S_T}, {S_T}, {QB}')
        g.bits(LA, 0, [(0, 3, 512), (3, 1, 128), (4, 2, 32)], GA, S_T)
    if mode == 'g_q':
        gq_addr()
        g.vmop(gq, 'gq')
        return
    if mode == 'g_compute':
        g.vmwait('gq')
        poll(g, gq, range(Q0, Q0 + 16), T2, 8, preloaded=True, mask=0xffff)
        for i in range(8):
            g(f'v_perm_b32 v{Q0 + i}, v{Q0 + 2 * i + 1}, v{Q0 + 2 * i}, {S_HI}')
        mailbox()
        g.bits(LA, 0, [(0, 4, 64)], T2)
        g(f'v_mov_b32 v{VSC}, 0x3db504f3\nv_mov_b32 v{VMAX}, 0xff800000')
        for u in range(NUG):
            qk(u)
        softmax()
        for u in range(NUG):
            probs(u, NUG - 1)
        epi_addr()
        for u in range(NUG):
            pv(u)
        g('s_waitcnt lgkmcnt(0)\ns_barrier')
        stats()
        factor()
        g('s_nop 0')
        epilogue()
        g('s_barrier')
        return

    entry()
    GS = P['GS']
    order = list(range(96))
    if P['ILV']:
        order = list(range(32, 48))
        for i in range(16):
            order += [2 * i, 2 * i + 1, 48 + i]
        order += list(range(64, 96))
    last = lambda ids: max(order.index(i) for i in ids)
    depth = lambda n: P['DK1'] if n < P['NK1'] else (P['DK2'] if n < 48 else (P['DX'] if n < 64 else P['DV']))
    qsteps = list(range(P['QP0'] - 1, P['QG'] - 1, P['QPS']))
    st = dict(landed=-1, issued=-1, done=0)

    def land(n):
        if n > st['landed']:
            g.vmwait(n)
            st['landed'] = n

    W = [('q', -1, qget)]
    W += [('qk%d' % u, last(range(8 * u, 8 * u + 8)), lambda u=u: qk(u)) for u in ([0, 1, 4, 5, 2, 3] if P['ILV'] else range(NU))]
    W += [('sm', -1, softmax)]
    W += [('pr%d' % u, -1, lambda u=u: probs(u)) for u in range(NU)]
    W += [('st', -1, stats), ('rb', 63, lambda: (readback(), epi_addr(), lds_units()))]
    for u in range(4):
        if u == 3:
            W += [('fs', -1, factor)]
        W += [('pv%d' % u, 64 + 8 * u + 7, lambda u=u: ((g.stamp('a_landed') if u == 3 else None), pv(u)))]
    names = [w[0] for w in W]

    def work(budget, need=None):
        while st['done'] < len(W):
            forced = need is not None and st['done'] <= names.index(need)
            name, ld, act = W[st['done']]
            if not forced and (budget <= 0 or st['landed'] < ld or st['issued'] < P['QG'] - 1):
                return
            assert ld <= st['issued']
            land(ld)
            act()
            st['done'] += 1
            budget -= 1

    for n in range(0, 96, GS):
        d = depth(n)
        if n + GS - 1 >= d:
            land(n + GS - 1 - d)
        if n >= 64 and n % 8 == 0:
            work(0, ['qk1', 'qk2', 'qk3', 'pv0'][(n - 64) >> 3])
        for i in range(GS):
            load(order[n + i], n + i)
        m = n + GS - 1
        if m == P['FAST'] - 1:
            g.stamp('a_fast', (5,))
            if PADAT and PADAT[0] == 'a_data':
                g('s_waitcnt vmcnt(3)')
                g.stamp('a_data', (5,))
            entry2()
            setup()
            g.stamp('a_setup', (5,))
        st['issued'] = m
        if m == P['STPOS']:
            g.stamp('a_pos')
        if m >= 20 and not st.get('ep'):
            st['ep'] = True
            g.vmwait('ep')
            epoch_tag(g, T2 + 2)
        if m in qsteps:
            if m != qsteps[0]:
                land(m - P['QPS'] + 1)
            qstep()
        work(GS)
    work(0, 'pv3')

    epilogue()
    g.stamp('a_pub', (0, 1, 2, 3, 4))
    slice_index('s14', 's15')
    g(f's_cmp_ge_u32 {S_CU}, {SPL - NMR}\ns_cbranch_scc1 L_mlp')
    if P['RANK']:
        skip = only_wave(g, 0)
        arrive(g, 8, 0, C_R)
        g(f'v_mov_b32 v9, 0\ns_waitcnt vmcnt(0)\ns_mov_b64 exec, 1\nds_write_b32 v9, v8 offset:{RK}\ns_mov_b64 exec, -1\ns_waitcnt lgkmcnt(0)')
        g(skip + ':')
        g(f's_barrier\nv_mov_b32 v8, 0\nds_read_b32 v8, v8 offset:{RK}\ns_waitcnt lgkmcnt(0)\nv_readfirstlane_b32 s14, v8')
    else:
        g(f's_sub_u32 s14, {S_CU}, 1\ns_lshl_b32 s14, s14, 3\ns_add_u32 s14, s14, {S_R}')
    if P['LSKIP']:
        g(f's_sub_u32 s14, s14, {P["LSKIP"]}')
    g(f's_cmp_lt_u32 s14, {min(128, 64 * (4 - P["GJ"])) if P["LQ"] == 2 else (32 if P["GH"] else 64 if P["GBG"] else 96)}\ns_cbranch_scc1 L_late')
    write_stamps(g)
    g('s_endpgm')


def build(stamps=False):
    g = G(stamps)
    ref = open(REF).read()
    g.L.append(ref[:ref.index('; Override launch')].rstrip())
    g.L.append('; @launch grid=(%d,1,1) block=(512,1,1) lds=%d' % (NWG, LDS_TOTAL))
    g.L.append('.amdgcn_target "amdgcn-amd-amdhsa--gfx950"\n.text\n.globl %s_kernel\n.p2align 8\n.type %s_kernel,@function' % (NAME, NAME))
    g.L.append('%s_kernel:' % NAME)
    g.stamp('start', (0, 1, 2, 3, 4))
    g(f'''s_load_dwordx16 s[16:31], s[0:1], 0
          s_load_dwordx8 s[32:39], s[0:1], 64
          s_load_dwordx4 s[40:43], s[0:1], 96
          s_load_dwordx2 s[44:45], s[0:1], 112
          v_lshrrev_b32 v1, 6, v0
          v_and_b32 v0, 63, v0
          v_readfirstlane_b32 s3, v1''')
    g(f's_cmp_lt_u32 s2, {NG}\ns_cbranch_scc1 L_proj')
    g(f's_cmp_ge_u32 s2, {NWG}\ns_cbranch_scc1 L_exit')
    n0 = g.nst
    attention(g)
    n1 = g.nst
    armed = getattr(g, 'padarmed', False)
    latem(g)
    g.padarmed = armed
    g.nst = n1 + (1 if g.stamps and P['ST'] < 3 else 0)
    mlp(g)
    g.nst = n0
    g.padarmed = bool(PADAT) and PADAT[0] == 'start'
    proj(g)
    g('L_exit:\ns_endpgm')
    g('.fill 2048, 4, 0xbf800000')
    g.L.append('''.section .rodata,"a"
.p2align 6
.amdhsa_kernel %s_kernel
  .amdhsa_next_free_vgpr 256
  .amdhsa_next_free_sgpr 102
  .amdhsa_accum_offset 256
  .amdhsa_group_segment_fixed_size 0
  .amdhsa_kernarg_size 120
  .amdhsa_user_sgpr_count 2
  .amdhsa_user_sgpr_kernarg_segment_ptr 1
  .amdhsa_system_sgpr_workgroup_id_x 1
.end_amdhsa_kernel''' % NAME)
    return '\n'.join(g.L) + '\n'


if __name__ == '__main__':
    out = sys.argv[1]
    for a in sys.argv[2:]:
        if a.startswith('PADAT='):
            PADAT.append(a[6:])
        elif '=' in a:
            k, v = a.split('=')
            assert k in P, k
            P[k] = int(v)
    open(out, 'w').write(build(stamps='--stamps' in sys.argv))
```

```python
import sys
NAME = 'adaLN_cond__gqa_block_cached__mixer_channel_mlp__decode'
REF = 'cdna_kernels/%s.s.ref' % NAME

NG = 64
SPL = 24
NMR = 7
NA = 8 * SPL
NWG = NG + NA
WPR = SPL * 8
NU = 6

FLAGS = 0x2000
QB, STATS, X1, MODP, MODL = 0x8000, 0x10000, 0x60000, 0x20000, 0x40000
MBA, MBB, MBC = 0x100000, 0x200000, 0x300000
SLOTS = 32
MBA_ST = 2 * SLOTS * 256
WS_SIZE = 0x400000
SPIN = 1 << 18
C_A, C_B, C_R = 0, 16, 128
TMASK = 0xff

P = dict(MSL=4, LSL=8, QSL=8, ASL=2, GS=1, DK1=8, NK1=28, DK2=8, DV=12, QP0=40, QPS=8, SLEEP=0, PH=64, QG=64, DX=8, TLB=0, PRE=0, WSOFF=0, LGATE=-1, LIGHT=4, RANK=0, P1SL=8, P1TH=56, GBG=0, LQ=1, MLS=2, GJ=1, GH=1, A5W=3, WPOS=11, FAST=4, SEL=1, MLD=80, WARM=24, WREG='', BUD=0, BUDN=8, BUDF='nt', LSKIP=0, XL=0, XW=0, XG=0, XP=0, XS=0, P1K=0, P2TH=16, P2SL=2, W2MISS=16, W2X=0, W2TH=0, NAT=1, BW=1, REP=1, LNM=1, PFA=0, PFG=3, GAE=1, NOQ=0, QW=7, SW=4, GE=0, NUG=0, RPOS=94, ILV=0, ROT=1, MW=4, HPOS=90, ST=0, DBGST=-1, PADTO=0, PADWG=-1, STPOS=-1)

S_WS, S_DBG, S_A, S_B = 's[48:51]', 's[52:55]', 's[56:59]', 's[60:63]'
S_LO, S_HI, S_MASK, S_SPIN = 's64', 's65', 's66', 's67'
S_TAG, S_EPO, S_T16 = 's26', 's27', 's1'
DPP = 'row_mask:0xf bank_mask:0xf'


def vr(a, n):
    return 'v[%d:%d]' % (a, a + n - 1)


PADAT = []


class G:
    def __init__(self, stamps=False):
        self.vm = []
        self.L = []
        self.stamps = stamps
        self.nlabel = 0
        self.nst = 0
        self.warm = None

    def __call__(self, s):
        for line in s.strip('\n').split('\n'):
            line = line.strip()
            if line:
                self.L.append(line if line.endswith(':') else '    ' + line)
                if self.warm is not None and not line.endswith(':'):
                    self.wcount += 1
                    if self.wcount >= P['WARM'] and not line.startswith('s_getpc'):
                        self.pad()

    def pad(self, last=False):
        n = self.wpad
        self.L.append(f'{self.warm}_{n}:')
        self.L.append(f'    s_cbranch_execz {self.warm}_ret' if last else f'    s_cbranch_execz {self.warm}_{n + 1}')
        self.wpad += 1
        self.wcount = 0

    def warm_run(self, name):
        if name[-1] in P['WREG']:
            self(f's_mov_b64 exec, 0\ns_branch {name}_0\n{name}_ret:\ns_mov_b64 exec, -1')

    def warm_begin(self, name):
        if name[-1] in P['WREG']:
            self.warm, self.wpad = name, 0
            self.pad()

    def warm_end(self):
        if self.warm is not None:
            self.pad(last=True)
            self.warm = None

    def label(self, p='L'):
        self.nlabel += 1
        return '%s_%d' % (p, self.nlabel)

    def stamp(self, name, sets=(0,)):
        if PADAT and name == PADAT[0]:
            self('s_memrealtime s[90:91]')
            self.padarmed = True
        if self.stamps and P['ST'] in sets:
            k = self.nst
            self.nst += 1
            assert k < 13 and (k < 11 or name[0] in 'gr'), name
            self('s_memrealtime s[%d:%d] ; stamp %d %s' % (70 + 2 * k, 71 + 2 * k, k, name))

    def vmop(self, text, tag):
        for line in text.strip().split('\n'):
            self(line)
            self.vm.append(tag)

    def vmwait(self, *tags):
        idx = [i for i, t in enumerate(self.vm) if t in tags]
        if not idx:
            return
        n = len(self.vm) - 1 - idx[-1]
        assert n <= 63
        self('s_waitcnt vmcnt(%d)' % n)
        self.vm = self.vm[idx[-1] + 1:]

    def nop(self, n):
        while n > 0:
            k = min(n, 16)
            self('s_nop %d' % (k - 1))
            n -= k

    def bits(self, dst, src, fields, tmp, add=None):
        first = True
        for (lo, n, mul) in fields:
            t = dst if first else tmp
            if lo == 0:
                self(f'v_and_b32 v{t}, {(1 << n) - 1}, v{src}')
            else:
                self(f'v_bfe_u32 v{t}, v{src}, {lo}, {n}')
            pw = mul & (mul - 1) == 0
            sh = mul.bit_length() - 1
            if first:
                if mul != 1:
                    self(f'v_lshlrev_b32 v{dst}, {sh}, v{dst}' if pw else f'v_mul_u32_u24 v{dst}, {mul}, v{dst}')
            elif mul == 1:
                self(f'v_add_u32 v{dst}, v{dst}, v{tmp}')
            elif pw:
                self(f'v_lshl_add_u32 v{dst}, v{tmp}, {sh}, v{dst}')
            else:
                self(f'v_mul_u32_u24 v{tmp}, {mul}, v{tmp}\nv_add_u32 v{dst}, v{dst}, v{tmp}')
            first = False
        if add not in (None, 0):
            self(f'v_add_u32 v{dst}, {add}, v{dst}')

    def setexec(self, m):
        if m == -1:
            self('s_mov_b64 exec, -1')
        elif m < (1 << 31):
            self('s_mov_b64 exec, 0x%x' % m)
        else:
            self('s_mov_b32 exec_lo, 0x%x\ns_mov_b32 exec_hi, 0x%x' % (m & 0xffffffff, m >> 32))


def rep16(m):
    return m * 0x0001000100010001


def check(g, regs, tmp, mask=TMASK):
    regs = list(regs)
    g(f'v_bitop3_b32 v{tmp}, v{regs[0]}, v{regs[1]}, {S_EPO} bitop3:0x7e')
    for r in regs[2:]:
        g(f'v_bitop3_b32 v{tmp}, v{tmp}, v{r}, {S_EPO} bitop3:0xf6')
    if mask == 0xffff:
        g(f'v_cmp_ne_u16 vcc, 0, v{tmp}')
        return
    if mask != -1:
        g(f'v_and_b32 v{tmp}, {mask}, v{tmp}')
    g(f'v_cmp_ne_u32 vcc, 0, v{tmp}')


def tagmask(g, vm):
    g(f'v_mov_b32 v{vm}, 0x{0xffffffff ^ TMASK:x}')


def tag(g, regs, vm):
    for r in regs:
        g(f'v_and_or_b32 v{r}, v{r}, v{vm}, {S_TAG}')


def epoch_load(reg):
    return f'buffer_load_dword v{reg}, off, {S_WS}, 0 sc1'


def epoch_tag(g, reg):
    g(f'''v_readfirstlane_b32 {S_EPO}, v{reg}
          s_mul_i32 {S_TAG}, {S_EPO}, 0x9e3779b1
          s_lshr_b32 {S_TAG}, {S_TAG}, 12
          s_or_b32 {S_TAG}, {S_TAG}, 1
          s_add_u32 {S_EPO}, {S_EPO}, {S_TAG}
          s_and_b32 {S_TAG}, {S_EPO}, {TMASK}
          s_and_b32 {S_T16}, {S_EPO}, 0xffff''')


def poll(g, loads, regs, tmp, sleep=0, preloaded=False, mask=TMASK):
    lp, done, chk = g.label('L_poll'), g.label('L_ok'), g.label('L_chk')
    g(f's_mov_b32 {S_SPIN}, {SPIN}')
    if preloaded:
        g(f's_branch {chk}')
    g(lp + ':')
    g(loads)
    g('s_waitcnt vmcnt(0)')
    if preloaded:
        g(chk + ':')
    check(g, regs, tmp, mask)
    g(f's_cbranch_vccz {done}')
    if sleep:
        g(f's_sleep {sleep}')
    g(f's_sub_u32 {S_SPIN}, {S_SPIN}, 1\ns_cbranch_scc0 {lp}')
    g(done + ':')


def faddr(soff, off):
    return f's_lshl_b32 s98, {soff}, 8\ns_add_u32 s98, s98, {FLAGS + 256 * off}\n'


def fread(reg, soff, off):
    return faddr(soff, off) + f'buffer_load_dword v{reg}, off, {S_WS}, s98 sc1'


def fpoll(g, reg, soff, off, sleep, preloaded=False):
    lp, done, chk = g.label('L_fpoll'), g.label('L_fok'), g.label('L_fchk')
    g(f's_mov_b32 {S_SPIN}, {SPIN}')
    if preloaded:
        g(f's_branch {chk}')
    g(lp + ':')
    g(fread(reg, soff, off) + '\ns_waitcnt vmcnt(0)')
    if preloaded:
        g(chk + ':')
    g(f'v_cmp_ne_u32 vcc, {S_EPO}, v{reg}\ns_cbranch_vccz {done}')
    if sleep:
        g(f's_sleep {sleep}')
    g(f's_sub_u32 {S_SPIN}, {S_SPIN}, 1\ns_cbranch_scc0 {lp}')
    g(done + ':')


def fwait(g, reg, soff, off, sleep):
    skip = only_wave(g, 0)
    fpoll(g, reg, soff, off, sleep)
    g(skip + ':')
    g('s_barrier')


def arrive(g, reg, soff, off):
    g(f'v_mov_b32 v{reg}, 1\ns_mov_b64 exec, 1\nbuffer_atomic_add v{reg}, off, {S_DBG}, {soff} offset:{off} sc0 sc1\ns_mov_b64 exec, -1')


def arrived(g, reg, soff, off, n):
    skip = g.label('L_notlast')
    g(f'v_readfirstlane_b32 s99, v{reg}\ns_cmp_lg_u32 s99, {n - 1}\ns_cbranch_scc1 {skip}')
    g(faddr(soff, off) + f'v_mov_b32 v{reg}, {S_EPO}\ns_mov_b64 exec, 1\nbuffer_store_dword v{reg}, off, {S_WS}, s98 sc1\ns_mov_b64 exec, -1')
    g(skip + ':')


def srd(g, s, lo, size):
    base = int(s[2:s.index(':')])
    if lo == 44 and P['WSOFF']:
        g(f's_add_u32 s{base}, s44, {P["WSOFF"] << 20}\ns_addc_u32 s{base + 1}, s45, 0\ns_mov_b32 s{base + 2}, 0x{size:x}\ns_mov_b32 s{base + 3}, 0x20000')
        return
    g(f's_mov_b32 s{base}, s{lo}\ns_mov_b32 s{base + 1}, s{lo + 1}\ns_mov_b32 s{base + 2}, 0x{size:x}\ns_mov_b32 s{base + 3}, 0x20000')


def consts(g):
    g(f's_mov_b32 {S_LO}, 0x05040100\ns_mov_b32 {S_HI}, 0x07060302\ns_mov_b32 {S_MASK}, 0xffff0000')


def only_wave(g, w):
    skip = g.label('L_skip')
    g(f's_cmp_lg_u32 s3, {w}\ns_cbranch_scc1 {skip}')
    return skip


def write_stamps(g):
    if PADAT and getattr(g, 'padarmed', False):
        l = g.label('L_padat')
        g(f'{l}:\ns_memrealtime s[4:5]\ns_waitcnt lgkmcnt(0)\ns_sub_u32 s4, s4, s90\ns_sleep 4\ns_cmp_lt_u32 s4, 6000\ns_cbranch_scc1 {l}')
    if not g.stamps:
        return
    g('s_waitcnt lgkmcnt(0)')
    skip = only_wave(g, 0)
    g('s_mov_b64 exec, 1')
    if P['DBGST'] >= 0:
        g(f's_cmp_lg_u32 s2, {P["DBGST"]}\ns_cbranch_scc1 {skip}')
        for k in range(1, min(g.nst, 12)):
            g(f's_sub_u32 s4, s{70 + 2 * k}, s70\nv_mov_b32 v2, s4')
            g(f'buffer_store_dword v2, off, {S_DBG}, 0 offset:{16 + 4 * k}')
        g(skip + ':')
        return
    g('s_lshl_b32 s4, s2, 8\ns_add_u32 s4, s44, s4\ns_addc_u32 s5, s45, 0')
    g('s_add_u32 s4, s4, %d\ns_addc_u32 s5, s5, 0' % (255 << 20))
    g('v_mov_b32 v1, 0')
    for k in range(g.nst):
        g(f'v_mov_b32 v2, s{70 + 2 * k}\nv_mov_b32 v3, s{71 + 2 * k}')
        g(f'global_store_dwordx2 v1, v[2:3], s[4:5] offset:{8 * k}')
        g('s_nop 1')
    g(skip + ':')


def prefetch_code(g, label, nkb8, vtmp, vdst, tag=None):
    pc = g.label('L_pc')
    g('s_getpc_b64 s[98:99]')
    if label:
        g(f'{pc}:\ns_add_u32 s98, s98, {label}-{pc}\ns_addc_u32 s99, s99, 0')
    g('s_and_b32 s98, s98, 0xffffff80')
    g(f's_lshl_b32 s97, s3, 10\nv_lshl_add_u32 v{vtmp}, v0, 4, s97')
    for i in range(nkb8):
        if i:
            g(f'v_add_u32 v{vtmp}, 8192, v{vtmp}')
        t = f'global_load_dwordx4 {vr(vdst, 4)}, v{vtmp}, s[98:99]'
        g.vmop(t, tag) if tag else g(t)


BLK = lambda i: 64 + 32 * i
UA, UB, UC = 0, 2, 4
ACC = 32
KW, NB, NW, NR, NO, KB, TID = 1, 2, 3, 4, 5, 6, 7
T = 24


class Lds:
    def __init__(self, base):
        self.ACTS, self.ACTH, self.RED = base, base + 4352, base + 8704
        self.OUTV = base + 17408
        self.PART = base + 17664
        self.STAT = base + 18688
        self.END = base + 19200


ABS = 2048 + 128


def nstep():
    return 1 if P['NAT'] else 64


def nvoff(g, dst, rs, tid=TID, tmp=T + 7):
    g.bits(dst, tid, [(3, 6, rs * 8 if P['NAT'] else rs), (0, 3, 16)], tmp)


def nload(g, unit, ptr, size, rs, s_col, voff, kbs=(0, 1), tag=None):
    srd(g, S_A, ptr, size)
    for kb in kbs:
        g(f's_add_u32 s4, {s_col}, {kb * 512 * rs}')
        for t in range(8):
            g.vmop(f'buffer_load_dwordx4 {vr(BLK(unit + kb) + 4 * t, 4)}, v{voff}, {S_A}, s4 offen nt', (tag, kb))
            if t < 7:
                g(f's_add_u32 s4, s4, {nstep() * rs}')


def kload(g, unit, ptr, size, s_idx, voff, rowf, tag, s_xor=None):
    srd(g, S_A, ptr, size)
    g(f's_lshl_b32 s5, {s_idx}, 17')
    for kb in range(2):
        for t in range(8):
            g(f's_add_u32 s4, s5, {rowf(kb, t) * 2048}')
            if s_xor:
                g(f's_xor_b32 s4, s4, {s_xor}')
            g.vmop(f'buffer_load_dwordx4 {vr(BLK(unit + kb) + 4 * t, 4)}, v{voff}, {S_A}, s4 offen nt', (tag, kb))


def transpose(g, blk, T=T):
    b = BLK(blk)
    for p in range(4):
        a, c = b + 8 * p + p, b + 8 * p + 4 + p
        g(f'v_perm_b32 v{T}, v{c}, v{a}, {S_LO}\nv_perm_b32 v{c}, v{c}, v{a}, {S_HI}\nv_mov_b32 v{a}, v{T}')
    for p in range(4):
        for w in range(p + 1, 4):
            xa, xb = b + 8 * p + w, b + 8 * p + 4 + w
            ya, yb = b + 8 * w + p, b + 8 * w + 4 + p
            g(f'v_perm_b32 v{T}, v{xb}, v{xa}, {S_LO}\nv_perm_b32 v{T + 1}, v{xb}, v{xa}, {S_HI}')
            g(f'v_perm_b32 v{xa}, v{yb}, v{ya}, {S_LO}\nv_perm_b32 v{xb}, v{yb}, v{ya}, {S_HI}')
            g(f'v_mov_b32 v{ya}, v{T}\nv_mov_b32 v{yb}, v{T + 1}')


def mfmas(g, unit, b0, b1):
    for kb, bop in ((0, b0), (1, b1)):
        if kb == 1:
            g('s_waitcnt lgkmcnt(0)')
        for j in range(8):
            d = vr(ACC + 4 * j, 4)
            g(f'v_mfma_f32_16x16x32_bf16 {d}, {vr(BLK(unit + kb) + 4 * j, 4)}, {vr(bop, 4)}, {d if kb else 0}')


KMASK = [None, 16, 18, 20, 22, 24, 28, 30]
NMASK = [None, 32, 34, 36]


def tail_masks(g, n=False):
    if not P['SEL']:
        return
    for j in range(1, 8):
        g(f's_mov_b32 s{KMASK[j]}, 0x{(3 << (2 * j)) * 0x10001:x}\ns_mov_b32 s{KMASK[j] + 1}, s{KMASK[j]}')
    for d in range(1, 4 if n else 1):
        g(f's_mov_b32 s{NMASK[d]}, 0x{(15 << (4 * d)) * 0x10001:x}\ns_mov_b32 s{NMASK[d] + 1}, s{NMASK[d]}')


def mfmas_select(g, unit, sel, extra=()):
    slot, ready, todo = 0, {}, list(extra)

    def fill(n):
        nonlocal slot
        while n > 0 and todo:
            need, ins = todo[0] if isinstance(todo[0], tuple) else ((), todo[0])
            if any(slot - ready[j] < 8 for j in need):
                return
            g(ins)
            todo.pop(0)
            slot += 1
            n -= 1
    for j in range(8):
        d = vr(ACC + 4 * j, 4)
        for kb in range(2):
            g(f'v_mfma_f32_16x16x32_bf16 {d}, {vr(BLK(unit + kb) + 4 * j, 4)}, {vr(T + 4 * kb, 4)}, {d if kb else 0}')
            slot += 1
            if kb:
                ready[j] = slot
                todo += sel(j)
            s0 = slot
            fill(2)
            if slot - s0 < 2 and not (j == 7 and kb):
                g.nop(2 - (slot - s0))
                slot = s0 + 2
    while todo:
        n = len(todo)
        fill(99)
        if len(todo) == n:
            w = max(8 - (slot - ready[j]) for j in todo[0][0])
            g.nop(w)
            slot += w


def common_addr(g, L, kperm):
    K0B = T + 6
    g(f's_lshl_b32 s4, s3, 6\nv_add_u32 v{TID}, s4, v0')
    g.bits(K0B, TID, [(3, 6, 64), (0, 2, 16), (2, 1, 8)], T)
    if P['NAT']:
        g.bits(KW, K0B, [(11, 1, ABS), (0, 11, 1)], T)
        g.bits(NB, TID, [(0, 1, ABS), (6, 3, 128), (4, 2, 32), (1, 1, 16)], T)
    else:
        g.bits(KW, K0B, [(11, 1, ABS), (4, 3, 256), (10, 1, 128), (1, 3, 16), (7, 3, 2)], T)
        g.bits(NB, TID, [(0, 1, ABS), (6, 3, 256), (4, 2, 32), (1, 1, 16)], T)
    g.bits(NW, TID, [(6, 3, 1088), (1, 1, 544), (0, 1, 256), (2, 2, 32), (4, 1, 16)], T, L.RED)
    g.bits(NR, TID, [(0, 2, 544), (2, 7, 4)], T, L.RED)
    if kperm:
        g.bits(NO, TID, [(8, 1, 128), (4, 1, 64), (5, 1, 32), (7, 1, 16), (2, 2, 4), (6, 1, 2)], T, L.OUTV)
    else:
        g.bits(NO, TID, [(8, 1, 128), (2, 3, 16), (5, 2, 4), (7, 1, 2)], T, L.OUTV)
    g.bits(KB, TID, [(0, 1, 128), (4, 2, 16)], T, L.OUTV)


def nsplit(g, unit, act, half=None, fast=False):
    if half is None:
        g(f'ds_read_b128 {vr(T, 4)}, v{NB} offset:{act}\nds_read_b128 {vr(T + 4, 4)}, v{NB} offset:{act + (1024 if P["NAT"] else 128)}')
        if fast:
            g('s_waitcnt lgkmcnt(0)')
            mfmas_select(g, unit, lambda j: [((j, j & 1), f'v_cndmask_b32 v{ACC + 4 * (j & 1) + i}, v{ACC + 4 * (j & 1) + i}, v{ACC + 4 * j + i}, '
                                              f's[{NMASK[j >> 1]}:{NMASK[j >> 1] + 1}]') for i in range(4)] if j > 1 else [])
        else:
            g('s_waitcnt lgkmcnt(1)')
            mfmas(g, unit, T, T + 4)
    else:
        g(f'ds_read_b128 {vr(T, 4)}, v{half} offset:{act}\ns_waitcnt lgkmcnt(0)')
        for j in range(8):
            g(f'v_mfma_f32_16x16x32_bf16 {vr(ACC + 4 * j, 4)}, {vr(BLK(unit) + 4 * j, 4)}, {vr(T, 4)}, 0')
    for dd in range(1, 1 if fast else 4):
        g.setexec(rep16(0xf << (4 * dd)))
        if dd != 2:
            g.nop(2)
        for i in range(4):
            g(f'v_mov_b64 {vr(ACC + 2 * i, 2)}, {vr(ACC + 8 * dd + 2 * i, 2)}')
    g.setexec(0xcccccccc33333333)
    g(f'ds_write_b128 v{NW}, {vr(ACC, 4)}\nds_write_b128 v{NW}, {vr(ACC + 4, 4)} offset:128')
    g.setexec(-1)
    g('s_waitcnt lgkmcnt(0)\ns_barrier')
    for k in range(4):
        g(f'ds_read_b32 v{T + k}, v{NR} offset:{k * 4 * 544}')
    g('s_waitcnt lgkmcnt(2)')
    g(f'v_add_f32 v{T}, v{T}, v{T + 1}')
    g('s_waitcnt lgkmcnt(0)')
    g(f'v_add_f32 v{T + 2}, v{T + 2}, v{T + 3}\nv_add_f32 v{T}, v{T}, v{T + 2}')
    g.nop(2)
    g(f'v_add_f32_dpp v{T}, v{T}, v{T} quad_perm:[1,0,3,2] {DPP}')
    g.nop(2)
    g(f'v_add_f32_dpp v{T}, v{T}, v{T} quad_perm:[2,3,0,1] {DPP}')


def actwrite(g, p, act):
    if P['NAT']:
        g(f'ds_write_b64 v{KW}, {vr(p, 2)} offset:{act}')
        return
    g(f'ds_write_b16 v{KW}, v{p} offset:{act}\nds_write_b16_d16_hi v{KW}, v{p} offset:{act + 16}')
    g(f'ds_write_b16 v{KW}, v{p + 1} offset:{act + 32}\nds_write_b16_d16_hi v{KW}, v{p + 1} offset:{act + 48}')


def unpack2(g, d, s):
    g(f'v_lshlrev_b32 v{d}, 16, v{s}\nv_and_b32 v{d + 1}, {S_MASK}, v{s}')


def unpack(g, d, s):
    unpack2(g, d, s)
    unpack2(g, d + 2, s + 1)


def pack(g, t, d):
    g(f'v_cvt_pk_bf16_f32 v{t}, v{d}, v{d + 1}\nv_cvt_pk_bf16_f32 v{t + 1}, v{d + 2}, v{d + 3}')


def round1(g, a):
    g(f'v_cvt_pk_bf16_f32 v{a}, 0, v{a}')


def round4(g, d, t=None):
    for i in range(4):
        round1(g, d + i)


def round2(g, a):
    round1(g, a)
    round1(g, a + 1)


def pk4(g, op, d, a, b):
    g(f'{op} {vr(d, 2)}, {vr(a, 2)}, {vr(b, 2)}\n{op} {vr(d + 2, 2)}, {vr(a + 2, 2)}, {vr(b + 2, 2)}')


def layernorm(g, x, sw, sr, off, last_packed=False):
    a, b = T + 4, T + 5
    g(f'v_add_f32 v{a}, v{x}, v{x + 1}\nv_mul_f32 v{b}, v{x}, v{x}')
    g(f'v_add_f32 v{T}, v{x + 2}, v{x + 3}\nv_fmac_f32 v{b}, v{x + 1}, v{x + 1}')
    g(f'v_add_f32 v{a}, v{a}, v{T}\nv_fmac_f32 v{b}, v{x + 2}, v{x + 2}\nv_fmac_f32 v{b}, v{x + 3}, v{x + 3}')
    for i, ctl in enumerate(['row_ror:8 ' + DPP, 'row_ror:4 ' + DPP, 'row_ror:2 ' + DPP, 'row_ror:1 ' + DPP,
                             'row_bcast:15 row_mask:0xa bank_mask:0xf', 'row_bcast:31 row_mask:0xc bank_mask:0xf']):
        if i:
            g('s_nop 0')
        g(f'v_add_f32_dpp v{a}, v{a}, v{a} {ctl}')
        if i == 0:
            g('s_nop 0')
        g(f'v_add_f32_dpp v{b}, v{b}, v{b} {ctl}')
    g.setexec(1 << 63)
    g(f'ds_write_b64 v{sw}, {vr(a, 2)} offset:{off}')
    g.setexec(-1)
    g('s_waitcnt lgkmcnt(0)\ns_barrier')
    g(f'ds_read_b128 {vr(T, 4)}, v{sr} offset:{off}\nds_read_b128 {vr(T + 4, 4)}, v{sr} offset:{off + 16}')
    g('s_waitcnt lgkmcnt(0)')
    pk4(g, 'v_pk_add_f32', T, T, T + 4)
    g(f'v_pk_add_f32 {vr(a, 2)}, {vr(T, 2)}, {vr(T + 2, 2)}')
    g(f'v_mul_f32 v{a}, 0x3a800000, v{a}\nv_mul_f32 v{b}, 0x3a800000, v{b}')
    g(f'v_fma_f32 v{b}, -v{a}, v{a}, v{b}\nv_max_f32 v{b}, 0, v{b}')
    round2(g, a)
    g(f'v_add_f32 v{b}, 0x3727c5ac, v{b}')
    g(f'v_cvt_pk_bf16_f32 v{b}, 0, v{b}')
    g(f'v_sqrt_f32 v{b}, v{b}')
    for i in range(4):
        g(f'v_sub_f32 v{x + i}, v{x + i}, v{a}')
    g(f'v_cvt_pk_bf16_f32 v{b}, 0, v{b}')
    g(f'v_rcp_f32 v{b}, v{b}')
    round4(g, x, T + 6)
    for i in range(4):
        g(f'v_mul_f32 v{x + i}, v{x + i}, v{b}')
    if last_packed:
        pack(g, T + 6, x)
    else:
        round4(g, x, T + 6)


def weave(g, chain, fill, per=1):
    fill = list(fill)
    for c in chain:
        g(c)
        trans = c.split()[0] in ('v_sqrt_f32', 'v_rcp_f32', 'v_exp_f32')
        n = 0
        while fill and n < (per + (1 if trans else 0)):
            g(fill.pop(0))
            n += 1
        if trans and n == 0:
            g('s_nop 0')
    for f in fill:
        g(f)


def blocksum6(g, r, sw6, sr6, off, out, finish=True):
    g.nop(1)
    for i in (0, 2, 4):
        g(f'v_permlane32_swap_b32 v{r + i}, v{r + i + 1}')
    for i in (0, 2, 4):
        g(f'v_add_f32 v{r + i}, v{r + i}, v{r + i + 1}')
    g(f'v_mov_b32 v{r + 5}, v{r + 4}\nv_permlane16_swap_b32 v{r}, v{r + 2}\nv_add_f32 v{r}, v{r}, v{r + 2}')
    g(f'v_permlane16_swap_b32 v{r + 4}, v{r + 5}\nv_add_f32 v{r + 4}, v{r + 4}, v{r + 5}')
    for i, sh in enumerate((8, 4, 2, 1)):
        if i:
            g('s_nop 0')
        g(f'v_add_f32_dpp v{r}, v{r}, v{r} row_ror:{sh} {DPP}')
        if i == 0:
            g('s_nop 0')
        g(f'v_add_f32_dpp v{r + 4}, v{r + 4}, v{r + 4} row_ror:{sh} {DPP}')
    g(f'ds_write_b32 v{sw6}, v{r} offset:{off}\nds_write_b32 v{sw6}, v{r + 4} offset:{off + 64}')
    g('s_waitcnt lgkmcnt(0)\ns_barrier')
    for i, o in enumerate((0, 16, 32, 48, 64, 96)):
        g(f'ds_read_b128 {vr(out + 4 * i, 4)}, v{sr6} offset:{off + o}')
    if not finish:
        return
    for i in range(6):
        g(f's_waitcnt lgkmcnt({5 - i})')
        g(f'v_pk_add_f32 {vr(out + 4 * i, 2)}, {vr(out + 4 * i, 2)}, {vr(out + 4 * i + 2, 2)}')
    for i in range(6):
        g(f'v_add_f32 v{out + i}, v{out + 4 * i}, v{out + 4 * i + 1}')


def rstd(g, mean, var):
    g(f'v_max_f32 v{var}, 0, v{var}')
    round2(g, mean)
    g(f'v_add_f32 v{var}, 0x3727c5ac, v{var}')
    g(f'v_cvt_pk_bf16_f32 v{var}, 0, v{var}\nv_sqrt_f32 v{var}, v{var}\ns_nop 0')
    g(f'v_cvt_pk_bf16_f32 v{var}, 0, v{var}\nv_rcp_f32 v{var}, v{var}')


def ksplit_out(g, unit, po, mb):
    g(f'ds_read_b128 {vr(T, 4)}, v{KB}\nds_read_b128 {vr(T + 4, 4)}, v{KB} offset:64')
    if P['SEL']:
        g('s_waitcnt lgkmcnt(0)')
        mfmas_select(g, unit, lambda j: [((j, 0), f'v_cndmask_b32 v{ACC + i}, v{ACC + i}, v{ACC + 4 * j + i}, s[{KMASK[j]}:{KMASK[j] + 1}]')
                                         for i in range(4)] if j else [], [f'v_mov_b32 v{KB}, 0x{0xffffffff ^ TMASK:x}'])
        tag(g, range(ACC, ACC + 4), KB)
        g(f'buffer_store_dwordx4 {vr(ACC, 4)}, v{po}, {S_WS}, {mb} offen sc1')
        return
    g('s_waitcnt lgkmcnt(1)')
    mfmas(g, unit, T, T + 4)
    tagmask(g, T)
    for j in range(1, 8):
        g.setexec(rep16(3 << (2 * j)))
        g(f'v_mov_b64 {vr(ACC, 2)}, {vr(ACC + 4 * j, 2)}\nv_mov_b64 {vr(ACC + 2, 2)}, {vr(ACC + 4 * j + 2, 2)}')
    g.setexec(-1)
    tag(g, range(ACC, ACC + 4), T)
    g(f'buffer_store_dwordx4 {vr(ACC, 4)}, v{po}, {S_WS}, {mb} offen sc1')


def publish32(g, L, s_off, bstride, exact):
    g(f'v_subrev_u32 v{T + 1}, {L.OUTV}, v{NO}\nv_lshlrev_b32 v{T + 1}, 1, v{T + 1}\nds_write_b32 v{T + 1}, v{T} offset:{L.PART}')
    g('s_waitcnt lgkmcnt(0)\ns_barrier')
    skip = only_wave(g, 0)
    if exact:
        g(f'v_lshlrev_b32 v{T + 4}, 3, v0\nds_read_b64 {vr(T + 6, 2)}, v{T + 4} offset:{L.PART}')
        g.bits(T + 5, 0, [(5, 1, bstride), (0, 5, 16)], T + 4)
        g(f'v_mov_b32 v{T + 1}, {S_EPO}\nv_mov_b32 v{T + 3}, {S_EPO}\ns_waitcnt lgkmcnt(0)')
        g(f'v_mov_b32 v{T}, v{T + 6}\nv_mov_b32 v{T + 2}, v{T + 7}')
    else:
        g(f'v_lshlrev_b32 v{T + 4}, 4, v0\nds_read_b128 {vr(T, 4)}, v{T + 4} offset:{L.PART}')
        g.bits(T + 5, 0, [(4, 1, bstride), (0, 4, 16)], T + 6)
        g('s_waitcnt lgkmcnt(0)\ns_mov_b32 exec_hi, 0')
    g(f'buffer_store_dwordx4 {vr(T, 4)}, v{T + 5}, {S_WS}, {s_off} offen sc1')
    g.setexec(-1)
    g('s_nop 0')
    g(skip + ':')


def qjob_issue(g, blk, s_job, voff, lg=2):
    g(f'''s_and_b32 s15, {s_job}, {(1 << lg) - 1}
          s_lshr_b32 s6, {s_job}, {lg}
          s_lshl_b32 s6, s6, 7
          s_mul_i32 s13, s15, {(1024 >> lg) * 12288}
          s_add_u32 s13, s13, s6
          s_add_u32 s13, s13, 4096''')
    nload(g, blk, 38, 1024 * 12288, 12288, 's13', voff, (0,), tag='qj')


def qjob_voff(g, voff, lg=2):
    nvoff(g, voff, 12288)
    if lg == 1:
        return
    g(f's_lshr_b32 s4, s3, 2\ns_lshl_b32 s4, s4, 24\nv_add_u32 v{voff}, s4, v{voff}')


def qjob_finish(g, L, blk, va, vm, lg=2):
    g(f's_lshl_b32 s12, s15, 15\ns_lshl_b32 s5, s6, 1\ns_add_u32 s12, s12, s5\ns_add_u32 s12, s12, {MODL}')
    if lg == 2:
        g(f's_lshr_b32 s4, s3, 2\ns_sub_u32 s4, s15, s4\ns_lshl_b32 s4, s4, 9\nv_add_u32 v{va}, s4, v{NB}')
    else:
        g(f's_lshl_b32 s4, s15, 10\nv_add_u32 v{va}, s4, v{NB}')
    tagmask(g, vm)
    g.vmwait(('qj', 0))
    g.stamp('l_land', (4,) if L.ACTS == MLP_LDS else ())
    transpose(g, blk)
    g.stamp('l_tr', (4,) if L.ACTS == MLP_LDS else ())
    nsplit(g, blk, L.ACTS, va)
    g.stamp('l_ns', (4,) if L.ACTS == MLP_LDS else ())
    tag(g, [T], vm)
    publish32(g, L, 's12', 16384, False)


def silu_image(g, L, src):
    unpack(g, ACC, src)
    for i in range(4):
        g(f'v_mul_f32 v{T + i}, 0xbfb8aa3b, v{ACC + i}')
    for i in range(4):
        g(f'v_exp_f32 v{T + i}, v{T + i}')
    for i in range(4):
        g(f'v_add_f32 v{T + i}, 1.0, v{T + i}')
    for i in range(4):
        g(f'v_rcp_f32 v{T + i}, v{T + i}')
    for i in range(4):
        g(f'v_mul_f32 v{T + i}, v{T + i}, v{ACC + i}')
    pack(g, T + 4, T)
    actwrite(g, T + 4, L.ACTS)


def proj(g):
    L = Lds(8448)
    Y, SB = 8, 12
    PO, RO, RL, OUTO = 8, 9, 10, 11
    WG, AO, AO3, OW = 12, 17, 18, 16
    WQO, WMO, SW, SR = 17, 18, 19, 23
    RX, RGA, RGB, RB2 = 20, 21, 22, 23
    JC, ODD = 's14', 's15'
    g.vm = []

    def reduce(mb, nprod, part):
        GR = ('s4', 's5', 's6', 's47')[:4 if part == 0 or P['GBG'] or P['LQ'] == 2 else 2]
        if part == 0 and P['GAE']:
            GR = ()
        for i, r in enumerate(GR):
            g(f's_mov_b32 {r}, {MODL + part * 4096 + 32768 * i}')
        if nprod < 64:
            g(f'v_mov_b32 v{T}, 0')
            skip = g.label('L_nored')
            g(f's_cmp_ge_u32 s3, {nprod // 8}\ns_cbranch_scc1 {skip}')
        l0, l1 = g.label('L_red0'), g.label('L_red1')
        ld = f'buffer_load_dwordx4 {vr(T, 4)}, v{RO}, {S_WS}, {mb} offen sc1'
        if GR:
            g(f's_cmp_eq_u32 s3, 0\ns_cbranch_scc1 {l0}')
            poll(g, ld, range(T, T + 4), T + 4)
            g(f's_branch {l1}\n{l0}:')
        poll(g, ld + ''.join(f'\nbuffer_load_dwordx2 {vr(ACC + 18 + 2 * i, 2)}, v{RGA}, {S_WS}, {r} offen sc1'
                             for i, r in enumerate(GR)),
             list(range(T, T + 4)) + list(range(ACC + 18, ACC + 18 + 2 * len(GR))), T + 4)
        g(l1 + ':')
        g.stamp('red_polled%d' % nprod, (1,))
        g(f'v_permlane32_swap_b32 v{T}, v{T + 2}\nv_permlane32_swap_b32 v{T + 1}, v{T + 3}')
        g(f'v_add_f32 v{T}, v{T}, v{T + 2}\nv_add_f32 v{T + 1}, v{T + 1}, v{T + 3}')
        g.nop(2)
        g(f'v_permlane16_swap_b32 v{T}, v{T + 1}\nv_add_f32 v{T}, v{T}, v{T + 1}')
        g.nop(2)
        g(f'v_add_f32_dpp v{T}, v{T}, v{T} row_ror:8 {DPP}')
        if nprod < 64:
            g(skip + ':')
        g(f'ds_write_b32 v{RL}, v{T}')
        g('s_waitcnt lgkmcnt(0)\ns_barrier')
        skip = only_wave(g, 0)
        g(f'v_and_b32 v{T + 2}, 15, v0\nv_lshlrev_b32 v{T + 2}, 3, v{T + 2}')
        for w in range(8):
            g(f'ds_read_b64 {vr(ACC + 2 * w, 2)}, v{T + 2} offset:{L.PART + 128 * w}')
        if len(GR) == 4:
            pk4(g, 'v_pk_add_f32', ACC + 18, ACC + 18, ACC + 22)
        if GR:
            g(f'v_pk_add_f32 {vr(ACC + 18, 2)}, {vr(ACC + 18, 2)}, {vr(ACC + 20, 2)}')
            round2(g, ACC + 18)
        else:
            unpack2(g, ACC + 18, RGB)
        return skip

    def reduce_sum():
        g('s_waitcnt lgkmcnt(4)')
        pk4(g, 'v_pk_add_f32', ACC, ACC, ACC + 4)
        g('s_waitcnt lgkmcnt(0)')
        pk4(g, 'v_pk_add_f32', ACC + 8, ACC + 8, ACC + 12)
        pk4(g, 'v_pk_add_f32', ACC, ACC, ACC + 8)
        g(f'v_pk_add_f32 {vr(T, 2)}, {vr(ACC, 2)}, {vr(ACC + 2, 2)}')
        round2(g, T)

    g('L_proj:')
    if P['PFG'] == 3:
        g(f's_getpc_b64 s[98:99]\nL_pc0:\ns_sub_u32 s98, s98, L_pc0-{NAME}_kernel\ns_subb_u32 s99, s99, 0')
        g(f's_and_b32 s4, s2, 56\ns_add_u32 s4, s4, s3\ns_lshl_b32 s4, s4, 9\nv_lshl_add_u32 v{T}, v0, 3, s4')
        g.vmop(f'global_load_dwordx2 {vr(ACC + 4, 2)}, v{T}, s[98:99]', 'in')
    g(f's_and_b32 {JC}, s2, 7\ns_lshl_b32 {JC}, {JC}, 3\ns_lshr_b32 s4, s2, 3\ns_add_u32 {JC}, {JC}, s4')
    g(f's_lshl_b32 s4, s3, 6\nv_add_u32 v{TID}, s4, v0')
    nvoff(g, WMO, 12288)
    g(f'''s_and_b32 {ODD}, {JC}, 1
          s_lshr_b32 s6, {JC}, 1
          s_lshl_b32 s6, s6, 7
          s_mul_i32 s13, {ODD}, {512 * 12288}
          s_add_u32 s13, s13, s6''')
    g.bits(T + 6, TID, [(3, 6, 64), (0, 2, 16), (2, 1, 8)], T)
    g('s_waitcnt lgkmcnt(0)')
    srd(g, S_B, 36, 4096)
    g.vmop(f'buffer_load_dwordx2 {vr(SB, 2)}, v{T + 6}, {S_B}, 0 offen', 'in')
    g('s_mov_b32 s60, s16\ns_mov_b32 s61, s17')
    g.vmop(f'buffer_load_dwordx2 {vr(SB + 2, 2)}, v{T + 6}, {S_B}, 0 offen', 'in')
    srd(g, S_WS, 44, WS_SIZE)
    g.vmop(epoch_load(RGB), 'in')
    if P['PFG'] == 2:
        skip = g.label('L_nopf')
        g(f's_cmp_ge_u32 s2, 8\ns_cbranch_scc1 {skip}')
        prefetch_code(g, None, 2, T, ACC + 4)
        g(skip + ':')
    nload(g, UA, 38, 1024 * 12288, 12288, 's13', WMO, (0,), tag='m1')
    consts(g)
    g(f's_lshl_b32 s7, {JC}, 7\ns_lshr_b32 s46, {JC}, 4\ns_lshl_b32 s46, s46, 2')
    g(f's_lshl_b32 s47, {ODD}, 15\ns_lshl_b32 s5, s6, 2\ns_add_u32 s47, s47, s5\ns_add_u32 s47, s47, {MODP}')
    common_addr(g, L, False)
    nvoff(g, WQO, 8192)
    g(f's_lshl_b32 s4, s3, 3\nv_mov_b32 v{SW}, s4\ns_and_b32 s4, s4, 32\nv_mov_b32 v{SR}, s4')
    g(f's_mul_i32 s8, {JC}, {MBA_ST}\ns_add_u32 s8, s8, {MBA}')
    g(f's_lshl_b32 s9, {JC}, 13\ns_add_u32 s10, s9, {MBC}\ns_add_u32 s9, s9, {MBB}')
    g(f's_lshl_b32 s11, {JC}, 7\ns_add_u32 s11, s11, {X1}')
    g.vmwait('in')
    epoch_tag(g, RGB)
    silu_image(g, L, SB)
    unpack(g, Y, SB + 2)
    layernorm(g, Y, SW, SR, L.STAT)
    nload(g, UB, 22, 1024 * 8192, 8192, 's7', WQO, (0,), tag='wq')
    g('s_waitcnt vmcnt(8)')
    transpose(g, UA)
    g(f's_lshl_b32 s4, {ODD}, {10 if P["NAT"] else 7}\nv_add_u32 v{T + 7}, s4, v{NB}')
    nsplit(g, UA, L.ACTS, T + 7)
    publish32(g, L, 's47', 16384, True)
    g.stamp('g_mod')
    nload(g, UB, 22, 1024 * 8192, 8192, 's7', WQO, (1,), tag='wq')
    MP = RGA
    g.bits(MP, TID, [(8, 1, 16384), (3, 5, 256), (0, 2, 64), (2, 1, 32)], T + 7, MODP)
    g('s_waitcnt vmcnt(8)')
    transpose(g, UB)
    g(f's_mov_b32 s4, 8192\ns_mov_b32 s5, 32768\ns_mov_b32 s12, {32768 + 8192}')
    mloads = '\n'.join(f'buffer_load_dwordx4 {vr(ACC + 4 * i, 4)}, v{MP}, {S_WS}, {("0", "s5", "s4", "s12")[i >> 1]} offen offset:{16 * (i & 1)} sc1'
                       for i in range(8))
    g(f's_waitcnt vmcnt({P["MW"]})')
    g(mloads)
    attention(g, 'g_addr')
    attention(g, 'g_issue', range(P['GE']))
    g(f's_waitcnt vmcnt({8 + P["GE"]})')
    transpose(g, UB + 1)
    g(f's_waitcnt vmcnt({P["GE"]})')
    poll(g, mloads, range(ACC + 1, ACC + 32, 2), T, P['MSL'], preloaded=True, mask=-1)
    g.vm = []
    g.stamp('g_modseen')
    for i in range(4):
        g(f'v_add_f32 v{T + i}, v{ACC + 16 + 2 * i}, v{ACC + 24 + 2 * i}')
    for i in range(4):
        g(f'v_add_f32 v{ACC + i}, v{ACC + 2 * i}, v{ACC + 8 + 2 * i}')
    round4(g, T, T + 4)
    for i in range(4):
        g(f'v_add_f32 v{T + i}, 1.0, v{T + i}')
    round4(g, T, T + 4)
    pk4(g, 'v_pk_mul_f32', Y, Y, T)
    round4(g, Y, T + 4)
    round4(g, ACC, T + 4)
    pk4(g, 'v_pk_add_f32', Y, Y, ACC)
    pack(g, T, Y)
    actwrite(g, T, L.ACTH)
    g('s_waitcnt lgkmcnt(0)\ns_barrier')
    nsplit(g, UB, L.ACTH)
    g(f's_lshl_b32 s12, s7, 1\ns_add_u32 s12, s12, {QB}')
    g(f'v_cvt_pk_bf16_f32 v{T}, v{T}, v{T}\nv_lshl_or_b32 v{T}, v{T}, 16, {S_T16}')
    publish32(g, L, 's12', 16384, False)
    g.stamp('g_q')

    attention(g, 'g_issue', range(P['GE'], 16 * P['NUG']))
    if P['NUG']:
        attention(g, 'g_q')
    assert not P['NUG'] and P['NAT']
    assert P['GH'] and P['LQ'] == 1 and P['GJ'] == 1 and not P['GBG']
    g(f's_add_u32 s47, {JC}, 32')
    qjob_issue(g, UA, 's47', WMO, 1)
    g('s_mov_b32 s100, s15\ns_mov_b32 s101, s6')
    g.vm = [('q1', 0)] * 8
    qjob_voff(g, WMO)
    qjob_issue(g, UA + 1, JC, WMO)
    g('s_mov_b32 s68, s15\ns_mov_b32 s69, s6\ns_mov_b32 s15, s100\ns_mov_b32 s6, s101')
    g.vmwait(('q1', 0))
    sv, g.vm = g.vm, []
    qjob_finish(g, L, UA, 8, 9, 1)
    g.vm = sv
    g.bits(T + 5, TID, [(4, 2, 4096), (6, 3, 256), (0, 4, 16)], T + 7)
    kload(g, UC, 24, 4096 * 2048, JC, T + 5, lambda kb, t: 32 * kb + (t & 3) * 8 + (t >> 2), 'wo')
    g('s_mov_b32 s15, s68\ns_mov_b32 s6, s69')
    qjob_finish(g, L, UA + 1, 8, 9)
    if P['GJ'] > 1:
        assert P['LQ'] == 2 and not P['GBG']
        lp = g.label('L_gj')
        g(f's_add_u32 s47, {JC}, 64\n{lp}:')
        qjob_issue(g, UA, 's47', WMO)
        qjob_finish(g, L, UA, 8, 9)
        g(f's_add_u32 s47, s47, 64\ns_cmp_lt_u32 s47, {64 * P["GJ"]}\ns_cbranch_scc1 {lp}')
    if P['GBG']:
        g(f's_add_u32 s47, {JC}, 192')
        qjob_issue(g, UA, 's47', WMO)
        qjob_finish(g, L, UA, 8, 9)
    g(f's_and_b32 {ODD}, {JC}, 1')
    if P['NUG']:
        attention(g, 'g_compute')
        g.stamp('g_att')
        common_addr(g, L, False)
    g(f'v_lshlrev_b32 v{RO}, 4, v{TID}')
    g('s_waitcnt vmcnt(0)')
    g.vm = []
    transpose(g, UC)
    transpose(g, UC + 1)
    g.stamp('g_loaded')
    g(f's_lshr_b32 s4, {JC}, 1\ns_lshl_b32 s4, s4, 6\ns_lshl_b32 s5, {ODD}, 3\ns_add_u32 s4, s4, s5')
    g.bits(T, 0, [(1, 2, 16), (0, 1, 4)], T + 1, 's4')
    srd(g, S_B, 34, 2048)
    g(f'buffer_load_dword v{RB2}, v{T}, {S_B}, 0 offen')
    g(f'v_bfe_u32 v{T + 1}, v0, 3, 1\nv_lshlrev_b32 v{RGA}, 1, v{T}\nv_lshl_add_u32 v{RGA}, v{T + 1}, 14, v{RGA}')
    g(f'v_lshl_add_u32 v{OUTO}, v{T + 1}, 11, v{T}')
    srd(g, S_B, 16, 4096)
    g(f'buffer_load_dword v{RX}, v{OUTO}, {S_B}, 0 offen')
    if P['GAE']:
        skip = only_wave(g, 0)
        GR = ('s4', 's5', 's6', 's47')
        for i, r in enumerate(GR):
            g(f's_mov_b32 {r}, {MODL + 32768 * i}')
        poll(g, '\n'.join(f'buffer_load_dwordx2 {vr(ACC + 18 + 2 * i, 2)}, v{RGA}, {S_WS}, {r} offen sc1' for i, r in enumerate(GR)),
             range(ACC + 18, ACC + 26), T + 4, 16)
        pk4(g, 'v_pk_add_f32', ACC + 18, ACC + 18, ACC + 22)
        g(f'v_pk_add_f32 {vr(ACC + 18, 2)}, {vr(ACC + 18, 2)}, {vr(ACC + 20, 2)}\nv_cvt_pk_bf16_f32 v{RGB}, v{ACC + 18}, v{ACC + 19}')
        g(skip + ':')
    srd(g, S_B, 40, 4096)
    g.bits(RL, TID, [(6, 3, 128), (0, 1, 64), (4, 2, 16), (1, 2, 4)], T, L.PART)
    g.bits(PO, TID, [(3, 6, 8192), (0, 3, 16)], T)
    g(f's_add_u32 s12, s7, {MBB}')
    g.bits(AO, TID, [(8, 1, SLOTS * 256), (3, 3, 256), (6, 2, 64), (0, 3, 8)], T + 3)
    g.bits(OW, TID, [(6, 3, 32), (0, 3, 4), (5, 1, 2)], T + 3, L.OUTV)
    g.bits(T + 5, TID, [(8, 1, 128), (3, 3, 4)], T + 3)
    g('s_add_u32 s13, s8, 4096')
    g.bits(T + 2, 0, [(5, 1, 8192), (0, 5, 8)], T + 3)
    g(f's_lshr_b32 s4, {JC}, 1\ns_lshl_b32 s4, s4, 8\ns_add_u32 s4, s4, {STATS}')
    prefetch_code(g, 'L_proj_tail', 1, T + 6, ACC)
    if P['PRE'] == 1:
        g(f'buffer_load_dwordx4 {vr(ACC + 4, 4)}, v{RO}, {S_WS}, s9 offen sc1')
    tail_masks(g)
    g('s_waitcnt vmcnt(0)')
    g.warm_run('L_wg')
    g.stamp('g_ready')
    g('L_proj_tail:')
    g.warm_begin('L_wg')
    if P['XG'] == 1:
        g('s_branch L_gend')
    NT = 4 if P['NUG'] else 3
    aloads = lambda d: '\n'.join(f'buffer_load_dwordx2 {vr(d + 2 * k, 2)}, v{AO}, {S_WS}, {"s8" if k < 2 else "s13"} offen offset:{2048 * (k & 1)} sc1'
                                 for k in range(NT))
    lp, ok = g.label('L_p1'), only_wave(g, 0)
    g(f's_mov_b32 {S_SPIN}, {SPIN}\n{lp}:')
    g(aloads(ACC + 8).split('\n')[P['P1K']] + '\ns_waitcnt vmcnt(0)')
    check(g, range(ACC + 8 + 2 * P['P1K'], ACC + 10 + 2 * P['P1K']), ACC)
    g(f's_bcnt1_i32_b64 s5, vcc\ns_cmp_le_u32 s5, {P["P1TH"]}\ns_cbranch_scc1 {ok}')
    g(f's_sleep {P["P1SL"]}\ns_sub_u32 {S_SPIN}, {S_SPIN}, 1\ns_cbranch_scc0 {lp}\n{ok}:\ns_barrier')
    g.stamp('g_hint', (0, 1))
    if P['PRE'] == 2:
        g(f'buffer_load_dwordx4 {vr(ACC + 4, 4)}, v{RO}, {S_WS}, s9 offen sc1')
    g(f'v_mov_b32 v{T}, 0xff800000\nv_mov_b32 v{T + 1}, 0')
    g.setexec(-1 if P['NUG'] else ((1 << SPL) - 1) * 0x100000001)
    poll(g, f'buffer_load_dwordx2 {vr(T, 2)}, v{T + 2}, {S_WS}, s4 offen sc1', [T, T + 1], T + 4, 2)
    g.setexec(-1)

    def red32(r, t, op):
        for sh in (8, 4, 2, 1):
            g.nop(2)
            g(f'{op}_dpp v{r}, v{r}, v{r} row_ror:{sh} {DPP}')
        g(f'v_mov_b32 v{t}, v{r}')
        g.nop(2)
        g(f'v_permlane16_swap_b32 v{r}, v{t}\n{op} v{r}, v{r}, v{t}')
    g(f'v_and_b32 v{T}, {S_MASK}, v{T}\nv_mov_b32 v{T + 2}, v{T}')
    red32(T + 2, T + 3, 'v_max_f32')
    g(f'v_sub_f32 v{T}, v{T}, v{T + 2}\nv_mul_f32 v{T}, 0x3fb8aa3b, v{T}\nv_exp_f32 v{T}, v{T}\ns_nop 0')
    g(f'v_mul_f32 v{T + 1}, v{T + 1}, v{T}')
    red32(T + 1, T + 3, 'v_add_f32')
    g(f'v_rcp_f32 v{T + 1}, v{T + 1}\ns_nop 0\nv_mul_f32 v{T}, v{T}, v{T + 1}')
    for k in range(4):
        g(f'ds_bpermute_b32 v{WG + k}, v{T + 5}, v{T} offset:{32 * k}')
    g('s_waitcnt lgkmcnt(0)')
    g.stamp('g_wgt', (0, 1))
    if P['P2TH'] < P['P1TH']:
        lp, ok = g.label('L_p1'), only_wave(g, 0)
        g(f's_mov_b32 {S_SPIN}, {SPIN}\n{lp}:')
        g(aloads(ACC + 8).split('\n')[P['P1K']] + '\ns_waitcnt vmcnt(0)')
        check(g, range(ACC + 8 + 2 * P['P1K'], ACC + 10 + 2 * P['P1K']), ACC)
        g(f's_bcnt1_i32_b64 s5, vcc\ns_cmp_le_u32 s5, {P["P2TH"]}\ns_cbranch_scc1 {ok}')
        g(f's_sleep {P["P2SL"]}\ns_sub_u32 {S_SPIN}, {S_SPIN}, 1\ns_cbranch_scc0 {lp}\n{ok}:\ns_barrier')
        g.stamp('g_go', (0, 1))
    if P['W2TH']:
        skip = only_wave(g, 0)
        lp, ok = g.label('L_p2'), g.label('L_p2ok')
        g(f's_and_b32 s5, {JC}, 15\ns_cbranch_scc1 {skip}\ns_mov_b32 {S_SPIN}, {SPIN}\n{lp}:')
        g(aloads(T) + '\ns_waitcnt vmcnt(0)')
        check(g, range(T, T + 2 * NT), ACC)
        g(f's_bcnt1_i32_b64 s5, vcc\ns_cmp_le_u32 s5, {P["W2MISS"]}\ns_cbranch_scc1 {ok}')
        g(f's_sub_u32 {S_SPIN}, {S_SPIN}, 1\ns_cbranch_scc0 {lp}\n{ok}:')
        g(faddr('s46', C_A) + f'v_mov_b32 v{ACC}, {S_EPO}\ns_mov_b64 exec, 1\nbuffer_store_dword v{ACC}, off, {S_WS}, s98 sc1\ns_mov_b64 exec, -1')
        g(skip + ':')
    poll(g, aloads(T), range(T, T + 2 * NT), ACC, P['SLEEP'])
    g.stamp('g_apolled', (0, 1))
    g(f'v_mul_f32 v{T}, v{WG}, v{T}\nv_mul_f32 v{T + 1}, v{WG}, v{T + 1}')
    for k in range(1, NT):
        g(f'v_fmac_f32 v{T}, v{WG + k}, v{T + 2 * k}\nv_fmac_f32 v{T + 1}, v{WG + k}, v{T + 2 * k + 1}')
    g.nop(2)
    g(f'v_permlane32_swap_b32 v{T}, v{T + 1}\nv_add_f32 v{T}, v{T}, v{T + 1}\nv_mov_b32 v{T + 1}, v{T}')
    g.nop(2)
    g(f'v_permlane16_swap_b32 v{T}, v{T + 1}\nv_add_f32 v{T}, v{T}, v{T + 1}')
    g.nop(2)
    g(f'v_add_f32_dpp v{T}, v{T}, v{T} row_ror:8 {DPP}')
    g(f'v_cvt_pk_bf16_f32 v{T}, v{T}, v{T}\nds_write_b16 v{OW}, v{T}')
    g('s_waitcnt lgkmcnt(0)\ns_barrier')
    g.stamp('g_obar', (1,))
    if P['XG'] == 2:
        g('s_branch L_gend')
    ksplit_out(g, UC, PO, 's12')
    g.stamp('g_t2', (0, 1))
    if P['BW']:
        g('s_waitcnt vmcnt(0)')
    if P['BW'] == 2:
        g('s_barrier')
    skip = reduce('s9', 64, 0)
    unpack2(g, T + 6, RX)
    if P['REP']:
        g(f'v_lshrrev_b32 v{T + 3}, 4, v0\nv_lshl_add_u32 v{T + 3}, v{T + 3}, 13, v{T + 2}\ns_add_u32 s4, s11, 32768')
    else:
        g(f'v_lshlrev_b32 v{T + 3}, 3, v0')
    g(f'v_mov_b32 v{ACC + 16}, {S_MASK}')
    reduce_sum()
    g(f'v_pk_mul_f32 {vr(T, 2)}, {vr(T, 2)}, {vr(ACC + 18, 2)}')
    round2(g, T)
    g(f'v_pk_add_f32 {vr(T, 2)}, {vr(T, 2)}, {vr(T + 6, 2)}')
    g(f'v_cvt_pk_bf16_f32 v{RX}, v{T}, v{T + 1}')
    g(f'v_lshl_or_b32 v{T}, v{RX}, 16, {S_T16}\nv_and_or_b32 v{T + 1}, v{RX}, v{ACC + 16}, {S_T16}')
    if P['REP']:
        g(f'buffer_store_dwordx2 {vr(T, 2)}, v{T + 3}, {S_WS}, s11 offen sc1\nbuffer_store_dwordx2 {vr(T, 2)}, v{T + 3}, {S_WS}, s4 offen sc1')
    else:
        g.setexec(0xffff)
        g(f'buffer_store_dwordx2 {vr(T, 2)}, v{T + 3}, {S_WS}, s11 offen sc1')
        g.setexec(-1)
    g(skip + ':')
    g.stamp('g_x1', (0, 1))
    g('s_barrier')
    skip = reduce('s10', 56, 3)
    unpack2(g, T + 2, RB2)
    unpack2(g, T + 6, RX)
    reduce_sum()
    g(f'v_pk_add_f32 {vr(T, 2)}, {vr(T, 2)}, {vr(T + 2, 2)}')
    round2(g, T)
    g(f'v_pk_mul_f32 {vr(T, 2)}, {vr(T, 2)}, {vr(ACC + 18, 2)}')
    round2(g, T)
    g(f'v_pk_add_f32 {vr(T, 2)}, {vr(T, 2)}, {vr(T + 6, 2)}')
    g(f'v_cvt_pk_bf16_f32 v{T}, v{T}, v{T + 1}')
    g.setexec(0xffff)
    g(f'buffer_store_dword v{T}, v{OUTO}, {S_B}, 0 offen')
    g(f's_cmp_lg_u32 s2, 0\ns_cbranch_scc1 {skip}\nv_mov_b32 v{T + 1}, {S_EPO}\ns_mov_b64 exec, 1')
    g(f'buffer_store_dword v{T + 1}, off, {S_WS}, 0 sc1')
    g(skip + ':')
    g.warm_end()
    g('L_gend:')
    g.stamp('g_out', (0, 1, 3))
    if P['PADTO']:
        if P['PADWG'] >= 0:
            g(f's_cmp_lg_u32 s2, {P["PADWG"]}\ns_cbranch_scc1 L_nopad')
        g(f'L_pad:\ns_memrealtime s[4:5]\ns_waitcnt lgkmcnt(0)\ns_sub_u32 s4, s4, s70\ns_cmp_lt_u32 s4, {P["PADTO"]}\ns_cbranch_scc1 L_pad\nL_nopad:')
    write_stamps(g)
    g('s_endpgm')


MLP_LDS = 4096
W1L = 4096
LDS_TOTAL = W1L + 131072


def mlp(g):
    L = Lds(MLP_LDS)
    PO, XO, SW, SR, B1 = 8, 9, 10, 11, 17
    C1, SH = 12, 18
    JM = 's14'
    g.vm = []
    g('L_mlp:')
    g.warm_begin('L_wp')
    if P['XW'] == 1:
        write_stamps(g)
        g('s_endpgm')
    if P['W2TH']:
        skip = only_wave(g, 0)
        fpoll(g, ACC + 4, 's101', C_A, P['LSL'])
        g(skip + ':')
    g(f's_lshl_b32 s4, s3, 6\nv_add_u32 v{TID}, s4, v0')
    g(f's_lshl_b32 s7, {JM}, 7')
    MP, MB, XV = 16, BLK(0), ACC
    g.bits(MP, TID, [(8, 1, 16384), (3, 5, 128), (0, 2, 32), (2, 1, 16)], T, MODL + 4096)
    g(f'v_add_u32 v{MP + 6}, 4096, v{MP}\ns_mov_b32 s8, 32768\ns_mov_b32 s9, 65536\ns_mov_b32 s10, 98304')
    mloads = '\n'.join(f'buffer_load_dwordx4 {vr(MB + 4 * i, 4)}, v{MP + 6 * (i >> 2)}, {S_WS}, {("0", "s8", "s9", "s10")[i & 3]} offen sc1'
                       for i in range(8) if (i & 3) < (1 << P['LQ']))
    early = P['GH'] or P['GJ'] >= 3
    srd(g, S_B, 30, 3584 * 2)
    g.bits(T + 4, TID, [(2, 3, 16), (5, 2, 4), (7, 1, 2)], T, 's7')
    g.bits(T + 5, TID, [(4, 2, 2048), (6, 3, 256), (0, 4, 16)], T + 7)
    g('s_barrier')
    g.vmop(f'buffer_load_ushort v{B1}, v{T + 4}, {S_B}, 0 offen', 'k')
    if early and P['MLD'] < 0:
        g.vmop(mloads, 'k')
    prefetch_code(g, 'L_mlp_tail', 1, T + 4, ACC + 8, 'k')
    kload(g, UB, 32, 3584 * 2048, JM, T + 5, lambda kb, t: 32 * kb + 4 * t, 'w2')
    common_addr(g, L, True)
    g.bits(XO, TID, [(2, 6, 128), (8, 1, 64), (0, 2, 16)], T, X1)
    if P['REP']:
        g(f's_and_b32 s4, s2, 7\ns_lshl_b32 s4, s4, 13\nv_add_u32 v{XO}, s4, v{XO}')
    g.bits(PO, TID, [(3, 6, 8192), (0, 3, 16)], T)
    g(f's_add_u32 s13, s7, {MBC}')
    g(f's_lshl_b32 s4, s3, 3\nv_mov_b32 v{SW}, s4\ns_and_b32 s4, s4, 32\nv_mov_b32 v{SR}, s4')
    if P['MLD'] >= 0:
        g(f's_lshl_b32 s4, s3, 14\ns_add_u32 s4, s4, {W1L + 8192}\nv_lshl_add_u32 v{T}, v0, 4, s4')
        for i in range(4):
            g(f'ds_read_b128 {vr(MB + 4 * (i & 1) + 16 * (i >> 1), 4)}, v{T} offset:{1024 * i}')
    tail_masks(g, True)
    g('s_waitcnt lgkmcnt(0)')
    xload = f'buffer_load_dwordx4 {vr(XV, 4)}, v{XO}, {S_WS}, 0 offen sc1'

    def w2_finish():
        g.vmwait(('w2', 0))
        transpose(g, UB)
        if not early:
            g.vmop(mloads, 'k')
        g.vmwait(('w2', 1))
        g.vmop(xload, 'x')
        transpose(g, UB + 1)
        g.stamp('m_w2', (2,))
    if not early:
        w2_finish()
    g.vmwait('k')
    poll(g, mloads, [r for r in range(MB, MB + 32) if ((r - MB) & 15) < (4 << P['LQ'])], T, P['MLS'], preloaded=True)
    for d, b in ((SH, MB), (C1, MB + 16)):
        if P['LQ'] == 2:
            pk4(g, 'v_pk_add_f32', b, b, b + 8)
            pk4(g, 'v_pk_add_f32', b + 4, b + 4, b + 12)
        pk4(g, 'v_pk_add_f32', d, b, b + 4)
    round4(g, SH, T)
    round4(g, C1, T)
    for i in range(4):
        g(f'v_add_f32 v{C1 + i}, 1.0, v{C1 + i}')
    round4(g, C1, T)
    g(f'v_lshlrev_b32 v{B1}, 16, v{B1}')
    KC = BLK(1)
    if P['LNM']:
        g.bits(SW, TID, [(8, 1, 128), (4, 2, 16), (6, 2, 4)], T)
        g.bits(SR, TID, [(8, 1, 128)], T)
        g(f'v_add_f32 v{T}, v{C1}, v{C1 + 1}\nv_mul_f32 v{T + 1}, v{C1}, v{C1}\nv_mul_f32 v{T + 2}, v{C1}, v{SH}')
        g(f'v_add_f32 v{T + 3}, v{SH}, v{SH + 1}\nv_mul_f32 v{T + 4}, v{SH}, v{SH}\nv_mov_b32 v{T + 5}, 0')
        for i in range(1, 4):
            if i > 1:
                g(f'v_add_f32 v{T}, v{T}, v{C1 + i}\nv_add_f32 v{T + 3}, v{T + 3}, v{SH + i}')
            g(f'v_fmac_f32 v{T + 1}, v{C1 + i}, v{C1 + i}\nv_fmac_f32 v{T + 2}, v{C1 + i}, v{SH + i}\nv_fmac_f32 v{T + 4}, v{SH + i}, v{SH + i}')
        g.nop(1)
        blocksum6(g, T, SW, SR, L.STAT + 256, KC)
        for i in range(5):
            g(f'v_mul_f32 v{KC + i}, 0x3a800000, v{KC + i}')
    assert not ('p' in P['WREG'] and 'm' in P['WREG'])
    g.warm_run('L_wm')
    if early:
        w2_finish()
    g.warm_end()
    g.stamp('m_ready', (0, 2))
    g('L_mlp_tail:')
    g.warm_begin('L_wm')
    g('s_waitcnt vmcnt(0)')
    poll(g, xload, range(XV, XV + 4), T, mask=0xffff, preloaded=True)
    g.stamp('m_x1seen', (0, 2))
    for i in range(4):
        g(f'v_and_b32 v{XV + i}, {S_MASK}, v{XV + i}')
    if P['LNM']:
        UV, R = ACC + 4, ACC + 8
        pk4(g, 'v_pk_mul_f32', UV, XV, C1)
        g(f'v_pk_add_f32 {vr(R, 2)}, {vr(XV, 2)}, {vr(XV + 2, 2)}\nv_pk_mul_f32 {vr(R + 2, 2)}, {vr(XV, 2)}, {vr(XV, 2)}')
        g(f'v_pk_add_f32 {vr(R + 4, 2)}, {vr(UV, 2)}, {vr(UV + 2, 2)}\nv_pk_mul_f32 {vr(R + 6, 2)}, {vr(UV, 2)}, {vr(UV, 2)}')
        g(f'v_pk_mul_f32 {vr(R + 8, 2)}, {vr(UV, 2)}, {vr(C1, 2)}\nv_pk_mul_f32 {vr(R + 10, 2)}, {vr(UV, 2)}, {vr(SH, 2)}')
        g(f'v_pk_fma_f32 {vr(R + 2, 2)}, {vr(XV + 2, 2)}, {vr(XV + 2, 2)}, {vr(R + 2, 2)}')
        g(f'v_pk_fma_f32 {vr(R + 6, 2)}, {vr(UV + 2, 2)}, {vr(UV + 2, 2)}, {vr(R + 6, 2)}')
        g(f'v_pk_fma_f32 {vr(R + 8, 2)}, {vr(UV + 2, 2)}, {vr(C1 + 2, 2)}, {vr(R + 8, 2)}')
        g(f'v_pk_fma_f32 {vr(R + 10, 2)}, {vr(UV + 2, 2)}, {vr(SH + 2, 2)}, {vr(R + 10, 2)}')
        for d, i in enumerate((0, 4, 2, 6, 8, 10)):
            g(f'v_add_f32 v{T + d}, v{R + i}, v{R + i + 1}')
        blocksum6(g, T, SW, SR, L.STAT, R, finish=False)
        M, A, E1, E2, E3, EH, V2 = T, T + 1, T + 2, T + 3, T + 4, T + 5, T + 6
        K = '0x3a800000'
        rnd = lambda r: f'v_cvt_pk_bf16_f32 v{r}, 0, v{r}'
        sum4 = lambda i: [f'v_add_f32 v{R + 4 * i}, v{R + 4 * i}, v{R + 4 * i + 1}', f'v_add_f32 v{R + 4 * i + 2}, v{R + 4 * i + 2}, v{R + 4 * i + 3}',
                          f'v_add_f32 v{R + 4 * i}, v{R + 4 * i}, v{R + 4 * i + 2}', f'v_mul_f32 v{R + 4 * i}, {K}, v{R + 4 * i}']
        tail = lambda v: [f'v_max_f32 v{v}, 0, v{v}', rnd(v), f'v_add_f32 v{v}, 0x3727c5ac, v{v}', rnd(v), f'v_sqrt_f32 v{v}, v{v}', rnd(v),
                          f'v_rcp_f32 v{v}, v{v}']
        g('s_waitcnt lgkmcnt(4)')
        for x, y in zip(sum4(0), sum4(1)):
            g(x + '\n' + y)
        g('s_waitcnt lgkmcnt(0)')
        g.stamp('m_ln1', (2,))
        fill = [f'v_cvt_pk_bf16_f32 v{M}, 0, v{R}']
        for q in zip(sum4(2), sum4(3), sum4(4), sum4(5)):
            fill += list(q)
        fill += [f'v_fma_f32 v{E1}, -v{M}, v{KC}, v{R + 8}', f'v_fma_f32 v{E2}, -v{M}, v{KC + 1}, v{R + 20}',
                 f'v_fma_f32 v{E3}, v{M}, v{KC + 2}, -v{R + 16}', f'v_add_f32 v{E2}, v{E2}, v{E2}', f'v_sub_f32 v{E3}, v{E3}, v{R + 16}',
                 f'v_fma_f32 v{UV}, -v{M}, v{C1}, v{UV}', f'v_fma_f32 v{E3}, v{M}, v{E3}, v{R + 12}']
        weave(g, [f'v_fma_f32 v{A}, -v{R}, v{R}, v{R + 4}'] + tail(A), fill, 2)
        fill = [f'v_fma_f32 v{UV + i}, -v{M}, v{C1 + i}, v{UV + i}' for i in range(1, 4)]
        fill += [f'v_cvt_pk_bf16_f32 v{E1}, 0, v{EH}'] + [f'v_fma_f32 v{UV + i}, v{UV + i}, v{A}, v{SH + i}' for i in range(4)]
        fill += [f'v_sub_f32 v{UV + i}, v{UV + i}, v{E1}' for i in range(4)]
        g(f'v_fma_f32 v{EH}, v{E1}, v{A}, v{KC + 3}')
        weave(g, [f'v_fma_f32 v{V2}, v{E3}, v{A}, v{E2}', f'v_fma_f32 v{V2}, v{V2}, v{A}, v{KC + 4}', f'v_fma_f32 v{V2}, -v{EH}, v{EH}, v{V2}'] + tail(V2), fill, 1)
        for i in range(4):
            g(f'v_mul_f32 v{UV + i}, v{UV + i}, v{V2}')
        pack(g, T + 6, UV)
    else:
        layernorm(g, XV, SW, SR, L.STAT)
        g.stamp('m_ln1', (2,))
        pk4(g, 'v_pk_mul_f32', XV, XV, C1)
        round4(g, XV, T + 6)
        pk4(g, 'v_pk_add_f32', XV, XV, SH)
        round4(g, XV, T + 6)
        layernorm(g, XV, SW, SR, L.STAT + 64, last_packed=True)
    actwrite(g, T + 6, L.ACTH)
    g('s_waitcnt lgkmcnt(0)\ns_barrier')
    g.stamp('m_ln2', (2,))
    nsplit(g, UC, L.ACTH, fast=bool(P['SEL']))
    g.stamp('m_t3', (2,))
    g(f'''v_cvt_pk_bf16_f32 v{T}, 0, v{T}
          v_mov_b32 v{T + 2}, 0xc0135761
          v_add_f32 v{T}, v{T}, v{B1}
          v_cvt_pk_bf16_f32 v{T}, 0, v{T}
          v_mul_f32 v{T + 1}, v{T}, v{T}
          v_fmac_f32 v{T + 2}, 0xbdd2d3e8, v{T + 1}
          v_mul_f32 v{T + 1}, v{T + 2}, v{T}
          v_exp_f32 v{T + 1}, v{T + 1}
          s_nop 0
          v_add_f32 v{T + 1}, 1.0, v{T + 1}
          v_rcp_f32 v{T + 1}, v{T + 1}
          s_nop 0
          v_mul_f32 v{T}, v{T}, v{T + 1}
          v_cvt_pk_bf16_f32 v{T}, v{T}, v{T}
          ds_write_b16 v{NO}, v{T}
          s_waitcnt lgkmcnt(0)
          s_barrier''')
    g.stamp('m_gelu', (2,))
    ksplit_out(g, UB, PO, 's13')
    g.warm_end()
    g.stamp('m_t4', (0, 2))
    write_stamps(g)
    g('s_endpgm')


def latem(g):
    L = Lds(MLP_LDS)
    g.vm = []
    g('L_late:')
    if P['XL']:
        write_stamps(g)
        g('s_endpgm')
    g(f's_lshl_b32 s4, s3, 6\nv_add_u32 v{TID}, s4, v0')
    LQ = P['LQ']
    qjob_voff(g, 8, LQ)
    g(f's_add_u32 s14, s14, {(16 << LQ) * (3 if P["GH"] else P["GJ"])}')
    g.bits(T + 6, TID, [(3, 6, 64), (0, 2, 16), (2, 1, 8)], T)
    srd(g, S_B, 36, 4096)
    g('s_barrier')
    g.stamp('l_bar', (4,))
    g.vmop(f'buffer_load_dwordx2 {vr(12, 2)}, v{T + 6}, {S_B}, 0 offen', 'in')
    qjob_issue(g, UA, 's14', 8, LQ)
    g.stamp('l_iss', (4,))
    common_addr(g, L, False)
    g.stamp('l_addr', (4,))
    g.vmwait('in')
    g.stamp('l_c', (4,))
    silu_image(g, L, 12)
    g('s_waitcnt lgkmcnt(0)\ns_barrier')
    g.stamp('l_silu', (4,))
    g('L_late2:')
    qjob_finish(g, L, UA, 9, 10, LQ)
    g.stamp('l_pub1', (0, 1, 2, 4))
    if not P['GBG'] and LQ == 2 and P['GJ'] == 1:
        done = g.label('L_latedone')
        g(f's_cmp_ge_u32 s14, 128\ns_cbranch_scc1 {done}\ns_add_u32 s14, s14, 128\ns_barrier')
        qjob_issue(g, UA, 's14', 8)
        g(f's_branch L_late2\n{done}:')
    write_stamps(g)
    g('s_endpgm')


def attention(g, mode='main', arg=None):
    KO, VO, QO, VSC, VMAX, OO = 1, 2, 3, 4, 5, 6
    Q0, SP, TMP, T2 = 8, 16, 40, 56
    LA, GA = T2 + 7, T2 + 6
    SLOT = lambda s: 64 + 32 * s
    AC = SLOT(0)
    U = lambda u: 's%d' % (4 + 2 * u)
    U2 = lambda u: 's%d' % (5 + 2 * u)
    S_R, S_CU, S_GA, S_T = 's47', 's68', 's96', 's69'
    S_B4, S_B5, S_O4, S_KV = 's46', 's100', 's101', 's101'
    MX, OBUF, OST = 0, W1L, 16384
    QL, QF = 1024, 3072
    S_ST = 's97'
    NN = (SPL - NMR) * 8
    NUG = P['NUG']
    n4 = min(NN, 1024 - 4 * WPR - 64 * NUG)
    EX = 6 * P['A5W']
    n5 = 1024 - 4 * WPR - n4 - 64 * NUG - EX
    RK = QF + 4
    LT = P['LIGHT']
    S_B3, S_O3 = 's0', 's45'
    assert 0 <= n5 <= NN
    base = [0, WPR, 2 * WPR, 3 * WPR, 4 * WPR, 4 * WPR + n4]
    VSLOT = [1, 2, 3, 1, 4, 5] if mode == 'main' else [NUG + u for u in range(NUG)]

    def unit_addr(u):
        g(f's_add_u32 {U(u)}, {S_GA}, {"s98" if u < (5 if n4 == NN else 4) else S_T}')
        if u:
            g(f's_add_u32 {U(u)}, {U(u)}, {base[u]}')
        g(f's_and_b32 {U(u)}, {U(u)}, 1023\ns_lshl_b32 {U(u)}, {U(u)}, 13\ns_add_u32 {U2(u)}, {U(u)}, 4096')

    def entry():
        g.vm = []
        g('L_attn:')
        g(f'''s_sub_u32 {S_T}, s2, {NG}
              s_mul_hi_u32 {S_R}, {S_T}, {(1 << 32) // SPL + 1}
              s_mul_i32 {S_CU}, {S_R}, {SPL - (1 if P["ROT"] else 0)}
              s_sub_u32 {S_CU}, {S_T}, {S_CU}
              s_sub_u32 {S_T}, {S_CU}, {SPL}
              s_cselect_b32 {S_CU}, {S_CU}, {S_T}
              s_lshl_b32 s98, {S_CU}, 3
              s_add_u32 s98, s98, s3
              s_mul_i32 {S_GA}, {S_R}, {P["PH"]}''')
        unit_addr(0)
        g.bits(KO, 0, [(1, 1, 1024), (2, 2, 256), (0, 1, 64), (4, 2, 16)], 8)
        g(f's_lshl_b32 s99, {S_R}, 23\ns_mov_b32 s58, 0x800000\ns_mov_b32 s59, 0x20000')
        g.stamp('a_prek', (5,))
        g('s_waitcnt lgkmcnt(0)')
        g.stamp('a_karg', (5,))
        g('s_add_u32 s56, s18, s99\ns_addc_u32 s57, s19, 0')

    def entry2():
        consts(g)
        g(f's_add_u32 s60, s20, s99\ns_addc_u32 s61, s21, 0\ns_mov_b32 s62, 0x800000\ns_mov_b32 s63, 0x20000')
        g(f'''s_mul_i32 {S_T}, s3, {SPL - NMR}
              s_add_u32 {S_T}, {S_T}, {S_CU}
              s_cmp_lt_u32 {S_CU}, {SPL - NMR}
              s_cselect_b32 {S_T}, {S_T}, 1023''')
        for u in range(1, NU):
            unit_addr(u)
        if LT:
            g(f's_add_u32 s99, {S_GA}, {S_T}\ns_add_u32 s99, s99, {base[3] + NN + 8 - LT - n5}\ns_and_b32 s99, s99, 1023\ns_lshl_b32 s99, s99, 13')
            g(f's_cmp_ge_u32 {S_T}, {n5}\ns_cselect_b32 {U(5)}, s99, {U(5)}\ns_add_u32 {U2(5)}, {U(5)}, 4096')
            g(f's_sub_u32 s99, s98, {NN + 8 - LT}\ns_cmp_lt_u32 s99, {LT}\ns_cselect_b32 {S_B3}, 0xff800000, 0')
        g(f'v_lshlrev_b32 v{VO}, 4, v0')
        g(f's_cmp_lt_u32 {S_T}, {n5 + LT}\ns_cselect_b32 s98, 0, 0x1000000\ns_cselect_b32 {S_B5}, 0, 0xff800000')
        g(f'v_add_u32 v{OO + 1}, s98, v{KO}')
        if EX:
            skip = g.label('L_noex')
            g(f's_cmp_le_u32 {S_CU}, {SPL - NMR}\ns_cbranch_scc1 {skip}\ns_cmp_ge_u32 s3, {P["A5W"]}\ns_cbranch_scc1 {skip}')
            g(f's_mul_i32 {U(4)}, s3, 6\ns_add_u32 {U(4)}, {U(4)}, {S_CU}\ns_add_u32 {U(4)}, {U(4)}, {S_GA}\ns_add_u32 {U(4)}, {U(4)}, {1024 - EX - 18}')
            g(f's_and_b32 {U(4)}, {U(4)}, 1023\ns_lshl_b32 {U(4)}, {U(4)}, 13\ns_add_u32 {U2(4)}, {U(4)}, 4096\ns_mov_b32 {S_T}, 0')
            g(skip + ':')
        g(f's_cmp_lt_u32 {S_T}, {n4}\ns_cselect_b32 {S_O4}, 0, 0x1000000\ns_cselect_b32 {S_B4}, 0, 0xff800000')
        g(f'v_add_u32 v{OO}, {S_O4}, v{KO}')

    def slice_index(d, t):
        if not LT:
            g(f's_mul_i32 {d}, {S_R}, {NMR}\ns_add_u32 {d}, {d}, {S_CU}\ns_sub_u32 {d}, {d}, {SPL - NMR}')
            return
        g(f'''s_mul_i32 {d}, {S_R}, 6
              s_add_u32 {d}, {d}, {S_CU}
              s_sub_u32 {d}, {d}, {SPL - NMR + 1 - 4}
              s_mul_hi_u32 {t}, {d}, {(1 << 32) // 7 + 1}
              s_add_u32 {d}, {d}, {t}
              s_sub_u32 {d}, {d}, 4
              s_lshl_b32 {t}, {S_R}, 3
              s_add_u32 {t}, {t}, 3
              s_min_u32 {t}, {t}, 55
              s_cmp_eq_u32 {S_CU}, {SPL - NMR}
              s_cselect_b32 {d}, {t}, {d}''')

    def load(n, pos):
        i = n & 7
        if n < 48:
            u = n >> 3
            vo = KO if u < 4 else OO + u - 4
            if u == 3 and LT:
                vo = T2 + 3
                if i == 0:
                    g(f's_lshr_b32 {S_T}, {S_B3}, 7\nv_add_u32 v{vo}, {S_T}, v{KO}')
            if u == 5 and EX:
                l1, l2 = g.label('L_k5'), g.label('L_k5j')
                g(f's_cmp_lt_u32 {S_CU}, {SPL - NMR}\ns_cbranch_scc1 {l1}')
                if i == 0:
                    g(f's_lshr_b32 {S_T}, {S_B4}, 7\nv_add_u32 v{vo}, {S_T}, v{VO}')
                g(f'buffer_load_dwordx4 {vr(SLOT(u) + 4 * i, 4)}, v{vo}, {S_B}, {U2(4) if i >= 4 else U(4)} offen offset:{(i & 3) * 1024} nt')
                g(f's_branch {l2}\n{l1}:')
            g.vmop(f'buffer_load_dwordx4 {vr(SLOT(u) + 4 * i, 4)}, v{vo}, {S_A}, {U2(u) if i >= 4 else U(u)} offen '
                   f'offset:{((i >> 1) & 1) * 2048 + (i & 1) * 128} nt', pos)
            if u == 5 and EX:
                g(l2 + ':')
        elif n < 64:
            if n == 48:
                l1, l2 = g.label('L_xv'), g.label('L_xj')
                g(f's_lshl_b32 s98, s3, 14\ns_add_u32 m0, s98, {W1L}\ns_mov_b32 s95, 0x20000')
                g(f's_cmp_lt_u32 {S_CU}, {SPL - NMR}\ns_cbranch_scc1 {l1}')
                g(f's_lshl_b32 {S_T}, s3, 6\nv_add_u32 v{T2 + 1}, {S_T}, v0')
                nvoff(g, OO, 7168, T2 + 1, T2 + 2)
                g(f'v_mov_b32 v{OO + 1}, v{OO}')
                slice_index(S_T, 's98')
                g(f's_lshl_b32 {U(4)}, {S_T}, 7\ns_add_u32 {U(5)}, {U(4)}, {512 * 7168}\ns_mov_b32 {U2(4)}, {nstep() * 7168}')
                g(f's_mov_b32 s92, s28\ns_mov_b32 s93, s29\ns_mov_b32 s94, {1024 * 7168}')
                g(f's_branch {l2}\n{l1}:')
                g(f'v_sub_u32 v{T2 + 1}, v{VO}, v{KO}\nv_add_u32 v{OO}, v{OO}, v{T2 + 1}\nv_add_u32 v{OO + 1}, v{OO + 1}, v{T2 + 1}')
                g(f's_mov_b32 {U2(4)}, 1024\ns_mov_b32 s92, s60\ns_mov_b32 s93, s61\ns_mov_b32 s94, s62')
                g(l2 + ':')
            u = 4 + ((n - 48) >> 3)
            if n > 48:
                g('s_add_u32 m0, m0, 1024')
            g(f's_add_u32 {U(u)}, {U(u)}, {U2(4)}' if i else 's_nop 0')
            g.vmop(f'buffer_load_dwordx4 v{OO + u - 4}, s[92:95], {U(u)} offen nt lds', pos)
        else:
            u = (n - 64) >> 3
            vo = VO
            if u == 3 and LT:
                vo = OO
                if i == 0:
                    g(f's_lshr_b32 {S_T}, {S_B3}, 7\nv_add_u32 v{vo}, {S_T}, v{VO}')
            g.vmop(f'buffer_load_dwordx4 {vr(SLOT(VSLOT[u]) + 4 * i, 4)}, v{vo}, {S_B}, {U2(u) if i >= 4 else U(u)} offen '
                   f'offset:{(i & 3) * 1024} nt', pos)

    def mailbox():
        g.bits(GA, 0, [(5, 1, MBA_ST), (0, 5, 8)], T2)
        g(f'''s_and_b32 {S_T}, {S_R}, 3
              s_lshl_b32 {S_T}, {S_T}, 3
              s_add_u32 {S_T}, {S_T}, s3
              s_mul_i32 {S_T}, {S_T}, {2 * MBA_ST}
              s_lshr_b32 {S_GA}, {S_R}, 2
              s_mul_i32 {S_GA}, {S_GA}, {SLOTS}
              s_add_u32 {S_GA}, {S_GA}, {S_CU}
              s_lshl_b32 {S_GA}, {S_GA}, 8
              s_add_u32 {S_GA}, {S_GA}, {S_T}
              s_add_u32 {S_GA}, {S_GA}, {MBA}''')

    def setup():
        srd(g, S_WS, 44, WS_SIZE)
        if P['RANK'] or P['DBGST'] >= 0:
            srd(g, S_DBG, 42, 256)
        mailbox()
        g.vmop(epoch_load(T2 + 2), 'ep')
        if P['PFA'] == 1:
            prefetch_code(g, 'L_attn_body', 2, 8, TMP, 'pf')
        if P['PFA'] == 2:
            skip = g.label('L_nopf')
            g(f's_cmp_ge_u32 s2, {NG + 8}\ns_cbranch_scc1 {skip}')
            prefetch_code(g, 'L_attn_body', 2, 8, TMP)
            g(skip + ':')
        if P['TLB']:
            skip = g.label('L_notlb')
            sh = P['TLB']
            g(f'v_lshlrev_b32 v8, {sh}, v0')
            g.setexec((1 << min(64, 1 << (23 - sh))) - 1 if sh > 17 else -1)
            g(f's_cmp_eq_u32 s3, 1\ns_cbranch_scc0 {skip}_a\nbuffer_load_dword v{TMP + 4}, v8, {S_A}, 0 offen nt\n{skip}_a:')
            g(f's_cmp_eq_u32 s3, 2\ns_cbranch_scc0 {skip}_b\nbuffer_load_dword v{TMP + 4}, v8, {S_B}, 0 offen nt\n{skip}_b:')
            for w, (ptr, size) in enumerate(((28, 7 << 20), (32, 7 << 20), (38, 12 << 20), (44, WS_SIZE))):
                l = f'{skip}_{w}'
                g(f's_cmp_eq_u32 s3, {3 + w}\ns_cbranch_scc0 {l}')
                g(f's_mov_b32 s92, s{ptr}\ns_mov_b32 s93, s{ptr + 1}\ns_mov_b32 s94, {size}\ns_mov_b32 s95, 0x20000')
                g(f'buffer_load_dword v{TMP + 4}, v8, s[92:95], 0 offen offset:2048 {"sc1" if ptr == 44 else "nt"}')
                if size > (8 << 20):
                    g(f's_mov_b32 {S_T}, {8 << 20}\nv_add_u32 v9, {S_T}, v8\nbuffer_load_dword v{TMP + 4}, v9, s[92:95], 0 offen nt')
                g(l + ':')
            g.setexec(-1)
        g(f's_and_b32 {S_KV}, {S_R}, 3\ns_lshl_b32 {S_KV}, {S_KV}, 2')
        g.bits(QO, 0, [(0, 3, 256), (3, 1, 64), (4, 2, 16)], 8)
        g.bits(LA, 0, [(0, 4, 64)], 8)
        g(f's_lshl_b32 {S_T}, s3, 3\nv_add_u32 v8, {S_T}, v{LA}\nv_mov_b32 v9, -1\nds_write_b32 v8, v9 offset:{MX + 4}')
        g(f'v_mov_b32 v{T2}, 0\nds_write_b32 v{T2}, v{T2} offset:{QF}\ns_mov_b32 {S_ST}, 0\ns_waitcnt lgkmcnt(0)\ns_barrier')
        g(f'v_mov_b32 v{VSC}, 0x3db504f3\nv_mov_b32 v{VMAX}, 0xff800000')
        g('L_attn_body:')

    def readback():
        if EX:
            skip = g.label('L_noex')
            g(f's_cmp_lt_u32 {S_CU}, {SPL - NMR}\ns_cbranch_scc1 {skip}')
            pv(4, 5)
            g(skip + ':')
        g(f's_lshl_b32 {S_T}, s3, 14\ns_add_u32 {S_T}, {S_T}, {W1L}\nv_add_u32 v{T2}, {S_T}, v{VO}')
        for i in range(16):
            g(f'ds_read_b128 {vr(SLOT(4) + 4 * i, 4)}, v{T2} offset:{i * 1024}')

    def lds_units():
        l1, l2 = g.label('L_w1'), g.label('L_w1j')
        g(f's_cmp_ge_u32 {S_CU}, {SPL - NMR}\ns_cbranch_scc1 {l1}')
        g('s_waitcnt lgkmcnt(8)')
        pv(4)
        g('s_waitcnt lgkmcnt(0)')
        pv(5)
        g(f's_branch {l2}\n{l1}:')
        g('s_waitcnt lgkmcnt(8)')
        transpose(g, UC, T2)
        g('s_waitcnt lgkmcnt(0)')
        transpose(g, UC + 1, T2)
        g(l2 + ':')

    def qstep(final=False):
        skip = only_wave(g, P['QW'])
        l1, l3, top = g.label('L_q1'), g.label('L_q3'), g.label('L_qtop')
        if final:
            g(f's_mov_b32 {S_SPIN}, {SPIN}\n{top}:')
        g(f's_cmp_eq_u32 {S_ST}, 2\ns_cbranch_scc1 {skip}')
        if final:
            g(f's_waitcnt vmcnt(0)\ns_sub_u32 {S_SPIN}, {S_SPIN}, 1\ns_cbranch_scc1 {l3}')
        g(f's_cmp_eq_u32 {S_ST}, 0\ns_cbranch_scc1 {l1}')
        check(g, range(TMP, TMP + 16), T2, 0xffff)
        g(f's_cbranch_vccz {l3}')
        if final:
            g(f's_sleep {P["QSL"]}')
        g(l1 + ':')
        g(f's_lshl_b32 {S_T}, {S_R}, 12\ns_add_u32 {S_T}, {S_T}, {QB}\ns_mov_b32 {S_ST}, 1')
        for i in range(4):
            g(f'buffer_load_dwordx4 {vr(TMP + 4 * i, 4)}, v{VO}, {S_WS}, {S_T} offen offset:{1024 * i} sc1')
        g(f's_branch {top if final else skip}')
        g(l3 + ':')
        g(f'v_lshlrev_b32 v{T2}, 3, v0')
        for i in range(8):
            g(f'v_perm_b32 v{Q0 + i}, v{TMP + 2 * i + 1}, v{TMP + 2 * i}, {S_HI}')
        for i in range(4):
            g(f'ds_write_b64 v{T2}, {vr(Q0 + 2 * i, 2)} offset:{QL + 512 * i}')
        g(f'v_mov_b32 v{T2}, 0\nv_mov_b32 v{T2 + 1}, 1\ns_mov_b32 {S_ST}, 2\ns_waitcnt lgkmcnt(0)')
        g(f'ds_write_b32 v{T2}, v{T2 + 1} offset:{QF}')
        g(skip + ':')

    def qget():
        g.stamp('a_qwait')
        if P['NOQ']:
            return
        qstep(final=True)
        lp, ok = g.label('L_qf'), g.label('L_qfok')
        g(f'v_mov_b32 v{T2}, 0\ns_mov_b32 {S_SPIN}, {SPIN * 16}\n{lp}:')
        g(f'ds_read_b32 v{T2 + 1}, v{T2} offset:{QF}\ns_waitcnt lgkmcnt(0)')
        g(f'v_cmp_eq_u32 vcc, 0, v{T2 + 1}\ns_cbranch_vccz {ok}')
        g(f's_sleep 2\ns_sub_u32 {S_SPIN}, {S_SPIN}, 1\ns_cbranch_scc0 {lp}\n{ok}:')
        g(f'ds_read_b128 {vr(Q0, 4)}, v{QO} offset:{QL}\nds_read_b128 {vr(Q0 + 4, 4)}, v{QO} offset:{QL + 128}')
        g('s_waitcnt lgkmcnt(0)')
        g.stamp('a_qseen')

    def qk(u):
        for t in range(4):
            g(f'v_mfma_f32_16x16x32_bf16 {vr(TMP + 4 * t, 4)}, {vr(SLOT(u) + 8 * t, 4)}, {vr(Q0, 4)}, 0')
        for t in range(4):
            g(f'v_mfma_f32_16x16x32_bf16 {vr(TMP + 4 * t, 4)}, {vr(SLOT(u) + 8 * t + 4, 4)}, {vr(Q0 + 4, 4)}, {vr(TMP + 4 * t, 4)}')
        g.nop(5)
        for t in range(4):
            d = TMP + 4 * t
            a, b = T2 + 2 * (t & 1), T2 + 2 * (t & 1) + 1
            g(f'v_add_f32_dpp v{a}, v{d + 1}, v{d} row_ror:8 {DPP}\nv_add_f32_dpp v{b}, v{d + 3}, v{d + 2} row_ror:8 {DPP}')
            round2(g, a)
            if u >= 4 or (u == 3 and LT and mode == 'main'):
                sb = (S_B3, S_B4, S_B5)[u - 3]
                g(f'v_fma_f32 v{a}, v{a}, v{VSC}, {sb}\nv_fma_f32 v{b}, v{b}, v{VSC}, {sb}')
            else:
                g(f'v_mul_f32 v{a}, v{a}, v{VSC}\nv_mul_f32 v{b}, v{b}, v{VSC}')
            g(f'v_max3_f32 v{VMAX}, v{VMAX}, v{a}, v{b}\nv_cvt_pk_bf16_f32 v{SP + 4 * u + t}, v{a}, v{b}')

    def red_g(r, t, op):
        for ins in ('v_permlane32_swap_b32', 'v_permlane16_swap_b32'):
            g(f'v_mov_b32 v{t}, v{r}')
            g.nop(2)
            g(f'{ins} v{r}, v{t}\n{op} v{r}, v{r}, v{t}')

    def softmax():
        red_g(VMAX, T2, 'v_max_f32')
        for i in range(0, 32, 2):
            g(f'v_mov_b64 {vr(AC + i, 2)}, 0')
        g(f'v_mov_b32 v{VSC}, 0x3fb8aa3b\nv_mov_b32 v{T2 + 4}, 0')
        g(f'v_cvt_pk_bf16_f32 v{VMAX}, 0, v{VMAX}')
        g(f'v_mul_f32 v{T2 + 5}, v{VMAX}, v{VSC}')

    def probs(u, last=NU - 1):
        for i in range(4 * u, 4 * u + 4):
            p = SP + i
            a, b = T2 + 2 * (i & 1), T2 + 2 * (i & 1) + 1
            unpack2(g, a, p)
            g(f'v_fma_f32 v{a}, v{a}, v{VSC}, -v{T2 + 5}\nv_fma_f32 v{b}, v{b}, v{VSC}, -v{T2 + 5}')
            g(f'v_exp_f32 v{a}, v{a}\nv_exp_f32 v{b}, v{b}')
            g(f'v_add_f32 v{T2 + 4}, v{T2 + 4}, v{a}\nv_add_f32 v{T2 + 4}, v{T2 + 4}, v{b}')
            g(f'v_cvt_pk_bf16_f32 v{p}, v{a}, v{b}')
        if u == last:
            red_g(T2 + 4, T2, 'v_add_f32')
            g(f's_lshl_b32 {S_T}, s3, 3\nv_add_u32 v{T2}, {S_T}, v{LA}\nv_mov_b32 v{T2 + 2}, v{VMAX}\nv_min_u32 v{T2 + 3}, -2, v{T2 + 4}')
            g(f'ds_write_b64 v{T2}, {vr(T2 + 2, 2)} offset:{MX}')
            if mode == 'main':
                g.stamp('a_probs')

    def pv(u, slot=None):
        s = SLOT(VSLOT[u] if slot is None else slot)
        for w in range(4):
            t = TMP + 8 * (w & 1)
            for p in range(4):
                g(f'v_perm_b32 v{t + p}, v{s + 8 * p + 4 + w}, v{s + 8 * p + w}, {S_LO}')
            for p in range(4):
                g(f'v_perm_b32 v{t + 4 + p}, v{s + 8 * p + 4 + w}, v{s + 8 * p + w}, {S_HI}')
            g(f'v_mfma_f32_16x16x32_bf16 {vr(AC + 8 * w, 4)}, {vr(t, 4)}, {vr(SP + 4 * u, 4)}, {vr(AC + 8 * w, 4)}')
            g('s_nop 0')
            g(f'v_mfma_f32_16x16x32_bf16 {vr(AC + 8 * w + 4, 4)}, {vr(t + 4, 4)}, {vr(SP + 4 * u, 4)}, {vr(AC + 8 * w + 4, 4)}')

    def gather_ml():
        lp, ok = g.label('L_ml'), g.label('L_mlok')
        g(f's_mov_b32 {S_SPIN}, {SPIN * 16}\n{lp}:')
        for i in range(4):
            g(f'ds_read_b128 {vr(TMP + 4 * i, 4)}, v{LA} offset:{MX + 16 * i}')
        g('s_waitcnt lgkmcnt(0)')
        g(f'v_max_u32 v{T2}, v{TMP + 1}, v{TMP + 3}')
        for i in range(5, 16, 4):
            g(f'v_max3_u32 v{T2}, v{T2}, v{TMP + i}, v{TMP + i + 2}')
        g(f'v_cmp_eq_u32 vcc, -1, v{T2}\ns_cbranch_vccz {ok}')
        g(f's_sleep 2\ns_sub_u32 {S_SPIN}, {S_SPIN}, 1\ns_cbranch_scc0 {lp}\n{ok}:')
        g(f'v_max_f32 v{T2 + 2}, v{TMP}, v{TMP + 2}')
        for i in range(4, 16, 4):
            g(f'v_max3_f32 v{T2 + 2}, v{T2 + 2}, v{TMP + i}, v{TMP + i + 2}')

    def stats():
        skip = only_wave(g, P['SW'])
        gather_ml()
        g(f'v_mov_b32 v{T2 + 3}, 0')
        for i in range(0, 16, 2):
            g(f'v_sub_f32 v{TMP + i}, v{TMP + i}, v{T2 + 2}\nv_mul_f32 v{TMP + i}, 0x3fb8aa3b, v{TMP + i}')
        for i in range(0, 16, 2):
            g(f'v_exp_f32 v{TMP + i}, v{TMP + i}')
        g(f's_lshl_b32 {S_T}, {S_R}, 11\ns_lshl_b32 s98, {S_CU}, 3\ns_add_u32 {S_T}, {S_T}, s98\ns_add_u32 {S_T}, {S_T}, {STATS}')
        for i in range(0, 16, 2):
            g(f'v_fmac_f32 v{T2 + 3}, v{TMP + i}, v{TMP + i + 1}')
        g(f'v_lshlrev_b32 v{T2}, 8, v0')
        tagmask(g, T2 + 1)
        tag(g, [T2 + 2, T2 + 3], T2 + 1)
        g.setexec(0xff)
        if not P['XS']:
            g(f'buffer_store_dwordx2 {vr(T2 + 2, 2)}, v{T2}, {S_WS}, {S_T} offen sc1')
        g.setexec(-1)
        g(skip + ':')

    def factor():
        gather_ml()
        g(f'v_sub_f32 v{FS}, v{VMAX}, v{T2 + 2}\nv_mul_f32 v{FS}, 0x3fb8aa3b, v{FS}\nv_exp_f32 v{FS}, v{FS}')
        tagmask(g, FS + 1)

    FS = Q0 + 2
    WA, RA = KO, QO

    def epi_addr():
        g(f's_mul_i32 {S_T}, s3, {OST}\ns_add_u32 {S_T}, {S_T}, {OBUF}')
        g.bits(WA, 0, [(4, 2, 128), (0, 4, 16)], T2, S_T)
        g(f's_lshl_b32 {S_T}, s3, 4\ns_add_u32 {S_T}, {S_T}, {OBUF}')
        g.bits(RA, 0, [(1, 3, 528), (4, 2, 128), (0, 1, 8)], T2, S_T)
        g(f'v_add_u32 v{VSC}, {4 * OST}, v{RA}')

    def epilogue():
        g.setexec(rep16(0xff))
        for j in range(8):
            for h in (0, 2):
                g(f'v_pk_mul_f32 {vr(AC + 4 * j + h, 2)}, {vr(AC + 4 * j + h, 2)}, {vr(FS, 2)} op_sel_hi:[1,0]')
            g(f'ds_write_b128 v{WA}, {vr(AC + 4 * j, 4)} offset:{528 * j}')
        g.setexec(-1)
        g('s_waitcnt lgkmcnt(0)\ns_barrier')
        for w in range(8):
            g(f'ds_read_b64 {vr(TMP + 2 * w, 2)}, v{RA if w < 4 else VSC} offset:{OST * (w & 3)}')
        g('s_waitcnt lgkmcnt(4)')
        pk4(g, 'v_pk_add_f32', TMP, TMP, TMP + 4)
        g('s_waitcnt lgkmcnt(0)')
        pk4(g, 'v_pk_add_f32', TMP + 8, TMP + 8, TMP + 12)
        pk4(g, 'v_pk_add_f32', TMP, TMP, TMP + 8)
        g(f'v_pk_add_f32 {vr(TMP, 2)}, {vr(TMP, 2)}, {vr(TMP + 2, 2)}')
        tag(g, [TMP, TMP + 1], FS + 1)
        if not P['XP']:
            g(f'buffer_store_dwordx2 {vr(TMP, 2)}, v{GA}, {S_WS}, {S_GA} offen sc1')

    GK, GV, S_GU = 12, 13, 's100'
    if mode == 'g_addr':
        g(f'''s_lshr_b32 {S_R}, s14, 3
              s_and_b32 {S_CU}, s14, 7
              s_lshl_b32 {S_GU}, {S_CU}, 3
              s_add_u32 {S_GU}, {S_GU}, s3
              s_mul_i32 {S_T}, {S_R}, {P["PH"]}
              s_add_u32 {S_GU}, {S_GU}, {S_T}
              s_add_u32 {S_CU}, {S_CU}, {SPL}''')
        g.bits(GK, 0, [(1, 1, 1024), (2, 2, 256), (0, 1, 64), (4, 2, 16)], GV)
        g(f'v_lshlrev_b32 v{GV}, 4, v0')
        return
    if mode == 'g_issue':
        for n in arg:
            i, isk, u = n & 7, n < 8 * NUG, (n >> 3) % NUG
            if i == 0:
                p = 18 if isk else 20
                g(f's_lshl_b32 {S_T}, {S_R}, 23\ns_add_u32 s56, s{p}, {S_T}\ns_addc_u32 s57, s{p + 1}, 0\ns_mov_b32 s58, 0x800000')
                g(f's_add_u32 s101, {S_GU}, {1024 - 64 * (NUG - u)}\ns_and_b32 s101, s101, 1023\ns_lshl_b32 s101, s101, 13\ns_add_u32 {S_T}, s101, 4096')
            off = ((i >> 1) & 1) * 2048 + (i & 1) * 128 if isk else (i & 3) * 1024
            g(f'buffer_load_dwordx4 {vr(SLOT(0) + 4 * n, 4)}, v{GK if isk else GV}, {S_A}, {S_T if i >= 4 else "s101"} offen offset:{off} nt')
        return
    gq = '\n'.join(f'buffer_load_dwordx4 {vr(Q0 + 4 * i, 4)}, v{LA}, {S_WS}, 0 offen offset:{(i >> 1) * 256 + (i & 1) * 16} sc1' for i in range(4))

    def gq_addr():
        g(f's_lshl_b32 {S_T}, {S_R}, 12\ns_add_u32 {S_T}, {S_T}, {QB}')
        g.bits(LA, 0, [(0, 3, 512), (3, 1, 128), (4, 2, 32)], GA, S_T)
    if mode == 'g_q':
        gq_addr()
        g.vmop(gq, 'gq')
        return
    if mode == 'g_compute':
        g.vmwait('gq')
        poll(g, gq, range(Q0, Q0 + 16), T2, 8, preloaded=True, mask=0xffff)
        for i in range(8):
            g(f'v_perm_b32 v{Q0 + i}, v{Q0 + 2 * i + 1}, v{Q0 + 2 * i}, {S_HI}')
        mailbox()
        g.bits(LA, 0, [(0, 4, 64)], T2)
        g(f'v_mov_b32 v{VSC}, 0x3db504f3\nv_mov_b32 v{VMAX}, 0xff800000')
        for u in range(NUG):
            qk(u)
        softmax()
        for u in range(NUG):
            probs(u, NUG - 1)
        epi_addr()
        for u in range(NUG):
            pv(u)
        g('s_waitcnt lgkmcnt(0)\ns_barrier')
        stats()
        factor()
        g('s_nop 0')
        epilogue()
        g('s_barrier')
        return

    entry()
    GS = P['GS']
    order = list(range(96))
    if P['ILV']:
        order = list(range(32, 48))
        for i in range(16):
            order += [2 * i, 2 * i + 1, 48 + i]
        order += list(range(64, 96))
    last = lambda ids: max(order.index(i) for i in ids)
    depth = lambda n: P['DK1'] if n < P['NK1'] else (P['DK2'] if n < 48 else (P['DX'] if n < 64 else P['DV']))
    qsteps = list(range(P['QP0'] - 1, P['QG'] - 1, P['QPS']))
    st = dict(landed=-1, issued=-1, done=0)

    def land(n):
        if n > st['landed']:
            g.vmwait(n)
            st['landed'] = n

    W = [('q', -1, qget)]
    W += [('qk%d' % u, last(range(8 * u, 8 * u + 8)), lambda u=u: qk(u)) for u in ([0, 1, 4, 5, 2, 3] if P['ILV'] else range(NU))]
    W += [('sm', -1, softmax)]
    W += [('pr%d' % u, -1, lambda u=u: probs(u)) for u in range(NU)]
    W += [('st', -1, stats), ('rb', 63, lambda: (readback(), epi_addr(), lds_units()))]
    for u in range(4):
        if u == 3:
            W += [('fs', -1, factor)]
        W += [('pv%d' % u, 64 + 8 * u + 7, lambda u=u: ((g.stamp('a_landed') if u == 3 else None), pv(u)))]
    names = [w[0] for w in W]

    def work(budget, need=None):
        while st['done'] < len(W):
            forced = need is not None and st['done'] <= names.index(need)
            name, ld, act = W[st['done']]
            if not forced and (budget <= 0 or st['landed'] < ld or st['issued'] < P['QG'] - 1):
                return
            assert ld <= st['issued']
            land(ld)
            act()
            st['done'] += 1
            budget -= 1

    for n in range(0, 96, GS):
        d = depth(n)
        if n + GS - 1 >= d:
            land(n + GS - 1 - d)
        if n >= 64 and n % 8 == 0:
            work(0, ['qk1', 'qk2', 'qk3', 'pv0'][(n - 64) >> 3])
        for i in range(GS):
            load(order[n + i], n + i)
        m = n + GS - 1
        if m == P['FAST'] - 1:
            g.stamp('a_fast', (5,))
            if PADAT and PADAT[0] == 'a_data':
                g('s_waitcnt vmcnt(3)')
                g.stamp('a_data', (5,))
            entry2()
            setup()
            g.stamp('a_setup', (5,))
        st['issued'] = m
        if m == P['WPOS'] and 's' in P['WREG']:
            skip = only_wave(g, 7)
            g.warm_run('L_ws')
            g(skip + ':')
            g.warm_begin('L_ws')
        if m == P['STPOS']:
            g.stamp('a_pos')
        if m >= 20 and not st.get('ep'):
            st['ep'] = True
            g.vmwait('ep')
            epoch_tag(g, T2 + 2)
        if m in qsteps:
            if m != qsteps[0]:
                land(m - P['QPS'] + 1)
            qstep()
        if m == P['MLD']:
            work(0, 'rb')
            skip = g.label('L_nomld')
            g(f's_cmp_lt_u32 {S_CU}, {SPL - NMR}\ns_cbranch_scc1 {skip}')
            g(f's_lshl_b32 {S_T}, s3, 6\nv_add_u32 v{T2}, {S_T}, v0')
            g.bits(T2 + 1, T2, [(8, 1, 16384), (3, 5, 128), (0, 2, 32), (2, 1, 16)], T2 + 2, MODL + 4096)
            g(f's_lshl_b32 s98, s3, 14\ns_add_u32 m0, s98, {W1L + 8192}')
            for i in range(4):
                g(f's_mov_b32 {S_T}, {(i & 1) * 32768 + (i >> 1) * 4096}')
                g(f'buffer_load_dwordx4 v{T2 + 1}, {S_WS}, {S_T} offen sc1 lds\ns_add_u32 m0, m0, 1024')
            g(skip + ':')
        work(GS)
    work(0, 'fs')
    g.warm_end()
    g.warm_run('L_wa')
    if 'p' in P['WREG']:
        skip = g.label('L_nowp')
        g(f's_cmp_lt_u32 {S_CU}, {SPL - NMR}\ns_cbranch_scc1 {skip}\ns_cmp_lg_u32 s3, 0\ns_cbranch_scc1 {skip}')
        g.warm_run('L_wp')
        g(skip + ':')
    land(95)
    g.warm_begin('L_wa')
    work(0, 'pv3')
    epilogue()
    g.warm_end()
    g.stamp('a_pub', (0, 1, 2, 3, 4))
    slice_index('s14', 's15')
    g(f's_cmp_ge_u32 {S_CU}, {SPL - NMR}\ns_cbranch_scc1 L_mlp')
    if P['RANK']:
        skip = only_wave(g, 0)
        arrive(g, 8, 0, C_R)
        g(f'v_mov_b32 v9, 0\ns_waitcnt vmcnt(0)\ns_mov_b64 exec, 1\nds_write_b32 v9, v8 offset:{RK}\ns_mov_b64 exec, -1\ns_waitcnt lgkmcnt(0)')
        g(skip + ':')
        g(f's_barrier\nv_mov_b32 v8, 0\nds_read_b32 v8, v8 offset:{RK}\ns_waitcnt lgkmcnt(0)\nv_readfirstlane_b32 s14, v8')
    else:
        g(f's_sub_u32 s14, {S_CU}, 1\ns_lshl_b32 s14, s14, 3\ns_add_u32 s14, s14, {S_R}')
    if P['LSKIP']:
        g(f's_sub_u32 s14, s14, {P["LSKIP"]}')
    g(f's_cmp_lt_u32 s14, {min(128, 64 * (4 - P["GJ"])) if P["LQ"] == 2 else (32 if P["GH"] else 64 if P["GBG"] else 96)}\ns_cbranch_scc1 L_late')
    for bud in range(1, P['BUD'] + 1):
        g(f's_add_u32 s4, {S_CU}, {8 * bud}\ns_sub_u32 s5, s4, {SPL}\ns_cselect_b32 s4, s4, s5')
        g(f's_lshl_b32 s4, s4, 3\ns_sub_u32 s5, 7, s3\ns_add_u32 s4, s4, s5\ns_mul_i32 s5, {S_R}, {P["PH"]}\ns_add_u32 s4, s4, s5')
        g(f's_add_u32 s4, s4, {base[3]}\ns_and_b32 s4, s4, 1023\ns_lshl_b32 s4, s4, 13\ns_add_u32 s5, s4, 4096')
        if bud == 1:
            g('s_barrier')
        for i in range(7, 7 - P['BUDN'], -1):
            g(f'buffer_load_dwordx4 {vr(64 + 4 * i, 4)}, v{VO}, {S_B}, {"s5" if i >= 4 else "s4"} offen offset:{(i & 3) * 1024} {P["BUDF"]}')
    write_stamps(g)
    g('s_endpgm')


def build(stamps=False):
    g = G(stamps)
    ref = open(REF).read()
    g.L.append(ref[:ref.index('; Override launch')].rstrip())
    g.L.append('; @launch grid=(%d,1,1) block=(512,1,1) lds=%d' % (NWG, LDS_TOTAL))
    g.L.append('.amdgcn_target "amdgcn-amd-amdhsa--gfx950"\n.text\n.globl %s_kernel\n.p2align 8\n.type %s_kernel,@function' % (NAME, NAME))
    g.L.append('%s_kernel:' % NAME)
    g.stamp('start', (0, 1, 2, 3, 4))
    g(f'''s_load_dwordx16 s[16:31], s[0:1], 0
          s_load_dwordx8 s[32:39], s[0:1], 64
          s_load_dwordx4 s[40:43], s[0:1], 96
          s_load_dwordx2 s[44:45], s[0:1], 112
          v_lshrrev_b32 v1, 6, v0
          v_and_b32 v0, 63, v0
          v_readfirstlane_b32 s3, v1''')
    g(f's_cmp_lt_u32 s2, {NG}\ns_cbranch_scc1 L_proj')
    g(f's_cmp_ge_u32 s2, {NWG}\ns_cbranch_scc1 L_exit')
    n0 = g.nst
    attention(g)
    n1 = g.nst
    armed = getattr(g, 'padarmed', False)
    latem(g)
    g.padarmed = armed
    g.nst = n1 + (1 if g.stamps and P['ST'] < 3 else 0)
    mlp(g)
    g.nst = n0
    g.padarmed = bool(PADAT) and PADAT[0] == 'start'
    proj(g)
    g('L_exit:\ns_endpgm')
    g('.fill 2048, 4, 0xbf800000')
    g.L.append('''.section .rodata,"a"
.p2align 6
.amdhsa_kernel %s_kernel
  .amdhsa_next_free_vgpr 256
  .amdhsa_next_free_sgpr 102
  .amdhsa_accum_offset 256
  .amdhsa_group_segment_fixed_size 0
  .amdhsa_kernarg_size 120
  .amdhsa_user_sgpr_count 2
  .amdhsa_user_sgpr_kernarg_segment_ptr 1
  .amdhsa_system_sgpr_workgroup_id_x 1
.end_amdhsa_kernel''' % NAME)
    return '\n'.join(g.L) + '\n'


if __name__ == '__main__':
    out = sys.argv[1]
    for a in sys.argv[2:]:
        if a.startswith('PADAT='):
            PADAT.append(a[6:])
        elif '=' in a:
            k, v = a.split('=')
            assert k in P, k
            P[k] = v.replace('none', '') if isinstance(P[k], str) else int(v)
    open(out, 'w').write(build(stamps='--stamps' in sys.argv))
```

```python
import sys
NAME = 'adaLN_cond__gqa_block_cached__mixer_channel_mlp__decode'
REF = 'cdna_kernels/%s.s.ref' % NAME

NG = 64
SPL = 24
NMR = 7
NA = 8 * SPL
NWG = NG + NA
WPR = SPL * 8
NU = 6

FLAGS = 0x2000
HFLAG = 0x70000
QB, STATS, X1, MODP, MODL = 0x8000, 0x10000, 0x60000, 0x20000, 0x40000
MBA, MBB, MBC = 0x100000, 0x200000, 0x300000
SLOTS = 32
MBA_ST = 2 * SLOTS * 256
WS_SIZE = 0x400000
SPIN = 1 << 18
C_A, C_B, C_R = 0, 16, 128
TMASK = 0xff

P = dict(MSL=4, LSL=8, QSL=8, ASL=2, GS=1, DK1=8, NK1=28, DK2=8, DV=12, QP0=40, QPS=8, SLEEP=0, PH=64, QG=64, DX=8, TLB=0, PRE=0, WSOFF=0, LGATE=-1, LIGHT=4, RANK=0, P1SL=8, P1TH=56, GBG=0, LQ=1, MLS=2, GJ=1, GH=1, A5W=2, WPOS=11, EV=0, W2E=3, W2P=1, PRIO='', FAST=4, SEL=1, MLD=80, HLP=0, HFW=4, HN=8, WARM=24, WREG='', BUD=0, BUDN=8, BUDF='nt', LSKIP=0, XL=0, XW=0, XG=0, XP=0, XS=0, P1K=0, P2TH=16, P2SL=2, W2MISS=16, W2X=0, W2TH=0, NAT=1, BW=1, REP=1, LNM=1, PFA=0, PFG=3, GAE=1, NOQ=0, QW=7, SW=4, GE=0, NUG=0, RPOS=94, ILV=0, ROT=1, MW=4, HPOS=90, ST=0, DBGST=-1, PADTO=0, PADWG=-1, STPOS=-1)

S_WS, S_DBG, S_A, S_B = 's[48:51]', 's[52:55]', 's[56:59]', 's[60:63]'
S_LO, S_HI, S_MASK, S_SPIN = 's64', 's65', 's66', 's67'
S_TAG, S_EPO, S_T16 = 's26', 's27', 's1'
DPP = 'row_mask:0xf bank_mask:0xf'


def vr(a, n):
    return 'v[%d:%d]' % (a, a + n - 1)


PADAT = []


class G:
    def __init__(self, stamps=False):
        self.vm = []
        self.L = []
        self.stamps = stamps
        self.nlabel = 0
        self.nst = 0
        self.warm = None

    def __call__(self, s):
        for line in s.strip('\n').split('\n'):
            line = line.strip()
            if line:
                self.L.append(line if line.endswith(':') else '    ' + line)
                if self.warm is not None and not line.endswith(':'):
                    self.wcount += 1
                    if self.wcount >= P['WARM'] and not line.startswith('s_getpc'):
                        self.pad()

    def pad(self, last=False):
        n = self.wpad
        self.L.append(f'{self.warm}_{n}:')
        self.L.append(f'    s_cbranch_execz {self.warm}_ret' if last else f'    s_cbranch_execz {self.warm}_{n + 1}')
        self.wpad += 1
        self.wcount = 0

    def warm_run(self, name):
        if name[-1] in P['WREG']:
            self(f's_mov_b64 exec, 0\ns_branch {name}_0\n{name}_ret:\ns_mov_b64 exec, -1')

    def warm_begin(self, name):
        if name[-1] in P['WREG']:
            self.warm, self.wpad = name, 0
            self.pad()

    def warm_end(self):
        if self.warm is not None:
            self.pad(last=True)
            self.warm = None

    def label(self, p='L'):
        self.nlabel += 1
        return '%s_%d' % (p, self.nlabel)

    def stamp(self, name, sets=(0,)):
        if PADAT and name == PADAT[0]:
            self('s_memrealtime s[90:91]')
            self.padarmed = True
        if self.stamps and P['ST'] in sets:
            k = self.nst
            self.nst += 1
            assert k < 13 and (k < 11 or name[0] in 'gr'), name
            self('s_memrealtime s[%d:%d] ; stamp %d %s' % (70 + 2 * k, 71 + 2 * k, k, name))

    def vmop(self, text, tag):
        for line in text.strip().split('\n'):
            self(line)
            self.vm.append(tag)

    def vmwait(self, *tags):
        idx = [i for i, t in enumerate(self.vm) if t in tags]
        if not idx:
            return
        n = len(self.vm) - 1 - idx[-1]
        assert n <= 63
        self('s_waitcnt vmcnt(%d)' % n)
        self.vm = self.vm[idx[-1] + 1:]

    def nop(self, n):
        while n > 0:
            k = min(n, 16)
            self('s_nop %d' % (k - 1))
            n -= k

    def bits(self, dst, src, fields, tmp, add=None):
        first = True
        for (lo, n, mul) in fields:
            t = dst if first else tmp
            if lo == 0:
                self(f'v_and_b32 v{t}, {(1 << n) - 1}, v{src}')
            else:
                self(f'v_bfe_u32 v{t}, v{src}, {lo}, {n}')
            pw = mul & (mul - 1) == 0
            sh = mul.bit_length() - 1
            if first:
                if mul != 1:
                    self(f'v_lshlrev_b32 v{dst}, {sh}, v{dst}' if pw else f'v_mul_u32_u24 v{dst}, {mul}, v{dst}')
            elif mul == 1:
                self(f'v_add_u32 v{dst}, v{dst}, v{tmp}')
            elif pw:
                self(f'v_lshl_add_u32 v{dst}, v{tmp}, {sh}, v{dst}')
            else:
                self(f'v_mul_u32_u24 v{tmp}, {mul}, v{tmp}\nv_add_u32 v{dst}, v{dst}, v{tmp}')
            first = False
        if add not in (None, 0):
            self(f'v_add_u32 v{dst}, {add}, v{dst}')

    def setexec(self, m):
        if m == -1:
            self('s_mov_b64 exec, -1')
        elif m < (1 << 31):
            self('s_mov_b64 exec, 0x%x' % m)
        else:
            self('s_mov_b32 exec_lo, 0x%x\ns_mov_b32 exec_hi, 0x%x' % (m & 0xffffffff, m >> 32))


def rep16(m):
    return m * 0x0001000100010001


def check(g, regs, tmp, mask=TMASK):
    regs = list(regs)
    if mask == TMASK:
        for r in regs:
            g(f'v_xor_b32 v{r}, {S_TAG}, v{r}')
        g(f'v_or_b32 v{tmp}, v{regs[0]}, v{regs[1]}')
        for i in range(2, len(regs), 2):
            g(f'v_or3_b32 v{tmp}, v{tmp}, v{regs[i]}, v{regs[i + 1]}')
        g(f'v_and_b32 v{tmp}, {mask}, v{tmp}\nv_cmp_ne_u32 vcc, 0, v{tmp}')
        return
    g(f'v_bitop3_b32 v{tmp}, v{regs[0]}, v{regs[1]}, {S_EPO} bitop3:0x7e')
    for r in regs[2:]:
        g(f'v_bitop3_b32 v{tmp}, v{tmp}, v{r}, {S_EPO} bitop3:0xf6')
    if mask == 0xffff:
        g(f'v_cmp_ne_u16 vcc, 0, v{tmp}')
        return
    if mask != -1:
        g(f'v_and_b32 v{tmp}, {mask}, v{tmp}')
    g(f'v_cmp_ne_u32 vcc, 0, v{tmp}')


def tagmask(g, vm):
    g(f'v_mov_b32 v{vm}, 0x{0xffffffff ^ TMASK:x}')


def tag(g, regs, vm):
    for r in regs:
        g(f'v_and_or_b32 v{r}, v{r}, v{vm}, {S_TAG}')


def epoch_load(reg):
    return f'buffer_load_dword v{reg}, off, {S_WS}, 0 sc1'


def epoch_tag(g, reg):
    g(f'''v_readfirstlane_b32 {S_EPO}, v{reg}
          s_mul_i32 {S_TAG}, {S_EPO}, 0x9e3779b1
          s_lshr_b32 {S_TAG}, {S_TAG}, 12
          s_or_b32 {S_TAG}, {S_TAG}, 1
          s_add_u32 {S_EPO}, {S_EPO}, {S_TAG}
          s_and_b32 {S_TAG}, {S_EPO}, {TMASK}
          s_and_b32 {S_T16}, {S_EPO}, 0xffff''')


def poll(g, loads, regs, tmp, sleep=0, preloaded=False, mask=TMASK):
    lp, done, chk = g.label('L_poll'), g.label('L_ok'), g.label('L_chk')
    g(f's_mov_b32 {S_SPIN}, {SPIN}')
    if preloaded:
        g(f's_branch {chk}')
    g(lp + ':')
    g(loads)
    g('s_waitcnt vmcnt(0)')
    if preloaded:
        g(chk + ':')
    check(g, regs, tmp, mask)
    g(f's_cbranch_vccz {done}')
    if sleep:
        g(f's_sleep {sleep}')
    g(f's_sub_u32 {S_SPIN}, {S_SPIN}, 1\ns_cbranch_scc0 {lp}')
    g(done + ':')


def faddr(soff, off):
    return f's_lshl_b32 s98, {soff}, 8\ns_add_u32 s98, s98, {FLAGS + 256 * off}\n'


def fread(reg, soff, off):
    return faddr(soff, off) + f'buffer_load_dword v{reg}, off, {S_WS}, s98 sc1'


def fpoll(g, reg, soff, off, sleep, preloaded=False):
    lp, done, chk = g.label('L_fpoll'), g.label('L_fok'), g.label('L_fchk')
    g(f's_mov_b32 {S_SPIN}, {SPIN}')
    if preloaded:
        g(f's_branch {chk}')
    g(lp + ':')
    g(fread(reg, soff, off) + '\ns_waitcnt vmcnt(0)')
    if preloaded:
        g(chk + ':')
    g(f'v_cmp_ne_u32 vcc, {S_EPO}, v{reg}\ns_cbranch_vccz {done}')
    if sleep:
        g(f's_sleep {sleep}')
    g(f's_sub_u32 {S_SPIN}, {S_SPIN}, 1\ns_cbranch_scc0 {lp}')
    g(done + ':')


def fwait(g, reg, soff, off, sleep):
    skip = only_wave(g, 0)
    fpoll(g, reg, soff, off, sleep)
    g(skip + ':')
    g('s_barrier')


def arrive(g, reg, soff, off):
    g(f'v_mov_b32 v{reg}, 1\ns_mov_b64 exec, 1\nbuffer_atomic_add v{reg}, off, {S_DBG}, {soff} offset:{off} sc0 sc1\ns_mov_b64 exec, -1')


def arrived(g, reg, soff, off, n):
    skip = g.label('L_notlast')
    g(f'v_readfirstlane_b32 s99, v{reg}\ns_cmp_lg_u32 s99, {n - 1}\ns_cbranch_scc1 {skip}')
    g(faddr(soff, off) + f'v_mov_b32 v{reg}, {S_EPO}\ns_mov_b64 exec, 1\nbuffer_store_dword v{reg}, off, {S_WS}, s98 sc1\ns_mov_b64 exec, -1')
    g(skip + ':')


def srd(g, s, lo, size):
    base = int(s[2:s.index(':')])
    if lo == 44 and P['WSOFF']:
        g(f's_add_u32 s{base}, s44, {P["WSOFF"] << 20}\ns_addc_u32 s{base + 1}, s45, 0\ns_mov_b32 s{base + 2}, 0x{size:x}\ns_mov_b32 s{base + 3}, 0x20000')
        return
    g(f's_mov_b32 s{base}, s{lo}\ns_mov_b32 s{base + 1}, s{lo + 1}\ns_mov_b32 s{base + 2}, 0x{size:x}\ns_mov_b32 s{base + 3}, 0x20000')


def consts(g):
    g(f's_mov_b32 {S_LO}, 0x05040100\ns_mov_b32 {S_HI}, 0x07060302\ns_mov_b32 {S_MASK}, 0xffff0000')


def only_wave(g, w):
    skip = g.label('L_skip')
    g(f's_cmp_lg_u32 s3, {w}\ns_cbranch_scc1 {skip}')
    return skip


def write_stamps(g):
    if PADAT and getattr(g, 'padarmed', False):
        l = g.label('L_padat')
        g(f'{l}:\ns_memrealtime s[4:5]\ns_waitcnt lgkmcnt(0)\ns_sub_u32 s4, s4, s90\ns_sleep 4\ns_cmp_lt_u32 s4, 6000\ns_cbranch_scc1 {l}')
    if not g.stamps:
        return
    g('s_waitcnt lgkmcnt(0)')
    skip = only_wave(g, 0)
    g('s_mov_b64 exec, 1')
    if P['DBGST'] >= 0:
        g(f's_cmp_lg_u32 s2, {P["DBGST"]}\ns_cbranch_scc1 {skip}')
        for k in range(1, min(g.nst, 12)):
            g(f's_sub_u32 s4, s{70 + 2 * k}, s70\nv_mov_b32 v2, s4')
            g(f'buffer_store_dword v2, off, {S_DBG}, 0 offset:{16 + 4 * k}')
        g(skip + ':')
        return
    g('s_lshl_b32 s4, s2, 8\ns_add_u32 s4, s44, s4\ns_addc_u32 s5, s45, 0')
    g('s_add_u32 s4, s4, %d\ns_addc_u32 s5, s5, 0' % (255 << 20))
    g('v_mov_b32 v1, 0')
    for k in range(g.nst):
        g(f'v_mov_b32 v2, s{70 + 2 * k}\nv_mov_b32 v3, s{71 + 2 * k}')
        g(f'global_store_dwordx2 v1, v[2:3], s[4:5] offset:{8 * k}')
        g('s_nop 1')
    g(skip + ':')


def prefetch_code(g, label, nkb8, vtmp, vdst, tag=None):
    pc = g.label('L_pc')
    g('s_getpc_b64 s[98:99]')
    if label:
        g(f'{pc}:\ns_add_u32 s98, s98, {label}-{pc}\ns_addc_u32 s99, s99, 0')
    g('s_and_b32 s98, s98, 0xffffff80')
    g(f's_lshl_b32 s97, s3, 10\nv_lshl_add_u32 v{vtmp}, v0, 4, s97')
    for i in range(nkb8):
        if i:
            g(f'v_add_u32 v{vtmp}, 8192, v{vtmp}')
        t = f'global_load_dwordx4 {vr(vdst, 4)}, v{vtmp}, s[98:99]'
        g.vmop(t, tag) if tag else g(t)


BLK = lambda i: 64 + 32 * i
UA, UB, UC = 0, 2, 4
IL = lambda unit, kb, i: BLK(unit) + (i >> 2) * 8 + kb * 4 + (i & 3)
MBP = 16384 + 256
ACC = 32
KW, NB, NW, NR, NO, KB, TID = 1, 2, 3, 4, 5, 6, 7
T = 24


class Lds:
    def __init__(self, base):
        self.ACTS, self.ACTH, self.RED = base, base + 4352, base + 8704
        self.OUTV = base + 17408
        self.PART = base + 17664
        self.STAT = base + 18688
        self.END = base + 19200


ABS = 2048 + 128


def nstep():
    return 1 if P['NAT'] else 64


def nvoff(g, dst, rs, tid=TID, tmp=T + 7):
    g.bits(dst, tid, [(3, 6, rs * 8 if P['NAT'] else rs), (0, 3, 16)], tmp)


def nload(g, unit, ptr, size, rs, s_col, voff, kbs=(0, 1), tag=None):
    srd(g, S_A, ptr, size)
    for kb in kbs:
        g(f's_add_u32 s4, {s_col}, {kb * 512 * rs}')
        for t in range(8):
            g.vmop(f'buffer_load_dwordx4 {vr(BLK(unit + kb) + 4 * t, 4)}, v{voff}, {S_A}, s4 offen nt', (tag, kb))
            if t < 7:
                g(f's_add_u32 s4, s4, {nstep() * rs}')


def kload(g, unit, ptr, size, s_idx, voff, rowf, tag, s_xor=None, which=range(16)):
    srd(g, S_A, ptr, size)
    g(f's_lshl_b32 s5, {s_idx}, 17')
    for kb in range(2):
        for t in range(8):
            if 8 * kb + t not in which:
                continue
            g(f's_add_u32 s4, s5, {rowf(kb, t) * 2048}')
            if s_xor:
                g(f's_xor_b32 s4, s4, {s_xor}')
            g.vmop(f'buffer_load_dwordx4 {vr(IL(unit, kb, 4 * t), 4)}, v{voff}, {S_A}, s4 offen nt', (tag, kb))


def transpose(g, blk, T=T, il=False):
    R = (lambda i: IL(blk & ~1, blk & 1, i)) if il else (lambda i: BLK(blk) + i)
    for p in range(4):
        a, c = R(8 * p + p), R(8 * p + 4 + p)
        g(f'v_perm_b32 v{T}, v{c}, v{a}, {S_LO}\nv_perm_b32 v{c}, v{c}, v{a}, {S_HI}\nv_mov_b32 v{a}, v{T}')
    for p in range(4):
        for w in range(p + 1, 4):
            xa, xb = R(8 * p + w), R(8 * p + 4 + w)
            ya, yb = R(8 * w + p), R(8 * w + 4 + p)
            g(f'v_perm_b32 v{T}, v{xb}, v{xa}, {S_LO}\nv_perm_b32 v{T + 1}, v{xb}, v{xa}, {S_HI}')
            g(f'v_perm_b32 v{xa}, v{yb}, v{ya}, {S_LO}\nv_perm_b32 v{xb}, v{yb}, v{ya}, {S_HI}')
            g(f'v_mov_b32 v{ya}, v{T}\nv_mov_b32 v{yb}, v{T + 1}')


def mfmas(g, unit, b0, b1):
    for kb, bop in ((0, b0), (1, b1)):
        if kb == 1:
            g('s_waitcnt lgkmcnt(0)')
        for j in range(8):
            d = vr(ACC + 4 * j, 4)
            g(f'v_mfma_f32_16x16x32_bf16 {d}, {vr(BLK(unit + kb) + 4 * j, 4)}, {vr(bop, 4)}, {d if kb else 0}')


def sparse_index(g, v):
    g(f'v_and_b32 v{v}, 1, v0\nv_mul_u32_u24 v{v}, 0xaaaa, v{v}\nv_add_u32 v{v}, 0x4444, v{v}')


def zero32(d):
    return [f'v_mov_b64 {vr(d + i, 2)}, 0' for i in range(0, 32, 2)]


def products(g, unit, D, idx, sel, extra=()):
    slot, ready, todo, extra = 0, {}, [], list(extra)

    def fill(n):
        nonlocal slot
        while n > 0:
            if todo and slot - ready[todo[0][0]] >= 8:
                g(todo.pop(0)[1])
            elif extra:
                g(extra.pop(0))
            else:
                return
            slot += 1
            n -= 1
    for j in range(8):
        g(f'v_smfmac_f32_16x16x64_bf16 {vr(D + 4 * j, 4)}, {vr(T, 4)}, {vr(BLK(unit) + 8 * j, 8)}, v{idx}')
        slot += 1
        ready[j] = slot
        todo += [(j, x) for x in sel(j)]
        s0 = slot
        fill(2)
        if slot - s0 < 2 and j < 7:
            g.nop(2 - (slot - s0))
            slot = s0 + 2
    while todo or extra:
        n = len(todo) + len(extra)
        fill(99)
        if len(todo) + len(extra) == n:
            w = 8 - (slot - ready[todo[0][0]])
            g.nop(w)
            slot += w


def common_addr(g, L, kperm=False):
    K0B = T + 6
    g(f's_lshl_b32 s4, s3, 6\nv_add_u32 v{TID}, s4, v0')
    g.bits(K0B, TID, [(3, 6, 64), (0, 2, 16), (2, 1, 8)], T)
    if P['NAT']:
        g.bits(KW, K0B, [(11, 1, ABS), (0, 11, 1)], T)
        g.bits(NB, TID, [(0, 1, ABS), (6, 3, 128), (4, 2, 32), (1, 1, 16)], T)
    else:
        g.bits(KW, K0B, [(11, 1, ABS), (4, 3, 256), (10, 1, 128), (1, 3, 16), (7, 3, 2)], T)
        g.bits(NB, TID, [(0, 1, ABS), (6, 3, 256), (4, 2, 32), (1, 1, 16)], T)
    g.bits(NW, TID, [(6, 3, 1088), (1, 1, 544), (0, 1, 256), (2, 2, 32), (4, 1, 16)], T, L.RED)
    g.bits(NR, TID, [(0, 2, 544), (2, 7, 4)], T, L.RED)
    g.bits(NO, TID, [(8, 1, 128), (2, 3, 16), (5, 2, 4), (7, 1, 2)], T, L.OUTV)


def kb_addr(g, L):
    g.bits(KB, TID, [(1, 1, 128), (4, 2, 32), (0, 1, 16)], T, L.OUTV)


def po_addr(g, po):
    g.bits(po, TID, [(6, 3, 4 * MBP), (2, 2, MBP), (1, 1, 128), (0, 1, 64), (4, 2, 16)], T)


def mlp_addr(g, L):
    g.bits(KW, TID, [(8, 1, ABS), (3, 5, 64), (1, 1, 32), (2, 1, 8), (0, 1, 4)], T, L.ACTH)
    g.bits(NB, TID, [(1, 1, ABS), (5, 1, 1024), (6, 3, 128), (4, 1, 64), (2, 1, 32), (0, 1, 16)], T, L.ACTH)
    g.bits(NW, TID, [(6, 3, 1088), (4, 1, 544), (0, 3, 32), (5, 1, 16)], T, L.RED)
    g.bits(NR, TID, [(0, 2, 544), (2, 7, 4)], T, L.RED)
    g.bits(NO, TID, [(8, 1, 128), (7, 1, 64), (3, 1, 32), (5, 1, 16), (2, 1, 8), (6, 1, 4), (4, 1, 2)], T, L.OUTV)
    kb_addr(g, L)


def nsplit(g, unit, act, half=None, fast=False):
    if fast:
        D, O, idx, extra = fast
        g(f'ds_read_b128 {vr(T, 4)}, v{NB}\n' + '\n'.join(extra[:9]) + '\ns_waitcnt lgkmcnt(0)')
        extra = extra[9:]
        products(g, unit, D, idx, lambda j: [f'v_add_f32_dpp v{O + 4 * b + (j & 3)}, v{D + 4 * j + 2 * b}, v{D + 4 * j + 2 * b + 1} '
                                             f'quad_perm:[0,1,2,3] row_mask:0x{3 << (2 * (j >> 2)):x} bank_mask:0xf' for b in range(2)], extra)
        g.setexec(0xff0000ffff0000ff)
        g(f'ds_write_b128 v{NW}, {vr(O, 4)}\nds_write_b128 v{NW}, {vr(O + 4, 4)} offset:256')
    else:
        if half is None:
            g(f'ds_read_b128 {vr(T, 4)}, v{NB} offset:{act}\nds_read_b128 {vr(T + 4, 4)}, v{NB} offset:{act + 1024}')
            g('s_waitcnt lgkmcnt(1)')
            mfmas(g, unit, T, T + 4)
        else:
            g(f'ds_read_b128 {vr(T, 4)}, v{half} offset:{act}\ns_waitcnt lgkmcnt(0)')
            for j in range(8):
                g(f'v_mfma_f32_16x16x32_bf16 {vr(ACC + 4 * j, 4)}, {vr(BLK(unit) + 4 * j, 4)}, {vr(T, 4)}, 0')
        for dd in range(1, 4):
            g.setexec(rep16(0xf << (4 * dd)))
            if dd != 2:
                g.nop(2)
            for i in range(4):
                g(f'v_mov_b64 {vr(ACC + 2 * i, 2)}, {vr(ACC + 8 * dd + 2 * i, 2)}')
        g.setexec(0xcccccccc33333333)
        g(f'ds_write_b128 v{NW}, {vr(ACC, 4)}\nds_write_b128 v{NW}, {vr(ACC + 4, 4)} offset:128')
    g.setexec(-1)
    g('s_waitcnt lgkmcnt(0)\ns_barrier')
    for k in range(4):
        g(f'ds_read_b32 v{T + k}, v{NR} offset:{k * 4 * 544}')
    g('s_waitcnt lgkmcnt(2)')
    g(f'v_add_f32 v{T}, v{T}, v{T + 1}')
    g('s_waitcnt lgkmcnt(0)')
    g(f'v_add_f32 v{T + 2}, v{T + 2}, v{T + 3}\nv_add_f32 v{T}, v{T}, v{T + 2}')
    g.nop(2)
    g(f'v_add_f32_dpp v{T}, v{T}, v{T} quad_perm:[1,0,3,2] {DPP}')
    g.nop(2)
    g(f'v_add_f32_dpp v{T}, v{T}, v{T} quad_perm:[2,3,0,1] {DPP}')


def actwrite(g, p, act):
    if P['NAT']:
        g(f'ds_write_b64 v{KW}, {vr(p, 2)} offset:{act}')
        return
    g(f'ds_write_b16 v{KW}, v{p} offset:{act}\nds_write_b16_d16_hi v{KW}, v{p} offset:{act + 16}')
    g(f'ds_write_b16 v{KW}, v{p + 1} offset:{act + 32}\nds_write_b16_d16_hi v{KW}, v{p + 1} offset:{act + 48}')


def unpack2(g, d, s):
    g(f'v_lshlrev_b32 v{d}, 16, v{s}\nv_and_b32 v{d + 1}, {S_MASK}, v{s}')


def unpack(g, d, s):
    unpack2(g, d, s)
    unpack2(g, d + 2, s + 1)


def pack(g, t, d):
    g(f'v_cvt_pk_bf16_f32 v{t}, v{d}, v{d + 1}\nv_cvt_pk_bf16_f32 v{t + 1}, v{d + 2}, v{d + 3}')


def round1(g, a):
    g(f'v_cvt_pk_bf16_f32 v{a}, 0, v{a}')


def round4(g, d, t=None):
    for i in range(4):
        round1(g, d + i)


def round2(g, a):
    round1(g, a)
    round1(g, a + 1)


def pk4(g, op, d, a, b):
    g(f'{op} {vr(d, 2)}, {vr(a, 2)}, {vr(b, 2)}\n{op} {vr(d + 2, 2)}, {vr(a + 2, 2)}, {vr(b + 2, 2)}')


def layernorm(g, x, sw, sr, off, last_packed=False):
    a, b = T + 4, T + 5
    g(f'v_add_f32 v{a}, v{x}, v{x + 1}\nv_mul_f32 v{b}, v{x}, v{x}')
    g(f'v_add_f32 v{T}, v{x + 2}, v{x + 3}\nv_fmac_f32 v{b}, v{x + 1}, v{x + 1}')
    g(f'v_add_f32 v{a}, v{a}, v{T}\nv_fmac_f32 v{b}, v{x + 2}, v{x + 2}\nv_fmac_f32 v{b}, v{x + 3}, v{x + 3}')
    for i, ctl in enumerate(['row_ror:8 ' + DPP, 'row_ror:4 ' + DPP, 'row_ror:2 ' + DPP, 'row_ror:1 ' + DPP,
                             'row_bcast:15 row_mask:0xa bank_mask:0xf', 'row_bcast:31 row_mask:0xc bank_mask:0xf']):
        if i:
            g('s_nop 0')
        g(f'v_add_f32_dpp v{a}, v{a}, v{a} {ctl}')
        if i == 0:
            g('s_nop 0')
        g(f'v_add_f32_dpp v{b}, v{b}, v{b} {ctl}')
    g.setexec(1 << 63)
    g(f'ds_write_b64 v{sw}, {vr(a, 2)} offset:{off}')
    g.setexec(-1)
    g('s_waitcnt lgkmcnt(0)\ns_barrier')
    g(f'ds_read_b128 {vr(T, 4)}, v{sr} offset:{off}\nds_read_b128 {vr(T + 4, 4)}, v{sr} offset:{off + 16}')
    g('s_waitcnt lgkmcnt(0)')
    pk4(g, 'v_pk_add_f32', T, T, T + 4)
    g(f'v_pk_add_f32 {vr(a, 2)}, {vr(T, 2)}, {vr(T + 2, 2)}')
    g(f'v_mul_f32 v{a}, 0x3a800000, v{a}\nv_mul_f32 v{b}, 0x3a800000, v{b}')
    g(f'v_fma_f32 v{b}, -v{a}, v{a}, v{b}\nv_max_f32 v{b}, 0, v{b}')
    round2(g, a)
    g(f'v_add_f32 v{b}, 0x3727c5ac, v{b}')
    g(f'v_cvt_pk_bf16_f32 v{b}, 0, v{b}')
    g(f'v_sqrt_f32 v{b}, v{b}')
    for i in range(4):
        g(f'v_sub_f32 v{x + i}, v{x + i}, v{a}')
    g(f'v_cvt_pk_bf16_f32 v{b}, 0, v{b}')
    g(f'v_rcp_f32 v{b}, v{b}')
    round4(g, x, T + 6)
    for i in range(4):
        g(f'v_mul_f32 v{x + i}, v{x + i}, v{b}')
    if last_packed:
        pack(g, T + 6, x)
    else:
        round4(g, x, T + 6)


def weave(g, chain, fill, per=1):
    fill = list(fill)
    for c in chain:
        g(c)
        trans = c.split()[0] in ('v_sqrt_f32', 'v_rcp_f32', 'v_exp_f32')
        n = 0
        while fill and n < (per + (1 if trans else 0)):
            g(fill.pop(0))
            n += 1
        if trans and n == 0:
            g('s_nop 0')
    for f in fill:
        g(f)


def blocksum6(g, r, sw6, sr6, off, out, finish=True):
    g.nop(1)
    for i in (0, 2, 4):
        g(f'v_permlane32_swap_b32 v{r + i}, v{r + i + 1}')
    for i in (0, 2, 4):
        g(f'v_add_f32 v{r + i}, v{r + i}, v{r + i + 1}')
    g(f'v_mov_b32 v{r + 5}, v{r + 4}\nv_permlane16_swap_b32 v{r}, v{r + 2}\nv_add_f32 v{r}, v{r}, v{r + 2}')
    g(f'v_permlane16_swap_b32 v{r + 4}, v{r + 5}\nv_add_f32 v{r + 4}, v{r + 4}, v{r + 5}')
    for i, sh in enumerate((8, 4, 2, 1)):
        if i:
            g('s_nop 0')
        g(f'v_add_f32_dpp v{r}, v{r}, v{r} row_ror:{sh} {DPP}')
        if i == 0:
            g('s_nop 0')
        g(f'v_add_f32_dpp v{r + 4}, v{r + 4}, v{r + 4} row_ror:{sh} {DPP}')
    g(f'ds_write_b32 v{sw6}, v{r} offset:{off}\nds_write_b32 v{sw6}, v{r + 4} offset:{off + 64}')
    g('s_waitcnt lgkmcnt(0)\ns_barrier')
    for i, o in enumerate((0, 16, 32, 48, 64, 96)):
        g(f'ds_read_b128 {vr(out + 4 * i, 4)}, v{sr6} offset:{off + o}')
    if not finish:
        return
    for i in range(6):
        g(f's_waitcnt lgkmcnt({5 - i})')
        g(f'v_pk_add_f32 {vr(out + 4 * i, 2)}, {vr(out + 4 * i, 2)}, {vr(out + 4 * i + 2, 2)}')
    for i in range(6):
        g(f'v_add_f32 v{out + i}, v{out + 4 * i}, v{out + 4 * i + 1}')


def rstd(g, mean, var):
    g(f'v_max_f32 v{var}, 0, v{var}')
    round2(g, mean)
    g(f'v_add_f32 v{var}, 0x3727c5ac, v{var}')
    g(f'v_cvt_pk_bf16_f32 v{var}, 0, v{var}\nv_sqrt_f32 v{var}, v{var}\ns_nop 0')
    g(f'v_cvt_pk_bf16_f32 v{var}, 0, v{var}\nv_rcp_f32 v{var}, v{var}')


def ksplit_out(g, unit, po, mb, D, idx):
    O = T + 4
    g(f'ds_read_b128 {vr(T, 4)}, v{KB}\ns_waitcnt lgkmcnt(0)')
    products(g, unit, D, idx, lambda j: [f'v_add_f32_dpp v{O + 2 * b + (j & 1)}, v{D + 4 * j + 2 * b}, v{D + 4 * j + 2 * b + 1} '
                                         f'quad_perm:[0,1,2,3] row_mask:0x{1 << (j >> 1):x} bank_mask:0xf' for b in range(2)],
             [f'v_mov_b32 v{KB}, 0x{0xffffffff ^ TMASK:x}'])
    tag(g, range(O, O + 4), KB)
    g(f'buffer_store_dwordx4 {vr(O, 4)}, v{po}, {S_WS}, {mb} offen sc1\ns_nop 1')


def publish32(g, L, s_off, bstride, exact):
    g(f'v_subrev_u32 v{T + 1}, {L.OUTV}, v{NO}\nv_lshlrev_b32 v{T + 1}, 1, v{T + 1}\nds_write_b32 v{T + 1}, v{T} offset:{L.PART}')
    g('s_waitcnt lgkmcnt(0)\ns_barrier')
    skip = only_wave(g, 0)
    if exact:
        g(f'v_lshlrev_b32 v{T + 4}, 3, v0\nds_read_b64 {vr(T + 6, 2)}, v{T + 4} offset:{L.PART}')
        g.bits(T + 5, 0, [(5, 1, bstride), (0, 5, 16)], T + 4)
        g(f'v_mov_b32 v{T + 1}, {S_EPO}\nv_mov_b32 v{T + 3}, {S_EPO}\ns_waitcnt lgkmcnt(0)')
        g(f'v_mov_b32 v{T}, v{T + 6}\nv_mov_b32 v{T + 2}, v{T + 7}')
    else:
        g(f'v_lshlrev_b32 v{T + 4}, 4, v0\nds_read_b128 {vr(T, 4)}, v{T + 4} offset:{L.PART}')
        g.bits(T + 5, 0, [(4, 1, bstride), (0, 4, 16)], T + 6)
        g('s_waitcnt lgkmcnt(0)\ns_mov_b32 exec_hi, 0')
    g(f'buffer_store_dwordx4 {vr(T, 4)}, v{T + 5}, {S_WS}, {s_off} offen sc1')
    g.setexec(-1)
    g('s_nop 0')
    g(skip + ':')


def qjob_issue(g, blk, s_job, voff, lg=2):
    g(f'''s_and_b32 s15, {s_job}, {(1 << lg) - 1}
          s_lshr_b32 s6, {s_job}, {lg}
          s_lshl_b32 s6, s6, 7
          s_mul_i32 s13, s15, {(1024 >> lg) * 12288}
          s_add_u32 s13, s13, s6
          s_add_u32 s13, s13, 4096''')
    nload(g, blk, 38, 1024 * 12288, 12288, 's13', voff, (0,), tag='qj')


def qjob_voff(g, voff, lg=2):
    nvoff(g, voff, 12288)
    if lg == 1:
        return
    g(f's_lshr_b32 s4, s3, 2\ns_lshl_b32 s4, s4, 24\nv_add_u32 v{voff}, s4, v{voff}')


def qjob_finish(g, L, blk, va, vm, lg=2):
    g(f's_lshl_b32 s12, s15, 15\ns_lshl_b32 s5, s6, 1\ns_add_u32 s12, s12, s5\ns_add_u32 s12, s12, {MODL}')
    if lg == 2:
        g(f's_lshr_b32 s4, s3, 2\ns_sub_u32 s4, s15, s4\ns_lshl_b32 s4, s4, 9\nv_add_u32 v{va}, s4, v{NB}')
    else:
        g(f's_lshl_b32 s4, s15, 10\nv_add_u32 v{va}, s4, v{NB}')
    tagmask(g, vm)
    g.vmwait(('qj', 0))
    g.stamp('l_land', (4,) if L.ACTS == MLP_LDS else ())
    transpose(g, blk)
    g.stamp('l_tr', (4,) if L.ACTS == MLP_LDS else ())
    nsplit(g, blk, L.ACTS, va)
    g.stamp('l_ns', (4,) if L.ACTS == MLP_LDS else ())
    tag(g, [T], vm)
    publish32(g, L, 's12', 16384, False)


def silu_image(g, L, src):
    unpack(g, ACC, src)
    for i in range(4):
        g(f'v_mul_f32 v{T + i}, 0xbfb8aa3b, v{ACC + i}')
    for i in range(4):
        g(f'v_exp_f32 v{T + i}, v{T + i}')
    for i in range(4):
        g(f'v_add_f32 v{T + i}, 1.0, v{T + i}')
    for i in range(4):
        g(f'v_rcp_f32 v{T + i}, v{T + i}')
    for i in range(4):
        g(f'v_mul_f32 v{T + i}, v{T + i}, v{ACC + i}')
    pack(g, T + 4, T)
    actwrite(g, T + 4, L.ACTS)


def proj(g):
    L = Lds(8448)
    Y, SB = 8, 12
    PO, RO, RL, OUTO = 8, 9, 10, 11
    WG, AO, AO3, OW = 12, 17, 18, 16
    WQO, WMO, SW, SR = 17, 18, 19, 23
    RX, RGA, RGB, RB2 = 20, 21, 22, 23
    JC, ODD = 's14', 's15'
    g.vm = []

    def reduce(mb, nprod, part):
        GR = ('s4', 's5', 's6', 's47')[:4 if part == 0 or P['GBG'] or P['LQ'] == 2 else 2]
        if part == 0 and P['GAE']:
            GR = ()
        for i, r in enumerate(GR):
            g(f's_mov_b32 {r}, {MODL + part * 4096 + 32768 * i}')
        if nprod < 64:
            g(f'v_mov_b32 v{T}, 0')
            skip = g.label('L_nored')
            g(f's_cmp_ge_u32 s3, {nprod // 8}\ns_cbranch_scc1 {skip}')
        l0, l1 = g.label('L_red0'), g.label('L_red1')
        ld = f'buffer_load_dwordx4 {vr(T, 4)}, v{RO}, {S_WS}, {mb} offen sc1'
        if GR:
            g(f's_cmp_eq_u32 s3, 0\ns_cbranch_scc1 {l0}')
            poll(g, ld, range(T, T + 4), T + 4)
            g(f's_branch {l1}\n{l0}:')
        poll(g, ld + ''.join(f'\nbuffer_load_dwordx2 {vr(ACC + 18 + 2 * i, 2)}, v{RGA}, {S_WS}, {r} offen sc1'
                             for i, r in enumerate(GR)),
             list(range(T, T + 4)) + list(range(ACC + 18, ACC + 18 + 2 * len(GR))), T + 4)
        g(l1 + ':')
        g.stamp('red_polled%d' % nprod, (1,))
        g(f'v_permlane32_swap_b32 v{T}, v{T + 2}\nv_permlane32_swap_b32 v{T + 1}, v{T + 3}')
        g(f'v_add_f32 v{T}, v{T}, v{T + 2}\nv_add_f32 v{T + 1}, v{T + 1}, v{T + 3}')
        g.nop(2)
        g(f'v_permlane16_swap_b32 v{T}, v{T + 1}\nv_add_f32 v{T}, v{T}, v{T + 1}')
        g.nop(2)
        g(f'v_add_f32_dpp v{T}, v{T}, v{T} row_ror:8 {DPP}')
        if nprod < 64:
            g(skip + ':')
        g(f'ds_write_b32 v{RL}, v{T}')
        g('s_waitcnt lgkmcnt(0)\ns_barrier')
        skip = only_wave(g, 0)
        g(f'v_and_b32 v{T + 2}, 15, v0\nv_lshlrev_b32 v{T + 2}, 3, v{T + 2}')
        for w in range(8):
            g(f'ds_read_b64 {vr(ACC + 2 * w, 2)}, v{T + 2} offset:{L.PART + 128 * w}')
        if len(GR) == 4:
            pk4(g, 'v_pk_add_f32', ACC + 18, ACC + 18, ACC + 22)
        if GR:
            g(f'v_pk_add_f32 {vr(ACC + 18, 2)}, {vr(ACC + 18, 2)}, {vr(ACC + 20, 2)}')
            round2(g, ACC + 18)
        else:
            unpack2(g, ACC + 18, RGB)
        return skip

    def reduce_sum():
        g('s_waitcnt lgkmcnt(4)')
        pk4(g, 'v_pk_add_f32', ACC, ACC, ACC + 4)
        g('s_waitcnt lgkmcnt(0)')
        pk4(g, 'v_pk_add_f32', ACC + 8, ACC + 8, ACC + 12)
        pk4(g, 'v_pk_add_f32', ACC, ACC, ACC + 8)
        g(f'v_pk_add_f32 {vr(T, 2)}, {vr(ACC, 2)}, {vr(ACC + 2, 2)}')
        round2(g, T)

    g('L_proj:')
    if P['PFG'] == 3:
        g(f's_getpc_b64 s[98:99]\nL_pc0:\ns_sub_u32 s98, s98, L_pc0-{NAME}_kernel\ns_subb_u32 s99, s99, 0')
        g(f's_and_b32 s4, s2, 56\ns_add_u32 s4, s4, s3\ns_lshl_b32 s4, s4, 9\nv_lshl_add_u32 v{T}, v0, 3, s4')
        g.vmop(f'global_load_dwordx2 {vr(ACC + 4, 2)}, v{T}, s[98:99]', 'in')
    g(f's_and_b32 {JC}, s2, 7\ns_lshl_b32 {JC}, {JC}, 3\ns_lshr_b32 s4, s2, 3\ns_add_u32 {JC}, {JC}, s4')
    g(f's_lshl_b32 s4, s3, 6\nv_add_u32 v{TID}, s4, v0')
    nvoff(g, WMO, 12288)
    g(f'''s_and_b32 {ODD}, {JC}, 1
          s_lshr_b32 s6, {JC}, 1
          s_lshl_b32 s6, s6, 7
          s_mul_i32 s13, {ODD}, {512 * 12288}
          s_add_u32 s13, s13, s6''')
    g.bits(T + 6, TID, [(3, 6, 64), (0, 2, 16), (2, 1, 8)], T)
    g('s_waitcnt lgkmcnt(0)')
    srd(g, S_B, 36, 4096)
    g.vmop(f'buffer_load_dwordx2 {vr(SB, 2)}, v{T + 6}, {S_B}, 0 offen', 'in')
    g('s_mov_b32 s60, s16\ns_mov_b32 s61, s17')
    g.vmop(f'buffer_load_dwordx2 {vr(SB + 2, 2)}, v{T + 6}, {S_B}, 0 offen', 'in')
    srd(g, S_WS, 44, WS_SIZE)
    g.vmop(epoch_load(RGB), 'in')
    if P['PFG'] == 2:
        skip = g.label('L_nopf')
        g(f's_cmp_ge_u32 s2, 8\ns_cbranch_scc1 {skip}')
        prefetch_code(g, None, 2, T, ACC + 4)
        g(skip + ':')
    nload(g, UA, 38, 1024 * 12288, 12288, 's13', WMO, (0,), tag='m1')
    consts(g)
    g(f's_lshl_b32 s7, {JC}, 7\ns_lshr_b32 s46, {JC}, 4\ns_lshl_b32 s46, s46, 2')
    g(f's_lshl_b32 s47, {ODD}, 15\ns_lshl_b32 s5, s6, 2\ns_add_u32 s47, s47, s5\ns_add_u32 s47, s47, {MODP}')
    common_addr(g, L, False)
    nvoff(g, WQO, 8192)
    g(f's_lshl_b32 s4, s3, 3\nv_mov_b32 v{SW}, s4\ns_and_b32 s4, s4, 32\nv_mov_b32 v{SR}, s4')
    g(f's_mul_i32 s8, {JC}, {MBA_ST}\ns_add_u32 s8, s8, {MBA}')
    g(f's_lshr_b32 s9, {JC}, 1\ns_mul_i32 s9, s9, {MBP}\ns_lshl_b32 s10, {ODD}, 7\ns_add_u32 s9, s9, s10\ns_add_u32 s10, s9, {MBC}\ns_add_u32 s9, s9, {MBB}')
    g(f's_lshl_b32 s11, {JC}, 7\ns_add_u32 s11, s11, {X1}')
    g.vmwait('in')
    epoch_tag(g, RGB)
    silu_image(g, L, SB)
    unpack(g, Y, SB + 2)
    layernorm(g, Y, SW, SR, L.STAT)
    nload(g, UB, 22, 1024 * 8192, 8192, 's7', WQO, (0,), tag='wq')
    g('s_waitcnt vmcnt(8)')
    transpose(g, UA)
    g(f's_lshl_b32 s4, {ODD}, {10 if P["NAT"] else 7}\nv_add_u32 v{T + 7}, s4, v{NB}')
    nsplit(g, UA, L.ACTS, T + 7)
    publish32(g, L, 's47', 16384, True)
    g.stamp('g_mod')
    nload(g, UB, 22, 1024 * 8192, 8192, 's7', WQO, (1,), tag='wq')
    MP = RGA
    g.bits(MP, TID, [(8, 1, 16384), (3, 5, 256), (0, 2, 64), (2, 1, 32)], T + 7, MODP)
    g('s_waitcnt vmcnt(8)')
    transpose(g, UB)
    g(f's_mov_b32 s4, 8192\ns_mov_b32 s5, 32768\ns_mov_b32 s12, {32768 + 8192}')
    mloads = '\n'.join(f'buffer_load_dwordx4 {vr(ACC + 4 * i, 4)}, v{MP}, {S_WS}, {("0", "s5", "s4", "s12")[i >> 1]} offen offset:{16 * (i & 1)} sc1'
                       for i in range(8))
    g(f's_waitcnt vmcnt({P["MW"]})')
    g(mloads)
    attention(g, 'g_addr')
    attention(g, 'g_issue', range(P['GE']))
    g(f's_waitcnt vmcnt({8 + P["GE"]})')
    transpose(g, UB + 1)
    g(f's_waitcnt vmcnt({P["GE"]})')
    poll(g, mloads, range(ACC + 1, ACC + 32, 2), T, P['MSL'], preloaded=True, mask=-1)
    g.vm = []
    g.stamp('g_modseen')
    for i in range(4):
        g(f'v_add_f32 v{T + i}, v{ACC + 16 + 2 * i}, v{ACC + 24 + 2 * i}')
    for i in range(4):
        g(f'v_add_f32 v{ACC + i}, v{ACC + 2 * i}, v{ACC + 8 + 2 * i}')
    round4(g, T, T + 4)
    for i in range(4):
        g(f'v_add_f32 v{T + i}, 1.0, v{T + i}')
    round4(g, T, T + 4)
    pk4(g, 'v_pk_mul_f32', Y, Y, T)
    round4(g, Y, T + 4)
    round4(g, ACC, T + 4)
    pk4(g, 'v_pk_add_f32', Y, Y, ACC)
    pack(g, T, Y)
    actwrite(g, T, L.ACTH)
    g('s_waitcnt lgkmcnt(0)\ns_barrier')
    nsplit(g, UB, L.ACTH)
    g(f's_lshl_b32 s12, s7, 1\ns_add_u32 s12, s12, {QB}')
    g(f'v_cvt_pk_bf16_f32 v{T}, v{T}, v{T}\nv_lshl_or_b32 v{T}, v{T}, 16, {S_T16}')
    publish32(g, L, 's12', 16384, False)
    g.stamp('g_q')

    attention(g, 'g_issue', range(P['GE'], 16 * P['NUG']))
    if P['NUG']:
        attention(g, 'g_q')
    assert not P['NUG'] and P['NAT']
    assert P['GH'] and P['LQ'] == 1 and P['GJ'] == 1 and not P['GBG']
    g(f's_add_u32 s47, {JC}, 32')
    qjob_issue(g, UA, 's47', WMO, 1)
    g('s_mov_b32 s100, s15\ns_mov_b32 s101, s6')
    g.vm = [('q1', 0)] * 8
    qjob_voff(g, WMO)
    qjob_issue(g, UA + 1, JC, WMO)
    g('s_mov_b32 s68, s15\ns_mov_b32 s69, s6\ns_mov_b32 s15, s100\ns_mov_b32 s6, s101')
    g.vmwait(('q1', 0))
    sv, g.vm = g.vm, []
    qjob_finish(g, L, UA, 8, 9, 1)
    g.vm = sv
    g.bits(T + 5, TID, [(4, 2, 4096), (6, 3, 256), (0, 4, 16)], T + 7)
    kload(g, UC, 24, 4096 * 2048, JC, T + 5, lambda kb, t: 32 * kb + (t & 3) * 8 + (t >> 2), 'wo')
    g('s_mov_b32 s15, s68\ns_mov_b32 s6, s69')
    qjob_finish(g, L, UA + 1, 8, 9)
    if P['GJ'] > 1:
        assert P['LQ'] == 2 and not P['GBG']
        lp = g.label('L_gj')
        g(f's_add_u32 s47, {JC}, 64\n{lp}:')
        qjob_issue(g, UA, 's47', WMO)
        qjob_finish(g, L, UA, 8, 9)
        g(f's_add_u32 s47, s47, 64\ns_cmp_lt_u32 s47, {64 * P["GJ"]}\ns_cbranch_scc1 {lp}')
    if P['GBG']:
        g(f's_add_u32 s47, {JC}, 192')
        qjob_issue(g, UA, 's47', WMO)
        qjob_finish(g, L, UA, 8, 9)
    g(f's_and_b32 {ODD}, {JC}, 1')
    if P['NUG']:
        attention(g, 'g_compute')
        g.stamp('g_att')
        common_addr(g, L, False)
    g.bits(RO, TID, [(3, 6, 256), (0, 3, 16)], T)
    g('s_waitcnt vmcnt(0)')
    g.vm = []
    transpose(g, UC, il=True)
    transpose(g, UC + 1, il=True)
    g.stamp('g_loaded')
    g(f's_lshl_b32 s4, {JC}, 5')
    g.bits(T, 0, [(0, 3, 4)], T + 1, 's4')
    srd(g, S_B, 34, 2048)
    g(f'buffer_load_dword v{RB2}, v{T}, {S_B}, 0 offen')
    g(f'v_bfe_u32 v{T + 1}, v0, 3, 1\nv_lshlrev_b32 v{RGA}, 1, v{T}\nv_lshl_add_u32 v{RGA}, v{T + 1}, 14, v{RGA}')
    g(f'v_lshl_add_u32 v{OUTO}, v{T + 1}, 11, v{T}')
    srd(g, S_B, 16, 4096)
    g(f'buffer_load_dword v{RX}, v{OUTO}, {S_B}, 0 offen')
    if P['GAE']:
        skip = only_wave(g, 0)
        GR = ('s4', 's5', 's6', 's47')
        for i, r in enumerate(GR):
            g(f's_mov_b32 {r}, {MODL + 32768 * i}')
        poll(g, '\n'.join(f'buffer_load_dwordx2 {vr(ACC + 18 + 2 * i, 2)}, v{RGA}, {S_WS}, {r} offen sc1' for i, r in enumerate(GR)),
             range(ACC + 18, ACC + 26), T + 4, 16)
        pk4(g, 'v_pk_add_f32', ACC + 18, ACC + 18, ACC + 22)
        g(f'v_pk_add_f32 {vr(ACC + 18, 2)}, {vr(ACC + 18, 2)}, {vr(ACC + 20, 2)}\nv_cvt_pk_bf16_f32 v{RGB}, v{ACC + 18}, v{ACC + 19}')
        g(skip + ':')
    srd(g, S_B, 40, 4096)
    g.bits(RL, TID, [(6, 3, 128), (5, 1, 64), (0, 3, 8), (4, 1, 4)], T, L.PART)
    po_addr(g, PO)
    kb_addr(g, L)
    g(f's_lshl_b32 s12, s7, 1\ns_add_u32 s12, s12, {MBB}')
    g.bits(AO, TID, [(8, 1, SLOTS * 256), (3, 3, 256), (6, 2, 64), (0, 3, 8)], T + 3)
    g.bits(OW, TID, [(6, 3, 32), (0, 1, 16), (1, 2, 4), (5, 1, 2)], T + 3, L.OUTV)
    g.bits(T + 5, TID, [(8, 1, 128), (3, 3, 4)], T + 3)
    g('s_add_u32 s13, s8, 4096')
    g.bits(T + 2, 0, [(5, 1, 8192), (0, 5, 8)], T + 3)
    g(f's_lshr_b32 s4, {JC}, 1\ns_lshl_b32 s4, s4, 8\ns_add_u32 s4, s4, {STATS}')
    prefetch_code(g, 'L_proj_tail', 1, T + 6, ACC)
    if P['PRE'] == 1:
        g(f'buffer_load_dwordx4 {vr(ACC + 4, 4)}, v{RO}, {S_WS}, s9 offen sc1')
    sparse_index(g, SW)
    g('\n'.join(zero32(BLK(0))))
    g('s_waitcnt vmcnt(0)')
    g.warm_run('L_wg')
    g.stamp('g_ready')
    g('L_proj_tail:')
    g.warm_begin('L_wg')
    if P['XG'] == 1:
        g('s_branch L_gend')
    NT = 4 if P['NUG'] else 3
    aloads = lambda d: '\n'.join(f'buffer_load_dwordx2 {vr(d + 2 * k, 2)}, v{AO}, {S_WS}, {"s8" if k < 2 else "s13"} offen offset:{2048 * (k & 1)} sc1'
                                 for k in range(NT))
    lp, ok = g.label('L_p1'), only_wave(g, 0)
    g(f's_mov_b32 {S_SPIN}, {SPIN}\n{lp}:')
    g(aloads(ACC + 8).split('\n')[P['P1K']] + '\ns_waitcnt vmcnt(0)')
    check(g, range(ACC + 8 + 2 * P['P1K'], ACC + 10 + 2 * P['P1K']), ACC)
    g(f's_bcnt1_i32_b64 s5, vcc\ns_cmp_le_u32 s5, {P["P1TH"]}\ns_cbranch_scc1 {ok}')
    g(f's_sleep {P["P1SL"]}\ns_sub_u32 {S_SPIN}, {S_SPIN}, 1\ns_cbranch_scc0 {lp}\n{ok}:\ns_barrier')
    g.stamp('g_hint', (0, 1))
    if P['PRE'] == 2:
        g(f'buffer_load_dwordx4 {vr(ACC + 4, 4)}, v{RO}, {S_WS}, s9 offen sc1')
    g(f'v_mov_b32 v{T}, 0xff800000\nv_mov_b32 v{T + 1}, 0')
    g.setexec(-1 if P['NUG'] else ((1 << SPL) - 1) * 0x100000001)
    poll(g, f'buffer_load_dwordx2 {vr(T, 2)}, v{T + 2}, {S_WS}, s4 offen sc1', [T, T + 1], T + 4, 2)
    g.setexec(-1)

    def red32(r, t, op):
        for sh in (8, 4, 2, 1):
            g.nop(2)
            g(f'{op}_dpp v{r}, v{r}, v{r} row_ror:{sh} {DPP}')
        g(f'v_mov_b32 v{t}, v{r}')
        g.nop(2)
        g(f'v_permlane16_swap_b32 v{r}, v{t}\n{op} v{r}, v{r}, v{t}')
    g(f'v_and_b32 v{T}, {S_MASK}, v{T}\nv_mov_b32 v{T + 2}, v{T}')
    red32(T + 2, T + 3, 'v_max_f32')
    g(f'v_sub_f32 v{T}, v{T}, v{T + 2}\nv_mul_f32 v{T}, 0x3fb8aa3b, v{T}\nv_exp_f32 v{T}, v{T}\ns_nop 0')
    g(f'v_mul_f32 v{T + 1}, v{T + 1}, v{T}')
    red32(T + 1, T + 3, 'v_add_f32')
    g(f'v_rcp_f32 v{T + 1}, v{T + 1}\ns_nop 0\nv_mul_f32 v{T}, v{T}, v{T + 1}')
    for k in range(4):
        g(f'ds_bpermute_b32 v{WG + k}, v{T + 5}, v{T} offset:{32 * k}')
    g('s_waitcnt lgkmcnt(0)')
    g.stamp('g_wgt', (0, 1))
    if P['P2TH'] < P['P1TH']:
        lp, ok = g.label('L_p1'), only_wave(g, 0)
        g(f's_mov_b32 {S_SPIN}, {SPIN}\n{lp}:')
        g(aloads(ACC + 8).split('\n')[P['P1K']] + '\ns_waitcnt vmcnt(0)')
        check(g, range(ACC + 8 + 2 * P['P1K'], ACC + 10 + 2 * P['P1K']), ACC)
        g(f's_bcnt1_i32_b64 s5, vcc\ns_cmp_le_u32 s5, {P["P2TH"]}\ns_cbranch_scc1 {ok}')
        g(f's_sleep {P["P2SL"]}\ns_sub_u32 {S_SPIN}, {S_SPIN}, 1\ns_cbranch_scc0 {lp}\n{ok}:\ns_barrier')
        g.stamp('g_go', (0, 1))
    if P['W2TH']:
        skip = only_wave(g, 0)
        lp, ok = g.label('L_p2'), g.label('L_p2ok')
        g(f's_and_b32 s5, {JC}, 15\ns_cbranch_scc1 {skip}\ns_mov_b32 {S_SPIN}, {SPIN}\n{lp}:')
        g(aloads(T) + '\ns_waitcnt vmcnt(0)')
        check(g, range(T, T + 2 * NT), ACC)
        g(f's_bcnt1_i32_b64 s5, vcc\ns_cmp_le_u32 s5, {P["W2MISS"]}\ns_cbranch_scc1 {ok}')
        g(f's_sub_u32 {S_SPIN}, {S_SPIN}, 1\ns_cbranch_scc0 {lp}\n{ok}:')
        g(faddr('s46', C_A) + f'v_mov_b32 v{ACC}, {S_EPO}\ns_mov_b64 exec, 1\nbuffer_store_dword v{ACC}, off, {S_WS}, s98 sc1\ns_mov_b64 exec, -1')
        g(skip + ':')
    poll(g, aloads(T), range(T, T + 2 * NT), ACC, P['SLEEP'])
    g.stamp('g_apolled', (0, 1))
    g(f'v_mul_f32 v{T}, v{WG}, v{T}\nv_mul_f32 v{T + 1}, v{WG}, v{T + 1}')
    for k in range(1, NT):
        g(f'v_fmac_f32 v{T}, v{WG + k}, v{T + 2 * k}\nv_fmac_f32 v{T + 1}, v{WG + k}, v{T + 2 * k + 1}')
    g.nop(2)
    g(f'v_permlane32_swap_b32 v{T}, v{T + 1}\nv_add_f32 v{T}, v{T}, v{T + 1}\nv_mov_b32 v{T + 1}, v{T}')
    g.nop(2)
    g(f'v_permlane16_swap_b32 v{T}, v{T + 1}\nv_add_f32 v{T}, v{T}, v{T + 1}')
    g.nop(2)
    g(f'v_add_f32_dpp v{T}, v{T}, v{T} row_ror:8 {DPP}')
    g(f'v_cvt_pk_bf16_f32 v{T}, v{T}, v{T}\nds_write_b16 v{OW}, v{T}')
    g('s_waitcnt lgkmcnt(0)\ns_barrier')
    g.stamp('g_obar', (1,))
    if P['XG'] == 2:
        g('s_branch L_gend')
    ksplit_out(g, UC, PO, 's12', BLK(0), SW)
    g.stamp('g_t2', (0, 1))
    if P['BW']:
        g('s_waitcnt vmcnt(0)')
    if P['BW'] == 2:
        g('s_barrier')
    skip = reduce('s9', 64, 0)
    unpack2(g, T + 6, RX)
    if P['REP']:
        g(f'v_lshrrev_b32 v{T + 3}, 4, v0\nv_lshl_add_u32 v{T + 3}, v{T + 3}, 13, v{T + 2}\ns_add_u32 s4, s11, 32768')
    else:
        g(f'v_lshlrev_b32 v{T + 3}, 3, v0')
    g(f'v_mov_b32 v{ACC + 16}, {S_MASK}')
    reduce_sum()
    g(f'v_pk_mul_f32 {vr(T, 2)}, {vr(T, 2)}, {vr(ACC + 18, 2)}')
    round2(g, T)
    g(f'v_pk_add_f32 {vr(T, 2)}, {vr(T, 2)}, {vr(T + 6, 2)}')
    g(f'v_cvt_pk_bf16_f32 v{RX}, v{T}, v{T + 1}')
    g(f'v_lshl_or_b32 v{T}, v{RX}, 16, {S_T16}\nv_and_or_b32 v{T + 1}, v{RX}, v{ACC + 16}, {S_T16}')
    if P['REP']:
        g(f'buffer_store_dwordx2 {vr(T, 2)}, v{T + 3}, {S_WS}, s11 offen sc1\nbuffer_store_dwordx2 {vr(T, 2)}, v{T + 3}, {S_WS}, s4 offen sc1')
    else:
        g.setexec(0xffff)
        g(f'buffer_store_dwordx2 {vr(T, 2)}, v{T + 3}, {S_WS}, s11 offen sc1')
        g.setexec(-1)
    g(skip + ':')
    g.stamp('g_x1', (0, 1))
    g('s_barrier')
    skip = reduce('s10', 56, 3)
    unpack2(g, T + 2, RB2)
    unpack2(g, T + 6, RX)
    reduce_sum()
    g(f'v_pk_add_f32 {vr(T, 2)}, {vr(T, 2)}, {vr(T + 2, 2)}')
    round2(g, T)
    g(f'v_pk_mul_f32 {vr(T, 2)}, {vr(T, 2)}, {vr(ACC + 18, 2)}')
    round2(g, T)
    g(f'v_pk_add_f32 {vr(T, 2)}, {vr(T, 2)}, {vr(T + 6, 2)}')
    g(f'v_cvt_pk_bf16_f32 v{T}, v{T}, v{T + 1}')
    g.setexec(0xffff)
    g(f'buffer_store_dword v{T}, v{OUTO}, {S_B}, 0 offen')
    g(f's_cmp_lg_u32 s2, 0\ns_cbranch_scc1 {skip}\nv_mov_b32 v{T + 1}, {S_EPO}\ns_mov_b64 exec, 1')
    g(f'buffer_store_dword v{T + 1}, off, {S_WS}, 0 sc1')
    g(skip + ':')
    g.warm_end()
    g('L_gend:')
    g.stamp('g_out', (0, 1, 3))
    if P['PADTO']:
        if P['PADWG'] >= 0:
            g(f's_cmp_lg_u32 s2, {P["PADWG"]}\ns_cbranch_scc1 L_nopad')
        g(f'L_pad:\ns_memrealtime s[4:5]\ns_waitcnt lgkmcnt(0)\ns_sub_u32 s4, s4, s70\ns_cmp_lt_u32 s4, {P["PADTO"]}\ns_cbranch_scc1 L_pad\nL_nopad:')
    write_stamps(g)
    g('s_endpgm')


MLP_LDS = 4096
W1L = 4096
LDS_TOTAL = W1L + 131072


def mlp(g):
    L = Lds(MLP_LDS)
    PO, XO, SW, SR, B1 = 8, 9, 10, 11, 17
    C1, SH = 12, 18
    JM = 's14'
    g.vm = []
    g('L_mlp:')
    g.warm_begin('L_wp')
    if P['W2E'] and P['W2P']:
        kload(g, UB, 32, 3584 * 2048, JM, 7, lambda kb, t: 32 * kb + 4 * t, 'w2', which=range(P['W2E']))
        g.vm = []
    if P['XW'] == 1:
        write_stamps(g)
        g('s_endpgm')
    if P['W2TH']:
        skip = only_wave(g, 0)
        fpoll(g, ACC + 4, 's101', C_A, P['LSL'])
        g(skip + ':')
    g(f's_lshl_b32 s4, s3, 6\nv_add_u32 v{TID}, s4, v0')
    g(f's_lshl_b32 s7, {JM}, 7')
    MP, MB, XV = 16, BLK(0), ACC
    g.bits(MP, TID, [(8, 1, 16384), (0, 8, 16)], T, MODL + 4096)
    g(f'v_add_u32 v{MP + 6}, 4096, v{MP}\ns_mov_b32 s8, 32768\ns_mov_b32 s9, 65536\ns_mov_b32 s10, 98304')
    mloads = '\n'.join(f'buffer_load_dwordx4 {vr(MB + 4 * i, 4)}, v{MP + 6 * (i >> 2)}, {S_WS}, {("0", "s8", "s9", "s10")[i & 3]} offen sc1'
                       for i in range(8) if (i & 3) < (1 << P['LQ']))
    early = P['GH'] or P['GJ'] >= 3
    srd(g, S_B, 30, 3584 * 2)
    g.bits(T + 4, TID, [(2, 6, 2)], T, 's7')
    g.bits(T + 5, TID, [(4, 2, 2048), (6, 3, 256), (0, 4, 16)], T + 7)
    g('s_barrier')
    g.vmop(f'buffer_load_ushort v{B1}, v{T + 4}, {S_B}, 0 offen', 'k')
    if early and P['MLD'] < 0:
        g.vmop(mloads, 'k')
    prefetch_code(g, 'L_mlp_tail', 1, T + 4, ACC + 8, 'k')
    g.vm = [('w2', 0)] + g.vm
    kload(g, UB, 32, 3584 * 2048, JM, T + 5, lambda kb, t: 32 * kb + 4 * t, 'w2', which=range(P['W2E'], 16))
    mlp_addr(g, L)
    g.bits(XO, TID, [(2, 6, 128), (8, 1, 64), (0, 2, 16)], T, X1)
    if P['REP']:
        g(f's_and_b32 s4, s2, 7\ns_lshl_b32 s4, s4, 13\nv_add_u32 v{XO}, s4, v{XO}')
    po_addr(g, PO)
    g(f's_lshl_b32 s13, s7, 1\ns_add_u32 s13, s13, {MBC}')
    g(f's_lshl_b32 s4, s3, 3\nv_mov_b32 v{SW}, s4\ns_and_b32 s4, s4, 32\nv_mov_b32 v{SR}, s4')
    if P['MLD'] >= 0:
        g(f's_lshl_b32 s4, s3, 14\ns_add_u32 s4, s4, {W1L + 8192}\nv_lshl_add_u32 v{T}, v0, 4, s4')
        for i in range(4):
            g(f'ds_read_b128 {vr(MB + 4 * (i & 1) + 16 * (i >> 1), 4)}, v{T} offset:{1024 * i}')
    IDX = 23
    sparse_index(g, IDX)
    g('s_waitcnt lgkmcnt(0)')
    xload = f'buffer_load_dwordx4 {vr(XV, 4)}, v{XO}, {S_WS}, 0 offen sc1'

    def w2_finish():
        g.vmwait(('w2', 0))
        transpose(g, UB, il=True)
        if not early:
            g.vmop(mloads, 'k')
        g.vmwait(('w2', 1))
        g.vmop(xload, 'x')
        transpose(g, UB + 1, il=True)
        g.stamp('m_w2', (2,))
    if not early:
        w2_finish()
    g.vmwait('k')
    poll(g, mloads, [r for r in range(MB, MB + 32) if ((r - MB) & 15) < (4 << P['LQ'])], T, P['MLS'], preloaded=True)
    for d, b in ((SH, MB), (C1, MB + 16)):
        if P['LQ'] == 2:
            pk4(g, 'v_pk_add_f32', b, b, b + 8)
            pk4(g, 'v_pk_add_f32', b + 4, b + 4, b + 12)
        pk4(g, 'v_pk_add_f32', d, b, b + 4)
    round4(g, SH, T)
    round4(g, C1, T)
    for i in range(4):
        g(f'v_add_f32 v{C1 + i}, 1.0, v{C1 + i}')
    round4(g, C1, T)
    g(f'v_lshlrev_b32 v{B1}, 16, v{B1}')
    KC = BLK(1)
    if P['LNM']:
        g.bits(SW, TID, [(8, 1, 128), (4, 2, 16), (6, 2, 4)], T)
        g.bits(SR, TID, [(8, 1, 128)], T)
        g(f'v_add_f32 v{T}, v{C1}, v{C1 + 1}\nv_mul_f32 v{T + 1}, v{C1}, v{C1}\nv_mul_f32 v{T + 2}, v{C1}, v{SH}')
        g(f'v_add_f32 v{T + 3}, v{SH}, v{SH + 1}\nv_mul_f32 v{T + 4}, v{SH}, v{SH}\nv_mov_b32 v{T + 5}, 0')
        for i in range(1, 4):
            if i > 1:
                g(f'v_add_f32 v{T}, v{T}, v{C1 + i}\nv_add_f32 v{T + 3}, v{T + 3}, v{SH + i}')
            g(f'v_fmac_f32 v{T + 1}, v{C1 + i}, v{C1 + i}\nv_fmac_f32 v{T + 2}, v{C1 + i}, v{SH + i}\nv_fmac_f32 v{T + 4}, v{SH + i}, v{SH + i}')
        g.nop(1)
        blocksum6(g, T, SW, SR, L.STAT + 256, KC)
        for i in range(5):
            g(f'v_mul_f32 v{KC + i}, 0x3a800000, v{KC + i}')
    g('\n'.join(zero32(BLK(0))))
    assert P['LNM'] and not ('p' in P['WREG'] and 'm' in P['WREG'])
    g.warm_run('L_wm')
    if early:
        w2_finish()
    g.warm_end()
    g.stamp('m_ready', (0, 2))
    g('L_mlp_tail:')
    g.warm_begin('L_wm')
    g('s_waitcnt vmcnt(0)')
    poll(g, xload, range(XV, XV + 4), T, mask=0xffff, preloaded=True)
    g.stamp('m_x1seen', (0, 2))
    for i in range(4):
        g(f'v_and_b32 v{XV + i}, {S_MASK}, v{XV + i}')
    if P['LNM']:
        UV, R = ACC + 4, ACC + 8
        pk4(g, 'v_pk_mul_f32', UV, XV, C1)
        g(f'v_pk_add_f32 {vr(R, 2)}, {vr(XV, 2)}, {vr(XV + 2, 2)}\nv_pk_mul_f32 {vr(R + 2, 2)}, {vr(XV, 2)}, {vr(XV, 2)}')
        g(f'v_pk_add_f32 {vr(R + 4, 2)}, {vr(UV, 2)}, {vr(UV + 2, 2)}\nv_pk_mul_f32 {vr(R + 6, 2)}, {vr(UV, 2)}, {vr(UV, 2)}')
        g(f'v_pk_mul_f32 {vr(R + 8, 2)}, {vr(UV, 2)}, {vr(C1, 2)}\nv_pk_mul_f32 {vr(R + 10, 2)}, {vr(UV, 2)}, {vr(SH, 2)}')
        g(f'v_pk_fma_f32 {vr(R + 2, 2)}, {vr(XV + 2, 2)}, {vr(XV + 2, 2)}, {vr(R + 2, 2)}')
        g(f'v_pk_fma_f32 {vr(R + 6, 2)}, {vr(UV + 2, 2)}, {vr(UV + 2, 2)}, {vr(R + 6, 2)}')
        g(f'v_pk_fma_f32 {vr(R + 8, 2)}, {vr(UV + 2, 2)}, {vr(C1 + 2, 2)}, {vr(R + 8, 2)}')
        g(f'v_pk_fma_f32 {vr(R + 10, 2)}, {vr(UV + 2, 2)}, {vr(SH + 2, 2)}, {vr(R + 10, 2)}')
        for d, i in enumerate((0, 4, 2, 6, 8, 10)):
            g(f'v_add_f32 v{T + d}, v{R + i}, v{R + i + 1}')
        blocksum6(g, T, SW, SR, L.STAT, R, finish=False)
        M, A, E1, E2, E3, EH, V2 = T, T + 1, T + 2, T + 3, T + 4, T + 5, T + 6
        K = '0x3a800000'
        rnd = lambda r: f'v_cvt_pk_bf16_f32 v{r}, 0, v{r}'
        sum4 = lambda i: [f'v_add_f32 v{R + 4 * i}, v{R + 4 * i}, v{R + 4 * i + 1}', f'v_add_f32 v{R + 4 * i + 2}, v{R + 4 * i + 2}, v{R + 4 * i + 3}',
                          f'v_add_f32 v{R + 4 * i}, v{R + 4 * i}, v{R + 4 * i + 2}', f'v_mul_f32 v{R + 4 * i}, {K}, v{R + 4 * i}']
        tail = lambda v: [f'v_max_f32 v{v}, 0, v{v}', rnd(v), f'v_add_f32 v{v}, 0x3727c5ac, v{v}', rnd(v), f'v_sqrt_f32 v{v}, v{v}', rnd(v),
                          f'v_rcp_f32 v{v}, v{v}']
        g('s_waitcnt lgkmcnt(4)')
        for x, y in zip(sum4(0), sum4(1)):
            g(x + '\n' + y)
        g('s_waitcnt lgkmcnt(0)')
        g.stamp('m_ln1', (2,))
        fill = [f'v_cvt_pk_bf16_f32 v{M}, 0, v{R}']
        for q in zip(sum4(2), sum4(3), sum4(4), sum4(5)):
            fill += list(q)
        fill += [f'v_fma_f32 v{E1}, -v{M}, v{KC}, v{R + 8}', f'v_fma_f32 v{E2}, -v{M}, v{KC + 1}, v{R + 20}',
                 f'v_fma_f32 v{E3}, v{M}, v{KC + 2}, -v{R + 16}', f'v_add_f32 v{E2}, v{E2}, v{E2}', f'v_sub_f32 v{E3}, v{E3}, v{R + 16}',
                 f'v_fma_f32 v{UV}, -v{M}, v{C1}, v{UV}', f'v_fma_f32 v{E3}, v{M}, v{E3}, v{R + 12}']
        weave(g, [f'v_fma_f32 v{A}, -v{R}, v{R}, v{R + 4}'] + tail(A), fill, 2)
        fill = [f'v_fma_f32 v{UV + i}, -v{M}, v{C1 + i}, v{UV + i}' for i in range(1, 4)]
        fill += [f'v_cvt_pk_bf16_f32 v{E1}, 0, v{EH}'] + [f'v_fma_f32 v{UV + i}, v{UV + i}, v{A}, v{SH + i}' for i in range(4)]
        fill += [f'v_sub_f32 v{UV + i}, v{UV + i}, v{E1}' for i in range(4)]
        g(f'v_fma_f32 v{EH}, v{E1}, v{A}, v{KC + 3}')
        weave(g, [f'v_fma_f32 v{V2}, v{E3}, v{A}, v{E2}', f'v_fma_f32 v{V2}, v{V2}, v{A}, v{KC + 4}', f'v_fma_f32 v{V2}, -v{EH}, v{EH}, v{V2}'] + tail(V2), fill, 1)
        for i in range(4):
            g(f'v_mul_f32 v{UV + i}, v{UV + i}, v{V2}')
        pack(g, T + 6, UV)
    else:
        layernorm(g, XV, SW, SR, L.STAT)
        g.stamp('m_ln1', (2,))
        pk4(g, 'v_pk_mul_f32', XV, XV, C1)
        round4(g, XV, T + 6)
        pk4(g, 'v_pk_add_f32', XV, XV, SH)
        round4(g, XV, T + 6)
        layernorm(g, XV, SW, SR, L.STAT + 64, last_packed=True)
    g(f'ds_write2_b32 v{KW}, v{T + 6}, v{T + 7} offset1:4')
    g('s_waitcnt lgkmcnt(0)\ns_barrier')
    g.stamp('m_ln2', (2,))
    nsplit(g, UC, L.ACTH, fast=(BLK(0), BLK(1) + 8, IDX, zero32(ACC)))
    g.stamp('m_t3', (2,))
    g(f'''v_cvt_pk_bf16_f32 v{T}, 0, v{T}
          v_mov_b32 v{T + 2}, 0xc0135761
          v_add_f32 v{T}, v{T}, v{B1}
          v_cvt_pk_bf16_f32 v{T}, 0, v{T}
          v_mul_f32 v{T + 1}, v{T}, v{T}
          v_fmac_f32 v{T + 2}, 0xbdd2d3e8, v{T + 1}
          v_mul_f32 v{T + 1}, v{T + 2}, v{T}
          v_exp_f32 v{T + 1}, v{T + 1}
          s_nop 0
          v_add_f32 v{T + 1}, 1.0, v{T + 1}
          v_rcp_f32 v{T + 1}, v{T + 1}
          s_nop 0
          v_mul_f32 v{T}, v{T}, v{T + 1}
          v_cvt_pk_bf16_f32 v{T}, v{T}, v{T}
          ds_write_b16 v{NO}, v{T}
          s_waitcnt lgkmcnt(0)
          s_barrier''')
    g.stamp('m_gelu', (2,))
    ksplit_out(g, UB, PO, 's13', ACC, IDX)
    g.warm_end()
    g.stamp('m_t4', (0, 2))
    write_stamps(g)
    g('s_endpgm')


def latem(g):
    L = Lds(MLP_LDS)
    g.vm = []
    g('L_late:')
    if P['XL']:
        write_stamps(g)
        g('s_endpgm')
    g(f's_lshl_b32 s4, s3, 6\nv_add_u32 v{TID}, s4, v0')
    LQ = P['LQ']
    qjob_voff(g, 8, LQ)
    g(f's_add_u32 s14, s14, {(16 << LQ) * (3 if P["GH"] else P["GJ"])}')
    g.bits(T + 6, TID, [(3, 6, 64), (0, 2, 16), (2, 1, 8)], T)
    srd(g, S_B, 36, 4096)
    g('s_barrier')
    g.stamp('l_bar', (4,))
    g.vmop(f'buffer_load_dwordx2 {vr(12, 2)}, v{T + 6}, {S_B}, 0 offen', 'in')
    qjob_issue(g, UA, 's14', 8, LQ)
    g.stamp('l_iss', (4,))
    common_addr(g, L, False)
    g.stamp('l_addr', (4,))
    g.vmwait('in')
    g.stamp('l_c', (4,))
    silu_image(g, L, 12)
    g('s_waitcnt lgkmcnt(0)\ns_barrier')
    g.stamp('l_silu', (4,))
    g('L_late2:')
    qjob_finish(g, L, UA, 9, 10, LQ)
    g.stamp('l_pub1', (0, 1, 2, 4))
    if not P['GBG'] and LQ == 2 and P['GJ'] == 1:
        done = g.label('L_latedone')
        g(f's_cmp_ge_u32 s14, 128\ns_cbranch_scc1 {done}\ns_add_u32 s14, s14, 128\ns_barrier')
        qjob_issue(g, UA, 's14', 8)
        g(f's_branch L_late2\n{done}:')
    write_stamps(g)
    g('s_endpgm')


def attention(g, mode='main', arg=None):
    KO, VO, QO, VSC, VMAX, OO = 1, 2, 3, 4, 5, 6
    Q0, SP, TMP, T2 = 8, 16, 40, 56
    LA, GA = T2 + 7, T2 + 6
    SLOT = lambda s: 64 + 32 * s
    AC = SLOT(0)
    U = lambda u: 's%d' % (4 + 2 * u)
    U2 = lambda u: 's%d' % (5 + 2 * u)
    S_R, S_CU, S_GA, S_T = 's47', 's68', 's96', 's69'
    S_B4, S_B5, S_O4, S_KV = 's46', 's100', 's101', 's101'
    MX, OBUF, OST = 0, W1L, 16384
    QL, QF = 1024, 3072
    S_ST = 's97'
    NN = (SPL - NMR) * 8
    NUG = P['NUG']
    n4 = min(NN, 1024 - 4 * WPR - 64 * NUG)
    EX = 6 * P['A5W']
    n5 = 1024 - 4 * WPR - n4 - 64 * NUG - EX
    RK = QF + 4
    LT = P['LIGHT']
    S_B3, S_G3 = 's0', 's43'
    XV5 = EX or P['EV']
    assert 0 <= n5 <= NN
    base = [0, WPR, 2 * WPR, 3 * WPR, 4 * WPR, 4 * WPR + n4]
    VSLOT = [1, 2, 3, 1, 4, 5] if mode == 'main' else [NUG + u for u in range(NUG)]

    def unit_addr(u):
        g(f's_add_u32 {U(u)}, {S_GA}, {"s98" if u < (5 if n4 == NN else 4) else S_T}')
        if u:
            g(f's_add_u32 {U(u)}, {U(u)}, {base[u]}')
        g(f's_and_b32 {U(u)}, {U(u)}, 1023\ns_lshl_b32 {U(u)}, {U(u)}, 13\ns_add_u32 {U2(u)}, {U(u)}, 4096')

    def entry():
        g.vm = []
        g('L_attn:')
        g(f'''s_sub_u32 {S_T}, s2, {NG}
              s_mul_hi_u32 {S_R}, {S_T}, {(1 << 32) // SPL + 1}
              s_mul_i32 {S_CU}, {S_R}, {SPL - (1 if P["ROT"] else 0)}
              s_sub_u32 {S_CU}, {S_T}, {S_CU}
              s_sub_u32 {S_T}, {S_CU}, {SPL}
              s_cselect_b32 {S_CU}, {S_CU}, {S_T}
              s_lshl_b32 s98, {S_CU}, 3
              s_add_u32 s98, s98, s3
              s_mul_i32 {S_GA}, {S_R}, {P["PH"]}''')
        unit_addr(0)
        g.bits(KO, 0, [(1, 1, 1024), (2, 2, 256), (0, 1, 64), (4, 2, 16)], 8)
        g(f's_lshl_b32 s99, {S_R}, 23\ns_mov_b32 s58, 0x800000\ns_mov_b32 s59, 0x20000')
        g.stamp('a_prek', (5,))
        g('s_waitcnt lgkmcnt(0)')
        g.stamp('a_karg', (5,))
        g('s_add_u32 s56, s18, s99\ns_addc_u32 s57, s19, 0')

    def entry2():
        consts(g)
        g(f's_add_u32 s60, s20, s99\ns_addc_u32 s61, s21, 0\ns_mov_b32 s62, 0x800000\ns_mov_b32 s63, 0x20000')
        g(f'''s_mul_i32 {S_T}, s3, {SPL - NMR}
              s_add_u32 {S_T}, {S_T}, {S_CU}
              s_cmp_lt_u32 {S_CU}, {SPL - NMR}
              s_cselect_b32 {S_T}, {S_T}, 1023''')
        for u in range(1, NU):
            unit_addr(u)
        if LT:
            g(f's_add_u32 s99, {S_GA}, {S_T}\ns_add_u32 s99, s99, {base[3] + NN + 8 - LT - n5}\ns_and_b32 s99, s99, 1023\ns_lshl_b32 s99, s99, 13')
            g(f's_cmp_ge_u32 {S_T}, {n5}\ns_cselect_b32 {U(5)}, s99, {U(5)}\ns_add_u32 {U2(5)}, {U(5)}, 4096')
            g(f's_sub_u32 s99, s98, {NN + 8 - LT}\ns_cmp_lt_u32 s99, {LT}\ns_cselect_b32 {S_B3}, 0xff800000, 0')
        g(f'v_lshlrev_b32 v{VO}, 4, v0')
        g(f's_cmp_lt_u32 {S_T}, {n5 + LT}\ns_cselect_b32 s98, 0, 0x1000000\ns_cselect_b32 {S_B5}, 0, 0xff800000')
        g(f'v_add_u32 v{OO + 1}, s98, v{KO}')
        if EX:
            skip = g.label('L_noex')
            g(f's_cmp_le_u32 {S_CU}, {SPL - NMR}\ns_cbranch_scc1 {skip}\ns_cmp_ge_u32 s3, {P["A5W"]}\ns_cbranch_scc1 {skip}')
            g(f's_mul_i32 {U(4)}, s3, 6\ns_add_u32 {U(4)}, {U(4)}, {S_CU}\ns_add_u32 {U(4)}, {U(4)}, {S_GA}\ns_add_u32 {U(4)}, {U(4)}, {1024 - EX - 18}')
            g(f's_and_b32 {U(4)}, {U(4)}, 1023\ns_lshl_b32 {U(4)}, {U(4)}, 13\ns_add_u32 {U2(4)}, {U(4)}, 4096\ns_mov_b32 {S_T}, 0')
            g(skip + ':')
        g(f's_cmp_lt_u32 {S_T}, {n4}\ns_cselect_b32 {S_O4}, 0, 0x1000000\ns_cselect_b32 {S_B4}, 0, 0xff800000')
        g(f'v_add_u32 v{OO}, {S_O4}, v{KO}')
        assert LT and not P['RANK'] and P['DBGST'] < 0
        skip = g.label('L_noev')
        g(f's_lshr_b32 {S_G3}, {S_B3}, 7\ns_cmp_lt_u32 {S_CU}, {SPL - NMR}\ns_cbranch_scc1 {skip}')
        if P['EV']:
            g(f's_cmp_eq_u32 {S_B4}, 0\ns_cselect_b32 {U(5)}, {U(4)}, {U(3)}\ns_cselect_b32 {S_T}, 0, {S_G3}\ns_cselect_b32 {S_G3}, 0, 0x1000000')
        else:
            g(f's_mov_b32 {U(5)}, {U(4)}\ns_lshr_b32 {S_T}, {S_B4}, 7')
        g(f's_add_u32 {U2(5)}, {U(5)}, 4096\nv_add_u32 v{OO + 1}, {S_T}, v{VO}')
        g(skip + ':')

    def slice_index(d, t):
        if not LT:
            g(f's_mul_i32 {d}, {S_R}, {NMR}\ns_add_u32 {d}, {d}, {S_CU}\ns_sub_u32 {d}, {d}, {SPL - NMR}')
            return
        g(f'''s_mul_i32 {d}, {S_R}, 6
              s_add_u32 {d}, {d}, {S_CU}
              s_sub_u32 {d}, {d}, {SPL - NMR + 1 - 4}
              s_mul_hi_u32 {t}, {d}, {(1 << 32) // 7 + 1}
              s_add_u32 {d}, {d}, {t}
              s_sub_u32 {d}, {d}, 4
              s_lshl_b32 {t}, {S_R}, 3
              s_add_u32 {t}, {t}, 3
              s_min_u32 {t}, {t}, 55
              s_cmp_eq_u32 {S_CU}, {SPL - NMR}
              s_cselect_b32 {d}, {t}, {d}''')

    def load(n, pos):
        i = n & 7
        if n < 48:
            u = n >> 3
            vo = KO if u < 4 else OO + u - 4
            if u == 3 and LT:
                vo = T2 + 3
                if i == 0:
                    g(f's_lshr_b32 {S_T}, {S_B3}, 7\nv_add_u32 v{vo}, {S_T}, v{KO}')
            if u == 5:
                l1, l2 = g.label('L_k5'), g.label('L_k5j')
                g(f's_cmp_lt_u32 {S_CU}, {SPL - NMR}\ns_cbranch_scc1 {l1}')
                g(f'buffer_load_dwordx4 {vr(SLOT(u) + 4 * i, 4)}, v{vo}, {S_B}, {U2(5) if i >= 4 else U(5)} offen offset:{(i & 3) * 1024} nt')
                g(f's_branch {l2}\n{l1}:')
            g.vmop(f'buffer_load_dwordx4 {vr(SLOT(u) + 4 * i, 4)}, v{vo}, {S_A}, {U2(u) if i >= 4 else U(u)} offen '
                   f'offset:{((i >> 1) & 1) * 2048 + (i & 1) * 128} nt', pos)
            if u == 5:
                g(l2 + ':')
        elif n < 64:
            if n == 48:
                l1, l2 = g.label('L_xv'), g.label('L_xj')
                g(f's_lshl_b32 s98, s3, 14\ns_add_u32 m0, s98, {W1L}\ns_mov_b32 s95, 0x20000')
                g(f's_cmp_lt_u32 {S_CU}, {SPL - NMR}\ns_cbranch_scc1 {l1}')
                g(f's_lshl_b32 {S_T}, s3, 6\nv_add_u32 v{T2 + 1}, {S_T}, v0')
                nvoff(g, OO, 7168, T2 + 1, T2 + 2)
                g(f'v_mov_b32 v{OO + 1}, v{OO}')
                slice_index(S_T, 's98')
                g(f's_lshl_b32 {U(4)}, {S_T}, 7\ns_add_u32 {U(5)}, {U(4)}, {512 * 7168}\ns_mov_b32 {U2(4)}, {nstep() * 7168}')
                g(f's_mov_b32 s92, s28\ns_mov_b32 s93, s29\ns_mov_b32 s94, {1024 * 7168}')
                g(f's_branch {l2}\n{l1}:')
                g(f'v_sub_u32 v{T2 + 1}, v{VO}, v{KO}\nv_add_u32 v{OO}, v{OO}, v{T2 + 1}\nv_add_u32 v{OO + 1}, v{OO + 1}, v{T2 + 1}')
                g(f's_mov_b32 {U2(4)}, 1024\ns_mov_b32 s92, s60\ns_mov_b32 s93, s61\ns_mov_b32 s94, s62')
                g(l2 + ':')
            u = 4 + ((n - 48) >> 3)
            if n > 48:
                g('s_add_u32 m0, m0, 1024')
            g(f's_add_u32 {U(u)}, {U(u)}, {U2(4)}' if i else 's_nop 0')
            g.vmop(f'buffer_load_dwordx4 v{OO + u - 4}, s[92:95], {U(u)} offen nt lds', pos)
        else:
            u = (n - 64) >> 3
            vo = VO
            if u == 3 and LT:
                vo = OO
                if i == 0:
                    g(f'v_add_u32 v{vo}, {S_G3}, v{VO}')
            g.vmop(f'buffer_load_dwordx4 {vr(SLOT(VSLOT[u]) + 4 * i, 4)}, v{vo}, {S_B}, {U2(u) if i >= 4 else U(u)} offen '
                   f'offset:{(i & 3) * 1024} nt', pos)

    def mailbox():
        g.bits(GA, 0, [(5, 1, MBA_ST), (0, 5, 8)], T2)
        g(f'''s_and_b32 {S_T}, {S_R}, 3
              s_lshl_b32 {S_T}, {S_T}, 3
              s_add_u32 {S_T}, {S_T}, s3
              s_mul_i32 {S_T}, {S_T}, {2 * MBA_ST}
              s_lshr_b32 {S_GA}, {S_R}, 2
              s_mul_i32 {S_GA}, {S_GA}, {SLOTS}
              s_add_u32 {S_GA}, {S_GA}, {S_CU}
              s_lshl_b32 {S_GA}, {S_GA}, 8
              s_add_u32 {S_GA}, {S_GA}, {S_T}
              s_add_u32 {S_GA}, {S_GA}, {MBA}''')

    def setup():
        srd(g, S_WS, 44, WS_SIZE)
        if P['RANK'] or P['DBGST'] >= 0:
            srd(g, S_DBG, 42, 256)
        mailbox()
        g.vmop(epoch_load(T2 + 2), 'ep')
        if P['PFA'] == 1:
            prefetch_code(g, 'L_attn_body', 2, 8, TMP, 'pf')
        if P['PFA'] == 2:
            skip = g.label('L_nopf')
            g(f's_cmp_ge_u32 s2, {NG + 8}\ns_cbranch_scc1 {skip}')
            prefetch_code(g, 'L_attn_body', 2, 8, TMP)
            g(skip + ':')
        if P['TLB']:
            skip = g.label('L_notlb')
            sh = P['TLB']
            g(f'v_lshlrev_b32 v8, {sh}, v0')
            g.setexec((1 << min(64, 1 << (23 - sh))) - 1 if sh > 17 else -1)
            g(f's_cmp_eq_u32 s3, 1\ns_cbranch_scc0 {skip}_a\nbuffer_load_dword v{TMP + 4}, v8, {S_A}, 0 offen nt\n{skip}_a:')
            g(f's_cmp_eq_u32 s3, 2\ns_cbranch_scc0 {skip}_b\nbuffer_load_dword v{TMP + 4}, v8, {S_B}, 0 offen nt\n{skip}_b:')
            for w, (ptr, size) in enumerate(((28, 7 << 20), (32, 7 << 20), (38, 12 << 20), (44, WS_SIZE))):
                l = f'{skip}_{w}'
                g(f's_cmp_eq_u32 s3, {3 + w}\ns_cbranch_scc0 {l}')
                g(f's_mov_b32 s92, s{ptr}\ns_mov_b32 s93, s{ptr + 1}\ns_mov_b32 s94, {size}\ns_mov_b32 s95, 0x20000')
                g(f'buffer_load_dword v{TMP + 4}, v8, s[92:95], 0 offen offset:2048 {"sc1" if ptr == 44 else "nt"}')
                if size > (8 << 20):
                    g(f's_mov_b32 {S_T}, {8 << 20}\nv_add_u32 v9, {S_T}, v8\nbuffer_load_dword v{TMP + 4}, v9, s[92:95], 0 offen nt')
                g(l + ':')
            g.setexec(-1)
        g(f's_and_b32 {S_KV}, {S_R}, 3\ns_lshl_b32 {S_KV}, {S_KV}, 2')
        g.bits(QO, 0, [(0, 3, 256), (3, 1, 64), (4, 2, 16)], 8)
        g.bits(LA, 0, [(0, 4, 64)], 8)
        g(f's_lshl_b32 {S_T}, s3, 3\nv_add_u32 v8, {S_T}, v{LA}\nv_mov_b32 v9, -1\nds_write_b32 v8, v9 offset:{MX + 4}')
        g(f'v_mov_b32 v{T2}, 0\nds_write_b32 v{T2}, v{T2} offset:{QF}\ns_mov_b32 {S_ST}, 0\ns_waitcnt lgkmcnt(0)\ns_barrier')
        g(f'v_mov_b32 v{VSC}, 0x3db504f3\nv_mov_b32 v{VMAX}, 0xff800000')
        g('L_attn_body:')

    def lds_units():
        l1, l2 = g.label('L_w1'), g.label('L_w1j')
        g(f's_lshl_b32 {S_T}, s3, 14\ns_add_u32 {S_T}, {S_T}, {W1L}\nv_add_u32 v{T2}, {S_T}, v{VO}')
        g(f's_cmp_ge_u32 {S_CU}, {SPL - NMR}\ns_cbranch_scc1 {l1}')
        for i in range(16):
            g(f'ds_read_b128 {vr(SLOT(4) + 4 * i, 4)}, v{T2} offset:{i * 1024}')
        g('s_waitcnt lgkmcnt(8)')
        pv(4)
        g('s_waitcnt lgkmcnt(0)')
        pv(5)
        g(f's_branch {l2}\n{l1}:')
        if P['EV']:
            skip = g.label('L_p4')
            g(f's_cmp_eq_u32 {S_B4}, 0\ns_cbranch_scc1 {skip}')
            g(f'v_mov_b64 {vr(SP + 16, 2)}, {vr(SP + 12, 2)}\nv_mov_b64 {vr(SP + 18, 2)}, {vr(SP + 14, 2)}')
            g(skip + ':')
        pv(4, 5)
        for i in range(16):
            g(f'ds_read_b128 {vr(IL(UC, i >> 3, 4 * (i & 7)), 4)}, v{T2} offset:{i * 1024}')
        g('s_waitcnt lgkmcnt(8)')
        transpose(g, UC, T2, il=True)
        g('s_waitcnt lgkmcnt(0)')
        transpose(g, UC + 1, T2, il=True)
        g(l2 + ':')

    def qstep(final=False):
        skip = only_wave(g, P['QW'])
        l1, l3, top = g.label('L_q1'), g.label('L_q3'), g.label('L_qtop')
        if final:
            g(f's_mov_b32 {S_SPIN}, {SPIN}\n{top}:')
        g(f's_cmp_eq_u32 {S_ST}, 2\ns_cbranch_scc1 {skip}')
        if final:
            g(f's_waitcnt vmcnt(0)\ns_sub_u32 {S_SPIN}, {S_SPIN}, 1\ns_cbranch_scc1 {l3}')
        g(f's_cmp_eq_u32 {S_ST}, 0\ns_cbranch_scc1 {l1}')
        check(g, range(TMP, TMP + 16), T2, 0xffff)
        g(f's_cbranch_vccz {l3}')
        if final:
            g(f's_sleep {P["QSL"]}')
        g(l1 + ':')
        g(f's_lshl_b32 {S_T}, {S_R}, 12\ns_add_u32 {S_T}, {S_T}, {QB}\ns_mov_b32 {S_ST}, 1')
        for i in range(4):
            g(f'buffer_load_dwordx4 {vr(TMP + 4 * i, 4)}, v{VO}, {S_WS}, {S_T} offen offset:{1024 * i} sc1')
        g(f's_branch {top if final else skip}')
        g(l3 + ':')
        g(f'v_lshlrev_b32 v{T2}, 3, v0')
        for i in range(8):
            g(f'v_perm_b32 v{Q0 + i}, v{TMP + 2 * i + 1}, v{TMP + 2 * i}, {S_HI}')
        for i in range(4):
            g(f'ds_write_b64 v{T2}, {vr(Q0 + 2 * i, 2)} offset:{QL + 512 * i}')
        g(f'v_mov_b32 v{T2}, 0\nv_mov_b32 v{T2 + 1}, 1\ns_mov_b32 {S_ST}, 2\ns_waitcnt lgkmcnt(0)')
        g(f'ds_write_b32 v{T2}, v{T2 + 1} offset:{QF}')
        g(skip + ':')

    def qget():
        g.stamp('a_qwait')
        if P['NOQ']:
            return
        qstep(final=True)
        lp, ok = g.label('L_qf'), g.label('L_qfok')
        g(f'v_mov_b32 v{T2}, 0\ns_mov_b32 {S_SPIN}, {SPIN * 16}\n{lp}:')
        g(f'ds_read_b32 v{T2 + 1}, v{T2} offset:{QF}\ns_waitcnt lgkmcnt(0)')
        g(f'v_cmp_eq_u32 vcc, 0, v{T2 + 1}\ns_cbranch_vccz {ok}')
        g(f's_sleep 2\ns_sub_u32 {S_SPIN}, {S_SPIN}, 1\ns_cbranch_scc0 {lp}\n{ok}:')
        g(f'ds_read_b128 {vr(Q0, 4)}, v{QO} offset:{QL}\nds_read_b128 {vr(Q0 + 4, 4)}, v{QO} offset:{QL + 128}')
        g('s_waitcnt lgkmcnt(0)')
        g.stamp('a_qseen')

    def qk(u):
        for t in range(4):
            g(f'v_mfma_f32_16x16x32_bf16 {vr(TMP + 4 * t, 4)}, {vr(SLOT(u) + 8 * t, 4)}, {vr(Q0, 4)}, 0')
        for t in range(4):
            g(f'v_mfma_f32_16x16x32_bf16 {vr(TMP + 4 * t, 4)}, {vr(SLOT(u) + 8 * t + 4, 4)}, {vr(Q0 + 4, 4)}, {vr(TMP + 4 * t, 4)}')
        g.nop(5)
        for t in range(4):
            d = TMP + 4 * t
            a, b = T2 + 2 * (t & 1), T2 + 2 * (t & 1) + 1
            g(f'v_add_f32_dpp v{a}, v{d + 1}, v{d} row_ror:8 {DPP}\nv_add_f32_dpp v{b}, v{d + 3}, v{d + 2} row_ror:8 {DPP}')
            round2(g, a)
            if u >= 4 or (u == 3 and LT and mode == 'main'):
                sb = (S_B3, S_B4, S_B5)[u - 3]
                g(f'v_fma_f32 v{a}, v{a}, v{VSC}, {sb}\nv_fma_f32 v{b}, v{b}, v{VSC}, {sb}')
            else:
                g(f'v_mul_f32 v{a}, v{a}, v{VSC}\nv_mul_f32 v{b}, v{b}, v{VSC}')
            g(f'v_max3_f32 v{VMAX}, v{VMAX}, v{a}, v{b}\nv_cvt_pk_bf16_f32 v{SP + 4 * u + t}, v{a}, v{b}')

    def red_g(r, t, op):
        for ins in ('v_permlane32_swap_b32', 'v_permlane16_swap_b32'):
            g(f'v_mov_b32 v{t}, v{r}')
            g.nop(2)
            g(f'{ins} v{r}, v{t}\n{op} v{r}, v{r}, v{t}')

    def softmax():
        red_g(VMAX, T2, 'v_max_f32')
        for i in range(0, 32, 2):
            g(f'v_mov_b64 {vr(AC + i, 2)}, 0')
        g(f'v_mov_b32 v{VSC}, 0x3fb8aa3b\nv_mov_b32 v{T2 + 4}, 0')
        g(f'v_cvt_pk_bf16_f32 v{VMAX}, 0, v{VMAX}')
        g(f'v_mul_f32 v{T2 + 5}, v{VMAX}, v{VSC}')

    def probs(u, last=NU - 1):
        for i in range(4 * u, 4 * u + 4):
            p = SP + i
            a, b = T2 + 2 * (i & 1), T2 + 2 * (i & 1) + 1
            unpack2(g, a, p)
            g(f'v_fma_f32 v{a}, v{a}, v{VSC}, -v{T2 + 5}\nv_fma_f32 v{b}, v{b}, v{VSC}, -v{T2 + 5}')
            g(f'v_exp_f32 v{a}, v{a}\nv_exp_f32 v{b}, v{b}')
            g(f'v_add_f32 v{T2 + 4}, v{T2 + 4}, v{a}\nv_add_f32 v{T2 + 4}, v{T2 + 4}, v{b}')
            g(f'v_cvt_pk_bf16_f32 v{p}, v{a}, v{b}')
        if u == last:
            red_g(T2 + 4, T2, 'v_add_f32')
            g(f's_lshl_b32 {S_T}, s3, 3\nv_add_u32 v{T2}, {S_T}, v{LA}\nv_mov_b32 v{T2 + 2}, v{VMAX}\nv_min_u32 v{T2 + 3}, -2, v{T2 + 4}')
            g(f'ds_write_b64 v{T2}, {vr(T2 + 2, 2)} offset:{MX}')
            if mode == 'main':
                g.stamp('a_probs')

    def pv(u, slot=None):
        s = SLOT(VSLOT[u] if slot is None else slot)
        for w in range(4):
            t = TMP + 8 * (w & 1)
            for p in range(4):
                g(f'v_perm_b32 v{t + p}, v{s + 8 * p + 4 + w}, v{s + 8 * p + w}, {S_LO}')
            for p in range(4):
                g(f'v_perm_b32 v{t + 4 + p}, v{s + 8 * p + 4 + w}, v{s + 8 * p + w}, {S_HI}')
            g(f'v_mfma_f32_16x16x32_bf16 {vr(AC + 8 * w, 4)}, {vr(t, 4)}, {vr(SP + 4 * u, 4)}, {vr(AC + 8 * w, 4)}')
            g('s_nop 0')
            g(f'v_mfma_f32_16x16x32_bf16 {vr(AC + 8 * w + 4, 4)}, {vr(t + 4, 4)}, {vr(SP + 4 * u, 4)}, {vr(AC + 8 * w + 4, 4)}')

    def gather_ml():
        lp, ok = g.label('L_ml'), g.label('L_mlok')
        g(f's_mov_b32 {S_SPIN}, {SPIN * 16}\n{lp}:')
        for i in range(4):
            g(f'ds_read_b128 {vr(TMP + 4 * i, 4)}, v{LA} offset:{MX + 16 * i}')
        g('s_waitcnt lgkmcnt(0)')
        g(f'v_max_u32 v{T2}, v{TMP + 1}, v{TMP + 3}')
        for i in range(5, 16, 4):
            g(f'v_max3_u32 v{T2}, v{T2}, v{TMP + i}, v{TMP + i + 2}')
        g(f'v_cmp_eq_u32 vcc, -1, v{T2}\ns_cbranch_vccz {ok}')
        g(f's_sleep 2\ns_sub_u32 {S_SPIN}, {S_SPIN}, 1\ns_cbranch_scc0 {lp}\n{ok}:')
        g(f'v_max_f32 v{T2 + 2}, v{TMP}, v{TMP + 2}')
        for i in range(4, 16, 4):
            g(f'v_max3_f32 v{T2 + 2}, v{T2 + 2}, v{TMP + i}, v{TMP + i + 2}')

    def stats():
        skip = only_wave(g, P['SW'])
        gather_ml()
        g(f'v_mov_b32 v{T2 + 3}, 0')
        for i in range(0, 16, 2):
            g(f'v_sub_f32 v{TMP + i}, v{TMP + i}, v{T2 + 2}\nv_mul_f32 v{TMP + i}, 0x3fb8aa3b, v{TMP + i}')
        for i in range(0, 16, 2):
            g(f'v_exp_f32 v{TMP + i}, v{TMP + i}')
        g(f's_lshl_b32 {S_T}, {S_R}, 11\ns_lshl_b32 s98, {S_CU}, 3\ns_add_u32 {S_T}, {S_T}, s98\ns_add_u32 {S_T}, {S_T}, {STATS}')
        for i in range(0, 16, 2):
            g(f'v_fmac_f32 v{T2 + 3}, v{TMP + i}, v{TMP + i + 1}')
        g(f'v_lshlrev_b32 v{T2}, 8, v0')
        tagmask(g, T2 + 1)
        tag(g, [T2 + 2, T2 + 3], T2 + 1)
        g.setexec(0xff)
        if not P['XS']:
            g(f'buffer_store_dwordx2 {vr(T2 + 2, 2)}, v{T2}, {S_WS}, {S_T} offen sc1')
        g.setexec(-1)
        g(skip + ':')

    def factor():
        gather_ml()
        g(f'v_sub_f32 v{FS}, v{VMAX}, v{T2 + 2}\nv_mul_f32 v{FS}, 0x3fb8aa3b, v{FS}\nv_exp_f32 v{FS}, v{FS}')
        tagmask(g, FS + 1)

    FS = Q0 + 2
    WA, RA = KO, QO

    def epi_addr():
        g(f's_mul_i32 {S_T}, s3, {OST}\ns_add_u32 {S_T}, {S_T}, {OBUF}')
        g.bits(WA, 0, [(4, 2, 128), (0, 4, 16)], T2, S_T)
        g(f's_lshl_b32 {S_T}, s3, 4\ns_add_u32 {S_T}, {S_T}, {OBUF}')
        g.bits(RA, 0, [(1, 3, 528), (4, 2, 128), (0, 1, 8)], T2, S_T)
        g(f'v_add_u32 v{VSC}, {4 * OST}, v{RA}')

    def epilogue():
        g.setexec(rep16(0xff))
        for j in range(8):
            for h in (0, 2):
                g(f'v_pk_mul_f32 {vr(AC + 4 * j + h, 2)}, {vr(AC + 4 * j + h, 2)}, {vr(FS, 2)} op_sel_hi:[1,0]')
            g(f'ds_write_b128 v{WA}, {vr(AC + 4 * j, 4)} offset:{528 * j}')
        g.setexec(-1)
        if P['W2E'] and not P['W2P'] and mode == 'main':
            skip = g.label('L_now2')
            g(f's_cmp_lt_u32 {S_CU}, {SPL - NMR}\ns_cbranch_scc1 {skip}')
            kload(g, UB, 32, 3584 * 2048, 's14', OO + 1, lambda kb, t: 32 * kb + 4 * t, 'w2', which=range(P['W2E']))
            g(skip + ':')
        g('s_waitcnt lgkmcnt(0)\ns_barrier')
        for w in range(8):
            g(f'ds_read_b64 {vr(TMP + 2 * w, 2)}, v{RA if w < 4 else VSC} offset:{OST * (w & 3)}')
        g('s_waitcnt lgkmcnt(4)')
        pk4(g, 'v_pk_add_f32', TMP, TMP, TMP + 4)
        g('s_waitcnt lgkmcnt(0)')
        pk4(g, 'v_pk_add_f32', TMP + 8, TMP + 8, TMP + 12)
        pk4(g, 'v_pk_add_f32', TMP, TMP, TMP + 8)
        g(f'v_pk_add_f32 {vr(TMP, 2)}, {vr(TMP, 2)}, {vr(TMP + 2, 2)}')
        tag(g, [TMP, TMP + 1], FS + 1)
        if not P['XP']:
            g(f'buffer_store_dwordx2 {vr(TMP, 2)}, v{GA}, {S_WS}, {S_GA} offen sc1')

    GK, GV, S_GU = 12, 13, 's100'
    if mode == 'g_addr':
        g(f'''s_lshr_b32 {S_R}, s14, 3
              s_and_b32 {S_CU}, s14, 7
              s_lshl_b32 {S_GU}, {S_CU}, 3
              s_add_u32 {S_GU}, {S_GU}, s3
              s_mul_i32 {S_T}, {S_R}, {P["PH"]}
              s_add_u32 {S_GU}, {S_GU}, {S_T}
              s_add_u32 {S_CU}, {S_CU}, {SPL}''')
        g.bits(GK, 0, [(1, 1, 1024), (2, 2, 256), (0, 1, 64), (4, 2, 16)], GV)
        g(f'v_lshlrev_b32 v{GV}, 4, v0')
        return
    if mode == 'g_issue':
        for n in arg:
            i, isk, u = n & 7, n < 8 * NUG, (n >> 3) % NUG
            if i == 0:
                p = 18 if isk else 20
                g(f's_lshl_b32 {S_T}, {S_R}, 23\ns_add_u32 s56, s{p}, {S_T}\ns_addc_u32 s57, s{p + 1}, 0\ns_mov_b32 s58, 0x800000')
                g(f's_add_u32 s101, {S_GU}, {1024 - 64 * (NUG - u)}\ns_and_b32 s101, s101, 1023\ns_lshl_b32 s101, s101, 13\ns_add_u32 {S_T}, s101, 4096')
            off = ((i >> 1) & 1) * 2048 + (i & 1) * 128 if isk else (i & 3) * 1024
            g(f'buffer_load_dwordx4 {vr(SLOT(0) + 4 * n, 4)}, v{GK if isk else GV}, {S_A}, {S_T if i >= 4 else "s101"} offen offset:{off} nt')
        return
    gq = '\n'.join(f'buffer_load_dwordx4 {vr(Q0 + 4 * i, 4)}, v{LA}, {S_WS}, 0 offen offset:{(i >> 1) * 256 + (i & 1) * 16} sc1' for i in range(4))

    def gq_addr():
        g(f's_lshl_b32 {S_T}, {S_R}, 12\ns_add_u32 {S_T}, {S_T}, {QB}')
        g.bits(LA, 0, [(0, 3, 512), (3, 1, 128), (4, 2, 32)], GA, S_T)
    if mode == 'g_q':
        gq_addr()
        g.vmop(gq, 'gq')
        return
    if mode == 'g_compute':
        g.vmwait('gq')
        poll(g, gq, range(Q0, Q0 + 16), T2, 8, preloaded=True, mask=0xffff)
        for i in range(8):
            g(f'v_perm_b32 v{Q0 + i}, v{Q0 + 2 * i + 1}, v{Q0 + 2 * i}, {S_HI}')
        mailbox()
        g.bits(LA, 0, [(0, 4, 64)], T2)
        g(f'v_mov_b32 v{VSC}, 0x3db504f3\nv_mov_b32 v{VMAX}, 0xff800000')
        for u in range(NUG):
            qk(u)
        softmax()
        for u in range(NUG):
            probs(u, NUG - 1)
        epi_addr()
        for u in range(NUG):
            pv(u)
        g('s_waitcnt lgkmcnt(0)\ns_barrier')
        stats()
        factor()
        g('s_nop 0')
        epilogue()
        g('s_barrier')
        return

    entry()
    GS = P['GS']
    order = list(range(96))
    if P['ILV']:
        order = list(range(32, 48))
        for i in range(16):
            order += [2 * i, 2 * i + 1, 48 + i]
        order += list(range(64, 96))
    last = lambda ids: max(order.index(i) for i in ids)
    depth = lambda n: P['DK1'] if n < P['NK1'] else (P['DK2'] if n < 48 else (P['DX'] if n < 64 else P['DV']))
    qsteps = list(range(P['QP0'] - 1, P['QG'] - 1, P['QPS']))
    st = dict(landed=-1, issued=-1, done=0)

    def land(n):
        if n > st['landed']:
            g.vmwait(n)
            st['landed'] = n

    W = [('q', -1, qget)]
    W += [('qk%d' % u, last(range(8 * u, 8 * u + 8)), lambda u=u: qk(u)) for u in ([0, 1, 4, 5, 2, 3] if P['ILV'] else range(NU))]
    W += [('sm', -1, softmax)]
    W += [('pr%d' % u, -1, lambda u=u: probs(u)) for u in range(NU)]
    W += [('st', -1, stats), ('rb', 63, lambda: (epi_addr(), lds_units()))]
    for u in range(4):
        if u == 3:
            W += [('fs', -1, factor)]
        W += [('pv%d' % u, 64 + 8 * u + 7, lambda u=u: ((g.stamp('a_landed') if u == 3 else None), pv(u)))]
    names = [w[0] for w in W]

    def work(budget, need=None):
        while st['done'] < len(W):
            forced = need is not None and st['done'] <= names.index(need)
            name, ld, act = W[st['done']]
            if not forced and (budget <= 0 or st['landed'] < ld or st['issued'] < P['QG'] - 1):
                return
            assert ld <= st['issued']
            land(ld)
            act()
            st['done'] += 1
            budget -= 1

    for n in range(0, 96, GS):
        d = depth(n)
        if n + GS - 1 >= d:
            land(n + GS - 1 - d)
        if n >= 64 and n % 8 == 0:
            work(0, ['qk1', 'qk2', 'qk3', 'pv0'][(n - 64) >> 3])
        if P['PRIO']:
            steps = [int(x) for x in P['PRIO'].split('.')]
            if n in steps:
                g(f's_setprio {3 - steps.index(n) % 4}')
        for i in range(GS):
            load(order[n + i], n + i)
        m = n + GS - 1
        if m == P['FAST'] - 1:
            g.stamp('a_fast', (5,))
            if PADAT and PADAT[0] == 'a_data':
                g('s_waitcnt vmcnt(3)')
                g.stamp('a_data', (5,))
            entry2()
            setup()
            g.stamp('a_setup', (5,))
        st['issued'] = m
        if m == P['WPOS'] and 's' in P['WREG']:
            skip = only_wave(g, 7)
            g.warm_run('L_ws')
            g(skip + ':')
            g.warm_begin('L_ws')
        if m == P['STPOS']:
            g.stamp('a_pos')
        if m >= 20 and not st.get('ep'):
            st['ep'] = True
            g.vmwait('ep')
            epoch_tag(g, T2 + 2)
        if m in qsteps:
            if m != qsteps[0]:
                land(m - P['QPS'] + 1)
            qstep()
        if m == P['MLD']:
            work(0, 'rb')
            skip = g.label('L_nomld')
            g(f's_cmp_lt_u32 {S_CU}, {SPL - NMR}\ns_cbranch_scc1 {skip}')
            g(f's_lshl_b32 {S_T}, s3, 6\nv_add_u32 v{T2}, {S_T}, v0')
            g.bits(T2 + 1, T2, [(8, 1, 16384), (0, 8, 16)], T2 + 2, MODL + 4096)
            g(f's_lshl_b32 s98, s3, 14\ns_add_u32 m0, s98, {W1L + 8192}')
            for i in range(4):
                g(f's_mov_b32 {S_T}, {(i & 1) * 32768 + (i >> 1) * 4096}')
                g(f'buffer_load_dwordx4 v{T2 + 1}, {S_WS}, {S_T} offen sc1 lds\ns_add_u32 m0, m0, 1024')
            g(skip + ':')
        work(GS)
    work(0, 'fs')
    slice_index('s14', 's15')
    g(f's_lshl_b32 {S_T}, s3, 8')
    g.bits(OO + 1, 0, [(4, 2, 2048), (0, 4, 16)], T2, S_T)
    g.warm_end()
    g.warm_run('L_wa')
    if 'p' in P['WREG']:
        skip = g.label('L_nowp')
        g(f's_cmp_lt_u32 {S_CU}, {SPL - NMR}\ns_cbranch_scc1 {skip}\ns_cmp_lg_u32 s3, 0\ns_cbranch_scc1 {skip}')
        g.warm_run('L_wp')
        g(skip + ':')
    land(95)
    if P['HLP']:
        skip = only_wave(g, P['HFW'])
        g(f's_cmp_lt_u32 {S_CU}, {SPL - NMR}\ns_cbranch_scc1 {skip}')
        g(f's_lshl_b32 {S_T}, {S_R}, 3\ns_add_u32 {S_T}, {S_T}, {S_CU}\ns_lshl_b32 {S_T}, {S_T}, 8\ns_add_u32 {S_T}, {S_T}, {HFLAG - 256 * 16}')
        g(f'v_mov_b32 v{T2}, {S_EPO}\ns_mov_b64 exec, 1\nbuffer_store_dword v{T2}, off, {S_WS}, {S_T} sc1\ns_mov_b64 exec, -1')
        g(skip + ':')
    g.warm_begin('L_wa')
    work(0, 'pv3')
    epilogue()
    g.warm_end()
    g.stamp('a_pub', (0, 1, 2, 3, 4))
    g(f's_cmp_ge_u32 {S_CU}, {SPL - NMR}\ns_cbranch_scc1 L_mlp')
    if P['RANK']:
        skip = only_wave(g, 0)
        arrive(g, 8, 0, C_R)
        g(f'v_mov_b32 v9, 0\ns_waitcnt vmcnt(0)\ns_mov_b64 exec, 1\nds_write_b32 v9, v8 offset:{RK}\ns_mov_b64 exec, -1\ns_waitcnt lgkmcnt(0)')
        g(skip + ':')
        g(f's_barrier\nv_mov_b32 v8, 0\nds_read_b32 v8, v8 offset:{RK}\ns_waitcnt lgkmcnt(0)\nv_readfirstlane_b32 s14, v8')
    else:
        g(f's_sub_u32 s14, {S_CU}, 1\ns_lshl_b32 s14, s14, 3\ns_add_u32 s14, s14, {S_R}')
    if P['LSKIP']:
        g(f's_sub_u32 s14, s14, {P["LSKIP"]}')
    g(f's_cmp_lt_u32 s14, {min(128, 64 * (4 - P["GJ"])) if P["LQ"] == 2 else (32 if P["GH"] else 64 if P["GBG"] else 96)}\ns_cbranch_scc1 L_late')
    if P['HLP']:
        done = g.label('L_nohelp')
        g(f's_sub_u32 s4, {S_CU}, 9\ns_cmp_ge_u32 s4, 7\ns_cbranch_scc1 {done}\ns_add_u32 {S_CU}, {S_CU}, 8')
        g(f's_lshl_b32 s5, {S_R}, 3\ns_add_u32 s5, s5, {S_CU}\ns_lshl_b32 s5, s5, 8\ns_add_u32 s5, s5, {HFLAG - 256 * 16}')
        slice_index('s14', 's15')
        srd(g, S_A, 32, 3584 * 2048)
        g(f's_lshl_b32 s6, s14, 17\ns_lshl_b32 s7, s3, 10\ns_add_u32 s6, s6, s7\ns_add_u32 s6, s6, {131072 - 8192}')
        lp, ok = g.label('L_hp'), g.label('L_hpok')
        g(f'buffer_load_dword v8, off, {S_WS}, s5 sc1\ns_waitcnt vmcnt(0)\nv_cmp_ne_u32 vcc, {S_EPO}, v8\ns_cbranch_vccz {done if P["HLP"] == 1 else ok}')
        g(f's_mov_b32 {S_SPIN}, {SPIN}\n{lp}:\ns_sleep 2\nbuffer_load_dword v8, off, {S_WS}, s5 sc1\ns_waitcnt vmcnt(0)')
        g(f'v_cmp_ne_u32 vcc, {S_EPO}, v8\ns_cbranch_vccz {ok}\ns_sub_u32 {S_SPIN}, {S_SPIN}, 1\ns_cbranch_scc0 {lp}\n{ok}:')
        for i in range(P['HN']):
            g(f'buffer_load_dwordx4 {vr(64 + 4 * i, 4)}, v{VO}, {S_A}, s6 offen nt\ns_sub_u32 s6, s6, 8192')
        g(f's_waitcnt vmcnt(0)\n{done}:')
    for bud in range(1, P['BUD'] + 1):
        g(f's_add_u32 s4, {S_CU}, {8 * bud}\ns_sub_u32 s5, s4, {SPL}\ns_cselect_b32 s4, s4, s5')
        g(f's_lshl_b32 s4, s4, 3\ns_sub_u32 s5, 7, s3\ns_add_u32 s4, s4, s5\ns_mul_i32 s5, {S_R}, {P["PH"]}\ns_add_u32 s4, s4, s5')
        g(f's_add_u32 s4, s4, {base[3]}\ns_and_b32 s4, s4, 1023\ns_lshl_b32 s4, s4, 13\ns_add_u32 s5, s4, 4096')
        if bud == 1:
            g('s_barrier')
        for i in range(7, 7 - P['BUDN'], -1):
            g(f'buffer_load_dwordx4 {vr(64 + 4 * i, 4)}, v{VO}, {S_B}, {"s5" if i >= 4 else "s4"} offen offset:{(i & 3) * 1024} {P["BUDF"]}')
    write_stamps(g)
    g('s_endpgm')


DOC = """; One persistent launch, one 8-wave workgroup per CU (generated by the author's script).
;   ids 64..255  attention role: 24 workgroups per (batch, kv head); K is parked in registers until q arrives, scores
; the launch replaces at its end, so that words left by earlier launches are never taken for this launch's."""


def build(stamps=False):
    g = G(stamps)
    ref = open(REF).read()
    g.L.append(ref[:ref.index('; Override launch')].rstrip())
    g.L.append('; @launch grid=(%d,1,1) block=(512,1,1) lds=%d' % (NWG, LDS_TOTAL))
    g.L.append('.amdgcn_target "amdgcn-amd-amdhsa--gfx950"\n.text\n.globl %s_kernel\n.p2align 8\n.type %s_kernel,@function' % (NAME, NAME))
    g.L.append(DOC)
    g.L.append('%s_kernel:' % NAME)
    g.stamp('start', (0, 1, 2, 3, 4))
    g(f'''s_load_dwordx16 s[16:31], s[0:1], 0
          s_load_dwordx8 s[32:39], s[0:1], 64
          s_load_dwordx4 s[40:43], s[0:1], 96
          s_load_dwordx2 s[44:45], s[0:1], 112
          v_lshrrev_b32 v1, 6, v0
          v_and_b32 v0, 63, v0
          v_readfirstlane_b32 s3, v1''')
    g(f's_cmp_lt_u32 s2, {NG}\ns_cbranch_scc1 L_proj')
    g(f's_cmp_ge_u32 s2, {NWG}\ns_cbranch_scc1 L_exit')
    n0 = g.nst
    attention(g)
    n1 = g.nst
    armed = getattr(g, 'padarmed', False)
    latem(g)
    g.padarmed = armed
    g.nst = n1 + (1 if g.stamps and P['ST'] < 3 else 0)
    mlp(g)
    g.nst = n0
    g.padarmed = bool(PADAT) and PADAT[0] == 'start'
    proj(g)
    g('L_exit:\ns_endpgm')
    g('.fill 2048, 4, 0xbf800000')
    g.L.append('''.section .rodata,"a"
.p2align 6
.amdhsa_kernel %s_kernel
  .amdhsa_next_free_vgpr 256
  .amdhsa_next_free_sgpr 102
  .amdhsa_accum_offset 256
  .amdhsa_group_segment_fixed_size 0
  .amdhsa_kernarg_size 120
  .amdhsa_user_sgpr_count 2
  .amdhsa_user_sgpr_kernarg_segment_ptr 1
  .amdhsa_system_sgpr_workgroup_id_x 1
.end_amdhsa_kernel''' % NAME)
    return '\n'.join(g.L) + '\n'


if __name__ == '__main__':
    out = sys.argv[1]
    for a in sys.argv[2:]:
        if a.startswith('PADAT='):
            PADAT.append(a[6:])
        elif '=' in a:
            k, v = a.split('=')
            assert k in P, k
            P[k] = v.replace('none', '') if isinstance(P[k], str) else int(v)
    open(out, 'w').write(build(stamps='--stamps' in sys.argv))
```

```python
import sys
NAME = 'adaLN_cond__gqa_block_cached__mixer_channel_mlp__decode'
REF = 'cdna_kernels/%s.s.ref' % NAME

NG = 64
SPL = 24
NMR = 7
NA = 8 * SPL
NWG = NG + NA
WPR = SPL * 8
NU = 6

FLAGS = 0x2000
HFLAG = 0x70000
QB, STATS, X1, MODP, MODL = 0x8000, 0x10000, 0x60000, 0x20000, 0x40000
MBA, MBB, MBC = 0x100000, 0x200000, 0x300000
SLOTS = 32
MBA_ST = 2 * SLOTS * 256
WS_SIZE = 0x400000
SPIN = 1 << 18
C_A, C_B, C_R = 0, 16, 128
TMASK = 0xff

P = dict(MSL=4, LSL=8, QSL=8, ASL=2, GS=1, DK1=8, NK1=28, DK2=8, DV=12, QP0=40, QPS=8, SLEEP=0, PH=64, QG=64, DX=8, TLB=0, PRE=0, WSOFF=0, LGATE=-1, LIGHT=4, RANK=0, P1SL=8, P1TH=56, GBG=0, LQ=1, MLS=2, GJ=1, GH=1, A5W=2, WPOS=11, EV=0, W2E=3, W2P=1, PRIO='', EPI=0, GBS=0, OUTF='', FAST=4, SEL=1, MLD=80, HLP=0, HFW=4, HN=8, WARM=24, WREG='', BUD=0, BUDN=8, BUDF='nt', LSKIP=0, XL=0, XW=0, XG=0, XP=0, XS=0, P1K=0, P2TH=16, P2SL=2, W2MISS=16, W2X=0, W2TH=0, NAT=1, BW=1, REP=1, LNM=1, PFA=0, PFG=3, GAE=1, NOQ=0, QW=7, SW=4, GE=0, NUG=0, RPOS=94, ILV=0, ROT=1, MW=4, HPOS=90, ST=0, DBGST=-1, PADTO=0, PADWG=-1, STPOS=-1)

S_WS, S_DBG, S_A, S_B = 's[48:51]', 's[52:55]', 's[56:59]', 's[60:63]'
S_LO, S_HI, S_MASK, S_SPIN = 's64', 's65', 's66', 's67'
S_TAG, S_EPO, S_T16 = 's26', 's27', 's1'
DPP = 'row_mask:0xf bank_mask:0xf'


def vr(a, n):
    return 'v[%d:%d]' % (a, a + n - 1)


PADAT = []


class G:
    def __init__(self, stamps=False):
        self.vm = []
        self.L = []
        self.stamps = stamps
        self.nlabel = 0
        self.nst = 0
        self.warm = None

    def __call__(self, s):
        for line in s.strip('\n').split('\n'):
            line = line.strip()
            if line:
                self.L.append(line if line.endswith(':') else '    ' + line)
                if self.warm is not None and not line.endswith(':'):
                    self.wcount += 1
                    if self.wcount >= P['WARM'] and not line.startswith('s_getpc'):
                        self.pad()

    def pad(self, last=False):
        n = self.wpad
        self.L.append(f'{self.warm}_{n}:')
        self.L.append(f'    s_cbranch_execz {self.warm}_ret' if last else f'    s_cbranch_execz {self.warm}_{n + 1}')
        self.wpad += 1
        self.wcount = 0

    def warm_run(self, name):
        if name[-1] in P['WREG']:
            self(f's_mov_b64 exec, 0\ns_branch {name}_0\n{name}_ret:\ns_mov_b64 exec, -1')

    def warm_begin(self, name):
        if name[-1] in P['WREG']:
            self.warm, self.wpad = name, 0
            self.pad()

    def warm_end(self):
        if self.warm is not None:
            self.pad(last=True)
            self.warm = None

    def label(self, p='L'):
        self.nlabel += 1
        return '%s_%d' % (p, self.nlabel)

    def stamp(self, name, sets=(0,)):
        if PADAT and name == PADAT[0]:
            self('s_memrealtime s[90:91]')
            self.padarmed = True
        if self.stamps and P['ST'] in sets:
            k = self.nst
            self.nst += 1
            assert k < 13 and (k < 11 or name[0] in 'gr'), name
            self('s_memrealtime s[%d:%d] ; stamp %d %s' % (70 + 2 * k, 71 + 2 * k, k, name))

    def vmop(self, text, tag):
        for line in text.strip().split('\n'):
            self(line)
            self.vm.append(tag)

    def vmwait(self, *tags):
        idx = [i for i, t in enumerate(self.vm) if t in tags]
        if not idx:
            return
        n = len(self.vm) - 1 - idx[-1]
        assert n <= 63
        self('s_waitcnt vmcnt(%d)' % n)
        self.vm = self.vm[idx[-1] + 1:]

    def nop(self, n):
        while n > 0:
            k = min(n, 16)
            self('s_nop %d' % (k - 1))
            n -= k

    def bits(self, dst, src, fields, tmp, add=None):
        first = True
        for (lo, n, mul) in fields:
            t = dst if first else tmp
            if lo == 0:
                self(f'v_and_b32 v{t}, {(1 << n) - 1}, v{src}')
            else:
                self(f'v_bfe_u32 v{t}, v{src}, {lo}, {n}')
            pw = mul & (mul - 1) == 0
            sh = mul.bit_length() - 1
            if first:
                if mul != 1:
                    self(f'v_lshlrev_b32 v{dst}, {sh}, v{dst}' if pw else f'v_mul_u32_u24 v{dst}, {mul}, v{dst}')
            elif mul == 1:
                self(f'v_add_u32 v{dst}, v{dst}, v{tmp}')
            elif pw:
                self(f'v_lshl_add_u32 v{dst}, v{tmp}, {sh}, v{dst}')
            else:
                self(f'v_mul_u32_u24 v{tmp}, {mul}, v{tmp}\nv_add_u32 v{dst}, v{dst}, v{tmp}')
            first = False
        if add not in (None, 0):
            self(f'v_add_u32 v{dst}, {add}, v{dst}')

    def setexec(self, m):
        if m == -1:
            self('s_mov_b64 exec, -1')
        elif m < (1 << 31):
            self('s_mov_b64 exec, 0x%x' % m)
        else:
            self('s_mov_b32 exec_lo, 0x%x\ns_mov_b32 exec_hi, 0x%x' % (m & 0xffffffff, m >> 32))


def rep16(m):
    return m * 0x0001000100010001


def check(g, regs, tmp, mask=TMASK):
    regs = list(regs)
    if mask == TMASK:
        for r in regs:
            g(f'v_xor_b32 v{r}, {S_TAG}, v{r}')
        g(f'v_or_b32 v{tmp}, v{regs[0]}, v{regs[1]}')
        for i in range(2, len(regs), 2):
            g(f'v_or3_b32 v{tmp}, v{tmp}, v{regs[i]}, v{regs[i + 1]}')
        g(f'v_and_b32 v{tmp}, {mask}, v{tmp}\nv_cmp_ne_u32 vcc, 0, v{tmp}')
        return
    g(f'v_bitop3_b32 v{tmp}, v{regs[0]}, v{regs[1]}, {S_EPO} bitop3:0x7e')
    for r in regs[2:]:
        g(f'v_bitop3_b32 v{tmp}, v{tmp}, v{r}, {S_EPO} bitop3:0xf6')
    if mask == 0xffff:
        g(f'v_cmp_ne_u16 vcc, 0, v{tmp}')
        return
    if mask != -1:
        g(f'v_and_b32 v{tmp}, {mask}, v{tmp}')
    g(f'v_cmp_ne_u32 vcc, 0, v{tmp}')


def tagmask(g, vm):
    g(f'v_mov_b32 v{vm}, 0x{0xffffffff ^ TMASK:x}')


def tag(g, regs, vm):
    for r in regs:
        g(f'v_and_or_b32 v{r}, v{r}, v{vm}, {S_TAG}')


def epoch_load(reg):
    return f'buffer_load_dword v{reg}, off, {S_WS}, 0 sc1'


def epoch_tag(g, reg):
    g(f'''v_readfirstlane_b32 {S_EPO}, v{reg}
          s_mul_i32 {S_TAG}, {S_EPO}, 0x9e3779b1
          s_lshr_b32 {S_TAG}, {S_TAG}, 12
          s_or_b32 {S_TAG}, {S_TAG}, 1
          s_add_u32 {S_EPO}, {S_EPO}, {S_TAG}
          s_and_b32 {S_TAG}, {S_EPO}, {TMASK}
          s_and_b32 {S_T16}, {S_EPO}, 0xffff''')


def poll(g, loads, regs, tmp, sleep=0, preloaded=False, mask=TMASK):
    lp, done, chk = g.label('L_poll'), g.label('L_ok'), g.label('L_chk')
    g(f's_mov_b32 {S_SPIN}, {SPIN}')
    if preloaded:
        g(f's_branch {chk}')
    g(lp + ':')
    g(loads)
    g('s_waitcnt vmcnt(0)')
    if preloaded:
        g(chk + ':')
    check(g, regs, tmp, mask)
    g(f's_cbranch_vccz {done}')
    if sleep:
        g(f's_sleep {sleep}')
    g(f's_sub_u32 {S_SPIN}, {S_SPIN}, 1\ns_cbranch_scc0 {lp}')
    g(done + ':')


def faddr(soff, off):
    return f's_lshl_b32 s98, {soff}, 8\ns_add_u32 s98, s98, {FLAGS + 256 * off}\n'


def fread(reg, soff, off):
    return faddr(soff, off) + f'buffer_load_dword v{reg}, off, {S_WS}, s98 sc1'


def fpoll(g, reg, soff, off, sleep, preloaded=False):
    lp, done, chk = g.label('L_fpoll'), g.label('L_fok'), g.label('L_fchk')
    g(f's_mov_b32 {S_SPIN}, {SPIN}')
    if preloaded:
        g(f's_branch {chk}')
    g(lp + ':')
    g(fread(reg, soff, off) + '\ns_waitcnt vmcnt(0)')
    if preloaded:
        g(chk + ':')
    g(f'v_cmp_ne_u32 vcc, {S_EPO}, v{reg}\ns_cbranch_vccz {done}')
    if sleep:
        g(f's_sleep {sleep}')
    g(f's_sub_u32 {S_SPIN}, {S_SPIN}, 1\ns_cbranch_scc0 {lp}')
    g(done + ':')


def fwait(g, reg, soff, off, sleep):
    skip = only_wave(g, 0)
    fpoll(g, reg, soff, off, sleep)
    g(skip + ':')
    g('s_barrier')


def arrive(g, reg, soff, off):
    g(f'v_mov_b32 v{reg}, 1\ns_mov_b64 exec, 1\nbuffer_atomic_add v{reg}, off, {S_DBG}, {soff} offset:{off} sc0 sc1\ns_mov_b64 exec, -1')


def arrived(g, reg, soff, off, n):
    skip = g.label('L_notlast')
    g(f'v_readfirstlane_b32 s99, v{reg}\ns_cmp_lg_u32 s99, {n - 1}\ns_cbranch_scc1 {skip}')
    g(faddr(soff, off) + f'v_mov_b32 v{reg}, {S_EPO}\ns_mov_b64 exec, 1\nbuffer_store_dword v{reg}, off, {S_WS}, s98 sc1\ns_mov_b64 exec, -1')
    g(skip + ':')


def srd(g, s, lo, size):
    base = int(s[2:s.index(':')])
    if lo == 44 and P['WSOFF']:
        g(f's_add_u32 s{base}, s44, {P["WSOFF"] << 20}\ns_addc_u32 s{base + 1}, s45, 0\ns_mov_b32 s{base + 2}, 0x{size:x}\ns_mov_b32 s{base + 3}, 0x20000')
        return
    g(f's_mov_b32 s{base}, s{lo}\ns_mov_b32 s{base + 1}, s{lo + 1}\ns_mov_b32 s{base + 2}, 0x{size:x}\ns_mov_b32 s{base + 3}, 0x20000')


def consts(g):
    g(f's_mov_b32 {S_LO}, 0x05040100\ns_mov_b32 {S_HI}, 0x07060302\ns_mov_b32 {S_MASK}, 0xffff0000')


def only_wave(g, w):
    skip = g.label('L_skip')
    g(f's_cmp_lg_u32 s3, {w}\ns_cbranch_scc1 {skip}')
    return skip


def write_stamps(g):
    if PADAT and getattr(g, 'padarmed', False):
        l = g.label('L_padat')
        g(f'{l}:\ns_memrealtime s[4:5]\ns_waitcnt lgkmcnt(0)\ns_sub_u32 s4, s4, s90\ns_sleep 4\ns_cmp_lt_u32 s4, 6000\ns_cbranch_scc1 {l}')
    if not g.stamps:
        return
    g('s_waitcnt lgkmcnt(0)')
    skip = only_wave(g, 0)
    g('s_mov_b64 exec, 1')
    if P['DBGST'] >= 0:
        g(f's_cmp_lg_u32 s2, {P["DBGST"]}\ns_cbranch_scc1 {skip}')
        for k in range(1, min(g.nst, 12)):
            g(f's_sub_u32 s4, s{70 + 2 * k}, s70\nv_mov_b32 v2, s4')
            g(f'buffer_store_dword v2, off, {S_DBG}, 0 offset:{16 + 4 * k}')
        g(skip + ':')
        return
    g('s_lshl_b32 s4, s2, 8\ns_add_u32 s4, s44, s4\ns_addc_u32 s5, s45, 0')
    g('s_add_u32 s4, s4, %d\ns_addc_u32 s5, s5, 0' % (255 << 20))
    g('v_mov_b32 v1, 0')
    for k in range(g.nst):
        g(f'v_mov_b32 v2, s{70 + 2 * k}\nv_mov_b32 v3, s{71 + 2 * k}')
        g(f'global_store_dwordx2 v1, v[2:3], s[4:5] offset:{8 * k}')
        g('s_nop 1')
    g(skip + ':')


def prefetch_code(g, label, nkb8, vtmp, vdst, tag=None):
    pc = g.label('L_pc')
    g('s_getpc_b64 s[98:99]')
    if label:
        g(f'{pc}:\ns_add_u32 s98, s98, {label}-{pc}\ns_addc_u32 s99, s99, 0')
    g('s_and_b32 s98, s98, 0xffffff80')
    g(f's_lshl_b32 s97, s3, 10\nv_lshl_add_u32 v{vtmp}, v0, 4, s97')
    for i in range(nkb8):
        if i:
            g(f'v_add_u32 v{vtmp}, 8192, v{vtmp}')
        t = f'global_load_dwordx4 {vr(vdst, 4)}, v{vtmp}, s[98:99]'
        g.vmop(t, tag) if tag else g(t)


BLK = lambda i: 64 + 32 * i
UA, UB, UC = 0, 2, 4
IL = lambda unit, kb, i: BLK(unit) + (i >> 2) * 8 + kb * 4 + (i & 3)
MBP = 16384 + 256
ACC = 32
KW, NB, NW, NR, NO, KB, TID = 1, 2, 3, 4, 5, 6, 7
T = 24


class Lds:
    def __init__(self, base):
        self.ACTS, self.ACTH, self.RED = base, base + 4352, base + 8704
        self.OUTV = base + 17408
        self.PART = base + 17664
        self.STAT = base + 18688
        self.END = base + 19200


ABS = 2048 + 128


def nstep():
    return 1 if P['NAT'] else 64


def nvoff(g, dst, rs, tid=TID, tmp=T + 7):
    g.bits(dst, tid, [(3, 6, rs * 8 if P['NAT'] else rs), (0, 3, 16)], tmp)


def nload(g, unit, ptr, size, rs, s_col, voff, kbs=(0, 1), tag=None):
    srd(g, S_A, ptr, size)
    for kb in kbs:
        g(f's_add_u32 s4, {s_col}, {kb * 512 * rs}')
        for t in range(8):
            g.vmop(f'buffer_load_dwordx4 {vr(BLK(unit + kb) + 4 * t, 4)}, v{voff}, {S_A}, s4 offen nt', (tag, kb))
            if t < 7:
                g(f's_add_u32 s4, s4, {nstep() * rs}')


def kload(g, unit, ptr, size, s_idx, voff, rowf, tag, s_xor=None, which=range(16)):
    srd(g, S_A, ptr, size)
    g(f's_lshl_b32 s5, {s_idx}, 17')
    for kb in range(2):
        for t in range(8):
            if 8 * kb + t not in which:
                continue
            g(f's_add_u32 s4, s5, {rowf(kb, t) * 2048}')
            if s_xor:
                g(f's_xor_b32 s4, s4, {s_xor}')
            g.vmop(f'buffer_load_dwordx4 {vr(IL(unit, kb, 4 * t), 4)}, v{voff}, {S_A}, s4 offen nt', (tag, kb))


def transpose(g, blk, T=T, il=False):
    R = (lambda i: IL(blk & ~1, blk & 1, i)) if il else (lambda i: BLK(blk) + i)
    for p in range(4):
        a, c = R(8 * p + p), R(8 * p + 4 + p)
        g(f'v_perm_b32 v{T}, v{c}, v{a}, {S_LO}\nv_perm_b32 v{c}, v{c}, v{a}, {S_HI}\nv_mov_b32 v{a}, v{T}')
    for p in range(4):
        for w in range(p + 1, 4):
            xa, xb = R(8 * p + w), R(8 * p + 4 + w)
            ya, yb = R(8 * w + p), R(8 * w + 4 + p)
            g(f'v_perm_b32 v{T}, v{xb}, v{xa}, {S_LO}\nv_perm_b32 v{T + 1}, v{xb}, v{xa}, {S_HI}')
            g(f'v_perm_b32 v{xa}, v{yb}, v{ya}, {S_LO}\nv_perm_b32 v{xb}, v{yb}, v{ya}, {S_HI}')
            g(f'v_mov_b32 v{ya}, v{T}\nv_mov_b32 v{yb}, v{T + 1}')


def mfmas(g, unit, b0, b1):
    for kb, bop in ((0, b0), (1, b1)):
        if kb == 1:
            g('s_waitcnt lgkmcnt(0)')
        for j in range(8):
            d = vr(ACC + 4 * j, 4)
            g(f'v_mfma_f32_16x16x32_bf16 {d}, {vr(BLK(unit + kb) + 4 * j, 4)}, {vr(bop, 4)}, {d if kb else 0}')


def sparse_index(g, v):
    g(f'v_and_b32 v{v}, 1, v0\nv_mul_u32_u24 v{v}, 0xaaaa, v{v}\nv_add_u32 v{v}, 0x4444, v{v}')


def zero32(d):
    return [f'v_mov_b64 {vr(d + i, 2)}, 0' for i in range(0, 32, 2)]


def products(g, unit, D, idx, sel, extra=()):
    slot, ready, todo, extra = 0, {}, [], list(extra)

    def fill(n):
        nonlocal slot
        while n > 0:
            if todo and slot - ready[todo[0][0]] >= 8:
                g(todo.pop(0)[1])
            elif extra:
                g(extra.pop(0))
            else:
                return
            slot += 1
            n -= 1
    for j in range(8):
        g(f'v_smfmac_f32_16x16x64_bf16 {vr(D + 4 * j, 4)}, {vr(T, 4)}, {vr(BLK(unit) + 8 * j, 8)}, v{idx}')
        slot += 1
        ready[j] = slot
        todo += [(j, x) for x in sel(j)]
        s0 = slot
        fill(2)
        if slot - s0 < 2 and j < 7:
            g.nop(2 - (slot - s0))
            slot = s0 + 2
    while todo or extra:
        n = len(todo) + len(extra)
        fill(99)
        if len(todo) + len(extra) == n:
            w = 8 - (slot - ready[todo[0][0]])
            g.nop(w)
            slot += w


def common_addr(g, L, kperm=False):
    K0B = T + 6
    g(f's_lshl_b32 s4, s3, 6\nv_add_u32 v{TID}, s4, v0')
    g.bits(K0B, TID, [(3, 6, 64), (0, 2, 16), (2, 1, 8)], T)
    if P['NAT']:
        g.bits(KW, K0B, [(11, 1, ABS), (0, 11, 1)], T)
        g.bits(NB, TID, [(0, 1, ABS), (6, 3, 128), (4, 2, 32), (1, 1, 16)], T)
    else:
        g.bits(KW, K0B, [(11, 1, ABS), (4, 3, 256), (10, 1, 128), (1, 3, 16), (7, 3, 2)], T)
        g.bits(NB, TID, [(0, 1, ABS), (6, 3, 256), (4, 2, 32), (1, 1, 16)], T)
    g.bits(NW, TID, [(6, 3, 1088), (1, 1, 544), (0, 1, 256), (2, 2, 32), (4, 1, 16)], T, L.RED)
    g.bits(NR, TID, [(0, 2, 544), (2, 7, 4)], T, L.RED)
    g.bits(NO, TID, [(8, 1, 128), (2, 3, 16), (5, 2, 4), (7, 1, 2)], T, L.OUTV)


def kb_addr(g, L):
    g.bits(KB, TID, [(1, 1, 128), (4, 2, 32), (0, 1, 16)], T, L.OUTV)


def po_addr(g, po):
    g.bits(po, TID, [(6, 3, 4 * MBP), (2, 2, MBP), (1, 1, 128), (0, 1, 64), (4, 2, 16)], T)


def mlp_addr(g, L):
    g.bits(KW, TID, [(8, 1, ABS), (3, 5, 64), (1, 1, 32), (2, 1, 8), (0, 1, 4)], T, L.ACTH)
    g.bits(NB, TID, [(1, 1, ABS), (5, 1, 1024), (6, 3, 128), (4, 1, 64), (2, 1, 32), (0, 1, 16)], T, L.ACTH)
    g.bits(NW, TID, [(6, 3, 1088), (4, 1, 544), (0, 3, 32), (5, 1, 16)], T, L.RED)
    g.bits(NR, TID, [(0, 2, 544), (2, 7, 4)], T, L.RED)
    g.bits(NO, TID, [(8, 1, 128), (7, 1, 64), (3, 1, 32), (5, 1, 16), (2, 1, 8), (6, 1, 4), (4, 1, 2)], T, L.OUTV)
    kb_addr(g, L)


def nsplit(g, unit, act, half=None, fast=False):
    if fast:
        D, O, idx, extra = fast
        g(f'ds_read_b128 {vr(T, 4)}, v{NB}\n' + '\n'.join(extra[:9]) + '\ns_waitcnt lgkmcnt(0)')
        extra = extra[9:]
        products(g, unit, D, idx, lambda j: [f'v_add_f32_dpp v{O + 4 * b + (j & 3)}, v{D + 4 * j + 2 * b}, v{D + 4 * j + 2 * b + 1} '
                                             f'quad_perm:[0,1,2,3] row_mask:0x{3 << (2 * (j >> 2)):x} bank_mask:0xf' for b in range(2)], extra)
        g.setexec(0xff0000ffff0000ff)
        g(f'ds_write_b128 v{NW}, {vr(O, 4)}\nds_write_b128 v{NW}, {vr(O + 4, 4)} offset:256')
    else:
        if half is None:
            g(f'ds_read_b128 {vr(T, 4)}, v{NB} offset:{act}\nds_read_b128 {vr(T + 4, 4)}, v{NB} offset:{act + 1024}')
            g('s_waitcnt lgkmcnt(1)')
            mfmas(g, unit, T, T + 4)
        else:
            g(f'ds_read_b128 {vr(T, 4)}, v{half} offset:{act}\ns_waitcnt lgkmcnt(0)')
            for j in range(8):
                g(f'v_mfma_f32_16x16x32_bf16 {vr(ACC + 4 * j, 4)}, {vr(BLK(unit) + 4 * j, 4)}, {vr(T, 4)}, 0')
        for dd in range(1, 4):
            g.setexec(rep16(0xf << (4 * dd)))
            if dd != 2:
                g.nop(2)
            for i in range(4):
                g(f'v_mov_b64 {vr(ACC + 2 * i, 2)}, {vr(ACC + 8 * dd + 2 * i, 2)}')
        g.setexec(0xcccccccc33333333)
        g(f'ds_write_b128 v{NW}, {vr(ACC, 4)}\nds_write_b128 v{NW}, {vr(ACC + 4, 4)} offset:128')
    g.setexec(-1)
    g('s_waitcnt lgkmcnt(0)\ns_barrier')
    for k in range(4):
        g(f'ds_read_b32 v{T + k}, v{NR} offset:{k * 4 * 544}')
    g('s_waitcnt lgkmcnt(2)')
    g(f'v_add_f32 v{T}, v{T}, v{T + 1}')
    g('s_waitcnt lgkmcnt(0)')
    g(f'v_add_f32 v{T + 2}, v{T + 2}, v{T + 3}\nv_add_f32 v{T}, v{T}, v{T + 2}')
    g.nop(2)
    g(f'v_add_f32_dpp v{T}, v{T}, v{T} quad_perm:[1,0,3,2] {DPP}')
    g.nop(2)
    g(f'v_add_f32_dpp v{T}, v{T}, v{T} quad_perm:[2,3,0,1] {DPP}')


def actwrite(g, p, act):
    if P['NAT']:
        g(f'ds_write_b64 v{KW}, {vr(p, 2)} offset:{act}')
        return
    g(f'ds_write_b16 v{KW}, v{p} offset:{act}\nds_write_b16_d16_hi v{KW}, v{p} offset:{act + 16}')
    g(f'ds_write_b16 v{KW}, v{p + 1} offset:{act + 32}\nds_write_b16_d16_hi v{KW}, v{p + 1} offset:{act + 48}')


def unpack2(g, d, s):
    g(f'v_lshlrev_b32 v{d}, 16, v{s}\nv_and_b32 v{d + 1}, {S_MASK}, v{s}')


def unpack(g, d, s):
    unpack2(g, d, s)
    unpack2(g, d + 2, s + 1)


def pack(g, t, d):
    g(f'v_cvt_pk_bf16_f32 v{t}, v{d}, v{d + 1}\nv_cvt_pk_bf16_f32 v{t + 1}, v{d + 2}, v{d + 3}')


def round1(g, a):
    g(f'v_cvt_pk_bf16_f32 v{a}, 0, v{a}')


def round4(g, d, t=None):
    for i in range(4):
        round1(g, d + i)


def round2(g, a):
    round1(g, a)
    round1(g, a + 1)


def pk4(g, op, d, a, b):
    g(f'{op} {vr(d, 2)}, {vr(a, 2)}, {vr(b, 2)}\n{op} {vr(d + 2, 2)}, {vr(a + 2, 2)}, {vr(b + 2, 2)}')


def layernorm(g, x, sw, sr, off, last_packed=False):
    a, b = T + 4, T + 5
    g(f'v_add_f32 v{a}, v{x}, v{x + 1}\nv_mul_f32 v{b}, v{x}, v{x}')
    g(f'v_add_f32 v{T}, v{x + 2}, v{x + 3}\nv_fmac_f32 v{b}, v{x + 1}, v{x + 1}')
    g(f'v_add_f32 v{a}, v{a}, v{T}\nv_fmac_f32 v{b}, v{x + 2}, v{x + 2}\nv_fmac_f32 v{b}, v{x + 3}, v{x + 3}')
    for i, ctl in enumerate(['row_ror:8 ' + DPP, 'row_ror:4 ' + DPP, 'row_ror:2 ' + DPP, 'row_ror:1 ' + DPP,
                             'row_bcast:15 row_mask:0xa bank_mask:0xf', 'row_bcast:31 row_mask:0xc bank_mask:0xf']):
        if i:
            g('s_nop 0')
        g(f'v_add_f32_dpp v{a}, v{a}, v{a} {ctl}')
        if i == 0:
            g('s_nop 0')
        g(f'v_add_f32_dpp v{b}, v{b}, v{b} {ctl}')
    g.setexec(1 << 63)
    g(f'ds_write_b64 v{sw}, {vr(a, 2)} offset:{off}')
    g.setexec(-1)
    g('s_waitcnt lgkmcnt(0)\ns_barrier')
    g(f'ds_read_b128 {vr(T, 4)}, v{sr} offset:{off}\nds_read_b128 {vr(T + 4, 4)}, v{sr} offset:{off + 16}')
    g('s_waitcnt lgkmcnt(0)')
    pk4(g, 'v_pk_add_f32', T, T, T + 4)
    g(f'v_pk_add_f32 {vr(a, 2)}, {vr(T, 2)}, {vr(T + 2, 2)}')
    g(f'v_mul_f32 v{a}, 0x3a800000, v{a}\nv_mul_f32 v{b}, 0x3a800000, v{b}')
    g(f'v_fma_f32 v{b}, -v{a}, v{a}, v{b}\nv_max_f32 v{b}, 0, v{b}')
    round2(g, a)
    g(f'v_add_f32 v{b}, 0x3727c5ac, v{b}')
    g(f'v_cvt_pk_bf16_f32 v{b}, 0, v{b}')
    g(f'v_sqrt_f32 v{b}, v{b}')
    for i in range(4):
        g(f'v_sub_f32 v{x + i}, v{x + i}, v{a}')
    g(f'v_cvt_pk_bf16_f32 v{b}, 0, v{b}')
    g(f'v_rcp_f32 v{b}, v{b}')
    round4(g, x, T + 6)
    for i in range(4):
        g(f'v_mul_f32 v{x + i}, v{x + i}, v{b}')
    if last_packed:
        pack(g, T + 6, x)
    else:
        round4(g, x, T + 6)


def weave(g, chain, fill, per=1):
    fill = list(fill)
    for c in chain:
        g(c)
        trans = c.split()[0] in ('v_sqrt_f32', 'v_rcp_f32', 'v_exp_f32')
        n = 0
        while fill and n < (per + (1 if trans else 0)):
            g(fill.pop(0))
            n += 1
        if trans and n == 0:
            g('s_nop 0')
    for f in fill:
        g(f)


def blocksum6(g, r, sw6, sr6, off, out, finish=True):
    g.nop(1)
    for i in (0, 2, 4):
        g(f'v_permlane32_swap_b32 v{r + i}, v{r + i + 1}')
    for i in (0, 2, 4):
        g(f'v_add_f32 v{r + i}, v{r + i}, v{r + i + 1}')
    g(f'v_mov_b32 v{r + 5}, v{r + 4}\nv_permlane16_swap_b32 v{r}, v{r + 2}\nv_add_f32 v{r}, v{r}, v{r + 2}')
    g(f'v_permlane16_swap_b32 v{r + 4}, v{r + 5}\nv_add_f32 v{r + 4}, v{r + 4}, v{r + 5}')
    for i, sh in enumerate((8, 4, 2, 1)):
        if i:
            g('s_nop 0')
        g(f'v_add_f32_dpp v{r}, v{r}, v{r} row_ror:{sh} {DPP}')
        if i == 0:
            g('s_nop 0')
        g(f'v_add_f32_dpp v{r + 4}, v{r + 4}, v{r + 4} row_ror:{sh} {DPP}')
    g(f'ds_write_b32 v{sw6}, v{r} offset:{off}\nds_write_b32 v{sw6}, v{r + 4} offset:{off + 64}')
    g('s_waitcnt lgkmcnt(0)\ns_barrier')
    for i, o in enumerate((0, 16, 32, 48, 64, 96)):
        g(f'ds_read_b128 {vr(out + 4 * i, 4)}, v{sr6} offset:{off + o}')
    if not finish:
        return
    for i in range(6):
        g(f's_waitcnt lgkmcnt({5 - i})')
        g(f'v_pk_add_f32 {vr(out + 4 * i, 2)}, {vr(out + 4 * i, 2)}, {vr(out + 4 * i + 2, 2)}')
    for i in range(6):
        g(f'v_add_f32 v{out + i}, v{out + 4 * i}, v{out + 4 * i + 1}')


def rstd(g, mean, var):
    g(f'v_max_f32 v{var}, 0, v{var}')
    round2(g, mean)
    g(f'v_add_f32 v{var}, 0x3727c5ac, v{var}')
    g(f'v_cvt_pk_bf16_f32 v{var}, 0, v{var}\nv_sqrt_f32 v{var}, v{var}\ns_nop 0')
    g(f'v_cvt_pk_bf16_f32 v{var}, 0, v{var}\nv_rcp_f32 v{var}, v{var}')


def ksplit_out(g, unit, po, mb, D, idx):
    O = T + 4
    g(f'ds_read_b128 {vr(T, 4)}, v{KB}\ns_waitcnt lgkmcnt(0)')
    products(g, unit, D, idx, lambda j: [f'v_add_f32_dpp v{O + 2 * b + (j & 1)}, v{D + 4 * j + 2 * b}, v{D + 4 * j + 2 * b + 1} '
                                         f'quad_perm:[0,1,2,3] row_mask:0x{1 << (j >> 1):x} bank_mask:0xf' for b in range(2)],
             [f'v_mov_b32 v{KB}, 0x{0xffffffff ^ TMASK:x}'])
    tag(g, range(O, O + 4), KB)
    g(f'buffer_store_dwordx4 {vr(O, 4)}, v{po}, {S_WS}, {mb} offen sc1\ns_nop 1')


def publish32(g, L, s_off, bstride, exact):
    g(f'v_subrev_u32 v{T + 1}, {L.OUTV}, v{NO}\nv_lshlrev_b32 v{T + 1}, 1, v{T + 1}\nds_write_b32 v{T + 1}, v{T} offset:{L.PART}')
    g('s_waitcnt lgkmcnt(0)\ns_barrier')
    skip = only_wave(g, 0)
    if exact:
        g(f'v_lshlrev_b32 v{T + 4}, 3, v0\nds_read_b64 {vr(T + 6, 2)}, v{T + 4} offset:{L.PART}')
        g.bits(T + 5, 0, [(5, 1, bstride), (0, 5, 16)], T + 4)
        g(f'v_mov_b32 v{T + 1}, {S_EPO}\nv_mov_b32 v{T + 3}, {S_EPO}\ns_waitcnt lgkmcnt(0)')
        g(f'v_mov_b32 v{T}, v{T + 6}\nv_mov_b32 v{T + 2}, v{T + 7}')
    else:
        g(f'v_lshlrev_b32 v{T + 4}, 4, v0\nds_read_b128 {vr(T, 4)}, v{T + 4} offset:{L.PART}')
        g.bits(T + 5, 0, [(4, 1, bstride), (0, 4, 16)], T + 6)
        g('s_waitcnt lgkmcnt(0)\ns_mov_b32 exec_hi, 0')
    g(f'buffer_store_dwordx4 {vr(T, 4)}, v{T + 5}, {S_WS}, {s_off} offen sc1')
    g.setexec(-1)
    g('s_nop 0')
    g(skip + ':')


def qjob_issue(g, blk, s_job, voff, lg=2):
    g(f'''s_and_b32 s15, {s_job}, {(1 << lg) - 1}
          s_lshr_b32 s6, {s_job}, {lg}
          s_lshl_b32 s6, s6, 7
          s_mul_i32 s13, s15, {(1024 >> lg) * 12288}
          s_add_u32 s13, s13, s6
          s_add_u32 s13, s13, 4096''')
    nload(g, blk, 38, 1024 * 12288, 12288, 's13', voff, (0,), tag='qj')


def qjob_voff(g, voff, lg=2):
    nvoff(g, voff, 12288)
    if lg == 1:
        return
    g(f's_lshr_b32 s4, s3, 2\ns_lshl_b32 s4, s4, 24\nv_add_u32 v{voff}, s4, v{voff}')


def qjob_finish(g, L, blk, va, vm, lg=2):
    g(f's_lshl_b32 s12, s15, 15\ns_lshl_b32 s5, s6, 1\ns_add_u32 s12, s12, s5\ns_add_u32 s12, s12, {MODL}')
    if lg == 2:
        g(f's_lshr_b32 s4, s3, 2\ns_sub_u32 s4, s15, s4\ns_lshl_b32 s4, s4, 9\nv_add_u32 v{va}, s4, v{NB}')
    else:
        g(f's_lshl_b32 s4, s15, 10\nv_add_u32 v{va}, s4, v{NB}')
    tagmask(g, vm)
    g.vmwait(('qj', 0))
    g.stamp('l_land', (4,) if L.ACTS == MLP_LDS else ())
    transpose(g, blk)
    g.stamp('l_tr', (4,) if L.ACTS == MLP_LDS else ())
    nsplit(g, blk, L.ACTS, va)
    g.stamp('l_ns', (4,) if L.ACTS == MLP_LDS else ())
    tag(g, [T], vm)
    publish32(g, L, 's12', 16384, False)


def silu_image(g, L, src):
    unpack(g, ACC, src)
    for i in range(4):
        g(f'v_mul_f32 v{T + i}, 0xbfb8aa3b, v{ACC + i}')
    for i in range(4):
        g(f'v_exp_f32 v{T + i}, v{T + i}')
    for i in range(4):
        g(f'v_add_f32 v{T + i}, 1.0, v{T + i}')
    for i in range(4):
        g(f'v_rcp_f32 v{T + i}, v{T + i}')
    for i in range(4):
        g(f'v_mul_f32 v{T + i}, v{T + i}, v{ACC + i}')
    pack(g, T + 4, T)
    actwrite(g, T + 4, L.ACTS)


def proj(g):
    L = Lds(8448)
    Y, SB = 8, 12
    PO, RO, RL, OUTO = 8, 9, 10, 11
    WG, AO, AO3, OW = 12, 17, 18, 16
    WQO, WMO, SW, SR = 17, 18, 19, 23
    RX, RGA, RGB, RB2 = 20, 21, 22, 23
    JC, ODD = 's14', 's15'
    g.vm = []

    def reduce(mb, nprod, part):
        GR = ('s4', 's5', 's6', 's47')[:4 if part == 0 or P['GBG'] or P['LQ'] == 2 else 2]
        if part == 0 and P['GAE']:
            GR = ()
        if part == 3 and P['GBS']:
            skip = only_wave(g, 0)
            g(f's_mov_b32 s4, {MODL + part * 4096}\ns_mov_b32 s5, {MODL + part * 4096 + 32768}')
            poll(g, f'buffer_load_dwordx2 {vr(ACC + 18, 2)}, v{RGA}, {S_WS}, s4 offen sc1\nbuffer_load_dwordx2 {vr(ACC + 20, 2)}, v{RGA}, {S_WS}, s5 offen sc1',
                 range(ACC + 18, ACC + 22), T + 4, 1)
            g(f'v_pk_add_f32 {vr(ACC + 18, 2)}, {vr(ACC + 18, 2)}, {vr(ACC + 20, 2)}\nv_cvt_pk_bf16_f32 v{RGB}, v{ACC + 18}, v{ACC + 19}')
            g(skip + ':')
            GR = ()
        for i, r in enumerate(GR):
            g(f's_mov_b32 {r}, {MODL + part * 4096 + 32768 * i}')
        if nprod < 64:
            g(f'v_mov_b32 v{T}, 0')
            skip = g.label('L_nored')
            g(f's_cmp_ge_u32 s3, {nprod // 8}\ns_cbranch_scc1 {skip}')
        l0, l1 = g.label('L_red0'), g.label('L_red1')
        ld = f'buffer_load_dwordx4 {vr(T, 4)}, v{RO}, {S_WS}, {mb} offen sc1'
        if GR:
            g(f's_cmp_eq_u32 s3, 0\ns_cbranch_scc1 {l0}')
            poll(g, ld, range(T, T + 4), T + 4)
            g(f's_branch {l1}\n{l0}:')
        poll(g, ld + ''.join(f'\nbuffer_load_dwordx2 {vr(ACC + 18 + 2 * i, 2)}, v{RGA}, {S_WS}, {r} offen sc1'
                             for i, r in enumerate(GR)),
             list(range(T, T + 4)) + list(range(ACC + 18, ACC + 18 + 2 * len(GR))), T + 4)
        g(l1 + ':')
        g.stamp('red_polled%d' % nprod, (1,))
        g(f'v_permlane32_swap_b32 v{T}, v{T + 2}\nv_permlane32_swap_b32 v{T + 1}, v{T + 3}')
        g(f'v_add_f32 v{T}, v{T}, v{T + 2}\nv_add_f32 v{T + 1}, v{T + 1}, v{T + 3}')
        g.nop(2)
        g(f'v_permlane16_swap_b32 v{T}, v{T + 1}\nv_add_f32 v{T}, v{T}, v{T + 1}')
        g.nop(2)
        g(f'v_add_f32_dpp v{T}, v{T}, v{T} row_ror:8 {DPP}')
        if nprod < 64:
            g(skip + ':')
        g(f'ds_write_b32 v{RL}, v{T}')
        g('s_waitcnt lgkmcnt(0)\ns_barrier')
        skip = only_wave(g, 0)
        g(f'v_and_b32 v{T + 2}, 15, v0\nv_lshlrev_b32 v{T + 2}, 3, v{T + 2}')
        for w in range(8):
            g(f'ds_read_b64 {vr(ACC + 2 * w, 2)}, v{T + 2} offset:{L.PART + 128 * w}')
        if len(GR) == 4:
            pk4(g, 'v_pk_add_f32', ACC + 18, ACC + 18, ACC + 22)
        if GR:
            g(f'v_pk_add_f32 {vr(ACC + 18, 2)}, {vr(ACC + 18, 2)}, {vr(ACC + 20, 2)}')
            round2(g, ACC + 18)
        else:
            unpack2(g, ACC + 18, RGB)
        return skip

    def reduce_sum():
        g('s_waitcnt lgkmcnt(4)')
        pk4(g, 'v_pk_add_f32', ACC, ACC, ACC + 4)
        g('s_waitcnt lgkmcnt(0)')
        pk4(g, 'v_pk_add_f32', ACC + 8, ACC + 8, ACC + 12)
        pk4(g, 'v_pk_add_f32', ACC, ACC, ACC + 8)
        g(f'v_pk_add_f32 {vr(T, 2)}, {vr(ACC, 2)}, {vr(ACC + 2, 2)}')
        round2(g, T)

    g('L_proj:')
    if P['PFG'] == 3:
        g(f's_getpc_b64 s[98:99]\nL_pc0:\ns_sub_u32 s98, s98, L_pc0-{NAME}_kernel\ns_subb_u32 s99, s99, 0')
        g(f's_and_b32 s4, s2, 56\ns_add_u32 s4, s4, s3\ns_lshl_b32 s4, s4, 9\nv_lshl_add_u32 v{T}, v0, 3, s4')
        g.vmop(f'global_load_dwordx2 {vr(ACC + 4, 2)}, v{T}, s[98:99]', 'in')
    g(f's_and_b32 {JC}, s2, 7\ns_lshl_b32 {JC}, {JC}, 3\ns_lshr_b32 s4, s2, 3\ns_add_u32 {JC}, {JC}, s4')
    g(f's_lshl_b32 s4, s3, 6\nv_add_u32 v{TID}, s4, v0')
    nvoff(g, WMO, 12288)
    g(f'''s_and_b32 {ODD}, {JC}, 1
          s_lshr_b32 s6, {JC}, 1
          s_lshl_b32 s6, s6, 7
          s_mul_i32 s13, {ODD}, {512 * 12288}
          s_add_u32 s13, s13, s6''')
    g.bits(T + 6, TID, [(3, 6, 64), (0, 2, 16), (2, 1, 8)], T)
    g('s_waitcnt lgkmcnt(0)')
    srd(g, S_B, 36, 4096)
    g.vmop(f'buffer_load_dwordx2 {vr(SB, 2)}, v{T + 6}, {S_B}, 0 offen', 'in')
    g('s_mov_b32 s60, s16\ns_mov_b32 s61, s17')
    g.vmop(f'buffer_load_dwordx2 {vr(SB + 2, 2)}, v{T + 6}, {S_B}, 0 offen', 'in')
    srd(g, S_WS, 44, WS_SIZE)
    g.vmop(epoch_load(RGB), 'in')
    if P['PFG'] == 2:
        skip = g.label('L_nopf')
        g(f's_cmp_ge_u32 s2, 8\ns_cbranch_scc1 {skip}')
        prefetch_code(g, None, 2, T, ACC + 4)
        g(skip + ':')
    nload(g, UA, 38, 1024 * 12288, 12288, 's13', WMO, (0,), tag='m1')
    consts(g)
    g(f's_lshl_b32 s7, {JC}, 7\ns_lshr_b32 s46, {JC}, 4\ns_lshl_b32 s46, s46, 2')
    g(f's_lshl_b32 s47, {ODD}, 15\ns_lshl_b32 s5, s6, 2\ns_add_u32 s47, s47, s5\ns_add_u32 s47, s47, {MODP}')
    common_addr(g, L, False)
    nvoff(g, WQO, 8192)
    g(f's_lshl_b32 s4, s3, 3\nv_mov_b32 v{SW}, s4\ns_and_b32 s4, s4, 32\nv_mov_b32 v{SR}, s4')
    g(f's_mul_i32 s8, {JC}, {MBA_ST}\ns_add_u32 s8, s8, {MBA}')
    g(f's_lshr_b32 s9, {JC}, 1\ns_mul_i32 s9, s9, {MBP}\ns_lshl_b32 s10, {ODD}, 7\ns_add_u32 s9, s9, s10\ns_add_u32 s10, s9, {MBC}\ns_add_u32 s9, s9, {MBB}')
    g(f's_lshl_b32 s11, {JC}, 7\ns_add_u32 s11, s11, {X1}')
    g.vmwait('in')
    epoch_tag(g, RGB)
    silu_image(g, L, SB)
    unpack(g, Y, SB + 2)
    layernorm(g, Y, SW, SR, L.STAT)
    nload(g, UB, 22, 1024 * 8192, 8192, 's7', WQO, (0,), tag='wq')
    g('s_waitcnt vmcnt(8)')
    transpose(g, UA)
    g(f's_lshl_b32 s4, {ODD}, {10 if P["NAT"] else 7}\nv_add_u32 v{T + 7}, s4, v{NB}')
    nsplit(g, UA, L.ACTS, T + 7)
    publish32(g, L, 's47', 16384, True)
    g.stamp('g_mod')
    nload(g, UB, 22, 1024 * 8192, 8192, 's7', WQO, (1,), tag='wq')
    MP = RGA
    g.bits(MP, TID, [(8, 1, 16384), (3, 5, 256), (0, 2, 64), (2, 1, 32)], T + 7, MODP)
    g('s_waitcnt vmcnt(8)')
    transpose(g, UB)
    g(f's_mov_b32 s4, 8192\ns_mov_b32 s5, 32768\ns_mov_b32 s12, {32768 + 8192}')
    mloads = '\n'.join(f'buffer_load_dwordx4 {vr(ACC + 4 * i, 4)}, v{MP}, {S_WS}, {("0", "s5", "s4", "s12")[i >> 1]} offen offset:{16 * (i & 1)} sc1'
                       for i in range(8))
    g(f's_waitcnt vmcnt({P["MW"]})')
    g(mloads)
    attention(g, 'g_addr')
    attention(g, 'g_issue', range(P['GE']))
    g(f's_waitcnt vmcnt({8 + P["GE"]})')
    transpose(g, UB + 1)
    g(f's_waitcnt vmcnt({P["GE"]})')
    poll(g, mloads, range(ACC + 1, ACC + 32, 2), T, P['MSL'], preloaded=True, mask=-1)
    g.vm = []
    g.stamp('g_modseen')
    for i in range(4):
        g(f'v_add_f32 v{T + i}, v{ACC + 16 + 2 * i}, v{ACC + 24 + 2 * i}')
    for i in range(4):
        g(f'v_add_f32 v{ACC + i}, v{ACC + 2 * i}, v{ACC + 8 + 2 * i}')
    round4(g, T, T + 4)
    for i in range(4):
        g(f'v_add_f32 v{T + i}, 1.0, v{T + i}')
    round4(g, T, T + 4)
    pk4(g, 'v_pk_mul_f32', Y, Y, T)
    round4(g, Y, T + 4)
    round4(g, ACC, T + 4)
    pk4(g, 'v_pk_add_f32', Y, Y, ACC)
    pack(g, T, Y)
    actwrite(g, T, L.ACTH)
    g('s_waitcnt lgkmcnt(0)\ns_barrier')
    nsplit(g, UB, L.ACTH)
    g(f's_lshl_b32 s12, s7, 1\ns_add_u32 s12, s12, {QB}')
    g(f'v_cvt_pk_bf16_f32 v{T}, v{T}, v{T}\nv_lshl_or_b32 v{T}, v{T}, 16, {S_T16}')
    publish32(g, L, 's12', 16384, False)
    g.stamp('g_q')

    attention(g, 'g_issue', range(P['GE'], 16 * P['NUG']))
    if P['NUG']:
        attention(g, 'g_q')
    assert not P['NUG'] and P['NAT']
    assert P['GH'] and P['LQ'] == 1 and P['GJ'] == 1 and not P['GBG']
    g(f's_add_u32 s47, {JC}, 32')
    qjob_issue(g, UA, 's47', WMO, 1)
    g('s_mov_b32 s100, s15\ns_mov_b32 s101, s6')
    g.vm = [('q1', 0)] * 8
    qjob_voff(g, WMO)
    qjob_issue(g, UA + 1, JC, WMO)
    g('s_mov_b32 s68, s15\ns_mov_b32 s69, s6\ns_mov_b32 s15, s100\ns_mov_b32 s6, s101')
    g.vmwait(('q1', 0))
    sv, g.vm = g.vm, []
    qjob_finish(g, L, UA, 8, 9, 1)
    g.vm = sv
    g.bits(T + 5, TID, [(4, 2, 4096), (6, 3, 256), (0, 4, 16)], T + 7)
    kload(g, UC, 24, 4096 * 2048, JC, T + 5, lambda kb, t: 32 * kb + (t & 3) * 8 + (t >> 2), 'wo')
    g('s_mov_b32 s15, s68\ns_mov_b32 s6, s69')
    qjob_finish(g, L, UA + 1, 8, 9)
    if P['GJ'] > 1:
        assert P['LQ'] == 2 and not P['GBG']
        lp = g.label('L_gj')
        g(f's_add_u32 s47, {JC}, 64\n{lp}:')
        qjob_issue(g, UA, 's47', WMO)
        qjob_finish(g, L, UA, 8, 9)
        g(f's_add_u32 s47, s47, 64\ns_cmp_lt_u32 s47, {64 * P["GJ"]}\ns_cbranch_scc1 {lp}')
    if P['GBG']:
        g(f's_add_u32 s47, {JC}, 192')
        qjob_issue(g, UA, 's47', WMO)
        qjob_finish(g, L, UA, 8, 9)
    g(f's_and_b32 {ODD}, {JC}, 1')
    if P['NUG']:
        attention(g, 'g_compute')
        g.stamp('g_att')
        common_addr(g, L, False)
    g.bits(RO, TID, [(3, 6, 256), (0, 3, 16)], T)
    g('s_waitcnt vmcnt(0)')
    g.vm = []
    transpose(g, UC, il=True)
    transpose(g, UC + 1, il=True)
    g.stamp('g_loaded')
    g(f's_lshl_b32 s4, {JC}, 5')
    g.bits(T, 0, [(0, 3, 4)], T + 1, 's4')
    srd(g, S_B, 34, 2048)
    g(f'buffer_load_dword v{RB2}, v{T}, {S_B}, 0 offen')
    g(f'v_bfe_u32 v{T + 1}, v0, 3, 1\nv_lshlrev_b32 v{RGA}, 1, v{T}\nv_lshl_add_u32 v{RGA}, v{T + 1}, 14, v{RGA}')
    g(f'v_lshl_add_u32 v{OUTO}, v{T + 1}, 11, v{T}')
    srd(g, S_B, 16, 4096)
    g(f'buffer_load_dword v{RX}, v{OUTO}, {S_B}, 0 offen')
    if P['GAE']:
        skip = only_wave(g, 0)
        GR = ('s4', 's5', 's6', 's47')
        for i, r in enumerate(GR):
            g(f's_mov_b32 {r}, {MODL + 32768 * i}')
        poll(g, '\n'.join(f'buffer_load_dwordx2 {vr(ACC + 18 + 2 * i, 2)}, v{RGA}, {S_WS}, {r} offen sc1' for i, r in enumerate(GR)),
             range(ACC + 18, ACC + 26), T + 4, 16)
        pk4(g, 'v_pk_add_f32', ACC + 18, ACC + 18, ACC + 22)
        g(f'v_pk_add_f32 {vr(ACC + 18, 2)}, {vr(ACC + 18, 2)}, {vr(ACC + 20, 2)}\nv_cvt_pk_bf16_f32 v{RGB}, v{ACC + 18}, v{ACC + 19}')
        g(skip + ':')
    srd(g, S_B, 40, 4096)
    g.bits(RL, TID, [(6, 3, 128), (5, 1, 64), (0, 3, 8), (4, 1, 4)], T, L.PART)
    po_addr(g, PO)
    kb_addr(g, L)
    g(f's_lshl_b32 s12, s7, 1\ns_add_u32 s12, s12, {MBB}')
    g.bits(AO, TID, [(8, 1, SLOTS * 256), (3, 3, 256), (6, 2, 64), (0, 3, 8)], T + 3)
    g.bits(OW, TID, [(6, 3, 32), (0, 1, 16), (1, 2, 4), (5, 1, 2)], T + 3, L.OUTV)
    g.bits(T + 5, TID, [(8, 1, 128), (3, 3, 4)], T + 3)
    g('s_add_u32 s13, s8, 4096')
    g.bits(T + 2, 0, [(5, 1, 8192), (0, 5, 8)], T + 3)
    g(f's_lshr_b32 s4, {JC}, 1\ns_lshl_b32 s4, s4, 8\ns_add_u32 s4, s4, {STATS}')
    prefetch_code(g, 'L_proj_tail', 1, T + 6, ACC)
    if P['PRE'] == 1:
        g(f'buffer_load_dwordx4 {vr(ACC + 4, 4)}, v{RO}, {S_WS}, s9 offen sc1')
    sparse_index(g, SW)
    g('\n'.join(zero32(BLK(0))))
    g('s_waitcnt vmcnt(0)')
    g.warm_run('L_wg')
    g.stamp('g_ready')
    g('L_proj_tail:')
    g.warm_begin('L_wg')
    if P['XG'] == 1:
        g('s_branch L_gend')
    NT = 4 if P['NUG'] else 3
    aloads = lambda d: '\n'.join(f'buffer_load_dwordx2 {vr(d + 2 * k, 2)}, v{AO}, {S_WS}, {"s8" if k < 2 else "s13"} offen offset:{2048 * (k & 1)} sc1'
                                 for k in range(NT))
    lp, ok = g.label('L_p1'), only_wave(g, 0)
    g(f's_mov_b32 {S_SPIN}, {SPIN}\n{lp}:')
    g(aloads(ACC + 8).split('\n')[P['P1K']] + '\ns_waitcnt vmcnt(0)')
    check(g, range(ACC + 8 + 2 * P['P1K'], ACC + 10 + 2 * P['P1K']), ACC)
    g(f's_bcnt1_i32_b64 s5, vcc\ns_cmp_le_u32 s5, {P["P1TH"]}\ns_cbranch_scc1 {ok}')
    g(f's_sleep {P["P1SL"]}\ns_sub_u32 {S_SPIN}, {S_SPIN}, 1\ns_cbranch_scc0 {lp}\n{ok}:\ns_barrier')
    g.stamp('g_hint', (0, 1))
    if P['PRE'] == 2:
        g(f'buffer_load_dwordx4 {vr(ACC + 4, 4)}, v{RO}, {S_WS}, s9 offen sc1')
    g(f'v_mov_b32 v{T}, 0xff800000\nv_mov_b32 v{T + 1}, 0')
    g.setexec(-1 if P['NUG'] else ((1 << SPL) - 1) * 0x100000001)
    poll(g, f'buffer_load_dwordx2 {vr(T, 2)}, v{T + 2}, {S_WS}, s4 offen sc1', [T, T + 1], T + 4, 2)
    g.setexec(-1)

    def red32(r, t, op):
        for sh in (8, 4, 2, 1):
            g.nop(2)
            g(f'{op}_dpp v{r}, v{r}, v{r} row_ror:{sh} {DPP}')
        g(f'v_mov_b32 v{t}, v{r}')
        g.nop(2)
        g(f'v_permlane16_swap_b32 v{r}, v{t}\n{op} v{r}, v{r}, v{t}')
    g(f'v_and_b32 v{T}, {S_MASK}, v{T}\nv_mov_b32 v{T + 2}, v{T}')
    red32(T + 2, T + 3, 'v_max_f32')
    g(f'v_sub_f32 v{T}, v{T}, v{T + 2}\nv_mul_f32 v{T}, 0x3fb8aa3b, v{T}\nv_exp_f32 v{T}, v{T}\ns_nop 0')
    g(f'v_mul_f32 v{T + 1}, v{T + 1}, v{T}')
    red32(T + 1, T + 3, 'v_add_f32')
    g(f'v_rcp_f32 v{T + 1}, v{T + 1}\ns_nop 0\nv_mul_f32 v{T}, v{T}, v{T + 1}')
    for k in range(4):
        g(f'ds_bpermute_b32 v{WG + k}, v{T + 5}, v{T} offset:{32 * k}')
    g('s_waitcnt lgkmcnt(0)')
    g.stamp('g_wgt', (0, 1))
    if P['P2TH'] < P['P1TH']:
        lp, ok = g.label('L_p1'), only_wave(g, 0)
        g(f's_mov_b32 {S_SPIN}, {SPIN}\n{lp}:')
        g(aloads(ACC + 8).split('\n')[P['P1K']] + '\ns_waitcnt vmcnt(0)')
        check(g, range(ACC + 8 + 2 * P['P1K'], ACC + 10 + 2 * P['P1K']), ACC)
        g(f's_bcnt1_i32_b64 s5, vcc\ns_cmp_le_u32 s5, {P["P2TH"]}\ns_cbranch_scc1 {ok}')
        g(f's_sleep {P["P2SL"]}\ns_sub_u32 {S_SPIN}, {S_SPIN}, 1\ns_cbranch_scc0 {lp}\n{ok}:\ns_barrier')
        g.stamp('g_go', (0, 1))
    if P['W2TH']:
        skip = only_wave(g, 0)
        lp, ok = g.label('L_p2'), g.label('L_p2ok')
        g(f's_and_b32 s5, {JC}, 15\ns_cbranch_scc1 {skip}\ns_mov_b32 {S_SPIN}, {SPIN}\n{lp}:')
        g(aloads(T) + '\ns_waitcnt vmcnt(0)')
        check(g, range(T, T + 2 * NT), ACC)
        g(f's_bcnt1_i32_b64 s5, vcc\ns_cmp_le_u32 s5, {P["W2MISS"]}\ns_cbranch_scc1 {ok}')
        g(f's_sub_u32 {S_SPIN}, {S_SPIN}, 1\ns_cbranch_scc0 {lp}\n{ok}:')
        g(faddr('s46', C_A) + f'v_mov_b32 v{ACC}, {S_EPO}\ns_mov_b64 exec, 1\nbuffer_store_dword v{ACC}, off, {S_WS}, s98 sc1\ns_mov_b64 exec, -1')
        g(skip + ':')
    poll(g, aloads(T), range(T, T + 2 * NT), ACC, P['SLEEP'])
    g.stamp('g_apolled', (0, 1))
    g(f'v_mul_f32 v{T}, v{WG}, v{T}\nv_mul_f32 v{T + 1}, v{WG}, v{T + 1}')
    for k in range(1, NT):
        g(f'v_fmac_f32 v{T}, v{WG + k}, v{T + 2 * k}\nv_fmac_f32 v{T + 1}, v{WG + k}, v{T + 2 * k + 1}')
    g.nop(2)
    g(f'v_permlane32_swap_b32 v{T}, v{T + 1}\nv_add_f32 v{T}, v{T}, v{T + 1}\nv_mov_b32 v{T + 1}, v{T}')
    g.nop(2)
    g(f'v_permlane16_swap_b32 v{T}, v{T + 1}\nv_add_f32 v{T}, v{T}, v{T + 1}')
    g.nop(2)
    g(f'v_add_f32_dpp v{T}, v{T}, v{T} row_ror:8 {DPP}')
    g(f'v_cvt_pk_bf16_f32 v{T}, v{T}, v{T}\nds_write_b16 v{OW}, v{T}')
    g('s_waitcnt lgkmcnt(0)\ns_barrier')
    g.stamp('g_obar', (1,))
    if P['XG'] == 2:
        g('s_branch L_gend')
    ksplit_out(g, UC, PO, 's12', BLK(0), SW)
    g.stamp('g_t2', (0, 1))
    if P['BW']:
        g('s_waitcnt vmcnt(0)')
    if P['BW'] == 2:
        g('s_barrier')
    skip = reduce('s9', 64, 0)
    unpack2(g, T + 6, RX)
    if P['REP']:
        g(f'v_lshrrev_b32 v{T + 3}, 4, v0\nv_lshl_add_u32 v{T + 3}, v{T + 3}, 13, v{T + 2}\ns_add_u32 s4, s11, 32768')
    else:
        g(f'v_lshlrev_b32 v{T + 3}, 3, v0')
    g(f'v_mov_b32 v{ACC + 16}, {S_MASK}')
    reduce_sum()
    g(f'v_pk_mul_f32 {vr(T, 2)}, {vr(T, 2)}, {vr(ACC + 18, 2)}')
    round2(g, T)
    g(f'v_pk_add_f32 {vr(T, 2)}, {vr(T, 2)}, {vr(T + 6, 2)}')
    g(f'v_cvt_pk_bf16_f32 v{RX}, v{T}, v{T + 1}')
    g(f'v_lshl_or_b32 v{T}, v{RX}, 16, {S_T16}\nv_and_or_b32 v{T + 1}, v{RX}, v{ACC + 16}, {S_T16}')
    if P['REP']:
        g(f'buffer_store_dwordx2 {vr(T, 2)}, v{T + 3}, {S_WS}, s11 offen sc1\nbuffer_store_dwordx2 {vr(T, 2)}, v{T + 3}, {S_WS}, s4 offen sc1')
    else:
        g.setexec(0xffff)
        g(f'buffer_store_dwordx2 {vr(T, 2)}, v{T + 3}, {S_WS}, s11 offen sc1')
        g.setexec(-1)
    g(f's_cmp_lg_u32 s2, 0\ns_cbranch_scc1 {skip}\nv_mov_b32 v{T + 2}, {S_EPO}\ns_mov_b64 exec, 1')
    g(f'buffer_store_dword v{T + 2}, off, {S_WS}, 0 sc1\ns_mov_b64 exec, -1')
    g(skip + ':')
    g.stamp('g_x1', (0, 1))
    g('s_barrier')
    skip = reduce('s10', 56, 3)
    unpack2(g, T + 2, RB2)
    unpack2(g, T + 6, RX)
    reduce_sum()
    g(f'v_pk_add_f32 {vr(T, 2)}, {vr(T, 2)}, {vr(T + 2, 2)}')
    round2(g, T)
    g(f'v_pk_mul_f32 {vr(T, 2)}, {vr(T, 2)}, {vr(ACC + 18, 2)}')
    round2(g, T)
    g(f'v_pk_add_f32 {vr(T, 2)}, {vr(T, 2)}, {vr(T + 6, 2)}')
    g(f'v_cvt_pk_bf16_f32 v{T}, v{T}, v{T + 1}')
    g.setexec(0xffff)
    g(f'buffer_store_dword v{T}, v{OUTO}, {S_B}, 0 offen {P["OUTF"].replace("+", " ")}')
    g(skip + ':')
    g.warm_end()
    g('L_gend:')
    g.stamp('g_out', (0, 1, 3))
    if P['PADTO']:
        if P['PADWG'] >= 0:
            g(f's_cmp_lg_u32 s2, {P["PADWG"]}\ns_cbranch_scc1 L_nopad')
        g(f'L_pad:\ns_memrealtime s[4:5]\ns_waitcnt lgkmcnt(0)\ns_sub_u32 s4, s4, s70\ns_cmp_lt_u32 s4, {P["PADTO"]}\ns_cbranch_scc1 L_pad\nL_nopad:')
    write_stamps(g)
    g('s_endpgm')


MLP_LDS = 4096
W1L = 4096
LDS_TOTAL = W1L + 131072


def mlp(g):
    L = Lds(MLP_LDS)
    PO, XO, SW, SR, B1 = 8, 9, 10, 11, 17
    C1, SH = 12, 18
    JM = 's14'
    g.vm = []
    g('L_mlp:')
    g.warm_begin('L_wp')
    if P['W2E'] and P['W2P']:
        kload(g, UB, 32, 3584 * 2048, JM, 7, lambda kb, t: 32 * kb + 4 * t, 'w2', which=range(P['W2E']))
        g.vm = []
    if P['XW'] == 1:
        write_stamps(g)
        g('s_endpgm')
    if P['W2TH']:
        skip = only_wave(g, 0)
        fpoll(g, ACC + 4, 's101', C_A, P['LSL'])
        g(skip + ':')
    g(f's_lshl_b32 s4, s3, 6\nv_add_u32 v{TID}, s4, v0')
    g(f's_lshl_b32 s7, {JM}, 7')
    MP, MB, XV = 16, BLK(0), ACC
    g.bits(MP, TID, [(8, 1, 16384), (0, 8, 16)], T, MODL + 4096)
    g(f'v_add_u32 v{MP + 6}, 4096, v{MP}\ns_mov_b32 s8, 32768\ns_mov_b32 s9, 65536\ns_mov_b32 s10, 98304')
    mloads = '\n'.join(f'buffer_load_dwordx4 {vr(MB + 4 * i, 4)}, v{MP + 6 * (i >> 2)}, {S_WS}, {("0", "s8", "s9", "s10")[i & 3]} offen sc1'
                       for i in range(8) if (i & 3) < (1 << P['LQ']))
    early = P['GH'] or P['GJ'] >= 3
    srd(g, S_B, 30, 3584 * 2)
    g.bits(T + 4, TID, [(2, 6, 2)], T, 's7')
    g.bits(T + 5, TID, [(4, 2, 2048), (6, 3, 256), (0, 4, 16)], T + 7)
    g('s_barrier')
    g.vmop(f'buffer_load_ushort v{B1}, v{T + 4}, {S_B}, 0 offen', 'k')
    if early and P['MLD'] < 0:
        g.vmop(mloads, 'k')
    prefetch_code(g, 'L_mlp_tail', 1, T + 4, ACC + 8, 'k')
    g.vm = [('w2', 0)] + g.vm
    kload(g, UB, 32, 3584 * 2048, JM, T + 5, lambda kb, t: 32 * kb + 4 * t, 'w2', which=range(P['W2E'], 16))
    mlp_addr(g, L)
    g.bits(XO, TID, [(2, 6, 128), (8, 1, 64), (0, 2, 16)], T, X1)
    if P['REP']:
        g(f's_and_b32 s4, s2, 7\ns_lshl_b32 s4, s4, 13\nv_add_u32 v{XO}, s4, v{XO}')
    po_addr(g, PO)
    g(f's_lshl_b32 s13, s7, 1\ns_add_u32 s13, s13, {MBC}')
    g(f's_lshl_b32 s4, s3, 3\nv_mov_b32 v{SW}, s4\ns_and_b32 s4, s4, 32\nv_mov_b32 v{SR}, s4')
    if P['MLD'] >= 0:
        g(f's_lshl_b32 s4, s3, 14\ns_add_u32 s4, s4, {W1L + 8192}\nv_lshl_add_u32 v{T}, v0, 4, s4')
        for i in range(4):
            g(f'ds_read_b128 {vr(MB + 4 * (i & 1) + 16 * (i >> 1), 4)}, v{T} offset:{1024 * i}')
    IDX = 23
    sparse_index(g, IDX)
    g('s_waitcnt lgkmcnt(0)')
    xload = f'buffer_load_dwordx4 {vr(XV, 4)}, v{XO}, {S_WS}, 0 offen sc1'

    def w2_finish():
        g.vmwait(('w2', 0))
        transpose(g, UB, il=True)
        if not early:
            g.vmop(mloads, 'k')
        g.vmwait(('w2', 1))
        g.vmop(xload, 'x')
        transpose(g, UB + 1, il=True)
        g.stamp('m_w2', (2,))
    if not early:
        w2_finish()
    g.vmwait('k')
    poll(g, mloads, [r for r in range(MB, MB + 32) if ((r - MB) & 15) < (4 << P['LQ'])], T, P['MLS'], preloaded=True)
    for d, b in ((SH, MB), (C1, MB + 16)):
        if P['LQ'] == 2:
            pk4(g, 'v_pk_add_f32', b, b, b + 8)
            pk4(g, 'v_pk_add_f32', b + 4, b + 4, b + 12)
        pk4(g, 'v_pk_add_f32', d, b, b + 4)
    round4(g, SH, T)
    round4(g, C1, T)
    for i in range(4):
        g(f'v_add_f32 v{C1 + i}, 1.0, v{C1 + i}')
    round4(g, C1, T)
    g(f'v_lshlrev_b32 v{B1}, 16, v{B1}')
    KC = BLK(1)
    if P['LNM']:
        g.bits(SW, TID, [(8, 1, 128), (4, 2, 16), (6, 2, 4)], T)
        g.bits(SR, TID, [(8, 1, 128)], T)
        g(f'v_add_f32 v{T}, v{C1}, v{C1 + 1}\nv_mul_f32 v{T + 1}, v{C1}, v{C1}\nv_mul_f32 v{T + 2}, v{C1}, v{SH}')
        g(f'v_add_f32 v{T + 3}, v{SH}, v{SH + 1}\nv_mul_f32 v{T + 4}, v{SH}, v{SH}\nv_mov_b32 v{T + 5}, 0')
        for i in range(1, 4):
            if i > 1:
                g(f'v_add_f32 v{T}, v{T}, v{C1 + i}\nv_add_f32 v{T + 3}, v{T + 3}, v{SH + i}')
            g(f'v_fmac_f32 v{T + 1}, v{C1 + i}, v{C1 + i}\nv_fmac_f32 v{T + 2}, v{C1 + i}, v{SH + i}\nv_fmac_f32 v{T + 4}, v{SH + i}, v{SH + i}')
        g.nop(1)
        blocksum6(g, T, SW, SR, L.STAT + 256, KC)
        for i in range(5):
            g(f'v_mul_f32 v{KC + i}, 0x3a800000, v{KC + i}')
    g('\n'.join(zero32(BLK(0))))
    assert P['LNM'] and not ('p' in P['WREG'] and 'm' in P['WREG'])
    g.warm_run('L_wm')
    if early:
        w2_finish()
    g.warm_end()
    g.stamp('m_ready', (0, 2))
    g('L_mlp_tail:')
    g.warm_begin('L_wm')
    g('s_waitcnt vmcnt(0)')
    poll(g, xload, range(XV, XV + 4), T, mask=0xffff, preloaded=True)
    g.stamp('m_x1seen', (0, 2))
    for i in range(4):
        g(f'v_and_b32 v{XV + i}, {S_MASK}, v{XV + i}')
    if P['LNM']:
        UV, R = ACC + 4, ACC + 8
        pk4(g, 'v_pk_mul_f32', UV, XV, C1)
        g(f'v_pk_add_f32 {vr(R, 2)}, {vr(XV, 2)}, {vr(XV + 2, 2)}\nv_pk_mul_f32 {vr(R + 2, 2)}, {vr(XV, 2)}, {vr(XV, 2)}')
        g(f'v_pk_add_f32 {vr(R + 4, 2)}, {vr(UV, 2)}, {vr(UV + 2, 2)}\nv_pk_mul_f32 {vr(R + 6, 2)}, {vr(UV, 2)}, {vr(UV, 2)}')
        g(f'v_pk_mul_f32 {vr(R + 8, 2)}, {vr(UV, 2)}, {vr(C1, 2)}\nv_pk_mul_f32 {vr(R + 10, 2)}, {vr(UV, 2)}, {vr(SH, 2)}')
        g(f'v_pk_fma_f32 {vr(R + 2, 2)}, {vr(XV + 2, 2)}, {vr(XV + 2, 2)}, {vr(R + 2, 2)}')
        g(f'v_pk_fma_f32 {vr(R + 6, 2)}, {vr(UV + 2, 2)}, {vr(UV + 2, 2)}, {vr(R + 6, 2)}')
        g(f'v_pk_fma_f32 {vr(R + 8, 2)}, {vr(UV + 2, 2)}, {vr(C1 + 2, 2)}, {vr(R + 8, 2)}')
        g(f'v_pk_fma_f32 {vr(R + 10, 2)}, {vr(UV + 2, 2)}, {vr(SH + 2, 2)}, {vr(R + 10, 2)}')
        for d, i in enumerate((0, 4, 2, 6, 8, 10)):
            g(f'v_add_f32 v{T + d}, v{R + i}, v{R + i + 1}')
        blocksum6(g, T, SW, SR, L.STAT, R, finish=False)
        M, A, E1, E2, E3, EH, V2 = T, T + 1, T + 2, T + 3, T + 4, T + 5, T + 6
        K = '0x3a800000'
        rnd = lambda r: f'v_cvt_pk_bf16_f32 v{r}, 0, v{r}'
        sum4 = lambda i: [f'v_add_f32 v{R + 4 * i}, v{R + 4 * i}, v{R + 4 * i + 1}', f'v_add_f32 v{R + 4 * i + 2}, v{R + 4 * i + 2}, v{R + 4 * i + 3}',
                          f'v_add_f32 v{R + 4 * i}, v{R + 4 * i}, v{R + 4 * i + 2}', f'v_mul_f32 v{R + 4 * i}, {K}, v{R + 4 * i}']
        tail = lambda v: [f'v_max_f32 v{v}, 0, v{v}', rnd(v), f'v_add_f32 v{v}, 0x3727c5ac, v{v}', rnd(v), f'v_sqrt_f32 v{v}, v{v}', rnd(v),
                          f'v_rcp_f32 v{v}, v{v}']
        g('s_waitcnt lgkmcnt(4)')
        for x, y in zip(sum4(0), sum4(1)):
            g(x + '\n' + y)
        g('s_waitcnt lgkmcnt(0)')
        g.stamp('m_ln1', (2,))
        fill = [f'v_cvt_pk_bf16_f32 v{M}, 0, v{R}']
        for q in zip(sum4(2), sum4(3), sum4(4), sum4(5)):
            fill += list(q)
        fill += [f'v_fma_f32 v{E1}, -v{M}, v{KC}, v{R + 8}', f'v_fma_f32 v{E2}, -v{M}, v{KC + 1}, v{R + 20}',
                 f'v_fma_f32 v{E3}, v{M}, v{KC + 2}, -v{R + 16}', f'v_add_f32 v{E2}, v{E2}, v{E2}', f'v_sub_f32 v{E3}, v{E3}, v{R + 16}',
                 f'v_fma_f32 v{UV}, -v{M}, v{C1}, v{UV}', f'v_fma_f32 v{E3}, v{M}, v{E3}, v{R + 12}']
        weave(g, [f'v_fma_f32 v{A}, -v{R}, v{R}, v{R + 4}'] + tail(A), fill, 2)
        fill = [f'v_fma_f32 v{UV + i}, -v{M}, v{C1 + i}, v{UV + i}' for i in range(1, 4)]
        fill += [f'v_cvt_pk_bf16_f32 v{E1}, 0, v{EH}'] + [f'v_fma_f32 v{UV + i}, v{UV + i}, v{A}, v{SH + i}' for i in range(4)]
        fill += [f'v_sub_f32 v{UV + i}, v{UV + i}, v{E1}' for i in range(4)]
        g(f'v_fma_f32 v{EH}, v{E1}, v{A}, v{KC + 3}')
        weave(g, [f'v_fma_f32 v{V2}, v{E3}, v{A}, v{E2}', f'v_fma_f32 v{V2}, v{V2}, v{A}, v{KC + 4}', f'v_fma_f32 v{V2}, -v{EH}, v{EH}, v{V2}'] + tail(V2), fill, 1)
        for i in range(4):
            g(f'v_mul_f32 v{UV + i}, v{UV + i}, v{V2}')
        pack(g, T + 6, UV)
    else:
        layernorm(g, XV, SW, SR, L.STAT)
        g.stamp('m_ln1', (2,))
        pk4(g, 'v_pk_mul_f32', XV, XV, C1)
        round4(g, XV, T + 6)
        pk4(g, 'v_pk_add_f32', XV, XV, SH)
        round4(g, XV, T + 6)
        layernorm(g, XV, SW, SR, L.STAT + 64, last_packed=True)
    g(f'ds_write2_b32 v{KW}, v{T + 6}, v{T + 7} offset1:4')
    g('s_waitcnt lgkmcnt(0)\ns_barrier')
    g.stamp('m_ln2', (2,))
    nsplit(g, UC, L.ACTH, fast=(BLK(0), BLK(1) + 8, IDX, zero32(ACC)))
    g.stamp('m_t3', (2,))
    g(f'''v_cvt_pk_bf16_f32 v{T}, 0, v{T}
          v_mov_b32 v{T + 2}, 0xc0135761
          v_add_f32 v{T}, v{T}, v{B1}
          v_cvt_pk_bf16_f32 v{T}, 0, v{T}
          v_mul_f32 v{T + 1}, v{T}, v{T}
          v_fmac_f32 v{T + 2}, 0xbdd2d3e8, v{T + 1}
          v_mul_f32 v{T + 1}, v{T + 2}, v{T}
          v_exp_f32 v{T + 1}, v{T + 1}
          s_nop 0
          v_add_f32 v{T + 1}, 1.0, v{T + 1}
          v_rcp_f32 v{T + 1}, v{T + 1}
          s_nop 0
          v_mul_f32 v{T}, v{T}, v{T + 1}
          v_cvt_pk_bf16_f32 v{T}, v{T}, v{T}
          ds_write_b16 v{NO}, v{T}
          s_waitcnt lgkmcnt(0)
          s_barrier''')
    g.stamp('m_gelu', (2,))
    ksplit_out(g, UB, PO, 's13', ACC, IDX)
    g.warm_end()
    g.stamp('m_t4', (0, 2))
    write_stamps(g)
    g('s_endpgm')


def latem(g):
    L = Lds(MLP_LDS)
    g.vm = []
    g('L_late:')
    if P['XL']:
        write_stamps(g)
        g('s_endpgm')
    g(f's_lshl_b32 s4, s3, 6\nv_add_u32 v{TID}, s4, v0')
    LQ = P['LQ']
    qjob_voff(g, 8, LQ)
    g(f's_add_u32 s14, s14, {(16 << LQ) * (3 if P["GH"] else P["GJ"])}')
    g.bits(T + 6, TID, [(3, 6, 64), (0, 2, 16), (2, 1, 8)], T)
    srd(g, S_B, 36, 4096)
    g('s_barrier')
    g.stamp('l_bar', (4,))
    g.vmop(f'buffer_load_dwordx2 {vr(12, 2)}, v{T + 6}, {S_B}, 0 offen', 'in')
    qjob_issue(g, UA, 's14', 8, LQ)
    g.stamp('l_iss', (4,))
    common_addr(g, L, False)
    g.stamp('l_addr', (4,))
    g.vmwait('in')
    g.stamp('l_c', (4,))
    silu_image(g, L, 12)
    g('s_waitcnt lgkmcnt(0)\ns_barrier')
    g.stamp('l_silu', (4,))
    g('L_late2:')
    qjob_finish(g, L, UA, 9, 10, LQ)
    g.stamp('l_pub1', (0, 1, 2, 4))
    if not P['GBG'] and LQ == 2 and P['GJ'] == 1:
        done = g.label('L_latedone')
        g(f's_cmp_ge_u32 s14, 128\ns_cbranch_scc1 {done}\ns_add_u32 s14, s14, 128\ns_barrier')
        qjob_issue(g, UA, 's14', 8)
        g(f's_branch L_late2\n{done}:')
    write_stamps(g)
    g('s_endpgm')


def attention(g, mode='main', arg=None):
    KO, VO, QO, VSC, VMAX, OO = 1, 2, 3, 4, 5, 6
    Q0, SP, TMP, T2 = 8, 16, 40, 56
    LA, GA = T2 + 7, T2 + 6
    SLOT = lambda s: 64 + 32 * s
    AC = SLOT(0)
    U = lambda u: 's%d' % (4 + 2 * u)
    U2 = lambda u: 's%d' % (5 + 2 * u)
    S_R, S_CU, S_GA, S_T = 's47', 's68', 's96', 's69'
    S_B4, S_B5, S_O4, S_KV = 's46', 's100', 's101', 's101'
    MX, OBUF, OST = 0, W1L, 16384
    QL, QF = 1024, 3072
    S_ST = 's97'
    NN = (SPL - NMR) * 8
    NUG = P['NUG']
    n4 = min(NN, 1024 - 4 * WPR - 64 * NUG)
    EX = 6 * P['A5W']
    n5 = 1024 - 4 * WPR - n4 - 64 * NUG - EX
    RK = QF + 4
    LT = P['LIGHT']
    S_B3, S_G3 = 's0', 's43'
    XV5 = EX or P['EV']
    assert 0 <= n5 <= NN
    base = [0, WPR, 2 * WPR, 3 * WPR, 4 * WPR, 4 * WPR + n4]
    VSLOT = [1, 2, 3, 1, 4, 5] if mode == 'main' else [NUG + u for u in range(NUG)]

    def unit_addr(u):
        g(f's_add_u32 {U(u)}, {S_GA}, {"s98" if u < (5 if n4 == NN else 4) else S_T}')
        if u:
            g(f's_add_u32 {U(u)}, {U(u)}, {base[u]}')
        g(f's_and_b32 {U(u)}, {U(u)}, 1023\ns_lshl_b32 {U(u)}, {U(u)}, 13\ns_add_u32 {U2(u)}, {U(u)}, 4096')

    def entry():
        g.vm = []
        g('L_attn:')
        g(f'''s_sub_u32 {S_T}, s2, {NG}
              s_mul_hi_u32 {S_R}, {S_T}, {(1 << 32) // SPL + 1}
              s_mul_i32 {S_CU}, {S_R}, {SPL - (1 if P["ROT"] else 0)}
              s_sub_u32 {S_CU}, {S_T}, {S_CU}
              s_sub_u32 {S_T}, {S_CU}, {SPL}
              s_cselect_b32 {S_CU}, {S_CU}, {S_T}
              s_lshl_b32 s98, {S_CU}, 3
              s_add_u32 s98, s98, s3
              s_mul_i32 {S_GA}, {S_R}, {P["PH"]}''')
        unit_addr(0)
        g.bits(KO, 0, [(1, 1, 1024), (2, 2, 256), (0, 1, 64), (4, 2, 16)], 8)
        g(f's_lshl_b32 s99, {S_R}, 23\ns_mov_b32 s58, 0x800000\ns_mov_b32 s59, 0x20000')
        g.stamp('a_prek', (5,))
        g('s_waitcnt lgkmcnt(0)')
        g.stamp('a_karg', (5,))
        g('s_add_u32 s56, s18, s99\ns_addc_u32 s57, s19, 0')

    def entry2():
        consts(g)
        g(f's_add_u32 s60, s20, s99\ns_addc_u32 s61, s21, 0\ns_mov_b32 s62, 0x800000\ns_mov_b32 s63, 0x20000')
        g(f'''s_mul_i32 {S_T}, s3, {SPL - NMR}
              s_add_u32 {S_T}, {S_T}, {S_CU}
              s_cmp_lt_u32 {S_CU}, {SPL - NMR}
              s_cselect_b32 {S_T}, {S_T}, 1023''')
        for u in range(1, NU):
            unit_addr(u)
        if LT:
            g(f's_add_u32 s99, {S_GA}, {S_T}\ns_add_u32 s99, s99, {base[3] + NN + 8 - LT - n5}\ns_and_b32 s99, s99, 1023\ns_lshl_b32 s99, s99, 13')
            g(f's_cmp_ge_u32 {S_T}, {n5}\ns_cselect_b32 {U(5)}, s99, {U(5)}\ns_add_u32 {U2(5)}, {U(5)}, 4096')
            g(f's_sub_u32 s99, s98, {NN + 8 - LT}\ns_cmp_lt_u32 s99, {LT}\ns_cselect_b32 {S_B3}, 0xff800000, 0')
        g(f'v_lshlrev_b32 v{VO}, 4, v0')
        g(f's_cmp_lt_u32 {S_T}, {n5 + LT}\ns_cselect_b32 s98, 0, 0x1000000\ns_cselect_b32 {S_B5}, 0, 0xff800000')
        g(f'v_add_u32 v{OO + 1}, s98, v{KO}')
        if EX:
            skip = g.label('L_noex')
            g(f's_cmp_le_u32 {S_CU}, {SPL - NMR}\ns_cbranch_scc1 {skip}\ns_cmp_ge_u32 s3, {P["A5W"]}\ns_cbranch_scc1 {skip}')
            g(f's_mul_i32 {U(4)}, s3, 6\ns_add_u32 {U(4)}, {U(4)}, {S_CU}\ns_add_u32 {U(4)}, {U(4)}, {S_GA}\ns_add_u32 {U(4)}, {U(4)}, {1024 - EX - 18}')
            g(f's_and_b32 {U(4)}, {U(4)}, 1023\ns_lshl_b32 {U(4)}, {U(4)}, 13\ns_add_u32 {U2(4)}, {U(4)}, 4096\ns_mov_b32 {S_T}, 0')
            g(skip + ':')
        g(f's_cmp_lt_u32 {S_T}, {n4}\ns_cselect_b32 {S_O4}, 0, 0x1000000\ns_cselect_b32 {S_B4}, 0, 0xff800000')
        g(f'v_add_u32 v{OO}, {S_O4}, v{KO}')
        assert LT and not P['RANK'] and P['DBGST'] < 0
        skip = g.label('L_noev')
        g(f's_lshr_b32 {S_G3}, {S_B3}, 7\ns_cmp_lt_u32 {S_CU}, {SPL - NMR}\ns_cbranch_scc1 {skip}')
        if P['EV']:
            g(f's_cmp_eq_u32 {S_B4}, 0\ns_cselect_b32 {U(5)}, {U(4)}, {U(3)}\ns_cselect_b32 {S_T}, 0, {S_G3}\ns_cselect_b32 {S_G3}, 0, 0x1000000')
        else:
            g(f's_mov_b32 {U(5)}, {U(4)}\ns_lshr_b32 {S_T}, {S_B4}, 7')
        g(f's_add_u32 {U2(5)}, {U(5)}, 4096\nv_add_u32 v{OO + 1}, {S_T}, v{VO}')
        g(skip + ':')

    def slice_index(d, t):
        if not LT:
            g(f's_mul_i32 {d}, {S_R}, {NMR}\ns_add_u32 {d}, {d}, {S_CU}\ns_sub_u32 {d}, {d}, {SPL - NMR}')
            return
        g(f'''s_mul_i32 {d}, {S_R}, 6
              s_add_u32 {d}, {d}, {S_CU}
              s_sub_u32 {d}, {d}, {SPL - NMR + 1 - 4}
              s_mul_hi_u32 {t}, {d}, {(1 << 32) // 7 + 1}
              s_add_u32 {d}, {d}, {t}
              s_sub_u32 {d}, {d}, 4
              s_lshl_b32 {t}, {S_R}, 3
              s_add_u32 {t}, {t}, 3
              s_min_u32 {t}, {t}, 55
              s_cmp_eq_u32 {S_CU}, {SPL - NMR}
              s_cselect_b32 {d}, {t}, {d}''')

    def load(n, pos):
        i = n & 7
        if n < 48:
            u = n >> 3
            vo = KO if u < 4 else OO + u - 4
            if u == 3 and LT:
                vo = T2 + 3
                if i == 0:
                    g(f's_lshr_b32 {S_T}, {S_B3}, 7\nv_add_u32 v{vo}, {S_T}, v{KO}')
            if u == 5:
                l1, l2 = g.label('L_k5'), g.label('L_k5j')
                g(f's_cmp_lt_u32 {S_CU}, {SPL - NMR}\ns_cbranch_scc1 {l1}')
                g(f'buffer_load_dwordx4 {vr(SLOT(u) + 4 * i, 4)}, v{vo}, {S_B}, {U2(5) if i >= 4 else U(5)} offen offset:{(i & 3) * 1024} nt')
                g(f's_branch {l2}\n{l1}:')
            g.vmop(f'buffer_load_dwordx4 {vr(SLOT(u) + 4 * i, 4)}, v{vo}, {S_A}, {U2(u) if i >= 4 else U(u)} offen '
                   f'offset:{((i >> 1) & 1) * 2048 + (i & 1) * 128} nt', pos)
            if u == 5:
                g(l2 + ':')
        elif n < 64:
            if n == 48:
                l1, l2 = g.label('L_xv'), g.label('L_xj')
                g(f's_lshl_b32 s98, s3, 14\ns_add_u32 m0, s98, {W1L}\ns_mov_b32 s95, 0x20000')
                g(f's_cmp_lt_u32 {S_CU}, {SPL - NMR}\ns_cbranch_scc1 {l1}')
                g(f's_lshl_b32 {S_T}, s3, 6\nv_add_u32 v{T2 + 1}, {S_T}, v0')
                nvoff(g, OO, 7168, T2 + 1, T2 + 2)
                g(f'v_mov_b32 v{OO + 1}, v{OO}')
                slice_index(S_T, 's98')
                g(f's_lshl_b32 {U(4)}, {S_T}, 7\ns_add_u32 {U(5)}, {U(4)}, {512 * 7168}\ns_mov_b32 {U2(4)}, {nstep() * 7168}')
                g(f's_mov_b32 s92, s28\ns_mov_b32 s93, s29\ns_mov_b32 s94, {1024 * 7168}')
                g(f's_branch {l2}\n{l1}:')
                g(f'v_sub_u32 v{T2 + 1}, v{VO}, v{KO}\nv_add_u32 v{OO}, v{OO}, v{T2 + 1}\nv_add_u32 v{OO + 1}, v{OO + 1}, v{T2 + 1}')
                g(f's_mov_b32 {U2(4)}, 1024\ns_mov_b32 s92, s60\ns_mov_b32 s93, s61\ns_mov_b32 s94, s62')
                g(l2 + ':')
            u = 4 + ((n - 48) >> 3)
            if n > 48:
                g('s_add_u32 m0, m0, 1024')
            g(f's_add_u32 {U(u)}, {U(u)}, {U2(4)}' if i else 's_nop 0')
            g.vmop(f'buffer_load_dwordx4 v{OO + u - 4}, s[92:95], {U(u)} offen nt lds', pos)
        else:
            u = (n - 64) >> 3
            vo = VO
            if u == 3 and LT:
                vo = OO
                if i == 0:
                    g(f'v_add_u32 v{vo}, {S_G3}, v{VO}')
            g.vmop(f'buffer_load_dwordx4 {vr(SLOT(VSLOT[u]) + 4 * i, 4)}, v{vo}, {S_B}, {U2(u) if i >= 4 else U(u)} offen '
                   f'offset:{(i & 3) * 1024} nt', pos)

    def mailbox():
        g.bits(GA, 0, [(5, 1, MBA_ST), (0, 5, 8)], T2)
        g(f'''s_and_b32 {S_T}, {S_R}, 3
              s_lshl_b32 {S_T}, {S_T}, 3
              s_add_u32 {S_T}, {S_T}, s3
              s_mul_i32 {S_T}, {S_T}, {2 * MBA_ST}
              s_lshr_b32 {S_GA}, {S_R}, 2
              s_mul_i32 {S_GA}, {S_GA}, {SLOTS}
              s_add_u32 {S_GA}, {S_GA}, {S_CU}
              s_lshl_b32 {S_GA}, {S_GA}, 8
              s_add_u32 {S_GA}, {S_GA}, {S_T}
              s_add_u32 {S_GA}, {S_GA}, {MBA}''')

    def setup():
        srd(g, S_WS, 44, WS_SIZE)
        if P['RANK'] or P['DBGST'] >= 0:
            srd(g, S_DBG, 42, 256)
        mailbox()
        g.vmop(epoch_load(T2 + 2), 'ep')
        if P['PFA'] == 1:
            prefetch_code(g, 'L_attn_body', 2, 8, TMP, 'pf')
        if P['PFA'] == 2:
            skip = g.label('L_nopf')
            g(f's_cmp_ge_u32 s2, {NG + 8}\ns_cbranch_scc1 {skip}')
            prefetch_code(g, 'L_attn_body', 2, 8, TMP)
            g(skip + ':')
        if P['TLB']:
            skip = g.label('L_notlb')
            sh = P['TLB']
            g(f'v_lshlrev_b32 v8, {sh}, v0')
            g.setexec((1 << min(64, 1 << (23 - sh))) - 1 if sh > 17 else -1)
            g(f's_cmp_eq_u32 s3, 1\ns_cbranch_scc0 {skip}_a\nbuffer_load_dword v{TMP + 4}, v8, {S_A}, 0 offen nt\n{skip}_a:')
            g(f's_cmp_eq_u32 s3, 2\ns_cbranch_scc0 {skip}_b\nbuffer_load_dword v{TMP + 4}, v8, {S_B}, 0 offen nt\n{skip}_b:')
            for w, (ptr, size) in enumerate(((28, 7 << 20), (32, 7 << 20), (38, 12 << 20), (44, WS_SIZE))):
                l = f'{skip}_{w}'
                g(f's_cmp_eq_u32 s3, {3 + w}\ns_cbranch_scc0 {l}')
                g(f's_mov_b32 s92, s{ptr}\ns_mov_b32 s93, s{ptr + 1}\ns_mov_b32 s94, {size}\ns_mov_b32 s95, 0x20000')
                g(f'buffer_load_dword v{TMP + 4}, v8, s[92:95], 0 offen offset:2048 {"sc1" if ptr == 44 else "nt"}')
                if size > (8 << 20):
                    g(f's_mov_b32 {S_T}, {8 << 20}\nv_add_u32 v9, {S_T}, v8\nbuffer_load_dword v{TMP + 4}, v9, s[92:95], 0 offen nt')
                g(l + ':')
            g.setexec(-1)
        g(f's_and_b32 {S_KV}, {S_R}, 3\ns_lshl_b32 {S_KV}, {S_KV}, 2')
        g.bits(QO, 0, [(0, 3, 256), (3, 1, 64), (4, 2, 16)], 8)
        g.bits(LA, 0, [(0, 4, 64)], 8)
        g(f's_lshl_b32 {S_T}, s3, 3\nv_add_u32 v8, {S_T}, v{LA}\nv_mov_b32 v9, -1\nds_write_b32 v8, v9 offset:{MX + 4}')
        g(f'v_mov_b32 v{T2}, 0\nds_write_b32 v{T2}, v{T2} offset:{QF}\ns_mov_b32 {S_ST}, 0\ns_waitcnt lgkmcnt(0)\ns_barrier')
        g(f'v_mov_b32 v{VSC}, 0x3db504f3\nv_mov_b32 v{VMAX}, 0xff800000')
        g('L_attn_body:')

    def lds_units():
        l1, l2 = g.label('L_w1'), g.label('L_w1j')
        g(f's_lshl_b32 {S_T}, s3, 14\ns_add_u32 {S_T}, {S_T}, {W1L}\nv_add_u32 v{T2}, {S_T}, v{VO}')
        g(f's_cmp_ge_u32 {S_CU}, {SPL - NMR}\ns_cbranch_scc1 {l1}')
        for i in range(16):
            g(f'ds_read_b128 {vr(SLOT(4) + 4 * i, 4)}, v{T2} offset:{i * 1024}')
        g('s_waitcnt lgkmcnt(8)')
        pv(4)
        g('s_waitcnt lgkmcnt(0)')
        pv(5)
        g(f's_branch {l2}\n{l1}:')
        if P['EV']:
            skip = g.label('L_p4')
            g(f's_cmp_eq_u32 {S_B4}, 0\ns_cbranch_scc1 {skip}')
            g(f'v_mov_b64 {vr(SP + 16, 2)}, {vr(SP + 12, 2)}\nv_mov_b64 {vr(SP + 18, 2)}, {vr(SP + 14, 2)}')
            g(skip + ':')
        pv(4, 5)
        for i in range(16):
            g(f'ds_read_b128 {vr(IL(UC, i >> 3, 4 * (i & 7)), 4)}, v{T2} offset:{i * 1024}')
        g('s_waitcnt lgkmcnt(8)')
        transpose(g, UC, T2, il=True)
        g('s_waitcnt lgkmcnt(0)')
        transpose(g, UC + 1, T2, il=True)
        g(l2 + ':')

    def qstep(final=False):
        skip = only_wave(g, P['QW'])
        l1, l3, top = g.label('L_q1'), g.label('L_q3'), g.label('L_qtop')
        if final:
            g(f's_mov_b32 {S_SPIN}, {SPIN}\n{top}:')
        g(f's_cmp_eq_u32 {S_ST}, 2\ns_cbranch_scc1 {skip}')
        if final:
            g(f's_waitcnt vmcnt(0)\ns_sub_u32 {S_SPIN}, {S_SPIN}, 1\ns_cbranch_scc1 {l3}')
        g(f's_cmp_eq_u32 {S_ST}, 0\ns_cbranch_scc1 {l1}')
        check(g, range(TMP, TMP + 16), T2, 0xffff)
        g(f's_cbranch_vccz {l3}')
        if final:
            g(f's_sleep {P["QSL"]}')
        g(l1 + ':')
        g(f's_lshl_b32 {S_T}, {S_R}, 12\ns_add_u32 {S_T}, {S_T}, {QB}\ns_mov_b32 {S_ST}, 1')
        for i in range(4):
            g(f'buffer_load_dwordx4 {vr(TMP + 4 * i, 4)}, v{VO}, {S_WS}, {S_T} offen offset:{1024 * i} sc1')
        g(f's_branch {top if final else skip}')
        g(l3 + ':')
        g(f'v_lshlrev_b32 v{T2}, 3, v0')
        for i in range(8):
            g(f'v_perm_b32 v{Q0 + i}, v{TMP + 2 * i + 1}, v{TMP + 2 * i}, {S_HI}')
        for i in range(4):
            g(f'ds_write_b64 v{T2}, {vr(Q0 + 2 * i, 2)} offset:{QL + 512 * i}')
        g(f'v_mov_b32 v{T2}, 0\nv_mov_b32 v{T2 + 1}, 1\ns_mov_b32 {S_ST}, 2\ns_waitcnt lgkmcnt(0)')
        g(f'ds_write_b32 v{T2}, v{T2 + 1} offset:{QF}')
        g(skip + ':')

    def qget():
        g.stamp('a_qwait')
        if P['NOQ']:
            return
        qstep(final=True)
        lp, ok = g.label('L_qf'), g.label('L_qfok')
        g(f'v_mov_b32 v{T2}, 0\ns_mov_b32 {S_SPIN}, {SPIN * 16}\n{lp}:')
        g(f'ds_read_b32 v{T2 + 1}, v{T2} offset:{QF}\ns_waitcnt lgkmcnt(0)')
        g(f'v_cmp_eq_u32 vcc, 0, v{T2 + 1}\ns_cbranch_vccz {ok}')
        g(f's_sleep 2\ns_sub_u32 {S_SPIN}, {S_SPIN}, 1\ns_cbranch_scc0 {lp}\n{ok}:')
        g(f'ds_read_b128 {vr(Q0, 4)}, v{QO} offset:{QL}\nds_read_b128 {vr(Q0 + 4, 4)}, v{QO} offset:{QL + 128}')
        g('s_waitcnt lgkmcnt(0)')
        g.stamp('a_qseen')

    def qk(u):
        for t in range(4):
            g(f'v_mfma_f32_16x16x32_bf16 {vr(TMP + 4 * t, 4)}, {vr(SLOT(u) + 8 * t, 4)}, {vr(Q0, 4)}, 0')
        for t in range(4):
            g(f'v_mfma_f32_16x16x32_bf16 {vr(TMP + 4 * t, 4)}, {vr(SLOT(u) + 8 * t + 4, 4)}, {vr(Q0 + 4, 4)}, {vr(TMP + 4 * t, 4)}')
        g.nop(5)
        for t in range(4):
            d = TMP + 4 * t
            a, b = T2 + 2 * (t & 1), T2 + 2 * (t & 1) + 1
            g(f'v_add_f32_dpp v{a}, v{d + 1}, v{d} row_ror:8 {DPP}\nv_add_f32_dpp v{b}, v{d + 3}, v{d + 2} row_ror:8 {DPP}')
            round2(g, a)
            if u >= 4 or (u == 3 and LT and mode == 'main'):
                sb = (S_B3, S_B4, S_B5)[u - 3]
                g(f'v_fma_f32 v{a}, v{a}, v{VSC}, {sb}\nv_fma_f32 v{b}, v{b}, v{VSC}, {sb}')
            else:
                g(f'v_mul_f32 v{a}, v{a}, v{VSC}\nv_mul_f32 v{b}, v{b}, v{VSC}')
            g(f'v_max3_f32 v{VMAX}, v{VMAX}, v{a}, v{b}\nv_cvt_pk_bf16_f32 v{SP + 4 * u + t}, v{a}, v{b}')

    def red_g(r, t, op):
        for ins in ('v_permlane32_swap_b32', 'v_permlane16_swap_b32'):
            g(f'v_mov_b32 v{t}, v{r}')
            g.nop(2)
            g(f'{ins} v{r}, v{t}\n{op} v{r}, v{r}, v{t}')

    def softmax():
        red_g(VMAX, T2, 'v_max_f32')
        for i in range(0, 32, 2):
            g(f'v_mov_b64 {vr(AC + i, 2)}, 0')
        g(f'v_mov_b32 v{VSC}, 0x3fb8aa3b\nv_mov_b32 v{T2 + 4}, 0')
        g(f'v_cvt_pk_bf16_f32 v{VMAX}, 0, v{VMAX}')
        g(f'v_mul_f32 v{T2 + 5}, v{VMAX}, v{VSC}')

    def probs(u, last=NU - 1):
        for i in range(4 * u, 4 * u + 4):
            p = SP + i
            a, b = T2 + 2 * (i & 1), T2 + 2 * (i & 1) + 1
            unpack2(g, a, p)
            g(f'v_fma_f32 v{a}, v{a}, v{VSC}, -v{T2 + 5}\nv_fma_f32 v{b}, v{b}, v{VSC}, -v{T2 + 5}')
            g(f'v_exp_f32 v{a}, v{a}\nv_exp_f32 v{b}, v{b}')
            g(f'v_add_f32 v{T2 + 4}, v{T2 + 4}, v{a}\nv_add_f32 v{T2 + 4}, v{T2 + 4}, v{b}')
            if not (P['EPI'] and u == 3 and mode == 'main'):
                g(f'v_cvt_pk_bf16_f32 v{p}, v{a}, v{b}')
        if u == last:
            red_g(T2 + 4, T2, 'v_add_f32')
            g(f's_lshl_b32 {S_T}, s3, 3\nv_add_u32 v{T2}, {S_T}, v{LA}\nv_mov_b32 v{T2 + 2}, v{VMAX}\nv_min_u32 v{T2 + 3}, -2, v{T2 + 4}')
            g(f'ds_write_b64 v{T2}, {vr(T2 + 2, 2)} offset:{MX}')
            if mode == 'main':
                g.stamp('a_probs')

    def pv(u, slot=None):
        s = SLOT(VSLOT[u] if slot is None else slot)
        for w in range(4):
            t = TMP + 8 * (w & 1)
            for p in range(4):
                g(f'v_perm_b32 v{t + p}, v{s + 8 * p + 4 + w}, v{s + 8 * p + w}, {S_LO}')
            for p in range(4):
                g(f'v_perm_b32 v{t + 4 + p}, v{s + 8 * p + 4 + w}, v{s + 8 * p + w}, {S_HI}')
            g(f'v_mfma_f32_16x16x32_bf16 {vr(AC + 8 * w, 4)}, {vr(t, 4)}, {vr(SP + 4 * u, 4)}, {vr(AC + 8 * w, 4)}')
            g('s_nop 0')
            g(f'v_mfma_f32_16x16x32_bf16 {vr(AC + 8 * w + 4, 4)}, {vr(t + 4, 4)}, {vr(SP + 4 * u, 4)}, {vr(AC + 8 * w + 4, 4)}')

    def gather_ml():
        lp, ok = g.label('L_ml'), g.label('L_mlok')
        g(f's_mov_b32 {S_SPIN}, {SPIN * 16}\n{lp}:')
        for i in range(4):
            g(f'ds_read_b128 {vr(TMP + 4 * i, 4)}, v{LA} offset:{MX + 16 * i}')
        g('s_waitcnt lgkmcnt(0)')
        g(f'v_max_u32 v{T2}, v{TMP + 1}, v{TMP + 3}')
        for i in range(5, 16, 4):
            g(f'v_max3_u32 v{T2}, v{T2}, v{TMP + i}, v{TMP + i + 2}')
        g(f'v_cmp_eq_u32 vcc, -1, v{T2}\ns_cbranch_vccz {ok}')
        g(f's_sleep 2\ns_sub_u32 {S_SPIN}, {S_SPIN}, 1\ns_cbranch_scc0 {lp}\n{ok}:')
        g(f'v_max_f32 v{T2 + 2}, v{TMP}, v{TMP + 2}')
        for i in range(4, 16, 4):
            g(f'v_max3_f32 v{T2 + 2}, v{T2 + 2}, v{TMP + i}, v{TMP + i + 2}')

    def stats():
        skip = only_wave(g, P['SW'])
        gather_ml()
        g(f'v_mov_b32 v{T2 + 3}, 0')
        for i in range(0, 16, 2):
            g(f'v_sub_f32 v{TMP + i}, v{TMP + i}, v{T2 + 2}\nv_mul_f32 v{TMP + i}, 0x3fb8aa3b, v{TMP + i}')
        for i in range(0, 16, 2):
            g(f'v_exp_f32 v{TMP + i}, v{TMP + i}')
        g(f's_lshl_b32 {S_T}, {S_R}, 11\ns_lshl_b32 s98, {S_CU}, 3\ns_add_u32 {S_T}, {S_T}, s98\ns_add_u32 {S_T}, {S_T}, {STATS}')
        for i in range(0, 16, 2):
            g(f'v_fmac_f32 v{T2 + 3}, v{TMP + i}, v{TMP + i + 1}')
        g(f'v_lshlrev_b32 v{T2}, 8, v0')
        tagmask(g, T2 + 1)
        tag(g, [T2 + 2, T2 + 3], T2 + 1)
        g.setexec(0xff)
        if not P['XS']:
            g(f'buffer_store_dwordx2 {vr(T2 + 2, 2)}, v{T2}, {S_WS}, {S_T} offen sc1')
        g.setexec(-1)
        g(skip + ':')

    def factor():
        gather_ml()
        g(f'v_sub_f32 v{FS}, v{VMAX}, v{T2 + 2}\nv_mul_f32 v{FS}, 0x3fb8aa3b, v{FS}\nv_exp_f32 v{FS}, v{FS}')
        tagmask(g, FS + 1)
        if P['EPI'] and mode == 'main':
            assert not P['EV']
            g(f'v_mul_f32 v{T2 + 5}, 0x3fb8aa3b, v{T2 + 2}\nv_mov_b32 v{T2 + 4}, 0x3fb8aa3b')
            for i in range(0, 32, 2):
                g(f'v_pk_mul_f32 {vr(AC + i, 2)}, {vr(AC + i, 2)}, {vr(FS, 2)} op_sel_hi:[1,0]')
            for i in range(12, 16):
                p = SP + i
                a, b = T2 + 2 * (i & 1), T2 + 2 * (i & 1) + 1
                unpack2(g, a, p)
                g(f'v_fma_f32 v{a}, v{a}, v{T2 + 4}, -v{T2 + 5}\nv_fma_f32 v{b}, v{b}, v{T2 + 4}, -v{T2 + 5}')
                g(f'v_exp_f32 v{a}, v{a}\nv_exp_f32 v{b}, v{b}\ns_nop 0\nv_cvt_pk_bf16_f32 v{p}, v{a}, v{b}')

    def pv_last():
        s, t = SLOT(VSLOT[3]), SLOT(2)
        perm = lambda w, p: (f'v_perm_b32 v{t + 8 * w + p}, v{s + 8 * p + 4 + w}, v{s + 8 * p + w}, {S_LO}\n'
                             f'v_perm_b32 v{t + 8 * w + 4 + p}, v{s + 8 * p + 4 + w}, v{s + 8 * p + w}, {S_HI}')
        for p in range(3):
            land(89 + 2 * p)
            for w in range(4):
                g(perm(w, p))
        land(95)
        g.stamp('a_landed')
        for w in range(4):
            g(perm(w, 3))
        for j in range(8):
            g(f'v_mfma_f32_16x16x32_bf16 {vr(AC + 4 * j, 4)}, {vr(t + 4 * j, 4)}, {vr(SP + 12, 4)}, {vr(AC + 4 * j, 4)}')

    FS = Q0 + 2
    WA, RA = KO, QO

    def epi_addr():
        g(f's_mul_i32 {S_T}, s3, {OST}\ns_add_u32 {S_T}, {S_T}, {OBUF}')
        g.bits(WA, 0, [(4, 2, 128), (0, 4, 16)], T2, S_T)
        g(f's_lshl_b32 {S_T}, s3, 4\ns_add_u32 {S_T}, {S_T}, {OBUF}')
        g.bits(RA, 0, [(1, 3, 528), (4, 2, 128), (0, 1, 8)], T2, S_T)
        g(f'v_add_u32 v{VSC}, {4 * OST}, v{RA}')

    def epilogue():
        g.setexec(rep16(0xff))
        for j in range(8):
            for h in (0, 2) if not (P['EPI'] and mode == 'main') else ():
                g(f'v_pk_mul_f32 {vr(AC + 4 * j + h, 2)}, {vr(AC + 4 * j + h, 2)}, {vr(FS, 2)} op_sel_hi:[1,0]')
            g(f'ds_write_b128 v{WA}, {vr(AC + 4 * j, 4)} offset:{528 * j}')
        g.setexec(-1)
        if P['W2E'] and not P['W2P'] and mode == 'main':
            skip = g.label('L_now2')
            g(f's_cmp_lt_u32 {S_CU}, {SPL - NMR}\ns_cbranch_scc1 {skip}')
            kload(g, UB, 32, 3584 * 2048, 's14', OO + 1, lambda kb, t: 32 * kb + 4 * t, 'w2', which=range(P['W2E']))
            g(skip + ':')
        g('s_waitcnt lgkmcnt(0)\ns_barrier')
        for w in range(8):
            g(f'ds_read_b64 {vr(TMP + 2 * w, 2)}, v{RA if w < 4 else VSC} offset:{OST * (w & 3)}')
        g('s_waitcnt lgkmcnt(4)')
        pk4(g, 'v_pk_add_f32', TMP, TMP, TMP + 4)
        g('s_waitcnt lgkmcnt(0)')
        pk4(g, 'v_pk_add_f32', TMP + 8, TMP + 8, TMP + 12)
        pk4(g, 'v_pk_add_f32', TMP, TMP, TMP + 8)
        g(f'v_pk_add_f32 {vr(TMP, 2)}, {vr(TMP, 2)}, {vr(TMP + 2, 2)}')
        tag(g, [TMP, TMP + 1], FS + 1)
        if not P['XP']:
            g(f'buffer_store_dwordx2 {vr(TMP, 2)}, v{GA}, {S_WS}, {S_GA} offen sc1')

    GK, GV, S_GU = 12, 13, 's100'
    if mode == 'g_addr':
        g(f'''s_lshr_b32 {S_R}, s14, 3
              s_and_b32 {S_CU}, s14, 7
              s_lshl_b32 {S_GU}, {S_CU}, 3
              s_add_u32 {S_GU}, {S_GU}, s3
              s_mul_i32 {S_T}, {S_R}, {P["PH"]}
              s_add_u32 {S_GU}, {S_GU}, {S_T}
              s_add_u32 {S_CU}, {S_CU}, {SPL}''')
        g.bits(GK, 0, [(1, 1, 1024), (2, 2, 256), (0, 1, 64), (4, 2, 16)], GV)
        g(f'v_lshlrev_b32 v{GV}, 4, v0')
        return
    if mode == 'g_issue':
        for n in arg:
            i, isk, u = n & 7, n < 8 * NUG, (n >> 3) % NUG
            if i == 0:
                p = 18 if isk else 20
                g(f's_lshl_b32 {S_T}, {S_R}, 23\ns_add_u32 s56, s{p}, {S_T}\ns_addc_u32 s57, s{p + 1}, 0\ns_mov_b32 s58, 0x800000')
                g(f's_add_u32 s101, {S_GU}, {1024 - 64 * (NUG - u)}\ns_and_b32 s101, s101, 1023\ns_lshl_b32 s101, s101, 13\ns_add_u32 {S_T}, s101, 4096')
            off = ((i >> 1) & 1) * 2048 + (i & 1) * 128 if isk else (i & 3) * 1024
            g(f'buffer_load_dwordx4 {vr(SLOT(0) + 4 * n, 4)}, v{GK if isk else GV}, {S_A}, {S_T if i >= 4 else "s101"} offen offset:{off} nt')
        return
    gq = '\n'.join(f'buffer_load_dwordx4 {vr(Q0 + 4 * i, 4)}, v{LA}, {S_WS}, 0 offen offset:{(i >> 1) * 256 + (i & 1) * 16} sc1' for i in range(4))

    def gq_addr():
        g(f's_lshl_b32 {S_T}, {S_R}, 12\ns_add_u32 {S_T}, {S_T}, {QB}')
        g.bits(LA, 0, [(0, 3, 512), (3, 1, 128), (4, 2, 32)], GA, S_T)
    if mode == 'g_q':
        gq_addr()
        g.vmop(gq, 'gq')
        return
    if mode == 'g_compute':
        g.vmwait('gq')
        poll(g, gq, range(Q0, Q0 + 16), T2, 8, preloaded=True, mask=0xffff)
        for i in range(8):
            g(f'v_perm_b32 v{Q0 + i}, v{Q0 + 2 * i + 1}, v{Q0 + 2 * i}, {S_HI}')
        mailbox()
        g.bits(LA, 0, [(0, 4, 64)], T2)
        g(f'v_mov_b32 v{VSC}, 0x3db504f3\nv_mov_b32 v{VMAX}, 0xff800000')
        for u in range(NUG):
            qk(u)
        softmax()
        for u in range(NUG):
            probs(u, NUG - 1)
        epi_addr()
        for u in range(NUG):
            pv(u)
        g('s_waitcnt lgkmcnt(0)\ns_barrier')
        stats()
        factor()
        g('s_nop 0')
        epilogue()
        g('s_barrier')
        return

    entry()
    GS = P['GS']
    order = list(range(96))
    if P['ILV']:
        order = list(range(32, 48))
        for i in range(16):
            order += [2 * i, 2 * i + 1, 48 + i]
        order += list(range(64, 96))
    last = lambda ids: max(order.index(i) for i in ids)
    depth = lambda n: P['DK1'] if n < P['NK1'] else (P['DK2'] if n < 48 else (P['DX'] if n < 64 else P['DV']))
    qsteps = list(range(P['QP0'] - 1, P['QG'] - 1, P['QPS']))
    st = dict(landed=-1, issued=-1, done=0)

    def land(n):
        if n > st['landed']:
            g.vmwait(n)
            st['landed'] = n

    W = [('q', -1, qget)]
    W += [('qk%d' % u, last(range(8 * u, 8 * u + 8)), lambda u=u: qk(u)) for u in ([0, 1, 4, 5, 2, 3] if P['ILV'] else range(NU))]
    W += [('sm', -1, softmax)]
    W += [('pr%d' % u, -1, lambda u=u: probs(u)) for u in range(NU)]
    W += [('st', -1, stats), ('rb', 63, lambda: (epi_addr(), lds_units()))]
    for u in range(4):
        if u == 3:
            W += [('fs', -1, factor)]
        W += [('pv%d' % u, 64 + 8 * u + 7, lambda u=u: ((g.stamp('a_landed') if u == 3 else None), pv(u)))]
    names = [w[0] for w in W]

    def work(budget, need=None):
        while st['done'] < len(W):
            forced = need is not None and st['done'] <= names.index(need)
            name, ld, act = W[st['done']]
            if not forced and (budget <= 0 or st['landed'] < ld or st['issued'] < P['QG'] - 1):
                return
            assert ld <= st['issued']
            land(ld)
            act()
            st['done'] += 1
            budget -= 1

    for n in range(0, 96, GS):
        d = depth(n)
        if n + GS - 1 >= d:
            land(n + GS - 1 - d)
        if n >= 64 and n % 8 == 0:
            work(0, ['qk1', 'qk2', 'qk3', 'pv0'][(n - 64) >> 3])
        if P['PRIO']:
            steps = [int(x) for x in P['PRIO'].split('.')]
            if n in steps:
                g(f's_setprio {3 - steps.index(n) % 4}')
        for i in range(GS):
            load(order[n + i], n + i)
        m = n + GS - 1
        if m == P['FAST'] - 1:
            g.stamp('a_fast', (5,))
            if PADAT and PADAT[0] == 'a_data':
                g('s_waitcnt vmcnt(3)')
                g.stamp('a_data', (5,))
            entry2()
            setup()
            g.stamp('a_setup', (5,))
        st['issued'] = m
        if m == P['WPOS'] and 's' in P['WREG']:
            skip = only_wave(g, 7)
            g.warm_run('L_ws')
            g(skip + ':')
            g.warm_begin('L_ws')
        if m == P['STPOS']:
            g.stamp('a_pos')
        if m >= 20 and not st.get('ep'):
            st['ep'] = True
            g.vmwait('ep')
            epoch_tag(g, T2 + 2)
        if m in qsteps:
            if m != qsteps[0]:
                land(m - P['QPS'] + 1)
            qstep()
        if m == P['MLD']:
            work(0, 'rb')
            skip = g.label('L_nomld')
            g(f's_cmp_lt_u32 {S_CU}, {SPL - NMR}\ns_cbranch_scc1 {skip}')
            g(f's_lshl_b32 {S_T}, s3, 6\nv_add_u32 v{T2}, {S_T}, v0')
            g.bits(T2 + 1, T2, [(8, 1, 16384), (0, 8, 16)], T2 + 2, MODL + 4096)
            g(f's_lshl_b32 s98, s3, 14\ns_add_u32 m0, s98, {W1L + 8192}')
            for i in range(4):
                g(f's_mov_b32 {S_T}, {(i & 1) * 32768 + (i >> 1) * 4096}')
                g(f'buffer_load_dwordx4 v{T2 + 1}, {S_WS}, {S_T} offen sc1 lds\ns_add_u32 m0, m0, 1024')
            g(skip + ':')
        work(GS)
    work(0, 'fs')
    slice_index('s14', 's15')
    g(f's_lshl_b32 {S_T}, s3, 8')
    g.bits(OO + 1, 0, [(4, 2, 2048), (0, 4, 16)], T2, S_T)
    g.warm_end()
    g.warm_run('L_wa')
    if 'p' in P['WREG']:
        skip = g.label('L_nowp')
        g(f's_cmp_lt_u32 {S_CU}, {SPL - NMR}\ns_cbranch_scc1 {skip}\ns_cmp_lg_u32 s3, 0\ns_cbranch_scc1 {skip}')
        g.warm_run('L_wp')
        g(skip + ':')
    if not P['EPI']:
        land(95)
    if P['HLP']:
        skip = only_wave(g, P['HFW'])
        g(f's_cmp_lt_u32 {S_CU}, {SPL - NMR}\ns_cbranch_scc1 {skip}')
        g(f's_lshl_b32 {S_T}, {S_R}, 3\ns_add_u32 {S_T}, {S_T}, {S_CU}\ns_lshl_b32 {S_T}, {S_T}, 8\ns_add_u32 {S_T}, {S_T}, {HFLAG - 256 * 16}')
        g(f'v_mov_b32 v{T2}, {S_EPO}\ns_mov_b64 exec, 1\nbuffer_store_dword v{T2}, off, {S_WS}, {S_T} sc1\ns_mov_b64 exec, -1')
        g(skip + ':')
    g.warm_begin('L_wa')
    if P['EPI']:
        pv_last()
    else:
        work(0, 'pv3')
    epilogue()
    g.warm_end()
    g.stamp('a_pub', (0, 1, 2, 3, 4))
    g(f's_cmp_ge_u32 {S_CU}, {SPL - NMR}\ns_cbranch_scc1 L_mlp')
    if P['RANK']:
        skip = only_wave(g, 0)
        arrive(g, 8, 0, C_R)
        g(f'v_mov_b32 v9, 0\ns_waitcnt vmcnt(0)\ns_mov_b64 exec, 1\nds_write_b32 v9, v8 offset:{RK}\ns_mov_b64 exec, -1\ns_waitcnt lgkmcnt(0)')
        g(skip + ':')
        g(f's_barrier\nv_mov_b32 v8, 0\nds_read_b32 v8, v8 offset:{RK}\ns_waitcnt lgkmcnt(0)\nv_readfirstlane_b32 s14, v8')
    else:
        g(f's_sub_u32 s14, {S_CU}, 1\ns_lshl_b32 s14, s14, 3\ns_add_u32 s14, s14, {S_R}')
    if P['LSKIP']:
        g(f's_sub_u32 s14, s14, {P["LSKIP"]}')
    g(f's_cmp_lt_u32 s14, {min(128, 64 * (4 - P["GJ"])) if P["LQ"] == 2 else (32 if P["GH"] else 64 if P["GBG"] else 96)}\ns_cbranch_scc1 L_late')
    if P['HLP']:
        done = g.label('L_nohelp')
        g(f's_sub_u32 s4, {S_CU}, 9\ns_cmp_ge_u32 s4, 7\ns_cbranch_scc1 {done}\ns_add_u32 {S_CU}, {S_CU}, 8')
        g(f's_lshl_b32 s5, {S_R}, 3\ns_add_u32 s5, s5, {S_CU}\ns_lshl_b32 s5, s5, 8\ns_add_u32 s5, s5, {HFLAG - 256 * 16}')
        slice_index('s14', 's15')
        srd(g, S_A, 32, 3584 * 2048)
        g(f's_lshl_b32 s6, s14, 17\ns_lshl_b32 s7, s3, 10\ns_add_u32 s6, s6, s7\ns_add_u32 s6, s6, {131072 - 8192}')
        lp, ok = g.label('L_hp'), g.label('L_hpok')
        g(f'buffer_load_dword v8, off, {S_WS}, s5 sc1\ns_waitcnt vmcnt(0)\nv_cmp_ne_u32 vcc, {S_EPO}, v8\ns_cbranch_vccz {done if P["HLP"] == 1 else ok}')
        g(f's_mov_b32 {S_SPIN}, {SPIN}\n{lp}:\ns_sleep 2\nbuffer_load_dword v8, off, {S_WS}, s5 sc1\ns_waitcnt vmcnt(0)')
        g(f'v_cmp_ne_u32 vcc, {S_EPO}, v8\ns_cbranch_vccz {ok}\ns_sub_u32 {S_SPIN}, {S_SPIN}, 1\ns_cbranch_scc0 {lp}\n{ok}:')
        for i in range(P['HN']):
            g(f'buffer_load_dwordx4 {vr(64 + 4 * i, 4)}, v{VO}, {S_A}, s6 offen nt\ns_sub_u32 s6, s6, 8192')
        g(f's_waitcnt vmcnt(0)\n{done}:')
    for bud in range(1, P['BUD'] + 1):
        g(f's_add_u32 s4, {S_CU}, {8 * bud}\ns_sub_u32 s5, s4, {SPL}\ns_cselect_b32 s4, s4, s5')
        g(f's_lshl_b32 s4, s4, 3\ns_sub_u32 s5, 7, s3\ns_add_u32 s4, s4, s5\ns_mul_i32 s5, {S_R}, {P["PH"]}\ns_add_u32 s4, s4, s5')
        g(f's_add_u32 s4, s4, {base[3]}\ns_and_b32 s4, s4, 1023\ns_lshl_b32 s4, s4, 13\ns_add_u32 s5, s4, 4096')
        if bud == 1:
            g('s_barrier')
        for i in range(7, 7 - P['BUDN'], -1):
            g(f'buffer_load_dwordx4 {vr(64 + 4 * i, 4)}, v{VO}, {S_B}, {"s5" if i >= 4 else "s4"} offen offset:{(i & 3) * 1024} {P["BUDF"]}')
    write_stamps(g)
    g('s_endpgm')


DOC = """; One persistent launch, one 8-wave workgroup per CU (generated by the author's script).
;   ids 64..255  attention role: 24 workgroups per (batch, kv head); K is parked in registers until q arrives, scores
; the launch replaces once every wave has read it, so that words left by earlier launches are never taken for this launch's."""


def build(stamps=False):
    g = G(stamps)
    ref = open(REF).read()
    g.L.append(ref[:ref.index('; Override launch')].rstrip())
    g.L.append('; @launch grid=(%d,1,1) block=(512,1,1) lds=%d' % (NWG, LDS_TOTAL))
    g.L.append('.amdgcn_target "amdgcn-amd-amdhsa--gfx950"\n.text\n.globl %s_kernel\n.p2align 8\n.type %s_kernel,@function' % (NAME, NAME))
    g.L.append(DOC)
    g.L.append('%s_kernel:' % NAME)
    g.stamp('start', (0, 1, 2, 3, 4))
    g(f'''s_load_dwordx16 s[16:31], s[0:1], 0
          s_load_dwordx8 s[32:39], s[0:1], 64
          s_load_dwordx4 s[40:43], s[0:1], 96
          s_load_dwordx2 s[44:45], s[0:1], 112
          v_lshrrev_b32 v1, 6, v0
          v_and_b32 v0, 63, v0
          v_readfirstlane_b32 s3, v1''')
    g(f's_cmp_lt_u32 s2, {NG}\ns_cbranch_scc1 L_proj')
    g(f's_cmp_ge_u32 s2, {NWG}\ns_cbranch_scc1 L_exit')
    n0 = g.nst
    attention(g)
    n1 = g.nst
    armed = getattr(g, 'padarmed', False)
    latem(g)
    g.padarmed = armed
    g.nst = n1 + (1 if g.stamps and P['ST'] < 3 else 0)
    mlp(g)
    g.nst = n0
    g.padarmed = bool(PADAT) and PADAT[0] == 'start'
    proj(g)
    g('L_exit:\ns_endpgm')
    g('.fill 2048, 4, 0xbf800000')
    g.L.append('''.section .rodata,"a"
.p2align 6
.amdhsa_kernel %s_kernel
  .amdhsa_next_free_vgpr 256
  .amdhsa_next_free_sgpr 102
  .amdhsa_accum_offset 256
  .amdhsa_group_segment_fixed_size 0
  .amdhsa_kernarg_size 120
  .amdhsa_user_sgpr_count 2
  .amdhsa_user_sgpr_kernarg_segment_ptr 1
  .amdhsa_system_sgpr_workgroup_id_x 1
.end_amdhsa_kernel''' % NAME)
    return '\n'.join(g.L) + '\n'


if __name__ == '__main__':
    out = sys.argv[1]
    for a in sys.argv[2:]:
        if a.startswith('PADAT='):
            PADAT.append(a[6:])
        elif '=' in a:
            k, v = a.split('=')
            assert k in P, k
            P[k] = v.replace('none', '') if isinstance(P[k], str) else int(v)
    open(out, 'w').write(build(stamps='--stamps' in sys.argv))
```

```python
import sys
NAME = 'adaLN_cond__gqa_block_cached__mixer_channel_mlp__decode'
REF = 'cdna_kernels/%s.s.ref' % NAME

NG = 64
SPL = 24
NMR = 7
NA = 8 * SPL
NWG = NG + NA
WPR = SPL * 8
NU = 6

FLAGS = 0x2000
HFLAG = 0x70000
QB, STATS, X1, MODP, MODL = 0x8000, 0x10000, 0x60000, 0x20000, 0x40000
MBA, MBB, MBC = 0x100000, 0x200000, 0x300000
SLOTS = 32
MBA_ST = 2 * SLOTS * 256
WS_SIZE = 0x400000
SPIN = 1 << 18
C_A, C_B, C_R = 0, 16, 128
TMASK = 0xff

P = dict(MSL=4, LSL=8, QSL=8, ASL=2, GS=1, DK1=8, NK1=28, DK2=8, DV=12, QP0=40, QPS=8, SLEEP=0, PH=64, QG=64, DX=8, TLB=0, PRE=0, WSOFF=0, LGATE=-1, LIGHT=4, RANK=0, P1SL=8, P1TH=56, GBG=0, LQ=1, MLS=2, GJ=1, GH=1, A5W=2, WPOS=11, EV=0, W2E=3, W2P=1, PRIO='', EPI=0, GBS=0, OUTF='', FAST=4, SEL=1, MLD=80, HLP=0, HFW=4, HN=8, WARM=24, WREG='', BUD=0, BUDN=8, BUDF='nt', LSKIP=0, XL=0, XW=0, XG=0, XP=0, XS=0, P1K=0, P2TH=16, P2SL=2, W2MISS=16, W2X=0, W2TH=0, NAT=1, BW=1, REP=1, LNM=1, PFA=0, PFG=3, GAE=1, NOQ=0, QW=7, SW=4, GE=0, NUG=0, RPOS=94, ILV=0, ROT=1, MW=4, HPOS=90, ST=0, DBGST=-1, PADTO=0, PADWG=-1, STPOS=-1)

S_WS, S_DBG, S_A, S_B = 's[48:51]', 's[52:55]', 's[56:59]', 's[60:63]'
S_LO, S_HI, S_MASK, S_SPIN = 's64', 's65', 's66', 's67'
S_TAG, S_EPO, S_T16 = 's26', 's27', 's1'
DPP = 'row_mask:0xf bank_mask:0xf'


def vr(a, n):
    return 'v[%d:%d]' % (a, a + n - 1)


PADAT = []


class G:
    def __init__(self, stamps=False):
        self.vm = []
        self.L = []
        self.stamps = stamps
        self.nlabel = 0
        self.nst = 0
        self.warm = None

    def __call__(self, s):
        for line in s.strip('\n').split('\n'):
            line = line.strip()
            if line:
                self.L.append(line if line.endswith(':') else '    ' + line)
                if self.warm is not None and not line.endswith(':'):
                    self.wcount += 1
                    if self.wcount >= P['WARM'] and not line.startswith('s_getpc'):
                        self.pad()

    def pad(self, last=False):
        n = self.wpad
        self.L.append(f'{self.warm}_{n}:')
        self.L.append(f'    s_cbranch_execz {self.warm}_ret' if last else f'    s_cbranch_execz {self.warm}_{n + 1}')
        self.wpad += 1
        self.wcount = 0

    def warm_run(self, name):
        if name[-1] in P['WREG']:
            self(f's_mov_b64 exec, 0\ns_branch {name}_0\n{name}_ret:\ns_mov_b64 exec, -1')

    def warm_begin(self, name):
        if name[-1] in P['WREG']:
            self.warm, self.wpad = name, 0
            self.pad()

    def warm_end(self):
        if self.warm is not None:
            self.pad(last=True)
            self.warm = None

    def label(self, p='L'):
        self.nlabel += 1
        return '%s_%d' % (p, self.nlabel)

    def stamp(self, name, sets=(0,)):
        if PADAT and name == PADAT[0]:
            self('s_memrealtime s[90:91]')
            self.padarmed = True
        if self.stamps and P['ST'] in sets:
            k = self.nst
            self.nst += 1
            assert k < 13 and (k < 11 or name[0] in 'gr'), name
            self('s_memrealtime s[%d:%d] ; stamp %d %s' % (70 + 2 * k, 71 + 2 * k, k, name))

    def vmop(self, text, tag):
        for line in text.strip().split('\n'):
            self(line)
            self.vm.append(tag)

    def vmwait(self, *tags):
        idx = [i for i, t in enumerate(self.vm) if t in tags]
        if not idx:
            return
        n = len(self.vm) - 1 - idx[-1]
        assert n <= 63
        self('s_waitcnt vmcnt(%d)' % n)
        self.vm = self.vm[idx[-1] + 1:]

    def nop(self, n):
        while n > 0:
            k = min(n, 16)
            self('s_nop %d' % (k - 1))
            n -= k

    def bits(self, dst, src, fields, tmp, add=None):
        first = True
        for (lo, n, mul) in fields:
            t = dst if first else tmp
            if lo == 0:
                self(f'v_and_b32 v{t}, {(1 << n) - 1}, v{src}')
            else:
                self(f'v_bfe_u32 v{t}, v{src}, {lo}, {n}')
            pw = mul & (mul - 1) == 0
            sh = mul.bit_length() - 1
            if first:
                if mul != 1:
                    self(f'v_lshlrev_b32 v{dst}, {sh}, v{dst}' if pw else f'v_mul_u32_u24 v{dst}, {mul}, v{dst}')
            elif mul == 1:
                self(f'v_add_u32 v{dst}, v{dst}, v{tmp}')
            elif pw:
                self(f'v_lshl_add_u32 v{dst}, v{tmp}, {sh}, v{dst}')
            else:
                self(f'v_mul_u32_u24 v{tmp}, {mul}, v{tmp}\nv_add_u32 v{dst}, v{dst}, v{tmp}')
            first = False
        if add not in (None, 0):
            self(f'v_add_u32 v{dst}, {add}, v{dst}')

    def setexec(self, m):
        if m == -1:
            self('s_mov_b64 exec, -1')
        elif m < (1 << 31):
            self('s_mov_b64 exec, 0x%x' % m)
        else:
            self('s_mov_b32 exec_lo, 0x%x\ns_mov_b32 exec_hi, 0x%x' % (m & 0xffffffff, m >> 32))


def rep16(m):
    return m * 0x0001000100010001


def check(g, regs, tmp, mask=TMASK):
    regs = list(regs)
    if mask == 'ml':
        g(f'v_xor_b32 v{regs[0]}, {S_T16}, v{regs[0]}\nv_xor_b32 v{regs[1]}, {S_TAG}, v{regs[1]}\nv_and_b32 v{tmp}, {TMASK}, v{regs[1]}')
        g(f'v_or_b32 v{tmp}, v{tmp}, v{regs[0]}\nv_cmp_ne_u16 vcc, 0, v{tmp}')
        return
    if mask == TMASK:
        for r in regs:
            g(f'v_xor_b32 v{r}, {S_TAG}, v{r}')
        g(f'v_or_b32 v{tmp}, v{regs[0]}, v{regs[1]}')
        for i in range(2, len(regs), 2):
            g(f'v_or3_b32 v{tmp}, v{tmp}, v{regs[i]}, v{regs[i + 1]}')
        g(f'v_and_b32 v{tmp}, {mask}, v{tmp}\nv_cmp_ne_u32 vcc, 0, v{tmp}')
        return
    g(f'v_bitop3_b32 v{tmp}, v{regs[0]}, v{regs[1]}, {S_EPO} bitop3:0x7e')
    for r in regs[2:]:
        g(f'v_bitop3_b32 v{tmp}, v{tmp}, v{r}, {S_EPO} bitop3:0xf6')
    if mask == 0xffff:
        g(f'v_cmp_ne_u16 vcc, 0, v{tmp}')
        return
    if mask != -1:
        g(f'v_and_b32 v{tmp}, {mask}, v{tmp}')
    g(f'v_cmp_ne_u32 vcc, 0, v{tmp}')


def tagmask(g, vm):
    g(f'v_mov_b32 v{vm}, 0x{0xffffffff ^ TMASK:x}')


def tag(g, regs, vm):
    for r in regs:
        g(f'v_and_or_b32 v{r}, v{r}, v{vm}, {S_TAG}')


def epoch_load(reg):
    return f'buffer_load_dword v{reg}, off, {S_WS}, 0 sc1'


def epoch_tag(g, reg):
    g(f'''v_readfirstlane_b32 {S_EPO}, v{reg}
          s_mul_i32 {S_TAG}, {S_EPO}, 0x9e3779b1
          s_lshr_b32 {S_TAG}, {S_TAG}, 12
          s_or_b32 {S_TAG}, {S_TAG}, 1
          s_add_u32 {S_EPO}, {S_EPO}, {S_TAG}
          s_and_b32 {S_TAG}, {S_EPO}, {TMASK}
          s_and_b32 {S_T16}, {S_EPO}, 0xffff''')


def poll(g, loads, regs, tmp, sleep=0, preloaded=False, mask=TMASK):
    lp, done, chk = g.label('L_poll'), g.label('L_ok'), g.label('L_chk')
    g(f's_mov_b32 {S_SPIN}, {SPIN}')
    if preloaded:
        g(f's_branch {chk}')
    g(lp + ':')
    g(loads)
    g('s_waitcnt vmcnt(0)')
    if preloaded:
        g(chk + ':')
    check(g, regs, tmp, mask)
    g(f's_cbranch_vccz {done}')
    if sleep:
        g(f's_sleep {sleep}')
    g(f's_sub_u32 {S_SPIN}, {S_SPIN}, 1\ns_cbranch_scc0 {lp}')
    g(done + ':')


def faddr(soff, off):
    return f's_lshl_b32 s98, {soff}, 8\ns_add_u32 s98, s98, {FLAGS + 256 * off}\n'


def fread(reg, soff, off):
    return faddr(soff, off) + f'buffer_load_dword v{reg}, off, {S_WS}, s98 sc1'


def fpoll(g, reg, soff, off, sleep, preloaded=False):
    lp, done, chk = g.label('L_fpoll'), g.label('L_fok'), g.label('L_fchk')
    g(f's_mov_b32 {S_SPIN}, {SPIN}')
    if preloaded:
        g(f's_branch {chk}')
    g(lp + ':')
    g(fread(reg, soff, off) + '\ns_waitcnt vmcnt(0)')
    if preloaded:
        g(chk + ':')
    g(f'v_cmp_ne_u32 vcc, {S_EPO}, v{reg}\ns_cbranch_vccz {done}')
    if sleep:
        g(f's_sleep {sleep}')
    g(f's_sub_u32 {S_SPIN}, {S_SPIN}, 1\ns_cbranch_scc0 {lp}')
    g(done + ':')


def fwait(g, reg, soff, off, sleep):
    skip = only_wave(g, 0)
    fpoll(g, reg, soff, off, sleep)
    g(skip + ':')
    g('s_barrier')


def arrive(g, reg, soff, off):
    g(f'v_mov_b32 v{reg}, 1\ns_mov_b64 exec, 1\nbuffer_atomic_add v{reg}, off, {S_DBG}, {soff} offset:{off} sc0 sc1\ns_mov_b64 exec, -1')


def arrived(g, reg, soff, off, n):
    skip = g.label('L_notlast')
    g(f'v_readfirstlane_b32 s99, v{reg}\ns_cmp_lg_u32 s99, {n - 1}\ns_cbranch_scc1 {skip}')
    g(faddr(soff, off) + f'v_mov_b32 v{reg}, {S_EPO}\ns_mov_b64 exec, 1\nbuffer_store_dword v{reg}, off, {S_WS}, s98 sc1\ns_mov_b64 exec, -1')
    g(skip + ':')


def srd(g, s, lo, size):
    base = int(s[2:s.index(':')])
    if lo == 44 and P['WSOFF']:
        g(f's_add_u32 s{base}, s44, {P["WSOFF"] << 20}\ns_addc_u32 s{base + 1}, s45, 0\ns_mov_b32 s{base + 2}, 0x{size:x}\ns_mov_b32 s{base + 3}, 0x20000')
        return
    g(f's_mov_b32 s{base}, s{lo}\ns_mov_b32 s{base + 1}, s{lo + 1}\ns_mov_b32 s{base + 2}, 0x{size:x}\ns_mov_b32 s{base + 3}, 0x20000')


def consts(g):
    g(f's_mov_b32 {S_LO}, 0x05040100\ns_mov_b32 {S_HI}, 0x07060302\ns_mov_b32 {S_MASK}, 0xffff0000')


def only_wave(g, w):
    skip = g.label('L_skip')
    g(f's_cmp_lg_u32 s3, {w}\ns_cbranch_scc1 {skip}')
    return skip


def write_stamps(g):
    if PADAT and getattr(g, 'padarmed', False):
        l = g.label('L_padat')
        g(f'{l}:\ns_memrealtime s[4:5]\ns_waitcnt lgkmcnt(0)\ns_sub_u32 s4, s4, s90\ns_sleep 4\ns_cmp_lt_u32 s4, 6000\ns_cbranch_scc1 {l}')
    if not g.stamps or (P['ST'] == 6 and getattr(g, 'nostw', False)):
        return
    g('s_waitcnt lgkmcnt(0)')
    skip = only_wave(g, 0)
    g('s_mov_b64 exec, 1')
    if P['DBGST'] >= 0:
        g(f's_cmp_lg_u32 s2, {P["DBGST"]}\ns_cbranch_scc1 {skip}')
        for k in range(1, min(g.nst, 12)):
            g(f's_sub_u32 s4, s{70 + 2 * k}, s70\nv_mov_b32 v2, s4')
            g(f'buffer_store_dword v2, off, {S_DBG}, 0 offset:{16 + 4 * k}')
        g(skip + ':')
        return
    g('s_lshl_b32 s4, s2, 8\ns_add_u32 s4, s44, s4\ns_addc_u32 s5, s45, 0')
    g('s_add_u32 s4, s4, %d\ns_addc_u32 s5, s5, 0' % (255 << 20))
    g('v_mov_b32 v1, 0')
    for k in range(g.nst):
        g(f'v_mov_b32 v2, s{70 + 2 * k}\nv_mov_b32 v3, s{71 + 2 * k}')
        g(f'global_store_dwordx2 v1, v[2:3], s[4:5] offset:{8 * k}')
        g('s_nop 1')
    g(skip + ':')


def prefetch_code(g, label, nkb8, vtmp, vdst, tag=None):
    pc = g.label('L_pc')
    g('s_getpc_b64 s[98:99]')
    if label:
        g(f'{pc}:\ns_add_u32 s98, s98, {label}-{pc}\ns_addc_u32 s99, s99, 0')
    g('s_and_b32 s98, s98, 0xffffff80')
    g(f's_lshl_b32 s97, s3, 10\nv_lshl_add_u32 v{vtmp}, v0, 4, s97')
    for i in range(nkb8):
        if i:
            g(f'v_add_u32 v{vtmp}, 8192, v{vtmp}')
        t = f'global_load_dwordx4 {vr(vdst, 4)}, v{vtmp}, s[98:99]'
        g.vmop(t, tag) if tag else g(t)


BLK = lambda i: 64 + 32 * i
UA, UB, UC = 0, 2, 4
IL = lambda unit, kb, i: BLK(unit) + (i >> 2) * 8 + kb * 4 + (i & 3)
MBP = 16384 + 256
ACC = 32
KW, NB, NW, NR, NO, KB, TID = 1, 2, 3, 4, 5, 6, 7
T = 24


class Lds:
    def __init__(self, base):
        self.ACTS, self.ACTH, self.RED = base, base + 4352, base + 8704
        self.OUTV = base + 17408
        self.PART = base + 17664
        self.STAT = base + 18688
        self.END = base + 19200


ABS = 2048 + 128


def nstep():
    return 1 if P['NAT'] else 64


def nvoff(g, dst, rs, tid=TID, tmp=T + 7):
    g.bits(dst, tid, [(3, 6, rs * 8 if P['NAT'] else rs), (0, 3, 16)], tmp)


def nload(g, unit, ptr, size, rs, s_col, voff, kbs=(0, 1), tag=None):
    srd(g, S_A, ptr, size)
    for kb in kbs:
        g(f's_add_u32 s4, {s_col}, {kb * 512 * rs}')
        for t in range(8):
            g.vmop(f'buffer_load_dwordx4 {vr(BLK(unit + kb) + 4 * t, 4)}, v{voff}, {S_A}, s4 offen nt', (tag, kb))
            if t < 7:
                g(f's_add_u32 s4, s4, {nstep() * rs}')


def kload(g, unit, ptr, size, s_idx, voff, rowf, tag, s_xor=None, which=range(16)):
    srd(g, S_A, ptr, size)
    g(f's_lshl_b32 s5, {s_idx}, 17')
    for kb in range(2):
        for t in range(8):
            if 8 * kb + t not in which:
                continue
            g(f's_add_u32 s4, s5, {rowf(kb, t) * 2048}')
            if s_xor:
                g(f's_xor_b32 s4, s4, {s_xor}')
            g.vmop(f'buffer_load_dwordx4 {vr(IL(unit, kb, 4 * t), 4)}, v{voff}, {S_A}, s4 offen nt', (tag, kb))


def transpose(g, blk, T=T, il=False):
    R = (lambda i: IL(blk & ~1, blk & 1, i)) if il else (lambda i: BLK(blk) + i)
    for p in range(4):
        a, c = R(8 * p + p), R(8 * p + 4 + p)
        g(f'v_perm_b32 v{T}, v{c}, v{a}, {S_LO}\nv_perm_b32 v{c}, v{c}, v{a}, {S_HI}\nv_mov_b32 v{a}, v{T}')
    for p in range(4):
        for w in range(p + 1, 4):
            xa, xb = R(8 * p + w), R(8 * p + 4 + w)
            ya, yb = R(8 * w + p), R(8 * w + 4 + p)
            g(f'v_perm_b32 v{T}, v{xb}, v{xa}, {S_LO}\nv_perm_b32 v{T + 1}, v{xb}, v{xa}, {S_HI}')
            g(f'v_perm_b32 v{xa}, v{yb}, v{ya}, {S_LO}\nv_perm_b32 v{xb}, v{yb}, v{ya}, {S_HI}')
            g(f'v_mov_b32 v{ya}, v{T}\nv_mov_b32 v{yb}, v{T + 1}')


def mfmas(g, unit, b0, b1):
    for kb, bop in ((0, b0), (1, b1)):
        if kb == 1:
            g('s_waitcnt lgkmcnt(0)')
        for j in range(8):
            d = vr(ACC + 4 * j, 4)
            g(f'v_mfma_f32_16x16x32_bf16 {d}, {vr(BLK(unit + kb) + 4 * j, 4)}, {vr(bop, 4)}, {d if kb else 0}')


def sparse_index(g, v):
    g(f'v_and_b32 v{v}, 1, v0\nv_mul_u32_u24 v{v}, 0xaaaa, v{v}\nv_add_u32 v{v}, 0x4444, v{v}')


def zero32(d):
    return [f'v_mov_b64 {vr(d + i, 2)}, 0' for i in range(0, 32, 2)]


def products(g, unit, D, idx, sel, extra=()):
    slot, ready, todo, extra = 0, {}, [], list(extra)

    def fill(n):
        nonlocal slot
        while n > 0:
            if todo and slot - ready[todo[0][0]] >= 8:
                g(todo.pop(0)[1])
            elif extra:
                g(extra.pop(0))
            else:
                return
            slot += 1
            n -= 1
    for j in range(8):
        g(f'v_smfmac_f32_16x16x64_bf16 {vr(D + 4 * j, 4)}, {vr(T, 4)}, {vr(BLK(unit) + 8 * j, 8)}, v{idx}')
        slot += 1
        ready[j] = slot
        todo += [(j, x) for x in sel(j)]
        s0 = slot
        fill(2)
        if slot - s0 < 2 and j < 7:
            g.nop(2 - (slot - s0))
            slot = s0 + 2
    while todo or extra:
        n = len(todo) + len(extra)
        fill(99)
        if len(todo) + len(extra) == n:
            w = 8 - (slot - ready[todo[0][0]])
            g.nop(w)
            slot += w


def common_addr(g, L, kperm=False):
    K0B = T + 6
    g(f's_lshl_b32 s4, s3, 6\nv_add_u32 v{TID}, s4, v0')
    g.bits(K0B, TID, [(3, 6, 64), (0, 2, 16), (2, 1, 8)], T)
    if P['NAT']:
        g.bits(KW, K0B, [(11, 1, ABS), (0, 11, 1)], T)
        g.bits(NB, TID, [(0, 1, ABS), (6, 3, 128), (4, 2, 32), (1, 1, 16)], T)
    else:
        g.bits(KW, K0B, [(11, 1, ABS), (4, 3, 256), (10, 1, 128), (1, 3, 16), (7, 3, 2)], T)
        g.bits(NB, TID, [(0, 1, ABS), (6, 3, 256), (4, 2, 32), (1, 1, 16)], T)
    g.bits(NW, TID, [(6, 3, 1088), (1, 1, 544), (0, 1, 256), (2, 2, 32), (4, 1, 16)], T, L.RED)
    g.bits(NR, TID, [(0, 2, 544), (2, 7, 4)], T, L.RED)
    g.bits(NO, TID, [(8, 1, 128), (2, 3, 16), (5, 2, 4), (7, 1, 2)], T, L.OUTV)


def kb_addr(g, L):
    g.bits(KB, TID, [(1, 1, 128), (4, 2, 32), (0, 1, 16)], T, L.OUTV)


def po_addr(g, po):
    g.bits(po, TID, [(6, 3, 4 * MBP), (2, 2, MBP), (1, 1, 128), (0, 1, 64), (4, 2, 16)], T)


def mlp_addr(g, L):
    g.bits(KW, TID, [(8, 1, ABS), (3, 5, 64), (1, 1, 32), (2, 1, 8), (0, 1, 4)], T, L.ACTH)
    g.bits(NB, TID, [(1, 1, ABS), (5, 1, 1024), (6, 3, 128), (4, 1, 64), (2, 1, 32), (0, 1, 16)], T, L.ACTH)
    g.bits(NW, TID, [(6, 3, 1088), (4, 1, 544), (0, 3, 32), (5, 1, 16)], T, L.RED)
    g.bits(NR, TID, [(0, 2, 544), (2, 7, 4)], T, L.RED)
    g.bits(NO, TID, [(8, 1, 128), (7, 1, 64), (3, 1, 32), (5, 1, 16), (2, 1, 8), (6, 1, 4), (4, 1, 2)], T, L.OUTV)
    kb_addr(g, L)


def nsplit(g, unit, act, half=None, fast=False):
    if fast:
        D, O, idx, extra = fast
        g(f'ds_read_b128 {vr(T, 4)}, v{NB}\n' + '\n'.join(extra[:9]) + '\ns_waitcnt lgkmcnt(0)')
        extra = extra[9:]
        products(g, unit, D, idx, lambda j: [f'v_add_f32_dpp v{O + 4 * b + (j & 3)}, v{D + 4 * j + 2 * b}, v{D + 4 * j + 2 * b + 1} '
                                             f'quad_perm:[0,1,2,3] row_mask:0x{3 << (2 * (j >> 2)):x} bank_mask:0xf' for b in range(2)], extra)
        g.setexec(0xff0000ffff0000ff)
        g(f'ds_write_b128 v{NW}, {vr(O, 4)}\nds_write_b128 v{NW}, {vr(O + 4, 4)} offset:256')
    else:
        if half is None:
            g(f'ds_read_b128 {vr(T, 4)}, v{NB} offset:{act}\nds_read_b128 {vr(T + 4, 4)}, v{NB} offset:{act + 1024}')
            g('s_waitcnt lgkmcnt(1)')
            mfmas(g, unit, T, T + 4)
        else:
            g(f'ds_read_b128 {vr(T, 4)}, v{half} offset:{act}\ns_waitcnt lgkmcnt(0)')
            for j in range(8):
                g(f'v_mfma_f32_16x16x32_bf16 {vr(ACC + 4 * j, 4)}, {vr(BLK(unit) + 4 * j, 4)}, {vr(T, 4)}, 0')
        for dd in range(1, 4):
            g.setexec(rep16(0xf << (4 * dd)))
            if dd != 2:
                g.nop(2)
            for i in range(4):
                g(f'v_mov_b64 {vr(ACC + 2 * i, 2)}, {vr(ACC + 8 * dd + 2 * i, 2)}')
        g.setexec(0xcccccccc33333333)
        g(f'ds_write_b128 v{NW}, {vr(ACC, 4)}\nds_write_b128 v{NW}, {vr(ACC + 4, 4)} offset:128')
    g.setexec(-1)
    g('s_waitcnt lgkmcnt(0)\ns_barrier')
    for k in range(4):
        g(f'ds_read_b32 v{T + k}, v{NR} offset:{k * 4 * 544}')
    g('s_waitcnt lgkmcnt(2)')
    g(f'v_add_f32 v{T}, v{T}, v{T + 1}')
    g('s_waitcnt lgkmcnt(0)')
    g(f'v_add_f32 v{T + 2}, v{T + 2}, v{T + 3}\nv_add_f32 v{T}, v{T}, v{T + 2}')
    g.nop(2)
    g(f'v_add_f32_dpp v{T}, v{T}, v{T} quad_perm:[1,0,3,2] {DPP}')
    g.nop(2)
    g(f'v_add_f32_dpp v{T}, v{T}, v{T} quad_perm:[2,3,0,1] {DPP}')


def actwrite(g, p, act):
    if P['NAT']:
        g(f'ds_write_b64 v{KW}, {vr(p, 2)} offset:{act}')
        return
    g(f'ds_write_b16 v{KW}, v{p} offset:{act}\nds_write_b16_d16_hi v{KW}, v{p} offset:{act + 16}')
    g(f'ds_write_b16 v{KW}, v{p + 1} offset:{act + 32}\nds_write_b16_d16_hi v{KW}, v{p + 1} offset:{act + 48}')


def unpack2(g, d, s):
    g(f'v_lshlrev_b32 v{d}, 16, v{s}\nv_and_b32 v{d + 1}, {S_MASK}, v{s}')


def unpack(g, d, s):
    unpack2(g, d, s)
    unpack2(g, d + 2, s + 1)


def pack(g, t, d):
    g(f'v_cvt_pk_bf16_f32 v{t}, v{d}, v{d + 1}\nv_cvt_pk_bf16_f32 v{t + 1}, v{d + 2}, v{d + 3}')


def round1(g, a):
    g(f'v_cvt_pk_bf16_f32 v{a}, 0, v{a}')


def round4(g, d, t=None):
    for i in range(4):
        round1(g, d + i)


def round2(g, a):
    round1(g, a)
    round1(g, a + 1)


def pk4(g, op, d, a, b):
    g(f'{op} {vr(d, 2)}, {vr(a, 2)}, {vr(b, 2)}\n{op} {vr(d + 2, 2)}, {vr(a + 2, 2)}, {vr(b + 2, 2)}')


def layernorm(g, x, sw, sr, off, last_packed=False):
    a, b = T + 4, T + 5
    g(f'v_add_f32 v{a}, v{x}, v{x + 1}\nv_mul_f32 v{b}, v{x}, v{x}')
    g(f'v_add_f32 v{T}, v{x + 2}, v{x + 3}\nv_fmac_f32 v{b}, v{x + 1}, v{x + 1}')
    g(f'v_add_f32 v{a}, v{a}, v{T}\nv_fmac_f32 v{b}, v{x + 2}, v{x + 2}\nv_fmac_f32 v{b}, v{x + 3}, v{x + 3}')
    for i, ctl in enumerate(['row_ror:8 ' + DPP, 'row_ror:4 ' + DPP, 'row_ror:2 ' + DPP, 'row_ror:1 ' + DPP,
                             'row_bcast:15 row_mask:0xa bank_mask:0xf', 'row_bcast:31 row_mask:0xc bank_mask:0xf']):
        if i:
            g('s_nop 0')
        g(f'v_add_f32_dpp v{a}, v{a}, v{a} {ctl}')
        if i == 0:
            g('s_nop 0')
        g(f'v_add_f32_dpp v{b}, v{b}, v{b} {ctl}')
    g.setexec(1 << 63)
    g(f'ds_write_b64 v{sw}, {vr(a, 2)} offset:{off}')
    g.setexec(-1)
    g('s_waitcnt lgkmcnt(0)\ns_barrier')
    g(f'ds_read_b128 {vr(T, 4)}, v{sr} offset:{off}\nds_read_b128 {vr(T + 4, 4)}, v{sr} offset:{off + 16}')
    g('s_waitcnt lgkmcnt(0)')
    pk4(g, 'v_pk_add_f32', T, T, T + 4)
    g(f'v_pk_add_f32 {vr(a, 2)}, {vr(T, 2)}, {vr(T + 2, 2)}')
    g(f'v_mul_f32 v{a}, 0x3a800000, v{a}\nv_mul_f32 v{b}, 0x3a800000, v{b}')
    g(f'v_fma_f32 v{b}, -v{a}, v{a}, v{b}\nv_max_f32 v{b}, 0, v{b}')
    round2(g, a)
    g(f'v_add_f32 v{b}, 0x3727c5ac, v{b}')
    g(f'v_cvt_pk_bf16_f32 v{b}, 0, v{b}')
    g(f'v_sqrt_f32 v{b}, v{b}')
    for i in range(4):
        g(f'v_sub_f32 v{x + i}, v{x + i}, v{a}')
    g(f'v_cvt_pk_bf16_f32 v{b}, 0, v{b}')
    g(f'v_rcp_f32 v{b}, v{b}')
    round4(g, x, T + 6)
    for i in range(4):
        g(f'v_mul_f32 v{x + i}, v{x + i}, v{b}')
    if last_packed:
        pack(g, T + 6, x)
    else:
        round4(g, x, T + 6)


def weave(g, chain, fill, per=1):
    fill = list(fill)
    for c in chain:
        g(c)
        trans = c.split()[0] in ('v_sqrt_f32', 'v_rcp_f32', 'v_exp_f32')
        n = 0
        while fill and n < (per + (1 if trans else 0)):
            g(fill.pop(0))
            n += 1
        if trans and n == 0:
            g('s_nop 0')
    for f in fill:
        g(f)


def blocksum6(g, r, sw6, sr6, off, out, finish=True):
    g.nop(1)
    for i in (0, 2, 4):
        g(f'v_permlane32_swap_b32 v{r + i}, v{r + i + 1}')
    for i in (0, 2, 4):
        g(f'v_add_f32 v{r + i}, v{r + i}, v{r + i + 1}')
    g(f'v_mov_b32 v{r + 5}, v{r + 4}\nv_permlane16_swap_b32 v{r}, v{r + 2}\nv_add_f32 v{r}, v{r}, v{r + 2}')
    g(f'v_permlane16_swap_b32 v{r + 4}, v{r + 5}\nv_add_f32 v{r + 4}, v{r + 4}, v{r + 5}')
    for i, sh in enumerate((8, 4, 2, 1)):
        if i:
            g('s_nop 0')
        g(f'v_add_f32_dpp v{r}, v{r}, v{r} row_ror:{sh} {DPP}')
        if i == 0:
            g('s_nop 0')
        g(f'v_add_f32_dpp v{r + 4}, v{r + 4}, v{r + 4} row_ror:{sh} {DPP}')
    g(f'ds_write_b32 v{sw6}, v{r} offset:{off}\nds_write_b32 v{sw6}, v{r + 4} offset:{off + 64}')
    g('s_waitcnt lgkmcnt(0)\ns_barrier')
    for i, o in enumerate((0, 16, 32, 48, 64, 96)):
        g(f'ds_read_b128 {vr(out + 4 * i, 4)}, v{sr6} offset:{off + o}')
    if not finish:
        return
    for i in range(6):
        g(f's_waitcnt lgkmcnt({5 - i})')
        g(f'v_pk_add_f32 {vr(out + 4 * i, 2)}, {vr(out + 4 * i, 2)}, {vr(out + 4 * i + 2, 2)}')
    for i in range(6):
        g(f'v_add_f32 v{out + i}, v{out + 4 * i}, v{out + 4 * i + 1}')


def rstd(g, mean, var):
    g(f'v_max_f32 v{var}, 0, v{var}')
    round2(g, mean)
    g(f'v_add_f32 v{var}, 0x3727c5ac, v{var}')
    g(f'v_cvt_pk_bf16_f32 v{var}, 0, v{var}\nv_sqrt_f32 v{var}, v{var}\ns_nop 0')
    g(f'v_cvt_pk_bf16_f32 v{var}, 0, v{var}\nv_rcp_f32 v{var}, v{var}')


def ksplit_out(g, unit, po, mb, D, idx):
    O = T + 4
    g(f'ds_read_b128 {vr(T, 4)}, v{KB}\ns_waitcnt lgkmcnt(0)')
    products(g, unit, D, idx, lambda j: [f'v_add_f32_dpp v{O + 2 * b + (j & 1)}, v{D + 4 * j + 2 * b}, v{D + 4 * j + 2 * b + 1} '
                                         f'quad_perm:[0,1,2,3] row_mask:0x{1 << (j >> 1):x} bank_mask:0xf' for b in range(2)],
             [f'v_mov_b32 v{KB}, 0x{0xffffffff ^ TMASK:x}'])
    tag(g, range(O, O + 4), KB)
    g(f'buffer_store_dwordx4 {vr(O, 4)}, v{po}, {S_WS}, {mb} offen sc1\ns_nop 1')


def publish32(g, L, s_off, bstride, exact):
    g(f'v_subrev_u32 v{T + 1}, {L.OUTV}, v{NO}\nv_lshlrev_b32 v{T + 1}, 1, v{T + 1}\nds_write_b32 v{T + 1}, v{T} offset:{L.PART}')
    g('s_waitcnt lgkmcnt(0)\ns_barrier')
    skip = only_wave(g, 0)
    if exact:
        g(f'v_lshlrev_b32 v{T + 4}, 3, v0\nds_read_b64 {vr(T + 6, 2)}, v{T + 4} offset:{L.PART}')
        g.bits(T + 5, 0, [(5, 1, bstride), (0, 5, 16)], T + 4)
        g(f'v_mov_b32 v{T + 1}, {S_EPO}\nv_mov_b32 v{T + 3}, {S_EPO}\ns_waitcnt lgkmcnt(0)')
        g(f'v_mov_b32 v{T}, v{T + 6}\nv_mov_b32 v{T + 2}, v{T + 7}')
    else:
        g(f'v_lshlrev_b32 v{T + 4}, 4, v0\nds_read_b128 {vr(T, 4)}, v{T + 4} offset:{L.PART}')
        g.bits(T + 5, 0, [(4, 1, bstride), (0, 4, 16)], T + 6)
        g('s_waitcnt lgkmcnt(0)\ns_mov_b32 exec_hi, 0')
    g(f'buffer_store_dwordx4 {vr(T, 4)}, v{T + 5}, {S_WS}, {s_off} offen sc1')
    g.setexec(-1)
    g('s_nop 0')
    g(skip + ':')


def qjob_issue(g, blk, s_job, voff, lg=2):
    g(f'''s_and_b32 s15, {s_job}, {(1 << lg) - 1}
          s_lshr_b32 s6, {s_job}, {lg}
          s_lshl_b32 s6, s6, 7
          s_mul_i32 s13, s15, {(1024 >> lg) * 12288}
          s_add_u32 s13, s13, s6
          s_add_u32 s13, s13, 4096''')
    nload(g, blk, 38, 1024 * 12288, 12288, 's13', voff, (0,), tag='qj')


def qjob_voff(g, voff, lg=2):
    nvoff(g, voff, 12288)
    if lg == 1:
        return
    g(f's_lshr_b32 s4, s3, 2\ns_lshl_b32 s4, s4, 24\nv_add_u32 v{voff}, s4, v{voff}')


def qjob_finish(g, L, blk, va, vm, lg=2):
    g(f's_lshl_b32 s12, s15, 15\ns_lshl_b32 s5, s6, 1\ns_add_u32 s12, s12, s5\ns_add_u32 s12, s12, {MODL}')
    if lg == 2:
        g(f's_lshr_b32 s4, s3, 2\ns_sub_u32 s4, s15, s4\ns_lshl_b32 s4, s4, 9\nv_add_u32 v{va}, s4, v{NB}')
    else:
        g(f's_lshl_b32 s4, s15, 10\nv_add_u32 v{va}, s4, v{NB}')
    tagmask(g, vm)
    g.vmwait(('qj', 0))
    g.stamp('l_land', (4,) if L.ACTS == MLP_LDS else ())
    transpose(g, blk)
    g.stamp('l_tr', (4,) if L.ACTS == MLP_LDS else ())
    nsplit(g, blk, L.ACTS, va)
    g.stamp('l_ns', (4,) if L.ACTS == MLP_LDS else ())
    tag(g, [T], vm)
    publish32(g, L, 's12', 16384, False)


def silu_image(g, L, src):
    unpack(g, ACC, src)
    for i in range(4):
        g(f'v_mul_f32 v{T + i}, 0xbfb8aa3b, v{ACC + i}')
    for i in range(4):
        g(f'v_exp_f32 v{T + i}, v{T + i}')
    for i in range(4):
        g(f'v_add_f32 v{T + i}, 1.0, v{T + i}')
    for i in range(4):
        g(f'v_rcp_f32 v{T + i}, v{T + i}')
    for i in range(4):
        g(f'v_mul_f32 v{T + i}, v{T + i}, v{ACC + i}')
    pack(g, T + 4, T)
    actwrite(g, T + 4, L.ACTS)


def proj(g):
    L = Lds(8448)
    Y, SB = 8, 12
    PO, RO, RL, OUTO = 8, 9, 10, 11
    WG, AO, AO3, OW = 12, 17, 18, 16
    WQO, WMO, SW, SR = 17, 18, 19, 23
    RX, RGA, RGB, RB2 = 20, 21, 22, 23
    JC, ODD = 's14', 's15'
    g.vm = []

    def reduce(mb, nprod, part):
        GR = ('s4', 's5', 's6', 's47')[:4 if part == 0 or P['GBG'] or P['LQ'] == 2 else 2]
        if part == 0 and P['GAE']:
            GR = ()
        if part == 3 and P['GBS']:
            skip = only_wave(g, 0)
            g(f's_mov_b32 s4, {MODL + part * 4096}\ns_mov_b32 s5, {MODL + part * 4096 + 32768}')
            poll(g, f'buffer_load_dwordx2 {vr(ACC + 18, 2)}, v{RGA}, {S_WS}, s4 offen sc1\nbuffer_load_dwordx2 {vr(ACC + 20, 2)}, v{RGA}, {S_WS}, s5 offen sc1',
                 range(ACC + 18, ACC + 22), T + 4, 1)
            g(f'v_pk_add_f32 {vr(ACC + 18, 2)}, {vr(ACC + 18, 2)}, {vr(ACC + 20, 2)}\nv_cvt_pk_bf16_f32 v{RGB}, v{ACC + 18}, v{ACC + 19}')
            g(skip + ':')
            GR = ()
        for i, r in enumerate(GR):
            g(f's_mov_b32 {r}, {MODL + part * 4096 + 32768 * i}')
        if nprod < 64:
            g(f'v_mov_b32 v{T}, 0')
            skip = g.label('L_nored')
            g(f's_cmp_ge_u32 s3, {nprod // 8}\ns_cbranch_scc1 {skip}')
        l0, l1 = g.label('L_red0'), g.label('L_red1')
        ld = f'buffer_load_dwordx4 {vr(T, 4)}, v{RO}, {S_WS}, {mb} offen sc1'
        if GR:
            g(f's_cmp_eq_u32 s3, 0\ns_cbranch_scc1 {l0}')
            poll(g, ld, range(T, T + 4), T + 4)
            g(f's_branch {l1}\n{l0}:')
        poll(g, ld + ''.join(f'\nbuffer_load_dwordx2 {vr(ACC + 18 + 2 * i, 2)}, v{RGA}, {S_WS}, {r} offen sc1'
                             for i, r in enumerate(GR)),
             list(range(T, T + 4)) + list(range(ACC + 18, ACC + 18 + 2 * len(GR))), T + 4)
        g(l1 + ':')
        g.stamp('red_polled%d' % nprod, (1,))
        g(f'v_permlane32_swap_b32 v{T}, v{T + 2}\nv_permlane32_swap_b32 v{T + 1}, v{T + 3}')
        g(f'v_add_f32 v{T}, v{T}, v{T + 2}\nv_add_f32 v{T + 1}, v{T + 1}, v{T + 3}')
        g.nop(2)
        g(f'v_permlane16_swap_b32 v{T}, v{T + 1}\nv_add_f32 v{T}, v{T}, v{T + 1}')
        g.nop(2)
        g(f'v_add_f32_dpp v{T}, v{T}, v{T} row_ror:8 {DPP}')
        if nprod < 64:
            g(skip + ':')
        g(f'ds_write_b32 v{RL}, v{T}')
        g('s_waitcnt lgkmcnt(0)\ns_barrier')
        skip = only_wave(g, 0)
        g(f'v_and_b32 v{T + 2}, 15, v0\nv_lshlrev_b32 v{T + 2}, 3, v{T + 2}')
        for w in range(8):
            g(f'ds_read_b64 {vr(ACC + 2 * w, 2)}, v{T + 2} offset:{L.PART + 128 * w}')
        if len(GR) == 4:
            pk4(g, 'v_pk_add_f32', ACC + 18, ACC + 18, ACC + 22)
        if GR:
            g(f'v_pk_add_f32 {vr(ACC + 18, 2)}, {vr(ACC + 18, 2)}, {vr(ACC + 20, 2)}')
            round2(g, ACC + 18)
        else:
            unpack2(g, ACC + 18, RGB)
        return skip

    def reduce_sum():
        g('s_waitcnt lgkmcnt(4)')
        pk4(g, 'v_pk_add_f32', ACC, ACC, ACC + 4)
        g('s_waitcnt lgkmcnt(0)')
        pk4(g, 'v_pk_add_f32', ACC + 8, ACC + 8, ACC + 12)
        pk4(g, 'v_pk_add_f32', ACC, ACC, ACC + 8)
        g(f'v_pk_add_f32 {vr(T, 2)}, {vr(ACC, 2)}, {vr(ACC + 2, 2)}')
        round2(g, T)

    g('L_proj:')
    if P['PFG'] == 3:
        g(f's_getpc_b64 s[98:99]\nL_pc0:\ns_sub_u32 s98, s98, L_pc0-{NAME}_kernel\ns_subb_u32 s99, s99, 0')
        g(f's_and_b32 s4, s2, 56\ns_add_u32 s4, s4, s3\ns_lshl_b32 s4, s4, 9\nv_lshl_add_u32 v{T}, v0, 3, s4')
        g.vmop(f'global_load_dwordx2 {vr(ACC + 4, 2)}, v{T}, s[98:99]', 'in')
    g(f's_and_b32 {JC}, s2, 7\ns_lshl_b32 {JC}, {JC}, 3\ns_lshr_b32 s4, s2, 3\ns_add_u32 {JC}, {JC}, s4')
    g(f's_lshl_b32 s4, s3, 6\nv_add_u32 v{TID}, s4, v0')
    nvoff(g, WMO, 12288)
    g(f'''s_and_b32 {ODD}, {JC}, 1
          s_lshr_b32 s6, {JC}, 1
          s_lshl_b32 s6, s6, 7
          s_mul_i32 s13, {ODD}, {512 * 12288}
          s_add_u32 s13, s13, s6''')
    g.bits(T + 6, TID, [(3, 6, 64), (0, 2, 16), (2, 1, 8)], T)
    g('s_waitcnt lgkmcnt(0)')
    srd(g, S_B, 36, 4096)
    g.vmop(f'buffer_load_dwordx2 {vr(SB, 2)}, v{T + 6}, {S_B}, 0 offen', 'in')
    g('s_mov_b32 s60, s16\ns_mov_b32 s61, s17')
    g.vmop(f'buffer_load_dwordx2 {vr(SB + 2, 2)}, v{T + 6}, {S_B}, 0 offen', 'in')
    srd(g, S_WS, 44, WS_SIZE)
    g.vmop(epoch_load(RGB), 'in')
    if P['PFG'] == 2:
        skip = g.label('L_nopf')
        g(f's_cmp_ge_u32 s2, 8\ns_cbranch_scc1 {skip}')
        prefetch_code(g, None, 2, T, ACC + 4)
        g(skip + ':')
    nload(g, UA, 38, 1024 * 12288, 12288, 's13', WMO, (0,), tag='m1')
    consts(g)
    g(f's_lshl_b32 s7, {JC}, 7\ns_lshr_b32 s46, {JC}, 4\ns_lshl_b32 s46, s46, 2')
    g(f's_lshl_b32 s47, {ODD}, 15\ns_lshl_b32 s5, s6, 2\ns_add_u32 s47, s47, s5\ns_add_u32 s47, s47, {MODP}')
    common_addr(g, L, False)
    nvoff(g, WQO, 8192)
    g(f's_lshl_b32 s4, s3, 3\nv_mov_b32 v{SW}, s4\ns_and_b32 s4, s4, 32\nv_mov_b32 v{SR}, s4')
    g(f's_mul_i32 s8, {JC}, {MBA_ST}\ns_add_u32 s8, s8, {MBA}')
    g(f's_lshr_b32 s9, {JC}, 1\ns_mul_i32 s9, s9, {MBP}\ns_lshl_b32 s10, {ODD}, 7\ns_add_u32 s9, s9, s10\ns_add_u32 s10, s9, {MBC}\ns_add_u32 s9, s9, {MBB}')
    g(f's_lshl_b32 s11, {JC}, 7\ns_add_u32 s11, s11, {X1}')
    g.vmwait('in')
    epoch_tag(g, RGB)
    silu_image(g, L, SB)
    unpack(g, Y, SB + 2)
    layernorm(g, Y, SW, SR, L.STAT)
    nload(g, UB, 22, 1024 * 8192, 8192, 's7', WQO, (0,), tag='wq')
    g('s_waitcnt vmcnt(8)')
    transpose(g, UA)
    g(f's_lshl_b32 s4, {ODD}, {10 if P["NAT"] else 7}\nv_add_u32 v{T + 7}, s4, v{NB}')
    nsplit(g, UA, L.ACTS, T + 7)
    publish32(g, L, 's47', 16384, True)
    g.stamp('g_mod')
    nload(g, UB, 22, 1024 * 8192, 8192, 's7', WQO, (1,), tag='wq')
    MP = RGA
    g.bits(MP, TID, [(8, 1, 16384), (3, 5, 256), (0, 2, 64), (2, 1, 32)], T + 7, MODP)
    g('s_waitcnt vmcnt(8)')
    transpose(g, UB)
    g(f's_mov_b32 s4, 8192\ns_mov_b32 s5, 32768\ns_mov_b32 s12, {32768 + 8192}')
    mloads = '\n'.join(f'buffer_load_dwordx4 {vr(ACC + 4 * i, 4)}, v{MP}, {S_WS}, {("0", "s5", "s4", "s12")[i >> 1]} offen offset:{16 * (i & 1)} sc1'
                       for i in range(8))
    g(f's_waitcnt vmcnt({P["MW"]})')
    g(mloads)
    attention(g, 'g_addr')
    attention(g, 'g_issue', range(P['GE']))
    g(f's_waitcnt vmcnt({8 + P["GE"]})')
    transpose(g, UB + 1)
    g(f's_waitcnt vmcnt({P["GE"]})')
    poll(g, mloads, range(ACC + 1, ACC + 32, 2), T, P['MSL'], preloaded=True, mask=-1)
    g.vm = []
    g.stamp('g_modseen')
    for i in range(4):
        g(f'v_add_f32 v{T + i}, v{ACC + 16 + 2 * i}, v{ACC + 24 + 2 * i}')
    for i in range(4):
        g(f'v_add_f32 v{ACC + i}, v{ACC + 2 * i}, v{ACC + 8 + 2 * i}')
    round4(g, T, T + 4)
    for i in range(4):
        g(f'v_add_f32 v{T + i}, 1.0, v{T + i}')
    round4(g, T, T + 4)
    pk4(g, 'v_pk_mul_f32', Y, Y, T)
    round4(g, Y, T + 4)
    round4(g, ACC, T + 4)
    pk4(g, 'v_pk_add_f32', Y, Y, ACC)
    pack(g, T, Y)
    actwrite(g, T, L.ACTH)
    g('s_waitcnt lgkmcnt(0)\ns_barrier')
    nsplit(g, UB, L.ACTH)
    g(f's_lshl_b32 s12, s7, 1\ns_add_u32 s12, s12, {QB}')
    g(f'v_cvt_pk_bf16_f32 v{T}, v{T}, v{T}\nv_lshl_or_b32 v{T}, v{T}, 16, {S_T16}')
    publish32(g, L, 's12', 16384, False)
    g.stamp('g_q')

    attention(g, 'g_issue', range(P['GE'], 16 * P['NUG']))
    if P['NUG']:
        attention(g, 'g_q')
    assert not P['NUG'] and P['NAT']
    assert P['GH'] and P['LQ'] == 1 and P['GJ'] == 1 and not P['GBG']
    g(f's_add_u32 s47, {JC}, 32')
    qjob_issue(g, UA, 's47', WMO, 1)
    g('s_mov_b32 s100, s15\ns_mov_b32 s101, s6')
    g.vm = [('q1', 0)] * 8
    qjob_voff(g, WMO)
    qjob_issue(g, UA + 1, JC, WMO)
    g('s_mov_b32 s68, s15\ns_mov_b32 s69, s6\ns_mov_b32 s15, s100\ns_mov_b32 s6, s101')
    g.vmwait(('q1', 0))
    sv, g.vm = g.vm, []
    qjob_finish(g, L, UA, 8, 9, 1)
    g.vm = sv
    g.bits(T + 5, TID, [(4, 2, 4096), (6, 3, 256), (0, 4, 16)], T + 7)
    kload(g, UC, 24, 4096 * 2048, JC, T + 5, lambda kb, t: 32 * kb + (t & 3) * 8 + (t >> 2), 'wo')
    g('s_mov_b32 s15, s68\ns_mov_b32 s6, s69')
    qjob_finish(g, L, UA + 1, 8, 9)
    if P['GJ'] > 1:
        assert P['LQ'] == 2 and not P['GBG']
        lp = g.label('L_gj')
        g(f's_add_u32 s47, {JC}, 64\n{lp}:')
        qjob_issue(g, UA, 's47', WMO)
        qjob_finish(g, L, UA, 8, 9)
        g(f's_add_u32 s47, s47, 64\ns_cmp_lt_u32 s47, {64 * P["GJ"]}\ns_cbranch_scc1 {lp}')
    if P['GBG']:
        g(f's_add_u32 s47, {JC}, 192')
        qjob_issue(g, UA, 's47', WMO)
        qjob_finish(g, L, UA, 8, 9)
    g(f's_and_b32 {ODD}, {JC}, 1')
    if P['NUG']:
        attention(g, 'g_compute')
        g.stamp('g_att')
        common_addr(g, L, False)
    g.bits(RO, TID, [(3, 6, 256), (0, 3, 16)], T)
    g('s_waitcnt vmcnt(0)')
    g.vm = []
    transpose(g, UC, il=True)
    transpose(g, UC + 1, il=True)
    g.stamp('g_loaded')
    g(f's_lshl_b32 s4, {JC}, 5')
    g.bits(T, 0, [(0, 3, 4)], T + 1, 's4')
    srd(g, S_B, 34, 2048)
    g(f'buffer_load_dword v{RB2}, v{T}, {S_B}, 0 offen')
    g(f'v_bfe_u32 v{T + 1}, v0, 3, 1\nv_lshlrev_b32 v{RGA}, 1, v{T}\nv_lshl_add_u32 v{RGA}, v{T + 1}, 14, v{RGA}')
    g(f'v_lshl_add_u32 v{OUTO}, v{T + 1}, 11, v{T}')
    srd(g, S_B, 16, 4096)
    g(f'buffer_load_dword v{RX}, v{OUTO}, {S_B}, 0 offen')
    if P['GAE']:
        skip = only_wave(g, 0)
        GR = ('s4', 's5', 's6', 's47')
        for i, r in enumerate(GR):
            g(f's_mov_b32 {r}, {MODL + 32768 * i}')
        poll(g, '\n'.join(f'buffer_load_dwordx2 {vr(ACC + 18 + 2 * i, 2)}, v{RGA}, {S_WS}, {r} offen sc1' for i, r in enumerate(GR)),
             range(ACC + 18, ACC + 26), T + 4, 16)
        pk4(g, 'v_pk_add_f32', ACC + 18, ACC + 18, ACC + 22)
        g(f'v_pk_add_f32 {vr(ACC + 18, 2)}, {vr(ACC + 18, 2)}, {vr(ACC + 20, 2)}\nv_cvt_pk_bf16_f32 v{RGB}, v{ACC + 18}, v{ACC + 19}')
        g(skip + ':')
    srd(g, S_B, 40, 4096)
    g.bits(RL, TID, [(6, 3, 128), (5, 1, 64), (0, 3, 8), (4, 1, 4)], T, L.PART)
    po_addr(g, PO)
    kb_addr(g, L)
    g(f's_lshl_b32 s12, s7, 1\ns_add_u32 s12, s12, {MBB}')
    g.bits(AO, TID, [(8, 1, SLOTS * 256), (3, 3, 256), (6, 2, 64), (0, 3, 8)], T + 3)
    g.bits(OW, TID, [(6, 3, 32), (0, 1, 16), (1, 2, 4), (5, 1, 2)], T + 3, L.OUTV)
    g.bits(T + 5, TID, [(8, 1, 128), (3, 3, 4)], T + 3)
    g('s_add_u32 s13, s8, 4096')
    g.bits(T + 2, 0, [(5, 1, 8192), (0, 5, 8)], T + 3)
    g(f's_lshr_b32 s4, {JC}, 1\ns_lshl_b32 s4, s4, 8\ns_add_u32 s4, s4, {STATS}')
    prefetch_code(g, 'L_proj_tail', 1, T + 6, ACC)
    if P['PRE'] == 1:
        g(f'buffer_load_dwordx4 {vr(ACC + 4, 4)}, v{RO}, {S_WS}, s9 offen sc1')
    sparse_index(g, SW)
    g('\n'.join(zero32(BLK(0))))
    g('s_waitcnt vmcnt(0)')
    g.warm_run('L_wg')
    g.stamp('g_ready')
    g('L_proj_tail:')
    g.warm_begin('L_wg')
    if P['XG'] == 1:
        g('s_branch L_gend')
    NT = 4 if P['NUG'] else 3
    aloads = lambda d: '\n'.join(f'buffer_load_dwordx2 {vr(d + 2 * k, 2)}, v{AO}, {S_WS}, {"s8" if k < 2 else "s13"} offen offset:{2048 * (k & 1)} sc1'
                                 for k in range(NT))
    lp, ok = g.label('L_p1'), only_wave(g, 0)
    g(f's_mov_b32 {S_SPIN}, {SPIN}\n{lp}:')
    g(aloads(ACC + 8).split('\n')[P['P1K']] + '\ns_waitcnt vmcnt(0)')
    check(g, range(ACC + 8 + 2 * P['P1K'], ACC + 10 + 2 * P['P1K']), ACC)
    g(f's_bcnt1_i32_b64 s5, vcc\ns_cmp_le_u32 s5, {P["P1TH"]}\ns_cbranch_scc1 {ok}')
    g(f's_sleep {P["P1SL"]}\ns_sub_u32 {S_SPIN}, {S_SPIN}, 1\ns_cbranch_scc0 {lp}\n{ok}:\ns_barrier')
    g.stamp('g_hint', (0, 1))
    if P['PRE'] == 2:
        g(f'buffer_load_dwordx4 {vr(ACC + 4, 4)}, v{RO}, {S_WS}, s9 offen sc1')
    g(f'v_mov_b32 v{T}, 0xff800000\nv_mov_b32 v{T + 1}, 0')
    g.setexec(-1 if P['NUG'] else ((1 << SPL) - 1) * 0x100000001)
    poll(g, f'buffer_load_dwordx2 {vr(T, 2)}, v{T + 2}, {S_WS}, s4 offen sc1', [T, T + 1], T + 4, 2, mask='ml')
    g.setexec(-1)

    def red32(r, t, op):
        for sh in (8, 4, 2, 1):
            g.nop(2)
            g(f'{op}_dpp v{r}, v{r}, v{r} row_ror:{sh} {DPP}')
        g(f'v_mov_b32 v{t}, v{r}')
        g.nop(2)
        g(f'v_permlane16_swap_b32 v{r}, v{t}\n{op} v{r}, v{r}, v{t}')
    g(f'v_and_b32 v{T}, {S_MASK}, v{T}\nv_mov_b32 v{T + 2}, v{T}')
    red32(T + 2, T + 3, 'v_max_f32')
    g(f'v_sub_f32 v{T}, v{T}, v{T + 2}\nv_mul_f32 v{T}, 0x3fb8aa3b, v{T}\nv_exp_f32 v{T}, v{T}\ns_nop 0')
    g(f'v_mul_f32 v{T + 1}, v{T + 1}, v{T}')
    red32(T + 1, T + 3, 'v_add_f32')
    g(f'v_rcp_f32 v{T + 1}, v{T + 1}\ns_nop 0\nv_mul_f32 v{T}, v{T}, v{T + 1}')
    for k in range(4):
        g(f'ds_bpermute_b32 v{WG + k}, v{T + 5}, v{T} offset:{32 * k}')
    g('s_waitcnt lgkmcnt(0)')
    g.stamp('g_wgt', (0, 1))
    if P['P2TH'] < P['P1TH']:
        lp, ok = g.label('L_p1'), only_wave(g, 0)
        g(f's_mov_b32 {S_SPIN}, {SPIN}\n{lp}:')
        g(aloads(ACC + 8).split('\n')[P['P1K']] + '\ns_waitcnt vmcnt(0)')
        check(g, range(ACC + 8 + 2 * P['P1K'], ACC + 10 + 2 * P['P1K']), ACC)
        g(f's_bcnt1_i32_b64 s5, vcc\ns_cmp_le_u32 s5, {P["P2TH"]}\ns_cbranch_scc1 {ok}')
        g(f's_sleep {P["P2SL"]}\ns_sub_u32 {S_SPIN}, {S_SPIN}, 1\ns_cbranch_scc0 {lp}\n{ok}:\ns_barrier')
        g.stamp('g_go', (0, 1))
    if P['W2TH']:
        skip = only_wave(g, 0)
        lp, ok = g.label('L_p2'), g.label('L_p2ok')
        g(f's_and_b32 s5, {JC}, 15\ns_cbranch_scc1 {skip}\ns_mov_b32 {S_SPIN}, {SPIN}\n{lp}:')
        g(aloads(T) + '\ns_waitcnt vmcnt(0)')
        check(g, range(T, T + 2 * NT), ACC)
        g(f's_bcnt1_i32_b64 s5, vcc\ns_cmp_le_u32 s5, {P["W2MISS"]}\ns_cbranch_scc1 {ok}')
        g(f's_sub_u32 {S_SPIN}, {S_SPIN}, 1\ns_cbranch_scc0 {lp}\n{ok}:')
        g(faddr('s46', C_A) + f'v_mov_b32 v{ACC}, {S_EPO}\ns_mov_b64 exec, 1\nbuffer_store_dword v{ACC}, off, {S_WS}, s98 sc1\ns_mov_b64 exec, -1')
        g(skip + ':')
    poll(g, aloads(T), range(T, T + 2 * NT), ACC, P['SLEEP'])
    g.stamp('g_apolled', (0, 1))
    g(f'v_mul_f32 v{T}, v{WG}, v{T}\nv_mul_f32 v{T + 1}, v{WG}, v{T + 1}')
    for k in range(1, NT):
        g(f'v_fmac_f32 v{T}, v{WG + k}, v{T + 2 * k}\nv_fmac_f32 v{T + 1}, v{WG + k}, v{T + 2 * k + 1}')
    g.nop(2)
    g(f'v_permlane32_swap_b32 v{T}, v{T + 1}\nv_add_f32 v{T}, v{T}, v{T + 1}\nv_mov_b32 v{T + 1}, v{T}')
    g.nop(2)
    g(f'v_permlane16_swap_b32 v{T}, v{T + 1}\nv_add_f32 v{T}, v{T}, v{T + 1}')
    g.nop(2)
    g(f'v_add_f32_dpp v{T}, v{T}, v{T} row_ror:8 {DPP}')
    g(f'v_cvt_pk_bf16_f32 v{T}, v{T}, v{T}\nds_write_b16 v{OW}, v{T}')
    g('s_waitcnt lgkmcnt(0)\ns_barrier')
    g.stamp('g_obar', (1,))
    if P['XG'] == 2:
        g('s_branch L_gend')
    ksplit_out(g, UC, PO, 's12', BLK(0), SW)
    g.stamp('g_t2', (0, 1))
    if P['BW']:
        g('s_waitcnt vmcnt(0)')
    if P['BW'] == 2:
        g('s_barrier')
    skip = reduce('s9', 64, 0)
    unpack2(g, T + 6, RX)
    if P['REP']:
        g(f'v_lshrrev_b32 v{T + 3}, 4, v0\nv_lshl_add_u32 v{T + 3}, v{T + 3}, 13, v{T + 2}\ns_add_u32 s4, s11, 32768')
    else:
        g(f'v_lshlrev_b32 v{T + 3}, 3, v0')
    g(f'v_mov_b32 v{ACC + 16}, {S_MASK}')
    reduce_sum()
    g(f'v_pk_mul_f32 {vr(T, 2)}, {vr(T, 2)}, {vr(ACC + 18, 2)}')
    round2(g, T)
    g(f'v_pk_add_f32 {vr(T, 2)}, {vr(T, 2)}, {vr(T + 6, 2)}')
    g(f'v_cvt_pk_bf16_f32 v{RX}, v{T}, v{T + 1}')
    g(f'v_lshl_or_b32 v{T}, v{RX}, 16, {S_T16}\nv_and_or_b32 v{T + 1}, v{RX}, v{ACC + 16}, {S_T16}')
    if P['REP']:
        g(f'buffer_store_dwordx2 {vr(T, 2)}, v{T + 3}, {S_WS}, s11 offen sc1\nbuffer_store_dwordx2 {vr(T, 2)}, v{T + 3}, {S_WS}, s4 offen sc1')
    else:
        g.setexec(0xffff)
        g(f'buffer_store_dwordx2 {vr(T, 2)}, v{T + 3}, {S_WS}, s11 offen sc1')
        g.setexec(-1)
    g(f's_cmp_lg_u32 s2, 0\ns_cbranch_scc1 {skip}\nv_mov_b32 v{T + 2}, {S_EPO}\ns_mov_b64 exec, 1')
    g(f'buffer_store_dword v{T + 2}, off, {S_WS}, 0 sc1\ns_mov_b64 exec, -1')
    g(skip + ':')
    g.stamp('g_x1', (0, 1))
    g('s_barrier')
    skip = reduce('s10', 56, 3)
    unpack2(g, T + 2, RB2)
    unpack2(g, T + 6, RX)
    reduce_sum()
    g(f'v_pk_add_f32 {vr(T, 2)}, {vr(T, 2)}, {vr(T + 2, 2)}')
    round2(g, T)
    g(f'v_pk_mul_f32 {vr(T, 2)}, {vr(T, 2)}, {vr(ACC + 18, 2)}')
    round2(g, T)
    g(f'v_pk_add_f32 {vr(T, 2)}, {vr(T, 2)}, {vr(T + 6, 2)}')
    g(f'v_cvt_pk_bf16_f32 v{T}, v{T}, v{T + 1}')
    g.setexec(0xffff)
    g(f'buffer_store_dword v{T}, v{OUTO}, {S_B}, 0 offen {P["OUTF"].replace("+", " ")}')
    g(skip + ':')
    g.warm_end()
    g('L_gend:')
    g.stamp('g_out', (0, 1, 3))
    if P['PADTO']:
        if P['PADWG'] >= 0:
            g(f's_cmp_lg_u32 s2, {P["PADWG"]}\ns_cbranch_scc1 L_nopad')
        g(f'L_pad:\ns_memrealtime s[4:5]\ns_waitcnt lgkmcnt(0)\ns_sub_u32 s4, s4, s70\ns_cmp_lt_u32 s4, {P["PADTO"]}\ns_cbranch_scc1 L_pad\nL_nopad:')
    write_stamps(g)
    g('s_endpgm')


MLP_LDS = 4096
W1L = 4096
LDS_TOTAL = W1L + 131072


def mlp(g):
    L = Lds(MLP_LDS)
    PO, XO, SW, SR, B1 = 8, 9, 10, 11, 17
    C1, SH = 12, 18
    JM = 's14'
    g.vm = []
    g('L_mlp:')
    g.warm_begin('L_wp')
    if P['W2E'] and P['W2P']:
        kload(g, UB, 32, 3584 * 2048, JM, 7, lambda kb, t: 32 * kb + 4 * t, 'w2', which=range(P['W2E']))
        g.vm = []
    if P['XW'] == 1:
        write_stamps(g)
        g('s_endpgm')
    if P['W2TH']:
        skip = only_wave(g, 0)
        fpoll(g, ACC + 4, 's101', C_A, P['LSL'])
        g(skip + ':')
    g(f's_lshl_b32 s4, s3, 6\nv_add_u32 v{TID}, s4, v0')
    g(f's_lshl_b32 s7, {JM}, 7')
    MP, MB, XV = 16, BLK(0), ACC
    g.bits(MP, TID, [(8, 1, 16384), (0, 8, 16)], T, MODL + 4096)
    g(f'v_add_u32 v{MP + 6}, 4096, v{MP}\ns_mov_b32 s8, 32768\ns_mov_b32 s9, 65536\ns_mov_b32 s10, 98304')
    mloads = '\n'.join(f'buffer_load_dwordx4 {vr(MB + 4 * i, 4)}, v{MP + 6 * (i >> 2)}, {S_WS}, {("0", "s8", "s9", "s10")[i & 3]} offen sc1'
                       for i in range(8) if (i & 3) < (1 << P['LQ']))
    early = P['GH'] or P['GJ'] >= 3
    srd(g, S_B, 30, 3584 * 2)
    g.bits(T + 4, TID, [(2, 6, 2)], T, 's7')
    g.bits(T + 5, TID, [(4, 2, 2048), (6, 3, 256), (0, 4, 16)], T + 7)
    g('s_barrier')
    g.vmop(f'buffer_load_ushort v{B1}, v{T + 4}, {S_B}, 0 offen', 'k')
    if early and P['MLD'] < 0:
        g.vmop(mloads, 'k')
    prefetch_code(g, 'L_mlp_tail', 1, T + 4, ACC + 8, 'k')
    g.vm = [('w2', 0)] + g.vm
    kload(g, UB, 32, 3584 * 2048, JM, T + 5, lambda kb, t: 32 * kb + 4 * t, 'w2', which=range(P['W2E'], 16))
    mlp_addr(g, L)
    g.bits(XO, TID, [(2, 6, 128), (8, 1, 64), (0, 2, 16)], T, X1)
    if P['REP']:
        g(f's_and_b32 s4, s2, 7\ns_lshl_b32 s4, s4, 13\nv_add_u32 v{XO}, s4, v{XO}')
    po_addr(g, PO)
    g(f's_lshl_b32 s13, s7, 1\ns_add_u32 s13, s13, {MBC}')
    g(f's_lshl_b32 s4, s3, 3\nv_mov_b32 v{SW}, s4\ns_and_b32 s4, s4, 32\nv_mov_b32 v{SR}, s4')
    if P['MLD'] >= 0:
        g(f's_lshl_b32 s4, s3, 14\ns_add_u32 s4, s4, {W1L + 8192}\nv_lshl_add_u32 v{T}, v0, 4, s4')
        for i in range(4):
            g(f'ds_read_b128 {vr(MB + 4 * (i & 1) + 16 * (i >> 1), 4)}, v{T} offset:{1024 * i}')
    IDX = 23
    sparse_index(g, IDX)
    g('s_waitcnt lgkmcnt(0)')
    xload = f'buffer_load_dwordx4 {vr(XV, 4)}, v{XO}, {S_WS}, 0 offen sc1'

    def w2_finish():
        g.vmwait(('w2', 0))
        transpose(g, UB, il=True)
        if not early:
            g.vmop(mloads, 'k')
        g.vmwait(('w2', 1))
        g.vmop(xload, 'x')
        transpose(g, UB + 1, il=True)
        g.stamp('m_w2', (2,))
    if not early:
        w2_finish()
    g.vmwait('k')
    poll(g, mloads, [r for r in range(MB, MB + 32) if ((r - MB) & 15) < (4 << P['LQ'])], T, P['MLS'], preloaded=True)
    for d, b in ((SH, MB), (C1, MB + 16)):
        if P['LQ'] == 2:
            pk4(g, 'v_pk_add_f32', b, b, b + 8)
            pk4(g, 'v_pk_add_f32', b + 4, b + 4, b + 12)
        pk4(g, 'v_pk_add_f32', d, b, b + 4)
    round4(g, SH, T)
    round4(g, C1, T)
    for i in range(4):
        g(f'v_add_f32 v{C1 + i}, 1.0, v{C1 + i}')
    round4(g, C1, T)
    g(f'v_lshlrev_b32 v{B1}, 16, v{B1}')
    KC = BLK(1)
    if P['LNM']:
        g.bits(SW, TID, [(8, 1, 128), (4, 2, 16), (6, 2, 4)], T)
        g.bits(SR, TID, [(8, 1, 128)], T)
        g(f'v_add_f32 v{T}, v{C1}, v{C1 + 1}\nv_mul_f32 v{T + 1}, v{C1}, v{C1}\nv_mul_f32 v{T + 2}, v{C1}, v{SH}')
        g(f'v_add_f32 v{T + 3}, v{SH}, v{SH + 1}\nv_mul_f32 v{T + 4}, v{SH}, v{SH}\nv_mov_b32 v{T + 5}, 0')
        for i in range(1, 4):
            if i > 1:
                g(f'v_add_f32 v{T}, v{T}, v{C1 + i}\nv_add_f32 v{T + 3}, v{T + 3}, v{SH + i}')
            g(f'v_fmac_f32 v{T + 1}, v{C1 + i}, v{C1 + i}\nv_fmac_f32 v{T + 2}, v{C1 + i}, v{SH + i}\nv_fmac_f32 v{T + 4}, v{SH + i}, v{SH + i}')
        g.nop(1)
        blocksum6(g, T, SW, SR, L.STAT + 256, KC)
        for i in range(5):
            g(f'v_mul_f32 v{KC + i}, 0x3a800000, v{KC + i}')
    g('\n'.join(zero32(BLK(0))))
    assert P['LNM'] and not ('p' in P['WREG'] and 'm' in P['WREG'])
    g.warm_run('L_wm')
    if early:
        w2_finish()
    g.warm_end()
    g.stamp('m_ready', (0, 2))
    g('L_mlp_tail:')
    g.warm_begin('L_wm')
    g('s_waitcnt vmcnt(0)')
    poll(g, xload, range(XV, XV + 4), T, mask=0xffff, preloaded=True)
    g.stamp('m_x1seen', (0, 2))
    for i in range(4):
        g(f'v_and_b32 v{XV + i}, {S_MASK}, v{XV + i}')
    if P['LNM']:
        UV, R = ACC + 4, ACC + 8
        pk4(g, 'v_pk_mul_f32', UV, XV, C1)
        g(f'v_pk_add_f32 {vr(R, 2)}, {vr(XV, 2)}, {vr(XV + 2, 2)}\nv_pk_mul_f32 {vr(R + 2, 2)}, {vr(XV, 2)}, {vr(XV, 2)}')
        g(f'v_pk_add_f32 {vr(R + 4, 2)}, {vr(UV, 2)}, {vr(UV + 2, 2)}\nv_pk_mul_f32 {vr(R + 6, 2)}, {vr(UV, 2)}, {vr(UV, 2)}')
        g(f'v_pk_mul_f32 {vr(R + 8, 2)}, {vr(UV, 2)}, {vr(C1, 2)}\nv_pk_mul_f32 {vr(R + 10, 2)}, {vr(UV, 2)}, {vr(SH, 2)}')
        g(f'v_pk_fma_f32 {vr(R + 2, 2)}, {vr(XV + 2, 2)}, {vr(XV + 2, 2)}, {vr(R + 2, 2)}')
        g(f'v_pk_fma_f32 {vr(R + 6, 2)}, {vr(UV + 2, 2)}, {vr(UV + 2, 2)}, {vr(R + 6, 2)}')
        g(f'v_pk_fma_f32 {vr(R + 8, 2)}, {vr(UV + 2, 2)}, {vr(C1 + 2, 2)}, {vr(R + 8, 2)}')
        g(f'v_pk_fma_f32 {vr(R + 10, 2)}, {vr(UV + 2, 2)}, {vr(SH + 2, 2)}, {vr(R + 10, 2)}')
        for d, i in enumerate((0, 4, 2, 6, 8, 10)):
            g(f'v_add_f32 v{T + d}, v{R + i}, v{R + i + 1}')
        blocksum6(g, T, SW, SR, L.STAT, R, finish=False)
        M, A, E1, E2, E3, EH, V2 = T, T + 1, T + 2, T + 3, T + 4, T + 5, T + 6
        K = '0x3a800000'
        rnd = lambda r: f'v_cvt_pk_bf16_f32 v{r}, 0, v{r}'
        sum4 = lambda i: [f'v_add_f32 v{R + 4 * i}, v{R + 4 * i}, v{R + 4 * i + 1}', f'v_add_f32 v{R + 4 * i + 2}, v{R + 4 * i + 2}, v{R + 4 * i + 3}',
                          f'v_add_f32 v{R + 4 * i}, v{R + 4 * i}, v{R + 4 * i + 2}', f'v_mul_f32 v{R + 4 * i}, {K}, v{R + 4 * i}']
        tail = lambda v: [f'v_max_f32 v{v}, 0, v{v}', rnd(v), f'v_add_f32 v{v}, 0x3727c5ac, v{v}', rnd(v), f'v_sqrt_f32 v{v}, v{v}', rnd(v),
                          f'v_rcp_f32 v{v}, v{v}']
        g('s_waitcnt lgkmcnt(4)')
        for x, y in zip(sum4(0), sum4(1)):
            g(x + '\n' + y)
        g('s_waitcnt lgkmcnt(0)')
        g.stamp('m_ln1', (2,))
        fill = [f'v_cvt_pk_bf16_f32 v{M}, 0, v{R}']
        for q in zip(sum4(2), sum4(3), sum4(4), sum4(5)):
            fill += list(q)
        fill += [f'v_fma_f32 v{E1}, -v{M}, v{KC}, v{R + 8}', f'v_fma_f32 v{E2}, -v{M}, v{KC + 1}, v{R + 20}',
                 f'v_fma_f32 v{E3}, v{M}, v{KC + 2}, -v{R + 16}', f'v_add_f32 v{E2}, v{E2}, v{E2}', f'v_sub_f32 v{E3}, v{E3}, v{R + 16}',
                 f'v_fma_f32 v{UV}, -v{M}, v{C1}, v{UV}', f'v_fma_f32 v{E3}, v{M}, v{E3}, v{R + 12}']
        weave(g, [f'v_fma_f32 v{A}, -v{R}, v{R}, v{R + 4}'] + tail(A), fill, 2)
        fill = [f'v_fma_f32 v{UV + i}, -v{M}, v{C1 + i}, v{UV + i}' for i in range(1, 4)]
        fill += [f'v_cvt_pk_bf16_f32 v{E1}, 0, v{EH}'] + [f'v_fma_f32 v{UV + i}, v{UV + i}, v{A}, v{SH + i}' for i in range(4)]
        fill += [f'v_sub_f32 v{UV + i}, v{UV + i}, v{E1}' for i in range(4)]
        g(f'v_fma_f32 v{EH}, v{E1}, v{A}, v{KC + 3}')
        weave(g, [f'v_fma_f32 v{V2}, v{E3}, v{A}, v{E2}', f'v_fma_f32 v{V2}, v{V2}, v{A}, v{KC + 4}', f'v_fma_f32 v{V2}, -v{EH}, v{EH}, v{V2}'] + tail(V2), fill, 1)
        for i in range(4):
            g(f'v_mul_f32 v{UV + i}, v{UV + i}, v{V2}')
        pack(g, T + 6, UV)
    else:
        layernorm(g, XV, SW, SR, L.STAT)
        g.stamp('m_ln1', (2,))
        pk4(g, 'v_pk_mul_f32', XV, XV, C1)
        round4(g, XV, T + 6)
        pk4(g, 'v_pk_add_f32', XV, XV, SH)
        round4(g, XV, T + 6)
        layernorm(g, XV, SW, SR, L.STAT + 64, last_packed=True)
    g(f'ds_write2_b32 v{KW}, v{T + 6}, v{T + 7} offset1:4')
    g('s_waitcnt lgkmcnt(0)\ns_barrier')
    g.stamp('m_ln2', (2,))
    nsplit(g, UC, L.ACTH, fast=(BLK(0), BLK(1) + 8, IDX, zero32(ACC)))
    g.stamp('m_t3', (2,))
    g(f'''v_cvt_pk_bf16_f32 v{T}, 0, v{T}
          v_mov_b32 v{T + 2}, 0xc0135761
          v_add_f32 v{T}, v{T}, v{B1}
          v_cvt_pk_bf16_f32 v{T}, 0, v{T}
          v_mul_f32 v{T + 1}, v{T}, v{T}
          v_fmac_f32 v{T + 2}, 0xbdd2d3e8, v{T + 1}
          v_mul_f32 v{T + 1}, v{T + 2}, v{T}
          v_exp_f32 v{T + 1}, v{T + 1}
          s_nop 0
          v_add_f32 v{T + 1}, 1.0, v{T + 1}
          v_rcp_f32 v{T + 1}, v{T + 1}
          s_nop 0
          v_mul_f32 v{T}, v{T}, v{T + 1}
          v_cvt_pk_bf16_f32 v{T}, v{T}, v{T}
          ds_write_b16 v{NO}, v{T}
          s_waitcnt lgkmcnt(0)
          s_barrier''')
    g.stamp('m_gelu', (2,))
    ksplit_out(g, UB, PO, 's13', ACC, IDX)
    g.warm_end()
    g.stamp('m_t4', (0, 2))
    write_stamps(g)
    g('s_endpgm')


def latem(g):
    L = Lds(MLP_LDS)
    g.vm = []
    g('L_late:')
    if P['XL']:
        write_stamps(g)
        g('s_endpgm')
    g(f's_lshl_b32 s4, s3, 6\nv_add_u32 v{TID}, s4, v0')
    LQ = P['LQ']
    qjob_voff(g, 8, LQ)
    g(f's_add_u32 s14, s14, {(16 << LQ) * (3 if P["GH"] else P["GJ"])}')
    g.bits(T + 6, TID, [(3, 6, 64), (0, 2, 16), (2, 1, 8)], T)
    srd(g, S_B, 36, 4096)
    g('s_barrier')
    g.stamp('l_bar', (4,))
    g.vmop(f'buffer_load_dwordx2 {vr(12, 2)}, v{T + 6}, {S_B}, 0 offen', 'in')
    qjob_issue(g, UA, 's14', 8, LQ)
    g.stamp('l_iss', (4,))
    common_addr(g, L, False)
    g.stamp('l_addr', (4,))
    g.vmwait('in')
    g.stamp('l_c', (4,))
    silu_image(g, L, 12)
    g('s_waitcnt lgkmcnt(0)\ns_barrier')
    g.stamp('l_silu', (4,))
    g('L_late2:')
    qjob_finish(g, L, UA, 9, 10, LQ)
    g.stamp('l_pub1', (0, 1, 2, 4))
    if not P['GBG'] and LQ == 2 and P['GJ'] == 1:
        done = g.label('L_latedone')
        g(f's_cmp_ge_u32 s14, 128\ns_cbranch_scc1 {done}\ns_add_u32 s14, s14, 128\ns_barrier')
        qjob_issue(g, UA, 's14', 8)
        g(f's_branch L_late2\n{done}:')
    write_stamps(g)
    g('s_endpgm')


def attention(g, mode='main', arg=None):
    KO, VO, QO, VSC, VMAX, OO = 1, 2, 3, 4, 5, 6
    Q0, SP, TMP, T2 = 8, 16, 40, 56
    LA, GA = T2 + 7, T2 + 6
    SLOT = lambda s: 64 + 32 * s
    AC = SLOT(0)
    U = lambda u: 's%d' % (4 + 2 * u)
    U2 = lambda u: 's%d' % (5 + 2 * u)
    S_R, S_CU, S_GA, S_T = 's47', 's68', 's96', 's69'
    S_B4, S_B5, S_O4, S_KV = 's46', 's100', 's101', 's101'
    MX, OBUF, OST = 0, W1L, 16384
    QL, QF = 1024, 3072
    S_ST = 's97'
    NN = (SPL - NMR) * 8
    NUG = P['NUG']
    n4 = min(NN, 1024 - 4 * WPR - 64 * NUG)
    EX = 6 * P['A5W']
    n5 = 1024 - 4 * WPR - n4 - 64 * NUG - EX
    RK = QF + 4
    LT = P['LIGHT']
    S_B3, S_G3 = 's0', 's43'
    XV5 = EX or P['EV']
    assert 0 <= n5 <= NN
    base = [0, WPR, 2 * WPR, 3 * WPR, 4 * WPR, 4 * WPR + n4]
    VSLOT = [1, 2, 3, 1, 4, 5] if mode == 'main' else [NUG + u for u in range(NUG)]

    def unit_addr(u):
        g(f's_add_u32 {U(u)}, {S_GA}, {"s98" if u < (5 if n4 == NN else 4) else S_T}')
        if u:
            g(f's_add_u32 {U(u)}, {U(u)}, {base[u]}')
        g(f's_and_b32 {U(u)}, {U(u)}, 1023\ns_lshl_b32 {U(u)}, {U(u)}, 13\ns_add_u32 {U2(u)}, {U(u)}, 4096')

    def entry():
        g.vm = []
        g('L_attn:')
        g(f'''s_sub_u32 {S_T}, s2, {NG}
              s_mul_hi_u32 {S_R}, {S_T}, {(1 << 32) // SPL + 1}
              s_mul_i32 {S_CU}, {S_R}, {SPL - (1 if P["ROT"] else 0)}
              s_sub_u32 {S_CU}, {S_T}, {S_CU}
              s_sub_u32 {S_T}, {S_CU}, {SPL}
              s_cselect_b32 {S_CU}, {S_CU}, {S_T}
              s_lshl_b32 s98, {S_CU}, 3
              s_add_u32 s98, s98, s3
              s_mul_i32 {S_GA}, {S_R}, {P["PH"]}''')
        unit_addr(0)
        g.bits(KO, 0, [(1, 1, 1024), (2, 2, 256), (0, 1, 64), (4, 2, 16)], 8)
        g(f's_lshl_b32 s99, {S_R}, 23\ns_mov_b32 s58, 0x800000\ns_mov_b32 s59, 0x20000')
        g.stamp('a_prek', (5,))
        g('s_waitcnt lgkmcnt(0)')
        g.stamp('a_karg', (5,))
        g('s_add_u32 s56, s18, s99\ns_addc_u32 s57, s19, 0')

    def entry2():
        consts(g)
        g(f's_add_u32 s60, s20, s99\ns_addc_u32 s61, s21, 0\ns_mov_b32 s62, 0x800000\ns_mov_b32 s63, 0x20000')
        g(f'''s_mul_i32 {S_T}, s3, {SPL - NMR}
              s_add_u32 {S_T}, {S_T}, {S_CU}
              s_cmp_lt_u32 {S_CU}, {SPL - NMR}
              s_cselect_b32 {S_T}, {S_T}, 1023''')
        for u in range(1, NU):
            unit_addr(u)
        if LT:
            g(f's_add_u32 s99, {S_GA}, {S_T}\ns_add_u32 s99, s99, {base[3] + NN + 8 - LT - n5}\ns_and_b32 s99, s99, 1023\ns_lshl_b32 s99, s99, 13')
            g(f's_cmp_ge_u32 {S_T}, {n5}\ns_cselect_b32 {U(5)}, s99, {U(5)}\ns_add_u32 {U2(5)}, {U(5)}, 4096')
            g(f's_sub_u32 s99, s98, {NN + 8 - LT}\ns_cmp_lt_u32 s99, {LT}\ns_cselect_b32 {S_B3}, 0xff800000, 0')
        g(f'v_lshlrev_b32 v{VO}, 4, v0')
        g(f's_cmp_lt_u32 {S_T}, {n5 + LT}\ns_cselect_b32 s98, 0, 0x1000000\ns_cselect_b32 {S_B5}, 0, 0xff800000')
        g(f'v_add_u32 v{OO + 1}, s98, v{KO}')
        if EX:
            skip = g.label('L_noex')
            g(f's_cmp_le_u32 {S_CU}, {SPL - NMR}\ns_cbranch_scc1 {skip}\ns_cmp_ge_u32 s3, {P["A5W"]}\ns_cbranch_scc1 {skip}')
            g(f's_mul_i32 {U(4)}, s3, 6\ns_add_u32 {U(4)}, {U(4)}, {S_CU}\ns_add_u32 {U(4)}, {U(4)}, {S_GA}\ns_add_u32 {U(4)}, {U(4)}, {1024 - EX - 18}')
            g(f's_and_b32 {U(4)}, {U(4)}, 1023\ns_lshl_b32 {U(4)}, {U(4)}, 13\ns_add_u32 {U2(4)}, {U(4)}, 4096\ns_mov_b32 {S_T}, 0')
            g(skip + ':')
        g(f's_cmp_lt_u32 {S_T}, {n4}\ns_cselect_b32 {S_O4}, 0, 0x1000000\ns_cselect_b32 {S_B4}, 0, 0xff800000')
        g(f'v_add_u32 v{OO}, {S_O4}, v{KO}')
        assert LT and not P['RANK'] and P['DBGST'] < 0
        skip = g.label('L_noev')
        g(f's_lshr_b32 {S_G3}, {S_B3}, 7\ns_cmp_lt_u32 {S_CU}, {SPL - NMR}\ns_cbranch_scc1 {skip}')
        if P['EV']:
            g(f's_cmp_eq_u32 {S_B4}, 0\ns_cselect_b32 {U(5)}, {U(4)}, {U(3)}\ns_cselect_b32 {S_T}, 0, {S_G3}\ns_cselect_b32 {S_G3}, 0, 0x1000000')
        else:
            g(f's_mov_b32 {U(5)}, {U(4)}\ns_lshr_b32 {S_T}, {S_B4}, 7')
        g(f's_add_u32 {U2(5)}, {U(5)}, 4096\nv_add_u32 v{OO + 1}, {S_T}, v{VO}')
        g(skip + ':')

    def slice_index(d, t):
        if not LT:
            g(f's_mul_i32 {d}, {S_R}, {NMR}\ns_add_u32 {d}, {d}, {S_CU}\ns_sub_u32 {d}, {d}, {SPL - NMR}')
            return
        g(f'''s_mul_i32 {d}, {S_R}, 6
              s_add_u32 {d}, {d}, {S_CU}
              s_sub_u32 {d}, {d}, {SPL - NMR + 1 - 4}
              s_mul_hi_u32 {t}, {d}, {(1 << 32) // 7 + 1}
              s_add_u32 {d}, {d}, {t}
              s_sub_u32 {d}, {d}, 4
              s_lshl_b32 {t}, {S_R}, 3
              s_add_u32 {t}, {t}, 3
              s_min_u32 {t}, {t}, 55
              s_cmp_eq_u32 {S_CU}, {SPL - NMR}
              s_cselect_b32 {d}, {t}, {d}''')

    def load(n, pos):
        i = n & 7
        if n < 48:
            u = n >> 3
            vo = KO if u < 4 else OO + u - 4
            if u == 3 and LT:
                vo = T2 + 3
                if i == 0:
                    g(f's_lshr_b32 {S_T}, {S_B3}, 7\nv_add_u32 v{vo}, {S_T}, v{KO}')
            if u == 5:
                l1, l2 = g.label('L_k5'), g.label('L_k5j')
                g(f's_cmp_lt_u32 {S_CU}, {SPL - NMR}\ns_cbranch_scc1 {l1}')
                g(f'buffer_load_dwordx4 {vr(SLOT(u) + 4 * i, 4)}, v{vo}, {S_B}, {U2(5) if i >= 4 else U(5)} offen offset:{(i & 3) * 1024} nt')
                g(f's_branch {l2}\n{l1}:')
            g.vmop(f'buffer_load_dwordx4 {vr(SLOT(u) + 4 * i, 4)}, v{vo}, {S_A}, {U2(u) if i >= 4 else U(u)} offen '
                   f'offset:{((i >> 1) & 1) * 2048 + (i & 1) * 128} nt', pos)
            if u == 5:
                g(l2 + ':')
        elif n < 64:
            if n == 48:
                l1, l2 = g.label('L_xv'), g.label('L_xj')
                g(f's_lshl_b32 s98, s3, 14\ns_add_u32 m0, s98, {W1L}\ns_mov_b32 s95, 0x20000')
                g(f's_cmp_lt_u32 {S_CU}, {SPL - NMR}\ns_cbranch_scc1 {l1}')
                g(f's_lshl_b32 {S_T}, s3, 6\nv_add_u32 v{T2 + 1}, {S_T}, v0')
                nvoff(g, OO, 7168, T2 + 1, T2 + 2)
                g(f'v_mov_b32 v{OO + 1}, v{OO}')
                slice_index(S_T, 's98')
                g(f's_lshl_b32 {U(4)}, {S_T}, 7\ns_add_u32 {U(5)}, {U(4)}, {512 * 7168}\ns_mov_b32 {U2(4)}, {nstep() * 7168}')
                g(f's_mov_b32 s92, s28\ns_mov_b32 s93, s29\ns_mov_b32 s94, {1024 * 7168}')
                g(f's_branch {l2}\n{l1}:')
                g(f'v_sub_u32 v{T2 + 1}, v{VO}, v{KO}\nv_add_u32 v{OO}, v{OO}, v{T2 + 1}\nv_add_u32 v{OO + 1}, v{OO + 1}, v{T2 + 1}')
                g(f's_mov_b32 {U2(4)}, 1024\ns_mov_b32 s92, s60\ns_mov_b32 s93, s61\ns_mov_b32 s94, s62')
                g(l2 + ':')
            u = 4 + ((n - 48) >> 3)
            if n > 48:
                g('s_add_u32 m0, m0, 1024')
            g(f's_add_u32 {U(u)}, {U(u)}, {U2(4)}' if i else 's_nop 0')
            g.vmop(f'buffer_load_dwordx4 v{OO + u - 4}, s[92:95], {U(u)} offen nt lds', pos)
        else:
            u = (n - 64) >> 3
            vo = VO
            if u == 3 and LT:
                vo = OO
                if i == 0:
                    g(f'v_add_u32 v{vo}, {S_G3}, v{VO}')
            g.vmop(f'buffer_load_dwordx4 {vr(SLOT(VSLOT[u]) + 4 * i, 4)}, v{vo}, {S_B}, {U2(u) if i >= 4 else U(u)} offen '
                   f'offset:{(i & 3) * 1024} nt', pos)

    def mailbox():
        g.bits(GA, 0, [(5, 1, MBA_ST), (0, 5, 8)], T2)
        g(f'''s_and_b32 {S_T}, {S_R}, 3
              s_lshl_b32 {S_T}, {S_T}, 3
              s_add_u32 {S_T}, {S_T}, s3
              s_mul_i32 {S_T}, {S_T}, {2 * MBA_ST}
              s_lshr_b32 {S_GA}, {S_R}, 2
              s_mul_i32 {S_GA}, {S_GA}, {SLOTS}
              s_add_u32 {S_GA}, {S_GA}, {S_CU}
              s_lshl_b32 {S_GA}, {S_GA}, 8
              s_add_u32 {S_GA}, {S_GA}, {S_T}
              s_add_u32 {S_GA}, {S_GA}, {MBA}''')

    def setup():
        srd(g, S_WS, 44, WS_SIZE)
        if P['RANK'] or P['DBGST'] >= 0:
            srd(g, S_DBG, 42, 256)
        mailbox()
        g.vmop(epoch_load(T2 + 2), 'ep')
        if P['PFA'] == 1:
            prefetch_code(g, 'L_attn_body', 2, 8, TMP, 'pf')
        if P['PFA'] == 2:
            skip = g.label('L_nopf')
            g(f's_cmp_ge_u32 s2, {NG + 8}\ns_cbranch_scc1 {skip}')
            prefetch_code(g, 'L_attn_body', 2, 8, TMP)
            g(skip + ':')
        if P['TLB']:
            skip = g.label('L_notlb')
            sh = P['TLB']
            g(f'v_lshlrev_b32 v8, {sh}, v0')
            g.setexec((1 << min(64, 1 << (23 - sh))) - 1 if sh > 17 else -1)
            g(f's_cmp_eq_u32 s3, 1\ns_cbranch_scc0 {skip}_a\nbuffer_load_dword v{TMP + 4}, v8, {S_A}, 0 offen nt\n{skip}_a:')
            g(f's_cmp_eq_u32 s3, 2\ns_cbranch_scc0 {skip}_b\nbuffer_load_dword v{TMP + 4}, v8, {S_B}, 0 offen nt\n{skip}_b:')
            for w, (ptr, size) in enumerate(((28, 7 << 20), (32, 7 << 20), (38, 12 << 20), (44, WS_SIZE))):
                l = f'{skip}_{w}'
                g(f's_cmp_eq_u32 s3, {3 + w}\ns_cbranch_scc0 {l}')
                g(f's_mov_b32 s92, s{ptr}\ns_mov_b32 s93, s{ptr + 1}\ns_mov_b32 s94, {size}\ns_mov_b32 s95, 0x20000')
                g(f'buffer_load_dword v{TMP + 4}, v8, s[92:95], 0 offen offset:2048 {"sc1" if ptr == 44 else "nt"}')
                if size > (8 << 20):
                    g(f's_mov_b32 {S_T}, {8 << 20}\nv_add_u32 v9, {S_T}, v8\nbuffer_load_dword v{TMP + 4}, v9, s[92:95], 0 offen nt')
                g(l + ':')
            g.setexec(-1)
        g(f's_and_b32 {S_KV}, {S_R}, 3\ns_lshl_b32 {S_KV}, {S_KV}, 2')
        g.bits(QO, 0, [(0, 3, 256), (3, 1, 64), (4, 2, 16)], 8)
        g.bits(LA, 0, [(0, 4, 64)], 8)
        g(f's_lshl_b32 {S_T}, s3, 3\nv_add_u32 v8, {S_T}, v{LA}\nv_mov_b32 v9, -1\nds_write_b32 v8, v9 offset:{MX + 4}')
        g(f'v_mov_b32 v{T2}, 0\nds_write_b32 v{T2}, v{T2} offset:{QF}\ns_mov_b32 {S_ST}, 0\ns_waitcnt lgkmcnt(0)\ns_barrier')
        g(f'v_mov_b32 v{VSC}, 0x3db504f3\nv_mov_b32 v{VMAX}, 0xff800000')
        g('L_attn_body:')

    def lds_units():
        l1, l2 = g.label('L_w1'), g.label('L_w1j')
        g(f's_lshl_b32 {S_T}, s3, 14\ns_add_u32 {S_T}, {S_T}, {W1L}\nv_add_u32 v{T2}, {S_T}, v{VO}')
        g(f's_cmp_ge_u32 {S_CU}, {SPL - NMR}\ns_cbranch_scc1 {l1}')
        for i in range(16):
            g(f'ds_read_b128 {vr(SLOT(4) + 4 * i, 4)}, v{T2} offset:{i * 1024}')
        g('s_waitcnt lgkmcnt(8)')
        pv(4)
        g('s_waitcnt lgkmcnt(0)')
        pv(5)
        g(f's_branch {l2}\n{l1}:')
        if P['EV']:
            skip = g.label('L_p4')
            g(f's_cmp_eq_u32 {S_B4}, 0\ns_cbranch_scc1 {skip}')
            g(f'v_mov_b64 {vr(SP + 16, 2)}, {vr(SP + 12, 2)}\nv_mov_b64 {vr(SP + 18, 2)}, {vr(SP + 14, 2)}')
            g(skip + ':')
        pv(4, 5)
        for i in range(16):
            g(f'ds_read_b128 {vr(IL(UC, i >> 3, 4 * (i & 7)), 4)}, v{T2} offset:{i * 1024}')
        g('s_waitcnt lgkmcnt(8)')
        transpose(g, UC, T2, il=True)
        g('s_waitcnt lgkmcnt(0)')
        transpose(g, UC + 1, T2, il=True)
        g(l2 + ':')

    def qstep(final=False):
        skip = only_wave(g, P['QW'])
        l1, l3, top = g.label('L_q1'), g.label('L_q3'), g.label('L_qtop')
        if final:
            g(f's_mov_b32 {S_SPIN}, {SPIN}\n{top}:')
        g(f's_cmp_eq_u32 {S_ST}, 2\ns_cbranch_scc1 {skip}')
        if final:
            g(f's_waitcnt vmcnt(0)\ns_sub_u32 {S_SPIN}, {S_SPIN}, 1\ns_cbranch_scc1 {l3}')
        g(f's_cmp_eq_u32 {S_ST}, 0\ns_cbranch_scc1 {l1}')
        check(g, range(TMP, TMP + 16), T2, 0xffff)
        g(f's_cbranch_vccz {l3}')
        if final:
            g(f's_sleep {P["QSL"]}')
        g(l1 + ':')
        g(f's_lshl_b32 {S_T}, {S_R}, 12\ns_add_u32 {S_T}, {S_T}, {QB}\ns_mov_b32 {S_ST}, 1')
        for i in range(4):
            g(f'buffer_load_dwordx4 {vr(TMP + 4 * i, 4)}, v{VO}, {S_WS}, {S_T} offen offset:{1024 * i} sc1')
        g(f's_branch {top if final else skip}')
        g(l3 + ':')
        g(f'v_lshlrev_b32 v{T2}, 3, v0')
        for i in range(8):
            g(f'v_perm_b32 v{Q0 + i}, v{TMP + 2 * i + 1}, v{TMP + 2 * i}, {S_HI}')
        for i in range(4):
            g(f'ds_write_b64 v{T2}, {vr(Q0 + 2 * i, 2)} offset:{QL + 512 * i}')
        g(f'v_mov_b32 v{T2}, 0\nv_mov_b32 v{T2 + 1}, 1\ns_mov_b32 {S_ST}, 2\ns_waitcnt lgkmcnt(0)')
        g(f'ds_write_b32 v{T2}, v{T2 + 1} offset:{QF}')
        g(skip + ':')

    def qget():
        g.stamp('a_qwait')
        if P['NOQ']:
            return
        qstep(final=True)
        lp, ok = g.label('L_qf'), g.label('L_qfok')
        g(f'v_mov_b32 v{T2}, 0\ns_mov_b32 {S_SPIN}, {SPIN * 16}\n{lp}:')
        g(f'ds_read_b32 v{T2 + 1}, v{T2} offset:{QF}\ns_waitcnt lgkmcnt(0)')
        g(f'v_cmp_eq_u32 vcc, 0, v{T2 + 1}\ns_cbranch_vccz {ok}')
        g(f's_sleep 2\ns_sub_u32 {S_SPIN}, {S_SPIN}, 1\ns_cbranch_scc0 {lp}\n{ok}:')
        g(f'ds_read_b128 {vr(Q0, 4)}, v{QO} offset:{QL}\nds_read_b128 {vr(Q0 + 4, 4)}, v{QO} offset:{QL + 128}')
        g('s_waitcnt lgkmcnt(0)')
        g.stamp('a_qseen')

    def qk(u):
        for t in range(4):
            g(f'v_mfma_f32_16x16x32_bf16 {vr(TMP + 4 * t, 4)}, {vr(SLOT(u) + 8 * t, 4)}, {vr(Q0, 4)}, 0')
        for t in range(4):
            g(f'v_mfma_f32_16x16x32_bf16 {vr(TMP + 4 * t, 4)}, {vr(SLOT(u) + 8 * t + 4, 4)}, {vr(Q0 + 4, 4)}, {vr(TMP + 4 * t, 4)}')
        g.nop(5)
        for t in range(4):
            d = TMP + 4 * t
            a, b = T2 + 2 * (t & 1), T2 + 2 * (t & 1) + 1
            g(f'v_add_f32_dpp v{a}, v{d + 1}, v{d} row_ror:8 {DPP}\nv_add_f32_dpp v{b}, v{d + 3}, v{d + 2} row_ror:8 {DPP}')
            round2(g, a)
            if u >= 4 or (u == 3 and LT and mode == 'main'):
                sb = (S_B3, S_B4, S_B5)[u - 3]
                g(f'v_fma_f32 v{a}, v{a}, v{VSC}, {sb}\nv_fma_f32 v{b}, v{b}, v{VSC}, {sb}')
            else:
                g(f'v_mul_f32 v{a}, v{a}, v{VSC}\nv_mul_f32 v{b}, v{b}, v{VSC}')
            g(f'v_max3_f32 v{VMAX}, v{VMAX}, v{a}, v{b}\nv_cvt_pk_bf16_f32 v{SP + 4 * u + t}, v{a}, v{b}')

    def red_g(r, t, op):
        for ins in ('v_permlane32_swap_b32', 'v_permlane16_swap_b32'):
            g(f'v_mov_b32 v{t}, v{r}')
            g.nop(2)
            g(f'{ins} v{r}, v{t}\n{op} v{r}, v{r}, v{t}')

    def softmax():
        red_g(VMAX, T2, 'v_max_f32')
        for i in range(0, 32, 2):
            g(f'v_mov_b64 {vr(AC + i, 2)}, 0')
        g(f'v_mov_b32 v{VSC}, 0x3fb8aa3b\nv_mov_b32 v{T2 + 4}, 0')
        g(f'v_cvt_pk_bf16_f32 v{VMAX}, 0, v{VMAX}')
        g(f'v_mul_f32 v{T2 + 5}, v{VMAX}, v{VSC}')

    def probs(u, last=NU - 1):
        for i in range(4 * u, 4 * u + 4):
            p = SP + i
            a, b = T2 + 2 * (i & 1), T2 + 2 * (i & 1) + 1
            unpack2(g, a, p)
            g(f'v_fma_f32 v{a}, v{a}, v{VSC}, -v{T2 + 5}\nv_fma_f32 v{b}, v{b}, v{VSC}, -v{T2 + 5}')
            g(f'v_exp_f32 v{a}, v{a}\nv_exp_f32 v{b}, v{b}')
            g(f'v_add_f32 v{T2 + 4}, v{T2 + 4}, v{a}\nv_add_f32 v{T2 + 4}, v{T2 + 4}, v{b}')
            if not (P['EPI'] and u == 3 and mode == 'main'):
                g(f'v_cvt_pk_bf16_f32 v{p}, v{a}, v{b}')
        if u == last:
            red_g(T2 + 4, T2, 'v_add_f32')
            g(f's_lshl_b32 {S_T}, s3, 3\nv_add_u32 v{T2}, {S_T}, v{LA}\nv_mov_b32 v{T2 + 2}, v{VMAX}\nv_min_u32 v{T2 + 3}, -2, v{T2 + 4}')
            g(f'ds_write_b64 v{T2}, {vr(T2 + 2, 2)} offset:{MX}')
            if mode == 'main':
                g.stamp('a_probs')

    def pv(u, slot=None):
        s = SLOT(VSLOT[u] if slot is None else slot)
        for w in range(4):
            t = TMP + 8 * (w & 1)
            for p in range(4):
                g(f'v_perm_b32 v{t + p}, v{s + 8 * p + 4 + w}, v{s + 8 * p + w}, {S_LO}')
            for p in range(4):
                g(f'v_perm_b32 v{t + 4 + p}, v{s + 8 * p + 4 + w}, v{s + 8 * p + w}, {S_HI}')
            g(f'v_mfma_f32_16x16x32_bf16 {vr(AC + 8 * w, 4)}, {vr(t, 4)}, {vr(SP + 4 * u, 4)}, {vr(AC + 8 * w, 4)}')
            g('s_nop 0')
            g(f'v_mfma_f32_16x16x32_bf16 {vr(AC + 8 * w + 4, 4)}, {vr(t + 4, 4)}, {vr(SP + 4 * u, 4)}, {vr(AC + 8 * w + 4, 4)}')

    def gather_ml():
        lp, ok = g.label('L_ml'), g.label('L_mlok')
        g(f's_mov_b32 {S_SPIN}, {SPIN * 16}\n{lp}:')
        for i in range(4):
            g(f'ds_read_b128 {vr(TMP + 4 * i, 4)}, v{LA} offset:{MX + 16 * i}')
        g('s_waitcnt lgkmcnt(0)')
        g(f'v_max_u32 v{T2}, v{TMP + 1}, v{TMP + 3}')
        for i in range(5, 16, 4):
            g(f'v_max3_u32 v{T2}, v{T2}, v{TMP + i}, v{TMP + i + 2}')
        g(f'v_cmp_eq_u32 vcc, -1, v{T2}\ns_cbranch_vccz {ok}')
        g(f's_sleep 2\ns_sub_u32 {S_SPIN}, {S_SPIN}, 1\ns_cbranch_scc0 {lp}\n{ok}:')
        g(f'v_max_f32 v{T2 + 2}, v{TMP}, v{TMP + 2}')
        for i in range(4, 16, 4):
            g(f'v_max3_f32 v{T2 + 2}, v{T2 + 2}, v{TMP + i}, v{TMP + i + 2}')

    def stats():
        skip = only_wave(g, P['SW'])
        gather_ml()
        g(f'v_mov_b32 v{T2 + 3}, 0')
        for i in range(0, 16, 2):
            g(f'v_sub_f32 v{TMP + i}, v{TMP + i}, v{T2 + 2}\nv_mul_f32 v{TMP + i}, 0x3fb8aa3b, v{TMP + i}')
        for i in range(0, 16, 2):
            g(f'v_exp_f32 v{TMP + i}, v{TMP + i}')
        g(f's_lshl_b32 {S_T}, {S_R}, 11\ns_lshl_b32 s98, {S_CU}, 3\ns_add_u32 {S_T}, {S_T}, s98\ns_add_u32 {S_T}, {S_T}, {STATS}')
        for i in range(0, 16, 2):
            g(f'v_fmac_f32 v{T2 + 3}, v{TMP + i}, v{TMP + i + 1}')
        g(f'v_lshlrev_b32 v{T2}, 8, v0')
        tagmask(g, T2 + 1)
        g(f'v_or_b32 v{T2 + 2}, {S_T16}, v{T2 + 2}')
        tag(g, [T2 + 3], T2 + 1)
        g.setexec(0xff)
        if not P['XS']:
            g(f'buffer_store_dwordx2 {vr(T2 + 2, 2)}, v{T2}, {S_WS}, {S_T} offen sc1')
        g.setexec(-1)
        g(skip + ':')

    def factor():
        gather_ml()
        g(f'v_sub_f32 v{FS}, v{VMAX}, v{T2 + 2}\nv_mul_f32 v{FS}, 0x3fb8aa3b, v{FS}\nv_exp_f32 v{FS}, v{FS}')
        tagmask(g, FS + 1)
        if P['EPI'] and mode == 'main':
            assert not P['EV']
            g(f'v_mul_f32 v{T2 + 5}, 0x3fb8aa3b, v{T2 + 2}\nv_mov_b32 v{T2 + 4}, 0x3fb8aa3b')
            for i in range(0, 32, 2):
                g(f'v_pk_mul_f32 {vr(AC + i, 2)}, {vr(AC + i, 2)}, {vr(FS, 2)} op_sel_hi:[1,0]')
            for i in range(12, 16):
                p = SP + i
                a, b = T2 + 2 * (i & 1), T2 + 2 * (i & 1) + 1
                unpack2(g, a, p)
                g(f'v_fma_f32 v{a}, v{a}, v{T2 + 4}, -v{T2 + 5}\nv_fma_f32 v{b}, v{b}, v{T2 + 4}, -v{T2 + 5}')
                g(f'v_exp_f32 v{a}, v{a}\nv_exp_f32 v{b}, v{b}\ns_nop 0\nv_cvt_pk_bf16_f32 v{p}, v{a}, v{b}')

    def pv_last():
        s, t = SLOT(VSLOT[3]), SLOT(2)
        perm = lambda w, p: (f'v_perm_b32 v{t + 8 * w + p}, v{s + 8 * p + 4 + w}, v{s + 8 * p + w}, {S_LO}\n'
                             f'v_perm_b32 v{t + 8 * w + 4 + p}, v{s + 8 * p + 4 + w}, v{s + 8 * p + w}, {S_HI}')
        for p in range(3):
            land(89 + 2 * p)
            for w in range(4):
                g(perm(w, p))
        land(95)
        g.stamp('a_landed')
        for w in range(4):
            g(perm(w, 3))
        for j in range(8):
            g(f'v_mfma_f32_16x16x32_bf16 {vr(AC + 4 * j, 4)}, {vr(t + 4 * j, 4)}, {vr(SP + 12, 4)}, {vr(AC + 4 * j, 4)}')

    FS = Q0 + 2
    WA, RA = KO, QO

    def epi_addr():
        g(f's_mul_i32 {S_T}, s3, {OST}\ns_add_u32 {S_T}, {S_T}, {OBUF}')
        g.bits(WA, 0, [(4, 2, 128), (0, 4, 16)], T2, S_T)
        g(f's_lshl_b32 {S_T}, s3, 4\ns_add_u32 {S_T}, {S_T}, {OBUF}')
        g.bits(RA, 0, [(1, 3, 528), (4, 2, 128), (0, 1, 8)], T2, S_T)
        g(f'v_add_u32 v{VSC}, {4 * OST}, v{RA}')

    def epilogue():
        g.setexec(rep16(0xff))
        for j in range(8):
            for h in (0, 2) if not (P['EPI'] and mode == 'main') else ():
                g(f'v_pk_mul_f32 {vr(AC + 4 * j + h, 2)}, {vr(AC + 4 * j + h, 2)}, {vr(FS, 2)} op_sel_hi:[1,0]')
            g(f'ds_write_b128 v{WA}, {vr(AC + 4 * j, 4)} offset:{528 * j}')
        g.setexec(-1)
        if P['W2E'] and not P['W2P'] and mode == 'main':
            skip = g.label('L_now2')
            g(f's_cmp_lt_u32 {S_CU}, {SPL - NMR}\ns_cbranch_scc1 {skip}')
            kload(g, UB, 32, 3584 * 2048, 's14', OO + 1, lambda kb, t: 32 * kb + 4 * t, 'w2', which=range(P['W2E']))
            g(skip + ':')
        g('s_waitcnt lgkmcnt(0)\ns_barrier')
        for w in range(8):
            g(f'ds_read_b64 {vr(TMP + 2 * w, 2)}, v{RA if w < 4 else VSC} offset:{OST * (w & 3)}')
        g('s_waitcnt lgkmcnt(4)')
        pk4(g, 'v_pk_add_f32', TMP, TMP, TMP + 4)
        g('s_waitcnt lgkmcnt(0)')
        pk4(g, 'v_pk_add_f32', TMP + 8, TMP + 8, TMP + 12)
        pk4(g, 'v_pk_add_f32', TMP, TMP, TMP + 8)
        g(f'v_pk_add_f32 {vr(TMP, 2)}, {vr(TMP, 2)}, {vr(TMP + 2, 2)}')
        tag(g, [TMP, TMP + 1], FS + 1)
        if not P['XP']:
            g(f'buffer_store_dwordx2 {vr(TMP, 2)}, v{GA}, {S_WS}, {S_GA} offen sc1')

    GK, GV, S_GU = 12, 13, 's100'
    if mode == 'g_addr':
        g(f'''s_lshr_b32 {S_R}, s14, 3
              s_and_b32 {S_CU}, s14, 7
              s_lshl_b32 {S_GU}, {S_CU}, 3
              s_add_u32 {S_GU}, {S_GU}, s3
              s_mul_i32 {S_T}, {S_R}, {P["PH"]}
              s_add_u32 {S_GU}, {S_GU}, {S_T}
              s_add_u32 {S_CU}, {S_CU}, {SPL}''')
        g.bits(GK, 0, [(1, 1, 1024), (2, 2, 256), (0, 1, 64), (4, 2, 16)], GV)
        g(f'v_lshlrev_b32 v{GV}, 4, v0')
        return
    if mode == 'g_issue':
        for n in arg:
            i, isk, u = n & 7, n < 8 * NUG, (n >> 3) % NUG
            if i == 0:
                p = 18 if isk else 20
                g(f's_lshl_b32 {S_T}, {S_R}, 23\ns_add_u32 s56, s{p}, {S_T}\ns_addc_u32 s57, s{p + 1}, 0\ns_mov_b32 s58, 0x800000')
                g(f's_add_u32 s101, {S_GU}, {1024 - 64 * (NUG - u)}\ns_and_b32 s101, s101, 1023\ns_lshl_b32 s101, s101, 13\ns_add_u32 {S_T}, s101, 4096')
            off = ((i >> 1) & 1) * 2048 + (i & 1) * 128 if isk else (i & 3) * 1024
            g(f'buffer_load_dwordx4 {vr(SLOT(0) + 4 * n, 4)}, v{GK if isk else GV}, {S_A}, {S_T if i >= 4 else "s101"} offen offset:{off} nt')
        return
    gq = '\n'.join(f'buffer_load_dwordx4 {vr(Q0 + 4 * i, 4)}, v{LA}, {S_WS}, 0 offen offset:{(i >> 1) * 256 + (i & 1) * 16} sc1' for i in range(4))

    def gq_addr():
        g(f's_lshl_b32 {S_T}, {S_R}, 12\ns_add_u32 {S_T}, {S_T}, {QB}')
        g.bits(LA, 0, [(0, 3, 512), (3, 1, 128), (4, 2, 32)], GA, S_T)
    if mode == 'g_q':
        gq_addr()
        g.vmop(gq, 'gq')
        return
    if mode == 'g_compute':
        g.vmwait('gq')
        poll(g, gq, range(Q0, Q0 + 16), T2, 8, preloaded=True, mask=0xffff)
        for i in range(8):
            g(f'v_perm_b32 v{Q0 + i}, v{Q0 + 2 * i + 1}, v{Q0 + 2 * i}, {S_HI}')
        mailbox()
        g.bits(LA, 0, [(0, 4, 64)], T2)
        g(f'v_mov_b32 v{VSC}, 0x3db504f3\nv_mov_b32 v{VMAX}, 0xff800000')
        for u in range(NUG):
            qk(u)
        softmax()
        for u in range(NUG):
            probs(u, NUG - 1)
        epi_addr()
        for u in range(NUG):
            pv(u)
        g('s_waitcnt lgkmcnt(0)\ns_barrier')
        stats()
        factor()
        g('s_nop 0')
        epilogue()
        g('s_barrier')
        return

    entry()
    GS = P['GS']
    order = list(range(96))
    if P['ILV']:
        order = list(range(32, 48))
        for i in range(16):
            order += [2 * i, 2 * i + 1, 48 + i]
        order += list(range(64, 96))
    last = lambda ids: max(order.index(i) for i in ids)
    depth = lambda n: P['DK1'] if n < P['NK1'] else (P['DK2'] if n < 48 else (P['DX'] if n < 64 else P['DV']))
    qsteps = list(range(P['QP0'] - 1, P['QG'] - 1, P['QPS']))
    st = dict(landed=-1, issued=-1, done=0)

    def land(n):
        if n > st['landed']:
            g.vmwait(n)
            st['landed'] = n

    W = [('q', -1, qget)]
    W += [('qk%d' % u, last(range(8 * u, 8 * u + 8)), lambda u=u: qk(u)) for u in ([0, 1, 4, 5, 2, 3] if P['ILV'] else range(NU))]
    W += [('sm', -1, softmax)]
    W += [('pr%d' % u, -1, lambda u=u: probs(u)) for u in range(NU)]
    W += [('st', -1, stats), ('rb', 63, lambda: (epi_addr(), lds_units()))]
    for u in range(4):
        if u == 3:
            W += [('fs', -1, factor)]
        W += [('pv%d' % u, 64 + 8 * u + 7, lambda u=u: ((g.stamp('a_landed') if u == 3 else None), pv(u)))]
    names = [w[0] for w in W]

    def work(budget, need=None):
        while st['done'] < len(W):
            forced = need is not None and st['done'] <= names.index(need)
            name, ld, act = W[st['done']]
            if not forced and (budget <= 0 or st['landed'] < ld or st['issued'] < P['QG'] - 1):
                return
            assert ld <= st['issued']
            land(ld)
            act()
            st['done'] += 1
            budget -= 1

    for n in range(0, 96, GS):
        d = depth(n)
        if n + GS - 1 >= d:
            land(n + GS - 1 - d)
        if n >= 64 and n % 8 == 0:
            work(0, ['qk1', 'qk2', 'qk3', 'pv0'][(n - 64) >> 3])
        if P['PRIO']:
            steps = [int(x) for x in P['PRIO'].split('.')]
            if n in steps:
                g(f's_setprio {3 - steps.index(n) % 4}')
        for i in range(GS):
            load(order[n + i], n + i)
        m = n + GS - 1
        if m == P['FAST'] - 1:
            g.stamp('a_fast', (5,))
            if PADAT and PADAT[0] == 'a_data':
                g('s_waitcnt vmcnt(3)')
                g.stamp('a_data', (5,))
            entry2()
            setup()
            g.stamp('a_setup', (5,))
        st['issued'] = m
        if m == P['WPOS'] and 's' in P['WREG']:
            skip = only_wave(g, 7)
            g.warm_run('L_ws')
            g(skip + ':')
            g.warm_begin('L_ws')
        if m == P['STPOS']:
            g.stamp('a_pos')
        if m >= 20 and not st.get('ep'):
            st['ep'] = True
            g.vmwait('ep')
            epoch_tag(g, T2 + 2)
        if m in qsteps:
            if m != qsteps[0]:
                land(m - P['QPS'] + 1)
            qstep()
        if m == P['MLD']:
            work(0, 'rb')
            skip = g.label('L_nomld')
            g(f's_cmp_lt_u32 {S_CU}, {SPL - NMR}\ns_cbranch_scc1 {skip}')
            g(f's_lshl_b32 {S_T}, s3, 6\nv_add_u32 v{T2}, {S_T}, v0')
            g.bits(T2 + 1, T2, [(8, 1, 16384), (0, 8, 16)], T2 + 2, MODL + 4096)
            g(f's_lshl_b32 s98, s3, 14\ns_add_u32 m0, s98, {W1L + 8192}')
            for i in range(4):
                g(f's_mov_b32 {S_T}, {(i & 1) * 32768 + (i >> 1) * 4096}')
                g(f'buffer_load_dwordx4 v{T2 + 1}, {S_WS}, {S_T} offen sc1 lds\ns_add_u32 m0, m0, 1024')
            g(skip + ':')
        work(GS)
    work(0, 'fs')
    slice_index('s14', 's15')
    g(f's_lshl_b32 {S_T}, s3, 8')
    g.bits(OO + 1, 0, [(4, 2, 2048), (0, 4, 16)], T2, S_T)
    g.warm_end()
    g.warm_run('L_wa')
    if 'p' in P['WREG']:
        skip = g.label('L_nowp')
        g(f's_cmp_lt_u32 {S_CU}, {SPL - NMR}\ns_cbranch_scc1 {skip}\ns_cmp_lg_u32 s3, 0\ns_cbranch_scc1 {skip}')
        g.warm_run('L_wp')
        g(skip + ':')
    if not P['EPI']:
        land(95)
    if P['HLP']:
        skip = only_wave(g, P['HFW'])
        g(f's_cmp_lt_u32 {S_CU}, {SPL - NMR}\ns_cbranch_scc1 {skip}')
        g(f's_lshl_b32 {S_T}, {S_R}, 3\ns_add_u32 {S_T}, {S_T}, {S_CU}\ns_lshl_b32 {S_T}, {S_T}, 8\ns_add_u32 {S_T}, {S_T}, {HFLAG - 256 * 16}')
        g(f'v_mov_b32 v{T2}, {S_EPO}\ns_mov_b64 exec, 1\nbuffer_store_dword v{T2}, off, {S_WS}, {S_T} sc1\ns_mov_b64 exec, -1')
        g(skip + ':')
    g.warm_begin('L_wa')
    if P['EPI']:
        pv_last()
    else:
        work(0, 'pv3')
    epilogue()
    g.warm_end()
    g.stamp('a_pub', (0, 1, 2, 3, 4))
    g(f's_cmp_ge_u32 {S_CU}, {SPL - NMR}\ns_cbranch_scc1 L_mlp')
    if P['RANK']:
        skip = only_wave(g, 0)
        arrive(g, 8, 0, C_R)
        g(f'v_mov_b32 v9, 0\ns_waitcnt vmcnt(0)\ns_mov_b64 exec, 1\nds_write_b32 v9, v8 offset:{RK}\ns_mov_b64 exec, -1\ns_waitcnt lgkmcnt(0)')
        g(skip + ':')
        g(f's_barrier\nv_mov_b32 v8, 0\nds_read_b32 v8, v8 offset:{RK}\ns_waitcnt lgkmcnt(0)\nv_readfirstlane_b32 s14, v8')
    else:
        g(f's_sub_u32 s14, {S_CU}, 1\ns_lshl_b32 s14, s14, 3\ns_add_u32 s14, s14, {S_R}')
    if P['LSKIP']:
        g(f's_sub_u32 s14, s14, {P["LSKIP"]}')
    g(f's_cmp_lt_u32 s14, {min(128, 64 * (4 - P["GJ"])) if P["LQ"] == 2 else (32 if P["GH"] else 64 if P["GBG"] else 96)}\ns_cbranch_scc1 L_late')
    if P['HLP']:
        done = g.label('L_nohelp')
        g(f's_sub_u32 s4, {S_CU}, 9\ns_cmp_ge_u32 s4, 7\ns_cbranch_scc1 {done}\ns_add_u32 {S_CU}, {S_CU}, 8')
        g(f's_lshl_b32 s5, {S_R}, 3\ns_add_u32 s5, s5, {S_CU}\ns_lshl_b32 s5, s5, 8\ns_add_u32 s5, s5, {HFLAG - 256 * 16}')
        slice_index('s14', 's15')
        srd(g, S_A, 32, 3584 * 2048)
        g(f's_lshl_b32 s6, s14, 17\ns_lshl_b32 s7, s3, 10\ns_add_u32 s6, s6, s7\ns_add_u32 s6, s6, {131072 - 8192}')
        lp, ok = g.label('L_hp'), g.label('L_hpok')
        g(f'buffer_load_dword v8, off, {S_WS}, s5 sc1\ns_waitcnt vmcnt(0)\nv_cmp_ne_u32 vcc, {S_EPO}, v8\ns_cbranch_vccz {done if P["HLP"] == 1 else ok}')
        g(f's_mov_b32 {S_SPIN}, {SPIN}\n{lp}:\ns_sleep 2\nbuffer_load_dword v8, off, {S_WS}, s5 sc1\ns_waitcnt vmcnt(0)')
        g(f'v_cmp_ne_u32 vcc, {S_EPO}, v8\ns_cbranch_vccz {ok}\ns_sub_u32 {S_SPIN}, {S_SPIN}, 1\ns_cbranch_scc0 {lp}\n{ok}:')
        for i in range(P['HN']):
            g(f'buffer_load_dwordx4 {vr(64 + 4 * i, 4)}, v{VO}, {S_A}, s6 offen nt\ns_sub_u32 s6, s6, 8192')
        g(f's_waitcnt vmcnt(0)\n{done}:')
    for bud in range(1, P['BUD'] + 1):
        g(f's_add_u32 s4, {S_CU}, {8 * bud}\ns_sub_u32 s5, s4, {SPL}\ns_cselect_b32 s4, s4, s5')
        g(f's_lshl_b32 s4, s4, 3\ns_sub_u32 s5, 7, s3\ns_add_u32 s4, s4, s5\ns_mul_i32 s5, {S_R}, {P["PH"]}\ns_add_u32 s4, s4, s5')
        g(f's_add_u32 s4, s4, {base[3]}\ns_and_b32 s4, s4, 1023\ns_lshl_b32 s4, s4, 13\ns_add_u32 s5, s4, 4096')
        if bud == 1:
            g('s_barrier')
        for i in range(7, 7 - P['BUDN'], -1):
            g(f'buffer_load_dwordx4 {vr(64 + 4 * i, 4)}, v{VO}, {S_B}, {"s5" if i >= 4 else "s4"} offen offset:{(i & 3) * 1024} {P["BUDF"]}')
    write_stamps(g)
    g('s_endpgm')


DOC = """; One persistent launch, one 8-wave workgroup per CU (generated by the author's script).
;   ids 64..255  attention role: 24 workgroups per (batch, kv head); K is parked in registers until q arrives, scores
; the launch replaces once every wave has read it, so that words left by earlier launches are never taken for this launch's."""


def build(stamps=False):
    g = G(stamps)
    ref = open(REF).read()
    g.L.append(ref[:ref.index('; Override launch')].rstrip())
    g.L.append('; @launch grid=(%d,1,1) block=(512,1,1) lds=%d' % (NWG, LDS_TOTAL))
    g.L.append('.amdgcn_target "amdgcn-amd-amdhsa--gfx950"\n.text\n.globl %s_kernel\n.p2align 8\n.type %s_kernel,@function' % (NAME, NAME))
    g.L.append(DOC)
    g.L.append('%s_kernel:' % NAME)
    g.stamp('start', (0, 1, 2, 3, 4, 6))
    g(f'''s_load_dwordx16 s[16:31], s[0:1], 0
          s_load_dwordx8 s[32:39], s[0:1], 64
          s_load_dwordx4 s[40:43], s[0:1], 96
          s_load_dwordx2 s[44:45], s[0:1], 112
          v_lshrrev_b32 v1, 6, v0
          v_and_b32 v0, 63, v0
          v_readfirstlane_b32 s3, v1''')
    g(f's_cmp_lt_u32 s2, {NG}\ns_cbranch_scc1 L_proj')
    g(f's_cmp_ge_u32 s2, {NWG}\ns_cbranch_scc1 L_exit')
    n0 = g.nst
    attention(g)
    n1 = g.nst
    g.nostw = True
    armed = getattr(g, 'padarmed', False)
    latem(g)
    g.padarmed = armed
    g.nst = n1 + (1 if g.stamps and P['ST'] < 3 else 0)
    mlp(g)
    g.nst = n0
    g.padarmed = bool(PADAT) and PADAT[0] == 'start'
    proj(g)
    g('L_exit:\ns_endpgm')
    g('.fill 2048, 4, 0xbf800000')
    g.L.append('''.section .rodata,"a"
.p2align 6
.amdhsa_kernel %s_kernel
  .amdhsa_next_free_vgpr 256
  .amdhsa_next_free_sgpr 102
  .amdhsa_accum_offset 256
  .amdhsa_group_segment_fixed_size 0
  .amdhsa_kernarg_size 120
  .amdhsa_user_sgpr_count 2
  .amdhsa_user_sgpr_kernarg_segment_ptr 1
  .amdhsa_system_sgpr_workgroup_id_x 1
.end_amdhsa_kernel''' % NAME)
    return '\n'.join(g.L) + '\n'


if __name__ == '__main__':
    out = sys.argv[1]
    for a in sys.argv[2:]:
        if a.startswith('PADAT='):
            PADAT.append(a[6:])
        elif '=' in a:
            k, v = a.split('=')
            assert k in P, k
            P[k] = v.replace('none', '') if isinstance(P[k], str) else int(v)
    open(out, 'w').write(build(stamps='--stamps' in sys.argv))
```
